```python
import torch

def _softmax(x, axis=-1):
    return torch.softmax(x, dim=axis)
def _gelu(x):
    return torch.nn.functional.gelu(x, approximate="tanh")
def _silu(x):
    return torch.nn.functional.silu(x)
def _sigmoid(x):
    return torch.sigmoid(x)
def _layernorm(x, axis=-1, eps=1e-5):
    m = x.mean(dim=axis, keepdim=True)
    v = x.var(dim=axis, keepdim=True, unbiased=False)
    return (x - m) / torch.sqrt(v + eps)
def _scatter_add(tgt, idx, src, axis=0):
    return tgt.clone().index_add_(axis, idx, src)
def _segment_sum(src, seg, n):
    out = torch.zeros((n,) + src.shape[1:], dtype=src.dtype)
    return out.index_add_(0, seg, src)
def _pad(x, pw):
    flat = tuple(v for pair in reversed(pw) for v in pair)
    return torch.nn.functional.pad(x, flat)

kernel_name = 'parallel_sum__linear_kernel_hedgehog__mixer_token_mlp__prompt'

def setup_inputs():

    _w = (lambda a: (lambda t: t.to(torch.bfloat16) if t.is_floating_point() else t)(torch.as_tensor(a)))
    def _A_setup():
        B, S, D, H = 1, 2048, 448, 16
        Dh = D // H
        return {
            "x": _w((lambda *s: torch.randn(*s, dtype=torch.bfloat16) * 0.05)(B, S, D)),
            "wqkv": _w((lambda *s: torch.randn(*s, dtype=torch.bfloat16) * 0.2)(D, 3 * D)),
            "w_phi": _w((lambda *s: torch.randn(*s, dtype=torch.bfloat16) * 0.2)(H, Dh, Dh) * (Dh ** -0.5)),
            "wo": _w((lambda *s: torch.randn(*s, dtype=torch.bfloat16) * 0.05)(D, D)),
        }
    _A_in = _A_setup()

    def _B_setup():
        B, S, D, F = 1, 2048, 448, 1792
        return {
            "x": _w((lambda *s: torch.randn(*s, dtype=torch.bfloat16) * 0.05)(B, S, D)),
            "w1": _w((lambda *s: torch.randn(*s, dtype=torch.bfloat16) * 0.8)(S, F) * (S ** -0.5)),
            "b1": _w((lambda *s: torch.randn(*s, dtype=torch.bfloat16) * 3.2)(F) * 0.02),
            "w2": _w((lambda *s: torch.randn(*s, dtype=torch.bfloat16) * 0.4)(F, S) * (F ** -0.5)),
            "b2": _w((lambda *s: torch.randn(*s, dtype=torch.bfloat16) * 1.6)(S) * 0.02),
        }
    _B_in = _B_setup()

    return {
        "A_x": _A_in["x"],
        "A_wqkv": _A_in["wqkv"],
        "A_w_phi": _A_in["w_phi"],
        "A_wo": _A_in["wo"],
        "B_x": _B_in["x"],
        "B_w1": _B_in["w1"],
        "B_b1": _B_in["b1"],
        "B_w2": _B_in["w2"],
        "B_b2": _B_in["b2"],
    }

def reference(A_x, A_wqkv, A_w_phi, A_wo, B_x, B_w1, B_b1, B_w2, B_b2):
    def _A_ref(x, wqkv, w_phi, wo):
        B, S, D = x.shape
        H = 16; Dh = D // H
        qkv = (lambda x, *d: x.permute(*d))((x @ wqkv).reshape(B, S, 3, H, Dh), 2, 0, 3, 1, 4)
        q, k, v = qkv[0], qkv[1], qkv[2]
        pq = torch.einsum("bhsd,hdf->bhsf", q, w_phi)
        pk = torch.einsum("bhsd,hdf->bhsf", k, w_phi)
        phi_q = torch.concatenate([_softmax(pq, axis=-1), _softmax(-pq, axis=-1)], axis=-1)
        phi_k = torch.concatenate([_softmax(pk, axis=-1), _softmax(-pk, axis=-1)], axis=-1)
        kv = torch.einsum("bhsf,bhsd->bhfd", phi_k, v)
        z  = torch.einsum("bhsf->bhf", phi_k)
        num = torch.einsum("bhqf,bhfd->bhqd", phi_q, kv)
        den = torch.einsum("bhqf,bhf->bhq", phi_q, z)[..., None] + 1e-6
        o = num / den
        return (lambda x, *d: x.permute(*d))(o, 0, 2, 1, 3).reshape(B, S, D) @ wo

    def _B_ref(x, w1, b1, w2, b2):
        B, S, D = x.shape
        h = _layernorm(x, axis=-1)
        u = torch.einsum("bsd,sf->bdf", h, w1) + b1
        u = _gelu(u)
        y = torch.einsum("bdf,fs->bds", u, w2) + b2
        return (lambda x, *d: x.permute(*d))(y, 0, 2, 1)

    x = A_x
    xn = _layernorm(x, axis=-1)
    return x + _A_ref(xn, A_wqkv, A_w_phi, A_wo) + _B_ref(xn, B_w1, B_b1, B_w2, B_b2)
```

```python
import sys, struct

NAME = "parallel_sum__linear_kernel_hedgehog__mixer_token_mlp__prompt"

XN_OFF   = 0x000000
HT_OFF   = 0x200000
HT_G     = 128 * 1792
WP_OFF   = 0x400000
WP_H     = 28 * 2688
WPHI_OFF = 0x540000
UP_OFF   = 0x600000
UP_G     = 144 * 1792
KV_OFF   = 0x800000
FLAG_OFF = KV_OFF + 131072
PQ_OFF   = 0x900000
OF_OFF   = 0xD00000
WS_USED  = 0x1000000
OOB      = 0x7FFFFFF0

def f32(x):
    return "0x%08x" % struct.unpack("<I", struct.pack("<f", x))[0]

class Asm:
    def __init__(self):
        self.lines = []
    def __call__(self, s):
        for l in s.strip().split("\n"):
            self.lines.append("    " + l.strip())
    def label(self, l):
        self.lines.append(l + ":")
    def c(self, s):
        self.lines.append("    ; " + s)
    def text(self):
        return "\n".join(self.lines) + "\n"

def vr(a, n):
    return "v[%d:%d]" % (a, a + n - 1)

def srd(a, d, base, size, add=None):
    if add is None:
        a("s_mov_b32 s%d, s%d" % (d, base))
        a("s_and_b32 s%d, s%d, 0xffff" % (d + 1, base + 1))
    else:
        a("s_add_u32 s%d, s%d, %s" % (d, base, add))
        a("s_addc_u32 s%d, s%d, 0" % (d + 1, base + 1))
        a("s_and_b32 s%d, s%d, 0xffff" % (d + 1, d + 1))
    a("s_mov_b32 s%d, %s" % (d + 2, size))
    a("s_mov_b32 s%d, 0x20000" % (d + 3))

def wave_reduce(a, regs):
    steps = ["quad_perm:[1,0,3,2] row_mask:0xf bank_mask:0xf",
             "quad_perm:[2,3,0,1] row_mask:0xf bank_mask:0xf",
             "row_half_mirror row_mask:0xf bank_mask:0xf",
             "row_mirror row_mask:0xf bank_mask:0xf",
             "row_bcast:15 row_mask:0xa bank_mask:0xf",
             "row_bcast:31 row_mask:0xc bank_mask:0xf"]
    for st in steps:
        a("s_nop %d" % (1 if len(regs) == 1 else 0))
        for r in regs:
            a("v_add_f32_dpp v%d, v%d, v%d %s" % (r, r, r, st))
    a("s_nop 1")

def round_bf16(a, d, s):
    a("v_cvt_pk_bf16_f32 v%d, v%d, v%d" % (d, s, s))
    a("v_lshlrev_b32 v%d, 16, v%d" % (d, d))

def k1(a):
    a.label("prep_kernel")
    a("""
    s_cmp_ge_u32 s2, 256
    s_cbranch_scc1 K1_END
    s_load_dwordx4 s[4:7], s[0:1], 0
    s_load_dwordx4 s[8:11], s[0:1], 16
    s_load_dwordx2 s[12:13], s[0:1], 88
    v_lshrrev_b32 v2, 6, v0
    v_and_b32 v1, 63, v0
    v_readfirstlane_b32 s14, v2
    v_mov_b32 v4, 0
    v_mov_b32 v5, 0
    v_mov_b32 v6, 0
    v_mov_b32 v7, 0
    s_lshl_b32 s15, s2, 3
    s_add_u32 s15, s15, s14
    s_mul_i32 s27, s15, 896
    v_lshl_add_u32 v3, v1, 4, s27
    s_mov_b32 s30, -1
    s_mov_b32 s31, 0x00ffffff
    s_waitcnt lgkmcnt(0)
    s_mov_b64 exec, s[30:31]
    global_load_dwordx4 v[4:7], v3, s[4:5]
    s_mov_b64 exec, -1
    """)
    srd(a, 20, 12, hex(WS_USED))
    a("""
    s_cmp_lt_u32 s15, 1176
    s_cbranch_scc1 K1_JOB_WP
    s_cmp_lt_u32 s15, 1624
    s_cbranch_scc1 K1_JOB_WO
    s_cmp_lt_u32 s15, 1656
    s_cbranch_scc1 K1_JOB_PHI
    """)
    a.c("zero job (KV accumulators + flags) or nothing")
    srd(a, 16, 8, "25088")
    a("""
    s_mov_b32 s24, 0
    v_mov_b32 v32, %s
    v_mov_b32 v33, %s
    s_sub_u32 s25, s15, 1656
    s_lshl_b32 s26, s25, 10
    s_add_u32 s26, s26, %s
    s_cmp_lt_u32 s25, 132
    s_cselect_b32 s26, s26, 0x7fff0000
    v_lshl_add_u32 v34, v1, 4, s26
    s_branch K1_JOB_GO
    """ % (hex(OOB), hex(OOB), hex(KV_OFF)))
    a.label("K1_JOB_WP")
    srd(a, 16, 6, str(448 * 2688))
    a("""
    s_mov_b32 s24, 2688
    s_mul_hi_u32 s25, s15, 0x0C30C30D
    s_mul_i32 s26, s25, 21
    s_sub_u32 s26, s15, s26
    s_lshl_b32 s26, s26, 6
    v_add_u32 v35, s26, v1
    v_mul_u32_u24 v36, 2341, v35
    v_lshrrev_b32 v36, 16, v36
    v_mul_u32_u24 v37, 28, v36
    v_sub_u32 v37, v35, v37
    v_lshlrev_b32 v34, 4, v37
    v_lshrrev_b32 v37, 4, v36
    v_mul_u32_u24 v37, 896, v37
    v_add_u32 v34, v34, v37
    v_and_b32 v37, 15, v36
    v_mul_u32_u24 v37, %d, v37
    v_add_u32 v34, v34, v37
    s_lshr_b32 s26, s25, 1
    s_mul_i32 s26, s26, 2688
    s_and_b32 s28, s25, 1
    s_mul_i32 s28, s28, 448
    s_add_u32 s26, s26, s28
    s_add_u32 s26, s26, %s
    v_add_u32 v34, s26, v34
    s_mul_i32 s26, s25, %d
    v_lshl_add_u32 v32, v35, 1, s26
    v_add_u32 v33, %d, v32
    s_branch K1_JOB_GO
    """ % (WP_H, hex(WP_OFF), 8 * 2688, 4 * 2688))
    a.label("K1_JOB_WO")
    srd(a, 16, 10, str(448 * 896))
    a("""
    s_mov_b32 s24, 896
    s_sub_u32 s25, s15, 1176
    s_mul_hi_u32 s26, s25, 0x24924925
    s_mul_i32 s28, s26, 7
    s_sub_u32 s28, s25, s28
    s_lshl_b32 s28, s28, 6
    v_add_u32 v35, s28, v1
    v_mul_u32_u24 v36, 1171, v35
    v_lshrrev_b32 v36, 16, v36
    v_mul_u32_u24 v37, 56, v36
    v_sub_u32 v37, v35, v37
    v_lshlrev_b32 v34, 4, v37
    v_mul_u32_u24 v37, %d, v36
    v_add_u32 v34, v34, v37
    s_lshr_b32 s28, s26, 1
    s_add_u32 s28, s28, 112
    s_mul_i32 s28, s28, 1792
    s_and_b32 s29, s26, 1
    s_mul_i32 s32, s29, 896
    s_add_u32 s28, s28, s32
    s_add_u32 s28, s28, %s
    v_add_u32 v34, s28, v34
    s_lshr_b32 s28, s26, 2
    s_mul_i32 s28, s28, 28
    s_lshl_b32 s29, s29, 2
    s_add_u32 s28, s28, s29
    s_and_b32 s29, s26, 2
    s_lshl_b32 s29, s29, 3
    s_add_u32 s28, s28, s29
    s_mul_i32 s28, s28, 896
    v_lshl_add_u32 v32, v35, 1, s28
    s_and_b32 s29, s26, 3
    s_cmp_eq_u32 s29, 3
    s_mov_b32 s32, %d
    s_cselect_b32 s29, 0x7ff00000, s32
    v_add_u32 v33, s29, v32
    s_branch K1_JOB_GO
    """ % (UP_G, hex(UP_OFF), 8 * 896))
    a.label("K1_JOB_PHI")
    srd(a, 16, 8, "25088")
    a("""
    s_mov_b32 s24, 56
    s_sub_u32 s25, s15, 1624
    s_lshl_b32 s26, s25, 10
    s_add_u32 s26, s26, %s
    v_lshl_add_u32 v34, v1, 4, s26
    s_lshr_b32 s26, s25, 1
    s_mul_i32 s26, s26, 1568
    s_and_b32 s28, s25, 1
    s_mul_i32 s29, s28, %d
    s_add_u32 s26, s26, s29
    v_and_b32 v35, 31, v1
    v_lshrrev_b32 v36, 5, v1
    v_mul_u32_u24 v37, %d, v36
    v_lshl_add_u32 v32, v35, 1, v37
    v_add_u32 v32, s26, v32
    v_mov_b32 v37, 0x7ff00000
    v_cmp_gt_u32 vcc, 28, v35
    v_and_b32 v36, s28, v36
    v_mul_u32_u24 v36, 0x7f0000, v36
    v_cndmask_b32 v32, v37, v32, vcc
    v_add_u32 v33, %d, v32
    v_add_u32 v33, v33, v36
    """ % (hex(WPHI_OFF), 16 * 56, 4 * 56, 8 * 56))
    a.label("K1_JOB_GO")
    a("""
    s_lshl_b32 s25, s24, 1
    s_add_u32 s26, s25, s24
    buffer_load_ushort v40, v32, s[16:19], 0 offen
    buffer_load_ushort v41, v32, s[16:19], s24 offen
    buffer_load_ushort v42, v32, s[16:19], s25 offen
    buffer_load_ushort v43, v32, s[16:19], s26 offen
    buffer_load_ushort v44, v33, s[16:19], 0 offen
    buffer_load_ushort v45, v33, s[16:19], s24 offen
    buffer_load_ushort v46, v33, s[16:19], s25 offen
    buffer_load_ushort v47, v33, s[16:19], s26 offen
    s_waitcnt vmcnt(8)
    """)
    X = 8
    T = 16
    def unpack(dst, src):
        for i in range(4):
            a("v_lshlrev_b32 v%d, 16, v%d" % (dst + 2 * i, src + i))
            a("v_and_b32 v%d, 0xffff0000, v%d" % (dst + 2 * i + 1, src + i))
    def pack(dst, src):
        for i in range(4):
            a("v_cvt_pk_bf16_f32 v%d, v%d, v%d" % (dst + i, src + 2 * i, src + 2 * i + 1))
    inv = f32(1.0 / 448.0)
    unpack(X, 4)
    a("""
    v_add_f32 v24, v8, v9
    v_add_f32 v25, v10, v11
    v_add_f32 v26, v12, v13
    v_add_f32 v27, v14, v15
    v_add_f32 v24, v24, v25
    v_add_f32 v26, v26, v27
    v_add_f32 v24, v24, v26
    """)
    wave_reduce(a, [24])
    a("v_readlane_b32 s28, v24, 63")
    a("v_mov_b32 v25, %s" % inv)
    a("s_nop 0")
    a("v_mul_f32 v25, s28, v25")
    for i in range(8):
        a("v_sub_f32 v%d, v%d, v25" % (T + i, X + i))
    a("v_mul_f32 v24, v16, v16")
    a("v_mul_f32 v26, v17, v17")
    for i in range(2, 8, 2):
        a("v_fmac_f32 v24, v%d, v%d" % (T + i, T + i))
        a("v_fmac_f32 v26, v%d, v%d" % (T + i + 1, T + i + 1))
    a("v_add_f32 v24, v24, v26")
    a("v_cndmask_b32 v24, 0, v24, s[30:31]")
    round_bf16(a, 25, 25)
    wave_reduce(a, [24])
    a("v_readlane_b32 s28, v24, 63")
    a("v_mov_b32 v26, %s" % inv)
    for i in range(8):
        a("v_sub_f32 v%d, v%d, v25" % (T + i, X + i))
    a("v_mul_f32 v26, s28, v26")
    def scale_from_var(r):
        round_bf16(a, r, r)
        a("v_add_f32 v%d, %s, v%d" % (r, f32(1e-5), r))
        round_bf16(a, r, r)
        a("v_sqrt_f32 v%d, v%d" % (r, r))
        a("s_nop 0")
        round_bf16(a, r, r)
        a("v_rcp_f32 v%d, v%d" % (r, r))
    scale_from_var(26)
    pack(4, T)
    unpack(T, 4)
    for i in range(8):
        a("v_mul_f32 v%d, v%d, v26" % (T + i, T + i))
    pack(4, T)
    unpack(X, 4)
    a("s_mul_i32 s27, s14, 896")
    a("v_lshl_add_u32 v3, v1, 4, s27")
    a("s_mov_b64 exec, s[30:31]")
    a("ds_write_b128 v3, v[4:7]")
    a("s_mov_b64 exec, -1")
    a("""
    v_add_f32 v24, v8, v9
    v_add_f32 v25, v10, v11
    v_add_f32 v26, v12, v13
    v_add_f32 v27, v14, v15
    v_add_f32 v24, v24, v25
    v_add_f32 v26, v26, v27
    v_add_f32 v24, v24, v26
    v_mul_f32 v25, v8, v8
    v_mul_f32 v26, v9, v9
    """)
    for i in range(2, 8, 2):
        a("v_fmac_f32 v25, v%d, v%d" % (X + i, X + i))
        a("v_fmac_f32 v26, v%d, v%d" % (X + i + 1, X + i + 1))
    a("v_add_f32 v25, v25, v26")
    a("v_cndmask_b32 v24, 0, v24, s[30:31]")
    a("v_cndmask_b32 v25, 0, v25, s[30:31]")
    a("s_nop 0")
    wave_reduce(a, [24, 25])
    a("v_readlane_b32 s28, v24, 63")
    a("v_readlane_b32 s29, v25, 63")
    a("v_mov_b32 v26, %s" % inv)
    a("s_nop 0")
    a("v_mul_f32 v25, s28, v26")
    a("v_mul_f32 v26, s29, v26")
    a("v_fma_f32 v26, -v25, v25, v26")
    a("v_max_f32 v26, 0, v26")
    round_bf16(a, 25, 25)
    scale_from_var(26)
    for i in range(8):
        a("v_sub_f32 v%d, v%d, v25" % (T + i, X + i))
    pack(4, T)
    unpack(T, 4)
    for i in range(8):
        a("v_mul_f32 v%d, v%d, v26" % (T + i, T + i))
    pack(4, T)
    HB = 7168; HP = 912
    a("s_mul_i32 s27, s14, %d" % HP)
    a("s_add_u32 s27, s27, %d" % HB)
    a("v_lshl_add_u32 v3, v1, 4, s27")
    a("s_mov_b64 exec, s[30:31]")
    a("ds_write_b128 v3, v[4:7]")
    a("s_mov_b64 exec, -1")
    a("""
    s_waitcnt vmcnt(0)
    v_lshl_or_b32 v40, v41, 16, v40
    v_lshl_or_b32 v41, v43, 16, v42
    v_lshl_or_b32 v42, v45, 16, v44
    v_lshl_or_b32 v43, v47, 16, v46
    buffer_store_dwordx4 v[40:43], v34, s[20:23], 0 offen
    """)
    a("""
    v_bfe_u32 v8, v1, 2, 2
    v_mul_u32_u24 v8, %d, v8
    v_lshrrev_b32 v9, 4, v1
    v_lshlrev_b32 v9, 5, v9
    v_add_u32 v8, v8, v9
    v_and_b32 v9, 3, v1
    v_lshl_add_u32 v8, v9, 3, v8
    s_mul_i32 s27, s14, 112
    s_add_u32 s27, s27, %d
    v_add_u32 v8, s27, v8
    v_and_b32 v9, 7, v1
    v_lshrrev_b32 v10, 3, v1
    s_mul_i32 s27, s14, 7
    v_add_u32 v10, s27, v10
    v_mul_u32_u24 v11, 896, v9
    v_lshl_add_u32 v11, v10, 4, v11
    v_lshlrev_b32 v9, 4, v9
    v_lshl_add_u32 v9, v10, 9, v9
    s_lshr_b32 s27, s2, 2
    s_mul_i32 s27, s27, 28672
    s_and_b32 s28, s2, 3
    s_lshl_b32 s28, s28, 7
    s_add_u32 s27, s27, s28
    s_add_u32 s27, s27, %s
    s_mul_i32 s28, s14, %d
    s_mul_i32 s29, s2, 896
    s_add_u32 s28, s28, s29
    s_add_u32 s28, s28, %s
    v_lshlrev_b32 v10, 4, v1
    s_waitcnt lgkmcnt(0)
    s_barrier
    ds_read_b64_tr_b16 v[12:13], v8
    ds_read_b64_tr_b16 v[14:15], v8 offset:%d
    s_mov_b64 exec, s[30:31]
    ds_read_b128 v[16:19], v11
    s_waitcnt lgkmcnt(1)
    buffer_store_dwordx4 v[12:15], v10, s[20:23], s28 offen
    s_waitcnt lgkmcnt(0)
    buffer_store_dwordx4 v[16:19], v9, s[20:23], s27 offen
    """ % (HP, HB, hex(XN_OFF), HT_G, hex(HT_OFF), 4 * HP))
    a.label("K1_END")
    a("s_endpgm")

class G:
    ACC = 0
    F = 64
    B = 128
    W0 = 192; W1 = 193; F0 = 194; F1 = 195; L0 = 196; L1 = 197
    LANE = 198; T0 = 199; T1 = 200; T2 = 201; T3 = 202
    BIAS = 204
    MISC = 212

def gemm_setup(a, RS, perm2, R):
    L = G.LANE
    a("""
    v_lshrrev_b32 v{T0}, 3, v{L}
    v_mul_u32_u24 v{W0}, {RS}, v{T0}
    v_bfe_u32 v{T0}, v{L}, 4, 1
    v_lshlrev_b32 v{T0}, 2, v{T0}
    v_and_b32 v{T1}, 7, v{L}
    v_xor_b32 v{T0}, v{T0}, v{T1}
    v_lshl_add_u32 v{W0}, v{T0}, 4, v{W0}
    v_add_u32 v{W0}, s33, v{W0}
    v_add_u32 v{W1}, {RS8}, v{W0}
    v_lshrrev_b32 v{T0}, 5, v{L}
    v_mul_u32_u24 v{F0}, 896, v{T0}
    v_and_b32 v{T1}, 31, v{L}
    v_lshl_add_u32 v{F0}, v{T1}, 4, v{F0}
    v_add_u32 v{F1}, 512, v{F0}
    v_mov_b32 v{T2}, 0x7ff00000
    v_cmp_gt_u32 vcc, 24, v{T1}
    v_lshlrev_b32 v{L0}, {HS}, v{T0}
    v_bfe_u32 v{T1}, v{L}, 2, 2
    v_cndmask_b32 v{F1}, v{T2}, v{F1}, vcc
    v_lshl_add_u32 v{L0}, v{T1}, 7, v{L0}
    v_lshrrev_b32 v{T1}, 1, v{T1}
    v_lshl_add_u32 v{L0}, v{T1}, 6, v{L0}
    v_bfe_u32 v{T1}, v{L}, 4, 1
    v_lshl_add_u32 v{L0}, v{T1}, 5, v{L0}
    v_and_b32 v{T1}, 3, v{L}
    v_lshl_add_u32 v{L0}, v{T1}, 3, v{L0}
    s_lshl_b32 s26, s14, 14
    v_add_u32 v{L0}, s26, v{L0}
    v_xor_b32 v{L1}, 64, v{L0}
    s_mul_i32 s24, s14, {RS16}
    s_mul_i32 s25, s14, 1792
    """.format(T0=G.T0, T1=G.T1, T2=G.T2, L=L, W0=G.W0, W1=G.W1, F0=G.F0, F1=G.F1, L0=G.L0, L1=G.L1,
               RS=RS, RS8=8 * RS, RS16=16 * RS, HS=(9 if perm2 else 10)))

def gemm_issue(a, RS, j):
    a("s_add_u32 m0, s26, %d" % (j * 2048))
    a("buffer_load_dwordx4 %s, v%d, s[20:23], s25 offen" % (vr(G.F + 8 * j, 4), G.F0))
    a("buffer_load_dwordx4 v%d, s[16:19], s24 offen lds" % G.W0)
    a("s_add_u32 m0, s26, %d" % (j * 2048 + 1024))
    a("buffer_load_dwordx4 %s, v%d, s[20:23], s25 offen" % (vr(G.F + 8 * j + 4, 4), G.F1))
    a("buffer_load_dwordx4 v%d, s[16:19], s24 offen lds" % G.W1)
    a("s_add_u32 s24, s24, %d" % (64 * RS))
    a("s_add_u32 s25, s25, 7168")

def gemm_reads(a, j, nb, perm2):
    b = G.B + 8 * (j % nb)
    io = 1024 if perm2 else 512
    for u in range(2):
        for i in range(2):
            a("ds_read_b64_tr_b16 %s, v%d offset:%d" % (vr(b + 4 * u + 2 * i, 2), G.L0 + u, j * 2048 + i * io))

def gemm_mfma(a, j, nb, weights_are_A):
    b = G.B + 8 * (j % nb)
    f = G.F + 8 * j
    for ia in range(2):
        for ib in range(2):
            acc = vr(G.ACC + 16 * (2 * ia + ib), 16)
            if weights_are_A:
                A, B = vr(b + 4 * ia, 4), vr(f + 4 * ib, 4)
            else:
                A, B = vr(f + 4 * ia, 4), vr(b + 4 * ib, 4)
            a("v_mfma_f32_32x32x16_bf16 %s, %s, %s, %s" % (acc, A, B, acc))

def gemm_loop(a, tag, RS, perm2, R, NK, weights_are_A, mid_hook=None):
    nb = 2 if R % 2 == 0 else R
    assert NK % R == 0
    a("s_waitcnt vmcnt(%d)" % (4 * (R - 1)))
    gemm_reads(a, 0, nb, perm2)
    a("s_mov_b32 s27, %d" % (NK // R))
    a.label(tag + "_LOOP")
    for j in range(R):
        a("s_waitcnt vmcnt(%d)" % (4 * (R - 2)))
        gemm_reads(a, (j + 1) % R, nb, perm2)
        a("s_waitcnt lgkmcnt(4)")
        gemm_mfma(a, j, nb, weights_are_A)
        gemm_issue(a, RS, j)
    if mid_hook:
        mid_hook()
    a("s_sub_u32 s27, s27, 1")
    a("s_cmp_lg_u32 s27, 0")
    a("s_cbranch_scc1 %s_LOOP" % tag)

def gemm_reduce(a):
    a("s_waitcnt vmcnt(0) lgkmcnt(0)")
    a("v_lshlrev_b32 v%d, 4, v%d" % (G.T0, G.LANE))
    a("s_lshl_b32 s28, s14, 12")
    a("v_add_u32 v%d, s28, v%d" % (G.T1, G.T0))
    a("v_add_u32 v%d, s26, v%d" % (G.T0, G.T0))
    a("s_nop 7")
    for t in range(4):
        for q in range(4):
            a("ds_write_b128 v%d, %s offset:%d" % (G.T0, vr(G.ACC + 16 * t + 4 * q, 4), t * 4096 + q * 1024))
    a("s_waitcnt lgkmcnt(0)")
    a("s_barrier")
    for w in range(4):
        for q in range(4):
            a("ds_read_b128 %s, v%d offset:%d" % (vr(16 * w + 4 * q, 4), G.T1, w * 16384 + q * 1024))
    a("s_waitcnt lgkmcnt(8)")
    for r in range(16):
        a("v_add_f32 v%d, v%d, v%d" % (r, r, 16 + r))
    a("s_waitcnt lgkmcnt(0)")
    for r in range(16):
        a("v_add_f32 v%d, v%d, v%d" % (32 + r, 32 + r, 48 + r))
    for r in range(16):
        a("v_add_f32 v%d, v%d, v%d" % (r, r, 32 + r))

def zero_acc(a, base, n):
    for r in range(n):
        a("v_mov_b32 v%d, 0" % (base + r))

R1 = 8
def k2(a):
    a.label("mid_kernel")
    a("""
    s_cmp_ge_u32 s2, 480
    s_cbranch_scc1 K2_END
    s_load_dwordx4 s[4:7], s[0:1], 40
    s_load_dwordx2 s[12:13], s[0:1], 88
    v_lshrrev_b32 v1, 6, v0
    v_and_b32 v{L}, 63, v0
    v_readfirstlane_b32 s14, v1
    s_cmp_ge_u32 s2, 224
    s_cbranch_scc1 K2_ATT
    s_and_b32 s28, s2, 7
    s_mul_i32 s28, s28, 28
    s_lshr_b32 s29, s2, 3
    s_add_u32 s28, s28, s29
    s_lshr_b32 s34, s28, 3
    s_and_b32 s35, s28, 7
    s_lshl_b32 s33, s34, 7
    """.format(L=G.LANE))
    gemm_setup(a, 3584, False, R1)
    a("s_mul_i32 s28, s35, %d" % HT_G)
    a("s_add_u32 s28, s28, %s" % hex(HT_OFF))
    a("s_waitcnt lgkmcnt(0)")
    srd(a, 16, 4, str(2048 * 3584))
    srd(a, 20, 12, str(HT_G), add="s28")
    srd(a, 36, 6, str(1792 * 2))
    srd(a, 40, 12, hex(WS_USED))
    a("""
    s_lshr_b32 s28, s14, 1
    s_lshl_b32 s28, s28, 6
    s_add_u32 s28, s28, s33
    v_lshrrev_b32 v{T0}, 5, v{L}
    v_lshlrev_b32 v{T0}, 3, v{T0}
    """.format(T0=G.T0, L=G.LANE))
    for q in range(4):
        a("buffer_load_dwordx2 %s, v%d, s[36:39], s28 offen offset:%d" % (vr(G.BIAS + 2 * q, 2), G.T0, 16 * q))
    for j in range(R1):
        gemm_issue(a, 3584, j)
    zero_acc(a, G.ACC, 64)
    gemm_loop(a, "K2G", 3584, False, R1, 32, True)
    gemm_reduce(a)
    c1 = -2.0 * 0.7978845608028654 * 1.4426950408889634
    c2 = c1 * 0.044715
    a("s_mov_b32 s28, %s" % f32(c2))
    a("v_mov_b32 v48, %s" % f32(c1))
    for q in range(4):
        for h in range(2):
            src = G.BIAS + 2 * q + h
            r = 4 * q + 2 * h
            a("v_lshlrev_b32 v16, 16, v%d" % src)
            a("v_and_b32 v17, 0xffff0000, v%d" % src)
            a("v_add_f32 v%d, v%d, v16" % (r, r))
            a("v_add_f32 v%d, v%d, v17" % (r + 1, r + 1))
    for r in range(16):
        a("v_mul_f32 v%d, v%d, v%d" % (16 + r, r, r))
    for r in range(16):
        a("v_fma_f32 v%d, v%d, s28, v48" % (16 + r, 16 + r))
    for r in range(16):
        a("v_mul_f32 v%d, v%d, v%d" % (16 + r, 16 + r, r))
    for r in range(16):
        a("v_exp_f32 v%d, v%d" % (16 + r, 16 + r))
    for r in range(16):
        a("v_add_f32 v%d, 1.0, v%d" % (16 + r, 16 + r))
    for r in range(16):
        a("v_rcp_f32 v%d, v%d" % (16 + r, 16 + r))
    for r in range(16):
        a("v_mul_f32 v%d, v%d, v%d" % (r, r, 16 + r))
    for r in range(8):
        a("v_cvt_pk_bf16_f32 v%d, v%d, v%d" % (32 + r, 2 * r, 2 * r + 1))
    a("""
    s_lshl_b32 s28, s34, 2
    s_and_b32 s29, s14, 2
    s_add_u32 s28, s28, s29
    s_mul_i32 s28, s28, 1792
    s_mul_i32 s29, s35, {UPG}
    s_add_u32 s28, s28, s29
    s_add_u32 s28, s28, {UPO}
    s_bitcmp1_b32 s14, 0
    s_cselect_b64 vcc, -1, 0
    v_cndmask_b32 v{T0}, v{F0}, v{F1}, vcc
    buffer_store_dwordx4 v[32:35], v{T0}, s[40:43], s28 offen
    buffer_store_dwordx4 v[36:39], v{T0}, s[40:43], s28 offen offset:1792
    s_endpgm
    """.format(UPG=UP_G, UPO=hex(UP_OFF), T0=G.T0, F0=G.F0, F1=G.F1))

    a.label("K2_ATT")
    L = G.LANE
    AQ, AK, AV = 0, 16, 32
    XF = 64
    WF = 176
    LN = 250; VA = 251; VB = 252; VC = 253; VD = 254
    PH = 208
    a("v_mov_b32 v%d, v%d" % (LN, L))
    a("""
    s_sub_u32 s28, s2, 224
    s_and_b32 s29, s28, 7
    s_lshr_b32 s28, s28, 3
    s_lshr_b32 s34, s29, 1
    s_lshl_b32 s34, s34, 2
    s_and_b32 s35, s28, 3
    s_add_u32 s34, s34, s35
    s_and_b32 s35, s29, 1
    s_lshl_b32 s35, s35, 3
    s_lshr_b32 s28, s28, 2
    s_add_u32 s35, s35, s28
    """)
    a("""
    s_lshl_b32 s36, s34, 2
    s_add_u32 s36, s36, s14
    s_mul_i32 s24, s36, 28672
    s_add_u32 s24, s24, {XNO}
    s_mul_i32 s25, s35, {WPH}
    s_add_u32 s25, s25, {WPO}
    s_lshl_b32 s26, s14, 10
    s_add_u32 s25, s25, s26
    s_lshl_b32 s27, s35, 11
    s_add_u32 s27, s27, {PHO}
    v_lshlrev_b32 v{VA}, 4, v{LN}
    v_lshrrev_b32 v{VB}, 5, v{LN}
    v_mul_u32_u24 v{VB}, 448, v{VB}
    v_and_b32 v{VC}, 31, v{LN}
    v_lshl_add_u32 v{VB}, v{VC}, 4, v{VB}
    s_waitcnt lgkmcnt(0)
    """.format(XNO=hex(XN_OFF), WPH=WP_H, WPO=hex(WP_OFF), PHO=hex(WPHI_OFF), VA=VA, VB=VB, VC=VC, LN=LN))
    srd(a, 20, 12, hex(WS_USED))
    rounds = [5, 10, 14, 19]
    r0 = 0
    order = []
    a("buffer_load_dwordx4 %s, v%d, s[20:23], s27 offen" % (vr(PH, 4), VA))
    a("buffer_load_dwordx4 %s, v%d, s[20:23], s27 offen offset:1024" % (vr(PH + 4, 4), VA))
    cum = []
    n = 0
    for c in range(4):
        for r in range(r0, rounds[c]):
            a("s_add_u32 m0, s26, %d" % (r * 4096))
            a("s_add_u32 s28, s25, %d" % (r * 4096))
            a("buffer_load_dwordx4 v%d, s[20:23], s28 offen lds" % VA)
            n += 1
        r0 = rounds[c]
        for k in range(7 * c, 7 * c + 7):
            if k % 4 == 0 and k > 0:
                a("s_add_u32 s24, s24, 4096")
            a("buffer_load_dwordx4 %s, v%d, s[20:23], s24 offen offset:%d" % (vr(XF + 4 * k, 4), VA, (k % 4) * 1024))
            n += 1
        cum.append(n)
    total = n
    zero_acc(a, 0, 48)
    def wread(k):
        b = WF + 12 * (k % 2)
        for p in range(3):
            off = k * 2688 + p * 896
            if off < 65536:
                a("ds_read_b128 %s, v%d offset:%d" % (vr(b + 4 * p, 4), VB, off))
            else:
                a("ds_read_b128 %s, v%d offset:%d" % (vr(b + 4 * p, 4), VD, off - 32768))
    a("v_add_u32 v%d, 0x8000, v%d" % (VD, VB))
    for c in range(4):
        a("s_waitcnt vmcnt(%d)" % (total - cum[c]))
        a("s_barrier")
        wread(7 * c)
        for k in range(7 * c, 7 * c + 7):
            if k + 1 < 7 * c + 7:
                wread(k + 1)
                a("s_waitcnt lgkmcnt(3)")
            else:
                a("s_waitcnt lgkmcnt(0)")
            b = WF + 12 * (k % 2)
            x = vr(XF + 4 * k, 4)
            a("v_mfma_f32_32x32x16_bf16 %s, %s, %s, %s" % (vr(AK, 16), vr(b + 4, 4), x, vr(AK, 16)))
            a("v_mfma_f32_32x32x16_bf16 %s, %s, %s, %s" % (vr(AQ, 16), vr(b, 4), x, vr(AQ, 16)))
            a("v_mfma_f32_32x32x16_bf16 %s, %s, %s, %s" % (vr(AV, 16), x, vr(b + 8, 4), vr(AV, 16)))
    PKQ, PKK, PKV = 64, 72, 80
    PQ_, PK_ = 96, 112
    EP, EM = 128, 144
    OUT = 160
    S0 = 176
    a("s_mov_b32 s38, 0")
    a("s_mov_b32 s39, -1")
    a("s_mov_b32 s37, %s" % f32(1.4426950408889634))
    a("s_nop 7")
    for r in range(8):
        a("v_cvt_pk_bf16_f32 v%d, v%d, v%d" % (PKK + r, AK + 2 * r, AK + 2 * r + 1))
    for r in range(8):
        a("v_cvt_pk_bf16_f32 v%d, v%d, v%d" % (PKQ + r, AQ + 2 * r, AQ + 2 * r + 1))
    a("v_mfma_f32_32x32x16_bf16 %s, %s, %s, 0" % (vr(PK_, 16), vr(PH, 4), vr(PKK, 4)))
    a("v_mfma_f32_32x32x16_bf16 %s, %s, %s, %s" % (vr(PK_, 16), vr(PH + 4, 4), vr(PKK + 4, 4), vr(PK_, 16)))
    a("v_mfma_f32_32x32x16_bf16 %s, %s, %s, 0" % (vr(PQ_, 16), vr(PH, 4), vr(PKQ, 4)))
    a("v_mfma_f32_32x32x16_bf16 %s, %s, %s, %s" % (vr(PQ_, 16), vr(PH + 4, 4), vr(PKQ + 4, 4), vr(PQ_, 16)))
    for r in range(8):
        a("v_cvt_pk_bf16_f32 v%d, v%d, v%d" % (PKV + r, AV + 2 * r, AV + 2 * r + 1))
    a("v_cmp_eq_u32 vcc, 28, v%d" % VC)
    a("v_mov_b32 v%d, 0x3f803f80" % S0)
    a("s_nop 0")
    a("v_cndmask_b32 v%d, 0, v%d, vcc" % (S0, S0))
    a("v_cmp_gt_u32 vcc, 28, v%d" % VC)
    a("s_nop 1")
    for r in range(8):
        a("v_cndmask_b32 v%d, v%d, v%d, vcc" % (PKV + r, S0, PKV + r))

    def softmax2(P):
        mx, mn, t0, t1, t2, t3 = S0, S0 + 1, S0 + 2, S0 + 3, S0 + 4, S0 + 5
        for op, m, t in (("max", mx, t0), ("min", mn, t1)):
            a("v_%s3_f32 v%d, v%d, v%d, v%d" % (op, t, P + 12, P + 13, P + 14))
            a("v_%s3_f32 v%d, v%d, v%d, v%d" % (op, m, P, P + 1, P + 2))
            a("v_%s_f32 v%d, v%d, v%d" % (op, t, t, P + 15))
            for i in range(3, 11, 2):
                a("v_%s3_f32 v%d, v%d, v%d, v%d" % (op, m, m, P + i, P + i + 1))
            a("v_cndmask_b32 v%d, v%d, v%d, s[38:39]" % (t, t, P))
            a("v_%s3_f32 v%d, v%d, v%d, v%d" % (op, m, m, P + 11, t))
        a("v_mov_b32 v%d, v%d" % (t0, mx))
        a("v_mov_b32 v%d, v%d" % (t1, mn))
        a("s_nop 1")
        a("v_permlane32_swap_b32 v%d, v%d" % (mx, t0))
        a("v_permlane32_swap_b32 v%d, v%d" % (mn, t1))
        a("s_nop 0")
        a("v_max_f32 v%d, v%d, v%d" % (mx, mx, t0))
        a("v_min_f32 v%d, v%d, v%d" % (mn, mn, t1))
        a("v_mul_f32 v%d, s37, v%d" % (mx, mx))
        a("v_mul_f32 v%d, s37, v%d" % (mn, mn))
        a("v_mov_b32 v%d, 0x7f800000" % t2)
        a("v_mov_b32 v%d, 0xff800000" % t3)
        a("v_cndmask_b32 v%d, v%d, v%d, s[38:39]" % (t2, mx, t2))
        a("v_cndmask_b32 v%d, v%d, v%d, s[38:39]" % (t3, mn, t3))
        for r in range(16):
            a("v_fma_f32 v%d, v%d, s37, -v%d" % (EP + r, P + r, mx if r < 12 else t2))
            a("v_fma_f32 v%d, -v%d, s37, v%d" % (EM + r, P + r, mn if r < 12 else t3))
        for r in range(16):
            a("v_exp_f32 v%d, v%d" % (EP + r, EP + r))
            a("v_exp_f32 v%d, v%d" % (EM + r, EM + r))
        for E, s, t in ((EP, mx, t0), (EM, mn, t1)):
            a("v_add_f32 v%d, v%d, v%d" % (s, E, E + 1))
            a("v_add_f32 v%d, v%d, v%d" % (t, E + 2, E + 3))
            for i in range(4, 16, 2):
                a("v_add_f32 v%d, v%d, v%d" % (s, s, E + i))
                a("v_add_f32 v%d, v%d, v%d" % (t, t, E + i + 1))
            a("v_add_f32 v%d, v%d, v%d" % (s, s, t))
        a("v_mov_b32 v%d, v%d" % (t0, mx))
        a("v_mov_b32 v%d, v%d" % (t1, mn))
        a("s_nop 1")
        a("v_permlane32_swap_b32 v%d, v%d" % (mx, t0))
        a("v_permlane32_swap_b32 v%d, v%d" % (mn, t1))
        a("s_nop 0")
        a("v_add_f32 v%d, v%d, v%d" % (mx, mx, t0))
        a("v_add_f32 v%d, v%d, v%d" % (mn, mn, t1))
        a("v_rcp_f32 v%d, v%d" % (mx, mx))
        a("v_rcp_f32 v%d, v%d" % (mn, mn))
        a("s_nop 0")
        for r in range(16):
            a("v_mul_f32 v%d, v%d, v%d" % (EP + r, EP + r, mx))
            a("v_mul_f32 v%d, v%d, v%d" % (EM + r, EM + r, mn))
        for r in range(8):
            a("v_cvt_pk_bf16_f32 v%d, v%d, v%d" % (OUT + r, EP + 2 * r, EP + 2 * r + 1))
        for r in range(8):
            a("v_cvt_pk_bf16_f32 v%d, v%d, v%d" % (OUT + 8 + r, EM + 2 * r, EM + 2 * r + 1))

    softmax2(PK_)
    a("""
    v_mul_u32_u24 v{t}, 136, v{VC}
    v_lshrrev_b32 v{u}, 5, v{LN}
    v_lshl_add_u32 v{t}, v{u}, 3, v{t}
    s_mul_i32 s28, s14, 4352
    v_add_u32 v{t}, s28, v{t}
    s_lshl_b32 s28, s14, 11
    v_add_u32 v{u}, s28, v{VA}
    s_barrier
    """.format(t=S0 + 8, u=S0 + 9, VC=VC, LN=LN, VA=VA))
    for e in range(2):
        for q in range(4):
            a("ds_write_b64 v%d, %s offset:%d" % (S0 + 8, vr(OUT + 8 * e + 2 * q, 2), e * 64 + q * 16))
    a("ds_write_b128 v%d, %s offset:17408" % (S0 + 9, vr(PKV, 4)))
    a("ds_write_b128 v%d, %s offset:%d" % (S0 + 9, vr(PKV + 4, 4), 17408 + 1024))
    a("s_waitcnt lgkmcnt(0)")
    a("s_barrier")
    a("s_cmp_ge_u32 s14, 2")
    a("s_cbranch_scc1 K2_ATT_Q")
    TA = S0 + 8
    a("""
    v_lshrrev_b32 v{t}, 5, v{LN}
    v_lshlrev_b32 v{t}, 2, v{t}
    v_bfe_u32 v{u}, v{LN}, 2, 2
    v_add_u32 v{t}, v{t}, v{u}
    v_mul_u32_u24 v{t}, 136, v{t}
    v_bfe_u32 v{u}, v{LN}, 4, 1
    v_lshl_add_u32 v{t}, v{u}, 5, v{t}
    v_and_b32 v{u}, 3, v{LN}
    v_lshl_add_u32 v{t}, v{u}, 3, v{t}
    s_lshl_b32 s28, s14, 6
    v_add_u32 v{t}, s28, v{t}
    """.format(t=TA, u=TA + 1, LN=LN))
    PB = 0
    for w in range(4):
        for i in range(2):
            n_ = 2 * w + i
            a("ds_read_b64_tr_b16 %s, v%d offset:%d" % (vr(PB + 4 * n_, 2), TA, w * 4352 + (16 * i) * 136))
            a("ds_read_b64_tr_b16 %s, v%d offset:%d" % (vr(PB + 4 * n_ + 2, 2), TA, w * 4352 + (16 * i + 8) * 136))
            a("ds_read_b128 %s, v%d offset:%d" % (vr(32 + 4 * n_, 4), VA, 17408 + w * 2048 + i * 1024))
        if w == 1:
            pass
    KVA = 216
    a("s_waitcnt lgkmcnt(0)")
    for n_ in range(8):
        a("v_mfma_f32_32x32x16_bf16 %s, %s, %s, %s" % (vr(KVA, 16), vr(32 + 4 * n_, 4), vr(PB + 4 * n_, 4), "0" if n_ == 0 else vr(KVA, 16)))
    a("""
    v_lshrrev_b32 v{t}, 5, v{LN}
    v_lshlrev_b32 v{t}, 9, v{t}
    v_lshl_add_u32 v{t}, v{VC}, 2, v{t}
    s_lshl_b32 s28, s35, 13
    s_lshl_b32 s29, s14, 12
    s_add_u32 s28, s28, s29
    s_add_u32 s28, s28, {KVO}
    s_nop 7
    s_nop 3
    """.format(t=TA, LN=LN, VC=VC, KVO=hex(KV_OFF)))
    for r in range(16):
        a("buffer_atomic_add_f32 v%d, v%d, s[20:23], s28 offen offset:%d" % (KVA + r, TA, ((r & 3) + 8 * (r >> 2)) * 128))
    a.label("K2_ATT_Q")
    softmax2(PQ_)
    a("""
    s_lshl_b32 s28, s35, 18
    s_lshl_b32 s29, s36, 12
    s_add_u32 s28, s28, s29
    s_add_u32 s28, s28, {PQO}
    """.format(PQO=hex(PQ_OFF)))
    for n_ in range(4):
        a("buffer_store_dwordx4 %s, v%d, s[20:23], s28 offen offset:%d" % (vr(OUT + 4 * n_, 4), VA, n_ * 1024))
    a.label("K2_END")
    a("s_endpgm")

R2 = 7
def k3(a):
    L = G.LANE
    a.label("fin_kernel")
    a("""
    s_cmp_ge_u32 s2, 256
    s_cbranch_scc1 K3_END
    s_load_dwordx2 s[4:5], s[0:1], 0
    s_load_dwordx4 s[8:11], s[0:1], 56
    s_load_dwordx2 s[6:7], s[0:1], 72
    s_load_dwordx2 s[12:13], s[0:1], 88
    v_lshrrev_b32 v1, 6, v0
    v_and_b32 v{L}, 63, v0
    v_readfirstlane_b32 s14, v1
    s_and_b32 s28, s2, 7
    s_lshl_b32 s34, s28, 2
    s_lshr_b32 s29, s2, 6
    s_add_u32 s34, s34, s29
    s_bfe_u32 s35, s2, 0x30003
    s_lshl_b32 s33, s34, 7
    """.format(L=L))
    gemm_setup(a, 4096, True, R2)
    a("s_mul_i32 s28, s35, %d" % UP_G)
    a("s_add_u32 s28, s28, %s" % hex(UP_OFF))
    a("s_waitcnt lgkmcnt(0)")
    srd(a, 16, 8, str(1792 * 4096))
    srd(a, 20, 12, str(112 * 1792), add="s28")
    srd(a, 40, 12, hex(WS_USED))
    srd(a, 44, 4, str(2048 * 896))
    srd(a, 48, 6, str(2048 * 896))
    srd(a, 36, 10, "4096")
    VA = G.MISC; VK = G.MISC + 1; VX = G.MISC + 2; VB2 = G.MISC + 3
    PHQ = 216
    KVF = 0
    KVB = 32
    OD = 48
    a("""
    s_lshl_b32 s52, s35, 1
    s_lshr_b32 s28, s14, 1
    s_add_u32 s52, s52, s28
    s_lshl_b32 s53, s34, 1
    s_and_b32 s28, s14, 1
    s_add_u32 s53, s53, s28
    s_lshl_b32 s28, s52, 18
    s_lshl_b32 s29, s53, 12
    s_add_u32 s28, s28, s29
    s_add_u32 s28, s28, {PQO}
    s_lshl_b32 s29, s52, 13
    s_add_u32 s29, s29, {KVO}
    v_lshlrev_b32 v{VA}, 4, v{L}
    v_and_b32 v{T0}, 31, v{L}
    v_lshlrev_b32 v{VK}, 7, v{T0}
    v_lshrrev_b32 v{T1}, 5, v{L}
    v_lshl_add_u32 v{VK}, v{T1}, 4, v{VK}
    """.format(PQO=hex(PQ_OFF), KVO=hex(KV_OFF), VA=VA, VK=VK, L=L, T0=G.T0, T1=G.T1))
    for e in range(2):
        if e == 1:
            a("s_add_u32 s29, s29, 4096")
        for q in range(4):
            a("buffer_load_dwordx4 %s, v%d, s[40:43], s29 offen offset:%d" % (vr(KVF + 16 * e + 4 * q, 4), VK, q * 32))
    for n_ in range(4):
        a("buffer_load_dwordx4 %s, v%d, s[40:43], s28 offen offset:%d" % (vr(PHQ + 4 * n_, 4), VA, n_ * 1024))
    a("""
    s_and_b32 s28, s14, 1
    s_lshl_b32 s28, s28, 5
    s_lshl_b32 s29, s34, 6
    s_add_u32 s28, s28, s29
    v_add_u32 v{T0}, s28, v{T0}
    v_mul_u32_u24 v{VX}, 896, v{T0}
    v_lshl_add_u32 v{VX}, v{T1}, 3, v{VX}
    s_mul_i32 s28, s35, 112
    s_lshr_b32 s29, s14, 1
    s_lshl_b32 s29, s29, 6
    s_add_u32 s28, s28, s29
    v_add_u32 v{VX}, s28, v{VX}
    v_lshlrev_b32 v{T0}, 1, v{T0}
    """.format(T0=G.T0, T1=G.T1, VX=VX))
    for q in range(4):
        a("buffer_load_dwordx2 %s, v%d, s[44:47], 0 offen offset:%d" % (vr(G.BIAS + 2 * q, 2), VX, 16 * q))
    a("buffer_load_ushort v%d, v%d, s[36:39], 0 offen" % (VB2, G.T0))
    for j in range(R2):
        gemm_issue(a, 4096, j)
    a("s_waitcnt vmcnt(%d)" % (4 * R2 + 5))
    for r in range(16):
        a("v_cvt_pk_bf16_f32 v%d, v%d, v%d" % (KVB + r, KVF + 2 * r, KVF + 2 * r + 1))
    a("s_nop 1")
    for n_ in range(4):
        a("v_mfma_f32_32x32x16_bf16 %s, %s, %s, %s" % (vr(OD, 16), vr(KVB + 4 * n_, 4), vr(PHQ + 4 * n_, 4), "0" if n_ == 0 else vr(OD, 16)))
    a("""
    s_lshl_b32 s28, s53, 15
    s_lshl_b32 s29, s52, 11
    s_add_u32 s28, s28, s29
    s_add_u32 s28, s28, {OFO}
    s_nop 7
    s_nop 3
    v_mov_b32 v0, v{D12}
    v_mov_b32 v1, v{D12}
    s_nop 1
    v_permlane32_swap_b32 v0, v1
    s_nop 0
    v_add_f32 v1, {EPS}, v1
    v_rcp_f32 v1, v1
    s_nop 0
    """.format(OFO=hex(OF_OFF), D12=OD + 12, EPS=f32(1e-6)))
    for r in range(16):
        a("v_mul_f32 v%d, v%d, v1" % (OD + r, OD + r))
    for r in range(8):
        a("v_cvt_pk_bf16_f32 v%d, v%d, v%d" % (PHQ + r, OD + 2 * r, OD + 2 * r + 1))
    a("buffer_store_dwordx4 %s, v%d, s[40:43], s28 offen sc1" % (vr(PHQ, 4), VA))
    a("buffer_store_dwordx4 %s, v%d, s[40:43], s28 offen offset:1024 sc1" % (vr(PHQ + 4, 4), VA))
    zero_acc(a, G.ACC, 64)
    a("s_lshl_b32 s54, s34, 7")
    a("s_add_u32 s54, s54, %s" % hex(FLAG_OFF))
    a("v_mov_b32 v%d, 0" % G.T2)
    a("v_mov_b32 v%d, 1" % G.T3)
    def hook():
        a("s_cmp_lg_u32 s27, %d" % (28 // R2))
        a("s_cbranch_scc1 K3_NOSIG")
        a("s_mov_b64 exec, 1")
        a("buffer_atomic_add v%d, v%d, s[40:43], s54 offen sc1" % (G.T3, G.T2))
        a("s_mov_b64 exec, -1")
        a.label("K3_NOSIG")
    gemm_loop(a, "K3G", 4096, True, R2, 28, False, mid_hook=hook)
    OA = 64; OB = 128
    a("s_waitcnt vmcnt(0) lgkmcnt(0)")
    a("""
    s_mul_i32 s28, s35, {UPG}
    s_mul_i32 s29, s14, {W8}
    s_add_u32 s28, s28, s29
    s_add_u32 s28, s28, {BASE}
    """.format(UPG=UP_G, W8=8 * 1792, BASE=hex(UP_OFF + 112 * 1792)))
    for j in range(8):
        if j % 2 == 0 and j > 0:
            a("s_add_u32 s28, s28, 3584")
        a("buffer_load_dwordx4 %s, v%d, s[40:43], s28 offen offset:%d" % (vr(OA + 8 * j, 4), G.F0, (j % 2) * 1792))
        a("buffer_load_dwordx4 %s, v%d, s[40:43], s28 offen offset:%d" % (vr(OA + 8 * j + 4, 4), G.F1, (j % 2) * 1792))
    a("s_mov_b32 s55, 0")
    a.label("K3_POLL")
    a("""
    buffer_load_dword v{T3}, v{T2}, s[40:43], s54 offen sc1
    s_waitcnt vmcnt(0)
    v_readfirstlane_b32 s28, v{T3}
    s_nop 3
    s_cmp_ge_u32 s28, 32
    s_cbranch_scc1 K3_READY
    s_sleep 2
    s_add_u32 s55, s55, 1
    s_cmp_lt_u32 s55, 0x10000
    s_cbranch_scc1 K3_POLL
    """.format(T3=G.T3, T2=G.T2))
    a.label("K3_READY")
    a("s_barrier")
    a("""
    s_lshl_b32 s28, s34, 16
    s_lshl_b32 s29, s14, 13
    s_add_u32 s28, s28, s29
    s_add_u32 s28, s28, {OFO}
    s_add_u32 s29, s28, 32768
    """.format(OFO=hex(OF_OFF)))
    for j in range(8):
        if j == 4:
            a("s_add_u32 s28, s28, 4096")
            a("s_add_u32 s29, s29, 4096")
        a("buffer_load_dwordx4 %s, v%d, s[40:43], s28 offen offset:%d sc1" % (vr(OB + 8 * j, 4), VA, (j % 4) * 1024))
        a("buffer_load_dwordx4 %s, v%d, s[40:43], s29 offen offset:%d sc1" % (vr(OB + 8 * j + 4, 4), VA, (j % 4) * 1024))
    for j in range(8):
        a("s_waitcnt vmcnt(%d)" % (14 - 2 * j))
        for ia in range(2):
            for ib in range(2):
                acc = vr(G.ACC + 16 * (2 * ia + ib), 16)
                a("v_mfma_f32_32x32x16_bf16 %s, %s, %s, %s" % (acc, vr(OA + 8 * j + 4 * ia, 4), vr(OB + 8 * j + 4 * ib, 4), acc))
    a("s_nop 3")
    gemm_reduce(a)
    a("v_lshlrev_b32 v%d, 16, v%d" % (VB2, VB2))
    for q in range(4):
        for h in range(2):
            src = G.BIAS + 2 * q + h
            r = 4 * q + 2 * h
            a("v_lshlrev_b32 v16, 16, v%d" % src)
            a("v_and_b32 v17, 0xffff0000, v%d" % src)
            a("v_add_f32 v%d, v%d, v%d" % (r, r, VB2))
            a("v_add_f32 v%d, v%d, v%d" % (r + 1, r + 1, VB2))
            a("v_add_f32 v%d, v%d, v16" % (r, r))
            a("v_add_f32 v%d, v%d, v17" % (r + 1, r + 1))
    for r in range(8):
        a("v_cvt_pk_bf16_f32 v%d, v%d, v%d" % (32 + r, 2 * r, 2 * r + 1))
    for q in range(3):
        a("buffer_store_dwordx2 %s, v%d, s[48:51], 0 offen offset:%d" % (vr(32 + 2 * q, 2), VX, 16 * q))
    a("s_cmp_ge_u32 s14, 2")
    a("s_cbranch_scc1 K3_END")
    a("buffer_store_dwordx2 %s, v%d, s[48:51], 0 offen offset:48" % (vr(38, 2), VX))
    a.label("K3_END")
    a("s_endpgm")

def descriptor(name, vgpr, sgpr):
    return """.amdhsa_kernel {n}
  .amdhsa_next_free_vgpr {v}
  .amdhsa_next_free_sgpr {s}
  .amdhsa_accum_offset {acc}
  .amdhsa_group_segment_fixed_size 0
  .amdhsa_kernarg_size 96
  .amdhsa_user_sgpr_count 2
  .amdhsa_user_sgpr_kernarg_segment_ptr 1
  .amdhsa_system_sgpr_workgroup_id_x 1
  .amdhsa_float_denorm_mode_32 3
.end_amdhsa_kernel
""".format(n=name, v=vgpr, s=sgpr, acc=(vgpr + 3) // 4 * 4)

HEADER = open("cdna_kernels/%s.s.ref" % NAME).read().split("; Override launch geometry")[0]

def main(path):
    out = HEADER
    out += "; @launch kernel=prep_kernel grid=(256,1,1) block=(512,1,1) lds=15360\n"
    out += "; @launch kernel=mid_kernel grid=(480,1,1) block=(256,1,1) lds=81920\n"
    out += "; @launch kernel=fin_kernel grid=(256,1,1) block=(256,1,1) lds=81920\n"
    out += '.amdgcn_target "amdgcn-amd-amdhsa--gfx950"\n.text\n'
    for name, fn in (("prep_kernel", k1), ("mid_kernel", k2), ("fin_kernel", k3)):
        a = Asm()
        fn(a)
        out += ".globl %s\n.p2align 8\n.type %s,@function\n" % (name, name)
        out += a.text()
    out += '.section .rodata,"a"\n'
    for name, v, s in (("prep_kernel", 48, 40), ("mid_kernel", 256, 56), ("fin_kernel", 232, 64)):
        out += ".p2align 6\n" + descriptor(name, v, s)
    open(path, "w").write(out)

if __name__ == "__main__":
    main(sys.argv[1] if len(sys.argv) > 1 else "cdna_kernels/%s.s" % NAME)
```

```python
import sys, struct

NAME = "parallel_sum__linear_kernel_hedgehog__mixer_token_mlp__prompt"

XN_OFF   = 0x000000
HT_OFF   = 0x200000
HT_G     = 128 * 1792
WP_OFF   = 0x400000
WP_H     = 28 * 2688
WPHI_OFF = 0x540000
UP_OFF   = 0x600000
UP_G     = 144 * 1792
KV_OFF   = 0x800000
FLAG_OFF = KV_OFF + 131072
PQ_OFF   = 0x900000
OF_OFF   = 0xD00000
WS_USED  = 0x1000000
OOB      = 0x7FFFFFF0

def f32(x):
    return "0x%08x" % struct.unpack("<I", struct.pack("<f", x))[0]

class Asm:
    def __init__(self):
        self.lines = []
    def __call__(self, s):
        for l in s.strip().split("\n"):
            self.lines.append("    " + l.strip())
    def label(self, l):
        self.lines.append(l + ":")
    def c(self, s):
        self.lines.append("    ; " + s)
    def text(self):
        return "\n".join(self.lines) + "\n"

import os
STAMP = int(os.environ.get("STAMP", "0"))
STAMP_OFF = 0xF00000
def stamp(a, i):
    if STAMP:
        a("s_memrealtime s[%d:%d]" % (70 + 2 * i, 71 + 2 * i))
        a("s_waitcnt lgkmcnt(0)")
def stamp_flush(a, kid, n, tmp=240):
    if not STAMP:
        return
    a("s_waitcnt vmcnt(0) lgkmcnt(0)")
    stamp(a, n)
    a("s_mov_b64 exec, 1")
    srd(a, 92, 12, hex(WS_USED))
    a("s_lshl_b32 s96, s2, 9")
    a("s_lshl_b32 s97, s14, 6")
    a("s_add_u32 s96, s96, s97")
    a("s_add_u32 s96, s96, %s" % hex(STAMP_OFF + kid * 512 * 512))
    a("v_mov_b32 v%d, 0" % tmp)
    for i in range(n + 1):
        a("v_mov_b32 v%d, s%d" % (tmp + 1, 70 + 2 * i))
        a("buffer_store_dword v%d, v%d, s[92:95], s96 offen offset:%d" % (tmp + 1, tmp, 4 * i))
        a("s_waitcnt vmcnt(0)")
    a("s_getreg_b32 s97, hwreg(HW_REG_HW_ID)")
    a("v_mov_b32 v%d, s97" % (tmp + 1))
    a("buffer_store_dword v%d, v%d, s[92:95], s96 offen offset:56" % (tmp + 1, tmp))
    a("s_waitcnt vmcnt(0)")
    a("s_getreg_b32 s97, hwreg(HW_REG_XCC_ID)")
    a("v_mov_b32 v%d, s97" % (tmp + 1))
    a("buffer_store_dword v%d, v%d, s[92:95], s96 offen offset:60" % (tmp + 1, tmp))

def vr(a, n):
    return "v[%d:%d]" % (a, a + n - 1)

def srd(a, d, base, size, add=None):
    if add is None:
        a("s_mov_b32 s%d, s%d" % (d, base))
        a("s_and_b32 s%d, s%d, 0xffff" % (d + 1, base + 1))
    else:
        a("s_add_u32 s%d, s%d, %s" % (d, base, add))
        a("s_addc_u32 s%d, s%d, 0" % (d + 1, base + 1))
        a("s_and_b32 s%d, s%d, 0xffff" % (d + 1, d + 1))
    a("s_mov_b32 s%d, %s" % (d + 2, size))
    a("s_mov_b32 s%d, 0x20000" % (d + 3))

def wave_reduce(a, regs):
    steps = ["quad_perm:[1,0,3,2] row_mask:0xf bank_mask:0xf",
             "quad_perm:[2,3,0,1] row_mask:0xf bank_mask:0xf",
             "row_half_mirror row_mask:0xf bank_mask:0xf",
             "row_mirror row_mask:0xf bank_mask:0xf",
             "row_bcast:15 row_mask:0xa bank_mask:0xf",
             "row_bcast:31 row_mask:0xc bank_mask:0xf"]
    for st in steps:
        a("s_nop %d" % (1 if len(regs) == 1 else 0))
        for r in regs:
            a("v_add_f32_dpp v%d, v%d, v%d %s" % (r, r, r, st))
    a("s_nop 1")

def round_bf16(a, d, s):
    a("v_cvt_pk_bf16_f32 v%d, v%d, v%d" % (d, s, s))
    a("v_lshlrev_b32 v%d, 16, v%d" % (d, d))

def k1(a):
    a.label("prep_kernel")
    a("""
    s_cmp_ge_u32 s2, 256
    s_cbranch_scc1 K1_END
    """)
    stamp(a, 0)
    a("""
    s_load_dwordx4 s[4:7], s[0:1], 0
    s_load_dwordx4 s[8:11], s[0:1], 16
    s_load_dwordx2 s[12:13], s[0:1], 88
    v_lshrrev_b32 v2, 6, v0
    v_and_b32 v1, 63, v0
    v_readfirstlane_b32 s14, v2
    v_mov_b32 v4, 0
    v_mov_b32 v5, 0
    v_mov_b32 v6, 0
    v_mov_b32 v7, 0
    s_lshl_b32 s15, s2, 3
    s_add_u32 s15, s15, s14
    s_mul_i32 s27, s15, 896
    v_lshl_add_u32 v3, v1, 4, s27
    s_mov_b32 s30, -1
    s_mov_b32 s31, 0x00ffffff
    s_waitcnt lgkmcnt(0)
    s_mov_b64 exec, s[30:31]
    global_load_dwordx4 v[4:7], v3, s[4:5]
    s_mov_b64 exec, -1
    """)
    srd(a, 20, 12, hex(WS_USED))
    a("""
    s_cmp_lt_u32 s15, 1176
    s_cbranch_scc1 K1_JOB_WP
    s_cmp_lt_u32 s15, 1624
    s_cbranch_scc1 K1_JOB_WO
    s_cmp_lt_u32 s15, 1656
    s_cbranch_scc1 K1_JOB_PHI
    """)
    a.c("zero job (KV accumulators + flags) or nothing")
    srd(a, 16, 8, "25088")
    a("""
    s_mov_b32 s24, 0
    v_mov_b32 v32, %s
    v_mov_b32 v33, %s
    s_sub_u32 s25, s15, 1656
    s_lshl_b32 s26, s25, 10
    s_add_u32 s26, s26, %s
    s_cmp_lt_u32 s25, 132
    s_cselect_b32 s26, s26, 0x7fff0000
    v_lshl_add_u32 v34, v1, 4, s26
    s_branch K1_JOB_GO
    """ % (hex(OOB), hex(OOB), hex(KV_OFF)))
    a.label("K1_JOB_WP")
    srd(a, 16, 6, str(448 * 2688))
    a("""
    s_mov_b32 s24, 2688
    s_mul_hi_u32 s25, s15, 0x0C30C30D
    s_mul_i32 s26, s25, 21
    s_sub_u32 s26, s15, s26
    s_lshl_b32 s26, s26, 6
    v_add_u32 v35, s26, v1
    v_mul_u32_u24 v36, 2341, v35
    v_lshrrev_b32 v36, 16, v36
    v_mul_u32_u24 v37, 28, v36
    v_sub_u32 v37, v35, v37
    v_lshlrev_b32 v34, 4, v37
    v_lshrrev_b32 v37, 4, v36
    v_mul_u32_u24 v37, 896, v37
    v_add_u32 v34, v34, v37
    v_and_b32 v37, 15, v36
    v_mul_u32_u24 v37, %d, v37
    v_add_u32 v34, v34, v37
    s_lshr_b32 s26, s25, 1
    s_mul_i32 s26, s26, 2688
    s_and_b32 s28, s25, 1
    s_mul_i32 s28, s28, 448
    s_add_u32 s26, s26, s28
    s_add_u32 s26, s26, %s
    v_add_u32 v34, s26, v34
    s_mul_i32 s26, s25, %d
    v_lshl_add_u32 v32, v35, 1, s26
    v_add_u32 v33, %d, v32
    s_branch K1_JOB_GO
    """ % (WP_H, hex(WP_OFF), 8 * 2688, 4 * 2688))
    a.label("K1_JOB_WO")
    srd(a, 16, 10, str(448 * 896))
    a("""
    s_mov_b32 s24, 896
    s_sub_u32 s25, s15, 1176
    s_mul_hi_u32 s26, s25, 0x24924925
    s_mul_i32 s28, s26, 7
    s_sub_u32 s28, s25, s28
    s_lshl_b32 s28, s28, 6
    v_add_u32 v35, s28, v1
    v_mul_u32_u24 v36, 1171, v35
    v_lshrrev_b32 v36, 16, v36
    v_mul_u32_u24 v37, 56, v36
    v_sub_u32 v37, v35, v37
    v_lshlrev_b32 v34, 4, v37
    v_mul_u32_u24 v37, %d, v36
    v_add_u32 v34, v34, v37
    s_lshr_b32 s28, s26, 1
    s_add_u32 s28, s28, 112
    s_mul_i32 s28, s28, 1792
    s_and_b32 s29, s26, 1
    s_mul_i32 s32, s29, 896
    s_add_u32 s28, s28, s32
    s_add_u32 s28, s28, %s
    v_add_u32 v34, s28, v34
    s_lshr_b32 s28, s26, 2
    s_mul_i32 s28, s28, 28
    s_lshl_b32 s29, s29, 2
    s_add_u32 s28, s28, s29
    s_and_b32 s29, s26, 2
    s_lshl_b32 s29, s29, 3
    s_add_u32 s28, s28, s29
    s_mul_i32 s28, s28, 896
    v_lshl_add_u32 v32, v35, 1, s28
    s_and_b32 s29, s26, 3
    s_cmp_eq_u32 s29, 3
    s_mov_b32 s32, %d
    s_cselect_b32 s29, 0x7ff00000, s32
    v_add_u32 v33, s29, v32
    s_branch K1_JOB_GO
    """ % (UP_G, hex(UP_OFF), 8 * 896))
    a.label("K1_JOB_PHI")
    srd(a, 16, 8, "25088")
    a("""
    s_mov_b32 s24, 56
    s_sub_u32 s25, s15, 1624
    s_lshl_b32 s26, s25, 10
    s_add_u32 s26, s26, %s
    v_lshl_add_u32 v34, v1, 4, s26
    s_lshr_b32 s26, s25, 1
    s_mul_i32 s26, s26, 1568
    s_and_b32 s28, s25, 1
    s_mul_i32 s29, s28, %d
    s_add_u32 s26, s26, s29
    v_and_b32 v35, 31, v1
    v_lshrrev_b32 v36, 5, v1
    v_mul_u32_u24 v37, %d, v36
    v_lshl_add_u32 v32, v35, 1, v37
    v_add_u32 v32, s26, v32
    v_mov_b32 v37, 0x7ff00000
    v_cmp_gt_u32 vcc, 28, v35
    v_and_b32 v36, s28, v36
    v_mul_u32_u24 v36, 0x7f0000, v36
    v_cndmask_b32 v32, v37, v32, vcc
    v_add_u32 v33, %d, v32
    v_add_u32 v33, v33, v36
    """ % (hex(WPHI_OFF), 16 * 56, 4 * 56, 8 * 56))
    a.label("K1_JOB_GO")
    a("""
    s_lshl_b32 s25, s24, 1
    s_add_u32 s26, s25, s24
    buffer_load_ushort v40, v32, s[16:19], 0 offen
    buffer_load_ushort v41, v32, s[16:19], s24 offen
    buffer_load_ushort v42, v32, s[16:19], s25 offen
    buffer_load_ushort v43, v32, s[16:19], s26 offen
    buffer_load_ushort v44, v33, s[16:19], 0 offen
    buffer_load_ushort v45, v33, s[16:19], s24 offen
    buffer_load_ushort v46, v33, s[16:19], s25 offen
    buffer_load_ushort v47, v33, s[16:19], s26 offen
    s_waitcnt vmcnt(8)
    """)
    stamp(a, 1)
    X = 8
    T = 16
    def unpack(dst, src):
        for i in range(4):
            a("v_lshlrev_b32 v%d, 16, v%d" % (dst + 2 * i, src + i))
            a("v_and_b32 v%d, 0xffff0000, v%d" % (dst + 2 * i + 1, src + i))
    def pack(dst, src):
        for i in range(4):
            a("v_cvt_pk_bf16_f32 v%d, v%d, v%d" % (dst + i, src + 2 * i, src + 2 * i + 1))
    inv = f32(1.0 / 448.0)
    unpack(X, 4)
    a("""
    v_add_f32 v24, v8, v9
    v_add_f32 v25, v10, v11
    v_add_f32 v26, v12, v13
    v_add_f32 v27, v14, v15
    v_add_f32 v24, v24, v25
    v_add_f32 v26, v26, v27
    v_add_f32 v24, v24, v26
    """)
    wave_reduce(a, [24])
    a("v_readlane_b32 s28, v24, 63")
    a("v_mov_b32 v25, %s" % inv)
    a("s_nop 0")
    a("v_mul_f32 v25, s28, v25")
    for i in range(8):
        a("v_sub_f32 v%d, v%d, v25" % (T + i, X + i))
    a("v_mul_f32 v24, v16, v16")
    a("v_mul_f32 v26, v17, v17")
    for i in range(2, 8, 2):
        a("v_fmac_f32 v24, v%d, v%d" % (T + i, T + i))
        a("v_fmac_f32 v26, v%d, v%d" % (T + i + 1, T + i + 1))
    a("v_add_f32 v24, v24, v26")
    a("v_cndmask_b32 v24, 0, v24, s[30:31]")
    round_bf16(a, 25, 25)
    wave_reduce(a, [24])
    a("v_readlane_b32 s28, v24, 63")
    a("v_mov_b32 v26, %s" % inv)
    for i in range(8):
        a("v_sub_f32 v%d, v%d, v25" % (T + i, X + i))
    a("v_mul_f32 v26, s28, v26")
    def scale_from_var(r):
        round_bf16(a, r, r)
        a("v_add_f32 v%d, %s, v%d" % (r, f32(1e-5), r))
        round_bf16(a, r, r)
        a("v_sqrt_f32 v%d, v%d" % (r, r))
        a("s_nop 0")
        round_bf16(a, r, r)
        a("v_rcp_f32 v%d, v%d" % (r, r))
    scale_from_var(26)
    pack(4, T)
    unpack(T, 4)
    for i in range(8):
        a("v_mul_f32 v%d, v%d, v26" % (T + i, T + i))
    pack(4, T)
    unpack(X, 4)
    a("s_mul_i32 s27, s14, 896")
    a("v_lshl_add_u32 v3, v1, 4, s27")
    a("s_mov_b64 exec, s[30:31]")
    a("ds_write_b128 v3, v[4:7]")
    a("s_mov_b64 exec, -1")
    a("""
    v_add_f32 v24, v8, v9
    v_add_f32 v25, v10, v11
    v_add_f32 v26, v12, v13
    v_add_f32 v27, v14, v15
    v_add_f32 v24, v24, v25
    v_add_f32 v26, v26, v27
    v_add_f32 v24, v24, v26
    v_mul_f32 v25, v8, v8
    v_mul_f32 v26, v9, v9
    """)
    for i in range(2, 8, 2):
        a("v_fmac_f32 v25, v%d, v%d" % (X + i, X + i))
        a("v_fmac_f32 v26, v%d, v%d" % (X + i + 1, X + i + 1))
    a("v_add_f32 v25, v25, v26")
    a("v_cndmask_b32 v24, 0, v24, s[30:31]")
    a("v_cndmask_b32 v25, 0, v25, s[30:31]")
    a("s_nop 0")
    wave_reduce(a, [24, 25])
    a("v_readlane_b32 s28, v24, 63")
    a("v_readlane_b32 s29, v25, 63")
    a("v_mov_b32 v26, %s" % inv)
    a("s_nop 0")
    a("v_mul_f32 v25, s28, v26")
    a("v_mul_f32 v26, s29, v26")
    a("v_fma_f32 v26, -v25, v25, v26")
    a("v_max_f32 v26, 0, v26")
    round_bf16(a, 25, 25)
    scale_from_var(26)
    for i in range(8):
        a("v_sub_f32 v%d, v%d, v25" % (T + i, X + i))
    pack(4, T)
    unpack(T, 4)
    for i in range(8):
        a("v_mul_f32 v%d, v%d, v26" % (T + i, T + i))
    pack(4, T)
    HB = 7168; HP = 912
    a("s_mul_i32 s27, s14, %d" % HP)
    a("s_add_u32 s27, s27, %d" % HB)
    a("v_lshl_add_u32 v3, v1, 4, s27")
    a("s_mov_b64 exec, s[30:31]")
    a("ds_write_b128 v3, v[4:7]")
    a("s_mov_b64 exec, -1")
    stamp(a, 2)
    a("""
    s_waitcnt vmcnt(0)
    v_lshl_or_b32 v40, v41, 16, v40
    v_lshl_or_b32 v41, v43, 16, v42
    v_lshl_or_b32 v42, v45, 16, v44
    v_lshl_or_b32 v43, v47, 16, v46
    buffer_store_dwordx4 v[40:43], v34, s[20:23], 0 offen
    """)
    a("""
    v_bfe_u32 v8, v1, 2, 2
    v_mul_u32_u24 v8, %d, v8
    v_lshrrev_b32 v9, 4, v1
    v_lshlrev_b32 v9, 5, v9
    v_add_u32 v8, v8, v9
    v_and_b32 v9, 3, v1
    v_lshl_add_u32 v8, v9, 3, v8
    s_mul_i32 s27, s14, 112
    s_add_u32 s27, s27, %d
    v_add_u32 v8, s27, v8
    v_and_b32 v9, 7, v1
    v_lshrrev_b32 v10, 3, v1
    s_mul_i32 s27, s14, 7
    v_add_u32 v10, s27, v10
    v_mul_u32_u24 v11, 896, v9
    v_lshl_add_u32 v11, v10, 4, v11
    v_lshlrev_b32 v9, 4, v9
    v_lshl_add_u32 v9, v10, 9, v9
    s_lshr_b32 s27, s2, 2
    s_mul_i32 s27, s27, 28672
    s_and_b32 s28, s2, 3
    s_lshl_b32 s28, s28, 7
    s_add_u32 s27, s27, s28
    s_add_u32 s27, s27, %s
    s_mul_i32 s28, s14, %d
    s_mul_i32 s29, s2, 896
    s_add_u32 s28, s28, s29
    s_add_u32 s28, s28, %s
    v_lshlrev_b32 v10, 4, v1
    s_waitcnt lgkmcnt(0)
    s_barrier
    ds_read_b64_tr_b16 v[12:13], v8
    ds_read_b64_tr_b16 v[14:15], v8 offset:%d
    s_mov_b64 exec, s[30:31]
    ds_read_b128 v[16:19], v11
    s_waitcnt lgkmcnt(1)
    buffer_store_dwordx4 v[12:15], v10, s[20:23], s28 offen
    s_waitcnt lgkmcnt(0)
    buffer_store_dwordx4 v[16:19], v9, s[20:23], s27 offen
    """ % (HP, HB, hex(XN_OFF), HT_G, hex(HT_OFF), 4 * HP))
    stamp_flush(a, 0, 3, tmp=44)
    a.label("K1_END")
    a("s_endpgm")

class G:
    ACC = 0
    F = 64
    B = 128
    W0 = 192; W1 = 193; F0 = 194; F1 = 195; L0 = 196; L1 = 197
    LANE = 198; T0 = 199; T1 = 200; T2 = 201; T3 = 202
    BIAS = 204
    MISC = 212

def gemm_setup(a, RS, perm2, R):
    L = G.LANE
    a("""
    v_lshrrev_b32 v{T0}, 3, v{L}
    v_mul_u32_u24 v{W0}, {RS}, v{T0}
    v_bfe_u32 v{T0}, v{L}, 4, 1
    v_lshlrev_b32 v{T0}, 2, v{T0}
    v_and_b32 v{T1}, 7, v{L}
    v_xor_b32 v{T0}, v{T0}, v{T1}
    v_lshl_add_u32 v{W0}, v{T0}, 4, v{W0}
    v_add_u32 v{W0}, s33, v{W0}
    v_add_u32 v{W1}, {RS8}, v{W0}
    v_lshrrev_b32 v{T0}, 5, v{L}
    v_mul_u32_u24 v{F0}, 896, v{T0}
    v_and_b32 v{T1}, 31, v{L}
    v_lshl_add_u32 v{F0}, v{T1}, 4, v{F0}
    v_add_u32 v{F1}, 512, v{F0}
    v_mov_b32 v{T2}, 0x7ff00000
    v_cmp_gt_u32 vcc, 24, v{T1}
    v_lshlrev_b32 v{L0}, {HS}, v{T0}
    v_bfe_u32 v{T1}, v{L}, 2, 2
    v_cndmask_b32 v{F1}, v{T2}, v{F1}, vcc
    v_lshl_add_u32 v{L0}, v{T1}, 7, v{L0}
    v_lshrrev_b32 v{T1}, 1, v{T1}
    v_lshl_add_u32 v{L0}, v{T1}, 6, v{L0}
    v_bfe_u32 v{T1}, v{L}, 4, 1
    v_lshl_add_u32 v{L0}, v{T1}, 5, v{L0}
    v_and_b32 v{T1}, 3, v{L}
    v_lshl_add_u32 v{L0}, v{T1}, 3, v{L0}
    s_lshl_b32 s26, s14, 14
    v_add_u32 v{L0}, s26, v{L0}
    v_xor_b32 v{L1}, 64, v{L0}
    s_mul_i32 s24, s14, {RS16}
    s_mul_i32 s25, s14, 1792
    """.format(T0=G.T0, T1=G.T1, T2=G.T2, L=L, W0=G.W0, W1=G.W1, F0=G.F0, F1=G.F1, L0=G.L0, L1=G.L1,
               RS=RS, RS8=8 * RS, RS16=16 * RS, HS=(9 if perm2 else 10)))

def gemm_issue(a, RS, j):
    a("s_add_u32 m0, s26, %d" % (j * 2048))
    a("buffer_load_dwordx4 %s, v%d, s[20:23], s25 offen" % (vr(G.F + 8 * j, 4), G.F0))
    a("buffer_load_dwordx4 v%d, s[16:19], s24 offen lds" % G.W0)
    a("s_add_u32 m0, s26, %d" % (j * 2048 + 1024))
    a("buffer_load_dwordx4 %s, v%d, s[20:23], s25 offen" % (vr(G.F + 8 * j + 4, 4), G.F1))
    a("buffer_load_dwordx4 v%d, s[16:19], s24 offen lds" % G.W1)
    a("s_add_u32 s24, s24, %d" % (64 * RS))
    a("s_add_u32 s25, s25, 7168")

def gemm_reads(a, j, nb, perm2):
    b = G.B + 8 * (j % nb)
    io = 1024 if perm2 else 512
    for u in range(2):
        for i in range(2):
            a("ds_read_b64_tr_b16 %s, v%d offset:%d" % (vr(b + 4 * u + 2 * i, 2), G.L0 + u, j * 2048 + i * io))

def gemm_mfma(a, j, nb, weights_are_A):
    b = G.B + 8 * (j % nb)
    f = G.F + 8 * j
    for ia in range(2):
        for ib in range(2):
            acc = vr(G.ACC + 16 * (2 * ia + ib), 16)
            if weights_are_A:
                A, B = vr(b + 4 * ia, 4), vr(f + 4 * ib, 4)
            else:
                A, B = vr(f + 4 * ia, 4), vr(b + 4 * ib, 4)
            a("v_mfma_f32_32x32x16_bf16 %s, %s, %s, %s" % (acc, A, B, acc))

def gemm_loop(a, tag, RS, perm2, R, NK, weights_are_A, mid_hook=None):
    nb = 2 if R % 2 == 0 else R
    assert NK % R == 0
    stamp(a, 1)
    a("s_waitcnt vmcnt(%d)" % (4 * (R - 1)))
    stamp(a, 2)
    gemm_reads(a, 0, nb, perm2)
    a("s_mov_b32 s27, %d" % (NK // R))
    a.label(tag + "_LOOP")
    for j in range(R):
        a("s_waitcnt vmcnt(%d)" % (4 * (R - 2)))
        gemm_reads(a, (j + 1) % R, nb, perm2)
        a("s_waitcnt lgkmcnt(4)")
        gemm_mfma(a, j, nb, weights_are_A)
        gemm_issue(a, RS, j)
    if mid_hook:
        mid_hook()
    a("s_sub_u32 s27, s27, 1")
    a("s_cmp_lg_u32 s27, 0")
    a("s_cbranch_scc1 %s_LOOP" % tag)
    stamp(a, 3)

def gemm_reduce(a):
    a("s_waitcnt vmcnt(0) lgkmcnt(0)")
    a("v_lshlrev_b32 v%d, 4, v%d" % (G.T0, G.LANE))
    a("s_lshl_b32 s28, s14, 12")
    a("v_add_u32 v%d, s28, v%d" % (G.T1, G.T0))
    a("v_add_u32 v%d, s26, v%d" % (G.T0, G.T0))
    a("s_nop 7")
    for t in range(4):
        for q in range(4):
            a("ds_write_b128 v%d, %s offset:%d" % (G.T0, vr(G.ACC + 16 * t + 4 * q, 4), t * 4096 + q * 1024))
    a("s_waitcnt lgkmcnt(0)")
    a("s_barrier")
    for w in range(4):
        for q in range(4):
            a("ds_read_b128 %s, v%d offset:%d" % (vr(16 * w + 4 * q, 4), G.T1, w * 16384 + q * 1024))
    a("s_waitcnt lgkmcnt(8)")
    for r in range(16):
        a("v_add_f32 v%d, v%d, v%d" % (r, r, 16 + r))
    a("s_waitcnt lgkmcnt(0)")
    for r in range(16):
        a("v_add_f32 v%d, v%d, v%d" % (32 + r, 32 + r, 48 + r))
    for r in range(16):
        a("v_add_f32 v%d, v%d, v%d" % (r, r, 32 + r))

def zero_acc(a, base, n):
    for r in range(n):
        a("v_mov_b32 v%d, 0" % (base + r))

R1 = 8
def k2(a):
    a.label("mid_kernel")
    a("""
    s_cmp_ge_u32 s2, 480
    s_cbranch_scc1 K2_END
    """)
    stamp(a, 0)
    a("""
    s_load_dwordx4 s[4:7], s[0:1], 40
    s_load_dwordx2 s[12:13], s[0:1], 88
    v_lshrrev_b32 v1, 6, v0
    v_and_b32 v{L}, 63, v0
    v_readfirstlane_b32 s14, v1
    s_cmp_ge_u32 s2, 224
    s_cbranch_scc1 K2_ATT
    s_and_b32 s28, s2, 7
    s_mul_i32 s28, s28, 28
    s_lshr_b32 s29, s2, 3
    s_add_u32 s28, s28, s29
    s_lshr_b32 s34, s28, 3
    s_and_b32 s35, s28, 7
    s_lshl_b32 s33, s34, 7
    """.format(L=G.LANE))
    gemm_setup(a, 3584, False, R1)
    a("s_mul_i32 s28, s35, %d" % HT_G)
    a("s_add_u32 s28, s28, %s" % hex(HT_OFF))
    a("s_waitcnt lgkmcnt(0)")
    srd(a, 16, 4, str(2048 * 3584))
    srd(a, 20, 12, str(HT_G), add="s28")
    srd(a, 36, 6, str(1792 * 2))
    srd(a, 40, 12, hex(WS_USED))
    a("""
    s_lshr_b32 s28, s14, 1
    s_lshl_b32 s28, s28, 6
    s_add_u32 s28, s28, s33
    v_lshrrev_b32 v{T0}, 5, v{L}
    v_lshlrev_b32 v{T0}, 3, v{T0}
    """.format(T0=G.T0, L=G.LANE))
    for q in range(4):
        a("buffer_load_dwordx2 %s, v%d, s[36:39], s28 offen offset:%d" % (vr(G.BIAS + 2 * q, 2), G.T0, 16 * q))
    for j in range(R1):
        gemm_issue(a, 3584, j)
    zero_acc(a, G.ACC, 64)
    gemm_loop(a, "K2G", 3584, False, R1, 32, True)
    gemm_reduce(a)
    stamp(a, 4)
    c1 = -2.0 * 0.7978845608028654 * 1.4426950408889634
    c2 = c1 * 0.044715
    a("s_mov_b32 s28, %s" % f32(c2))
    a("v_mov_b32 v48, %s" % f32(c1))
    for q in range(4):
        for h in range(2):
            src = G.BIAS + 2 * q + h
            r = 4 * q + 2 * h
            a("v_lshlrev_b32 v16, 16, v%d" % src)
            a("v_and_b32 v17, 0xffff0000, v%d" % src)
            a("v_add_f32 v%d, v%d, v16" % (r, r))
            a("v_add_f32 v%d, v%d, v17" % (r + 1, r + 1))
    for r in range(16):
        a("v_mul_f32 v%d, v%d, v%d" % (16 + r, r, r))
    for r in range(16):
        a("v_fma_f32 v%d, v%d, s28, v48" % (16 + r, 16 + r))
    for r in range(16):
        a("v_mul_f32 v%d, v%d, v%d" % (16 + r, 16 + r, r))
    for r in range(16):
        a("v_exp_f32 v%d, v%d" % (16 + r, 16 + r))
    for r in range(16):
        a("v_add_f32 v%d, 1.0, v%d" % (16 + r, 16 + r))
    for r in range(16):
        a("v_rcp_f32 v%d, v%d" % (16 + r, 16 + r))
    for r in range(16):
        a("v_mul_f32 v%d, v%d, v%d" % (r, r, 16 + r))
    for r in range(8):
        a("v_cvt_pk_bf16_f32 v%d, v%d, v%d" % (32 + r, 2 * r, 2 * r + 1))
    a("""
    s_lshl_b32 s28, s34, 2
    s_and_b32 s29, s14, 2
    s_add_u32 s28, s28, s29
    s_mul_i32 s28, s28, 1792
    s_mul_i32 s29, s35, {UPG}
    s_add_u32 s28, s28, s29
    s_add_u32 s28, s28, {UPO}
    s_bitcmp1_b32 s14, 0
    s_cselect_b64 vcc, -1, 0
    v_cndmask_b32 v{T0}, v{F0}, v{F1}, vcc
    buffer_store_dwordx4 v[32:35], v{T0}, s[40:43], s28 offen
    buffer_store_dwordx4 v[36:39], v{T0}, s[40:43], s28 offen offset:1792
    """.format(UPG=UP_G, UPO=hex(UP_OFF), T0=G.T0, F0=G.F0, F1=G.F1))
    stamp_flush(a, 1, 5)
    a("s_endpgm")

    a.label("K2_ATT")
    L = G.LANE
    AQ, AK, AV = 0, 16, 32
    XF = 64
    WF = 176
    LN = 250; VA = 251; VB = 252; VC = 253; VD = 254
    PH = 208
    a("v_mov_b32 v%d, v%d" % (LN, L))
    a("""
    s_sub_u32 s28, s2, 224
    s_and_b32 s29, s28, 7
    s_lshr_b32 s28, s28, 3
    s_lshr_b32 s34, s29, 1
    s_lshl_b32 s34, s34, 2
    s_and_b32 s35, s28, 3
    s_add_u32 s34, s34, s35
    s_and_b32 s35, s29, 1
    s_lshl_b32 s35, s35, 3
    s_lshr_b32 s28, s28, 2
    s_add_u32 s35, s35, s28
    """)
    a("""
    s_lshl_b32 s36, s34, 2
    s_add_u32 s36, s36, s14
    s_mul_i32 s24, s36, 28672
    s_add_u32 s24, s24, {XNO}
    s_mul_i32 s25, s35, {WPH}
    s_add_u32 s25, s25, {WPO}
    s_lshl_b32 s26, s14, 10
    s_add_u32 s25, s25, s26
    s_lshl_b32 s27, s35, 11
    s_add_u32 s27, s27, {PHO}
    v_lshlrev_b32 v{VA}, 4, v{LN}
    v_lshrrev_b32 v{VB}, 5, v{LN}
    v_mul_u32_u24 v{VB}, 448, v{VB}
    v_and_b32 v{VC}, 31, v{LN}
    v_lshl_add_u32 v{VB}, v{VC}, 4, v{VB}
    s_waitcnt lgkmcnt(0)
    """.format(XNO=hex(XN_OFF), WPH=WP_H, WPO=hex(WP_OFF), PHO=hex(WPHI_OFF), VA=VA, VB=VB, VC=VC, LN=LN))
    srd(a, 20, 12, hex(WS_USED))
    rounds = [5, 10, 14, 19]
    r0 = 0
    order = []
    a("buffer_load_dwordx4 %s, v%d, s[20:23], s27 offen" % (vr(PH, 4), VA))
    a("buffer_load_dwordx4 %s, v%d, s[20:23], s27 offen offset:1024" % (vr(PH + 4, 4), VA))
    cum = []
    n = 0
    for c in range(4):
        for r in range(r0, rounds[c]):
            a("s_add_u32 m0, s26, %d" % (r * 4096))
            a("s_add_u32 s28, s25, %d" % (r * 4096))
            a("buffer_load_dwordx4 v%d, s[20:23], s28 offen lds" % VA)
            n += 1
        r0 = rounds[c]
        for k in range(7 * c, 7 * c + 7):
            if k % 4 == 0 and k > 0:
                a("s_add_u32 s24, s24, 4096")
            a("buffer_load_dwordx4 %s, v%d, s[20:23], s24 offen offset:%d" % (vr(XF + 4 * k, 4), VA, (k % 4) * 1024))
            n += 1
        cum.append(n)
    total = n
    zero_acc(a, 0, 48)
    def wread(k):
        b = WF + 12 * (k % 2)
        for p in range(3):
            off = k * 2688 + p * 896
            if off < 65536:
                a("ds_read_b128 %s, v%d offset:%d" % (vr(b + 4 * p, 4), VB, off))
            else:
                a("ds_read_b128 %s, v%d offset:%d" % (vr(b + 4 * p, 4), VD, off - 32768))
    a("v_add_u32 v%d, 0x8000, v%d" % (VD, VB))
    stamp(a, 1)
    for c in range(4):
        a("s_waitcnt vmcnt(%d)" % (total - cum[c]))
        a("s_barrier")
        if c == 0: stamp(a, 2)
        wread(7 * c)
        for k in range(7 * c, 7 * c + 7):
            if k + 1 < 7 * c + 7:
                wread(k + 1)
                a("s_waitcnt lgkmcnt(3)")
            else:
                a("s_waitcnt lgkmcnt(0)")
            b = WF + 12 * (k % 2)
            x = vr(XF + 4 * k, 4)
            a("v_mfma_f32_32x32x16_bf16 %s, %s, %s, %s" % (vr(AK, 16), vr(b + 4, 4), x, vr(AK, 16)))
            a("v_mfma_f32_32x32x16_bf16 %s, %s, %s, %s" % (vr(AQ, 16), vr(b, 4), x, vr(AQ, 16)))
            a("v_mfma_f32_32x32x16_bf16 %s, %s, %s, %s" % (vr(AV, 16), x, vr(b + 8, 4), vr(AV, 16)))
    stamp(a, 3)
    PKQ, PKK, PKV = 64, 72, 80
    PQ_, PK_ = 96, 112
    EP, EM = 128, 144
    OUT = 160
    S0 = 176
    a("s_mov_b32 s38, 0")
    a("s_mov_b32 s39, -1")
    a("s_mov_b32 s37, %s" % f32(1.4426950408889634))
    a("s_nop 7")
    for r in range(8):
        a("v_cvt_pk_bf16_f32 v%d, v%d, v%d" % (PKK + r, AK + 2 * r, AK + 2 * r + 1))
    for r in range(8):
        a("v_cvt_pk_bf16_f32 v%d, v%d, v%d" % (PKQ + r, AQ + 2 * r, AQ + 2 * r + 1))
    a("v_mfma_f32_32x32x16_bf16 %s, %s, %s, 0" % (vr(PK_, 16), vr(PH, 4), vr(PKK, 4)))
    a("v_mfma_f32_32x32x16_bf16 %s, %s, %s, %s" % (vr(PK_, 16), vr(PH + 4, 4), vr(PKK + 4, 4), vr(PK_, 16)))
    a("v_mfma_f32_32x32x16_bf16 %s, %s, %s, 0" % (vr(PQ_, 16), vr(PH, 4), vr(PKQ, 4)))
    a("v_mfma_f32_32x32x16_bf16 %s, %s, %s, %s" % (vr(PQ_, 16), vr(PH + 4, 4), vr(PKQ + 4, 4), vr(PQ_, 16)))
    for r in range(8):
        a("v_cvt_pk_bf16_f32 v%d, v%d, v%d" % (PKV + r, AV + 2 * r, AV + 2 * r + 1))
    a("v_cmp_eq_u32 vcc, 28, v%d" % VC)
    a("v_mov_b32 v%d, 0x3f803f80" % S0)
    a("s_nop 0")
    a("v_cndmask_b32 v%d, 0, v%d, vcc" % (S0, S0))
    a("v_cmp_gt_u32 vcc, 28, v%d" % VC)
    a("s_nop 1")
    for r in range(8):
        a("v_cndmask_b32 v%d, v%d, v%d, vcc" % (PKV + r, S0, PKV + r))

    def softmax2(P):
        mx, mn, t0, t1, t2, t3 = S0, S0 + 1, S0 + 2, S0 + 3, S0 + 4, S0 + 5
        for op, m, t in (("max", mx, t0), ("min", mn, t1)):
            a("v_%s3_f32 v%d, v%d, v%d, v%d" % (op, t, P + 12, P + 13, P + 14))
            a("v_%s3_f32 v%d, v%d, v%d, v%d" % (op, m, P, P + 1, P + 2))
            a("v_%s_f32 v%d, v%d, v%d" % (op, t, t, P + 15))
            for i in range(3, 11, 2):
                a("v_%s3_f32 v%d, v%d, v%d, v%d" % (op, m, m, P + i, P + i + 1))
            a("v_cndmask_b32 v%d, v%d, v%d, s[38:39]" % (t, t, P))
            a("v_%s3_f32 v%d, v%d, v%d, v%d" % (op, m, m, P + 11, t))
        a("v_mov_b32 v%d, v%d" % (t0, mx))
        a("v_mov_b32 v%d, v%d" % (t1, mn))
        a("s_nop 1")
        a("v_permlane32_swap_b32 v%d, v%d" % (mx, t0))
        a("v_permlane32_swap_b32 v%d, v%d" % (mn, t1))
        a("s_nop 0")
        a("v_max_f32 v%d, v%d, v%d" % (mx, mx, t0))
        a("v_min_f32 v%d, v%d, v%d" % (mn, mn, t1))
        a("v_mul_f32 v%d, s37, v%d" % (mx, mx))
        a("v_mul_f32 v%d, s37, v%d" % (mn, mn))
        a("v_mov_b32 v%d, 0x7f800000" % t2)
        a("v_mov_b32 v%d, 0xff800000" % t3)
        a("v_cndmask_b32 v%d, v%d, v%d, s[38:39]" % (t2, mx, t2))
        a("v_cndmask_b32 v%d, v%d, v%d, s[38:39]" % (t3, mn, t3))
        for r in range(16):
            a("v_fma_f32 v%d, v%d, s37, -v%d" % (EP + r, P + r, mx if r < 12 else t2))
            a("v_fma_f32 v%d, -v%d, s37, v%d" % (EM + r, P + r, mn if r < 12 else t3))
        for r in range(16):
            a("v_exp_f32 v%d, v%d" % (EP + r, EP + r))
            a("v_exp_f32 v%d, v%d" % (EM + r, EM + r))
        for E, s, t in ((EP, mx, t0), (EM, mn, t1)):
            a("v_add_f32 v%d, v%d, v%d" % (s, E, E + 1))
            a("v_add_f32 v%d, v%d, v%d" % (t, E + 2, E + 3))
            for i in range(4, 16, 2):
                a("v_add_f32 v%d, v%d, v%d" % (s, s, E + i))
                a("v_add_f32 v%d, v%d, v%d" % (t, t, E + i + 1))
            a("v_add_f32 v%d, v%d, v%d" % (s, s, t))
        a("v_mov_b32 v%d, v%d" % (t0, mx))
        a("v_mov_b32 v%d, v%d" % (t1, mn))
        a("s_nop 1")
        a("v_permlane32_swap_b32 v%d, v%d" % (mx, t0))
        a("v_permlane32_swap_b32 v%d, v%d" % (mn, t1))
        a("s_nop 0")
        a("v_add_f32 v%d, v%d, v%d" % (mx, mx, t0))
        a("v_add_f32 v%d, v%d, v%d" % (mn, mn, t1))
        a("v_rcp_f32 v%d, v%d" % (mx, mx))
        a("v_rcp_f32 v%d, v%d" % (mn, mn))
        a("s_nop 0")
        for r in range(16):
            a("v_mul_f32 v%d, v%d, v%d" % (EP + r, EP + r, mx))
            a("v_mul_f32 v%d, v%d, v%d" % (EM + r, EM + r, mn))
        for r in range(8):
            a("v_cvt_pk_bf16_f32 v%d, v%d, v%d" % (OUT + r, EP + 2 * r, EP + 2 * r + 1))
        for r in range(8):
            a("v_cvt_pk_bf16_f32 v%d, v%d, v%d" % (OUT + 8 + r, EM + 2 * r, EM + 2 * r + 1))

    softmax2(PK_)
    a("""
    v_mul_u32_u24 v{t}, 136, v{VC}
    v_lshrrev_b32 v{u}, 5, v{LN}
    v_lshl_add_u32 v{t}, v{u}, 3, v{t}
    s_mul_i32 s28, s14, 4352
    v_add_u32 v{t}, s28, v{t}
    s_lshl_b32 s28, s14, 11
    v_add_u32 v{u}, s28, v{VA}
    s_barrier
    """.format(t=S0 + 8, u=S0 + 9, VC=VC, LN=LN, VA=VA))
    for e in range(2):
        for q in range(4):
            a("ds_write_b64 v%d, %s offset:%d" % (S0 + 8, vr(OUT + 8 * e + 2 * q, 2), e * 64 + q * 16))
    a("ds_write_b128 v%d, %s offset:17408" % (S0 + 9, vr(PKV, 4)))
    a("ds_write_b128 v%d, %s offset:%d" % (S0 + 9, vr(PKV + 4, 4), 17408 + 1024))
    a("s_waitcnt lgkmcnt(0)")
    a("s_barrier")
    a("s_cmp_ge_u32 s14, 2")
    a("s_cbranch_scc1 K2_ATT_Q")
    TA = S0 + 8
    a("""
    v_lshrrev_b32 v{t}, 5, v{LN}
    v_lshlrev_b32 v{t}, 2, v{t}
    v_bfe_u32 v{u}, v{LN}, 2, 2
    v_add_u32 v{t}, v{t}, v{u}
    v_mul_u32_u24 v{t}, 136, v{t}
    v_bfe_u32 v{u}, v{LN}, 4, 1
    v_lshl_add_u32 v{t}, v{u}, 5, v{t}
    v_and_b32 v{u}, 3, v{LN}
    v_lshl_add_u32 v{t}, v{u}, 3, v{t}
    s_lshl_b32 s28, s14, 6
    v_add_u32 v{t}, s28, v{t}
    """.format(t=TA, u=TA + 1, LN=LN))
    PB = 0
    for w in range(4):
        for i in range(2):
            n_ = 2 * w + i
            a("ds_read_b64_tr_b16 %s, v%d offset:%d" % (vr(PB + 4 * n_, 2), TA, w * 4352 + (16 * i) * 136))
            a("ds_read_b64_tr_b16 %s, v%d offset:%d" % (vr(PB + 4 * n_ + 2, 2), TA, w * 4352 + (16 * i + 8) * 136))
            a("ds_read_b128 %s, v%d offset:%d" % (vr(32 + 4 * n_, 4), VA, 17408 + w * 2048 + i * 1024))
        if w == 1:
            pass
    KVA = 216
    a("s_waitcnt lgkmcnt(0)")
    for n_ in range(8):
        a("v_mfma_f32_32x32x16_bf16 %s, %s, %s, %s" % (vr(KVA, 16), vr(32 + 4 * n_, 4), vr(PB + 4 * n_, 4), "0" if n_ == 0 else vr(KVA, 16)))
    a("""
    v_lshrrev_b32 v{t}, 5, v{LN}
    v_lshlrev_b32 v{t}, 9, v{t}
    v_lshl_add_u32 v{t}, v{VC}, 2, v{t}
    s_lshl_b32 s28, s35, 13
    s_lshl_b32 s29, s14, 12
    s_add_u32 s28, s28, s29
    s_add_u32 s28, s28, {KVO}
    s_nop 7
    s_nop 3
    """.format(t=TA, LN=LN, VC=VC, KVO=hex(KV_OFF)))
    for r in range(16):
        a("buffer_atomic_add_f32 v%d, v%d, s[20:23], s28 offen offset:%d" % (KVA + r, TA, ((r & 3) + 8 * (r >> 2)) * 128))
    a.label("K2_ATT_Q")
    stamp(a, 4)
    softmax2(PQ_)
    a("""
    s_lshl_b32 s28, s35, 18
    s_lshl_b32 s29, s36, 12
    s_add_u32 s28, s28, s29
    s_add_u32 s28, s28, {PQO}
    """.format(PQO=hex(PQ_OFF)))
    for n_ in range(4):
        a("buffer_store_dwordx4 %s, v%d, s[20:23], s28 offen offset:%d" % (vr(OUT + 4 * n_, 4), VA, n_ * 1024))
    stamp_flush(a, 1, 5)
    a.label("K2_END")
    a("s_endpgm")

R2 = 7
def k3(a):
    L = G.LANE
    a.label("fin_kernel")
    a("""
    s_cmp_ge_u32 s2, 256
    s_cbranch_scc1 K3_END
    """)
    stamp(a, 0)
    a("""
    s_load_dwordx2 s[4:5], s[0:1], 0
    s_load_dwordx4 s[8:11], s[0:1], 56
    s_load_dwordx2 s[6:7], s[0:1], 72
    s_load_dwordx2 s[12:13], s[0:1], 88
    v_lshrrev_b32 v1, 6, v0
    v_and_b32 v{L}, 63, v0
    v_readfirstlane_b32 s14, v1
    s_and_b32 s28, s2, 7
    s_lshl_b32 s34, s28, 2
    s_lshr_b32 s29, s2, 6
    s_add_u32 s34, s34, s29
    s_bfe_u32 s35, s2, 0x30003
    s_lshl_b32 s33, s34, 7
    """.format(L=L))
    gemm_setup(a, 4096, True, R2)
    a("s_mul_i32 s28, s35, %d" % UP_G)
    a("s_add_u32 s28, s28, %s" % hex(UP_OFF))
    a("s_waitcnt lgkmcnt(0)")
    srd(a, 16, 8, str(1792 * 4096))
    srd(a, 20, 12, str(112 * 1792), add="s28")
    srd(a, 40, 12, hex(WS_USED))
    srd(a, 44, 4, str(2048 * 896))
    srd(a, 48, 6, str(2048 * 896))
    srd(a, 36, 10, "4096")
    VA = G.MISC; VK = G.MISC + 1; VX = G.MISC + 2; VB2 = G.MISC + 3
    PHQ = 216
    KVF = 0
    KVB = 32
    OD = 48
    a("""
    s_lshl_b32 s52, s35, 1
    s_lshr_b32 s28, s14, 1
    s_add_u32 s52, s52, s28
    s_lshl_b32 s53, s34, 1
    s_and_b32 s28, s14, 1
    s_add_u32 s53, s53, s28
    s_lshl_b32 s28, s52, 18
    s_lshl_b32 s29, s53, 12
    s_add_u32 s28, s28, s29
    s_add_u32 s28, s28, {PQO}
    s_lshl_b32 s29, s52, 13
    s_add_u32 s29, s29, {KVO}
    v_lshlrev_b32 v{VA}, 4, v{L}
    v_and_b32 v{T0}, 31, v{L}
    v_lshlrev_b32 v{VK}, 7, v{T0}
    v_lshrrev_b32 v{T1}, 5, v{L}
    v_lshl_add_u32 v{VK}, v{T1}, 4, v{VK}
    """.format(PQO=hex(PQ_OFF), KVO=hex(KV_OFF), VA=VA, VK=VK, L=L, T0=G.T0, T1=G.T1))
    for e in range(2):
        if e == 1:
            a("s_add_u32 s29, s29, 4096")
        for q in range(4):
            a("buffer_load_dwordx4 %s, v%d, s[40:43], s29 offen offset:%d" % (vr(KVF + 16 * e + 4 * q, 4), VK, q * 32))
    for n_ in range(4):
        a("buffer_load_dwordx4 %s, v%d, s[40:43], s28 offen offset:%d" % (vr(PHQ + 4 * n_, 4), VA, n_ * 1024))
    a("""
    s_and_b32 s28, s14, 1
    s_lshl_b32 s28, s28, 5
    s_lshl_b32 s29, s34, 6
    s_add_u32 s28, s28, s29
    v_add_u32 v{T0}, s28, v{T0}
    v_mul_u32_u24 v{VX}, 896, v{T0}
    v_lshl_add_u32 v{VX}, v{T1}, 3, v{VX}
    s_mul_i32 s28, s35, 112
    s_lshr_b32 s29, s14, 1
    s_lshl_b32 s29, s29, 6
    s_add_u32 s28, s28, s29
    v_add_u32 v{VX}, s28, v{VX}
    v_lshlrev_b32 v{T0}, 1, v{T0}
    """.format(T0=G.T0, T1=G.T1, VX=VX))
    for q in range(4):
        a("buffer_load_dwordx2 %s, v%d, s[44:47], 0 offen offset:%d" % (vr(G.BIAS + 2 * q, 2), VX, 16 * q))
    a("buffer_load_ushort v%d, v%d, s[36:39], 0 offen" % (VB2, G.T0))
    for j in range(R2):
        gemm_issue(a, 4096, j)
    a("s_waitcnt vmcnt(%d)" % (4 * R2 + 5))
    for r in range(16):
        a("v_cvt_pk_bf16_f32 v%d, v%d, v%d" % (KVB + r, KVF + 2 * r, KVF + 2 * r + 1))
    a("s_nop 1")
    for n_ in range(4):
        a("v_mfma_f32_32x32x16_bf16 %s, %s, %s, %s" % (vr(OD, 16), vr(KVB + 4 * n_, 4), vr(PHQ + 4 * n_, 4), "0" if n_ == 0 else vr(OD, 16)))
    a("""
    s_lshl_b32 s28, s53, 15
    s_lshl_b32 s29, s52, 11
    s_add_u32 s28, s28, s29
    s_add_u32 s28, s28, {OFO}
    s_nop 7
    s_nop 3
    v_mov_b32 v0, v{D12}
    v_mov_b32 v1, v{D12}
    s_nop 1
    v_permlane32_swap_b32 v0, v1
    s_nop 0
    v_add_f32 v1, {EPS}, v1
    v_rcp_f32 v1, v1
    s_nop 0
    """.format(OFO=hex(OF_OFF), D12=OD + 12, EPS=f32(1e-6)))
    for r in range(16):
        a("v_mul_f32 v%d, v%d, v1" % (OD + r, OD + r))
    for r in range(8):
        a("v_cvt_pk_bf16_f32 v%d, v%d, v%d" % (PHQ + r, OD + 2 * r, OD + 2 * r + 1))
    a("buffer_store_dwordx4 %s, v%d, s[40:43], s28 offen sc1" % (vr(PHQ, 4), VA))
    a("buffer_store_dwordx4 %s, v%d, s[40:43], s28 offen offset:1024 sc1" % (vr(PHQ + 4, 4), VA))
    zero_acc(a, G.ACC, 64)
    a("s_lshl_b32 s54, s34, 7")
    a("s_add_u32 s54, s54, %s" % hex(FLAG_OFF))
    a("v_mov_b32 v%d, 0" % G.T2)
    a("v_mov_b32 v%d, 1" % G.T3)
    def hook():
        a("s_cmp_lg_u32 s27, %d" % (28 // R2))
        a("s_cbranch_scc1 K3_NOSIG")
        a("s_mov_b64 exec, 1")
        a("buffer_atomic_add v%d, v%d, s[40:43], s54 offen sc1" % (G.T3, G.T2))
        a("s_mov_b64 exec, -1")
        a.label("K3_NOSIG")
    gemm_loop(a, "K3G", 4096, True, R2, 28, False, mid_hook=hook)
    OA = 64; OB = 128
    a("s_waitcnt vmcnt(0) lgkmcnt(0)")
    a("""
    s_mul_i32 s28, s35, {UPG}
    s_mul_i32 s29, s14, {W8}
    s_add_u32 s28, s28, s29
    s_add_u32 s28, s28, {BASE}
    """.format(UPG=UP_G, W8=8 * 1792, BASE=hex(UP_OFF + 112 * 1792)))
    for j in range(8):
        if j % 2 == 0 and j > 0:
            a("s_add_u32 s28, s28, 3584")
        a("buffer_load_dwordx4 %s, v%d, s[40:43], s28 offen offset:%d" % (vr(OA + 8 * j, 4), G.F0, (j % 2) * 1792))
        a("buffer_load_dwordx4 %s, v%d, s[40:43], s28 offen offset:%d" % (vr(OA + 8 * j + 4, 4), G.F1, (j % 2) * 1792))
    a("s_mov_b32 s55, 0")
    a.label("K3_POLL")
    a("""
    buffer_load_dword v{T3}, v{T2}, s[40:43], s54 offen sc1
    s_waitcnt vmcnt(0)
    v_readfirstlane_b32 s28, v{T3}
    s_nop 3
    s_cmp_ge_u32 s28, 32
    s_cbranch_scc1 K3_READY
    s_sleep 2
    s_add_u32 s55, s55, 1
    s_cmp_lt_u32 s55, 0x10000
    s_cbranch_scc1 K3_POLL
    """.format(T3=G.T3, T2=G.T2))
    a.label("K3_READY")
    stamp(a, 4)
    a("s_barrier")
    a("""
    s_lshl_b32 s28, s34, 16
    s_lshl_b32 s29, s14, 13
    s_add_u32 s28, s28, s29
    s_add_u32 s28, s28, {OFO}
    s_add_u32 s29, s28, 32768
    """.format(OFO=hex(OF_OFF)))
    for j in range(8):
        if j == 4:
            a("s_add_u32 s28, s28, 4096")
            a("s_add_u32 s29, s29, 4096")
        a("buffer_load_dwordx4 %s, v%d, s[40:43], s28 offen offset:%d sc1" % (vr(OB + 8 * j, 4), VA, (j % 4) * 1024))
        a("buffer_load_dwordx4 %s, v%d, s[40:43], s29 offen offset:%d sc1" % (vr(OB + 8 * j + 4, 4), VA, (j % 4) * 1024))
    for j in range(8):
        a("s_waitcnt vmcnt(%d)" % (14 - 2 * j))
        for ia in range(2):
            for ib in range(2):
                acc = vr(G.ACC + 16 * (2 * ia + ib), 16)
                a("v_mfma_f32_32x32x16_bf16 %s, %s, %s, %s" % (acc, vr(OA + 8 * j + 4 * ia, 4), vr(OB + 8 * j + 4 * ib, 4), acc))
    a("s_nop 3")
    stamp(a, 5)
    gemm_reduce(a)
    stamp(a, 6)
    a("v_lshlrev_b32 v%d, 16, v%d" % (VB2, VB2))
    for q in range(4):
        for h in range(2):
            src = G.BIAS + 2 * q + h
            r = 4 * q + 2 * h
            a("v_lshlrev_b32 v16, 16, v%d" % src)
            a("v_and_b32 v17, 0xffff0000, v%d" % src)
            a("v_add_f32 v%d, v%d, v%d" % (r, r, VB2))
            a("v_add_f32 v%d, v%d, v%d" % (r + 1, r + 1, VB2))
            a("v_add_f32 v%d, v%d, v16" % (r, r))
            a("v_add_f32 v%d, v%d, v17" % (r + 1, r + 1))
    for r in range(8):
        a("v_cvt_pk_bf16_f32 v%d, v%d, v%d" % (32 + r, 2 * r, 2 * r + 1))
    for q in range(3):
        a("buffer_store_dwordx2 %s, v%d, s[48:51], 0 offen offset:%d" % (vr(32 + 2 * q, 2), VX, 16 * q))
    a("s_cmp_ge_u32 s14, 2")
    a("s_cbranch_scc1 K3_FIN")
    a("buffer_store_dwordx2 %s, v%d, s[48:51], 0 offen offset:48" % (vr(38, 2), VX))
    a.label("K3_FIN")
    stamp_flush(a, 2, 7, tmp=60)
    a.label("K3_END")
    a("s_endpgm")

def descriptor(name, vgpr, sgpr):
    return """.amdhsa_kernel {n}
  .amdhsa_next_free_vgpr {v}
  .amdhsa_next_free_sgpr {s}
  .amdhsa_accum_offset {acc}
  .amdhsa_group_segment_fixed_size 0
  .amdhsa_kernarg_size 96
  .amdhsa_user_sgpr_count 2
  .amdhsa_user_sgpr_kernarg_segment_ptr 1
  .amdhsa_system_sgpr_workgroup_id_x 1
  .amdhsa_float_denorm_mode_32 3
.end_amdhsa_kernel
""".format(n=name, v=vgpr, s=sgpr, acc=(vgpr + 3) // 4 * 4)

HEADER = open("cdna_kernels/%s.s.ref" % NAME).read().split("; Override launch geometry")[0]

def main(path):
    out = HEADER
    out += "; @launch kernel=prep_kernel grid=(256,1,1) block=(512,1,1) lds=15360\n"
    out += "; @launch kernel=mid_kernel grid=(480,1,1) block=(256,1,1) lds=81920\n"
    out += "; @launch kernel=fin_kernel grid=(256,1,1) block=(256,1,1) lds=81920\n"
    out += '.amdgcn_target "amdgcn-amd-amdhsa--gfx950"\n.text\n'
    for name, fn in (("prep_kernel", k1), ("mid_kernel", k2), ("fin_kernel", k3)):
        a = Asm()
        fn(a)
        out += ".globl %s\n.p2align 8\n.type %s,@function\n" % (name, name)
        out += a.text()
    out += '.section .rodata,"a"\n'
    for name, v, s in (("prep_kernel", 48, 40), ("mid_kernel", 256, 56), ("fin_kernel", 232, 64)):
        out += ".p2align 6\n" + descriptor(name, v, 100 if STAMP else s)
    open(path, "w").write(out)

if __name__ == "__main__":
    main(sys.argv[1] if len(sys.argv) > 1 else "cdna_kernels/%s.s" % NAME)
```

```python
import sys, struct, os

NAME = "parallel_sum__linear_kernel_hedgehog__mixer_token_mlp__prompt"
KNAME = NAME + "_kernel"
E = lambda k, d: int(os.environ.get(k, str(d)))

XN_OFF   = 0x000000
HT_OFF   = 0x200000
HT_G     = 128 * 2048
WP_OFF   = 0x400000
WP_Q     = 28 * 1792
WP_PHI   = 28 * 2688
WP_H     = WP_PHI + 2048 + 512
UP_OFF   = 0x600000
UP_G     = 144 * 2048
KVF_OFF  = 0x800000
SYNC_OFF = 0x840000
OF_OFF   = 0x900000
KVP_OFF  = 0xB00000
WS_USED  = 0x1000000
STAMP_OFF = 0xF00000
BIG      = 0x7ff00000
SL = 256
SX_CNT, SX_REL = 0, 16
SW_CNT, SW_REL = 32, 48
S1_CNT, S1_REL = 64, 80
S3_CNT, S3_REL = 96, 112
S2_CNT, S2_REL = 128, 160
S4_CNT, S4_REL = 192, 200
SA_REP = 208
NSYNC = 256
SPIN_MAX = 0x40000

STAMP = E("STAMP", 0); PRIO_A = E("PRIO_A", 2); PRIO_G = E("PRIO_G", 0); AHEAD = E("AHEAD", 4); W2START = E("W2START", 27)
NB, NF, NS = E("NB", 15), E("NF", 6), 10
PFPOL = os.environ.get("PFPOL", "")

def f32(x): return "0x%08x" % struct.unpack("<I", struct.pack("<f", x))[0]

class Q:
    def __init__(self, mx): self.ops = []; self.mx = mx
    def issue(self, tag): self.ops.append(tag)
    def need(self, tags):
        if not isinstance(tags, (list, tuple, set)): tags = [tags]
        idx = -1
        for i, t in enumerate(self.ops):
            if t in tags: idx = i
        if idx < 0: return None
        n = len(self.ops) - 1 - idx
        if n > self.mx: return self.mx
        self.ops = self.ops[idx + 1:]
        return n
    def clear(self): self.ops = []

class Asm:
    def __init__(self):
        self.lines = []; self.vm = Q(63); self.lg = Q(15); self.uid = 0
    def __call__(self, s):
        for l in s.strip().split("\n"):
            l = l.strip()
            if l.endswith(":"): self.lines.append(l)
            elif l: self.lines.append("    " + l)
    def label(self, l): self.lines.append(l + ":")
    def vmem(self, s, tag=None): self(s); self.vm.issue(tag)
    def ds(self, s, tag=None): self(s); self.lg.issue(tag)
    def wait(self, vm=None, lg=None):
        p = []
        for q, t, nm in ((self.vm, vm, "vmcnt"), (self.lg, lg, "lgkmcnt")):
            if t is None: continue
            n = q.need(t)
            if n is None: continue
            if len(q.ops) > n: q.ops = q.ops[len(q.ops) - n:]
            p.append("%s(%d)" % (nm, n))
        if p: self("s_waitcnt " + " ".join(p))
    def drain(self, vm=True, lg=True):
        p = []
        if vm: p.append("vmcnt(0)"); self.vm.clear()
        if lg: p.append("lgkmcnt(0)"); self.lg.clear()
        self("s_waitcnt " + " ".join(p))
    def newlabel(self, p): self.uid += 1; return "%s_%d" % (p, self.uid)
    def text(self): return "\n".join(self.lines) + "\n"

def vr(a, n): return "v[%d:%d]" % (a, a + n - 1)

def srd(a, d, base, size, add=None):
    if add is None:
        a("s_mov_b32 s%d, s%d" % (d, base))
        a("s_and_b32 s%d, s%d, 0xffff" % (d + 1, base + 1))
    else:
        a("s_add_u32 s%d, s%d, %s" % (d, base, add))
        a("s_addc_u32 s%d, s%d, 0" % (d + 1, base + 1))
        a("s_and_b32 s%d, s%d, 0xffff" % (d + 1, d + 1))
    a("s_mov_b32 s%d, %s" % (d + 2, size))
    a("s_mov_b32 s%d, 0x20000" % (d + 3))

WS = 32
DBG = 44

def stamp(a, i):
    if STAMP:
        a("%s s[%d:%d]" % ("s_memtime" if STAMP == 2 else "s_memrealtime", 70 + 2 * i, 71 + 2 * i))
        a.drain(vm=False)
def stamp_flush(a, n, tmp):
    if not STAMP: return
    a.drain()
    stamp(a, n)
    a("s_mov_b64 exec, 1")
    a("s_lshl_b32 s98, s2, 8")
    a("s_lshl_b32 s99, s14, 6")
    a("s_add_u32 s98, s98, s99")
    a("s_add_u32 s98, s98, %s" % hex(STAMP_OFF))
    a("v_mov_b32 v%d, 0" % tmp)
    for i in range(n + 1):
        a("v_mov_b32 v%d, s%d" % (tmp + 1, 70 + 2 * i))
        a("buffer_store_dword v%d, v%d, s[32:35], s98 offen offset:%d" % (tmp + 1, tmp, 4 * i))
        a("s_waitcnt vmcnt(0)")

def poll(a, srdn, soff, vz, vt, sleep=1, target=1, keep=False):
    sv = list(a.vm.ops)
    l = a.newlabel("POLL"); d = a.newlabel("POLLD")
    a("s_mov_b32 s60, 0")
    a.label(l)
    a("buffer_load_dword v%d, v%d, s[%d:%d], %s offen sc1" % (vt, vz, srdn, srdn + 3, soff))
    a("s_add_u32 s60, s60, 1")
    a.drain(lg=False)
    a("v_readfirstlane_b32 s61, v%d" % vt)
    a("s_cmp_ge_u32 s61, %d" % target)
    a("s_cbranch_scc1 %s" % d)
    if sleep: a("s_sleep %d" % sleep)
    a("s_cmp_lt_u32 s60, %s" % hex(SPIN_MAX))
    a("s_cbranch_scc1 %s" % l)
    a.label(d)
    if keep: a.vm.ops = sv

def arrive_issue(a, soff):
    a("s_mov_b32 s62, 1")
    a("s_atomic_add s62, s[30:31], %s glc" % soff)
def arrive_finish(a, last, srels, skip):
    a.drain(vm=False)
    a("s_cmp_lg_u32 s62, %d" % last)
    a("s_cbranch_scc1 %s" % skip)
    a("s_mov_b32 s62, 1")
    for r in srels: a("s_atomic_add s62, s[30:31], %s" % r)

def round_bf16(a, d, s):
    a("v_cvt_pk_bf16_f32 v%d, v%d, v%d" % (d, s, s))
    a("v_lshlrev_b32 v%d, 16, v%d" % (d, d))

def half_reduce(a, regs, tmps):
    steps = ["quad_perm:[1,0,3,2] row_mask:0xf bank_mask:0xf", "quad_perm:[2,3,0,1] row_mask:0xf bank_mask:0xf",
             "row_half_mirror row_mask:0xf bank_mask:0xf", "row_mirror row_mask:0xf bank_mask:0xf"]
    for st in steps:
        a("s_nop %d" % (1 if len(regs) == 1 else 0))
        for r in regs: a("v_add_f32_dpp v%d, v%d, v%d %s" % (r, r, r, st))
    for r, t in zip(regs, tmps): a("v_mov_b32 v%d, v%d" % (t, r))
    a("s_nop 1")
    for r, t in zip(regs, tmps): a("v_permlane16_swap_b32 v%d, v%d" % (r, t))
    a("s_nop 0")
    for r, t in zip(regs, tmps): a("v_add_f32 v%d, v%d, v%d" % (r, r, t))

MF = "v_mfma_f32_32x32x16_bf16"

def role_a(a):
    LN, VA, VB, VC, VD, VZ, VT, VH = 250, 251, 252, 253, 254, 248, 249, 255
    a.label("ROLE_A")
    a("""
    s_setprio {PRIO}
    s_lshr_b32 s38, s56, 1
    s_lshl_b32 s38, s38, 2
    s_and_b32 s39, s57, 3
    s_add_u32 s38, s38, s39
    s_and_b32 s39, s56, 1
    s_lshl_b32 s39, s39, 3
    s_lshr_b32 s57, s57, 2
    s_add_u32 s39, s39, s57
    s_lshl_b32 s15, s38, 4
    s_add_u32 s15, s15, s39
    v_and_b32 v{LN}, 63, v0
    v_and_b32 v{VC}, 31, v0
    v_bfe_u32 v{VH}, v0, 5, 1
    v_lshrrev_b32 v2, 5, v0
    s_lshl_b32 s20, s15, 3
    v_add_u32 v3, s20, v2
    v_mul_u32_u24 v3, 896, v3
    v_lshl_add_u32 v3, v{VC}, 5, v3
    v_mov_b64 v[8:9], 0
    v_mov_b64 v[10:11], 0
    v_mov_b64 v[12:13], 0
    v_mov_b64 v[14:15], 0
    s_mov_b32 s52, 0x0fffffff
    s_mov_b32 s53, 0x0fffffff
    v_mov_b32 v{VZ}, 0
    v_lshlrev_b32 v{VA}, 4, v{LN}
    v_mul_u32_u24 v{VB}, 448, v{VH}
    v_lshl_add_u32 v{VB}, v{VC}, 4, v{VB}
    v_mov_b32 v54, {BIG}
    v_mul_u32_u24 v50, 21504, v{VH}
    v_lshl_add_u32 v50, v{VC}, 1, v50
    v_cndmask_b32 v50, v54, v50, s[52:53]
    v_cndmask_b32 v52, v54, v{VB}, s[52:53]
    s_mul_i32 s25, s39, {WPH}
    s_add_u32 s25, s25, {WPO}
    """.format(PRIO=PRIO_A, LN=LN, VC=VC, VH=VH, VZ=VZ, VA=VA, VB=VB, BIG=hex(BIG), WPH=WP_H, WPO=hex(WP_OFF)))
    def wp_unit(sv, ssrc, sdst):
        a("""
        s_mul_i32 s20, {v}, 586
        s_lshr_b32 s20, s20, 14
        s_mul_i32 s21, s20, 28
        s_sub_u32 s21, {v}, s21
        s_mul_i32 {src}, s21, 43008
        s_mul_i32 s22, s20, 896
        s_add_u32 {src}, {src}, s22
        s_mul_i32 s23, s39, 56
        s_add_u32 {src}, {src}, s23
        s_mul_i32 s23, s21, 1792
        s_add_u32 s23, s23, s22
        s_sub_u32 s23, s23, 896
        s_mul_i32 {dst}, s21, 896
        s_add_u32 {dst}, {dst}, {WPQ}
        s_cmp_eq_u32 s20, 0
        s_cselect_b32 {dst}, {dst}, s23
        s_add_u32 {dst}, {dst}, s25
        """.format(v=sv, src=ssrc, dst=sdst, WPQ=WP_Q))
    a("s_lshl_b32 s24, s14, 4")
    a("s_add_u32 s24, s24, s38")
    wp_unit("s24", "s26", "s27")
    a("s_waitcnt lgkmcnt(0)")
    a("s_mov_b64 exec, s[52:53]")
    a.vmem("global_load_dwordx4 v[8:11], v3, s[4:5] nt", "x")
    a.vmem("global_load_dwordx4 v[12:15], v3, s[4:5] offset:16 nt", "x")
    a("s_mov_b64 exec, -1")
    srd(a, 16, 6, str(448 * 2688))
    J = 56
    for j in range(8):
        if j % 2 == 0 and j: a("s_add_u32 s26, s26, 5376")
        a.vmem("buffer_load_ushort v%d, v50, s[16:19], s26 offen offset:%d nt" % (J + j, (j % 2) * 2688), "job")
    srd(a, WS, 30, hex(WS_USED))
    srd(a, DBG, 28, "256")
    a("s_cmp_ge_u32 s14, 2")
    a("s_cbranch_scc1 A_JOB_O")
    a("s_add_u32 s24, s24, 64")
    wp_unit("s24", "s26", "s29")
    a("""
    s_cmp_lt_u32 s24, 84
    s_cselect_b32 s29, s29, 0x08000000
    s_cselect_b32 s18, s18, 0
    s_movk_i32 s24, 2688
    v_add_u32 v51, 10752, v50
    v_mov_b32 v53, v52
    s_branch A_JOB_GO
    A_JOB_O:
    s_lshl_b32 s20, s38, 1
    s_add_u32 s20, s20, s14
    s_sub_u32 s20, s20, 2
    v_mov_b32 v53, v{VA}
    s_cmp_ge_u32 s20, 28
    s_cbranch_scc1 A_JOB_PHI
    """.format(VA=VA))
    srd(a, 16, 10, str(448 * 896))
    a("""
    s_movk_i32 s24, 896
    s_cmp_ge_u32 s20, 14
    s_cselect_b32 s21, 1, 0
    s_mul_i32 s22, s21, 14
    s_sub_u32 s20, s20, s22
    s_mul_i32 s26, s39, 28
    s_lshl_b32 s22, s21, 4
    s_add_u32 s26, s26, s22
    s_mul_i32 s26, s26, 896
    s_lshl_b32 s22, s20, 6
    s_add_u32 s26, s26, s22
    s_lshr_b32 s22, s20, 1
    s_mul_i32 s29, s22, {UPG}
    s_and_b32 s22, s20, 1
    s_lshl_b32 s22, s22, 10
    s_add_u32 s29, s29, s22
    s_lshl_b32 s22, s39, 1
    s_add_u32 s22, s22, s21
    s_lshl_b32 s22, s22, 11
    s_add_u32 s29, s29, s22
    s_add_u32 s29, s29, {BASE}
    v_mul_u32_u24 v50, 3584, v{VH}
    v_lshl_add_u32 v50, v{VC}, 1, v50
    s_mul_i32 s21, s21, 0x7f0000
    v_mul_lo_u32 v51, v{VH}, s21
    v_add_u32 v51, v51, v50
    v_add_u32 v51, 7168, v51
    s_branch A_JOB_GO
    A_JOB_PHI:
    """.format(UPG=UP_G, BASE=hex(UP_OFF + 112 * 2048), VH=VH, VC=VC))
    srd(a, 16, 8, "25088")
    a("""
    s_movk_i32 s24, 56
    s_sub_u32 s21, s20, 28
    s_mul_i32 s26, s39, 1568
    s_mul_i32 s22, s21, 896
    s_add_u32 s26, s26, s22
    s_lshl_b32 s29, s21, 10
    s_add_u32 s29, s29, s25
    s_add_u32 s29, s29, {PHI}
    s_cmp_lt_u32 s21, 2
    s_cselect_b32 s29, s29, 0x08000000
    s_cselect_b32 s18, s18, 0
    v_mul_u32_u24 v50, 224, v{VH}
    v_lshl_add_u32 v50, v{VC}, 1, v50
    v_cndmask_b32 v50, v54, v50, s[52:53]
    s_and_b32 s21, s21, 1
    s_mul_i32 s21, s21, 0x7f0000
    v_mul_lo_u32 v51, v{VH}, s21
    v_add_u32 v51, v51, v50
    v_add_u32 v51, 448, v51
    A_JOB_GO:
    """.format(PHI=WP_PHI, VH=VH, VC=VC))
    for j in range(4):
        a.vmem("buffer_load_ushort v%d, v50, s[16:19], s26 offen nt" % (J + 8 + j), "job")
        a.vmem("buffer_load_ushort v%d, v51, s[16:19], s26 offen nt" % (J + 12 + j), "job")
        if j < 3: a("s_add_u32 s26, s26, s24")
    stamp(a, 1)
    a.wait(vm="x")
    stamp(a, 2)
    P, X, T = 8, 16, 32
    def unpack(dst, src):
        for i in range(8):
            a("v_lshlrev_b32 v%d, 16, v%d" % (dst + 2 * i, src + i))
            a("v_and_b32 v%d, 0xffff0000, v%d" % (dst + 2 * i + 1, src + i))
    def pack(dst, src):
        for i in range(8): a("v_cvt_pk_bf16_f32 v%d, v%d, v%d" % (dst + i, src + 2 * i, src + 2 * i + 1))
    def pksum(dst, src):
        a("v_pk_add_f32 %s, %s, %s" % (vr(dst, 2), vr(src, 2), vr(src + 2, 2)))
        a("v_pk_add_f32 %s, %s, %s" % (vr(dst + 2, 2), vr(src + 4, 2), vr(src + 6, 2)))
        for i in (8, 12):
            a("v_pk_add_f32 %s, %s, %s" % (vr(dst, 2), vr(dst, 2), vr(src + i, 2)))
            a("v_pk_add_f32 %s, %s, %s" % (vr(dst + 2, 2), vr(dst + 2, 2), vr(src + i + 2, 2)))
        a("v_pk_add_f32 %s, %s, %s" % (vr(dst, 2), vr(dst, 2), vr(dst + 2, 2)))
        a("v_add_f32 v%d, v%d, v%d" % (dst, dst, dst + 1))
    def pksq(dst, src):
        a("v_pk_mul_f32 %s, %s, %s" % (vr(dst, 2), vr(src, 2), vr(src, 2)))
        a("v_pk_mul_f32 %s, %s, %s" % (vr(dst + 2, 2), vr(src + 2, 2), vr(src + 2, 2)))
        for i in (4, 8, 12):
            a("v_pk_fma_f32 %s, %s, %s, %s" % (vr(dst, 2), vr(src + i, 2), vr(src + i, 2), vr(dst, 2)))
            a("v_pk_fma_f32 %s, %s, %s, %s" % (vr(dst + 2, 2), vr(src + i + 2, 2), vr(src + i + 2, 2), vr(dst + 2, 2)))
        a("v_pk_add_f32 %s, %s, %s" % (vr(dst, 2), vr(dst, 2), vr(dst + 2, 2)))
        a("v_add_f32 v%d, v%d, v%d" % (dst, dst, dst + 1))
    def pksub(dst, src, m):
        for i in range(0, 16, 2):
            a("v_pk_add_f32 %s, %s, %s op_sel_hi:[1,0] neg_lo:[0,1] neg_hi:[0,1]" % (vr(dst + i, 2), vr(src + i, 2), vr(m, 2)))
    def pkmul(dst, src, m):
        for i in range(0, 16, 2): a("v_pk_mul_f32 %s, %s, %s op_sel_hi:[1,0]" % (vr(dst + i, 2), vr(src + i, 2), vr(m, 2)))
    def scale_from_var(r):
        round_bf16(a, r, r)
        a("v_add_f32 v%d, %s, v%d" % (r, f32(1e-5), r))
        round_bf16(a, r, r)
        a("v_sqrt_f32 v%d, v%d" % (r, r))
        a("s_nop 0")
        round_bf16(a, r, r)
        a("v_rcp_f32 v%d, v%d" % (r, r))
    inv = f32(1.0 / 448.0)
    S, S2, M, RS_ = 72, 76, 80, 82
    unpack(X, P)
    pksum(S, X)
    half_reduce(a, [S], [S + 1])
    a("v_mul_f32 v%d, %s, v%d" % (S, inv, S))
    round_bf16(a, M, S)
    pksub(T, X, M)
    pksq(S2, T)
    a("v_sub_f32 v%d, v%d, v%d" % (S, S, M))
    a("v_cndmask_b32 v%d, 0, v%d, s[52:53]" % (S2, S2))
    pack(P, T)
    half_reduce(a, [S2], [S2 + 1])
    a("v_mul_f32 v%d, %s, v%d" % (RS_, inv, S2))
    a("v_fma_f32 v%d, -v%d, v%d, v%d" % (RS_, S, S, RS_))
    a("v_max_f32 v%d, 0, v%d" % (RS_, RS_))
    scale_from_var(RS_)
    unpack(T, P)
    pkmul(T, T, RS_)
    pack(P, T)
    HB, HP = 7168, 912
    a("v_mul_u32_u24 v3, 896, v2")
    a("v_lshl_add_u32 v3, v%d, 5, v3" % VC)
    a("s_mov_b64 exec, s[52:53]")
    a.ds("ds_write_b128 v3, v[8:11]")
    a.ds("ds_write_b128 v3, v[12:15] offset:16")
    a("s_mov_b64 exec, -1")
    a.wait(vm="job")
    for i in range(8): a("v_lshl_or_b32 v%d, v%d, 16, v%d" % (J + i, J + 2 * i + 1, J + 2 * i))
    a.vmem("buffer_store_dwordx4 %s, v52, s[32:35], s27 offen sc1" % vr(J, 4))
    a.vmem("buffer_store_dwordx4 %s, v53, s[32:35], s29 offen sc1" % vr(J + 4, 4))
    a.vmem("buffer_load_dword v%d, v%d, s[44:47], 0 offen sc1" % (VT, VZ), "ready")
    unpack(X, P)
    pksum(S, X)
    pksq(S2, X)
    a("v_cndmask_b32 v%d, 0, v%d, s[52:53]" % (S, S))
    a("v_cndmask_b32 v%d, 0, v%d, s[52:53]" % (S2, S2))
    a("v_lshl_add_u32 v3, v2, 4, v3")
    half_reduce(a, [S, S2], [S + 1, S2 + 1])
    a("v_mul_f32 v%d, %s, v%d" % (S, inv, S))
    a("v_mul_f32 v%d, %s, v%d" % (RS_, inv, S2))
    a("v_fma_f32 v%d, -v%d, v%d, v%d" % (RS_, S, S, RS_))
    a("v_max_f32 v%d, 0, v%d" % (RS_, RS_))
    round_bf16(a, M, S)
    scale_from_var(RS_)
    pksub(T, X, M)
    pack(X, T)
    unpack(T, X)
    pkmul(T, T, RS_)
    pack(X, T)
    a("s_mov_b64 exec, s[52:53]")
    a.ds("ds_write_b128 v3, v[16:19] offset:%d" % HB)
    a.ds("ds_write_b128 v3, v[20:23] offset:%d" % (HB + 16))
    a("s_mov_b64 exec, -1")
    a("""
    v_bfe_u32 v24, v{LN}, 2, 2
    v_mul_u32_u24 v24, {HP}, v24
    v_lshrrev_b32 v25, 4, v{LN}
    v_lshl_add_u32 v24, v25, 5, v24
    v_and_b32 v25, 3, v{LN}
    v_lshl_add_u32 v24, v25, 3, v24
    s_lshl_b32 s20, s14, 7
    v_add_u32 v24, s20, v24
    v_lshlrev_b32 v44, 10, v{VH}
    v_lshl_add_u32 v44, v{VC}, 4, v44
    v_and_b32 v25, 7, v{LN}
    v_lshrrev_b32 v26, 3, v{LN}
    s_lshl_b32 s20, s14, 3
    v_add_u32 v26, s20, v26
    v_mul_u32_u24 v27, 896, v25
    v_lshl_add_u32 v27, v26, 4, v27
    v_lshlrev_b32 v25, 4, v25
    v_lshl_add_u32 v25, v26, 9, v25
    s_lshr_b32 s20, s15, 2
    s_mul_i32 s20, s20, 28672
    s_and_b32 s21, s15, 3
    s_lshl_b32 s21, s21, 7
    s_add_u32 s20, s20, s21
    s_lshl_b32 s21, s14, 18
    s_lshr_b32 s22, s15, 1
    s_lshl_b32 s22, s22, 11
    s_add_u32 s21, s21, s22
    s_and_b32 s22, s15, 1
    s_lshl_b32 s22, s22, 9
    s_add_u32 s21, s21, s22
    s_add_u32 s21, s21, {HTO}
    s_cmp_eq_u32 s14, 3
    s_cselect_b32 s23, 0x08000000, 0
    s_add_u32 s22, s21, {HG4}
    s_or_b32 s22, s22, s23
    s_add_u32 s24, s20, 16384
    s_or_b32 s24, s24, s23
    s_lshl_b32 s40, s39, 8
    s_add_u32 s40, s40, {SY}
    s_lshl_b32 s41, s38, 8
    s_add_u32 s41, s41, {SY}
    """.format(LN=LN, VH=VH, VC=VC, HP=HP, HG4=4 * HT_G, HTO=hex(HT_OFF), SY=hex(SYNC_OFF)))
    assert XN_OFF == 0 and HT_G == 1 << 18
    stamp(a, 3)
    a.drain()
    a("s_barrier")
    a.ds("ds_read_b64_tr_b16 v[28:29], v24 offset:%d" % HB, "h0")
    a.ds("ds_read_b64_tr_b16 v[30:31], v24 offset:%d" % (HB + 4 * HP), "h0")
    a.ds("ds_read_b128 v[36:39], v27", "x0")
    a.ds("ds_read_b64_tr_b16 v[32:33], v24 offset:%d" % (HB + 512), "h1")
    a.ds("ds_read_b64_tr_b16 v[34:35], v24 offset:%d" % (HB + 512 + 4 * HP), "h1")
    a.ds("ds_read_b128 v[40:43], v27 offset:512", "x1")
    a.wait(lg="h0"); a.vmem("buffer_store_dwordx4 v[28:31], v44, s[32:35], s21 offen sc1")
    a.wait(lg="x0"); a.vmem("buffer_store_dwordx4 v[36:39], v25, s[32:35], s20 offen sc1")
    a.wait(lg="h1"); a.vmem("buffer_store_dwordx4 v[32:35], v44, s[32:35], s22 offen sc1")
    a.wait(lg="x1"); a.vmem("buffer_store_dwordx4 v[40:43], v25, s[32:35], s24 offen sc1")
    a("v_readfirstlane_b32 s61, v%d" % VT)
    a("s_cmp_lg_u32 s61, 0")
    a("s_cbranch_scc1 A_RDY")
    poll(a, DBG, "0", VZ, VT, keep=True)
    a.label("A_RDY")
    a("s_cmp_lg_u32 s14, 3")
    a("s_cbranch_scc1 A_NOW")
    arrive_issue(a, "s40 offset:%d" % (SW_CNT * SL))
    arrive_finish(a, 15, ["s40 offset:%d" % (SW_REL * SL)], "A_NOW")
    a.label("A_NOW")
    a("""
    s_lshl_b32 s36, s38, 2
    s_add_u32 s36, s36, s14
    s_mul_i32 s24, s36, 28672
    s_lshl_b32 s26, s14, 10
    s_add_u32 s27, s25, {PHI}
    s_add_u32 s25, s25, s26
    v_add_u32 v{VD}, 0x8000, v{VB}
    """.format(PHI=WP_PHI, VB=VB, VD=VD))
    a.drain()
    stamp(a, 4)
    a("s_barrier")
    a("s_cmp_lg_u32 s14, 0")
    a("s_cbranch_scc1 A_NOX")
    arrive_issue(a, "s41 offset:%d" % (SX_CNT * SL))
    a("s_mov_b32 s20, %s" % hex(SYNC_OFF + SA_REP * SL))
    arrive_finish(a, 15, ["s41 offset:%d" % (SX_REL * SL)] + ["s20 offset:%d" % (i * SL) for i in range(8)], "A_NOX")
    a.label("A_NOX")
    AQ, AK, AV = 0, 16, 32
    XF, WF, PH = 64, 176, 208
    a("s_add_u32 s20, s40, %d" % (SW_REL * SL))
    poll(a, WS, "s20", VZ, VT, sleep=0)
    stamp(a, 5)
    for r in range(19):
        a("s_add_u32 m0, s26, %d" % (r * 4096))
        a("s_add_u32 s28, s25, %d" % (r * 4096))
        a.vmem("buffer_load_dwordx4 v%d, s[32:35], s28 offen sc1 lds" % VA, "w")
    a("s_add_u32 s20, s41, %d" % (SX_REL * SL))
    poll(a, WS, "s20", VZ, VT, sleep=0)
    stamp(a, 6)
    def xload(k):
        if k % 4 == 0 and k > 0: a("s_add_u32 s24, s24, 4096")
        a.vmem("buffer_load_dwordx4 %s, v%d, s[32:35], s24 offen offset:%d sc1" % (vr(XF + 4 * k, 4), VA, (k % 4) * 1024), "x%d" % k)
    XPRE = 8
    for k in range(XPRE): xload(k)
    a("s_barrier")
    def lread(dst, off, tag, base=None):
        if off < 65536: a.ds("ds_read_b128 %s, v%d offset:%d" % (vr(dst, 4), VB, off), tag)
        else: a.ds("ds_read_b128 %s, v%d offset:%d" % (vr(dst, 4), VD, off - 32768), tag)
    def wread(k):
        b = WF + 8 * (k % 3)
        lread(b, k * 1792, "w%d" % k); lread(b + 4, k * 1792 + 896, "w%d" % k)
    a("v_add_u32 v2, 0x8000, v%d" % VA)
    wread(0); wread(1)
    a.ds("ds_read_b128 %s, v2 offset:%d" % (vr(PH, 4), WP_PHI - 32768), "ph")
    a.ds("ds_read_b128 %s, v2 offset:%d" % (vr(PH + 4, 4), WP_PHI + 1024 - 32768), "ph")
    nx = XPRE
    for k in range(28):
        if k + 2 < 28: wread(k + 2)
        a.wait(vm="x%d" % k, lg="w%d" % k)
        b = WF + 8 * (k % 3); x = vr(XF + 4 * k, 4)
        a("%s %s, %s, %s, %s" % (MF, vr(AK, 16), vr(b, 4), x, "0" if k == 0 else vr(AK, 16)))
        if nx < 28: xload(nx); nx += 1
        a("%s %s, %s, %s, %s" % (MF, vr(AV, 16), x, vr(b + 4, 4), "0" if k == 0 else vr(AV, 16)))
    stamp(a, 7)
    PKK, PKV = 48, 56
    PP = 216; EP, EM = 16, 32; OUT = 176; S0 = 192; TA = S0 + 12
    a("""
    s_mov_b32 s56, 0
    s_mov_b32 s57, -1
    s_mov_b32 s37, {L2E}
    v_mul_u32_u24 v{t}, 136, v{VC}
    v_lshl_add_u32 v{t}, v{VH}, 3, v{t}
    s_mul_i32 s28, s14, 4352
    v_add_u32 v{t}, s28, v{t}
    s_lshl_b32 s28, s14, 11
    v_add_u32 v{u}, s28, v{VA}
    v_cmp_eq_u32 vcc, 28, v{VC}
    v_mov_b32 v{S0}, 0x3f803f80
    """.format(L2E=f32(1.4426950408889634), t=TA, u=TA + 1, VC=VC, VH=VH, VA=VA, S0=S0))
    for r in range(8): a("v_cvt_pk_bf16_f32 v%d, v%d, v%d" % (PKK + r, AK + 2 * r, AK + 2 * r + 1))
    a("v_cndmask_b32 v%d, 0, v%d, vcc" % (S0, S0))
    a("%s %s, %s, %s, 0" % (MF, vr(PP, 16), vr(PH, 4), vr(PKK, 4)))
    a("%s %s, %s, %s, %s" % (MF, vr(PP, 16), vr(PH + 4, 4), vr(PKK + 4, 4), vr(PP, 16)))
    for r in range(8): a("v_cvt_pk_bf16_f32 v%d, v%d, v%d" % (PKV + r, AV + 2 * r, AV + 2 * r + 1))
    for r in range(8): a("v_cndmask_b32 v%d, v%d, v%d, s[52:53]" % (PKV + r, S0, PKV + r))
    a("s_barrier")
    a.ds("ds_write_b128 v%d, %s offset:17408" % (TA + 1, vr(PKV, 4)))
    a.ds("ds_write_b128 v%d, %s offset:%d" % (TA + 1, vr(PKV + 4, 4), 17408 + 1024))

    def softmax2(P, sink=None):
        mx, mn, t0, t1, t2, t3 = S0, S0 + 1, S0 + 2, S0 + 3, S0 + 4, S0 + 5
        for op, m, t in (("max", mx, t0), ("min", mn, t1)):
            a("v_%s3_f32 v%d, v%d, v%d, v%d" % (op, t, P + 12, P + 13, P + 14))
            a("v_%s3_f32 v%d, v%d, v%d, v%d" % (op, m, P, P + 1, P + 2))
            a("v_%s_f32 v%d, v%d, v%d" % (op, t, t, P + 15))
            for i in range(3, 11, 2): a("v_%s3_f32 v%d, v%d, v%d, v%d" % (op, m, m, P + i, P + i + 1))
            a("v_cndmask_b32 v%d, v%d, v%d, s[56:57]" % (t, t, P))
            a("v_%s3_f32 v%d, v%d, v%d, v%d" % (op, m, m, P + 11, t))
        a("v_mov_b32 v%d, v%d" % (t0, mx))
        a("v_mov_b32 v%d, v%d" % (t1, mn))
        a("v_mov_b32 v%d, 0x7f800000" % t2)
        a("v_mov_b32 v%d, 0xff800000" % t3)
        a("v_permlane32_swap_b32 v%d, v%d" % (mx, t0))
        a("v_permlane32_swap_b32 v%d, v%d" % (mn, t1))
        a("s_nop 0")
        a("v_max_f32 v%d, v%d, v%d" % (mx, mx, t0))
        a("v_min_f32 v%d, v%d, v%d" % (mn, mn, t1))
        a("v_mul_f32 v%d, s37, v%d" % (mx, mx))
        a("v_mul_f32 v%d, s37, v%d" % (mn, mn))
        a("v_cndmask_b32 v%d, v%d, v%d, s[56:57]" % (t2, mx, t2))
        a("v_cndmask_b32 v%d, v%d, v%d, s[56:57]" % (t3, mn, t3))
        for r in range(16):
            a("v_fma_f32 v%d, v%d, s37, -v%d" % (EP + r, P + r, mx if r < 12 else t2))
            a("v_fma_f32 v%d, -v%d, s37, v%d" % (EM + r, P + r, mn if r < 12 else t3))
        for r in range(16):
            a("v_exp_f32 v%d, v%d" % (EP + r, EP + r))
            a("v_exp_f32 v%d, v%d" % (EM + r, EM + r))
            if r == 2:
                a("v_add_f32 v%d, v%d, v%d" % (mx, EP, EP + 1))
                a("v_add_f32 v%d, v%d, v%d" % (mn, EM, EM + 1))
            if r > 2:
                a("v_add_f32 v%d, v%d, v%d" % (mx, mx, EP + r - 1))
                a("v_add_f32 v%d, v%d, v%d" % (mn, mn, EM + r - 1))
        a("v_add_f32 v%d, v%d, v%d" % (mx, mx, EP + 15))
        a("v_add_f32 v%d, v%d, v%d" % (mn, mn, EM + 15))
        a("v_mov_b32 v%d, v%d" % (t0, mx))
        a("v_mov_b32 v%d, v%d" % (t1, mn))
        a("s_nop 1")
        a("v_permlane32_swap_b32 v%d, v%d" % (mx, t0))
        a("v_permlane32_swap_b32 v%d, v%d" % (mn, t1))
        a("s_nop 0")
        a("v_add_f32 v%d, v%d, v%d" % (mx, mx, t0))
        a("v_add_f32 v%d, v%d, v%d" % (mn, mn, t1))
        a("v_rcp_f32 v%d, v%d" % (mx, mx))
        a("v_rcp_f32 v%d, v%d" % (mn, mn))
        for e, (E_, m) in enumerate(((EP, mx), (EM, mn))):
            for q in range(4):
                for r in range(4): a("v_mul_f32 v%d, v%d, v%d" % (E_ + 4 * q + r, E_ + 4 * q + r, m))
                for r in range(2): a("v_cvt_pk_bf16_f32 v%d, v%d, v%d" % (OUT + 8 * e + 2 * q + r, E_ + 4 * q + 2 * r, E_ + 4 * q + 2 * r + 1))
                if sink: sink(e, q)

    softmax2(PP, lambda e, q: a.ds("ds_write_b64 v%d, %s offset:%d" % (TA, vr(OUT + 8 * e + 2 * q, 2), e * 64 + q * 16)))
    a("""
    v_lshlrev_b32 v{t}, 2, v{VH}
    v_bfe_u32 v{u}, v{LN}, 2, 2
    v_add_u32 v{t}, v{t}, v{u}
    v_mul_u32_u24 v{t}, 136, v{t}
    v_bfe_u32 v{u}, v{LN}, 4, 1
    v_lshl_add_u32 v{t}, v{u}, 5, v{t}
    v_and_b32 v{u}, 3, v{LN}
    v_lshl_add_u32 v{t}, v{u}, 3, v{t}
    s_lshl_b32 s28, s14, 6
    v_add_u32 v{t}, s28, v{t}
    s_lshl_b32 s42, s39, 17
    s_add_u32 s42, s42, {KVP}
    s_lshl_b32 s28, s38, 13
    s_lshl_b32 s29, s14, 12
    s_add_u32 s28, s28, s29
    s_add_u32 s28, s28, s42
    """.format(t=TA + 2, u=TA + 3, LN=LN, VH=VH, KVP=hex(KVP_OFF)))
    a.drain(vm=False)
    a("s_barrier")
    stamp(a, 8)
    a("s_cmp_ge_u32 s14, 2")
    a("s_cbranch_scc1 A_QPASS")
    KVA = 232
    for w in range(4):
        for i in range(2):
            n_ = 2 * w + i
            a.ds("ds_read_b64_tr_b16 %s, v%d offset:%d" % (vr(4 * n_, 2), TA + 2, w * 4352 + (16 * i) * 136), "kv%d" % n_)
            a.ds("ds_read_b64_tr_b16 %s, v%d offset:%d" % (vr(4 * n_ + 2, 2), TA + 2, w * 4352 + (16 * i + 8) * 136), "kv%d" % n_)
            a.ds("ds_read_b128 %s, v%d offset:%d" % (vr(32 + 4 * n_, 4), VA, 17408 + w * 2048 + i * 1024), "kv%d" % n_)
    for n_ in range(8):
        a.wait(lg="kv%d" % n_)
        a("%s %s, %s, %s, %s" % (MF, vr(KVA, 16), vr(4 * n_, 4), vr(32 + 4 * n_, 4), "0" if n_ == 0 else vr(KVA, 16)))
    a("s_nop 11")
    for q in range(4):
        a("buffer_store_dwordx4 %s, v%d, s[32:35], s28 offen offset:%d sc1" % (vr(KVA + 4 * q, 4), VA, q * 1024))
    a.label("A_QPASS")
    QB = 16
    def qread(k): lread(QB + 4 * (k % 8), WP_Q + k * 896, "q%d" % k)
    for k in range(4): qread(k)
    for k in range(28):
        if k + 4 < 28: qread(k + 4)
        a.wait(lg="q%d" % k)
        a("%s %s, %s, %s, %s" % (MF, vr(AQ, 16), vr(QB + 4 * (k % 8), 4), vr(XF + 4 * k, 4), "0" if k == 0 else vr(AQ, 16)))
    a("s_mov_b32 s62, 0")
    a("s_cmp_ge_u32 s14, 2")
    a("s_cbranch_scc1 A_NOARR")
    a.drain(lg=False)
    arrive_issue(a, "s40 offset:%d" % (S1_CNT * SL))
    a.label("A_NOARR")
    a("s_nop 9")
    for r in range(8): a("v_cvt_pk_bf16_f32 v%d, v%d, v%d" % (PKK + r, AQ + 2 * r, AQ + 2 * r + 1))
    a("s_nop 1")
    a("%s %s, %s, %s, 0" % (MF, vr(PP, 16), vr(PH, 4), vr(PKK, 4)))
    a("%s %s, %s, %s, %s" % (MF, vr(PP, 16), vr(PH + 4, 4), vr(PKK + 4, 4), vr(PP, 16)))
    arrive_finish(a, 31, ["s40 offset:%d" % (S1_REL * SL)], "A_S1_NR")
    a.label("A_S1_NR")
    a("s_nop 9")
    softmax2(PP)
    stamp(a, 9)
    a("s_lshl_b32 s43, s39, 12")
    a("s_add_u32 s43, s43, %s" % hex(KVF_OFF))
    a("s_cmp_lg_u32 s14, 3")
    a("s_cbranch_scc1 A_NORED")
    a("""
    v_bfe_u32 v1, v{LN}, 4, 1
    v_and_b32 v2, 15, v{LN}
    v_lshlrev_b32 v3, 13, v{VH}
    v_lshl_add_u32 v3, v1, 10, v3
    v_lshl_add_u32 v3, v2, 4, v3
    v_lshlrev_b32 v4, 4, v2
    v_lshl_add_u32 v4, v1, 3, v4
    v_lshl_add_u32 v4, v{VH}, 2, v4
    s_lshr_b32 s28, s38, 2
    s_lshl_b32 s28, s28, 11
    s_and_b32 s29, s38, 3
    s_lshl_b32 s29, s29, 8
    s_add_u32 s28, s28, s29
    s_add_u32 s28, s28, s42
    s_lshl_b32 s29, s38, 8
    s_add_u32 s29, s29, s43
    s_add_u32 s41, s40, {REL}
    """.format(LN=LN, VH=VH, REL=S1_REL * SL))
    poll(a, WS, "s41", VZ, VT, sleep=0)
    for m in range(8):
        a.vmem("buffer_load_dwordx4 %s, v3, s[32:35], s28 offen sc1" % vr(64 + 4 * m, 4), "p%d" % m)
        if m < 7: a("s_add_u32 s28, s28, 16384")
    for m in range(1, 8):
        a.wait(vm="p%d" % m)
        for r in range(4): a("v_add_f32 v%d, v%d, v%d" % (64 + r, 64 + r, 64 + 4 * m + r))
    a("""
    s_nop 1
    v_permlane32_swap_b32 v64, v66
    v_permlane32_swap_b32 v65, v67
    s_nop 0
    v_add_f32 v64, v64, v66
    v_add_f32 v65, v65, v67
    v_cvt_pk_bf16_f32 v64, v64, v65
    buffer_store_dword v64, v4, s[32:35], s29 offen sc1
    """)
    a.drain(lg=False)
    arrive_issue(a, "s40 offset:%d" % (S3_CNT * SL))
    arrive_finish(a, 15, ["s40 offset:%d" % (S3_REL * SL)], "A_NORED2")
    a.label("A_NORED2")
    a("s_add_u32 s41, s40, %d" % (S3_REL * SL))
    poll(a, WS, "s41", VZ, VT, sleep=0)
    a.label("A_NORED")
    a("s_barrier")
    stamp(a, 10)
    KVB, OD = 96, 112
    for n_ in range(4):
        a.vmem("buffer_load_dwordx4 %s, v%d, s[32:35], s43 offen offset:%d sc1" % (vr(KVB + 4 * n_, 4), VA, n_ * 1024), "kvl%d" % n_)
    a("""
    s_lshl_b32 s28, s36, 15
    s_lshl_b32 s29, s39, 11
    s_add_u32 s28, s28, s29
    s_add_u32 s28, s28, {OFO}
    s_lshr_b32 s40, s36, 1
    s_lshl_b32 s40, s40, 8
    s_add_u32 s40, s40, {SY}
    """.format(OFO=hex(OF_OFF), SY=hex(SYNC_OFF)))
    for n_ in range(4):
        a.wait(vm="kvl%d" % n_)
        a("%s %s, %s, %s, %s" % (MF, vr(OD, 16), vr(KVB + 4 * n_, 4), vr(OUT + 4 * n_, 4), "0" if n_ == 0 else vr(OD, 16)))
    a("""
    s_nop 11
    v_mov_b32 v0, v{D12}
    v_mov_b32 v2, v{D12}
    s_nop 1
    v_permlane32_swap_b32 v0, v2
    s_nop 0
    v_add_f32 v2, {EPS}, v2
    v_rcp_f32 v2, v2
    s_nop 0
    """.format(D12=OD + 12, EPS=f32(1e-6)))
    for i in range(2):
        for r in range(8): a("v_mul_f32 v%d, v%d, v2" % (OD + 8 * i + r, OD + 8 * i + r))
        for r in range(4): a("v_cvt_pk_bf16_f32 v%d, v%d, v%d" % (KVB + 4 * i + r, OD + 8 * i + 2 * r, OD + 8 * i + 2 * r + 1))
        a.vmem("buffer_store_dwordx4 %s, v%d, s[32:35], s28 offen offset:%d sc1" % (vr(KVB + 4 * i, 4), VA, i * 1024))
    a.drain(lg=False)
    arrive_issue(a, "s40 offset:%d" % (S2_CNT * SL))
    arrive_finish(a, 31, ["s40 offset:%d" % (S2_REL * SL)], "A_FIN")
    a.label("A_FIN")
    stamp_flush(a, 11, 4)
    a("s_endpgm")

class G:
    ACC = 0; B = 64; F = 64 + 8 * NB
    W0 = 232; W1 = 233; FA = 234; FB = 235; LA = 236; LB = 237
    LN = 238; L16 = 239; RES = 240
    VX = 248; VB2 = 249; VZ = 250; VT = 251; T0 = 252; T1 = 253; T2 = 254
assert G.F + 8 * NF <= 232
SW, SF, SLDS = 48, 49, 50

def g_waddr(a, RS, perm2, scol):
    a("""
    v_lshrrev_b32 v{T0}, 3, v{L}
    v_mul_u32_u24 v{W0}, {RS}, v{T0}
    v_bfe_u32 v{T0}, v{L}, 4, 1
    v_lshlrev_b32 v{T1}, 2, v{T0}
    v_and_b32 v{T2}, 7, v{L}
    v_xor_b32 v{T1}, v{T1}, v{T2}
    v_lshl_add_u32 v{W0}, v{T1}, 4, v{W0}
    v_add_u32 v{W0}, {scol}, v{W0}
    v_add_u32 v{W1}, {RS8}, v{W0}
    v_lshrrev_b32 v{T1}, 5, v{L}
    v_lshlrev_b32 v{LA}, {HS}, v{T1}
    v_lshl_add_u32 v{LA}, v{T0}, 5, v{LA}
    v_bfe_u32 v{T1}, v{L}, 2, 2
    v_lshl_add_u32 v{LA}, v{T1}, 7, v{LA}
    v_lshrrev_b32 v{T1}, 1, v{T1}
    v_lshl_add_u32 v{LA}, v{T1}, 6, v{LA}
    v_and_b32 v{T1}, 3, v{L}
    v_lshl_add_u32 v{LA}, v{T1}, 3, v{LA}
    s_lshl_b32 s58, s14, 5
    s_and_b32 s58, s58, 64
    v_xor_b32 v{LA}, s58, v{LA}
    v_add_u32 v{LA}, s{SLDS}, v{LA}
    v_xor_b32 v{LB}, 64, v{LA}
    """.format(T0=G.T0, T1=G.T1, T2=G.T2, L=G.LN, W0=G.W0, W1=G.W1, LA=G.LA, LB=G.LB, RS=RS, RS8=8 * RS,
               HS=(9 if perm2 else 10), scol=scol, SLDS=SLDS))

class Stream:
    def __init__(self, a, name, srdw, RS, NK, perm2, pol, slots):
        self.a = a; self.n = name; self.srd = srdw; self.RS = RS; self.NK = NK; self.perm2 = perm2; self.pol = pol
        self.free = [(s, None) for s in slots]
        self.slot = {}; self.nd = 0; self.nr = 0
    def can_dma(self): return self.nd < self.NK and len(self.free) > 0
    def dma_parts(self):
        a = self.a; p = self.nd; self.nd += 1
        sl, tag = self.free.pop(0); self.slot[p] = sl
        def p0():
            if tag: a.wait(lg=tag)
            a("s_add_u32 m0, s%d, %d" % (SLDS, sl * 2048))
            a("s_add_u32 s58, s%d, %d" % (SW, 64 * self.RS))
            a.vmem("buffer_load_dwordx4 v%d, s[%d:%d], s%d offen %s lds" % (G.W0, self.srd, self.srd + 3, SW, self.pol), "%sd%d" % (self.n, p))
        def p1():
            a("s_add_u32 m0, s%d, %d" % (SLDS, sl * 2048 + 1024))
            a("s_sub_u32 s59, s58, %d" % (self.NK * 64 * self.RS))
            a.vmem("buffer_load_dwordx4 v%d, s[%d:%d], s%d offen %s lds" % (G.W1, self.srd, self.srd + 3, SW, self.pol), "%sd%d" % (self.n, p))
            a("s_cselect_b32 s%d, s58, s59" % SW)
        return [p0, p1]
    def dma(self):
        for f in self.dma_parts(): f()
    def read_parts(self):
        a = self.a; p = self.nr; self.nr += 1
        assert p < self.nd
        sl = self.slot[p]; b = G.B + 8 * (p % NB); io = 1024 if self.perm2 else 512
        self.free.append((sl, "%sr%d" % (self.n, p)))
        def part(u):
            def f():
                a.wait(vm="%sd%d" % (self.n, p))
                for i in range(2):
                    a.ds("ds_read_b64_tr_b16 %s, v%d offset:%d" % (vr(b + 4 * u + 2 * i, 2), G.LA + u, sl * 2048 + i * io), "%sr%d" % (self.n, p))
            return f
        return [part(0), part(1)]
    def read(self):
        for f in self.read_parts(): f()
    def pump(self, ahead):
        did = False
        while self.can_dma() and self.nd - self.nr < ahead and self.nr < NB: self.dma(); did = True
        if self.nr < NB and self.nr < self.nd: self.read(); did = True
        elif self.can_dma():
            self.a.wait(vm="%sd%d" % (self.n, self.nd - ahead)); self.dma(); did = True
        return did
    def fload_parts(self, t, srdf):
        a = self.a; f = G.F + 8 * (t % NF)
        def p0():
            a("s_add_u32 s60, s%d, 8192" % SF)
            a.vmem("buffer_load_dwordx4 %s, v%d, s[%d:%d], s%d offen sc1" % (vr(f, 4), G.FA, srdf, srdf + 3, SF), "%sf%d" % (self.n, t))
        def p1():
            a("s_sub_u32 s61, s60, %d" % (self.NK * 8192))
            a.vmem("buffer_load_dwordx4 %s, v%d, s[%d:%d], s%d offen sc1" % (vr(f + 4, 4), G.FB, srdf, srdf + 3, SF), "%sf%d" % (self.n, t))
            a("s_cselect_b32 s%d, s60, s61" % SF)
        return [p0, p1]
    def fload(self, t, srdf):
        for f in self.fload_parts(t, srdf): f()
    def step(self, t, weights_are_A, fill):
        a = self.a; b = G.B + 8 * (t % NB); f = G.F + 8 * (t % NF)
        a.wait(vm="%sf%d" % (self.n, t), lg="%sr%d" % (self.n, t))
        gaps = [[], [], [], []]
        for i, p in enumerate(fill): gaps[min(3, i * 4 // max(4, len(fill)))].append(p)
        for n in range(4):
            uw, uf = n >> 1, n & 1
            acc = vr(G.ACC + 16 * n, 16)
            W, F = vr(b + 4 * uw, 4), vr(f + 4 * uf, 4)
            A_, B_ = (W, F) if weights_are_A else (F, W)
            a("%s %s, %s, %s, %s" % (MF, acc, A_, B_, "0" if (t == 0 and n > 0) else acc))
            for p in gaps[n]: p()
    def loop_fill(self, t, srdf):
        fill = []
        if t + NF - 1 < self.NK: fill += self.fload_parts(t + NF - 1, srdf)
        dm = self.dma_parts() if self.can_dma() else []
        if t >= 1 and self.nr < self.NK and self.nr - NB <= t - 1: fill += self.read_parts()
        return fill + dm

def g_reduce_write(a):
    a("v_add_u32 v%d, s%d, v%d" % (G.T0, SLDS, G.L16))
    a("s_nop 10")
    for t in range(1, 4):
        for q in range(4):
            a.ds("ds_write_b128 v%d, %s offset:%d" % (G.T0, vr(G.ACC + 16 * t + 4 * q, 4), 8192 + (t - 1) * 4096 + q * 1024), "rw")
    for t in range(1, 4):
        a("s_xor_b32 s60, s14, %d" % t)
        a("s_mul_i32 s60, s60, %d" % (NS * 2048))
        a("v_add_u32 v%d, s60, v%d" % (G.T0 + t - 1, G.L16))
    a.wait(lg="rw")
    a("s_barrier")
    for t in range(1, 4):
        for q in range(4):
            a.ds("ds_read_b128 %s, v%d offset:%d" % (vr(G.ACC + 16 * t + 4 * q, 4), G.T0 + t - 1, 8192 + (t - 1) * 4096 + q * 1024), "rr%d" % t)
def g_reduce_add(a):
    for t in range(1, 4):
        a.wait(lg="rr%d" % t)
        for r in range(0, 16, 2): a("v_pk_add_f32 %s, %s, %s" % (vr(r, 2), vr(r, 2), vr(16 * t + r, 2)))

def role_g(a):
    a.vm.clear(); a.lg.clear()
    a.label("ROLE_G")
    a("""
    s_load_dwordx4 s[8:11], s[0:1], 40
    s_load_dwordx4 s[52:55], s[0:1], 56
    s_load_dwordx2 s[6:7], s[0:1], 72
    s_setprio {PRIO}
    v_and_b32 v{LN}, 63, v0
    v_lshlrev_b32 v{L16}, 4, v{LN}
    v_mov_b32 v{VZ}, 0
    s_mul_i32 s60, s56, 49
    s_add_u32 s60, s60, 1
    s_lshr_b32 s60, s60, 1
    s_add_u32 s60, s60, s57
    s_mul_i32 s65, s60, 9363
    s_lshr_b32 s65, s65, 16
    s_mul_i32 s61, s65, 7
    s_sub_u32 s63, s60, s61
    s_mul_i32 s61, s57, 37
    s_lshr_b32 s61, s61, 8
    s_lshl_b32 s66, s56, 2
    s_add_u32 s66, s66, s61
    s_mul_i32 s61, s61, 7
    s_sub_u32 s64, s57, s61
    s_and_b32 s61, s56, 1
    s_sub_u32 s69, 25, s61
    s_cmp_lt_u32 s57, s69
    s_cselect_b32 s51, -1, 0
    s_mul_i32 s{SLDS}, s14, {WB}
    s_lshl_b32 s67, s65, 7
    s_lshr_b32 s60, s14, 1
    s_lshl_b32 s60, s60, 5
    s_lshl_b32 s61, s66, 6
    s_add_u32 s60, s60, s61
    v_and_b32 v{T0}, 31, v{LN}
    v_add_u32 v{T0}, s60, v{T0}
    v_mul_u32_u24 v{VX}, 896, v{T0}
    v_lshrrev_b32 v{T1}, 5, v{LN}
    v_lshlrev_b32 v{T1}, 3, v{T1}
    s_lshl_b32 s60, s64, 7
    s_and_b32 s61, s14, 1
    s_lshl_b32 s61, s61, 6
    s_add_u32 s60, s60, s61
    v_add3_u32 v{VX}, v{VX}, v{T1}, s60
    v_lshlrev_b32 v{T0}, 1, v{T0}
    s_lshr_b32 s60, s14, 1
    s_lshl_b32 s60, s60, 6
    s_add_u32 s60, s60, s67
    s_waitcnt lgkmcnt(0)
    """.format(PRIO=PRIO_G, LN=G.LN, L16=G.L16, VZ=G.VZ, SLDS=SLDS, WB=NS * 2048, T0=G.T0, T1=G.T1, VX=G.VX))
    srd(a, WS, 30, hex(WS_USED))
    a("s_lshl_b32 s61, s2, 2")
    a("s_add_u32 s61, s61, s14")
    a("s_cmp_lg_u32 s61, %d" % (4 * (25 * 8 + 1)))
    a("s_cbranch_scc1 G_NOZERO")
    a("v_lshlrev_b32 v%d, 8, v%d" % (G.T2, G.LN))
    for i in range(NSYNC // 64):
        a("s_mov_b32 s61, %s" % hex(SYNC_OFF + i * 64 * SL))
        a("buffer_store_dword v%d, v%d, s[32:35], s61 offen sc1" % (G.VZ, G.T2))
    a("s_mov_b32 s62, 1")
    a("s_waitcnt vmcnt(0)")
    a("s_atomic_add s62, s[28:29], 0x0")
    a.label("G_NOZERO")
    srd(a, 36, 10, str(1792 * 2))
    srd(a, 16, 4, str(2048 * 896))
    srd(a, 20, 54, "4096")
    for q in range(4):
        a.vmem("buffer_load_dwordx2 %s, v%d, s[36:39], s60 offen offset:%d nt" % (vr(G.F + 2 * q, 2), G.T1, 16 * q), "b1")
    for q in range(4):
        a.vmem("buffer_load_dwordx2 %s, v%d, s[16:19], 0 offen offset:%d nt" % (vr(G.RES + 2 * q, 2), G.VX, 16 * q), "res")
    a.vmem("buffer_load_ushort v%d, v%d, s[20:23], 0 offen nt" % (G.VB2, G.T0), "res")
    a("s_cmp_lg_u32 s14, 3")
    a("s_cbranch_scc1 G_NOCODE")
    a("s_getpc_b64 s[60:61]")
    a.label("G_PC")
    a("s_sub_u32 s60, s60, G_PC-%s" % KNAME)
    a("s_subb_u32 s61, s61, 0")
    a("s_lshl_b32 s36, s57, 10")
    a("s_min_u32 s36, s36, CODE_END-%s-1024" % KNAME)
    a("v_add_u32 v%d, s36, v%d" % (G.T0, G.L16))
    a("global_load_dwordx4 %s, v%d, s[60:61] nt" % (vr(G.F + 8, 4), G.T0))
    a.label("G_NOCODE")
    g_waddr(a, 3584, False, "s67")
    a("""
    s_mul_i32 s60, s65, 37
    s_lshr_b32 s60, s60, 8
    s_mul_i32 s60, s60, 7
    s_sub_u32 s60, s65, s60
    s_mul_i32 s61, s63, 293
    s_add_u32 s61, s61, 32
    s_lshr_b32 s61, s61, 6
    s_lshl_b32 s68, s63, 3
    s_mul_i32 s58, s63, 11
    s_bitcmp1_b32 s56, 0
    s_cselect_b32 s68, s58, s68
    s_cmp_eq_u32 s60, 3
    s_cselect_b32 s60, s68, s61
    s_and_b32 s60, s60, 31
    s_lshl_b32 s60, s60, 2
    s_add_u32 s60, s60, s14
    s_mul_i32 s{SW}, s60, {RS16}
    s_lshl_b32 s{SF}, s60, 11
    s_and_b32 s60, s14, 1
    s_lshl_b32 s60, s60, 10
    v_add_u32 v{FA}, s60, v{L16}
    v_xor_b32 v{FB}, 0x400, v{FA}
    s_lshl_b32 s68, s63, 18
    s_add_u32 s68, s68, {HTO}
    s_mul_i32 s60, s64, {UG}
    s_add_u32 s60, s60, {UPO}
    """.format(SW=SW, SF=SF, RS16=16 * 3584, FA=G.FA, FB=G.FB, L16=G.L16, HTO=hex(HT_OFF), UG=UP_G, UPO=hex(UP_OFF)))
    srd(a, 40, 30, str(UP_G), add="s60")
    srd(a, DBG, 28, "256")
    srd(a, 24, 52, str(1792 * 4096))
    a.wait(vm="res")
    srd(a, 16, 8, str(2048 * 3584)); a("s_and_b32 s18, s18, s51")
    srd(a, 20, 30, str(HT_G), add="s68"); a("s_and_b32 s22, s22, s51")
    s1 = Stream(a, "a", 16, 3584, 32, False, "nt", list(range(NS)))
    s2 = Stream(a, "b", 24, 4096, 28, True, "", list(range(4)))
    def sw2():
        a("s_lshl_b32 s67, s66, 7")
        g_waddr(a, 4096, True, "s67")
        a("""
        s_lshl_b32 s58, s64, 4
        s_add_u32 s58, s58, s14
        s_lshl_b32 s{SW}, s58, 16
        s_lshl_b32 s68, s58, 11
        """.format(SW=SW))
    stamp(a, 1)
    a("s_cmp_lg_u32 s51, 0")
    a("s_cbranch_scc1 G_TILE1")
    a("""
    s_sub_u32 s60, s57, s69
    s_lshl_b32 s60, s60, 2
    s_add_u32 s60, s60, s14
    s_lshl_b32 s60, s60, 13
    s_sub_u32 s61, 28, s69
    s_lshl_b32 s61, s61, 15
    v_lshrrev_b32 v{T0}, 5, v{LN}
    v_lshlrev_b32 v{T0}, 12, v{T0}
    v_and_b32 v{T1}, 31, v{LN}
    v_lshl_add_u32 v{T0}, v{T1}, 4, v{T0}
    s_lshl_b32 s58, s56, 9
    v_add_u32 v{T0}, s58, v{T0}
    G_PFL:
    """.format(T0=G.T0, T1=G.T1, LN=G.LN))
    for i in range(8):
        a("s_waitcnt vmcnt(7)")
        a("buffer_load_dwordx4 %s, v%d, s[24:27], s60 offen %s" % (vr(G.B + 4 * i, 4), G.T0, PFPOL))
        a("s_add_u32 s60, s60, s61")
    a("s_cmp_lt_u32 s60, %d" % (1792 * 4096))
    a("s_cbranch_scc1 G_PFL")
    a("s_waitcnt vmcnt(0)")
    for i in range(2, 9): stamp(a, i)
    sw2()
    a("s_mov_b32 s37, 1")
    a("s_branch G_JOIN")
    a.label("G_TILE1")
    for p in range(5): s1.dma()
    for q in range(8):
        a("v_lshlrev_b32 v%d, 16, v%d" % (2 * q, G.F + q))
        a("v_and_b32 v%d, 0xffff0000, v%d" % (2 * q + 1, G.F + q))
    a.wait(vm="ad4")
    stamp(a, 2)
    while s1.pump(AHEAD): pass
    stamp(a, 3)
    a("s_cmp_lg_u32 s14, 0")
    a("s_cbranch_scc1 G_S0_DONE")
    poll(a, DBG, "0", G.VZ, G.VT, keep=True)
    a("s_lshl_b32 s36, s56, 8")
    a("s_add_u32 s36, s36, %s" % hex(SYNC_OFF + SA_REP * SL))
    poll(a, WS, "s36", G.VZ, G.VT, sleep=1, target=16, keep=True)
    a.label("G_S0_DONE")
    a("s_barrier")
    stamp(a, 4)
    for t in range(NF - 1): s1.fload(t, 20)
    for t in range(32):
        if t in (8, 16, 24): stamp(a, 4 + t // 8)
        fill = s1.loop_fill(t, 20)
        if t == 21:
            assert s1.nr == 32
            fill.append(lambda: (a.drain(vm=False), sw2()))
        if W2START <= t < W2START + 4: fill += s2.dma_parts()
        s1.step(t, True, fill)
    stamp(a, 8)
    g_reduce_write(a)
    s2.pump(4); s2.pump(4)
    g_reduce_add(a)
    c1 = -2.0 * 0.7978845608028654 * 1.4426950408889634
    c2 = c1 * 0.044715
    a("s_mov_b32 s60, %s" % f32(c2))
    a("v_mov_b32 v48, %s" % f32(c1))
    for r in range(0, 16, 2): a("v_pk_mul_f32 %s, %s, %s" % (vr(16 + r, 2), vr(r, 2), vr(r, 2)))
    for r in range(16): a("v_fma_f32 v%d, v%d, s60, v48" % (16 + r, 16 + r))
    s2.pump(4)
    for r in range(0, 16, 2): a("v_pk_mul_f32 %s, %s, %s" % (vr(16 + r, 2), vr(16 + r, 2), vr(r, 2)))
    for r in range(16): a("v_exp_f32 v%d, v%d" % (16 + r, 16 + r))
    s2.pump(4)
    for r in range(16): a("v_add_f32 v%d, 1.0, v%d" % (16 + r, 16 + r))
    for r in range(16): a("v_rcp_f32 v%d, v%d" % (16 + r, 16 + r))
    a("""
    s_lshl_b32 s60, s65, 2
    s_and_b32 s61, s14, 2
    s_add_u32 s60, s60, s61
    s_lshl_b32 s60, s60, 11
    s_mul_i32 s61, s63, {UG}
    s_add_u32 s60, s60, s61
    s_add_u32 s60, s60, {UPO}
    """.format(UG=UP_G, UPO=hex(UP_OFF)))
    for i in range(2):
        for r in range(0, 8, 2): a("v_pk_mul_f32 %s, %s, %s" % (vr(8 * i + r, 2), vr(8 * i + r, 2), vr(16 + 8 * i + r, 2)))
        for r in range(4): a("v_cvt_pk_bf16_f32 v%d, v%d, v%d" % (32 + 4 * i + r, 8 * i + 2 * r, 8 * i + 2 * r + 1))
        a.vmem("buffer_store_dwordx4 %s, v%d, s[32:35], s60 offen offset:%d sc1" % (vr(32 + 4 * i, 4), G.FA, i * 2048), "ust")
    s2.pump(4); s2.pump(4)
    a.wait(vm="ust")
    state = (s2.nd, s2.nr, list(s2.free), dict(s2.slot), list(a.vm.ops), list(a.lg.ops))
    a("s_mov_b32 s37, s14")
    a("s_branch G_JOIN2")
    a.label("G_JOIN")
    a.vm.clear(); a.lg.clear()
    s2b = Stream(a, "b", 24, 4096, 28, True, "", list(range(4)))
    for p in range(4): s2b.dma()
    while s2b.nr < state[1] or s2b.nd < state[0]: s2b.pump(4)
    assert (s2b.nd, s2b.nr, s2b.slot) == (state[0], state[1], state[3]) and [x[0] for x in s2b.free] == [x[0] for x in state[2]]
    a.drain()
    a("s_cmp_lg_u32 s14, 0")
    a("s_cbranch_scc1 G_JOIN2")
    poll(a, DBG, "0", G.VZ, G.VT)
    a.label("G_JOIN2")
    a.vm.ops = state[4]; a.lg.ops = state[5]
    stamp(a, 9)
    a("s_barrier")
    s2.free += [(s, None) for s in range(4, NS)]
    a("""
    s_mov_b32 s{SF}, s68
    s_lshl_b32 s68, s63, 8
    s_add_u32 s68, s68, {SY}
    s_lshl_b32 s69, s64, 8
    s_add_u32 s69, s69, {REL}
    s_cmp_lg_u32 s37, 0
    s_cbranch_scc1 G_NOARR
    """.format(SF=SF, SY=hex(SYNC_OFF), REL=hex(SYNC_OFF + S4_REL * SL)))
    svl = list(a.lg.ops)
    arrive_issue(a, "s68 offset:%d" % (S4_CNT * SL))
    arrive_finish(a, 27, ["s68 offset:%d" % (S4_REL * SL)], "G_NOARR")
    a.lg.ops = svl
    a.label("G_NOARR")
    a("v_lshlrev_b32 v16, 16, v%d" % G.VB2)
    for q in range(8):
        a("v_lshlrev_b32 v%d, 16, v%d" % (2 * q, G.RES + q))
        a("v_and_b32 v%d, 0xffff0000, v%d" % (2 * q + 1, G.RES + q))
    for r in range(16): a("v_add_f32 v%d, v%d, v16" % (r, r))
    srd(a, 20, 6, str(2048 * 896))
    while s2.pump(AHEAD): pass
    stamp(a, 10)
    a("s_cmp_lg_u32 s14, 0")
    a("s_cbranch_scc1 G_S4_DONE")
    poll(a, WS, "s69", G.VZ, G.VT, sleep=0, keep=True)
    a.label("G_S4_DONE")
    a("s_barrier")
    stamp(a, 11)
    for t in range(NF - 1): s2.fload(t, 40)
    a("""
    s_lshl_b32 s56, s14, 14
    s_add_u32 s56, s56, {B0}
    s_lshl_b32 s57, s66, 16
    s_lshl_b32 s36, s14, 13
    s_add_u32 s57, s57, s36
    s_add_u32 s57, s57, {OFO}
    s_lshl_b32 s36, s14, 14
    s_and_b32 s36, s36, 0x8000
    s_xor_b32 s37, s36, 0x8000
    s_add_u32 s67, s57, s37
    s_add_u32 s57, s57, s36
    s_lshl_b32 s68, s66, 8
    s_add_u32 s68, s68, {REL}
    """.format(B0=112 * 2048, OFO=hex(OF_OFF), REL=hex(SYNC_OFF + S2_REL * SL)))
    free = [(p, G.B + 8 * (p % NB)) for p in range(28 - NB, 28)] + [(t, G.F + 8 * (t % NF)) for t in range(28 - NF, 28)]
    free.sort()
    oa = free[:8]; ob = free[8:16]
    def oa_parts(j):
        def p0():
            if j % 2 == 0 and j > 0: a("s_add_u32 s56, s56, 4096")
            a.vmem("buffer_load_dwordx4 %s, v%d, s[40:43], s56 offen offset:%d sc1" % (vr(oa[j][1], 4), G.FA, (j % 2) * 2048), "oa%d" % j)
        def p1():
            a.vmem("buffer_load_dwordx4 %s, v%d, s[40:43], s56 offen offset:%d sc1" % (vr(oa[j][1] + 4, 4), G.FB, (j % 2) * 2048), "oa%d" % j)
        return [p0, p1]
    def ob_parts(j):
        def p0():
            if j == 4:
                a("s_add_u32 s57, s57, 4096")
                a("s_add_u32 s67, s67, 4096")
            a.vmem("buffer_load_dwordx4 %s, v%d, s[32:35], s57 offen offset:%d sc1" % (vr(ob[j][1], 4), G.L16, (j % 4) * 1024), "ob%d" % j)
        def p1():
            a.vmem("buffer_load_dwordx4 %s, v%d, s[32:35], s67 offen offset:%d sc1" % (vr(ob[j][1] + 4, 4), G.L16, (j % 4) * 1024), "ob%d" % j)
        return [p0, p1]
    tchk = ob[0][0] + 1
    ja = 0; jb = 0
    for t in range(28):
        fill = s2.loop_fill(t, 40)
        while ja < 8 and oa[ja][0] < t: fill += oa_parts(ja); ja += 1
        if t == tchk - 5:
            fill.append(lambda: a.vmem("buffer_load_dword v%d, v%d, s[32:35], s68 offen sc1" % (G.VT, G.VZ), "s2"))
        if t == tchk:
            a.wait(vm="s2")
            a("v_readfirstlane_b32 s62, v%d" % G.VT)
            a("s_cmp_lg_u32 s62, 0")
            a("s_cbranch_scc1 G_S2_OK")
            poll(a, WS, "s68", G.VZ, G.VT, sleep=1, keep=True)
            a.label("G_S2_OK")
            stamp(a, 12)
        while jb < 8 and ob[jb][0] < t: fill += ob_parts(jb); jb += 1
        s2.step(t, False, fill)
    assert ja == 8 and jb == 8 and s2.nr == 28
    for j in range(8):
        a.wait(vm=["oa%d" % j, "ob%d" % j])
        for n in range(4):
            uw, uf = n >> 1, n & 1
            acc = vr(G.ACC + 16 * n, 16)
            a("%s %s, %s, %s, %s" % (MF, acc, vr(oa[j][1] + 4 * uf, 4), vr(ob[j][1] + 4 * uw, 4), acc))
    g_reduce_write(a)
    a("v_lshrrev_b32 v%d, 5, v%d" % (G.VT, G.LN))
    a("v_lshl_add_u32 v%d, v%d, 3, v%d" % (G.VX, G.VT, G.VX))
    g_reduce_add(a)
    for r in range(8): a("v_cvt_pk_bf16_f32 v%d, v%d, v%d" % (32 + r, 2 * r, 2 * r + 1))
    a("s_nop 1")
    for i in range(2):
        a("v_permlane32_swap_b32 v%d, v%d" % (32 + 4 * i, 34 + 4 * i))
        a("v_permlane32_swap_b32 v%d, v%d" % (33 + 4 * i, 35 + 4 * i))
    for i in range(2): a("buffer_store_dwordx4 %s, v%d, s[20:23], 0 offen offset:%d" % (vr(32 + 4 * i, 4), G.VX, 32 * i))
    stamp_flush(a, 13, 60)

HEADER = open("cdna_kernels/%s.s.ref" % NAME).read().split("; Override launch geometry")[0]

def main(path):
    a = Asm()
    a.label(KNAME)
    a("s_cmp_ge_u32 s2, 512")
    a("s_cbranch_scc1 K_END")
    stamp(a, 0)
    a("""
    s_load_dwordx4 s[4:7], s[0:1], 0
    s_load_dwordx4 s[8:11], s[0:1], 16
    s_load_dwordx4 s[28:31], s[0:1], 80
    v_lshrrev_b32 v1, 6, v0
    s_and_b32 s56, s2, 7
    v_readfirstlane_b32 s14, v1
    s_bfe_u32 s57, s2, 0x50003
    s_cmp_ge_u32 s2, 256
    s_cbranch_scc1 K_R1
    s_cmp_lt_u32 s57, 24
    s_cbranch_scc1 ROLE_A
    s_cmp_lt_u32 s57, 28
    s_cbranch_scc1 K_G
    s_sub_u32 s57, s57, 4
    s_branch ROLE_A
    K_R1:
    s_cmp_ge_u32 s57, 28
    s_cbranch_scc1 ROLE_A
    s_cmp_ge_u32 s57, 24
    s_cbranch_scc1 K_END
    K_G:
    s_waitcnt lgkmcnt(0)
    s_branch ROLE_G
    """)
    role_a(a)
    role_g(a)
    a.label("K_END")
    a("s_endpgm")
    a.label("CODE_END")
    out = HEADER + "; @launch grid=(512,1,1) block=(256,1,1) lds=81920\n"
    out += '.amdgcn_target "amdgcn-amd-amdhsa--gfx950"\n.text\n.globl %s\n.p2align 8\n.type %s,@function\n' % (KNAME, KNAME)
    out += a.text()
    out += """.section .rodata,"a"
.p2align 6
.amdhsa_kernel {n}
  .amdhsa_next_free_vgpr 256
  .amdhsa_next_free_sgpr {s}
  .amdhsa_accum_offset 256
  .amdhsa_group_segment_fixed_size 0
  .amdhsa_kernarg_size 96
  .amdhsa_user_sgpr_count 2
  .amdhsa_user_sgpr_kernarg_segment_ptr 1
  .amdhsa_system_sgpr_workgroup_id_x 1
  .amdhsa_float_denorm_mode_32 3
.end_amdhsa_kernel
""".format(n=KNAME, s=100 if STAMP else 72)
    open(path, "w").write(out)

if __name__ == "__main__":
    main(sys.argv[1])
```

```python
import sys, struct, os

NAME = "parallel_sum__linear_kernel_hedgehog__mixer_token_mlp__prompt"
KNAME = NAME + "_kernel"
E = lambda k, d: int(os.environ.get(k, str(d)))

XN_OFF   = 0x000000
HT_OFF   = 0x200000
HT_G     = 128 * 2048
WP_OFF   = 0x400000
WP_Q     = 28 * 1792
WP_PHI   = 28 * 2688
WP_H     = WP_PHI + 2048 + 512
UP_OFF   = 0x600000
UP_G     = 144 * 2048
KVF_OFF  = 0x800000
SYNC_OFF = 0x840000
OF_OFF   = 0x900000
KVP_OFF  = 0xB00000
WS_USED  = 0x1000000
STAMP_OFF = 0xF00000
BIG      = 0x7ff00000
SL = 256
SX_CNT, SX_REL = 0, 16
SW_CNT, SW_REL = 32, 48
S1_CNT, S1_REL = 64, 80
S3_CNT, S3_REL = 96, 112
S2_CNT, S2_REL = 128, 160
S4_CNT, S4_REL = 192, 200
SA_REP = 208
NSYNC = 256
SPIN_MAX = 0x40000

STAMP = E("STAMP", 0); PRIO_A = E("PRIO_A", 2); PRIO_G = E("PRIO_G", 0); AHEAD = E("AHEAD", 4); W2START = E("W2START", 27)
NB, NF, NS = E("NB", 15), E("NF", 6), 10
PFPOL = os.environ.get("PFPOL", "")

def f32(x): return "0x%08x" % struct.unpack("<I", struct.pack("<f", x))[0]

class Q:
    def __init__(self, mx): self.ops = []; self.mx = mx
    def issue(self, tag): self.ops.append(tag)
    def need(self, tags):
        if not isinstance(tags, (list, tuple, set)): tags = [tags]
        idx = -1
        for i, t in enumerate(self.ops):
            if t in tags: idx = i
        if idx < 0: return None
        n = len(self.ops) - 1 - idx
        if n > self.mx: return self.mx
        self.ops = self.ops[idx + 1:]
        return n
    def clear(self): self.ops = []

class Asm:
    def __init__(self):
        self.lines = []; self.vm = Q(63); self.lg = Q(15); self.uid = 0
    def __call__(self, s):
        for l in s.strip().split("\n"):
            l = l.strip()
            if l.endswith(":"): self.lines.append(l)
            elif l: self.lines.append("    " + l)
    def label(self, l): self.lines.append(l + ":")
    def vmem(self, s, tag=None): self(s); self.vm.issue(tag)
    def ds(self, s, tag=None): self(s); self.lg.issue(tag)
    def wait(self, vm=None, lg=None):
        p = []
        for q, t, nm in ((self.vm, vm, "vmcnt"), (self.lg, lg, "lgkmcnt")):
            if t is None: continue
            n = q.need(t)
            if n is None: continue
            if len(q.ops) > n: q.ops = q.ops[len(q.ops) - n:]
            p.append("%s(%d)" % (nm, n))
        if p: self("s_waitcnt " + " ".join(p))
    def drain(self, vm=True, lg=True):
        p = []
        if vm: p.append("vmcnt(0)"); self.vm.clear()
        if lg: p.append("lgkmcnt(0)"); self.lg.clear()
        self("s_waitcnt " + " ".join(p))
    def newlabel(self, p): self.uid += 1; return "%s_%d" % (p, self.uid)
    def text(self): return "\n".join(self.lines) + "\n"

def vr(a, n): return "v[%d:%d]" % (a, a + n - 1)

def srd(a, d, base, size, add=None):
    if add is None:
        a("s_mov_b32 s%d, s%d" % (d, base))
        a("s_and_b32 s%d, s%d, 0xffff" % (d + 1, base + 1))
    else:
        a("s_add_u32 s%d, s%d, %s" % (d, base, add))
        a("s_addc_u32 s%d, s%d, 0" % (d + 1, base + 1))
        a("s_and_b32 s%d, s%d, 0xffff" % (d + 1, d + 1))
    a("s_mov_b32 s%d, %s" % (d + 2, size))
    a("s_mov_b32 s%d, 0x20000" % (d + 3))

WS = 32
DBG = 44

def stamp(a, i):
    if STAMP:
        a("%s s[%d:%d]" % ("s_memtime" if STAMP == 2 else "s_memrealtime", 70 + 2 * i, 71 + 2 * i))
        a.drain(vm=False)
DIAG = os.environ.get("DIAG", "")
def stamp_flush(a, n, tmp, role=""):
    if not STAMP: return
    a.drain()
    stamp(a, n)
    if DIAG:
        a("s_mov_b64 exec, 1")
        a("v_mov_b32 v%d, 0" % tmp)
        a("s_not_b32 s98, s70")
        a("v_mov_b32 v%d, s98" % (tmp + 1))
        a("buffer_atomic_umax v%d, v%d, s[44:47], 0 offen offset:128 sc1" % (tmp + 1, tmp))
        if DIAG[0] == role:
            a("v_mov_b32 v%d, s%d" % (tmp + 2, 70 + 2 * int(DIAG[1:])))
            a("buffer_atomic_umax v%d, v%d, s[44:47], 0 offen offset:132 sc1" % (tmp + 2, tmp))
        return
    a("s_mov_b64 exec, 1")
    a("s_lshl_b32 s98, s2, 8")
    a("s_lshl_b32 s99, s14, 6")
    a("s_add_u32 s98, s98, s99")
    a("s_add_u32 s98, s98, %s" % hex(STAMP_OFF))
    a("v_mov_b32 v%d, 0" % tmp)
    for i in range(n + 1):
        a("v_mov_b32 v%d, s%d" % (tmp + 1, 70 + 2 * i))
        a("buffer_store_dword v%d, v%d, s[32:35], s98 offen offset:%d" % (tmp + 1, tmp, 4 * i))
        a("s_waitcnt vmcnt(0)")

def poll(a, srdn, soff, vz, vt, sleep=1, target=1, keep=False):
    sv = list(a.vm.ops)
    l = a.newlabel("POLL"); d = a.newlabel("POLLD")
    a("s_mov_b32 s60, 0")
    a.label(l)
    a("buffer_load_dword v%d, v%d, s[%d:%d], %s offen sc1" % (vt, vz, srdn, srdn + 3, soff))
    a("s_add_u32 s60, s60, 1")
    a.drain(lg=False)
    a("v_readfirstlane_b32 s61, v%d" % vt)
    a("s_cmp_ge_u32 s61, %d" % target)
    a("s_cbranch_scc1 %s" % d)
    if sleep: a("s_sleep %d" % sleep)
    a("s_cmp_lt_u32 s60, %s" % hex(SPIN_MAX))
    a("s_cbranch_scc1 %s" % l)
    a.label(d)
    if keep: a.vm.ops = sv

def arrive_issue(a, soff):
    a("s_mov_b32 s62, 1")
    a("s_atomic_add s62, s[30:31], %s glc" % soff)
def arrive_finish(a, last, srels, skip):
    a.drain(vm=False)
    a("s_cmp_lg_u32 s62, %d" % last)
    a("s_cbranch_scc1 %s" % skip)
    a("s_mov_b32 s62, 1")
    for r in srels: a("s_atomic_add s62, s[30:31], %s" % r)

def round_bf16(a, d, s):
    a("v_cvt_pk_bf16_f32 v%d, v%d, v%d" % (d, s, s))
    a("v_lshlrev_b32 v%d, 16, v%d" % (d, d))

def half_reduce(a, regs, tmps):
    steps = ["quad_perm:[1,0,3,2] row_mask:0xf bank_mask:0xf", "quad_perm:[2,3,0,1] row_mask:0xf bank_mask:0xf",
             "row_half_mirror row_mask:0xf bank_mask:0xf", "row_mirror row_mask:0xf bank_mask:0xf"]
    for st in steps:
        a("s_nop %d" % (1 if len(regs) == 1 else 0))
        for r in regs: a("v_add_f32_dpp v%d, v%d, v%d %s" % (r, r, r, st))
    for r, t in zip(regs, tmps): a("v_mov_b32 v%d, v%d" % (t, r))
    a("s_nop 1")
    for r, t in zip(regs, tmps): a("v_permlane16_swap_b32 v%d, v%d" % (r, t))
    a("s_nop 0")
    for r, t in zip(regs, tmps): a("v_add_f32 v%d, v%d, v%d" % (r, r, t))

MF = "v_mfma_f32_32x32x16_bf16"

def role_a(a):
    LN, VA, VB, VC, VD, VZ, VT, VH = 250, 251, 252, 253, 254, 248, 249, 255
    a.label("ROLE_A")
    a("""
    s_setprio {PRIO}
    s_lshr_b32 s38, s56, 1
    s_lshl_b32 s38, s38, 2
    s_and_b32 s39, s57, 3
    s_add_u32 s38, s38, s39
    s_and_b32 s39, s56, 1
    s_lshl_b32 s39, s39, 3
    s_lshr_b32 s57, s57, 2
    s_add_u32 s39, s39, s57
    s_lshl_b32 s15, s38, 4
    s_add_u32 s15, s15, s39
    v_and_b32 v{LN}, 63, v0
    v_and_b32 v{VC}, 31, v0
    v_bfe_u32 v{VH}, v0, 5, 1
    v_lshrrev_b32 v2, 5, v0
    s_lshl_b32 s20, s15, 3
    v_add_u32 v3, s20, v2
    v_mul_u32_u24 v3, 896, v3
    v_lshl_add_u32 v3, v{VC}, 5, v3
    v_mov_b64 v[8:9], 0
    v_mov_b64 v[10:11], 0
    v_mov_b64 v[12:13], 0
    v_mov_b64 v[14:15], 0
    s_mov_b32 s52, 0x0fffffff
    s_mov_b32 s53, 0x0fffffff
    v_mov_b32 v{VZ}, 0
    v_lshlrev_b32 v{VA}, 4, v{LN}
    v_mul_u32_u24 v{VB}, 448, v{VH}
    v_lshl_add_u32 v{VB}, v{VC}, 4, v{VB}
    v_mov_b32 v54, {BIG}
    v_mul_u32_u24 v50, 21504, v{VH}
    v_lshl_add_u32 v50, v{VC}, 1, v50
    v_cndmask_b32 v50, v54, v50, s[52:53]
    v_cndmask_b32 v52, v54, v{VB}, s[52:53]
    s_mul_i32 s25, s39, {WPH}
    s_add_u32 s25, s25, {WPO}
    """.format(PRIO=PRIO_A, LN=LN, VC=VC, VH=VH, VZ=VZ, VA=VA, VB=VB, BIG=hex(BIG), WPH=WP_H, WPO=hex(WP_OFF)))
    def wp_unit(sv, ssrc, sdst):
        a("""
        s_mul_i32 s20, {v}, 586
        s_lshr_b32 s20, s20, 14
        s_mul_i32 s21, s20, 28
        s_sub_u32 s21, {v}, s21
        s_mul_i32 {src}, s21, 43008
        s_mul_i32 s22, s20, 896
        s_add_u32 {src}, {src}, s22
        s_mul_i32 s23, s39, 56
        s_add_u32 {src}, {src}, s23
        s_mul_i32 s23, s21, 1792
        s_add_u32 s23, s23, s22
        s_sub_u32 s23, s23, 896
        s_mul_i32 {dst}, s21, 896
        s_add_u32 {dst}, {dst}, {WPQ}
        s_cmp_eq_u32 s20, 0
        s_cselect_b32 {dst}, {dst}, s23
        s_add_u32 {dst}, {dst}, s25
        """.format(v=sv, src=ssrc, dst=sdst, WPQ=WP_Q))
    a("s_lshl_b32 s24, s14, 4")
    a("s_add_u32 s24, s24, s38")
    wp_unit("s24", "s26", "s27")
    a("s_waitcnt lgkmcnt(0)")
    a("s_mov_b64 exec, s[52:53]")
    a.vmem("global_load_dwordx4 v[8:11], v3, s[4:5] nt", "x")
    a.vmem("global_load_dwordx4 v[12:15], v3, s[4:5] offset:16 nt", "x")
    a("s_mov_b64 exec, -1")
    srd(a, 16, 6, str(448 * 2688))
    J = 56
    for j in range(8):
        if j % 2 == 0 and j: a("s_add_u32 s26, s26, 5376")
        a.vmem("buffer_load_ushort v%d, v50, s[16:19], s26 offen offset:%d nt" % (J + j, (j % 2) * 2688), "job")
    srd(a, WS, 30, hex(WS_USED))
    srd(a, DBG, 28, "256")
    a("s_cmp_ge_u32 s14, 2")
    a("s_cbranch_scc1 A_JOB_O")
    a("s_add_u32 s24, s24, 64")
    wp_unit("s24", "s26", "s29")
    a("""
    s_cmp_lt_u32 s24, 84
    s_cselect_b32 s29, s29, 0x08000000
    s_cselect_b32 s18, s18, 0
    s_movk_i32 s24, 2688
    v_add_u32 v51, 10752, v50
    v_mov_b32 v53, v52
    s_branch A_JOB_GO
    A_JOB_O:
    s_lshl_b32 s20, s38, 1
    s_add_u32 s20, s20, s14
    s_sub_u32 s20, s20, 2
    v_mov_b32 v53, v{VA}
    s_cmp_ge_u32 s20, 28
    s_cbranch_scc1 A_JOB_PHI
    """.format(VA=VA))
    srd(a, 16, 10, str(448 * 896))
    a("""
    s_movk_i32 s24, 896
    s_cmp_ge_u32 s20, 14
    s_cselect_b32 s21, 1, 0
    s_mul_i32 s22, s21, 14
    s_sub_u32 s20, s20, s22
    s_mul_i32 s26, s39, 28
    s_lshl_b32 s22, s21, 4
    s_add_u32 s26, s26, s22
    s_mul_i32 s26, s26, 896
    s_lshl_b32 s22, s20, 6
    s_add_u32 s26, s26, s22
    s_lshr_b32 s22, s20, 1
    s_mul_i32 s29, s22, {UPG}
    s_and_b32 s22, s20, 1
    s_lshl_b32 s22, s22, 10
    s_add_u32 s29, s29, s22
    s_lshl_b32 s22, s39, 1
    s_add_u32 s22, s22, s21
    s_lshl_b32 s22, s22, 11
    s_add_u32 s29, s29, s22
    s_add_u32 s29, s29, {BASE}
    v_mul_u32_u24 v50, 3584, v{VH}
    v_lshl_add_u32 v50, v{VC}, 1, v50
    s_mul_i32 s21, s21, 0x7f0000
    v_mul_lo_u32 v51, v{VH}, s21
    v_add_u32 v51, v51, v50
    v_add_u32 v51, 7168, v51
    s_branch A_JOB_GO
    A_JOB_PHI:
    """.format(UPG=UP_G, BASE=hex(UP_OFF + 112 * 2048), VH=VH, VC=VC))
    srd(a, 16, 8, "25088")
    a("""
    s_movk_i32 s24, 56
    s_sub_u32 s21, s20, 28
    s_mul_i32 s26, s39, 1568
    s_mul_i32 s22, s21, 896
    s_add_u32 s26, s26, s22
    s_lshl_b32 s29, s21, 10
    s_add_u32 s29, s29, s25
    s_add_u32 s29, s29, {PHI}
    s_cmp_lt_u32 s21, 2
    s_cselect_b32 s29, s29, 0x08000000
    s_cselect_b32 s18, s18, 0
    v_mul_u32_u24 v50, 224, v{VH}
    v_lshl_add_u32 v50, v{VC}, 1, v50
    v_cndmask_b32 v50, v54, v50, s[52:53]
    s_and_b32 s21, s21, 1
    s_mul_i32 s21, s21, 0x7f0000
    v_mul_lo_u32 v51, v{VH}, s21
    v_add_u32 v51, v51, v50
    v_add_u32 v51, 448, v51
    A_JOB_GO:
    """.format(PHI=WP_PHI, VH=VH, VC=VC))
    for j in range(4):
        a.vmem("buffer_load_ushort v%d, v50, s[16:19], s26 offen nt" % (J + 8 + j), "job")
        a.vmem("buffer_load_ushort v%d, v51, s[16:19], s26 offen nt" % (J + 12 + j), "job")
        if j < 3: a("s_add_u32 s26, s26, s24")
    stamp(a, 1)
    a.wait(vm="x")
    stamp(a, 2)
    P, X, T = 8, 16, 32
    def unpack(dst, src):
        for i in range(8):
            a("v_lshlrev_b32 v%d, 16, v%d" % (dst + 2 * i, src + i))
            a("v_and_b32 v%d, 0xffff0000, v%d" % (dst + 2 * i + 1, src + i))
    def pack(dst, src):
        for i in range(8): a("v_cvt_pk_bf16_f32 v%d, v%d, v%d" % (dst + i, src + 2 * i, src + 2 * i + 1))
    def pksum(dst, src):
        a("v_pk_add_f32 %s, %s, %s" % (vr(dst, 2), vr(src, 2), vr(src + 2, 2)))
        a("v_pk_add_f32 %s, %s, %s" % (vr(dst + 2, 2), vr(src + 4, 2), vr(src + 6, 2)))
        for i in (8, 12):
            a("v_pk_add_f32 %s, %s, %s" % (vr(dst, 2), vr(dst, 2), vr(src + i, 2)))
            a("v_pk_add_f32 %s, %s, %s" % (vr(dst + 2, 2), vr(dst + 2, 2), vr(src + i + 2, 2)))
        a("v_pk_add_f32 %s, %s, %s" % (vr(dst, 2), vr(dst, 2), vr(dst + 2, 2)))
        a("v_add_f32 v%d, v%d, v%d" % (dst, dst, dst + 1))
    def pksq(dst, src):
        a("v_pk_mul_f32 %s, %s, %s" % (vr(dst, 2), vr(src, 2), vr(src, 2)))
        a("v_pk_mul_f32 %s, %s, %s" % (vr(dst + 2, 2), vr(src + 2, 2), vr(src + 2, 2)))
        for i in (4, 8, 12):
            a("v_pk_fma_f32 %s, %s, %s, %s" % (vr(dst, 2), vr(src + i, 2), vr(src + i, 2), vr(dst, 2)))
            a("v_pk_fma_f32 %s, %s, %s, %s" % (vr(dst + 2, 2), vr(src + i + 2, 2), vr(src + i + 2, 2), vr(dst + 2, 2)))
        a("v_pk_add_f32 %s, %s, %s" % (vr(dst, 2), vr(dst, 2), vr(dst + 2, 2)))
        a("v_add_f32 v%d, v%d, v%d" % (dst, dst, dst + 1))
    def pksub(dst, src, m):
        for i in range(0, 16, 2):
            a("v_pk_add_f32 %s, %s, %s op_sel_hi:[1,0] neg_lo:[0,1] neg_hi:[0,1]" % (vr(dst + i, 2), vr(src + i, 2), vr(m, 2)))
    def pkmul(dst, src, m):
        for i in range(0, 16, 2): a("v_pk_mul_f32 %s, %s, %s op_sel_hi:[1,0]" % (vr(dst + i, 2), vr(src + i, 2), vr(m, 2)))
    def scale_from_var(r):
        round_bf16(a, r, r)
        a("v_add_f32 v%d, %s, v%d" % (r, f32(1e-5), r))
        round_bf16(a, r, r)
        a("v_sqrt_f32 v%d, v%d" % (r, r))
        a("s_nop 0")
        round_bf16(a, r, r)
        a("v_rcp_f32 v%d, v%d" % (r, r))
    inv = f32(1.0 / 448.0)
    S, S2, M, RS_ = 72, 76, 80, 82
    unpack(X, P)
    pksum(S, X)
    half_reduce(a, [S], [S + 1])
    a("v_mul_f32 v%d, %s, v%d" % (S, inv, S))
    round_bf16(a, M, S)
    pksub(T, X, M)
    pksq(S2, T)
    a("v_sub_f32 v%d, v%d, v%d" % (S, S, M))
    a("v_cndmask_b32 v%d, 0, v%d, s[52:53]" % (S2, S2))
    pack(P, T)
    half_reduce(a, [S2], [S2 + 1])
    a("v_mul_f32 v%d, %s, v%d" % (RS_, inv, S2))
    a("v_fma_f32 v%d, -v%d, v%d, v%d" % (RS_, S, S, RS_))
    a("v_max_f32 v%d, 0, v%d" % (RS_, RS_))
    scale_from_var(RS_)
    unpack(T, P)
    pkmul(T, T, RS_)
    pack(P, T)
    HB, HP = 7168, 912
    a("v_mul_u32_u24 v3, 896, v2")
    a("v_lshl_add_u32 v3, v%d, 5, v3" % VC)
    a("s_mov_b64 exec, s[52:53]")
    a.ds("ds_write_b128 v3, v[8:11]")
    a.ds("ds_write_b128 v3, v[12:15] offset:16")
    a("s_mov_b64 exec, -1")
    a.wait(vm="job")
    for i in range(8): a("v_lshl_or_b32 v%d, v%d, 16, v%d" % (J + i, J + 2 * i + 1, J + 2 * i))
    a.vmem("buffer_store_dwordx4 %s, v52, s[32:35], s27 offen sc1" % vr(J, 4))
    a.vmem("buffer_store_dwordx4 %s, v53, s[32:35], s29 offen sc1" % vr(J + 4, 4))
    a.vmem("buffer_load_dword v%d, v%d, s[44:47], 0 offen sc1" % (VT, VZ), "ready")
    unpack(X, P)
    pksum(S, X)
    pksq(S2, X)
    a("v_cndmask_b32 v%d, 0, v%d, s[52:53]" % (S, S))
    a("v_cndmask_b32 v%d, 0, v%d, s[52:53]" % (S2, S2))
    a("v_lshl_add_u32 v3, v2, 4, v3")
    half_reduce(a, [S, S2], [S + 1, S2 + 1])
    a("v_mul_f32 v%d, %s, v%d" % (S, inv, S))
    a("v_mul_f32 v%d, %s, v%d" % (RS_, inv, S2))
    a("v_fma_f32 v%d, -v%d, v%d, v%d" % (RS_, S, S, RS_))
    a("v_max_f32 v%d, 0, v%d" % (RS_, RS_))
    round_bf16(a, M, S)
    scale_from_var(RS_)
    pksub(T, X, M)
    pack(X, T)
    unpack(T, X)
    pkmul(T, T, RS_)
    pack(X, T)
    a("s_mov_b64 exec, s[52:53]")
    a.ds("ds_write_b128 v3, v[16:19] offset:%d" % HB)
    a.ds("ds_write_b128 v3, v[20:23] offset:%d" % (HB + 16))
    a("s_mov_b64 exec, -1")
    a("""
    v_bfe_u32 v24, v{LN}, 2, 2
    v_mul_u32_u24 v24, {HP}, v24
    v_lshrrev_b32 v25, 4, v{LN}
    v_lshl_add_u32 v24, v25, 5, v24
    v_and_b32 v25, 3, v{LN}
    v_lshl_add_u32 v24, v25, 3, v24
    s_lshl_b32 s20, s14, 7
    v_add_u32 v24, s20, v24
    v_lshlrev_b32 v44, 10, v{VH}
    v_lshl_add_u32 v44, v{VC}, 4, v44
    v_and_b32 v25, 7, v{LN}
    v_lshrrev_b32 v26, 3, v{LN}
    s_lshl_b32 s20, s14, 3
    v_add_u32 v26, s20, v26
    v_mul_u32_u24 v27, 896, v25
    v_lshl_add_u32 v27, v26, 4, v27
    v_lshlrev_b32 v25, 4, v25
    v_lshl_add_u32 v25, v26, 9, v25
    s_lshr_b32 s20, s15, 2
    s_mul_i32 s20, s20, 28672
    s_and_b32 s21, s15, 3
    s_lshl_b32 s21, s21, 7
    s_add_u32 s20, s20, s21
    s_lshl_b32 s21, s14, 18
    s_lshr_b32 s22, s15, 1
    s_lshl_b32 s22, s22, 11
    s_add_u32 s21, s21, s22
    s_and_b32 s22, s15, 1
    s_lshl_b32 s22, s22, 9
    s_add_u32 s21, s21, s22
    s_add_u32 s21, s21, {HTO}
    s_cmp_eq_u32 s14, 3
    s_cselect_b32 s23, 0x08000000, 0
    s_add_u32 s22, s21, {HG4}
    s_or_b32 s22, s22, s23
    s_add_u32 s24, s20, 16384
    s_or_b32 s24, s24, s23
    s_lshl_b32 s40, s39, 8
    s_add_u32 s40, s40, {SY}
    s_lshl_b32 s41, s38, 8
    s_add_u32 s41, s41, {SY}
    """.format(LN=LN, VH=VH, VC=VC, HP=HP, HG4=4 * HT_G, HTO=hex(HT_OFF), SY=hex(SYNC_OFF)))
    assert XN_OFF == 0 and HT_G == 1 << 18
    stamp(a, 3)
    a.drain()
    a("s_barrier")
    a.ds("ds_read_b64_tr_b16 v[28:29], v24 offset:%d" % HB, "h0")
    a.ds("ds_read_b64_tr_b16 v[30:31], v24 offset:%d" % (HB + 4 * HP), "h0")
    a.ds("ds_read_b128 v[36:39], v27", "x0")
    a.ds("ds_read_b64_tr_b16 v[32:33], v24 offset:%d" % (HB + 512), "h1")
    a.ds("ds_read_b64_tr_b16 v[34:35], v24 offset:%d" % (HB + 512 + 4 * HP), "h1")
    a.ds("ds_read_b128 v[40:43], v27 offset:512", "x1")
    a.wait(lg="h0"); a.vmem("buffer_store_dwordx4 v[28:31], v44, s[32:35], s21 offen sc1")
    a.wait(lg="x0"); a.vmem("buffer_store_dwordx4 v[36:39], v25, s[32:35], s20 offen sc1")
    a.wait(lg="h1"); a.vmem("buffer_store_dwordx4 v[32:35], v44, s[32:35], s22 offen sc1")
    a.wait(lg="x1"); a.vmem("buffer_store_dwordx4 v[40:43], v25, s[32:35], s24 offen sc1")
    a("v_readfirstlane_b32 s61, v%d" % VT)
    a("s_cmp_lg_u32 s61, 0")
    a("s_cbranch_scc1 A_RDY")
    poll(a, DBG, "0", VZ, VT, keep=True)
    a.label("A_RDY")
    a("s_cmp_lg_u32 s14, 3")
    a("s_cbranch_scc1 A_NOW")
    arrive_issue(a, "s40 offset:%d" % (SW_CNT * SL))
    arrive_finish(a, 15, ["s40 offset:%d" % (SW_REL * SL)], "A_NOW")
    a.label("A_NOW")
    a("""
    s_lshl_b32 s36, s38, 2
    s_add_u32 s36, s36, s14
    s_mul_i32 s24, s36, 28672
    s_lshl_b32 s26, s14, 10
    s_add_u32 s27, s25, {PHI}
    s_add_u32 s25, s25, s26
    v_add_u32 v{VD}, 0x8000, v{VB}
    """.format(PHI=WP_PHI, VB=VB, VD=VD))
    a.drain()
    stamp(a, 4)
    a("s_barrier")
    a("s_cmp_lg_u32 s14, 0")
    a("s_cbranch_scc1 A_NOX")
    arrive_issue(a, "s41 offset:%d" % (SX_CNT * SL))
    a("s_mov_b32 s20, %s" % hex(SYNC_OFF + SA_REP * SL))
    arrive_finish(a, 15, ["s41 offset:%d" % (SX_REL * SL)] + ["s20 offset:%d" % (i * SL) for i in range(8)], "A_NOX")
    a.label("A_NOX")
    AQ, AK, AV = 0, 16, 32
    XF, WF, PH = 64, 176, 208
    a("s_add_u32 s20, s40, %d" % (SW_REL * SL))
    poll(a, WS, "s20", VZ, VT, sleep=0)
    stamp(a, 5)
    for r in range(19):
        a("s_add_u32 m0, s26, %d" % (r * 4096))
        a("s_add_u32 s28, s25, %d" % (r * 4096))
        a.vmem("buffer_load_dwordx4 v%d, s[32:35], s28 offen sc1 lds" % VA, "w")
    a("s_add_u32 s20, s41, %d" % (SX_REL * SL))
    poll(a, WS, "s20", VZ, VT, sleep=0)
    stamp(a, 6)
    def xload(k):
        if k % 4 == 0 and k > 0: a("s_add_u32 s24, s24, 4096")
        a.vmem("buffer_load_dwordx4 %s, v%d, s[32:35], s24 offen offset:%d sc1" % (vr(XF + 4 * k, 4), VA, (k % 4) * 1024), "x%d" % k)
    XPRE = 8
    for k in range(XPRE): xload(k)
    a("s_barrier")
    def lread(dst, off, tag, base=None):
        if off < 65536: a.ds("ds_read_b128 %s, v%d offset:%d" % (vr(dst, 4), VB, off), tag)
        else: a.ds("ds_read_b128 %s, v%d offset:%d" % (vr(dst, 4), VD, off - 32768), tag)
    def wread(k):
        b = WF + 8 * (k % 3)
        lread(b, k * 1792, "w%d" % k); lread(b + 4, k * 1792 + 896, "w%d" % k)
    a("v_add_u32 v2, 0x8000, v%d" % VA)
    wread(0); wread(1)
    a.ds("ds_read_b128 %s, v2 offset:%d" % (vr(PH, 4), WP_PHI - 32768), "ph")
    a.ds("ds_read_b128 %s, v2 offset:%d" % (vr(PH + 4, 4), WP_PHI + 1024 - 32768), "ph")
    nx = XPRE
    for k in range(28):
        if k + 2 < 28: wread(k + 2)
        a.wait(vm="x%d" % k, lg="w%d" % k)
        b = WF + 8 * (k % 3); x = vr(XF + 4 * k, 4)
        a("%s %s, %s, %s, %s" % (MF, vr(AK, 16), vr(b, 4), x, "0" if k == 0 else vr(AK, 16)))
        if nx < 28: xload(nx); nx += 1
        a("%s %s, %s, %s, %s" % (MF, vr(AV, 16), x, vr(b + 4, 4), "0" if k == 0 else vr(AV, 16)))
    stamp(a, 7)
    PKK, PKV = 48, 56
    PP = 216; EP, EM = 16, 32; OUT = 176; S0 = 192; TA = S0 + 12
    a("""
    s_mov_b32 s56, 0
    s_mov_b32 s57, -1
    s_mov_b32 s37, {L2E}
    v_mul_u32_u24 v{t}, 136, v{VC}
    v_lshl_add_u32 v{t}, v{VH}, 3, v{t}
    s_mul_i32 s28, s14, 4352
    v_add_u32 v{t}, s28, v{t}
    s_lshl_b32 s28, s14, 11
    v_add_u32 v{u}, s28, v{VA}
    v_cmp_eq_u32 vcc, 28, v{VC}
    v_mov_b32 v{S0}, 0x3f803f80
    """.format(L2E=f32(1.4426950408889634), t=TA, u=TA + 1, VC=VC, VH=VH, VA=VA, S0=S0))
    for r in range(8): a("v_cvt_pk_bf16_f32 v%d, v%d, v%d" % (PKK + r, AK + 2 * r, AK + 2 * r + 1))
    a("v_cndmask_b32 v%d, 0, v%d, vcc" % (S0, S0))
    a("%s %s, %s, %s, 0" % (MF, vr(PP, 16), vr(PH, 4), vr(PKK, 4)))
    a("%s %s, %s, %s, %s" % (MF, vr(PP, 16), vr(PH + 4, 4), vr(PKK + 4, 4), vr(PP, 16)))
    for r in range(8): a("v_cvt_pk_bf16_f32 v%d, v%d, v%d" % (PKV + r, AV + 2 * r, AV + 2 * r + 1))
    for r in range(8): a("v_cndmask_b32 v%d, v%d, v%d, s[52:53]" % (PKV + r, S0, PKV + r))
    a("s_barrier")
    a.ds("ds_write_b128 v%d, %s offset:17408" % (TA + 1, vr(PKV, 4)))
    a.ds("ds_write_b128 v%d, %s offset:%d" % (TA + 1, vr(PKV + 4, 4), 17408 + 1024))

    def softmax2(P, sink=None):
        mx, mn, t0, t1, t2, t3 = S0, S0 + 1, S0 + 2, S0 + 3, S0 + 4, S0 + 5
        for op, m, t in (("max", mx, t0), ("min", mn, t1)):
            a("v_%s3_f32 v%d, v%d, v%d, v%d" % (op, t, P + 12, P + 13, P + 14))
            a("v_%s3_f32 v%d, v%d, v%d, v%d" % (op, m, P, P + 1, P + 2))
            a("v_%s_f32 v%d, v%d, v%d" % (op, t, t, P + 15))
            for i in range(3, 11, 2): a("v_%s3_f32 v%d, v%d, v%d, v%d" % (op, m, m, P + i, P + i + 1))
            a("v_cndmask_b32 v%d, v%d, v%d, s[56:57]" % (t, t, P))
            a("v_%s3_f32 v%d, v%d, v%d, v%d" % (op, m, m, P + 11, t))
        a("v_mov_b32 v%d, v%d" % (t0, mx))
        a("v_mov_b32 v%d, v%d" % (t1, mn))
        a("v_mov_b32 v%d, 0x7f800000" % t2)
        a("v_mov_b32 v%d, 0xff800000" % t3)
        a("v_permlane32_swap_b32 v%d, v%d" % (mx, t0))
        a("v_permlane32_swap_b32 v%d, v%d" % (mn, t1))
        a("s_nop 0")
        a("v_max_f32 v%d, v%d, v%d" % (mx, mx, t0))
        a("v_min_f32 v%d, v%d, v%d" % (mn, mn, t1))
        a("v_mul_f32 v%d, s37, v%d" % (mx, mx))
        a("v_mul_f32 v%d, s37, v%d" % (mn, mn))
        a("v_cndmask_b32 v%d, v%d, v%d, s[56:57]" % (t2, mx, t2))
        a("v_cndmask_b32 v%d, v%d, v%d, s[56:57]" % (t3, mn, t3))
        for r in range(16):
            a("v_fma_f32 v%d, v%d, s37, -v%d" % (EP + r, P + r, mx if r < 12 else t2))
            a("v_fma_f32 v%d, -v%d, s37, v%d" % (EM + r, P + r, mn if r < 12 else t3))
        for r in range(16):
            a("v_exp_f32 v%d, v%d" % (EP + r, EP + r))
            a("v_exp_f32 v%d, v%d" % (EM + r, EM + r))
            if r == 2:
                a("v_add_f32 v%d, v%d, v%d" % (mx, EP, EP + 1))
                a("v_add_f32 v%d, v%d, v%d" % (mn, EM, EM + 1))
            if r > 2:
                a("v_add_f32 v%d, v%d, v%d" % (mx, mx, EP + r - 1))
                a("v_add_f32 v%d, v%d, v%d" % (mn, mn, EM + r - 1))
        a("v_add_f32 v%d, v%d, v%d" % (mx, mx, EP + 15))
        a("v_add_f32 v%d, v%d, v%d" % (mn, mn, EM + 15))
        a("v_mov_b32 v%d, v%d" % (t0, mx))
        a("v_mov_b32 v%d, v%d" % (t1, mn))
        a("s_nop 1")
        a("v_permlane32_swap_b32 v%d, v%d" % (mx, t0))
        a("v_permlane32_swap_b32 v%d, v%d" % (mn, t1))
        a("s_nop 0")
        a("v_add_f32 v%d, v%d, v%d" % (mx, mx, t0))
        a("v_add_f32 v%d, v%d, v%d" % (mn, mn, t1))
        a("v_rcp_f32 v%d, v%d" % (mx, mx))
        a("v_rcp_f32 v%d, v%d" % (mn, mn))
        for e, (E_, m) in enumerate(((EP, mx), (EM, mn))):
            for q in range(4):
                for r in range(4): a("v_mul_f32 v%d, v%d, v%d" % (E_ + 4 * q + r, E_ + 4 * q + r, m))
                for r in range(2): a("v_cvt_pk_bf16_f32 v%d, v%d, v%d" % (OUT + 8 * e + 2 * q + r, E_ + 4 * q + 2 * r, E_ + 4 * q + 2 * r + 1))
                if sink: sink(e, q)

    softmax2(PP, lambda e, q: a.ds("ds_write_b64 v%d, %s offset:%d" % (TA, vr(OUT + 8 * e + 2 * q, 2), e * 64 + q * 16)))
    a("""
    v_lshlrev_b32 v{t}, 2, v{VH}
    v_bfe_u32 v{u}, v{LN}, 2, 2
    v_add_u32 v{t}, v{t}, v{u}
    v_mul_u32_u24 v{t}, 136, v{t}
    v_bfe_u32 v{u}, v{LN}, 4, 1
    v_lshl_add_u32 v{t}, v{u}, 5, v{t}
    v_and_b32 v{u}, 3, v{LN}
    v_lshl_add_u32 v{t}, v{u}, 3, v{t}
    s_lshl_b32 s28, s14, 6
    v_add_u32 v{t}, s28, v{t}
    s_lshl_b32 s42, s39, 17
    s_add_u32 s42, s42, {KVP}
    s_lshl_b32 s28, s38, 13
    s_lshl_b32 s29, s14, 12
    s_add_u32 s28, s28, s29
    s_add_u32 s28, s28, s42
    """.format(t=TA + 2, u=TA + 3, LN=LN, VH=VH, KVP=hex(KVP_OFF)))
    a.drain(vm=False)
    a("s_barrier")
    stamp(a, 8)
    a("s_cmp_ge_u32 s14, 2")
    a("s_cbranch_scc1 A_QPASS")
    KVA = 232
    for w in range(4):
        for i in range(2):
            n_ = 2 * w + i
            a.ds("ds_read_b64_tr_b16 %s, v%d offset:%d" % (vr(4 * n_, 2), TA + 2, w * 4352 + (16 * i) * 136), "kv%d" % n_)
            a.ds("ds_read_b64_tr_b16 %s, v%d offset:%d" % (vr(4 * n_ + 2, 2), TA + 2, w * 4352 + (16 * i + 8) * 136), "kv%d" % n_)
            a.ds("ds_read_b128 %s, v%d offset:%d" % (vr(32 + 4 * n_, 4), VA, 17408 + w * 2048 + i * 1024), "kv%d" % n_)
    for n_ in range(8):
        a.wait(lg="kv%d" % n_)
        a("%s %s, %s, %s, %s" % (MF, vr(KVA, 16), vr(4 * n_, 4), vr(32 + 4 * n_, 4), "0" if n_ == 0 else vr(KVA, 16)))
    a("s_nop 11")
    for q in range(4):
        a("buffer_store_dwordx4 %s, v%d, s[32:35], s28 offen offset:%d sc1" % (vr(KVA + 4 * q, 4), VA, q * 1024))
    a.label("A_QPASS")
    QB = 16
    def qread(k): lread(QB + 4 * (k % 8), WP_Q + k * 896, "q%d" % k)
    for k in range(4): qread(k)
    for k in range(28):
        if k + 4 < 28: qread(k + 4)
        a.wait(lg="q%d" % k)
        a("%s %s, %s, %s, %s" % (MF, vr(AQ, 16), vr(QB + 4 * (k % 8), 4), vr(XF + 4 * k, 4), "0" if k == 0 else vr(AQ, 16)))
    a("s_mov_b32 s62, 0")
    a("s_cmp_ge_u32 s14, 2")
    a("s_cbranch_scc1 A_NOARR")
    a.drain(lg=False)
    arrive_issue(a, "s40 offset:%d" % (S1_CNT * SL))
    a.label("A_NOARR")
    a("s_nop 9")
    for r in range(8): a("v_cvt_pk_bf16_f32 v%d, v%d, v%d" % (PKK + r, AQ + 2 * r, AQ + 2 * r + 1))
    a("s_nop 1")
    a("%s %s, %s, %s, 0" % (MF, vr(PP, 16), vr(PH, 4), vr(PKK, 4)))
    a("%s %s, %s, %s, %s" % (MF, vr(PP, 16), vr(PH + 4, 4), vr(PKK + 4, 4), vr(PP, 16)))
    arrive_finish(a, 31, ["s40 offset:%d" % (S1_REL * SL)], "A_S1_NR")
    a.label("A_S1_NR")
    a("s_nop 9")
    softmax2(PP)
    stamp(a, 9)
    a("s_lshl_b32 s43, s39, 12")
    a("s_add_u32 s43, s43, %s" % hex(KVF_OFF))
    a("s_cmp_lg_u32 s14, 3")
    a("s_cbranch_scc1 A_NORED")
    a("""
    v_bfe_u32 v1, v{LN}, 4, 1
    v_and_b32 v2, 15, v{LN}
    v_lshlrev_b32 v3, 13, v{VH}
    v_lshl_add_u32 v3, v1, 10, v3
    v_lshl_add_u32 v3, v2, 4, v3
    v_lshlrev_b32 v4, 4, v2
    v_lshl_add_u32 v4, v1, 3, v4
    v_lshl_add_u32 v4, v{VH}, 2, v4
    s_lshr_b32 s28, s38, 2
    s_lshl_b32 s28, s28, 11
    s_and_b32 s29, s38, 3
    s_lshl_b32 s29, s29, 8
    s_add_u32 s28, s28, s29
    s_add_u32 s28, s28, s42
    s_lshl_b32 s29, s38, 8
    s_add_u32 s29, s29, s43
    s_add_u32 s41, s40, {REL}
    """.format(LN=LN, VH=VH, REL=S1_REL * SL))
    poll(a, WS, "s41", VZ, VT, sleep=0)
    for m in range(8):
        a.vmem("buffer_load_dwordx4 %s, v3, s[32:35], s28 offen sc1" % vr(64 + 4 * m, 4), "p%d" % m)
        if m < 7: a("s_add_u32 s28, s28, 16384")
    for m in range(1, 8):
        a.wait(vm="p%d" % m)
        for r in range(4): a("v_add_f32 v%d, v%d, v%d" % (64 + r, 64 + r, 64 + 4 * m + r))
    a("""
    s_nop 1
    v_permlane32_swap_b32 v64, v66
    v_permlane32_swap_b32 v65, v67
    s_nop 0
    v_add_f32 v64, v64, v66
    v_add_f32 v65, v65, v67
    v_cvt_pk_bf16_f32 v64, v64, v65
    buffer_store_dword v64, v4, s[32:35], s29 offen sc1
    """)
    a.drain(lg=False)
    arrive_issue(a, "s40 offset:%d" % (S3_CNT * SL))
    arrive_finish(a, 15, ["s40 offset:%d" % (S3_REL * SL)], "A_NORED2")
    a.label("A_NORED2")
    a("s_add_u32 s41, s40, %d" % (S3_REL * SL))
    poll(a, WS, "s41", VZ, VT, sleep=0)
    a.label("A_NORED")
    a("s_barrier")
    stamp(a, 10)
    KVB, OD = 96, 112
    for n_ in range(4):
        a.vmem("buffer_load_dwordx4 %s, v%d, s[32:35], s43 offen offset:%d sc1" % (vr(KVB + 4 * n_, 4), VA, n_ * 1024), "kvl%d" % n_)
    a("""
    s_lshl_b32 s28, s36, 15
    s_lshl_b32 s29, s39, 11
    s_add_u32 s28, s28, s29
    s_add_u32 s28, s28, {OFO}
    s_lshr_b32 s40, s36, 1
    s_lshl_b32 s40, s40, 8
    s_add_u32 s40, s40, {SY}
    """.format(OFO=hex(OF_OFF), SY=hex(SYNC_OFF)))
    for n_ in range(4):
        a.wait(vm="kvl%d" % n_)
        a("%s %s, %s, %s, %s" % (MF, vr(OD, 16), vr(KVB + 4 * n_, 4), vr(OUT + 4 * n_, 4), "0" if n_ == 0 else vr(OD, 16)))
    a("""
    s_nop 11
    v_mov_b32 v0, v{D12}
    v_mov_b32 v2, v{D12}
    s_nop 1
    v_permlane32_swap_b32 v0, v2
    s_nop 0
    v_add_f32 v2, {EPS}, v2
    v_rcp_f32 v2, v2
    s_nop 0
    """.format(D12=OD + 12, EPS=f32(1e-6)))
    for i in range(2):
        for r in range(8): a("v_mul_f32 v%d, v%d, v2" % (OD + 8 * i + r, OD + 8 * i + r))
        for r in range(4): a("v_cvt_pk_bf16_f32 v%d, v%d, v%d" % (KVB + 4 * i + r, OD + 8 * i + 2 * r, OD + 8 * i + 2 * r + 1))
        a.vmem("buffer_store_dwordx4 %s, v%d, s[32:35], s28 offen offset:%d sc1" % (vr(KVB + 4 * i, 4), VA, i * 1024))
    a.drain(lg=False)
    arrive_issue(a, "s40 offset:%d" % (S2_CNT * SL))
    arrive_finish(a, 31, ["s40 offset:%d" % (S2_REL * SL)], "A_FIN")
    a.label("A_FIN")
    stamp_flush(a, 11, 4, "A")
    a("s_endpgm")

class G:
    ACC = 0; B = 64; F = 64 + 8 * NB
    W0 = 232; W1 = 233; FA = 234; FB = 235; LA = 236; LB = 237
    LN = 238; L16 = 239; RES = 240
    VX = 248; VB2 = 249; VZ = 250; VT = 251; T0 = 252; T1 = 253; T2 = 254
assert G.F + 8 * NF <= 232
SW, SF, SLDS = 48, 49, 50

def g_waddr(a, RS, perm2, scol):
    a("""
    v_lshrrev_b32 v{T0}, 3, v{L}
    v_mul_u32_u24 v{W0}, {RS}, v{T0}
    v_bfe_u32 v{T0}, v{L}, 4, 1
    v_lshlrev_b32 v{T1}, 2, v{T0}
    v_and_b32 v{T2}, 7, v{L}
    v_xor_b32 v{T1}, v{T1}, v{T2}
    v_lshl_add_u32 v{W0}, v{T1}, 4, v{W0}
    v_add_u32 v{W0}, {scol}, v{W0}
    v_add_u32 v{W1}, {RS8}, v{W0}
    v_lshrrev_b32 v{T1}, 5, v{L}
    v_lshlrev_b32 v{LA}, {HS}, v{T1}
    v_lshl_add_u32 v{LA}, v{T0}, 5, v{LA}
    v_bfe_u32 v{T1}, v{L}, 2, 2
    v_lshl_add_u32 v{LA}, v{T1}, 7, v{LA}
    v_lshrrev_b32 v{T1}, 1, v{T1}
    v_lshl_add_u32 v{LA}, v{T1}, 6, v{LA}
    v_and_b32 v{T1}, 3, v{L}
    v_lshl_add_u32 v{LA}, v{T1}, 3, v{LA}
    s_lshl_b32 s58, s14, 5
    s_and_b32 s58, s58, 64
    v_xor_b32 v{LA}, s58, v{LA}
    v_add_u32 v{LA}, s{SLDS}, v{LA}
    v_xor_b32 v{LB}, 64, v{LA}
    """.format(T0=G.T0, T1=G.T1, T2=G.T2, L=G.LN, W0=G.W0, W1=G.W1, LA=G.LA, LB=G.LB, RS=RS, RS8=8 * RS,
               HS=(9 if perm2 else 10), scol=scol, SLDS=SLDS))

class Stream:
    def __init__(self, a, name, srdw, RS, NK, perm2, pol, slots):
        self.a = a; self.n = name; self.srd = srdw; self.RS = RS; self.NK = NK; self.perm2 = perm2; self.pol = pol
        self.free = [(s, None) for s in slots]
        self.slot = {}; self.nd = 0; self.nr = 0
    def can_dma(self): return self.nd < self.NK and len(self.free) > 0
    def dma_parts(self):
        a = self.a; p = self.nd; self.nd += 1
        sl, tag = self.free.pop(0); self.slot[p] = sl
        def p0():
            if tag: a.wait(lg=tag)
            a("s_add_u32 m0, s%d, %d" % (SLDS, sl * 2048))
            a("s_add_u32 s58, s%d, %d" % (SW, 64 * self.RS))
            a.vmem("buffer_load_dwordx4 v%d, s[%d:%d], s%d offen %s lds" % (G.W0, self.srd, self.srd + 3, SW, self.pol), "%sd%d" % (self.n, p))
        def p1():
            a("s_add_u32 m0, s%d, %d" % (SLDS, sl * 2048 + 1024))
            a("s_sub_u32 s59, s58, %d" % (self.NK * 64 * self.RS))
            a.vmem("buffer_load_dwordx4 v%d, s[%d:%d], s%d offen %s lds" % (G.W1, self.srd, self.srd + 3, SW, self.pol), "%sd%d" % (self.n, p))
            a("s_cselect_b32 s%d, s58, s59" % SW)
        return [p0, p1]
    def dma(self):
        for f in self.dma_parts(): f()
    def read_parts(self):
        a = self.a; p = self.nr; self.nr += 1
        assert p < self.nd
        sl = self.slot[p]; b = G.B + 8 * (p % NB); io = 1024 if self.perm2 else 512
        self.free.append((sl, "%sr%d" % (self.n, p)))
        def part(u):
            def f():
                a.wait(vm="%sd%d" % (self.n, p))
                for i in range(2):
                    a.ds("ds_read_b64_tr_b16 %s, v%d offset:%d" % (vr(b + 4 * u + 2 * i, 2), G.LA + u, sl * 2048 + i * io), "%sr%d" % (self.n, p))
            return f
        return [part(0), part(1)]
    def read(self):
        for f in self.read_parts(): f()
    def pump(self, ahead):
        did = False
        while self.can_dma() and self.nd - self.nr < ahead and self.nr < NB: self.dma(); did = True
        if self.nr < NB and self.nr < self.nd: self.read(); did = True
        elif self.can_dma():
            self.a.wait(vm="%sd%d" % (self.n, self.nd - ahead)); self.dma(); did = True
        return did
    def fload_parts(self, t, srdf):
        a = self.a; f = G.F + 8 * (t % NF)
        def p0():
            a("s_add_u32 s60, s%d, 8192" % SF)
            a.vmem("buffer_load_dwordx4 %s, v%d, s[%d:%d], s%d offen sc1" % (vr(f, 4), G.FA, srdf, srdf + 3, SF), "%sf%d" % (self.n, t))
        def p1():
            a("s_sub_u32 s61, s60, %d" % (self.NK * 8192))
            a.vmem("buffer_load_dwordx4 %s, v%d, s[%d:%d], s%d offen sc1" % (vr(f + 4, 4), G.FB, srdf, srdf + 3, SF), "%sf%d" % (self.n, t))
            a("s_cselect_b32 s%d, s60, s61" % SF)
        return [p0, p1]
    def fload(self, t, srdf):
        for f in self.fload_parts(t, srdf): f()
    def step(self, t, weights_are_A, fill):
        a = self.a; b = G.B + 8 * (t % NB); f = G.F + 8 * (t % NF)
        a.wait(vm="%sf%d" % (self.n, t), lg="%sr%d" % (self.n, t))
        gaps = [[], [], [], []]
        for i, p in enumerate(fill): gaps[min(3, i * 4 // max(4, len(fill)))].append(p)
        for n in range(4):
            uw, uf = n >> 1, n & 1
            acc = vr(G.ACC + 16 * n, 16)
            W, F = vr(b + 4 * uw, 4), vr(f + 4 * uf, 4)
            A_, B_ = (W, F) if weights_are_A else (F, W)
            a("%s %s, %s, %s, %s" % (MF, acc, A_, B_, "0" if (t == 0 and n > 0) else acc))
            for p in gaps[n]: p()
    def loop_fill(self, t, srdf):
        fill = []
        if t + NF - 1 < self.NK: fill += self.fload_parts(t + NF - 1, srdf)
        dm = self.dma_parts() if self.can_dma() else []
        if t >= 1 and self.nr < self.NK and self.nr - NB <= t - 1: fill += self.read_parts()
        return fill + dm

def g_reduce_write(a):
    a("v_add_u32 v%d, s%d, v%d" % (G.T0, SLDS, G.L16))
    a("s_nop 10")
    for t in range(1, 4):
        for q in range(4):
            a.ds("ds_write_b128 v%d, %s offset:%d" % (G.T0, vr(G.ACC + 16 * t + 4 * q, 4), 8192 + (t - 1) * 4096 + q * 1024), "rw")
    for t in range(1, 4):
        a("s_xor_b32 s60, s14, %d" % t)
        a("s_mul_i32 s60, s60, %d" % (NS * 2048))
        a("v_add_u32 v%d, s60, v%d" % (G.T0 + t - 1, G.L16))
    a.wait(lg="rw")
    a("s_barrier")
    for t in range(1, 4):
        for q in range(4):
            a.ds("ds_read_b128 %s, v%d offset:%d" % (vr(G.ACC + 16 * t + 4 * q, 4), G.T0 + t - 1, 8192 + (t - 1) * 4096 + q * 1024), "rr%d" % t)
def g_reduce_add(a):
    for t in range(1, 4):
        a.wait(lg="rr%d" % t)
        for r in range(0, 16, 2): a("v_pk_add_f32 %s, %s, %s" % (vr(r, 2), vr(r, 2), vr(16 * t + r, 2)))

def role_g(a):
    a.vm.clear(); a.lg.clear()
    a.label("ROLE_G")
    a("""
    s_load_dwordx4 s[8:11], s[0:1], 40
    s_load_dwordx4 s[52:55], s[0:1], 56
    s_load_dwordx2 s[6:7], s[0:1], 72
    s_setprio {PRIO}
    v_and_b32 v{LN}, 63, v0
    v_lshlrev_b32 v{L16}, 4, v{LN}
    v_mov_b32 v{VZ}, 0
    s_mul_i32 s60, s56, 49
    s_add_u32 s60, s60, 1
    s_lshr_b32 s60, s60, 1
    s_add_u32 s60, s60, s57
    s_mul_i32 s65, s60, 9363
    s_lshr_b32 s65, s65, 16
    s_mul_i32 s61, s65, 7
    s_sub_u32 s63, s60, s61
    s_mul_i32 s61, s57, 37
    s_lshr_b32 s61, s61, 8
    s_lshl_b32 s66, s56, 2
    s_add_u32 s66, s66, s61
    s_mul_i32 s61, s61, 7
    s_sub_u32 s64, s57, s61
    s_and_b32 s61, s56, 1
    s_sub_u32 s69, 25, s61
    s_cmp_lt_u32 s57, s69
    s_cselect_b32 s51, -1, 0
    s_mul_i32 s{SLDS}, s14, {WB}
    s_lshl_b32 s67, s65, 7
    s_lshr_b32 s60, s14, 1
    s_lshl_b32 s60, s60, 5
    s_lshl_b32 s61, s66, 6
    s_add_u32 s60, s60, s61
    v_and_b32 v{T0}, 31, v{LN}
    v_add_u32 v{T0}, s60, v{T0}
    v_mul_u32_u24 v{VX}, 896, v{T0}
    v_lshrrev_b32 v{T1}, 5, v{LN}
    v_lshlrev_b32 v{T1}, 3, v{T1}
    s_lshl_b32 s60, s64, 7
    s_and_b32 s61, s14, 1
    s_lshl_b32 s61, s61, 6
    s_add_u32 s60, s60, s61
    v_add3_u32 v{VX}, v{VX}, v{T1}, s60
    v_lshlrev_b32 v{T0}, 1, v{T0}
    s_lshr_b32 s60, s14, 1
    s_lshl_b32 s60, s60, 6
    s_add_u32 s60, s60, s67
    s_waitcnt lgkmcnt(0)
    """.format(PRIO=PRIO_G, LN=G.LN, L16=G.L16, VZ=G.VZ, SLDS=SLDS, WB=NS * 2048, T0=G.T0, T1=G.T1, VX=G.VX))
    srd(a, WS, 30, hex(WS_USED))
    a("s_lshl_b32 s61, s2, 2")
    a("s_add_u32 s61, s61, s14")
    a("s_cmp_lg_u32 s61, %d" % (4 * (25 * 8 + 1)))
    a("s_cbranch_scc1 G_NOZERO")
    a("v_lshlrev_b32 v%d, 8, v%d" % (G.T2, G.LN))
    for i in range(NSYNC // 64):
        a("s_mov_b32 s61, %s" % hex(SYNC_OFF + i * 64 * SL))
        a("buffer_store_dword v%d, v%d, s[32:35], s61 offen sc1" % (G.VZ, G.T2))
    a("s_mov_b32 s62, 1")
    a("s_waitcnt vmcnt(0)")
    a("s_atomic_add s62, s[28:29], 0x0")
    a.label("G_NOZERO")
    srd(a, 36, 10, str(1792 * 2))
    srd(a, 16, 4, str(2048 * 896))
    srd(a, 20, 54, "4096")
    for q in range(4):
        a.vmem("buffer_load_dwordx2 %s, v%d, s[36:39], s60 offen offset:%d nt" % (vr(G.F + 2 * q, 2), G.T1, 16 * q), "b1")
    for q in range(4):
        a.vmem("buffer_load_dwordx2 %s, v%d, s[16:19], 0 offen offset:%d nt" % (vr(G.RES + 2 * q, 2), G.VX, 16 * q), "res")
    a.vmem("buffer_load_ushort v%d, v%d, s[20:23], 0 offen nt" % (G.VB2, G.T0), "res")
    a("s_cmp_lg_u32 s14, 3")
    a("s_cbranch_scc1 G_NOCODE")
    a("s_getpc_b64 s[60:61]")
    a.label("G_PC")
    a("s_sub_u32 s60, s60, G_PC-%s" % KNAME)
    a("s_subb_u32 s61, s61, 0")
    a("s_lshl_b32 s36, s57, 10")
    a("s_min_u32 s36, s36, CODE_END-%s-1024" % KNAME)
    a("v_add_u32 v%d, s36, v%d" % (G.T0, G.L16))
    a("global_load_dwordx4 %s, v%d, s[60:61] nt" % (vr(G.F + 8, 4), G.T0))
    a.label("G_NOCODE")
    g_waddr(a, 3584, False, "s67")
    a("""
    s_mul_i32 s60, s65, 37
    s_lshr_b32 s60, s60, 8
    s_mul_i32 s60, s60, 7
    s_sub_u32 s60, s65, s60
    s_mul_i32 s61, s63, 293
    s_add_u32 s61, s61, 32
    s_lshr_b32 s61, s61, 6
    s_lshl_b32 s68, s63, 3
    s_mul_i32 s58, s63, 11
    s_bitcmp1_b32 s56, 0
    s_cselect_b32 s68, s58, s68
    s_cmp_eq_u32 s60, 3
    s_cselect_b32 s60, s68, s61
    s_and_b32 s60, s60, 31
    s_lshl_b32 s60, s60, 2
    s_add_u32 s60, s60, s14
    s_mul_i32 s{SW}, s60, {RS16}
    s_lshl_b32 s{SF}, s60, 11
    s_and_b32 s60, s14, 1
    s_lshl_b32 s60, s60, 10
    v_add_u32 v{FA}, s60, v{L16}
    v_xor_b32 v{FB}, 0x400, v{FA}
    s_lshl_b32 s68, s63, 18
    s_add_u32 s68, s68, {HTO}
    s_mul_i32 s60, s64, {UG}
    s_add_u32 s60, s60, {UPO}
    """.format(SW=SW, SF=SF, RS16=16 * 3584, FA=G.FA, FB=G.FB, L16=G.L16, HTO=hex(HT_OFF), UG=UP_G, UPO=hex(UP_OFF)))
    srd(a, 40, 30, str(UP_G), add="s60")
    srd(a, DBG, 28, "256")
    srd(a, 24, 52, str(1792 * 4096))
    a.wait(vm="res")
    srd(a, 16, 8, str(2048 * 3584)); a("s_and_b32 s18, s18, s51")
    srd(a, 20, 30, str(HT_G), add="s68"); a("s_and_b32 s22, s22, s51")
    s1 = Stream(a, "a", 16, 3584, 32, False, "nt", list(range(NS)))
    s2 = Stream(a, "b", 24, 4096, 28, True, "", list(range(4)))
    def sw2():
        a("s_lshl_b32 s67, s66, 7")
        g_waddr(a, 4096, True, "s67")
        a("""
        s_lshl_b32 s58, s64, 4
        s_add_u32 s58, s58, s14
        s_lshl_b32 s{SW}, s58, 16
        s_lshl_b32 s68, s58, 11
        """.format(SW=SW))
    stamp(a, 1)
    a("s_cmp_lg_u32 s51, 0")
    a("s_cbranch_scc1 G_TILE1")
    a("""
    s_sub_u32 s60, s57, s69
    s_lshl_b32 s60, s60, 2
    s_add_u32 s60, s60, s14
    s_lshl_b32 s60, s60, 13
    s_sub_u32 s61, 28, s69
    s_lshl_b32 s61, s61, 15
    v_lshrrev_b32 v{T0}, 5, v{LN}
    v_lshlrev_b32 v{T0}, 12, v{T0}
    v_and_b32 v{T1}, 31, v{LN}
    v_lshl_add_u32 v{T0}, v{T1}, 4, v{T0}
    s_lshl_b32 s58, s56, 9
    v_add_u32 v{T0}, s58, v{T0}
    G_PFL:
    """.format(T0=G.T0, T1=G.T1, LN=G.LN))
    for i in range(8):
        a("s_waitcnt vmcnt(7)")
        a("buffer_load_dwordx4 %s, v%d, s[24:27], s60 offen %s" % (vr(G.B + 4 * i, 4), G.T0, PFPOL))
        a("s_add_u32 s60, s60, s61")
    a("s_cmp_lt_u32 s60, %d" % (1792 * 4096))
    a("s_cbranch_scc1 G_PFL")
    a("s_waitcnt vmcnt(0)")
    for i in range(2, 9): stamp(a, i)
    sw2()
    a("s_mov_b32 s37, 1")
    a("s_branch G_JOIN")
    a.label("G_TILE1")
    for p in range(5): s1.dma()
    for q in range(8):
        a("v_lshlrev_b32 v%d, 16, v%d" % (2 * q, G.F + q))
        a("v_and_b32 v%d, 0xffff0000, v%d" % (2 * q + 1, G.F + q))
    a.wait(vm="ad4")
    stamp(a, 2)
    while s1.pump(AHEAD): pass
    stamp(a, 3)
    a("s_cmp_lg_u32 s14, 0")
    a("s_cbranch_scc1 G_S0_DONE")
    poll(a, DBG, "0", G.VZ, G.VT, keep=True)
    a("s_lshl_b32 s36, s56, 8")
    a("s_add_u32 s36, s36, %s" % hex(SYNC_OFF + SA_REP * SL))
    poll(a, WS, "s36", G.VZ, G.VT, sleep=1, target=16, keep=True)
    a.label("G_S0_DONE")
    a("s_barrier")
    stamp(a, 4)
    for t in range(NF - 1): s1.fload(t, 20)
    for t in range(32):
        if t in (8, 16, 24): stamp(a, 4 + t // 8)
        fill = s1.loop_fill(t, 20)
        if t == 21:
            assert s1.nr == 32
            fill.append(lambda: (a.drain(vm=False), sw2()))
        if W2START <= t < W2START + 4: fill += s2.dma_parts()
        s1.step(t, True, fill)
    stamp(a, 8)
    g_reduce_write(a)
    s2.pump(4); s2.pump(4)
    g_reduce_add(a)
    c1 = -2.0 * 0.7978845608028654 * 1.4426950408889634
    c2 = c1 * 0.044715
    a("s_mov_b32 s60, %s" % f32(c2))
    a("v_mov_b32 v48, %s" % f32(c1))
    for r in range(0, 16, 2): a("v_pk_mul_f32 %s, %s, %s" % (vr(16 + r, 2), vr(r, 2), vr(r, 2)))
    for r in range(16): a("v_fma_f32 v%d, v%d, s60, v48" % (16 + r, 16 + r))
    s2.pump(4)
    for r in range(0, 16, 2): a("v_pk_mul_f32 %s, %s, %s" % (vr(16 + r, 2), vr(16 + r, 2), vr(r, 2)))
    for r in range(16): a("v_exp_f32 v%d, v%d" % (16 + r, 16 + r))
    s2.pump(4)
    for r in range(16): a("v_add_f32 v%d, 1.0, v%d" % (16 + r, 16 + r))
    for r in range(16): a("v_rcp_f32 v%d, v%d" % (16 + r, 16 + r))
    a("""
    s_lshl_b32 s60, s65, 2
    s_and_b32 s61, s14, 2
    s_add_u32 s60, s60, s61
    s_lshl_b32 s60, s60, 11
    s_mul_i32 s61, s63, {UG}
    s_add_u32 s60, s60, s61
    s_add_u32 s60, s60, {UPO}
    """.format(UG=UP_G, UPO=hex(UP_OFF)))
    for i in range(2):
        for r in range(0, 8, 2): a("v_pk_mul_f32 %s, %s, %s" % (vr(8 * i + r, 2), vr(8 * i + r, 2), vr(16 + 8 * i + r, 2)))
        for r in range(4): a("v_cvt_pk_bf16_f32 v%d, v%d, v%d" % (32 + 4 * i + r, 8 * i + 2 * r, 8 * i + 2 * r + 1))
        a.vmem("buffer_store_dwordx4 %s, v%d, s[32:35], s60 offen offset:%d sc1" % (vr(32 + 4 * i, 4), G.FA, i * 2048), "ust")
    s2.pump(4); s2.pump(4)
    a.wait(vm="ust")
    state = (s2.nd, s2.nr, list(s2.free), dict(s2.slot), list(a.vm.ops), list(a.lg.ops))
    a("s_mov_b32 s37, s14")
    a("s_branch G_JOIN2")
    a.label("G_JOIN")
    a.vm.clear(); a.lg.clear()
    s2b = Stream(a, "b", 24, 4096, 28, True, "", list(range(4)))
    for p in range(4): s2b.dma()
    while s2b.nr < state[1] or s2b.nd < state[0]: s2b.pump(4)
    assert (s2b.nd, s2b.nr, s2b.slot) == (state[0], state[1], state[3]) and [x[0] for x in s2b.free] == [x[0] for x in state[2]]
    a.drain()
    a("s_cmp_lg_u32 s14, 0")
    a("s_cbranch_scc1 G_JOIN2")
    poll(a, DBG, "0", G.VZ, G.VT)
    a.label("G_JOIN2")
    a.vm.ops = state[4]; a.lg.ops = state[5]
    stamp(a, 9)
    a("s_barrier")
    s2.free += [(s, None) for s in range(4, NS)]
    a("""
    s_mov_b32 s{SF}, s68
    s_lshl_b32 s68, s63, 8
    s_add_u32 s68, s68, {SY}
    s_lshl_b32 s69, s64, 8
    s_add_u32 s69, s69, {REL}
    s_cmp_lg_u32 s37, 0
    s_cbranch_scc1 G_NOARR
    """.format(SF=SF, SY=hex(SYNC_OFF), REL=hex(SYNC_OFF + S4_REL * SL)))
    svl = list(a.lg.ops)
    arrive_issue(a, "s68 offset:%d" % (S4_CNT * SL))
    arrive_finish(a, 27, ["s68 offset:%d" % (S4_REL * SL)], "G_NOARR")
    a.lg.ops = svl
    a.label("G_NOARR")
    a("v_lshlrev_b32 v16, 16, v%d" % G.VB2)
    for q in range(8):
        a("v_lshlrev_b32 v%d, 16, v%d" % (2 * q, G.RES + q))
        a("v_and_b32 v%d, 0xffff0000, v%d" % (2 * q + 1, G.RES + q))
    for r in range(16): a("v_add_f32 v%d, v%d, v16" % (r, r))
    srd(a, 20, 6, str(2048 * 896))
    while s2.pump(AHEAD): pass
    stamp(a, 10)
    a("s_cmp_lg_u32 s14, 0")
    a("s_cbranch_scc1 G_S4_DONE")
    poll(a, WS, "s69", G.VZ, G.VT, sleep=0, keep=True)
    a.label("G_S4_DONE")
    a("s_barrier")
    stamp(a, 11)
    for t in range(NF - 1): s2.fload(t, 40)
    a("""
    s_lshl_b32 s56, s14, 14
    s_add_u32 s56, s56, {B0}
    s_lshl_b32 s57, s66, 16
    s_lshl_b32 s36, s14, 13
    s_add_u32 s57, s57, s36
    s_add_u32 s57, s57, {OFO}
    s_lshl_b32 s36, s14, 14
    s_and_b32 s36, s36, 0x8000
    s_xor_b32 s37, s36, 0x8000
    s_add_u32 s67, s57, s37
    s_add_u32 s57, s57, s36
    s_lshl_b32 s68, s66, 8
    s_add_u32 s68, s68, {REL}
    """.format(B0=112 * 2048, OFO=hex(OF_OFF), REL=hex(SYNC_OFF + S2_REL * SL)))
    free = [(p, G.B + 8 * (p % NB)) for p in range(28 - NB, 28)] + [(t, G.F + 8 * (t % NF)) for t in range(28 - NF, 28)]
    free.sort()
    oa = free[:8]; ob = free[8:16]
    def oa_parts(j):
        def p0():
            if j % 2 == 0 and j > 0: a("s_add_u32 s56, s56, 4096")
            a.vmem("buffer_load_dwordx4 %s, v%d, s[40:43], s56 offen offset:%d sc1" % (vr(oa[j][1], 4), G.FA, (j % 2) * 2048), "oa%d" % j)
        def p1():
            a.vmem("buffer_load_dwordx4 %s, v%d, s[40:43], s56 offen offset:%d sc1" % (vr(oa[j][1] + 4, 4), G.FB, (j % 2) * 2048), "oa%d" % j)
        return [p0, p1]
    def ob_parts(j):
        def p0():
            if j == 4:
                a("s_add_u32 s57, s57, 4096")
                a("s_add_u32 s67, s67, 4096")
            a.vmem("buffer_load_dwordx4 %s, v%d, s[32:35], s57 offen offset:%d sc1" % (vr(ob[j][1], 4), G.L16, (j % 4) * 1024), "ob%d" % j)
        def p1():
            a.vmem("buffer_load_dwordx4 %s, v%d, s[32:35], s67 offen offset:%d sc1" % (vr(ob[j][1] + 4, 4), G.L16, (j % 4) * 1024), "ob%d" % j)
        return [p0, p1]
    tchk = ob[0][0] + 1
    ja = 0; jb = 0
    for t in range(28):
        fill = s2.loop_fill(t, 40)
        while ja < 8 and oa[ja][0] < t: fill += oa_parts(ja); ja += 1
        if t == tchk - 5:
            fill.append(lambda: a.vmem("buffer_load_dword v%d, v%d, s[32:35], s68 offen sc1" % (G.VT, G.VZ), "s2"))
        if t == tchk:
            a.wait(vm="s2")
            a("v_readfirstlane_b32 s62, v%d" % G.VT)
            a("s_cmp_lg_u32 s62, 0")
            a("s_cbranch_scc1 G_S2_OK")
            poll(a, WS, "s68", G.VZ, G.VT, sleep=1, keep=True)
            a.label("G_S2_OK")
            stamp(a, 12)
        while jb < 8 and ob[jb][0] < t: fill += ob_parts(jb); jb += 1
        s2.step(t, False, fill)
    assert ja == 8 and jb == 8 and s2.nr == 28
    for j in range(8):
        a.wait(vm=["oa%d" % j, "ob%d" % j])
        for n in range(4):
            uw, uf = n >> 1, n & 1
            acc = vr(G.ACC + 16 * n, 16)
            a("%s %s, %s, %s, %s" % (MF, acc, vr(oa[j][1] + 4 * uf, 4), vr(ob[j][1] + 4 * uw, 4), acc))
    g_reduce_write(a)
    a("v_lshrrev_b32 v%d, 5, v%d" % (G.VT, G.LN))
    a("v_lshl_add_u32 v%d, v%d, 3, v%d" % (G.VX, G.VT, G.VX))
    g_reduce_add(a)
    for r in range(8): a("v_cvt_pk_bf16_f32 v%d, v%d, v%d" % (32 + r, 2 * r, 2 * r + 1))
    a("s_nop 1")
    for i in range(2):
        a("v_permlane32_swap_b32 v%d, v%d" % (32 + 4 * i, 34 + 4 * i))
        a("v_permlane32_swap_b32 v%d, v%d" % (33 + 4 * i, 35 + 4 * i))
    for i in range(2): a("buffer_store_dwordx4 %s, v%d, s[20:23], 0 offen offset:%d" % (vr(32 + 4 * i, 4), G.VX, 32 * i))
    stamp_flush(a, 13, 60, "G")

HEADER = open("cdna_kernels/%s.s.ref" % NAME).read().split("; Override launch geometry")[0]

def main(path):
    a = Asm()
    a.label(KNAME)
    a("s_cmp_ge_u32 s2, 512")
    a("s_cbranch_scc1 K_END")
    stamp(a, 0)
    a("""
    s_load_dwordx4 s[4:7], s[0:1], 0
    s_load_dwordx4 s[8:11], s[0:1], 16
    s_load_dwordx4 s[28:31], s[0:1], 80
    v_lshrrev_b32 v1, 6, v0
    s_and_b32 s56, s2, 7
    v_readfirstlane_b32 s14, v1
    s_bfe_u32 s57, s2, 0x50003
    s_cmp_ge_u32 s2, 256
    s_cbranch_scc1 K_R1
    s_cmp_lt_u32 s57, 24
    s_cbranch_scc1 ROLE_A
    s_cmp_lt_u32 s57, 28
    s_cbranch_scc1 K_G
    s_sub_u32 s57, s57, 4
    s_branch ROLE_A
    K_R1:
    s_cmp_ge_u32 s57, 28
    s_cbranch_scc1 ROLE_A
    s_cmp_ge_u32 s57, 24
    s_cbranch_scc1 K_END
    K_G:
    s_waitcnt lgkmcnt(0)
    s_branch ROLE_G
    """)
    role_a(a)
    role_g(a)
    a.label("K_END")
    a("s_endpgm")
    a.label("CODE_END")
    if DIAG:
        out = HEADER + "; @launch kernel=%s grid=(512,1,1) block=(256,1,1) lds=81920\n; @launch kernel=diag_kernel grid=(1,1,1) block=(64,1,1) lds=0\n" % KNAME
        a.lines += [".globl diag_kernel", ".p2align 8", ".type diag_kernel,@function"]
        a("""
        diag_kernel:
        s_cmp_lg_u32 s2, 0
        s_cbranch_scc1 DG_END
        s_load_dwordx2 s[4:5], s[0:1], 80
        s_waitcnt lgkmcnt(0)
        s_sub_u32 s4, s4, 512
        s_subb_u32 s5, s5, 0
        s_load_dwordx2 s[6:7], s[4:5], 128
        s_memrealtime s[8:9]
        s_waitcnt lgkmcnt(0)
        s_not_b32 s6, s6
        s_sub_u32 s6, s7, s6
        s_min_u32 s6, s6, 10000
        s_mul_i32 s6, s6, %d
        DG_L:
        s_memrealtime s[10:11]
        s_waitcnt lgkmcnt(0)
        s_sub_u32 s10, s10, s8
        s_cmp_lt_u32 s10, s6
        s_cbranch_scc1 DG_L
        DG_END:
        s_endpgm
        """ % E("AMP", 10))
    else:
        out = HEADER + "; @launch grid=(512,1,1) block=(256,1,1) lds=81920\n"
    out += '.amdgcn_target "amdgcn-amd-amdhsa--gfx950"\n.text\n.globl %s\n.p2align 8\n.type %s,@function\n' % (KNAME, KNAME)
    out += a.text()
    out += """.section .rodata,"a"
.p2align 6
.amdhsa_kernel {n}
  .amdhsa_next_free_vgpr 256
  .amdhsa_next_free_sgpr {s}
  .amdhsa_accum_offset 256
  .amdhsa_group_segment_fixed_size 0
  .amdhsa_kernarg_size 96
  .amdhsa_user_sgpr_count 2
  .amdhsa_user_sgpr_kernarg_segment_ptr 1
  .amdhsa_system_sgpr_workgroup_id_x 1
  .amdhsa_float_denorm_mode_32 3
.end_amdhsa_kernel
""".format(n=KNAME, s=100 if STAMP else 72)
    if DIAG:
        out += """.p2align 6
.amdhsa_kernel diag_kernel
  .amdhsa_next_free_vgpr 8
  .amdhsa_next_free_sgpr 32
  .amdhsa_accum_offset 8
  .amdhsa_group_segment_fixed_size 0
  .amdhsa_kernarg_size 96
  .amdhsa_user_sgpr_count 2
  .amdhsa_user_sgpr_kernarg_segment_ptr 1
  .amdhsa_system_sgpr_workgroup_id_x 1
.end_amdhsa_kernel
"""
    open(path, "w").write(out)

if __name__ == "__main__":
    main(sys.argv[1])
```

```python
import sys, struct, os

NAME = "parallel_sum__linear_kernel_hedgehog__mixer_token_mlp__prompt"
KNAME = NAME + "_kernel"
E = lambda k, d: int(os.environ.get(k, str(d)))

XN_OFF   = 0x000000
HT_OFF   = 0x200000
HT_G     = 128 * 2048
WP_OFF   = 0x400000
WP_Q     = 28 * 1792
WP_PHI   = 28 * 2688
WP_H     = WP_PHI + 2048 + 512
UP_OFF   = 0x600000
UP_G     = 144 * 2048
KVF_OFF  = 0x800000
SYNC_OFF = 0x840000
OF_OFF   = 0x900000
KVP_OFF  = 0xB00000
WS_USED  = 0x1000000
STAMP_OFF = 0xF00000
BIG      = 0x7ff00000
SL = 256
SX_CNT, SX_REL = 0, 16
SW_CNT, SW_REL = 32, 48
S1_CNT, S1_REL = 64, 80
S3_CNT, S3_REL = 96, 112
S2_CNT, S2_REL = 128, 160
S4_CNT, S4_REL = 192, 200
SA_ROOT = 216
SA_REP = 208
NSYNC = 256
SPIN_MAX = 0x40000

STAMP = E("STAMP", 0); PRIO_A = E("PRIO_A", 2); PRIO_G = E("PRIO_G", 1); AHEAD = E("AHEAD", 4); W2START = E("W2START", 30)
NB, NF, NS = E("NB", 16), E("NF", 5), 10
LEAD = E("LEAD", 3)
XPRE = E("XPRE", 12)
PSL = E("PSL", 1)
WDMA1 = E("WDMA1", 3)
AHEAD2 = E("AHEAD2", 5)
PFW2 = E("PFW2", 0)
PRIO_Q = E("PRIO_Q", 0)
PRIO_K = E("PRIO_K", 0)
JOBLATE = E("JOBLATE", 1)
BURST = E("BURST", 4)
PFPOL = os.environ.get("PFPOL", "")
NP = E("NP", 0)
AHEAD0 = E("AHEAD0", 5)
ALOOK = E("ALOOK", 99)
W2POL = os.environ.get("W2POL", "")
W1POL2 = os.environ.get("W1POL2", "")
RESEARLY = E("RESEARLY", 0)
WSBASE = E("WSBASE", 0)
ONLY2 = E("ONLY2", 0)
ONLYG = E("ONLYG", 0)
ONLYA = E("ONLYA", 0)
GWAIT = E("GWAIT", 0)
PFWAIT = E("PFWAIT", 0)
OUTPOL = os.environ.get("OUTPOL", "")

def f32(x): return "0x%08x" % struct.unpack("<I", struct.pack("<f", x))[0]

class Q:
    def __init__(self, mx): self.ops = []; self.mx = mx
    def issue(self, tag): self.ops.append(tag)
    def need(self, tags):
        if not isinstance(tags, (list, tuple, set)): tags = [tags]
        idx = -1
        for i, t in enumerate(self.ops):
            if t in tags: idx = i
        if idx < 0: return None
        n = len(self.ops) - 1 - idx
        if n > self.mx: return self.mx
        self.ops = self.ops[idx + 1:]
        return n
    def clear(self): self.ops = []

class Asm:
    def __init__(self):
        self.lines = []; self.vm = Q(63); self.lg = Q(15); self.uid = 0; self.issued = []
    def __call__(self, s):
        for l in s.strip().split("\n"):
            l = l.strip()
            if l.endswith(":"): self.lines.append(l)
            elif l: self.lines.append("    " + l)
    def label(self, l): self.lines.append(l + ":")
    def vmem(self, s, tag=None): self(s); self.vm.issue(tag); self.issued.append(tag)
    def ds(self, s, tag=None): self(s); self.lg.issue(tag)
    def wait(self, vm=None, lg=None):
        p = []
        for q, t, nm in ((self.vm, vm, "vmcnt"), (self.lg, lg, "lgkmcnt")):
            if t is None: continue
            n = q.need(t)
            if n is None: continue
            if len(q.ops) > n: q.ops = q.ops[len(q.ops) - n:]
            p.append("%s(%d)" % (nm, n))
        if p: self("s_waitcnt " + " ".join(p))
    def drain(self, vm=True, lg=True):
        p = []
        if vm: p.append("vmcnt(0)"); self.vm.clear()
        if lg: p.append("lgkmcnt(0)"); self.lg.clear()
        self("s_waitcnt " + " ".join(p))
    def newlabel(self, p): self.uid += 1; return "%s_%d" % (p, self.uid)
    def text(self): return "\n".join(self.lines) + "\n"

def vr(a, n): return "v[%d:%d]" % (a, a + n - 1)

def srd(a, d, base, size, add=None):
    if add is None:
        a("s_mov_b32 s%d, s%d" % (d, base))
        a("s_and_b32 s%d, s%d, 0xffff" % (d + 1, base + 1))
    else:
        a("s_add_u32 s%d, s%d, %s" % (d, base, add))
        a("s_addc_u32 s%d, s%d, 0" % (d + 1, base + 1))
        a("s_and_b32 s%d, s%d, 0xffff" % (d + 1, d + 1))
    a("s_mov_b32 s%d, %s" % (d + 2, size))
    a("s_mov_b32 s%d, 0x20000" % (d + 3))

WS = 32
DBG = 44

def ws_base(a):
    if WSBASE:
        a("s_add_u32 s30, s30, %s" % hex(WSBASE))
        a("s_addc_u32 s31, s31, 0")

def stamp(a, i):
    if STAMP:
        a("%s s[%d:%d]" % ("s_memtime" if STAMP == 2 else "s_memrealtime", 70 + 2 * i, 71 + 2 * i))
        a.drain(vm=False)
DIAG = os.environ.get("DIAG", "")
def stamp_flush(a, n, tmp, role=""):
    if not STAMP: return
    a.drain()
    stamp(a, n)
    if DIAG:
        a("s_mov_b64 exec, 1")
        a("v_mov_b32 v%d, 0" % tmp)
        a("s_not_b32 s98, s70")
        a("v_mov_b32 v%d, s98" % (tmp + 1))
        a("buffer_atomic_umax v%d, v%d, s[44:47], 0 offen offset:128 sc1" % (tmp + 1, tmp))
        if DIAG[0] == role:
            a("v_mov_b32 v%d, s%d" % (tmp + 2, 70 + 2 * int(DIAG[1:])))
            a("buffer_atomic_umax v%d, v%d, s[44:47], 0 offen offset:132 sc1" % (tmp + 2, tmp))
        return
    a("s_mov_b64 exec, 1")
    a("s_lshl_b32 s98, s2, 8")
    a("s_lshl_b32 s99, s14, 6")
    a("s_add_u32 s98, s98, s99")
    a("s_add_u32 s98, s98, %s" % hex(STAMP_OFF))
    a("v_mov_b32 v%d, 0" % tmp)
    for i in range(n + 1):
        a("v_mov_b32 v%d, s%d" % (tmp + 1, 70 + 2 * i))
        a("buffer_store_dword v%d, v%d, s[32:35], s98 offen offset:%d" % (tmp + 1, tmp, 4 * i))
        a("s_waitcnt vmcnt(0)")

def poll(a, srdn, soff, vz, vt, sleep=1, target=1, keep=False):
    if ONLY2 or ONLYG: return
    sv = list(a.vm.ops)
    l = a.newlabel("POLL"); d = a.newlabel("POLLD")
    a("s_mov_b32 s60, 0")
    a("s_mov_b64 exec, 1")
    a.label(l)
    a("buffer_load_dword v%d, v%d, s[%d:%d], %s offen sc1" % (vt, vz, srdn, srdn + 3, soff))
    a("s_add_u32 s60, s60, 1")
    a.drain(lg=False)
    a("v_readfirstlane_b32 s61, v%d" % vt)
    a("s_cmp_ge_u32 s61, %d" % target)
    a("s_cbranch_scc1 %s" % d)
    if sleep: a("s_sleep %d" % sleep)
    a("s_cmp_lt_u32 s60, %s" % hex(SPIN_MAX))
    a("s_cbranch_scc1 %s" % l)
    a.label(d)
    a("s_mov_b64 exec, -1")
    if keep: a.vm.ops = sv

def arrive_issue(a, soff):
    a("s_mov_b32 s62, 1")
    a("s_atomic_add s62, s[30:31], %s glc" % soff)
def arrive_finish(a, last, srels, skip):
    a.drain(vm=False)
    a("s_cmp_lg_u32 s62, %d" % last)
    a("s_cbranch_scc1 %s" % skip)
    a("s_mov_b32 s62, 1")
    for r in srels: a("s_atomic_add s62, s[30:31], %s" % r)

def arrive(a, soff):
    a("s_mov_b32 s62, 1")
    a("s_atomic_add s62, s[30:31], %s" % soff)

def round_bf16(a, d, s):
    a("v_cvt_pk_bf16_f32 v%d, v%d, v%d" % (d, s, s))
    a("v_lshlrev_b32 v%d, 16, v%d" % (d, d))

def half_reduce(a, regs, tmps):
    steps = ["quad_perm:[1,0,3,2] row_mask:0xf bank_mask:0xf", "quad_perm:[2,3,0,1] row_mask:0xf bank_mask:0xf",
             "row_half_mirror row_mask:0xf bank_mask:0xf", "row_mirror row_mask:0xf bank_mask:0xf"]
    for st in steps:
        a("s_nop %d" % (1 if len(regs) == 1 else 0))
        for r in regs: a("v_add_f32_dpp v%d, v%d, v%d %s" % (r, r, r, st))
    for r, t in zip(regs, tmps): a("v_mov_b32 v%d, v%d" % (t, r))
    a("s_nop 1")
    for r, t in zip(regs, tmps): a("v_permlane16_swap_b32 v%d, v%d" % (r, t))
    a("s_nop 0")
    for r, t in zip(regs, tmps): a("v_add_f32 v%d, v%d, v%d" % (r, r, t))

MF = "v_mfma_f32_32x32x16_bf16"

def role_a(a):
    LN, VA, VB, VC, VD, VZ, VT, VH = 250, 251, 252, 253, 254, 248, 249, 255
    a.label("ROLE_A")
    if ONLY2 or ONLYG: a("s_endpgm")
    JB = 16384
    a("""
    s_lshr_b32 s38, s56, 1
    s_lshl_b32 s38, s38, 2
    s_and_b32 s39, s57, 3
    s_add_u32 s38, s38, s39
    s_and_b32 s39, s56, 1
    s_lshl_b32 s39, s39, 3
    s_lshr_b32 s57, s57, 2
    s_add_u32 s39, s39, s57
    s_lshl_b32 s15, s38, 4
    s_add_u32 s15, s15, s39
    v_and_b32 v{VC}, 31, v0
    v_lshrrev_b32 v2, 5, v0
    s_mul_i32 s20, s15, 7168
    v_min_u32 v4, 27, v{VC}
    v_mul_u32_u24 v3, 896, v2
    v_lshl_add_u32 v3, v4, 5, v3
    v_add_u32 v4, s20, v3
    s_or_b32 s63, s2, s14
    s_cmp_lg_u32 s63, 0
    s_waitcnt lgkmcnt(0)
    s_cbranch_scc1 A_NOZ
    v_lshlrev_b32 v6, 8, v0
    v_add_u32 v6, {SYA}, v6
    v_mov_b32 v7, 0
    global_store_dword v6, v7, s[30:31] sc1
    v_add_u32 v6, 0x4000, v6
    global_store_dword v6, v7, s[30:31] sc1
    v_add_u32 v6, 0x4000, v6
    global_store_dword v6, v7, s[30:31] sc1
    v_add_u32 v6, 0x4000, v6
    global_store_dword v6, v7, s[30:31] sc1
    A_NOZ:
    global_load_dwordx4 v[8:11], v4, s[4:5] nt
    global_load_dwordx4 v[12:15], v4, s[4:5] offset:16 nt
    s_mov_b32 s58, 0x0fffffff
    s_mov_b32 s59, 0x0fffffff
    v_bfe_u32 v51, v0, 2, 4
    v_and_b32 v52, 3, v0
    v_lshlrev_b32 v52, 4, v52
    v_mul_u32_u24 v50, 2688, v51
    v_add_u32 v50, v50, v52
    s_lshl_b32 s24, s14, 4
    s_add_u32 s24, s24, s38
    s_lshl_b32 s48, s14, 11
    s_add_u32 s48, s48, {JB}
    s_mul_i32 s49, s39, 56
    """.format(VC=VC, JB=JB, SYA=hex(SYNC_OFF + WSBASE)))
    a.vm.issue("x"); a.vm.issue("x")
    def wp_src(sv, sp, sk, ssrc):
        a("""
        s_mul_i32 {p}, {v}, 586
        s_lshr_b32 {p}, {p}, 14
        s_mul_i32 {k}, {p}, 28
        s_sub_u32 {k}, {v}, {k}
        s_mul_i32 {src}, {k}, 43008
        s_mul_i32 s22, {p}, 896
        s_add_u32 {src}, {src}, s22
        s_add_u32 {src}, {src}, s49
        """.format(v=sv, p=sp, k=sk, src=ssrc))
    def wp_dst(sp, sk, sdst):
        a("""
        s_mul_i32 s22, {p}, 896
        s_mul_i32 s23, {k}, 1792
        s_add_u32 s23, s23, s22
        s_sub_u32 s23, s23, 896
        s_mul_i32 {dst}, {k}, 896
        s_add_u32 {dst}, {dst}, {WPQ}
        s_cmp_eq_u32 {p}, 0
        s_cselect_b32 {dst}, {dst}, s23
        s_add_u32 {dst}, {dst}, s25
        """.format(p=sp, k=sk, dst=sdst, WPQ=WP_Q))
    wp_src("s24", "s50", "s51", "s26")
    a("s_mov_b32 m0, s48")
    a("s_mov_b32 s18, %d" % (448 * 2688))
    a("s_mov_b32 s19, 0x20000")
    a("s_mov_b32 s16, s6")
    a("s_and_b32 s17, s7, 0xffff")
    a.vmem("buffer_load_dwordx4 v50, s[16:19], s26 offen nt lds", "job")
    a("""
    s_setprio {PRIO}
    s_mul_i32 s25, s39, {WPH}
    s_add_u32 s25, s25, {WPO}
    s_add_u32 m0, s48, 1024
    s_mov_b64 s[64:65], -1
    s_cmp_ge_u32 s14, 2
    s_cbranch_scc1 A_JOB_O
    s_add_u32 s24, s24, 64
    """.format(PRIO=PRIO_A, WPH=WP_H, WPO=hex(WP_OFF)))
    wp_src("s24", "s20", "s21", "s26")
    a("s_cmp_lt_u32 s24, 84")
    a("s_cselect_b32 s18, s18, 0")
    a("buffer_load_dwordx4 v50, s[16:19], s26 offen nt lds")
    wp_dst("s20", "s21", "s67")
    a("""
    s_cmp_lt_u32 s24, 84
    s_cselect_b32 s67, s67, 0x08000000
    s_mov_b32 s66, 9
    s_branch A_JOB_GO
    A_JOB_O:
    s_lshl_b32 s20, s38, 1
    s_add_u32 s20, s20, s14
    s_sub_u32 s20, s20, 2
    s_mov_b32 s66, 8
    v_mov_b32 v54, {BIG}
    s_cmp_ge_u32 s20, 28
    s_cbranch_scc1 A_JOB_PHI
    s_mov_b32 s16, s10
    s_and_b32 s17, s11, 0xffff
    s_mov_b32 s18, {WOSZ}
    s_cmp_ge_u32 s20, 14
    s_cselect_b32 s21, 1, 0
    s_cselect_b32 s23, 12, 16
    s_mul_i32 s22, s21, 14
    s_sub_u32 s20, s20, s22
    s_mul_i32 s26, s39, 28
    s_lshl_b32 s22, s21, 4
    s_add_u32 s26, s26, s22
    s_mul_i32 s26, s26, 896
    s_lshl_b32 s22, s20, 6
    v_cmp_gt_u32 vcc, s23, v51
    v_mul_u32_u24 v50, 896, v51
    v_add_u32 v50, v50, v52
    s_add_u32 s26, s26, s22
    v_cndmask_b32 v50, v54, v50, vcc
    buffer_load_dwordx4 v50, s[16:19], s26 offen nt lds
    s_lshr_b32 s22, s20, 1
    s_mul_i32 s67, s22, {UPG}
    s_and_b32 s22, s20, 1
    s_lshl_b32 s22, s22, 10
    s_add_u32 s67, s67, s22
    s_lshl_b32 s22, s39, 1
    s_add_u32 s22, s22, s21
    s_lshl_b32 s22, s22, 11
    s_add_u32 s67, s67, s22
    s_add_u32 s67, s67, {BASE}
    s_branch A_JOB_GO
    A_JOB_PHI:
    s_mov_b32 s16, s8
    s_and_b32 s17, s9, 0xffff
    s_sub_u32 s21, s20, 28
    s_cmp_lt_u32 s21, 2
    s_cselect_b32 s18, 25088, 0
    s_cmp_eq_u32 s21, 1
    s_cselect_b32 s23, 12, 16
    s_mul_i32 s26, s39, 1568
    s_mul_i32 s22, s21, 896
    v_cmp_gt_u32 vcc, s23, v51
    v_mul_u32_u24 v50, 56, v51
    v_add_u32 v50, v50, v52
    s_add_u32 s26, s26, s22
    v_cndmask_b32 v50, v54, v50, vcc
    buffer_load_dwordx4 v50, s[16:19], s26 offen nt lds
    s_lshl_b32 s67, s21, 10
    s_add_u32 s67, s67, s25
    s_add_u32 s67, s67, {PHI}
    s_cmp_lt_u32 s21, 2
    s_cselect_b32 s67, s67, 0x08000000
    s_mov_b64 s[64:65], s[58:59]
    A_JOB_GO:
    """.format(BIG=hex(BIG), WOSZ=448 * 896, UPG=UP_G, BASE=hex(UP_OFF + 112 * 2048), PHI=WP_PHI))
    a.vm.issue("job")
    wp_dst("s50", "s51", "s27")
    ws_base(a)
    srd(a, WS, 30, hex(WS_USED))
    srd(a, DBG, 28, "256")
    a("""
    v_and_b32 v{LN}, 63, v0
    v_bfe_u32 v{VH}, v0, 5, 1
    v_mov_b32 v{VZ}, 0
    v_lshlrev_b32 v{VA}, 4, v{LN}
    v_mul_u32_u24 v{VB}, 448, v{VH}
    v_lshl_add_u32 v{VB}, v{VC}, 4, v{VB}
    v_mov_b32 v54, {BIG}
    v_cndmask_b32 v52, v54, v{VB}, s[58:59]
    s_cmp_ge_u32 s14, 2
    s_cselect_b64 vcc, -1, 0
    v_cndmask_b32 v53, v52, v{VA}, vcc
    v_bfe_u32 v50, v0, 2, 2
    v_lshlrev_b32 v50, 6, v50
    v_bfe_u32 v51, v0, 4, 1
    v_lshl_add_u32 v50, v51, 5, v50
    v_and_b32 v51, 3, v0
    v_lshl_add_u32 v50, v51, 3, v50
    v_add_u32 v50, s48, v50
    v_lshlrev_b32 v51, s66, v{VH}
    v_add_u32 v51, v51, v50
    s_sub_u32 s66, 17, s66
    s_lshl_b32 s66, 1, s66
    v_add_u32 v55, s66, v51
    v_lshl_add_u32 v50, v{VH}, 9, v50
    """.format(LN=LN, VH=VH, VZ=VZ, VA=VA, VB=VB, VC=VC, BIG=hex(BIG)))
    J = 56
    P, X, T = 8, 16, 32
    def unpack(dst, src):
        for i in range(8):
            a("v_lshlrev_b32 v%d, 16, v%d" % (dst + 2 * i, src + i))
            a("v_and_b32 v%d, 0xffff0000, v%d" % (dst + 2 * i + 1, src + i))
    def pack(dst, src):
        for i in range(8): a("v_cvt_pk_bf16_f32 v%d, v%d, v%d" % (dst + i, src + 2 * i, src + 2 * i + 1))
    def pksum(dst, src):
        a("v_pk_add_f32 %s, %s, %s" % (vr(dst, 2), vr(src, 2), vr(src + 2, 2)))
        a("v_pk_add_f32 %s, %s, %s" % (vr(dst + 2, 2), vr(src + 4, 2), vr(src + 6, 2)))
        for i in (8, 12):
            a("v_pk_add_f32 %s, %s, %s" % (vr(dst, 2), vr(dst, 2), vr(src + i, 2)))
            a("v_pk_add_f32 %s, %s, %s" % (vr(dst + 2, 2), vr(dst + 2, 2), vr(src + i + 2, 2)))
        a("v_pk_add_f32 %s, %s, %s" % (vr(dst, 2), vr(dst, 2), vr(dst + 2, 2)))
        a("v_add_f32 v%d, v%d, v%d" % (dst, dst, dst + 1))
    def pksq(dst, src):
        a("v_pk_mul_f32 %s, %s, %s" % (vr(dst, 2), vr(src, 2), vr(src, 2)))
        a("v_pk_mul_f32 %s, %s, %s" % (vr(dst + 2, 2), vr(src + 2, 2), vr(src + 2, 2)))
        for i in (4, 8, 12):
            a("v_pk_fma_f32 %s, %s, %s, %s" % (vr(dst, 2), vr(src + i, 2), vr(src + i, 2), vr(dst, 2)))
            a("v_pk_fma_f32 %s, %s, %s, %s" % (vr(dst + 2, 2), vr(src + i + 2, 2), vr(src + i + 2, 2), vr(dst + 2, 2)))
        a("v_pk_add_f32 %s, %s, %s" % (vr(dst, 2), vr(dst, 2), vr(dst + 2, 2)))
        a("v_add_f32 v%d, v%d, v%d" % (dst, dst, dst + 1))
    def pksub(dst, src, m):
        for i in range(0, 16, 2):
            a("v_pk_add_f32 %s, %s, %s op_sel_hi:[1,0] neg_lo:[0,1] neg_hi:[0,1]" % (vr(dst + i, 2), vr(src + i, 2), vr(m, 2)))
    def pkmul(dst, src, m):
        for i in range(0, 16, 2): a("v_pk_mul_f32 %s, %s, %s op_sel_hi:[1,0]" % (vr(dst + i, 2), vr(src + i, 2), vr(m, 2)))
    def scale_from_var(r):
        round_bf16(a, r, r)
        a("v_add_f32 v%d, %s, v%d" % (r, f32(1e-5), r))
        round_bf16(a, r, r)
        a("v_sqrt_f32 v%d, v%d" % (r, r))
        a("s_nop 0")
        round_bf16(a, r, r)
        a("v_rcp_f32 v%d, v%d" % (r, r))
    inv = f32(1.0 / 448.0)
    S, S2, M, RS_, C2, D2 = 72, 76, 80, 82, 84, 86
    HB, HP = 7168, 912
    a("""
    v_lshl_add_u32 v5, v2, 4, v3
    v_bfe_u32 v88, v{LN}, 2, 2
    v_mul_u32_u24 v88, {HP}, v88
    v_lshrrev_b32 v89, 4, v{LN}
    v_lshl_add_u32 v88, v89, 5, v88
    v_and_b32 v89, 3, v{LN}
    v_lshl_add_u32 v88, v89, 3, v88
    s_lshl_b32 s20, s14, 7
    v_add_u32 v88, s20, v88
    v_lshlrev_b32 v92, 10, v{VH}
    v_lshl_add_u32 v92, v{VC}, 4, v92
    v_and_b32 v89, 7, v{LN}
    v_lshrrev_b32 v90, 3, v{LN}
    s_lshl_b32 s20, s14, 3
    v_add_u32 v90, s20, v90
    v_mul_u32_u24 v91, 896, v89
    v_lshl_add_u32 v91, v90, 4, v91
    v_lshlrev_b32 v89, 4, v89
    v_lshl_add_u32 v89, v90, 9, v89
    s_lshr_b32 s20, s15, 2
    s_mul_i32 s20, s20, 28672
    s_and_b32 s21, s15, 3
    s_lshl_b32 s21, s21, 7
    s_add_u32 s20, s20, s21
    s_lshl_b32 s21, s14, 18
    s_lshr_b32 s22, s15, 1
    s_lshl_b32 s22, s22, 11
    s_add_u32 s21, s21, s22
    s_and_b32 s22, s15, 1
    s_lshl_b32 s22, s22, 9
    s_add_u32 s21, s21, s22
    s_add_u32 s21, s21, {HTO}
    s_cmp_eq_u32 s14, 3
    s_cselect_b32 s23, 0x08000000, 0
    s_add_u32 s22, s21, {HG4}
    s_or_b32 s22, s22, s23
    s_add_u32 s24, s20, 16384
    s_or_b32 s24, s24, s23
    s_lshl_b32 s40, s39, 8
    s_add_u32 s40, s40, {SY}
    s_lshl_b32 s41, s38, 8
    s_add_u32 s41, s41, {SY}
    """.format(LN=LN, VH=VH, VC=VC, HP=HP, HG4=4 * HT_G, HTO=hex(HT_OFF), SY=hex(SYNC_OFF)))
    assert XN_OFF == 0 and HT_G == 1 << 18
    stamp(a, 1)
    a.wait(vm="x")
    a("s_cmp_lg_u32 s63, 0")
    a("s_cbranch_scc1 A_NOZ2")
    a("s_mov_b32 s62, 1")
    a("s_waitcnt vmcnt(0)")
    a("s_atomic_add s62, s[28:29], 0x0")
    a.label("A_NOZ2")
    stamp(a, 2)
    unpack(X, P)
    pksum(S, X)
    a("v_cndmask_b32 v%d, 0, v%d, s[58:59]" % (S, S))
    def job_reads():
        a.wait(vm="job")
        a.ds("ds_read_b64_tr_b16 %s, v50" % vr(J, 2), "j0")
        a.ds("ds_read_b64_tr_b16 %s, v50 offset:256" % vr(J + 2, 2), "j0")
        a.ds("ds_read_b64_tr_b16 %s, v51 offset:1024" % vr(J + 4, 2), "j1")
        a.ds("ds_read_b64_tr_b16 %s, v55 offset:1024" % vr(J + 6, 2), "j1")
    def job_stores():
        a.drain(vm=False)
        a.vmem("buffer_store_dwordx4 %s, v52, s[32:35], s27 offen sc1" % vr(J, 4))
        for i in range(4): a("v_cndmask_b32 v%d, 0, v%d, s[64:65]" % (J + 4 + i, J + 4 + i))
        a.vmem("buffer_store_dwordx4 %s, v53, s[32:35], s67 offen sc1" % vr(J + 4, 4))
    if not JOBLATE: job_reads()
    half_reduce(a, [S], [S + 1])
    if not JOBLATE: job_stores()
    a("v_mul_f32 v%d, %s, v%d" % (S, inv, S))
    round_bf16(a, M, S)
    pksub(X, X, M)
    pksq(S2, X)
    a("v_sub_f32 v%d, v%d, v%d" % (S, S, M))
    a("v_cndmask_b32 v%d, 0, v%d, s[58:59]" % (S2, S2))
    half_reduce(a, [S2], [S2 + 1])
    a("v_mul_f32 v%d, %s, v%d" % (S2, inv, S2))
    a("v_fma_f32 v%d, -v%d, v%d, v%d" % (S2, S, S, S2))
    a("v_max_f32 v%d, 0, v%d" % (S2, S2))
    a("v_mov_b32 v%d, v%d" % (RS_, S2))
    scale_from_var(RS_)
    a("s_nop 0")
    a("v_mul_f32 v%d, v%d, v%d" % (C2, S2, RS_))
    a("v_mul_f32 v%d, v%d, v%d" % (D2, S, RS_))
    a("v_mul_f32 v%d, v%d, v%d" % (C2, C2, RS_))
    round_bf16(a, D2, D2)
    pkmul(T, X, RS_)
    scale_from_var(C2)
    pack(P, T)
    a.ds("ds_write_b128 v3, v[8:11]")
    a.ds("ds_write_b128 v3, v[12:15] offset:16")
    a("v_mul_f32 v%d, v%d, v%d" % (D2, D2, C2))
    for i in range(0, 16, 2):
        a("v_pk_fma_f32 %s, %s, %s, %s op_sel_hi:[1,0,0] neg_lo:[0,0,1] neg_hi:[0,0,1]" % (vr(T + i, 2), vr(T + i, 2), vr(C2, 2), vr(D2, 2)))
    pack(X, T)
    a.ds("ds_write_b128 v5, v[16:19] offset:%d" % HB)
    a.ds("ds_write_b128 v5, v[20:23] offset:%d" % (HB + 16))
    stamp(a, 3)
    a.drain(vm=False)
    a("s_barrier")
    a.ds("ds_read_b64_tr_b16 v[28:29], v88 offset:%d" % HB, "h0")
    a.ds("ds_read_b64_tr_b16 v[30:31], v88 offset:%d" % (HB + 4 * HP), "h0")
    a.ds("ds_read_b128 v[36:39], v91", "x0")
    a.ds("ds_read_b64_tr_b16 v[32:33], v88 offset:%d" % (HB + 512), "h1")
    a.ds("ds_read_b64_tr_b16 v[34:35], v88 offset:%d" % (HB + 512 + 4 * HP), "h1")
    a.ds("ds_read_b128 v[40:43], v91 offset:512", "x1")
    a.wait(lg="h0"); a.vmem("buffer_store_dwordx4 v[28:31], v92, s[32:35], s21 offen sc1")
    a.wait(lg="x0"); a.vmem("buffer_store_dwordx4 v[36:39], v89, s[32:35], s20 offen sc1")
    a.wait(lg="h1"); a.vmem("buffer_store_dwordx4 v[32:35], v92, s[32:35], s22 offen sc1")
    a.wait(lg="x1"); a.vmem("buffer_store_dwordx4 v[40:43], v89, s[32:35], s24 offen sc1")
    if JOBLATE: job_reads(); job_stores()
    a.vmem("buffer_load_dword v%d, v%d, s[44:47], 0 offen sc1" % (VT, VZ), "ready")
    a("""
    s_lshl_b32 s36, s38, 2
    s_add_u32 s36, s36, s14
    s_mul_i32 s24, s36, 28672
    s_lshl_b32 s26, s14, 10
    s_add_u32 s25, s25, s26
    v_add_u32 v{VD}, 0x8000, v{VB}
    """.format(VB=VB, VD=VD))
    a.drain()
    stamp(a, 4)
    a("s_barrier")
    AQ, AK, AV = 0, 16, 32
    XF, WF, PH = 64, 176, 208
    a("s_cmp_ge_u32 s14, 2")
    a("s_cbranch_scc1 A_GO")
    a("v_readfirstlane_b32 s61, v%d" % VT)
    a("s_cmp_lg_u32 s61, 0")
    a("s_cbranch_scc1 A_RDY")
    poll(a, DBG, "0", VZ, VT)
    a.label("A_RDY")
    a("s_cmp_eq_u32 s14, 0")
    a("s_cselect_b32 s20, s41, s40")
    a("s_cselect_b32 s21, %d, %d" % (SX_CNT * SL, SW_CNT * SL))
    a("s_add_u32 s20, s20, s21")
    arrive_issue(a, "s20")
    a.drain(vm=False)
    assert SX_REL - SX_CNT == SW_REL - SW_CNT
    a("s_cmp_lg_u32 s62, 15")
    a("s_cbranch_scc1 A_WAIT")
    a("s_mov_b32 s62, 1")
    a("s_atomic_add s62, s[30:31], s20 offset:%d" % ((SX_REL - SX_CNT) * SL))
    a("s_cmp_lg_u32 s14, 0")
    a("s_cbranch_scc1 A_GO")
    a("s_mov_b32 s20, %s" % hex(SYNC_OFF + SA_REP * SL))
    a("s_mov_b32 s63, 1")
    a("s_atomic_add s63, s[30:31], s20 offset:%d glc" % ((SA_ROOT - SA_REP) * SL))
    a.drain(vm=False)
    a("s_cmp_lg_u32 s63, 15")
    a("s_cbranch_scc1 A_GO")
    for i in range(8): a("s_atomic_add s62, s[30:31], s20 offset:%d" % (i * SL))
    a("s_branch A_GO")
    a.label("A_WAIT")
    a("s_add_u32 s20, s20, %d" % ((SX_REL - SX_CNT) * SL))
    poll(a, WS, "s20", VZ, VT, sleep=PSL)
    a.label("A_GO")
    stamp(a, 5)
    a("s_barrier")
    stamp(a, 6)
    def wdma(r, tag):
        a("s_add_u32 m0, s26, %d" % (r * 4096))
        a("s_add_u32 s28, s25, %d" % (r * 4096))
        a.vmem("buffer_load_dwordx4 v%d, s[32:35], s28 offen sc1 lds" % VA, tag)
    def xload(k):
        if k % 4 == 0 and k > 0: a("s_add_u32 s24, s24, 4096")
        a.vmem("buffer_load_dwordx4 %s, v%d, s[32:35], s24 offen offset:%d sc1" % (vr(XF + 4 * k, 4), VA, (k % 4) * 1024), "x%d" % k)
    cuts = [0, 6, 13, 20, 28]; rnds = [0, 3, 6, 9, 13]
    seq = []
    for c in range(4):
        seq += [(lambda r=r, c=c: wdma(r, "wc%d" % c)) for r in range(rnds[c], rnds[c + 1])]
        seq += [(lambda k=k: xload(k)) for k in range(cuts[c], cuts[c + 1])]
    seq += [(lambda r=r: wdma(r, "wq")) for r in (18, 13, 14, 15, 16, 17)]
    for f in seq[:XPRE]: f()
    pend = seq[XPRE:]
    def lread(dst, off, tag, base=None):
        if off < 65536: a.ds("ds_read_b128 %s, v%d offset:%d" % (vr(dst, 4), VB, off), tag)
        else: a.ds("ds_read_b128 %s, v%d offset:%d" % (vr(dst, 4), VD, off - 32768), tag)
    def wread(k):
        b = WF + 8 * (k % 3)
        lread(b, k * 1792, "w%d" % k); lread(b + 4, k * 1792 + 896, "w%d" % k)
    for c in range(4):
        k0, k1 = cuts[c], cuts[c + 1]
        assert k1 * 1792 + 64 <= rnds[c + 1] * 4096
        assert sum(1 for t_ in a.issued if t_ == "wc%d" % c) == rnds[c + 1] - rnds[c]
        a.wait(vm="wc%d" % c)
        a("s_barrier")
        wread(k0); wread(k0 + 1)
        for k in range(k0, k1):
            if k + 2 < k1: wread(k + 2)
            assert "x%d" % k in a.issued
            a.wait(vm="x%d" % k, lg="w%d" % k)
            b = WF + 8 * (k % 3); x = vr(XF + 4 * k, 4)
            a("%s %s, %s, %s, %s" % (MF, vr(AK, 16), vr(b, 4), x, "0" if k == 0 else vr(AK, 16)))
            if pend and len(a.vm.ops) < ALOOK: pend.pop(0)()
            a("%s %s, %s, %s, %s" % (MF, vr(AV, 16), x, vr(b + 4, 4), "0" if k == 0 else vr(AV, 16)))
            while pend and len(a.vm.ops) < min(ALOOK, 12): pend.pop(0)()
            if pend and len(a.vm.ops) < ALOOK: pend.pop(0)()
    for f in pend: f()
    pend = []
    assert not pend
    a.drain(lg=False)
    a("s_barrier")
    a("v_add_u32 v2, 0x8000, v%d" % VA)
    a.ds("ds_read_b128 %s, v2 offset:%d" % (vr(PH, 4), WP_PHI - 32768), "ph")
    a.ds("ds_read_b128 %s, v2 offset:%d" % (vr(PH + 4, 4), WP_PHI + 1024 - 32768), "ph")
    stamp(a, 7)
    PKK, PKV = 48, 56
    PP = 216; EP, EM = 16, 32; OUT = 176; S0 = 192; TA = S0 + 12
    a("""
    s_mov_b32 s56, 0
    s_mov_b32 s57, -1
    s_mov_b32 s37, {L2E}
    v_mul_u32_u24 v{t}, 136, v{VC}
    v_lshl_add_u32 v{t}, v{VH}, 3, v{t}
    s_mul_i32 s28, s14, 4352
    v_add_u32 v{t}, s28, v{t}
    s_lshl_b32 s28, s14, 11
    v_add_u32 v{u}, s28, v{VA}
    v_cmp_eq_u32 vcc, 28, v{VC}
    v_mov_b32 v{S0}, 0x3f803f80
    """.format(L2E=f32(1.4426950408889634), t=TA, u=TA + 1, VC=VC, VH=VH, VA=VA, S0=S0))
    for r in range(8): a("v_cvt_pk_bf16_f32 v%d, v%d, v%d" % (PKK + r, AK + 2 * r, AK + 2 * r + 1))
    a("v_cndmask_b32 v%d, 0, v%d, vcc" % (S0, S0))
    a.wait(lg="ph")
    a("%s %s, %s, %s, 0" % (MF, vr(PP, 16), vr(PH, 4), vr(PKK, 4)))
    a("%s %s, %s, %s, %s" % (MF, vr(PP, 16), vr(PH + 4, 4), vr(PKK + 4, 4), vr(PP, 16)))
    for r in range(8): a("v_cvt_pk_bf16_f32 v%d, v%d, v%d" % (PKV + r, AV + 2 * r, AV + 2 * r + 1))
    for r in range(8): a("v_cndmask_b32 v%d, v%d, v%d, s[58:59]" % (PKV + r, S0, PKV + r))
    a.ds("ds_write_b128 v%d, %s offset:17408" % (TA + 1, vr(PKV, 4)))
    a.ds("ds_write_b128 v%d, %s offset:%d" % (TA + 1, vr(PKV + 4, 4), 17408 + 1024))

    def softmax2(P, sink=None):
        mx, mn, t0, t1, t2, t3 = S0, S0 + 1, S0 + 2, S0 + 3, S0 + 4, S0 + 5
        for op, m, t in (("max", mx, t0), ("min", mn, t1)):
            a("v_%s3_f32 v%d, v%d, v%d, v%d" % (op, t, P + 12, P + 13, P + 14))
            a("v_%s3_f32 v%d, v%d, v%d, v%d" % (op, m, P, P + 1, P + 2))
            a("v_%s_f32 v%d, v%d, v%d" % (op, t, t, P + 15))
            for i in range(3, 11, 2): a("v_%s3_f32 v%d, v%d, v%d, v%d" % (op, m, m, P + i, P + i + 1))
            a("v_cndmask_b32 v%d, v%d, v%d, s[56:57]" % (t, t, P))
            a("v_%s3_f32 v%d, v%d, v%d, v%d" % (op, m, m, P + 11, t))
        a("v_mov_b32 v%d, v%d" % (t0, mx))
        a("v_mov_b32 v%d, v%d" % (t1, mn))
        a("v_mov_b32 v%d, 0x7f800000" % t2)
        a("v_mov_b32 v%d, 0xff800000" % t3)
        a("v_permlane32_swap_b32 v%d, v%d" % (mx, t0))
        a("v_permlane32_swap_b32 v%d, v%d" % (mn, t1))
        a("s_nop 0")
        a("v_max_f32 v%d, v%d, v%d" % (mx, mx, t0))
        a("v_min_f32 v%d, v%d, v%d" % (mn, mn, t1))
        a("v_mul_f32 v%d, s37, v%d" % (mx, mx))
        a("v_mul_f32 v%d, s37, v%d" % (mn, mn))
        a("v_cndmask_b32 v%d, v%d, v%d, s[56:57]" % (t2, mx, t2))
        a("v_cndmask_b32 v%d, v%d, v%d, s[56:57]" % (t3, mn, t3))
        for r in range(16):
            a("v_fma_f32 v%d, v%d, s37, -v%d" % (EP + r, P + r, mx if r < 12 else t2))
            a("v_fma_f32 v%d, -v%d, s37, v%d" % (EM + r, P + r, mn if r < 12 else t3))
        for r in range(16):
            a("v_exp_f32 v%d, v%d" % (EP + r, EP + r))
            a("v_exp_f32 v%d, v%d" % (EM + r, EM + r))
            if r == 2:
                a("v_add_f32 v%d, v%d, v%d" % (mx, EP, EP + 1))
                a("v_add_f32 v%d, v%d, v%d" % (mn, EM, EM + 1))
            if r > 2:
                a("v_add_f32 v%d, v%d, v%d" % (mx, mx, EP + r - 1))
                a("v_add_f32 v%d, v%d, v%d" % (mn, mn, EM + r - 1))
        a("v_add_f32 v%d, v%d, v%d" % (mx, mx, EP + 15))
        a("v_add_f32 v%d, v%d, v%d" % (mn, mn, EM + 15))
        a("v_mov_b32 v%d, v%d" % (t0, mx))
        a("v_mov_b32 v%d, v%d" % (t1, mn))
        a("s_nop 1")
        a("v_permlane32_swap_b32 v%d, v%d" % (mx, t0))
        a("v_permlane32_swap_b32 v%d, v%d" % (mn, t1))
        a("s_nop 0")
        a("v_add_f32 v%d, v%d, v%d" % (mx, mx, t0))
        a("v_add_f32 v%d, v%d, v%d" % (mn, mn, t1))
        a("v_rcp_f32 v%d, v%d" % (mx, mx))
        a("v_rcp_f32 v%d, v%d" % (mn, mn))
        for e, (E_, m) in enumerate(((EP, mx), (EM, mn))):
            for q in range(4):
                for r in range(4): a("v_mul_f32 v%d, v%d, v%d" % (E_ + 4 * q + r, E_ + 4 * q + r, m))
                for r in range(2): a("v_cvt_pk_bf16_f32 v%d, v%d, v%d" % (OUT + 8 * e + 2 * q + r, E_ + 4 * q + 2 * r, E_ + 4 * q + 2 * r + 1))
                if sink: sink(e, q)

    softmax2(PP, lambda e, q: a.ds("ds_write_b64 v%d, %s offset:%d" % (TA, vr(OUT + 8 * e + 2 * q, 2), e * 64 + q * 16)))
    a("""
    v_lshlrev_b32 v{t}, 2, v{VH}
    v_bfe_u32 v{u}, v{LN}, 2, 2
    v_add_u32 v{t}, v{t}, v{u}
    v_mul_u32_u24 v{t}, 136, v{t}
    v_bfe_u32 v{u}, v{LN}, 4, 1
    v_lshl_add_u32 v{t}, v{u}, 5, v{t}
    v_and_b32 v{u}, 3, v{LN}
    v_lshl_add_u32 v{t}, v{u}, 3, v{t}
    s_lshl_b32 s28, s14, 6
    v_add_u32 v{t}, s28, v{t}
    s_lshl_b32 s42, s39, 16
    s_add_u32 s42, s42, {KVP}
    s_lshl_b32 s28, s38, 10
    s_lshl_b32 s29, s14, 15
    s_add_u32 s28, s28, s29
    s_add_u32 s28, s28, s42
    s_add_u32 s29, s28, 16384
    """.format(t=TA + 2, u=TA + 3, LN=LN, VH=VH, KVP=hex(KVP_OFF)))
    a.drain(vm=False)
    a("s_barrier")
    stamp(a, 8)
    a("s_cmp_ge_u32 s14, 2")
    a("s_cbranch_scc1 A_QPASS")
    KVA = 232
    for w in range(4):
        for i in range(2):
            n_ = 2 * w + i
            a.ds("ds_read_b64_tr_b16 %s, v%d offset:%d" % (vr(4 * n_, 2), TA + 2, w * 4352 + (16 * i) * 136), "kv%d" % n_)
            a.ds("ds_read_b64_tr_b16 %s, v%d offset:%d" % (vr(4 * n_ + 2, 2), TA + 2, w * 4352 + (16 * i + 8) * 136), "kv%d" % n_)
            a.ds("ds_read_b128 %s, v%d offset:%d" % (vr(32 + 4 * n_, 4), VA, 17408 + w * 2048 + i * 1024), "kv%d" % n_)
    for n_ in range(8):
        a.wait(lg="kv%d" % n_)
        a("%s %s, %s, %s, %s" % (MF, vr(KVA, 16), vr(4 * n_, 4), vr(32 + 4 * n_, 4), "0" if n_ == 0 else vr(KVA, 16)))
    a("s_nop 11")
    for i in range(2):
        for r in range(4): a("v_cvt_pk_bf16_f32 v%d, v%d, v%d" % (PKV + 4 * i + r, KVA + 8 * i + 2 * r, KVA + 8 * i + 2 * r + 1))
        a("buffer_store_dwordx4 %s, v%d, s[32:35], %s offen sc1" % (vr(PKV + 4 * i, 4), VA, "s29" if i else "s28"))
    a.label("A_QPASS")
    a("s_setprio %d" % PRIO_Q)
    a("s_mov_b32 s62, 0")
    QB = 16
    def qread(k): lread(QB + 4 * (k % 8), WP_Q + k * 896, "q%d" % k)
    for k in range(4): qread(k)
    for k in range(28):
        if k + 4 < 28: qread(k + 4)
        a.wait(lg="q%d" % k)
        a("%s %s, %s, %s, %s" % (MF, vr(AQ, 16), vr(QB + 4 * (k % 8), 4), vr(XF + 4 * k, 4), "0" if k == 0 else vr(AQ, 16)))
        if k == E("S1K", 13):
            a("s_cmp_ge_u32 s14, 2")
            a("s_cbranch_scc1 A_NOARR")
            a.drain(lg=False)
            arrive_issue(a, "s40 offset:%d" % (S1_CNT * SL))
            a.label("A_NOARR")
    arrive_finish(a, 31, ["s40 offset:%d" % (S1_REL * SL)], "A_S1_NR")
    a.label("A_S1_NR")
    a("s_nop 9")
    for r in range(8): a("v_cvt_pk_bf16_f32 v%d, v%d, v%d" % (PKK + r, AQ + 2 * r, AQ + 2 * r + 1))
    a("s_nop 1")
    a("%s %s, %s, %s, 0" % (MF, vr(PP, 16), vr(PH, 4), vr(PKK, 4)))
    a("%s %s, %s, %s, %s" % (MF, vr(PP, 16), vr(PH + 4, 4), vr(PKK + 4, 4), vr(PP, 16)))
    a("s_nop 11")
    softmax2(PP)
    stamp(a, 9)
    SEL, KS, KVB, OD = 48, 0, 16, 32
    a("""
    s_setprio {PRIO}
    v_and_b32 v52, 3, v{VC}
    v_bfe_u32 v53, v{VC}, 3, 1
    v_lshl_add_u32 v52, v53, 2, v52
    v_and_b32 v53, 1, v52
    v_lshlrev_b32 v53, 4, v53
    v_mov_b32 v54, 0x3f80
    v_lshlrev_b32 v53, v53, v54
    v_lshrrev_b32 v52, 1, v52
    v_bfe_u32 v54, v{VC}, 2, 1
    v_xor_b32 v54, v54, v{VH}
    v_lshrrev_b32 v55, 4, v{VC}
    v_or_b32 v54, v54, v55
    v_lshl_add_u32 v52, v54, 2, v52
    s_lshl_b32 s28, s14, 14
    s_add_u32 s28, s28, s42
    s_add_u32 s41, s40, {REL}
    s_lshl_b32 s29, s14, 10
    v_add_u32 v55, s29, v{VA}
    """.format(PRIO=PRIO_K, VC=VC, VH=VH, VA=VA, REL=S1_REL * SL))
    for d in range(4):
        a("v_cmp_eq_u32 vcc, %d, v52" % d)
        a("s_nop 1")
        a("v_cndmask_b32 v%d, 0, v53, vcc" % (SEL + d))
    a("s_cmp_lg_u32 s14, 3")
    a("s_cbranch_scc1 A_S1_OK")
    poll(a, WS, "s41", VZ, VT, sleep=PSL)
    a.label("A_S1_OK")
    a("s_barrier")
    stamp(a, 10)
    for m in range(16):
        if m % 4 == 0 and m: a("s_add_u32 s28, s28, 4096")
        a.vmem("buffer_load_dwordx4 %s, v%d, s[32:35], s28 offen offset:%d sc1" % (vr(64 + 4 * m, 4), VA, (m % 4) * 1024), "p%d" % m)
    a("""
    s_lshl_b32 s28, s36, 15
    s_lshl_b32 s29, s39, 11
    s_add_u32 s28, s28, s29
    s_add_u32 s28, s28, {OFO}
    s_lshr_b32 s40, s36, 1
    s_lshl_b32 s40, s40, 8
    s_add_u32 s40, s40, {SY}
    """.format(OFO=hex(OF_OFF), SY=hex(SYNC_OFF)))
    for m in range(16):
        a.wait(vm="p%d" % m)
        a("%s %s, %s, %s, %s" % (MF, vr(KS, 16), vr(SEL, 4), vr(64 + 4 * m, 4), "0" if m == 0 else vr(KS, 16)))
    a("s_nop 11")
    for r in range(4): a("v_cvt_pk_bf16_f32 v%d, v%d, v%d" % (KVB + r, KS + 2 * r, KS + 2 * r + 1))
    a.ds("ds_write_b128 v55, %s" % vr(KVB, 4))
    a.drain(vm=False)
    a("s_barrier")
    for n_ in range(4): a.ds("ds_read_b128 %s, v%d offset:%d" % (vr(KVB + 4 * n_, 4), VA, n_ * 1024), "kvl%d" % n_)
    for n_ in range(4):
        a.wait(lg="kvl%d" % n_)
        a("%s %s, %s, %s, %s" % (MF, vr(OD, 16), vr(KVB + 4 * n_, 4), vr(OUT + 4 * n_, 4), "0" if n_ == 0 else vr(OD, 16)))
    a("""
    s_nop 11
    v_mov_b32 v0, v{D12}
    v_mov_b32 v2, v{D12}
    s_nop 1
    v_permlane32_swap_b32 v0, v2
    s_nop 0
    v_add_f32 v2, {EPS}, v2
    v_rcp_f32 v2, v2
    s_nop 0
    """.format(D12=OD + 12, EPS=f32(1e-6)))
    for i in range(2):
        for r in range(8): a("v_mul_f32 v%d, v%d, v2" % (OD + 8 * i + r, OD + 8 * i + r))
        for r in range(4): a("v_cvt_pk_bf16_f32 v%d, v%d, v%d" % (KVB + 4 * i + r, OD + 8 * i + 2 * r, OD + 8 * i + 2 * r + 1))
        a.vmem("buffer_store_dwordx4 %s, v%d, s[32:35], s28 offen offset:%d sc1" % (vr(KVB + 4 * i, 4), VA, i * 1024))
    a.drain(lg=False)
    arrive_issue(a, "s40 offset:%d" % (S2_CNT * SL))
    arrive_finish(a, 31, ["s40 offset:%d" % (S2_REL * SL)], "A_FIN")
    a.label("A_FIN")
    stamp_flush(a, 11, 4, "A")
    a("s_endpgm")

class G:
    ACC = 0; B = 64; F = 64 + 8 * NB
    W0 = 232; W1 = 233; FA = 234; FB = 235; LA = 236; LB = 237
    LN = 238; L16 = 239; RES = 240
    VX = 248; VB2 = 249; VZ = 250; VT = 251; T0 = 252; T1 = 253; T2 = 254
assert G.F + 8 * NF <= 232
SLDS = 50
SJ = [6, 7, 8, 9, 10, 11, 48, 49]
SC = [51, 15, 59, 3]

def g_waddr(a, RS, scol):
    a("""
    v_lshrrev_b32 v{T0}, 3, v{L}
    v_mul_u32_u24 v{W0}, {RS}, v{T0}
    v_lshrrev_b32 v{T1}, 2, v{L}
    v_and_b32 v{T1}, 4, v{T1}
    v_and_b32 v{T2}, 7, v{L}
    v_xor_b32 v{T1}, v{T1}, v{T2}
    v_lshl_add_u32 v{W0}, v{T1}, 4, v{W0}
    v_add_u32 v{W0}, {scol}, v{W0}
    v_add_u32 v{W1}, {RS8}, v{W0}
    """.format(T0=G.T0, T1=G.T1, T2=G.T2, L=G.LN, W0=G.W0, W1=G.W1, RS=RS, RS8=8 * RS, scol=scol))
def g_laddr(a, perm2):
    a("""
    v_bfe_u32 v{T0}, v{L}, 4, 1
    v_lshrrev_b32 v{T1}, 5, v{L}
    v_lshlrev_b32 v{LA}, {HS}, v{T1}
    v_lshl_add_u32 v{LA}, v{T0}, 5, v{LA}
    v_bfe_u32 v{T1}, v{L}, 2, 2
    v_lshl_add_u32 v{LA}, v{T1}, 7, v{LA}
    v_lshrrev_b32 v{T1}, 1, v{T1}
    v_lshl_add_u32 v{LA}, v{T1}, 6, v{LA}
    v_and_b32 v{T1}, 3, v{L}
    v_lshl_add_u32 v{LA}, v{T1}, 3, v{LA}
    s_lshl_b32 s36, s14, 5
    s_and_b32 s36, s36, 64
    v_xor_b32 v{LA}, s36, v{LA}
    v_add_u32 v{LA}, s{SLDS}, v{LA}
    v_xor_b32 v{LB}, 64, v{LA}
    """.format(T0=G.T0, T1=G.T1, L=G.LN, LA=G.LA, LB=G.LB, HS=(9 if perm2 else 10), SLDS=SLDS))

class Stream:
    def __init__(self, a, name, srdw, RS, NK, perm2, pol, slots):
        self.a = a; self.n = name; self.srd = srdw; self.RS = RS; self.NK = NK; self.perm2 = perm2; self.pol = pol
        o = self.order(); first = [p for p in range(NK) if o[p][0] == 0]
        self.dorder = first + [p for p in range(NK) if p not in first]
        assert sorted(self.dorder[:NB]) == list(range(NB)) and self.dorder[NB:] == list(range(NB, NK))
        self.free = [(s, None) for s in slots]
        self.slot = {}; self.nd = 0; self.nr = 0
    def can_dma(self): return self.nd < self.NK and len(self.free) > 0
    def order(self):
        ng = self.NK // 4; o = [(j, 0) for j in range(min(LEAD, ng))]
        for j in range(ng):
            if j + LEAD < ng: o.append((j + LEAD, 0))
            o += [(j, 1), (j, 2), (j, 3)]
        if LEAD == 0: o = [(j, r) for j in range(ng) for r in range(4)]
        assert len(o) == self.NK
        return o
    def tstep(self, p, dst):
        j, rel = self.order()[p]
        self.a("s_add_u32 %s, s%d, s%d" % (dst, SJ[j], SC[rel]))
    def dma_parts(self):
        a = self.a; p = self.dorder[self.nd]; self.nd += 1
        sl, tag = self.free.pop(0); self.slot[p] = sl
        def p0():
            if tag: a.wait(lg=tag)
            self.tstep(p, "s58")
            a("s_add_u32 m0, s%d, %d" % (SLDS, sl * 2048))
            a("s_mul_i32 s58, s58, %d" % (16 * self.RS))
            a.vmem("buffer_load_dwordx4 v%d, s[%d:%d], s58 offen %s lds" % (G.W0, self.srd, self.srd + 3, self.pol), "%sd%d" % (self.n, p))
            a("s_add_u32 m0, s%d, %d" % (SLDS, sl * 2048 + 1024))
        def p1():
            a("s_nop 0")
            a.vmem("buffer_load_dwordx4 v%d, s[%d:%d], s58 offen %s lds" % (G.W1, self.srd, self.srd + 3, self.pol), "%sd%d" % (self.n, p))
        return [p0, p1]
    def dma(self):
        for f in self.dma_parts(): f()
    def read_parts(self):
        a = self.a; p = self.dorder[self.nr]; self.nr += 1
        assert p in self.slot
        sl = self.slot[p]; b = G.B + 8 * (p % NB); io = 1024 if self.perm2 else 512
        self.free.append((sl, "%sr%d" % (self.n, p)))
        def part(u):
            def f():
                a.wait(vm="%sd%d" % (self.n, p))
                for i in range(2):
                    a.ds("ds_read_b64_tr_b16 %s, v%d offset:%d" % (vr(b + 4 * u + 2 * i, 2), G.LA + u, sl * 2048 + i * io), "%sr%d" % (self.n, p))
            return f
        return [part(0), part(1)]
    def read(self):
        for f in self.read_parts(): f()
    def inflight(self):
        seen = []
        for t in self.a.vm.ops:
            if t and t.startswith(self.n + "d") and t not in seen: seen.append(t)
        return seen
    def pump(self, ahead):
        did = False
        while self.can_dma() and len(self.inflight()) < ahead: self.dma(); did = True
        if self.nr < NB and self.nr < self.nd: self.read(); did = True
        elif self.can_dma():
            self.a.wait(vm=self.inflight()[0]); did = True
        return did
    def tables(self, srot, ssh, part=None):
        a = self.a; ng = self.NK // 4
        if part != 0:
            a("s_lshl_b32 s%d, %s, 4" % (SJ[0], srot))
            for j in range(1, ng):
                a("s_add_u32 s%d, s%d, 16" % (SJ[j], SJ[j - 1]))
                if ng == 8: a("s_and_b32 s%d, s%d, 127" % (SJ[j], SJ[j]))
                else:
                    a("s_cmp_ge_u32 s%d, %d" % (SJ[j], 16 * ng))
                    a("s_cselect_b32 s%d, 0, s%d" % (SJ[j], SJ[j]))
        if part != 1:
            a("s_lshl_b32 s61, %s, 2" % ssh)
            for r in range(4):
                a("s_add_u32 s%d, s61, %d" % (SC[r], 4 * r))
                a("s_and_b32 s%d, s%d, 12" % (SC[r], SC[r]))
                a("s_add_u32 s%d, s%d, s14" % (SC[r], SC[r]))
    def fload_parts(self, t, srdf):
        a = self.a; f = G.F + 8 * (t % NF)
        def p0():
            self.tstep(t, "s60")
            a("s_lshl_b32 s60, s60, 11")
            a.vmem("buffer_load_dwordx4 %s, v%d, s[%d:%d], s60 offen sc1" % (vr(f, 4), G.FA, srdf, srdf + 3), "%sf%d" % (self.n, t))
        def p1():
            a.vmem("buffer_load_dwordx4 %s, v%d, s[%d:%d], s60 offen sc1" % (vr(f + 4, 4), G.FB, srdf, srdf + 3), "%sf%d" % (self.n, t))
        return [p0, p1]
    def fload(self, t, srdf):
        for f in self.fload_parts(t, srdf): f()
    def step(self, t, weights_are_A, fill):
        a = self.a; b = G.B + 8 * (t % NB); f = G.F + 8 * (t % NF)
        a.wait(vm="%sf%d" % (self.n, t), lg="%sr%d" % (self.n, t))
        gaps = [[], [], [], []]
        for i, p in enumerate(fill): gaps[min(3, i * 4 // max(4, len(fill)))].append(p)
        for n in range(4):
            uw, uf = n >> 1, n & 1
            acc = vr(G.ACC + 16 * n, 16)
            W, F = vr(b + 4 * uw, 4), vr(f + 4 * uf, 4)
            A_, B_ = (W, F) if weights_are_A else (F, W)
            a("%s %s, %s, %s, %s" % (MF, acc, A_, B_, "0" if (t == 0 and n > 0) else acc))
            for p in gaps[n]: p()
    def loop_fill(self, t, srdf):
        fill = []
        if t + NF - 1 < self.NK: fill += self.fload_parts(t + NF - 1, srdf)
        dm = self.dma_parts() if self.can_dma() else []
        if t >= 1 and self.nr < self.NK and self.nr - NB <= t - 1: fill += self.read_parts()
        return fill + dm

def g_reduce_write(a):
    a("v_add_u32 v%d, s%d, v%d" % (G.T0, SLDS, G.L16))
    a("s_nop 10")
    for t in range(1, 4):
        for q in range(4):
            a.ds("ds_write_b128 v%d, %s offset:%d" % (G.T0, vr(G.ACC + 16 * t + 4 * q, 4), 8192 + (t - 1) * 4096 + q * 1024), "rw")
    for t in range(1, 4):
        a("s_xor_b32 s60, s14, %d" % t)
        a("s_mul_i32 s60, s60, %d" % (NS * 2048))
        a("v_add_u32 v%d, s60, v%d" % (G.T0 + t - 1, G.L16))
    a.wait(lg="rw")
    a("s_barrier")
    for t in range(1, 4):
        for q in range(4):
            a.ds("ds_read_b128 %s, v%d offset:%d" % (vr(G.ACC + 16 * t + 4 * q, 4), G.T0 + t - 1, 8192 + (t - 1) * 4096 + q * 1024), "rr%d" % t)
def g_reduce_add(a):
    for t in range(1, 4):
        a.wait(lg="rr%d" % t)
        for r in range(0, 16, 2): a("v_pk_add_f32 %s, %s, %s" % (vr(r, 2), vr(r, 2), vr(16 * t + r, 2)))

def role_g(a):
    a.vm.clear(); a.lg.clear()
    a.label("ROLE_G")
    if ONLYA: a("s_endpgm")
    a("""
    v_and_b32 v{LN}, 63, v0
    s_mul_i32 s61, s57, 37
    s_lshr_b32 s61, s61, 8
    s_lshl_b32 s66, s56, 2
    s_add_u32 s66, s66, s61
    s_mul_i32 s61, s61, 7
    s_sub_u32 s64, s57, s61
    s_mul_i32 s{SLDS}, s14, {WB}
    s_lshl_b32 s67, s66, 7
    s_lshr_b32 s60, s14, 1
    s_lshl_b32 s60, s60, 6
    s_add_u32 s60, s60, s67
    v_lshrrev_b32 v{VT}, 5, v{LN}
    v_lshlrev_b32 v{VT}, 3, v{VT}
    """.format(LN=G.LN, SLDS=SLDS, WB=NS * 2048, VT=G.VT))
    s1 = Stream(a, "a", 16, 3584, 32, False, "nt", list(range(NS)))
    s2 = Stream(a, "b", 24, 4096, 28, True, W2POL, list(range(4)))
    def burst(st):
        for p in range(4):
            if len(st.inflight()) >= AHEAD0: a.wait(vm=st.inflight()[0])
            st.dma()
        if len(st.inflight()) >= AHEAD0: a.wait(vm=st.inflight()[0])
    g_waddr(a, 3584, "s67")
    s1.tables("s64", "s66", part=0)
    a("s_mov_b32 s18, %d" % (2048 * 3584))
    a("s_mov_b32 s19, 0x20000")
    a("s_waitcnt lgkmcnt(0)")
    a("s_mov_b32 s16, s40")
    a("s_and_b32 s17, s41, 0xffff")
    a("s_lshl_b32 s%d, s64, 4" % SJ[0])
    a("s_cmp_eq_u32 s56, 7")
    if ONLY2: a("s_branch G_SETUP")
    a("s_cbranch_scc1 G_SETUP")
    burst(s1)
    a("s_and_b32 s58, s64, 3")
    a("s_lshl_b32 s58, s58, 2")
    a("s_add_u32 s58, s58, s14")
    a("s_add_u32 s58, s58, 112")
    a("s_mul_i32 s58, s58, %d" % (16 * 3584))
    a("s_cmp_lt_u32 s64, 4")
    a("s_cbranch_scc0 G_SETUP")
    a("buffer_load_dwordx4 %s, v%d, s[16:19], s58 offen nt" % (vr(G.F + 8, 4), G.W0))
    a("buffer_load_dwordx4 %s, v%d, s[16:19], s58 offen nt" % (vr(G.F + 12, 4), G.W1))
    a.label("G_SETUP")
    stamp(a, 1)
    srd(a, 36, 42, str(1792 * 2))
    for q in range(4):
        a.vmem("buffer_load_dwordx2 %s, v%d, s[36:39], s60 offen offset:%d nt" % (vr(G.F + 2 * q, 2), G.VT, 16 * q), "b1")
    ws_base(a)
    srd(a, WS, 30, hex(WS_USED))
    a("""
    s_setprio {PRIO}
    v_lshlrev_b32 v{L16}, 4, v{LN}
    v_mov_b32 v{VZ}, 0
    s_lshr_b32 s60, s14, 1
    s_lshl_b32 s60, s60, 5
    s_lshl_b32 s61, s66, 6
    s_add_u32 s60, s60, s61
    v_and_b32 v{T0}, 31, v{LN}
    v_add_u32 v{T0}, s60, v{T0}
    v_mul_u32_u24 v{VX}, 896, v{T0}
    v_lshlrev_b32 v{T1}, 1, v{VT}
    s_lshl_b32 s60, s64, 7
    s_and_b32 s61, s14, 1
    s_lshl_b32 s61, s61, 6
    s_add_u32 s60, s60, s61
    v_add3_u32 v{VX}, v{VX}, v{T1}, s60
    v_lshlrev_b32 v{VB2}, 1, v{T0}
    s_and_b32 s60, s14, 1
    s_lshl_b32 s60, s60, 10
    v_add_u32 v{FA}, s60, v{L16}
    v_xor_b32 v{FB}, 0x400, v{FA}
    s_lshl_b32 s68, s64, 18
    s_add_u32 s68, s68, {HTO}
    s_mul_i32 s60, s64, {UG}
    s_add_u32 s60, s60, {UPO}
    """.format(PRIO=PRIO_G, L16=G.L16, LN=G.LN, VZ=G.VZ, T0=G.T0, T1=G.T1, VT=G.VT, VX=G.VX, VB2=G.VB2,
               FA=G.FA, FB=G.FB, HTO=hex(HT_OFF), UG=UP_G, UPO=hex(UP_OFF)))
    srd(a, 40, 30, str(UP_G), add="s60")
    srd(a, DBG, 28, "256")
    srd(a, 24, 52, str(1792 * 4096))
    srd(a, 20, 30, str(HT_G), add="s68")
    def sw2():
        g_waddr(a, 4096, "s67")
        g_laddr(a, True)
    def res_loads():
        for i in range(2):
            a.vmem("global_load_dwordx4 %s, v%d, s[4:5] offset:%d" % (vr(G.RES + 4 * i, 4), G.VX, 32 * i), "res")
        a.vmem("global_load_ushort v%d, v%d, s[54:55] nt" % (G.VB2, G.VB2), "res")
    if not ONLY2:
        a("s_cmp_lt_u32 s56, 7")
        a("s_cbranch_scc1 G_TILE1")
    sv = list(a.vm.ops)
    for i in range(2, 9): stamp(a, i)
    sw2()
    s2.tables("s64", "s66")
    a("s_mov_b32 s65, 1")
    a("s_branch G_JOIN")
    a.label("G_TILE1")
    s1.tables("s64", "s66", part=1)
    g_laddr(a, False)
    if RESEARLY: res_loads()
    a.drain(lg=False)
    s1.pol = W1POL2
    for q in range(8):
        a("v_lshlrev_b32 v%d, 16, v%d" % (2 * q, G.F + q))
        a("v_and_b32 v%d, 0xffff0000, v%d" % (2 * q + 1, G.F + q))
    stamp(a, 2)
    while s1.pump(AHEAD): pass
    stamp(a, 3)
    a("s_cmp_lg_u32 s14, 0")
    a("s_cbranch_scc1 G_S0_DONE")
    poll(a, DBG, "0", G.VZ, G.VT, keep=True)
    a("s_lshl_b32 s36, s56, 8")
    a("s_add_u32 s36, s36, %s" % hex(SYNC_OFF + SA_REP * SL))
    poll(a, WS, "s36", G.VZ, G.VT, sleep=2, keep=True)
    a.label("G_S0_DONE")
    a("s_barrier")
    stamp(a, 4)
    for t in range(NF - 1): s1.fload(t, 20)
    for t in range(32):
        if t in (8, 16, 24) and not E("WST", 0): stamp(a, 4 + t // 8)
        fill = s1.loop_fill(t, 20)
        if t == 21:
            assert s1.nr == 32
            fill.append(lambda: (a.drain(vm=False), sw2()))
        if t == 33 - NF: fill.append(lambda: s2.tables("s64", "s66", part=1))
        assert W2START > 33 - NF
        if W2START <= t < W2START + 2: fill += s2.dma_parts() + s2.dma_parts()
        s1.step(t, True, fill)
    stamp(a, 5 if E("WST", 0) else 8)
    g_reduce_write(a)
    g_reduce_add(a)
    if E("WST", 0): stamp(a, 6)
    a("s_barrier")
    s2.free += [(s_, None) for s_ in range(4, NS)]
    for p in range(WDMA1): s2.dma()
    if E("WST", 0): stamp(a, 7)
    c1 = -2.0 * 0.7978845608028654 * 1.4426950408889634
    c2 = c1 * 0.044715
    a("s_mov_b32 s60, %s" % f32(c2))
    a("v_mov_b32 v48, %s" % f32(c1))
    for r in range(0, 16, 2): a("v_pk_mul_f32 %s, %s, %s" % (vr(16 + r, 2), vr(r, 2), vr(r, 2)))
    for r in range(16): a("v_fma_f32 v%d, v%d, s60, v48" % (16 + r, 16 + r))
    for r in range(0, 16, 2): a("v_pk_mul_f32 %s, %s, %s" % (vr(16 + r, 2), vr(16 + r, 2), vr(r, 2)))
    for r in range(16): a("v_exp_f32 v%d, v%d" % (16 + r, 16 + r))
    for r in range(16): a("v_add_f32 v%d, 1.0, v%d" % (16 + r, 16 + r))
    for r in range(16): a("v_rcp_f32 v%d, v%d" % (16 + r, 16 + r))
    a("""
    s_lshl_b32 s60, s66, 2
    s_and_b32 s61, s14, 2
    s_add_u32 s60, s60, s61
    s_lshl_b32 s60, s60, 11
    """)
    for i in range(2):
        for r in range(0, 8, 2): a("v_pk_mul_f32 %s, %s, %s" % (vr(8 * i + r, 2), vr(8 * i + r, 2), vr(16 + 8 * i + r, 2)))
        for r in range(4): a("v_cvt_pk_bf16_f32 v%d, v%d, v%d" % (32 + 4 * i + r, 8 * i + 2 * r, 8 * i + 2 * r + 1))
        a.vmem("buffer_store_dwordx4 %s, v%d, s[40:43], s60 offen offset:%d sc1" % (vr(32 + 4 * i, 4), G.FA, i * 2048), "ust")
    if E("WST", 0): stamp(a, 8)
    for p in range(4): s2.read()
    a.wait(vm="ust")
    state = (s2.nd, s2.nr, list(s2.free), dict(s2.slot), list(a.vm.ops), list(a.lg.ops))
    a("s_mov_b32 s65, s14")
    a("s_branch G_JOIN2")
    a.label("G_JOIN")
    a.vm.clear(); a.lg.clear()
    s2b = Stream(a, "b", 24, 4096, 28, True, "nt", list(range(NS)))
    if GWAIT: a.drain(lg=False)
    burst(s2b)
    if RESEARLY: res_loads()
    a.drain(lg=False)
    for p in range(WDMA1): s2b.dma()
    for p in range(4): s2b.read()
    assert (s2b.nd, s2b.nr, s2b.slot) == (state[0], state[1], state[3]) and [x[0] for x in s2b.free] == [x[0] for x in state[2]]
    a.drain()
    poll(a, DBG, "0", G.VZ, G.VT)
    a.label("G_JOIN2")
    a.vm.ops = state[4]; a.lg.ops = state[5]
    stamp(a, 9)
    a("s_barrier")
    a("s_lshl_b32 s69, s64, 8")
    a("s_add_u32 s69, s69, %s" % hex(SYNC_OFF + S4_CNT * SL))
    a("s_cmp_lg_u32 s65, 0")
    a("s_cbranch_scc1 G_NOARR")
    svl = list(a.lg.ops)
    arrive_issue(a, "s69")
    arrive_finish(a, 27, ["s69 offset:%d" % ((S4_REL - S4_CNT) * SL)], "G_NOARR")
    a.lg.ops = svl
    a.label("G_NOARR")
    a("s_add_u32 s69, s69, %d" % ((S4_REL - S4_CNT) * SL))
    if not RESEARLY: res_loads()
    while s2.pump(AHEAD2): pass
    a.wait(vm="res")
    a("v_lshlrev_b32 v16, 16, v%d" % G.VB2)
    for i in range(2):
        a("v_permlane32_swap_b32 v%d, v%d" % (G.RES + 4 * i, G.RES + 4 * i + 2))
        a("v_permlane32_swap_b32 v%d, v%d" % (G.RES + 4 * i + 1, G.RES + 4 * i + 3))
    a("s_nop 0")
    for q in range(8):
        a("v_lshlrev_b32 v%d, 16, v%d" % (2 * q, G.RES + q))
        a("v_and_b32 v%d, 0xffff0000, v%d" % (2 * q + 1, G.RES + q))
    for r in range(16): a("v_add_f32 v%d, v%d, v16" % (r, r))
    srd(a, 20, 12, str(2048 * 896))
    stamp(a, 10)
    a("s_cmp_lg_u32 s14, 0")
    a("s_cbranch_scc1 G_S4_DONE")
    poll(a, WS, "s69", G.VZ, G.VT, sleep=PSL, keep=True)
    a.label("G_S4_DONE")
    a("s_barrier")
    stamp(a, 11)
    for t in range(NF - 1): s2.fload(t, 40)
    a("""
    s_lshl_b32 s56, s14, 14
    s_add_u32 s56, s56, {B0}
    s_lshl_b32 s57, s66, 16
    s_lshl_b32 s36, s14, 13
    s_add_u32 s57, s57, s36
    s_add_u32 s57, s57, {OFO}
    s_lshl_b32 s36, s14, 14
    s_and_b32 s36, s36, 0x8000
    s_xor_b32 s37, s36, 0x8000
    s_add_u32 s67, s57, s37
    s_add_u32 s57, s57, s36
    s_lshl_b32 s68, s66, 8
    s_add_u32 s68, s68, {REL}
    """.format(B0=112 * 2048, OFO=hex(OF_OFF), REL=hex(SYNC_OFF + S2_REL * SL)))
    free = [(p, G.B + 8 * (p % NB)) for p in range(28 - NB, 28)] + [(t, G.F + 8 * (t % NF)) for t in range(28 - NF, 28)]
    free.sort()
    oa = {}; ob = {}
    def oa_parts(j):
        def p0():
            if j % 2 == 0 and j > 0: a("s_add_u32 s56, s56, 4096")
            a.vmem("buffer_load_dwordx4 %s, v%d, s[40:43], s56 offen offset:%d sc1" % (vr(oa[j], 4), G.FA, (j % 2) * 2048), "oa%d" % j)
        def p1():
            a.vmem("buffer_load_dwordx4 %s, v%d, s[40:43], s56 offen offset:%d sc1" % (vr(oa[j] + 4, 4), G.FB, (j % 2) * 2048), "oa%d" % j)
        return [p0, p1]
    def ob_parts(j):
        def p0():
            if j == 4:
                a("s_add_u32 s57, s57, 4096")
                a("s_add_u32 s67, s67, 4096")
            a.vmem("buffer_load_dwordx4 %s, v%d, s[32:35], s57 offen offset:%d sc1" % (vr(ob[j], 4), G.L16, (j % 4) * 1024), "ob%d" % j)
        def p1():
            a.vmem("buffer_load_dwordx4 %s, v%d, s[32:35], s67 offen offset:%d sc1" % (vr(ob[j] + 4, 4), G.L16, (j % 4) * 1024), "ob%d" % j)
        return [p0, p1]
    def ostep(j, fill):
        a.wait(vm=["oa%d" % j, "ob%d" % j])
        for n in range(4):
            uw, uf = n >> 1, n & 1
            acc = vr(G.ACC + 16 * n, 16)
            a("%s %s, %s, %s, %s" % (MF, acc, vr(oa[j] + 4 * uf, 4), vr(ob[j] + 4 * uw, 4), acc))
            if fill: fill.pop(0)()
        for f in fill: f()
    TCHK = E("TCHK", 17)
    OLAG = E("OLAG", 5)
    want = []
    for j in range(8): want += [("a", j), ("b", j)]
    issued_at = {}; jo = 0
    def take(t, limit):
        out = []
        while want and free and free[0][0] < t and len(out) < limit:
            kind, j = want[0]
            if kind == "b" and t < TCHK:
                nxt = [w_ for w_ in want if w_[0] == "a"]
                if not nxt: break
                kind, j = nxt[0]
            want.remove((kind, j))
            reg = free.pop(0)[1]
            if kind == "a": oa[j] = reg; out += oa_parts(j)
            else: ob[j] = reg; out += ob_parts(j); issued_at[j] = t
        return out
    for t in range(28):
        if ONLY2 and t in (4, 8, 12, 16): stamp(a, 2 + t // 4)
        fill = s2.loop_fill(t, 40)
        if t == TCHK - 5:
            fill.append(lambda: a.vmem("buffer_load_dword v%d, v%d, s[32:35], s68 offen sc1" % (G.VT, G.VZ), "s2"))
        if t == TCHK:
            a.wait(vm="s2")
            a("v_readfirstlane_b32 s62, v%d" % G.VT)
            a("s_cmp_lg_u32 s62, 0")
            a("s_cbranch_scc1 G_S2_OK")
            poll(a, WS, "s68", G.VZ, G.VT, sleep=2, keep=True)
            a.label("G_S2_OK")
            stamp(a, 12)
        fill += take(t, 4)
        s2.step(t, False, fill)
        if jo in issued_at and issued_at[jo] + OLAG <= t:
            ostep(jo, take(t + 1, 4))
            free.append((t + 1, oa[jo])); free.append((t + 1, ob[jo])); free.sort()
            jo += 1
    assert s2.nr == 28
    if ONLY2: stamp(a, 7)
    for f in take(99, 99): f()
    assert not want
    while jo < 8: ostep(jo, []); jo += 1
    if ONLY2: stamp(a, 8)
    g_reduce_write(a)
    g_reduce_add(a)
    for r in range(8): a("v_cvt_pk_bf16_f32 v%d, v%d, v%d" % (32 + r, 2 * r, 2 * r + 1))
    a("s_nop 1")
    for i in range(2):
        a("v_permlane32_swap_b32 v%d, v%d" % (32 + 4 * i, 34 + 4 * i))
        a("v_permlane32_swap_b32 v%d, v%d" % (33 + 4 * i, 35 + 4 * i))
    for i in range(2): a("buffer_store_dwordx4 %s, v%d, s[20:23], 0 offen offset:%d %s" % (vr(32 + 4 * i, 4), G.VX, 32 * i, OUTPOL))
    stamp_flush(a, 13, 60, "G")

HEADER = open("cdna_kernels/%s.s.ref" % NAME).read().split("; Override launch geometry")[0]

def main(path):
    a = Asm()
    a.label(KNAME)
    a("s_cmp_ge_u32 s2, 512")
    a("s_cbranch_scc1 K_END")
    stamp(a, 0)
    a("""
    s_load_dwordx8 s[4:11], s[0:1], 0
    s_load_dwordx4 s[28:31], s[0:1], 80
    s_load_dwordx4 s[40:43], s[0:1], 40
    s_load_dwordx4 s[52:55], s[0:1], 56
    s_load_dwordx2 s[12:13], s[0:1], 72
    v_lshrrev_b32 v1, 6, v0
    s_and_b32 s56, s2, 7
    v_readfirstlane_b32 s14, v1
    s_bfe_u32 s57, s2, 0x50003
    s_cmp_lt_u32 s2, 256
    s_cbranch_scc1 ROLE_A
    s_cmp_lt_u32 s57, 28
    s_cbranch_scc1 ROLE_G
    s_getpc_b64 s[60:61]
    K_PC:
    s_and_b32 s36, s57, 3
    s_lshl_b32 s36, s36, 12
    v_lshl_add_u32 v1, v0, 4, s36
    global_load_dwordx4 v[4:7], v1, s[60:61]
    v_add_u32 v1, 0x4000, v1
    v_min_u32 v1, CODE_END-K_PC-16, v1
    global_load_dwordx4 v[8:11], v1, s[60:61]
    s_branch ROLE_P
    """)
    role_a(a)
    role_g(a)
    a.label("K_END")
    a("s_endpgm")
    a.vm.clear(); a.lg.clear()
    a.label("ROLE_P")
    if ONLYA or ONLY2 or not E("PON", 1): a("s_endpgm")
    a("""
    s_and_b32 s36, s57, 3
    s_lshl_b32 s36, s36, 2
    s_add_u32 s36, s36, s14
    v_and_b32 v1, 63, v0
    v_lshrrev_b32 v2, 5, v1
    v_lshlrev_b32 v2, 12, v2
    v_and_b32 v3, 31, v1
    v_lshl_add_u32 v2, v3, 4, v2
    s_lshl_b32 s58, s56, 9
    v_add_u32 v2, s58, v2
    v_lshlrev_b32 v1, 4, v1
    v_mov_b32 v3, 0
    s_mul_i32 s37, s56, 229376
    s_waitcnt lgkmcnt(0)
    """)
    ws_base(a)
    srd(a, WS, 30, hex(WS_USED))
    srd(a, DBG, 28, "256")
    srd(a, 24, 52, str(1792 * 4096))
    srd(a, 16, 4, "229376", add="s37")
    a("s_cmp_lg_u32 s14, 0")
    a("s_cbranch_scc1 P_GO")
    poll(a, DBG, "0", 3, 4, sleep=16)
    a("s_lshl_b32 s58, s56, 8")
    a("s_add_u32 s58, s58, %s" % hex(SYNC_OFF + SA_REP * SL))
    poll(a, WS, "s58", 3, 4, sleep=8)
    a.label("P_GO")
    a("s_barrier")
    PD = E("PDEPTH", 8)
    def pf_loop(lbl, srdn, vaddr, step, limit, pol):
        a.label(lbl)
        for i in range(8):
            a("s_waitcnt vmcnt(%d)" % (PD - 1))
            a("buffer_load_dwordx4 %s, v%d, s[%d:%d], s58 offen %s" % (vr(8 + 4 * i, 4), vaddr, srdn, srdn + 3, pol))
            a("s_add_u32 s58, s58, %d" % step)
        a("s_cmp_lt_u32 s58, %s" % limit)
        a("s_cbranch_scc1 %s" % lbl)
    a("s_lshl_b32 s58, s36, 10")
    pf_loop("P_X", 16, 1, 16 * 1024, "229376", PFPOL)
    a("s_lshl_b32 s58, s36, 13")
    pf_loop("P_W2", 24, 2, 16 * 8192, str(1792 * 4096), PFPOL)
    a("s_lshl_b32 s58, s36, 12")
    a("s_add_u32 s58, s58, %s" % hex(UP_OFF + 112 * 2048))
    for g_ in range(7):
        a("s_waitcnt vmcnt(4)")
        for i in range(4): a("buffer_load_dwordx4 %s, v1, s[32:35], s58 offen offset:%d sc1" % (vr(8 + 16 * (g_ % 2) + 4 * i, 4), i * 1024))
        a("s_add_u32 s58, s58, %d" % UP_G)
    a("s_endpgm")
    a.label("CODE_END")
    if DIAG:
        out = HEADER + "; @launch kernel=%s grid=(512,1,1) block=(256,1,1) lds=81920\n; @launch kernel=diag_kernel grid=(1,1,1) block=(64,1,1) lds=0\n" % KNAME
        a.lines += [".globl diag_kernel", ".p2align 8", ".type diag_kernel,@function"]
        a("""
        diag_kernel:
        s_cmp_lg_u32 s2, 0
        s_cbranch_scc1 DG_END
        s_load_dwordx2 s[4:5], s[0:1], 80
        s_waitcnt lgkmcnt(0)
        s_sub_u32 s4, s4, 512
        s_subb_u32 s5, s5, 0
        s_load_dwordx2 s[6:7], s[4:5], 128
        s_memrealtime s[8:9]
        s_waitcnt lgkmcnt(0)
        s_not_b32 s6, s6
        s_sub_u32 s6, s7, s6
        s_min_u32 s6, s6, 10000
        s_mul_i32 s6, s6, %d
        DG_L:
        s_memrealtime s[10:11]
        s_waitcnt lgkmcnt(0)
        s_sub_u32 s10, s10, s8
        s_cmp_lt_u32 s10, s6
        s_cbranch_scc1 DG_L
        DG_END:
        s_endpgm
        """ % E("AMP", 10))
    else:
        out = HEADER + "; @launch grid=(512,1,1) block=(256,1,1) lds=81920\n"
    out += '.amdgcn_target "amdgcn-amd-amdhsa--gfx950"\n.text\n.globl %s\n.p2align 8\n.type %s,@function\n' % (KNAME, KNAME)
    out += a.text()
    out += """.section .rodata,"a"
.p2align 6
.amdhsa_kernel {n}
  .amdhsa_next_free_vgpr 256
  .amdhsa_next_free_sgpr {s}
  .amdhsa_accum_offset 256
  .amdhsa_group_segment_fixed_size 0
  .amdhsa_kernarg_size 96
  .amdhsa_user_sgpr_count 2
  .amdhsa_user_sgpr_kernarg_segment_ptr 1
  .amdhsa_system_sgpr_workgroup_id_x 1
  .amdhsa_float_denorm_mode_32 3
.end_amdhsa_kernel
""".format(n=KNAME, s=100 if STAMP else 72)
    if DIAG:
        out += """.p2align 6
.amdhsa_kernel diag_kernel
  .amdhsa_next_free_vgpr 8
  .amdhsa_next_free_sgpr 32
  .amdhsa_accum_offset 8
  .amdhsa_group_segment_fixed_size 0
  .amdhsa_kernarg_size 96
  .amdhsa_user_sgpr_count 2
  .amdhsa_user_sgpr_kernarg_segment_ptr 1
  .amdhsa_system_sgpr_workgroup_id_x 1
.end_amdhsa_kernel
"""
    open(path, "w").write(out)

if __name__ == "__main__":
    main(sys.argv[1])
```

```python
import sys, re
src, out, q, amp = sys.argv[1], sys.argv[2], sys.argv[3], int(sys.argv[4])
use_t0 = len(sys.argv) <= 5
s = open(src).read()
K = "parallel_sum__linear_kernel_hedgehog__mixer_token_mlp__prompt_kernel"
m = re.search(r"; @launch grid=(\S+) block=(\S+) lds=(\d+)\n", s)
l = ("; @launch kernel=tz_kernel grid=(1,1,1) block=(64,1,1) lds=0\n" if use_t0 else "") + "; @launch kernel=%s grid=%s block=%s lds=%s\n; @launch kernel=diag_kernel grid=(1,1,1) block=(64,1,1) lds=0\n" % (K, m.group(1), m.group(2), m.group(3))
s = s.replace(m.group(0), l)
expr = {"span": "s_sub_u32 s6, s21, s20", "tail": "s_sub_u32 s6, s8, s21", "head": "s_sub_u32 s6, s20, s22", "all": "s_sub_u32 s6, s8, s22"}[q]
code = """.globl tz_kernel
.p2align 8
.type tz_kernel,@function
tz_kernel:
    s_memrealtime s[8:9]
    s_cmp_lg_u32 s2, 0
    s_cbranch_scc1 TZ_END
    s_load_dwordx2 s[4:5], s[0:1], 88
    v_mov_b32 v1, 0xefff00
    s_waitcnt lgkmcnt(0)
    v_mov_b32 v2, s8
    global_store_dword v1, v2, s[4:5]
TZ_END:
    s_endpgm
.globl diag_kernel
.p2align 8
.type diag_kernel,@function
diag_kernel:
    s_memrealtime s[8:9]
    s_cmp_lg_u32 s2, 0
    s_cbranch_scc1 DG_END
    s_load_dwordx2 s[4:5], s[0:1], 88
    s_waitcnt lgkmcnt(0)
    s_add_u32 s4, s4, 0xefff00
    s_addc_u32 s5, s5, 0
    s_load_dword s22, s[4:5], 0
    s_mov_b32 s20, -1
    s_mov_b32 s21, 0
    s_mov_b32 s23, 256
DG_R:
    s_lshl_b32 s24, s23, 8
    s_add_u32 s24, s24, 256
    s_load_dword s10, s[4:5], s24
    s_add_u32 s24, s24, 52
    s_load_dword s11, s[4:5], s24
    s_waitcnt lgkmcnt(0)
    s_min_u32 s20, s20, s10
    s_max_u32 s21, s21, s11
    s_add_u32 s23, s23, 1
    s_cmp_lt_u32 s23, 480
    s_cbranch_scc1 DG_R
    %s
    s_min_u32 s6, s6, 10000
    s_mul_i32 s6, s6, %d
    s_add_u32 s6, s6, 20000
DG_L:
    s_memrealtime s[10:11]
    s_waitcnt lgkmcnt(0)
    s_sub_u32 s10, s10, s8
    s_cmp_lt_u32 s10, s6
    s_cbranch_scc1 DG_L
DG_END:
    s_endpgm
""" % (expr, amp)
desc = "".join(""".p2align 6
.amdhsa_kernel %s
  .amdhsa_next_free_vgpr 8
  .amdhsa_next_free_sgpr 32
  .amdhsa_accum_offset 8
  .amdhsa_group_segment_fixed_size 0
  .amdhsa_kernarg_size 96
  .amdhsa_user_sgpr_count 2
  .amdhsa_user_sgpr_kernarg_segment_ptr 1
  .amdhsa_system_sgpr_workgroup_id_x 1
.end_amdhsa_kernel
""" % n for n in ("tz_kernel", "diag_kernel"))
s = s.replace('.section .rodata,"a"\n', code + '.section .rodata,"a"\n' + desc)
open(out, "w").write(s)
```

```python
import sys, struct, os

NAME = "parallel_sum__linear_kernel_hedgehog__mixer_token_mlp__prompt"
KNAME = NAME + "_kernel"
E = lambda k, d: int(os.environ.get(k, str(d)))

XN_OFF   = 0x000000
HT_OFF   = 0x200000
HT_G     = 128 * 2048
WP_OFF   = 0x400000
WP_Q     = 28 * 1792
WP_PHI   = 28 * 2688
WP_H     = WP_PHI + 2048 + 512
UP_OFF   = 0x600000
UP_G     = 144 * 2048
KVF_OFF  = 0x800000
SYNC_OFF = 0x840000
OF_OFF   = 0x900000
KVP_OFF  = 0xB00000
WS_USED  = 0x1000000
STAMP_OFF = 0xF00000
BIG      = 0x7ff00000
SL = 256
SX_CNT, SX_REL = 0, 16
SW_CNT, SW_REL = 32, 48
S1_CNT, S1_REL = 64, 80
S3_CNT, S3_REL = 96, 112
S2_CNT, S2_REL = 128, 160
S4_CNT, S4_REL = 192, 200
SA_ROOT = 216
SA_REP = 208
NSYNC = 256
SPIN_MAX = 0x40000

STAMP = E("STAMP", 0); PRIO_A = E("PRIO_A", 2); PRIO_G = E("PRIO_G", 1); AHEAD = E("AHEAD", 4); W2START = E("W2START", 32)
NB, NF, NS = E("NB", 16), E("NF", 5), 10
LEAD = E("LEAD", 0)
XPRE = E("XPRE", 12)
PSL = E("PSL", 1)
WDMA1 = E("WDMA1", 0)
WPRE = E("WPRE", 0)
WPUMP = E("WPUMP", 0)
AHEAD2 = E("AHEAD2", 5)
PFW2 = E("PFW2", 0)
PRIO_Q = E("PRIO_Q", 0)
PRIO_K = E("PRIO_K", 2)
JOBLATE = E("JOBLATE", 1)
BURST = E("BURST", 4)
PFPOL = os.environ.get("PFPOL", "")
NP = E("NP", 0)
AHEAD0 = E("AHEAD0", 2)
ALOOK = E("ALOOK", 99)
W2POL = os.environ.get("W2POL", "")
W1POL2 = os.environ.get("W1POL2", "")
RESEARLY = E("RESEARLY", 0)
WSBASE = E("WSBASE", 0)
ONLY2 = E("ONLY2", 0)
ONLYG = E("ONLYG", 0)
ONLYA = E("ONLYA", 0)
GWAIT = E("GWAIT", 0)
PFWAIT = E("PFWAIT", 0)
OUTPOL = os.environ.get("OUTPOL", "nt")

def f32(x): return "0x%08x" % struct.unpack("<I", struct.pack("<f", x))[0]

class Q:
    def __init__(self, mx): self.ops = []; self.mx = mx
    def issue(self, tag): self.ops.append(tag)
    def need(self, tags):
        if not isinstance(tags, (list, tuple, set)): tags = [tags]
        idx = -1
        for i, t in enumerate(self.ops):
            if t in tags: idx = i
        if idx < 0: return None
        n = len(self.ops) - 1 - idx
        if n > self.mx: return self.mx
        self.ops = self.ops[idx + 1:]
        return n
    def clear(self): self.ops = []

class Asm:
    def __init__(self):
        self.lines = []; self.vm = Q(63); self.lg = Q(15); self.uid = 0; self.issued = []
    def __call__(self, s):
        for l in s.strip().split("\n"):
            l = l.strip()
            if l.endswith(":"): self.lines.append(l)
            elif l: self.lines.append("    " + l)
    def label(self, l): self.lines.append(l + ":")
    def vmem(self, s, tag=None): self(s); self.vm.issue(tag); self.issued.append(tag)
    def ds(self, s, tag=None): self(s); self.lg.issue(tag)
    def wait(self, vm=None, lg=None):
        p = []
        for q, t, nm in ((self.vm, vm, "vmcnt"), (self.lg, lg, "lgkmcnt")):
            if t is None: continue
            n = q.need(t)
            if n is None: continue
            if len(q.ops) > n: q.ops = q.ops[len(q.ops) - n:]
            p.append("%s(%d)" % (nm, n))
        if p: self("s_waitcnt " + " ".join(p))
    def drain(self, vm=True, lg=True):
        p = []
        if vm: p.append("vmcnt(0)"); self.vm.clear()
        if lg: p.append("lgkmcnt(0)"); self.lg.clear()
        self("s_waitcnt " + " ".join(p))
    def newlabel(self, p): self.uid += 1; return "%s_%d" % (p, self.uid)
    def text(self): return "\n".join(self.lines) + "\n"

def vr(a, n): return "v[%d:%d]" % (a, a + n - 1)

def srd(a, d, base, size, add=None):
    if add is None:
        a("s_mov_b32 s%d, s%d" % (d, base))
        a("s_and_b32 s%d, s%d, 0xffff" % (d + 1, base + 1))
    else:
        a("s_add_u32 s%d, s%d, %s" % (d, base, add))
        a("s_addc_u32 s%d, s%d, 0" % (d + 1, base + 1))
        a("s_and_b32 s%d, s%d, 0xffff" % (d + 1, d + 1))
    a("s_mov_b32 s%d, %s" % (d + 2, size))
    a("s_mov_b32 s%d, 0x20000" % (d + 3))

WS = 32
DBG = 44

def ws_base(a):
    if WSBASE:
        a("s_add_u32 s30, s30, %s" % hex(WSBASE))
        a("s_addc_u32 s31, s31, 0")

def stamp(a, i):
    if STAMP == 3 and i not in (0, 13): return
    if STAMP:
        a("%s s[%d:%d]" % ("s_memtime" if STAMP == 2 else "s_memrealtime", 70 + 2 * i, 71 + 2 * i))
        a.drain(vm=False)
DIAG = os.environ.get("DIAG", "")
def stamp_flush(a, n, tmp, role=""):
    if not STAMP: return
    a.drain()
    stamp(a, n)
    if DIAG:
        a("s_mov_b64 exec, 1")
        a("v_mov_b32 v%d, 0" % tmp)
        a("s_not_b32 s98, s70")
        a("v_mov_b32 v%d, s98" % (tmp + 1))
        a("buffer_atomic_umax v%d, v%d, s[44:47], 0 offen offset:128 sc1" % (tmp + 1, tmp))
        if DIAG[0] == role:
            a("v_mov_b32 v%d, s%d" % (tmp + 2, 70 + 2 * int(DIAG[1:])))
            a("buffer_atomic_umax v%d, v%d, s[44:47], 0 offen offset:132 sc1" % (tmp + 2, tmp))
        return
    a("s_mov_b64 exec, 1")
    a("s_lshl_b32 s98, s2, 8")
    a("s_lshl_b32 s99, s14, 6")
    a("s_add_u32 s98, s98, s99")
    a("s_add_u32 s98, s98, %s" % hex(STAMP_OFF))
    a("v_mov_b32 v%d, 0" % tmp)
    if STAMP == 3:
        if n == 13:
            a("v_mov_b32 v%d, s70" % (tmp + 1))
            a("v_mov_b32 v%d, s96" % (tmp + 2))
            a("buffer_store_dword v%d, v%d, s[32:35], s98 offen" % (tmp + 1, tmp))
            a("buffer_store_dword v%d, v%d, s[32:35], s98 offen offset:52" % (tmp + 2, tmp))
        return
    for i in range(n + 1):
        a("v_mov_b32 v%d, s%d" % (tmp + 1, 70 + 2 * i))
        a("buffer_store_dword v%d, v%d, s[32:35], s98 offen offset:%d" % (tmp + 1, tmp, 4 * i))
        a("s_waitcnt vmcnt(0)")

def poll(a, srdn, soff, vz, vt, sleep=1, target=1, keep=False):
    if ONLY2 or ONLYG: return
    sv = list(a.vm.ops)
    l = a.newlabel("POLL"); d = a.newlabel("POLLD")
    a("s_mov_b32 s60, 0")
    a("s_mov_b64 exec, 1")
    a.label(l)
    a("buffer_load_dword v%d, v%d, s[%d:%d], %s offen sc1" % (vt, vz, srdn, srdn + 3, soff))
    a("s_add_u32 s60, s60, 1")
    a.drain(lg=False)
    a("v_readfirstlane_b32 s61, v%d" % vt)
    a("s_cmp_ge_u32 s61, %d" % target)
    a("s_cbranch_scc1 %s" % d)
    if sleep: a("s_sleep %d" % sleep)
    a("s_cmp_lt_u32 s60, %s" % hex(SPIN_MAX))
    a("s_cbranch_scc1 %s" % l)
    a.label(d)
    a("s_mov_b64 exec, -1")
    if keep: a.vm.ops = sv

def arrive_issue(a, soff):
    a("s_mov_b32 s62, 1")
    a("s_atomic_add s62, s[30:31], %s glc" % soff)
def arrive_finish(a, last, srels, skip):
    a.drain(vm=False)
    a("s_cmp_lg_u32 s62, %d" % last)
    a("s_cbranch_scc1 %s" % skip)
    a("s_mov_b32 s62, 1")
    for r in srels: a("s_atomic_add s62, s[30:31], %s" % r)

def flag_issue(a, srdn, soff, vz, vt, tag):
    if ONLY2 or ONLYG: return
    a.vmem("buffer_load_dword v%d, v%d, s[%d:%d], %s offen sc1" % (vt, vz, srdn, srdn + 3, soff), tag)
def flag_check(a, srdn, soff, vz, vt, tag, sleep):
    if ONLY2 or ONLYG: return
    ok = a.newlabel("FLAG")
    a.wait(vm=tag)
    a("v_readfirstlane_b32 s61, v%d" % vt)
    a("s_cmp_lg_u32 s61, 0")
    a("s_cbranch_scc1 %s" % ok)
    poll(a, srdn, soff, vz, vt, sleep=sleep, keep=True)
    a.label(ok)

def arrive(a, soff):
    a("s_mov_b32 s62, 1")
    a("s_atomic_add s62, s[30:31], %s" % soff)

def round_bf16(a, d, s):
    a("v_cvt_pk_bf16_f32 v%d, v%d, v%d" % (d, s, s))
    a("v_lshlrev_b32 v%d, 16, v%d" % (d, d))

def half_reduce(a, regs, tmps):
    steps = ["quad_perm:[1,0,3,2] row_mask:0xf bank_mask:0xf", "quad_perm:[2,3,0,1] row_mask:0xf bank_mask:0xf",
             "row_half_mirror row_mask:0xf bank_mask:0xf", "row_mirror row_mask:0xf bank_mask:0xf"]
    for st in steps:
        a("s_nop %d" % (1 if len(regs) == 1 else 0))
        for r in regs: a("v_add_f32_dpp v%d, v%d, v%d %s" % (r, r, r, st))
    for r, t in zip(regs, tmps): a("v_mov_b32 v%d, v%d" % (t, r))
    a("s_nop 1")
    for r, t in zip(regs, tmps): a("v_permlane16_swap_b32 v%d, v%d" % (r, t))
    a("s_nop 0")
    for r, t in zip(regs, tmps): a("v_add_f32 v%d, v%d, v%d" % (r, r, t))

MF = "v_mfma_f32_32x32x16_bf16"

def role_a(a):
    LN, VA, VB, VC, VD, VZ, VT, VH = 250, 251, 252, 253, 254, 248, 249, 255
    a.label("ROLE_A")
    if ONLY2 or ONLYG: a("s_endpgm")
    JB = 16384
    a("""
    s_lshr_b32 s38, s56, 1
    s_lshl_b32 s38, s38, 2
    s_and_b32 s39, s57, 3
    s_add_u32 s38, s38, s39
    s_and_b32 s39, s56, 1
    s_lshl_b32 s39, s39, 3
    s_lshr_b32 s57, s57, 2
    s_add_u32 s39, s39, s57
    s_lshl_b32 s15, s38, 4
    s_add_u32 s15, s15, s39
    v_and_b32 v{VC}, 31, v0
    v_lshrrev_b32 v2, 5, v0
    s_mul_i32 s20, s15, 7168
    v_min_u32 v4, 27, v{VC}
    v_mul_u32_u24 v3, 896, v2
    v_lshl_add_u32 v3, v4, 5, v3
    v_add_u32 v4, s20, v3
    s_waitcnt lgkmcnt(0)
    global_load_dwordx4 v[8:11], v4, s[4:5] nt
    global_load_dwordx4 v[12:15], v4, s[4:5] offset:16 nt
    s_mov_b32 s58, 0x0fffffff
    s_mov_b32 s59, 0x0fffffff
    s_setprio {PRIO}
    s_mul_i32 s25, s39, {WPH}
    s_add_u32 s25, s25, {WPO}
    v_and_b32 v{LN}, 63, v0
    v_bfe_u32 v{VH}, v0, 5, 1
    v_mov_b32 v{VZ}, 0
    v_lshlrev_b32 v{VA}, 4, v{LN}
    v_mul_u32_u24 v{VB}, 448, v{VH}
    v_lshl_add_u32 v{VB}, v{VC}, 4, v{VB}
    """.format(VC=VC, SYA=hex(SYNC_OFF + WSBASE), PRIO=PRIO_A, WPH=WP_H, WPO=hex(WP_OFF), LN=LN, VH=VH, VZ=VZ, VA=VA, VB=VB))
    a.vm.issue("x"); a.vm.issue("x")
    ws_base(a)
    srd(a, WS, 30, hex(WS_USED))
    srd(a, DBG, 28, "256")
    P, X, T = 8, 16, 32
    def unpack(dst, src):
        for i in range(8):
            a("v_lshlrev_b32 v%d, 16, v%d" % (dst + 2 * i, src + i))
            a("v_and_b32 v%d, 0xffff0000, v%d" % (dst + 2 * i + 1, src + i))
    def pack(dst, src):
        for i in range(8): a("v_cvt_pk_bf16_f32 v%d, v%d, v%d" % (dst + i, src + 2 * i, src + 2 * i + 1))
    def pksum(dst, src):
        a("v_pk_add_f32 %s, %s, %s" % (vr(dst, 2), vr(src, 2), vr(src + 2, 2)))
        a("v_pk_add_f32 %s, %s, %s" % (vr(dst + 2, 2), vr(src + 4, 2), vr(src + 6, 2)))
        for i in (8, 12):
            a("v_pk_add_f32 %s, %s, %s" % (vr(dst, 2), vr(dst, 2), vr(src + i, 2)))
            a("v_pk_add_f32 %s, %s, %s" % (vr(dst + 2, 2), vr(dst + 2, 2), vr(src + i + 2, 2)))
        a("v_pk_add_f32 %s, %s, %s" % (vr(dst, 2), vr(dst, 2), vr(dst + 2, 2)))
        a("v_add_f32 v%d, v%d, v%d" % (dst, dst, dst + 1))
    def pksq(dst, src):
        a("v_pk_mul_f32 %s, %s, %s" % (vr(dst, 2), vr(src, 2), vr(src, 2)))
        a("v_pk_mul_f32 %s, %s, %s" % (vr(dst + 2, 2), vr(src + 2, 2), vr(src + 2, 2)))
        for i in (4, 8, 12):
            a("v_pk_fma_f32 %s, %s, %s, %s" % (vr(dst, 2), vr(src + i, 2), vr(src + i, 2), vr(dst, 2)))
            a("v_pk_fma_f32 %s, %s, %s, %s" % (vr(dst + 2, 2), vr(src + i + 2, 2), vr(src + i + 2, 2), vr(dst + 2, 2)))
        a("v_pk_add_f32 %s, %s, %s" % (vr(dst, 2), vr(dst, 2), vr(dst + 2, 2)))
        a("v_add_f32 v%d, v%d, v%d" % (dst, dst, dst + 1))
    def pksub(dst, src, m):
        for i in range(0, 16, 2):
            a("v_pk_add_f32 %s, %s, %s op_sel_hi:[1,0] neg_lo:[0,1] neg_hi:[0,1]" % (vr(dst + i, 2), vr(src + i, 2), vr(m, 2)))
    def pkmul(dst, src, m):
        for i in range(0, 16, 2): a("v_pk_mul_f32 %s, %s, %s op_sel_hi:[1,0]" % (vr(dst + i, 2), vr(src + i, 2), vr(m, 2)))
    def scale_from_var(r):
        round_bf16(a, r, r)
        a("v_add_f32 v%d, %s, v%d" % (r, f32(1e-5), r))
        round_bf16(a, r, r)
        a("v_sqrt_f32 v%d, v%d" % (r, r))
        a("s_nop 0")
        round_bf16(a, r, r)
        a("v_rcp_f32 v%d, v%d" % (r, r))
    inv = f32(1.0 / 448.0)
    S, S2, M, RS_, C2, D2 = 72, 76, 80, 82, 84, 86
    HB, HP = 7168, 912
    a("""
    v_lshl_add_u32 v5, v2, 4, v3
    v_bfe_u32 v88, v{LN}, 2, 2
    v_mul_u32_u24 v88, {HP}, v88
    v_lshrrev_b32 v89, 4, v{LN}
    v_lshl_add_u32 v88, v89, 5, v88
    v_and_b32 v89, 3, v{LN}
    v_lshl_add_u32 v88, v89, 3, v88
    s_lshl_b32 s20, s14, 7
    v_add_u32 v88, s20, v88
    v_lshlrev_b32 v92, 10, v{VH}
    v_lshl_add_u32 v92, v{VC}, 4, v92
    v_and_b32 v89, 7, v{LN}
    v_lshrrev_b32 v90, 3, v{LN}
    s_lshl_b32 s20, s14, 3
    v_add_u32 v90, s20, v90
    v_mul_u32_u24 v91, 896, v89
    v_lshl_add_u32 v91, v90, 4, v91
    v_lshlrev_b32 v89, 4, v89
    v_lshl_add_u32 v89, v90, 9, v89
    s_lshr_b32 s20, s15, 2
    s_mul_i32 s20, s20, 28672
    s_and_b32 s21, s15, 3
    s_lshl_b32 s21, s21, 7
    s_add_u32 s20, s20, s21
    s_lshl_b32 s21, s14, 18
    s_lshr_b32 s22, s15, 1
    s_lshl_b32 s22, s22, 11
    s_add_u32 s21, s21, s22
    s_and_b32 s22, s15, 1
    s_lshl_b32 s22, s22, 9
    s_add_u32 s21, s21, s22
    s_add_u32 s21, s21, {HTO}
    s_cmp_eq_u32 s14, 3
    s_cselect_b32 s23, 0x08000000, 0
    s_add_u32 s22, s21, {HG4}
    s_or_b32 s22, s22, s23
    s_add_u32 s24, s20, 16384
    s_or_b32 s24, s24, s23
    s_lshl_b32 s40, s39, 8
    s_add_u32 s40, s40, {SY}
    s_lshl_b32 s41, s38, 8
    s_add_u32 s41, s41, {SY}
    """.format(LN=LN, VH=VH, VC=VC, HP=HP, HG4=4 * HT_G, HTO=hex(HT_OFF), SY=hex(SYNC_OFF)))
    assert XN_OFF == 0 and HT_G == 1 << 18
    stamp(a, 1)
    a.wait(vm="x")
    stamp(a, 2)
    unpack(X, P)
    pksum(S, X)
    a("v_cndmask_b32 v%d, 0, v%d, s[58:59]" % (S, S))
    half_reduce(a, [S], [S + 1])
    a("v_mul_f32 v%d, %s, v%d" % (S, inv, S))
    round_bf16(a, M, S)
    pksub(X, X, M)
    pksq(S2, X)
    a("v_sub_f32 v%d, v%d, v%d" % (S, S, M))
    a("v_cndmask_b32 v%d, 0, v%d, s[58:59]" % (S2, S2))
    half_reduce(a, [S2], [S2 + 1])
    a("v_mul_f32 v%d, %s, v%d" % (S2, inv, S2))
    a("v_fma_f32 v%d, -v%d, v%d, v%d" % (S2, S, S, S2))
    a("v_max_f32 v%d, 0, v%d" % (S2, S2))
    a("v_mov_b32 v%d, v%d" % (RS_, S2))
    scale_from_var(RS_)
    a("s_nop 0")
    a("v_mul_f32 v%d, v%d, v%d" % (C2, S2, RS_))
    a("v_mul_f32 v%d, v%d, v%d" % (D2, S, RS_))
    a("v_mul_f32 v%d, v%d, v%d" % (C2, C2, RS_))
    round_bf16(a, D2, D2)
    pkmul(T, X, RS_)
    scale_from_var(C2)
    pack(P, T)
    a.ds("ds_write_b128 v3, v[8:11]")
    a.ds("ds_write_b128 v3, v[12:15] offset:16")
    a("v_mul_f32 v%d, v%d, v%d" % (D2, D2, C2))
    for i in range(0, 16, 2):
        a("v_pk_fma_f32 %s, %s, %s, %s op_sel_hi:[1,0,0] neg_lo:[0,0,1] neg_hi:[0,0,1]" % (vr(T + i, 2), vr(T + i, 2), vr(C2, 2), vr(D2, 2)))
    pack(X, T)
    a.ds("ds_write_b128 v5, v[16:19] offset:%d" % HB)
    a.ds("ds_write_b128 v5, v[20:23] offset:%d" % (HB + 16))
    stamp(a, 3)
    a.drain(vm=False)
    a("s_barrier")
    a.ds("ds_read_b64_tr_b16 v[28:29], v88 offset:%d" % HB, "h0")
    a.ds("ds_read_b64_tr_b16 v[30:31], v88 offset:%d" % (HB + 4 * HP), "h0")
    a.ds("ds_read_b128 v[36:39], v91", "x0")
    a.ds("ds_read_b64_tr_b16 v[32:33], v88 offset:%d" % (HB + 512), "h1")
    a.ds("ds_read_b64_tr_b16 v[34:35], v88 offset:%d" % (HB + 512 + 4 * HP), "h1")
    a.ds("ds_read_b128 v[40:43], v91 offset:512", "x1")
    a.wait(lg="h0"); a.vmem("buffer_store_dwordx4 v[28:31], v92, s[32:35], s21 offen sc1")
    a.wait(lg="x0"); a.vmem("buffer_store_dwordx4 v[36:39], v89, s[32:35], s20 offen sc1")
    a.wait(lg="h1"); a.vmem("buffer_store_dwordx4 v[32:35], v92, s[32:35], s22 offen sc1")
    a.wait(lg="x1"); a.vmem("buffer_store_dwordx4 v[40:43], v89, s[32:35], s24 offen sc1")
    a.vmem("buffer_load_dword v%d, v%d, s[44:47], 0 offen sc1" % (VT, VZ), "ready")
    a("""
    s_lshl_b32 s36, s38, 2
    s_add_u32 s36, s36, s14
    s_mul_i32 s24, s36, 28672
    s_lshl_b32 s26, s14, 10
    s_add_u32 s25, s25, s26
    v_add_u32 v{VD}, 0x8000, v{VB}
    """.format(VB=VB, VD=VD))
    a.drain()
    stamp(a, 4)
    a("s_barrier")
    AQ, AK, AV = 0, 16, 32
    XF, WF, PH = 64, 176, 208
    a("s_cmp_ge_u32 s14, 2")
    a("s_cbranch_scc1 A_GO")
    a("v_readfirstlane_b32 s61, v%d" % VT)
    a("s_cmp_lg_u32 s61, 0")
    a("s_cbranch_scc1 A_RDY")
    poll(a, DBG, "0", VZ, VT)
    a.label("A_RDY")
    a("s_cmp_eq_u32 s14, 0")
    a("s_cbranch_scc1 A_XS")
    a("s_lshl_b32 s20, s56, 8")
    a("s_add_u32 s20, s20, %s" % hex(SYNC_OFF + SW_REL * SL))
    poll(a, WS, "s20", VZ, VT, sleep=PSL)
    a("s_branch A_GO")
    a.label("A_XS")
    arrive_issue(a, "s41 offset:%d" % (SX_CNT * SL))
    a.drain(vm=False)
    a("s_cmp_lg_u32 s62, 15")
    a("s_cbranch_scc1 A_WAIT")
    a("s_mov_b32 s62, 1")
    a("s_atomic_add s62, s[30:31], s41 offset:%d" % (SX_REL * SL))
    a("s_mov_b32 s20, %s" % hex(SYNC_OFF + SA_ROOT * SL))
    a("s_mov_b32 s63, 1")
    a("s_atomic_add s63, s[30:31], s20 glc")
    a.drain(vm=False)
    a("s_cmp_lg_u32 s63, 16")
    a("s_cbranch_scc1 A_GO")
    a("s_atomic_add s62, s[28:29], 0x80")
    a("s_branch A_GO")
    a.label("A_WAIT")
    a("s_add_u32 s20, s41, %d" % (SX_REL * SL))
    poll(a, WS, "s20", VZ, VT, sleep=PSL)
    a.label("A_GO")
    stamp(a, 5)
    a("s_barrier")
    stamp(a, 6)
    def wdma(r, tag):
        a("s_add_u32 m0, s26, %d" % (r * 4096))
        a("s_add_u32 s28, s25, %d" % (r * 4096))
        a.vmem("buffer_load_dwordx4 v%d, s[32:35], s28 offen sc1 lds" % VA, tag)
    def xload(k):
        if k % 4 == 0 and k > 0: a("s_add_u32 s24, s24, 4096")
        a.vmem("buffer_load_dwordx4 %s, v%d, s[32:35], s24 offen offset:%d sc1" % (vr(XF + 4 * k, 4), VA, (k % 4) * 1024), "x%d" % k)
    cuts = [0, 6, 13, 20, 28]; rnds = [0, 3, 6, 9, 13]
    seq = []
    for c in range(4):
        seq += [(lambda r=r, c=c: wdma(r, "wc%d" % c)) for r in range(rnds[c], rnds[c + 1])]
        seq += [(lambda k=k: xload(k)) for k in range(cuts[c], cuts[c + 1])]
    seq += [(lambda r=r: wdma(r, "wq")) for r in (18, 13, 14, 15, 16, 17)]
    for f in seq[:XPRE]: f()
    pend = seq[XPRE:]
    def lread(dst, off, tag, base=None):
        if off < 65536: a.ds("ds_read_b128 %s, v%d offset:%d" % (vr(dst, 4), VB, off), tag)
        else: a.ds("ds_read_b128 %s, v%d offset:%d" % (vr(dst, 4), VD, off - 32768), tag)
    def wread(k):
        b = WF + 8 * (k % 3)
        lread(b, k * 1792, "w%d" % k); lread(b + 4, k * 1792 + 896, "w%d" % k)
    for c in range(4):
        k0, k1 = cuts[c], cuts[c + 1]
        assert k1 * 1792 + 64 <= rnds[c + 1] * 4096
        assert sum(1 for t_ in a.issued if t_ == "wc%d" % c) == rnds[c + 1] - rnds[c]
        a.wait(vm="wc%d" % c)
        a("s_barrier")
        wread(k0); wread(k0 + 1)
        for k in range(k0, k1):
            if k + 2 < k1: wread(k + 2)
            assert "x%d" % k in a.issued
            a.wait(vm="x%d" % k, lg="w%d" % k)
            b = WF + 8 * (k % 3); x = vr(XF + 4 * k, 4)
            a("%s %s, %s, %s, %s" % (MF, vr(AK, 16), vr(b, 4), x, "0" if k == 0 else vr(AK, 16)))
            if pend and len(a.vm.ops) < ALOOK: pend.pop(0)()
            a("%s %s, %s, %s, %s" % (MF, vr(AV, 16), x, vr(b + 4, 4), "0" if k == 0 else vr(AV, 16)))
            while pend and len(a.vm.ops) < min(ALOOK, 12): pend.pop(0)()
            if pend and len(a.vm.ops) < ALOOK: pend.pop(0)()
    for f in pend: f()
    pend = []
    assert not pend
    a.drain(lg=False)
    a("s_barrier")
    a("v_add_u32 v2, 0x8000, v%d" % VA)
    a.ds("ds_read_b128 %s, v2 offset:%d" % (vr(PH, 4), WP_PHI - 32768), "ph")
    a.ds("ds_read_b128 %s, v2 offset:%d" % (vr(PH + 4, 4), WP_PHI + 1024 - 32768), "ph")
    stamp(a, 7)
    PKK, PKV = 48, 56
    PP = 216; EP, EM = 16, 32; OUT = 176; S0 = 192; TA = S0 + 12
    a("""
    s_mov_b32 s56, 0
    s_mov_b32 s57, -1
    s_mov_b32 s37, {L2E}
    v_mul_u32_u24 v{t}, 136, v{VC}
    v_lshl_add_u32 v{t}, v{VH}, 3, v{t}
    s_mul_i32 s28, s14, 4352
    v_add_u32 v{t}, s28, v{t}
    s_lshl_b32 s28, s14, 11
    v_add_u32 v{u}, s28, v{VA}
    v_cmp_eq_u32 vcc, 28, v{VC}
    v_mov_b32 v{S0}, 0x3f803f80
    """.format(L2E=f32(1.4426950408889634), t=TA, u=TA + 1, VC=VC, VH=VH, VA=VA, S0=S0))
    for r in range(8): a("v_cvt_pk_bf16_f32 v%d, v%d, v%d" % (PKK + r, AK + 2 * r, AK + 2 * r + 1))
    a("v_cndmask_b32 v%d, 0, v%d, vcc" % (S0, S0))
    a.wait(lg="ph")
    a("%s %s, %s, %s, 0" % (MF, vr(PP, 16), vr(PH, 4), vr(PKK, 4)))
    a("%s %s, %s, %s, %s" % (MF, vr(PP, 16), vr(PH + 4, 4), vr(PKK + 4, 4), vr(PP, 16)))
    for r in range(8): a("v_cvt_pk_bf16_f32 v%d, v%d, v%d" % (PKV + r, AV + 2 * r, AV + 2 * r + 1))
    for r in range(8): a("v_cndmask_b32 v%d, v%d, v%d, s[58:59]" % (PKV + r, S0, PKV + r))
    a.ds("ds_write_b128 v%d, %s offset:17408" % (TA + 1, vr(PKV, 4)))
    a.ds("ds_write_b128 v%d, %s offset:%d" % (TA + 1, vr(PKV + 4, 4), 17408 + 1024))

    def softmax2(P, sink=None):
        mx, mn, t0, t1, t2, t3 = S0, S0 + 1, S0 + 2, S0 + 3, S0 + 4, S0 + 5
        for op, m, t in (("max", mx, t0), ("min", mn, t1)):
            a("v_%s3_f32 v%d, v%d, v%d, v%d" % (op, t, P + 12, P + 13, P + 14))
            a("v_%s3_f32 v%d, v%d, v%d, v%d" % (op, m, P, P + 1, P + 2))
            a("v_%s_f32 v%d, v%d, v%d" % (op, t, t, P + 15))
            for i in range(3, 11, 2): a("v_%s3_f32 v%d, v%d, v%d, v%d" % (op, m, m, P + i, P + i + 1))
            a("v_cndmask_b32 v%d, v%d, v%d, s[56:57]" % (t, t, P))
            a("v_%s3_f32 v%d, v%d, v%d, v%d" % (op, m, m, P + 11, t))
        a("v_mov_b32 v%d, v%d" % (t0, mx))
        a("v_mov_b32 v%d, v%d" % (t1, mn))
        a("v_mov_b32 v%d, 0x7f800000" % t2)
        a("v_mov_b32 v%d, 0xff800000" % t3)
        a("v_permlane32_swap_b32 v%d, v%d" % (mx, t0))
        a("v_permlane32_swap_b32 v%d, v%d" % (mn, t1))
        a("s_nop 0")
        a("v_max_f32 v%d, v%d, v%d" % (mx, mx, t0))
        a("v_min_f32 v%d, v%d, v%d" % (mn, mn, t1))
        a("v_mul_f32 v%d, s37, v%d" % (mx, mx))
        a("v_mul_f32 v%d, s37, v%d" % (mn, mn))
        a("v_cndmask_b32 v%d, v%d, v%d, s[56:57]" % (t2, mx, t2))
        a("v_cndmask_b32 v%d, v%d, v%d, s[56:57]" % (t3, mn, t3))
        for r in range(16):
            a("v_fma_f32 v%d, v%d, s37, -v%d" % (EP + r, P + r, mx if r < 12 else t2))
            a("v_fma_f32 v%d, -v%d, s37, v%d" % (EM + r, P + r, mn if r < 12 else t3))
        for r in range(16):
            a("v_exp_f32 v%d, v%d" % (EP + r, EP + r))
            a("v_exp_f32 v%d, v%d" % (EM + r, EM + r))
            if r == 2:
                a("v_add_f32 v%d, v%d, v%d" % (mx, EP, EP + 1))
                a("v_add_f32 v%d, v%d, v%d" % (mn, EM, EM + 1))
            if r > 2:
                a("v_add_f32 v%d, v%d, v%d" % (mx, mx, EP + r - 1))
                a("v_add_f32 v%d, v%d, v%d" % (mn, mn, EM + r - 1))
        a("v_add_f32 v%d, v%d, v%d" % (mx, mx, EP + 15))
        a("v_add_f32 v%d, v%d, v%d" % (mn, mn, EM + 15))
        a("v_mov_b32 v%d, v%d" % (t0, mx))
        a("v_mov_b32 v%d, v%d" % (t1, mn))
        a("s_nop 1")
        a("v_permlane32_swap_b32 v%d, v%d" % (mx, t0))
        a("v_permlane32_swap_b32 v%d, v%d" % (mn, t1))
        a("s_nop 0")
        a("v_add_f32 v%d, v%d, v%d" % (mx, mx, t0))
        a("v_add_f32 v%d, v%d, v%d" % (mn, mn, t1))
        a("v_rcp_f32 v%d, v%d" % (mx, mx))
        a("v_rcp_f32 v%d, v%d" % (mn, mn))
        for e, (E_, m) in enumerate(((EP, mx), (EM, mn))):
            for q in range(4):
                for r in range(4): a("v_mul_f32 v%d, v%d, v%d" % (E_ + 4 * q + r, E_ + 4 * q + r, m))
                for r in range(2): a("v_cvt_pk_bf16_f32 v%d, v%d, v%d" % (OUT + 8 * e + 2 * q + r, E_ + 4 * q + 2 * r, E_ + 4 * q + 2 * r + 1))
                if sink: sink(e, q)

    softmax2(PP, lambda e, q: a.ds("ds_write_b64 v%d, %s offset:%d" % (TA, vr(OUT + 8 * e + 2 * q, 2), e * 64 + q * 16)))
    a("""
    v_lshlrev_b32 v{t}, 2, v{VH}
    v_bfe_u32 v{u}, v{LN}, 2, 2
    v_add_u32 v{t}, v{t}, v{u}
    v_mul_u32_u24 v{t}, 136, v{t}
    v_bfe_u32 v{u}, v{LN}, 4, 1
    v_lshl_add_u32 v{t}, v{u}, 5, v{t}
    v_and_b32 v{u}, 3, v{LN}
    v_lshl_add_u32 v{t}, v{u}, 3, v{t}
    s_lshl_b32 s28, s14, 6
    v_add_u32 v{t}, s28, v{t}
    s_lshl_b32 s42, s39, 16
    s_add_u32 s42, s42, {KVP}
    s_lshl_b32 s28, s38, 10
    s_lshl_b32 s29, s14, 15
    s_add_u32 s28, s28, s29
    s_add_u32 s28, s28, s42
    s_add_u32 s29, s28, 16384
    """.format(t=TA + 2, u=TA + 3, LN=LN, VH=VH, KVP=hex(KVP_OFF)))
    a.drain(vm=False)
    a("s_barrier")
    stamp(a, 8)
    a("s_cmp_ge_u32 s14, 2")
    a("s_cbranch_scc1 A_QPASS")
    KVA = 232
    for w in range(4):
        for i in range(2):
            n_ = 2 * w + i
            a.ds("ds_read_b64_tr_b16 %s, v%d offset:%d" % (vr(4 * n_, 2), TA + 2, w * 4352 + (16 * i) * 136), "kv%d" % n_)
            a.ds("ds_read_b64_tr_b16 %s, v%d offset:%d" % (vr(4 * n_ + 2, 2), TA + 2, w * 4352 + (16 * i + 8) * 136), "kv%d" % n_)
            a.ds("ds_read_b128 %s, v%d offset:%d" % (vr(32 + 4 * n_, 4), VA, 17408 + w * 2048 + i * 1024), "kv%d" % n_)
    for n_ in range(8):
        a.wait(lg="kv%d" % n_)
        a("%s %s, %s, %s, %s" % (MF, vr(KVA, 16), vr(4 * n_, 4), vr(32 + 4 * n_, 4), "0" if n_ == 0 else vr(KVA, 16)))
    a("s_nop 11")
    for i in range(2):
        for r in range(4): a("v_cvt_pk_bf16_f32 v%d, v%d, v%d" % (PKV + 4 * i + r, KVA + 8 * i + 2 * r, KVA + 8 * i + 2 * r + 1))
        a("buffer_store_dwordx4 %s, v%d, s[32:35], %s offen sc1" % (vr(PKV + 4 * i, 4), VA, "s29" if i else "s28"))
    a.label("A_QPASS")
    a("s_setprio %d" % PRIO_Q)
    a("s_mov_b32 s62, 0")
    QB = 16
    def qread(k): lread(QB + 4 * (k % 8), WP_Q + k * 896, "q%d" % k)
    for k in range(4): qread(k)
    for k in range(28):
        if k + 4 < 28: qread(k + 4)
        a.wait(lg="q%d" % k)
        a("%s %s, %s, %s, %s" % (MF, vr(AQ, 16), vr(QB + 4 * (k % 8), 4), vr(XF + 4 * k, 4), "0" if k == 0 else vr(AQ, 16)))
        if k == E("S1K", 13):
            a("s_cmp_ge_u32 s14, 2")
            a("s_cbranch_scc1 A_NOARR")
            a.drain(lg=False)
            arrive_issue(a, "s40 offset:%d" % (S1_CNT * SL))
            a.label("A_NOARR")
    arrive_finish(a, 31, ["s40 offset:%d" % (S1_REL * SL)], "A_S1_NR")
    a.label("A_S1_NR")
    a("s_nop 9")
    for r in range(8): a("v_cvt_pk_bf16_f32 v%d, v%d, v%d" % (PKK + r, AQ + 2 * r, AQ + 2 * r + 1))
    a("s_nop 1")
    a("%s %s, %s, %s, 0" % (MF, vr(PP, 16), vr(PH, 4), vr(PKK, 4)))
    a("%s %s, %s, %s, %s" % (MF, vr(PP, 16), vr(PH + 4, 4), vr(PKK + 4, 4), vr(PP, 16)))
    a("s_nop 11")
    softmax2(PP)
    stamp(a, 9)
    SEL, KS, KVB, OD = 48, 0, 16, 32
    a("""
    s_setprio {PRIO}
    v_and_b32 v52, 3, v{VC}
    v_bfe_u32 v53, v{VC}, 3, 1
    v_lshl_add_u32 v52, v53, 2, v52
    v_and_b32 v53, 1, v52
    v_lshlrev_b32 v53, 4, v53
    v_mov_b32 v54, 0x3f80
    v_lshlrev_b32 v53, v53, v54
    v_lshrrev_b32 v52, 1, v52
    v_bfe_u32 v54, v{VC}, 2, 1
    v_xor_b32 v54, v54, v{VH}
    v_lshrrev_b32 v55, 4, v{VC}
    v_or_b32 v54, v54, v55
    v_lshl_add_u32 v52, v54, 2, v52
    s_lshl_b32 s28, s14, 14
    s_add_u32 s28, s28, s42
    s_add_u32 s41, s40, {REL}
    s_lshl_b32 s29, s14, 10
    v_add_u32 v55, s29, v{VA}
    """.format(PRIO=PRIO_K, VC=VC, VH=VH, VA=VA, REL=S1_REL * SL))
    for d in range(4):
        a("v_cmp_eq_u32 vcc, %d, v52" % d)
        a("s_nop 1")
        a("v_cndmask_b32 v%d, 0, v53, vcc" % (SEL + d))
    a("s_cmp_lg_u32 s14, 3")
    a("s_cbranch_scc1 A_S1_OK")
    poll(a, WS, "s41", VZ, VT, sleep=PSL)
    a.label("A_S1_OK")
    a("s_barrier")
    stamp(a, 10)
    for m in range(16):
        if m % 4 == 0 and m: a("s_add_u32 s28, s28, 4096")
        a.vmem("buffer_load_dwordx4 %s, v%d, s[32:35], s28 offen offset:%d sc1" % (vr(64 + 4 * m, 4), VA, (m % 4) * 1024), "p%d" % m)
    a("""
    s_lshl_b32 s28, s36, 15
    s_lshl_b32 s29, s39, 11
    s_add_u32 s28, s28, s29
    s_add_u32 s28, s28, {OFO}
    s_lshr_b32 s40, s36, 1
    s_lshl_b32 s40, s40, 8
    s_add_u32 s40, s40, {SY}
    """.format(OFO=hex(OF_OFF), SY=hex(SYNC_OFF)))
    for m in range(16):
        a.wait(vm="p%d" % m)
        a("%s %s, %s, %s, %s" % (MF, vr(KS, 16), vr(SEL, 4), vr(64 + 4 * m, 4), "0" if m == 0 else vr(KS, 16)))
    a("s_nop 11")
    for r in range(4): a("v_cvt_pk_bf16_f32 v%d, v%d, v%d" % (KVB + r, KS + 2 * r, KS + 2 * r + 1))
    a.ds("ds_write_b128 v55, %s" % vr(KVB, 4))
    a.drain(vm=False)
    a("s_barrier")
    for n_ in range(4): a.ds("ds_read_b128 %s, v%d offset:%d" % (vr(KVB + 4 * n_, 4), VA, n_ * 1024), "kvl%d" % n_)
    for n_ in range(4):
        a.wait(lg="kvl%d" % n_)
        a("%s %s, %s, %s, %s" % (MF, vr(OD, 16), vr(KVB + 4 * n_, 4), vr(OUT + 4 * n_, 4), "0" if n_ == 0 else vr(OD, 16)))
    a("""
    s_nop 11
    v_mov_b32 v0, v{D12}
    v_mov_b32 v2, v{D12}
    s_nop 1
    v_permlane32_swap_b32 v0, v2
    s_nop 0
    v_add_f32 v2, {EPS}, v2
    v_rcp_f32 v2, v2
    s_nop 0
    """.format(D12=OD + 12, EPS=f32(1e-6)))
    for i in range(2):
        for r in range(8): a("v_mul_f32 v%d, v%d, v2" % (OD + 8 * i + r, OD + 8 * i + r))
        for r in range(4): a("v_cvt_pk_bf16_f32 v%d, v%d, v%d" % (KVB + 4 * i + r, OD + 8 * i + 2 * r, OD + 8 * i + 2 * r + 1))
        a.vmem("buffer_store_dwordx4 %s, v%d, s[32:35], s28 offen offset:%d sc1" % (vr(KVB + 4 * i, 4), VA, i * 1024))
    a.drain(lg=False)
    arrive_issue(a, "s40 offset:%d" % (S2_CNT * SL))
    arrive_finish(a, 31, ["s40 offset:%d" % (S2_REL * SL)], "A_FIN")
    a.label("A_FIN")
    stamp_flush(a, 11, 4, "A")
    a("s_endpgm")

class G:
    ACC = 0; B = 64; F = 64 + 8 * NB
    W0 = 232; W1 = 233; FA = 234; FB = 235; LA = 236; LB = 237
    LN = 238; L16 = 239; RES = 240
    VX = 248; VB2 = 249; VZ = 250; VT = 251; T0 = 252; T1 = 253; T2 = 254
assert G.F + 8 * NF <= 232
SLDS = 50
SJ = [6, 7, 8, 9, 10, 11, 48, 49]
SC = [51, 15, 59, 3]

def g_waddr(a, RS, scol):
    a("""
    v_lshrrev_b32 v{T0}, 3, v{L}
    v_mul_u32_u24 v{W0}, {RS}, v{T0}
    v_lshrrev_b32 v{T1}, 2, v{L}
    v_and_b32 v{T1}, 4, v{T1}
    v_and_b32 v{T2}, 7, v{L}
    v_xor_b32 v{T1}, v{T1}, v{T2}
    v_lshl_add_u32 v{W0}, v{T1}, 4, v{W0}
    v_add_u32 v{W0}, {scol}, v{W0}
    v_add_u32 v{W1}, {RS8}, v{W0}
    """.format(T0=G.T0, T1=G.T1, T2=G.T2, L=G.LN, W0=G.W0, W1=G.W1, RS=RS, RS8=8 * RS, scol=scol))
def g_laddr(a, perm2):
    a("""
    v_bfe_u32 v{T0}, v{L}, 4, 1
    v_lshrrev_b32 v{T1}, 5, v{L}
    v_lshlrev_b32 v{LA}, {HS}, v{T1}
    v_lshl_add_u32 v{LA}, v{T0}, 5, v{LA}
    v_bfe_u32 v{T1}, v{L}, 2, 2
    v_lshl_add_u32 v{LA}, v{T1}, 7, v{LA}
    v_lshrrev_b32 v{T1}, 1, v{T1}
    v_lshl_add_u32 v{LA}, v{T1}, 6, v{LA}
    v_and_b32 v{T1}, 3, v{L}
    v_lshl_add_u32 v{LA}, v{T1}, 3, v{LA}
    s_lshl_b32 s36, s14, 5
    s_and_b32 s36, s36, 64
    v_xor_b32 v{LA}, s36, v{LA}
    v_add_u32 v{LA}, s{SLDS}, v{LA}
    v_xor_b32 v{LB}, 64, v{LA}
    """.format(T0=G.T0, T1=G.T1, L=G.LN, LA=G.LA, LB=G.LB, HS=(9 if perm2 else 10), SLDS=SLDS))

class Stream:
    def __init__(self, a, name, srdw, RS, NK, perm2, pol, slots):
        self.a = a; self.n = name; self.srd = srdw; self.RS = RS; self.NK = NK; self.perm2 = perm2; self.pol = pol
        o = self.order(); first = [p for p in range(NK) if o[p][0] == 0]
        self.dorder = first + [p for p in range(NK) if p not in first]
        assert sorted(self.dorder[:NB]) == list(range(NB)) and self.dorder[NB:] == list(range(NB, NK))
        self.free = [(s, None) for s in slots]
        self.slot = {}; self.nd = 0; self.nr = 0
    def can_dma(self): return self.nd < self.NK and len(self.free) > 0
    def order(self):
        ng = self.NK // 4; o = [(j, 0) for j in range(min(LEAD, ng))]
        for j in range(ng):
            if j + LEAD < ng: o.append((j + LEAD, 0))
            o += [(j, 1), (j, 2), (j, 3)]
        if LEAD == 0: o = [(j, r) for j in range(ng) for r in range(4)]
        assert len(o) == self.NK
        return o
    def tstep(self, p, dst):
        j, rel = self.order()[p]
        self.a("s_add_u32 %s, s%d, s%d" % (dst, SJ[j], SC[rel]))
    def dma_parts(self):
        a = self.a; p = self.dorder[self.nd]; self.nd += 1
        sl, tag = self.free.pop(0); self.slot[p] = sl
        def p0():
            if tag: a.wait(lg=tag)
            self.tstep(p, "s58")
            a("s_add_u32 m0, s%d, %d" % (SLDS, sl * 2048))
            a("s_mul_i32 s58, s58, %d" % (16 * self.RS))
            a.vmem("buffer_load_dwordx4 v%d, s[%d:%d], s58 offen %s lds" % (G.W0, self.srd, self.srd + 3, self.pol), "%sd%d" % (self.n, p))
            a("s_add_u32 m0, s%d, %d" % (SLDS, sl * 2048 + 1024))
        def p1():
            a("s_nop 0")
            a.vmem("buffer_load_dwordx4 v%d, s[%d:%d], s58 offen %s lds" % (G.W1, self.srd, self.srd + 3, self.pol), "%sd%d" % (self.n, p))
        return [p0, p1]
    def dma(self):
        for f in self.dma_parts(): f()
    def read_parts(self):
        a = self.a; p = self.dorder[self.nr]; self.nr += 1
        assert p in self.slot
        sl = self.slot[p]; b = G.B + 8 * (p % NB); io = 1024 if self.perm2 else 512
        self.free.append((sl, "%sr%d" % (self.n, p)))
        def part(u):
            def f():
                a.wait(vm="%sd%d" % (self.n, p))
                for i in range(2):
                    a.ds("ds_read_b64_tr_b16 %s, v%d offset:%d" % (vr(b + 4 * u + 2 * i, 2), G.LA + u, sl * 2048 + i * io), "%sr%d" % (self.n, p))
            return f
        return [part(0), part(1)]
    def read(self):
        for f in self.read_parts(): f()
    def inflight(self):
        seen = []
        for t in self.a.vm.ops:
            if t and t.startswith(self.n + "d") and t not in seen: seen.append(t)
        return seen
    def pump(self, ahead):
        did = False
        while self.can_dma() and len(self.inflight()) < ahead: self.dma(); did = True
        if self.nr < NB and self.nr < self.nd: self.read(); did = True
        elif self.can_dma():
            self.a.wait(vm=self.inflight()[0]); did = True
        return did
    def tables(self, srot, ssh, part=None):
        a = self.a; ng = self.NK // 4
        if part != 0:
            a("s_lshl_b32 s%d, %s, 4" % (SJ[0], srot))
            for j in range(1, 7):
                a("s_add_u32 s%d, s%d, 16" % (SJ[j], SJ[j - 1]))
                a("s_cmp_ge_u32 s%d, 112" % SJ[j])
                a("s_cselect_b32 s%d, 0, s%d" % (SJ[j], SJ[j]))
            a("s_movk_i32 s%d, 112" % SJ[7])
        if part != 1:
            a("s_lshl_b32 s61, %s, 2" % ssh)
            for r in range(4):
                a("s_add_u32 s%d, s61, %d" % (SC[r], 4 * r))
                a("s_and_b32 s%d, s%d, 12" % (SC[r], SC[r]))
                a("s_add_u32 s%d, s%d, s14" % (SC[r], SC[r]))
    def fload_parts(self, t, srdf):
        a = self.a; f = G.F + 8 * (t % NF)
        def p0():
            self.tstep(t, "s60")
            a("s_lshl_b32 s60, s60, 11")
            a.vmem("buffer_load_dwordx4 %s, v%d, s[%d:%d], s60 offen sc1" % (vr(f, 4), G.FA, srdf, srdf + 3), "%sf%d" % (self.n, t))
        def p1():
            a.vmem("buffer_load_dwordx4 %s, v%d, s[%d:%d], s60 offen sc1" % (vr(f + 4, 4), G.FB, srdf, srdf + 3), "%sf%d" % (self.n, t))
        return [p0, p1]
    def fload(self, t, srdf):
        for f in self.fload_parts(t, srdf): f()
    def step(self, t, weights_are_A, fill):
        a = self.a; b = G.B + 8 * (t % NB); f = G.F + 8 * (t % NF)
        a.wait(vm="%sf%d" % (self.n, t), lg="%sr%d" % (self.n, t))
        gaps = [[], [], [], []]
        for i, p in enumerate(fill): gaps[min(3, i * 4 // max(4, len(fill)))].append(p)
        for n in range(4):
            uw, uf = n >> 1, n & 1
            acc = vr(G.ACC + 16 * n, 16)
            W, F = vr(b + 4 * uw, 4), vr(f + 4 * uf, 4)
            A_, B_ = (W, F) if weights_are_A else (F, W)
            a("%s %s, %s, %s, %s" % (MF, acc, A_, B_, "0" if (t == 0 and n > 0) else acc))
            for p in gaps[n]: p()
    def loop_fill(self, t, srdf):
        fill = []
        if t + NF - 1 < self.NK: fill += self.fload_parts(t + NF - 1, srdf)
        dm = self.dma_parts() if self.can_dma() else []
        if t >= 1 and self.nr < self.NK and self.nr - NB <= t - 1: fill += self.read_parts()
        return fill + dm

def g_reduce_write(a, mid=None, pre=None):
    a("v_add_u32 v%d, s%d, v%d" % (G.T0, SLDS, G.L16))
    a("s_nop 10")
    for t in range(1, 4):
        for q in range(4):
            a.ds("ds_write_b128 v%d, %s offset:%d" % (G.T0, vr(G.ACC + 16 * t + 4 * q, 4), 8192 + (t - 1) * 4096 + q * 1024), "rw")
    for t in range(1, 4):
        a("s_xor_b32 s60, s14, %d" % t)
        a("s_mul_i32 s60, s60, %d" % (NS * 2048))
        a("v_add_u32 v%d, s60, v%d" % (G.T0 + t - 1, G.L16))
    if pre: pre()
    a.wait(lg="rw")
    a("s_barrier")
    if mid: mid()
    for t in range(1, 4):
        for q in range(4):
            a.ds("ds_read_b128 %s, v%d offset:%d" % (vr(G.ACC + 16 * t + 4 * q, 4), G.T0 + t - 1, 8192 + (t - 1) * 4096 + q * 1024), "rr%d" % t)
def g_reduce_add(a):
    for t in range(1, 4):
        a.wait(lg="rr%d" % t)
        for r in range(0, 16, 2): a("v_pk_add_f32 %s, %s, %s" % (vr(r, 2), vr(r, 2), vr(16 * t + r, 2)))

def role_g(a):
    a.vm.clear(); a.lg.clear()
    a.label("ROLE_G")
    if ONLYA: a("s_endpgm")
    a("""
    v_and_b32 v{LN}, 63, v0
    s_mul_i32 s61, s57, 37
    s_lshr_b32 s61, s61, 8
    s_lshl_b32 s66, s56, 2
    s_add_u32 s66, s66, s61
    s_mul_i32 s61, s61, 7
    s_sub_u32 s64, s57, s61
    s_mul_i32 s{SLDS}, s14, {WB}
    s_lshl_b32 s67, s66, 7
    s_lshr_b32 s60, s14, 1
    s_lshl_b32 s60, s60, 6
    s_add_u32 s60, s60, s67
    v_lshrrev_b32 v{VT}, 5, v{LN}
    v_lshlrev_b32 v{VT}, 3, v{VT}
    """.format(LN=G.LN, SLDS=SLDS, WB=NS * 2048, VT=G.VT))
    s1 = Stream(a, "a", 16, 3584, 32, False, "nt", list(range(NS)))
    s2 = Stream(a, "b", 24, 4096, 28, True, W2POL, list(range(4)))
    def burst(st):
        for p in range(4):
            if len(st.inflight()) >= AHEAD0: a.wait(vm=st.inflight()[0])
            st.dma()
        if len(st.inflight()) >= AHEAD0: a.wait(vm=st.inflight()[0])
    g_waddr(a, 3584, "s67")
    s1.tables("s64", "s66", part=0)
    a("s_mov_b32 s18, %d" % (2048 * 3584))
    a("s_mov_b32 s19, 0x20000")
    a("s_waitcnt lgkmcnt(0)")
    a("s_mov_b32 s16, s40")
    a("s_and_b32 s17, s41, 0xffff")
    a("s_lshl_b32 s%d, s64, 4" % SJ[0])
    a("s_cmp_eq_u32 s56, 7")
    if ONLY2: a("s_branch G_SETUP")
    a("s_cbranch_scc1 G_SETUP")
    if GWAIT:
        a("global_load_dword v%d, v%d, s[42:43] nt" % (G.T0, G.VT))
        a("s_waitcnt vmcnt(0)")
    burst(s1)
    a.label("G_SETUP")
    stamp(a, 1)
    srd(a, 36, 42, str(1792 * 2))
    for q in range(4):
        a.vmem("buffer_load_dwordx2 %s, v%d, s[36:39], s60 offen offset:%d nt" % (vr(G.F + 2 * q, 2), G.VT, 16 * q), "b1")
    ws_base(a)
    srd(a, WS, 30, hex(WS_USED))
    a("""
    s_setprio {PRIO}
    v_lshlrev_b32 v{L16}, 4, v{LN}
    v_mov_b32 v{VZ}, 0
    s_lshr_b32 s60, s14, 1
    s_lshl_b32 s60, s60, 5
    s_lshl_b32 s61, s66, 6
    s_add_u32 s60, s60, s61
    v_and_b32 v{T0}, 31, v{LN}
    v_add_u32 v{T0}, s60, v{T0}
    v_mul_u32_u24 v{VX}, 896, v{T0}
    v_lshlrev_b32 v{T1}, 1, v{VT}
    s_lshl_b32 s60, s64, 7
    s_and_b32 s61, s14, 1
    s_lshl_b32 s61, s61, 6
    s_add_u32 s60, s60, s61
    v_add3_u32 v{VX}, v{VX}, v{T1}, s60
    v_lshlrev_b32 v{VB2}, 1, v{T0}
    s_and_b32 s60, s14, 1
    s_lshl_b32 s60, s60, 10
    v_add_u32 v{FA}, s60, v{L16}
    v_xor_b32 v{FB}, 0x400, v{FA}
    s_lshl_b32 s68, s64, 18
    s_add_u32 s68, s68, {HTO}
    s_mul_i32 s60, s64, {UG}
    s_add_u32 s60, s60, {UPO}
    """.format(PRIO=PRIO_G, L16=G.L16, LN=G.LN, VZ=G.VZ, T0=G.T0, T1=G.T1, VT=G.VT, VX=G.VX, VB2=G.VB2,
               FA=G.FA, FB=G.FB, HTO=hex(HT_OFF), UG=UP_G, UPO=hex(UP_OFF)))
    srd(a, 40, 30, str(UP_G), add="s60")
    srd(a, DBG, 28, "256")
    srd(a, 24, 52, str(1792 * 4096))
    srd(a, 20, 30, str(HT_G), add="s68")
    def sw2():
        g_waddr(a, 4096, "s67")
        g_laddr(a, True)
    def res_loads():
        for i in range(2):
            a.vmem("global_load_dwordx4 %s, v%d, s[4:5] offset:%d" % (vr(G.RES + 4 * i, 4), G.VX, 32 * i), "res")
    a.vmem("global_load_ushort v%d, v%d, s[54:55] nt" % (G.VB2, G.VB2), "b1")
    a("s_movk_i32 s68, 0x80")
    if not ONLY2:
        a("s_cmp_lt_u32 s56, 7")
        a("s_cbranch_scc1 G_TILE1")
    sv = list(a.vm.ops)
    for i in range(7, 9): stamp(a, i)
    sw2()
    s2.tables("s64", "s66")
    a("s_mov_b32 s65, 1")
    a("s_branch G_JOIN")
    a.label("G_TILE1")
    s1.tables("s64", "s66", part=1)
    g_laddr(a, False)
    if RESEARLY: res_loads()
    if E("BDRAIN", 1): a.drain(lg=False)
    else: a.wait(vm="ad%d" % s1.dorder[E("BWAIT", 1)])
    s1.pol = W1POL2
    stamp(a, 2)
    while s1.nd < NB + NS - 2: s1.pump(AHEAD)
    flag_issue(a, DBG, "s68", G.VZ, G.VT, "f0")
    a.wait(vm="b1")
    for q in range(8):
        a("v_lshlrev_b32 v%d, 16, v%d" % (2 * q, G.F + q))
        a("v_and_b32 v%d, 0xffff0000, v%d" % (2 * q + 1, G.F + q))
    while s1.pump(AHEAD): pass
    stamp(a, 3)
    flag_check(a, DBG, "s68", G.VZ, G.VT, "f0", 2)
    stamp(a, 4)
    for t in range(NF - 1): s1.fload(t, 20)
    for t in range(32):
        if t in (8, 16, 24) and not E("WST", 0): stamp(a, 4 + t // 8)
        fill = s1.loop_fill(t, 20)
        if t == 21:
            assert s1.nr == 32
            fill.append(lambda: (a.drain(vm=False), sw2()))
        if W2START <= t < W2START + 2: fill += s2.dma_parts() + s2.dma_parts()
        s1.step(t, True, fill)
    stamp(a, 5 if E("WST", 0) else 8)
    log = []
    def rd(n=1):
        for _ in range(n): s2.read(); log.append("r")
    def dm(n=1):
        for _ in range(n): s2.dma(); log.append("d")
    g_reduce_write(a, mid=(lambda: (rd(WPUMP), dm(WPUMP))) if WPUMP else None, pre=lambda: dm(WPRE))
    g_reduce_add(a)
    if E("WST", 0): stamp(a, 6)
    a("s_barrier")
    s2.free += [(s_, None) for s_ in range(4, NS)]
    log.append("f")
    if E("WST", 0): stamp(a, 7)
    c1 = -2.0 * 0.7978845608028654 * 1.4426950408889634
    c2 = c1 * 0.044715
    left = [WDMA1]
    def ride():
        if left[0] > 0: dm(); left[0] -= 1
    a("s_mov_b32 s60, %s" % f32(c2))
    a("v_mov_b32 v48, %s" % f32(c1))
    ride()
    for r in range(0, 16, 2): a("v_pk_mul_f32 %s, %s, %s" % (vr(16 + r, 2), vr(r, 2), vr(r, 2)))
    ride()
    for r in range(16): a("v_fma_f32 v%d, v%d, s60, v48" % (16 + r, 16 + r))
    ride()
    for r in range(0, 16, 2): a("v_pk_mul_f32 %s, %s, %s" % (vr(16 + r, 2), vr(16 + r, 2), vr(r, 2)))
    for r in range(16): a("v_exp_f32 v%d, v%d" % (16 + r, 16 + r))
    ride()
    for r in range(16): a("v_add_f32 v%d, 1.0, v%d" % (16 + r, 16 + r))
    ride()
    for r in range(16): a("v_rcp_f32 v%d, v%d" % (16 + r, 16 + r))
    ride()
    a("""
    s_lshl_b32 s60, s66, 2
    s_and_b32 s61, s14, 2
    s_add_u32 s60, s60, s61
    s_lshl_b32 s60, s60, 11
    """)
    for i in range(2):
        for r in range(0, 8, 2): a("v_pk_mul_f32 %s, %s, %s" % (vr(8 * i + r, 2), vr(8 * i + r, 2), vr(16 + 8 * i + r, 2)))
        for r in range(4): a("v_cvt_pk_bf16_f32 v%d, v%d, v%d" % (32 + 4 * i + r, 8 * i + 2 * r, 8 * i + 2 * r + 1))
        a.vmem("buffer_store_dwordx4 %s, v%d, s[40:43], s60 offen offset:%d sc1" % (vr(32 + 4 * i, 4), G.FA, i * 2048), "ust")
    if E("WST", 0): stamp(a, 8)
    if W2START >= 32:
        s2.free.sort(key=lambda t_: t_[0])
    nb4 = s2.nd
    for p in range(E("WDMA2", 4)):
        if s2.can_dma(): dm()
    rd(min(nb4, NB) - s2.nr)
    a.wait(vm="ust")
    state = (s2.nd, s2.nr, list(s2.free), dict(s2.slot), list(a.vm.ops), list(a.lg.ops))
    a("s_mov_b32 s65, s14")
    a("s_branch G_JOIN2")
    a.label("G_JOIN")
    a.vm.clear(); a.lg.clear()
    s2b = Stream(a, "b", 24, 4096, 28, True, "nt", list(range(4)))
    burst(s2b)
    if RESEARLY: res_loads()
    a.drain(lg=False)
    s2b.pol = W2POL
    skip = 4 if W2START >= 32 else 0
    for act in log:
        if act == "d" and skip: skip -= 1
        elif act == "r": s2b.read()
        elif act == "d": s2b.dma()
        else: s2b.free += [(s_, None) for s_ in range(4, NS)]
    assert (s2b.nd, s2b.nr, s2b.slot) == (state[0], state[1], state[3]) and [x[0] for x in s2b.free] == [x[0] for x in state[2]]
    a.drain()
    poll(a, DBG, "s68", G.VZ, G.VT, sleep=8)
    a.label("G_JOIN2")
    a.vm.ops = state[4]; a.lg.ops = state[5]
    stamp(a, 9)
    a("s_barrier")
    a("s_lshl_b32 s69, s64, 8")
    a("s_add_u32 s69, s69, %s" % hex(SYNC_OFF + S4_CNT * SL))
    a("s_mov_b32 s62, 0")
    a("s_cmp_lg_u32 s65, 0")
    a("s_cbranch_scc1 G_NOARR")
    arrive_issue(a, "s69")
    a.label("G_NOARR")
    while s2.can_dma() and len(s2.inflight()) < AHEAD2: s2.dma()
    if not RESEARLY: res_loads()
    arrive_finish(a, 27, ["s69 offset:%d" % ((S4_REL - S4_CNT) * SL)], "G_NOREL")
    a.label("G_NOREL")
    a("s_add_u32 s69, s69, %d" % ((S4_REL - S4_CNT) * SL))
    while s2.nd < NB + NS - 1: s2.pump(AHEAD2)
    flag_issue(a, WS, "s69", G.VZ, G.VT, "f4")
    while s2.pump(AHEAD2): pass
    a.wait(vm="res")
    a("v_lshlrev_b32 v16, 16, v%d" % G.VB2)
    for i in range(2):
        a("v_permlane32_swap_b32 v%d, v%d" % (G.RES + 4 * i, G.RES + 4 * i + 2))
        a("v_permlane32_swap_b32 v%d, v%d" % (G.RES + 4 * i + 1, G.RES + 4 * i + 3))
    a("s_nop 0")
    for q in range(8):
        a("v_lshlrev_b32 v%d, 16, v%d" % (2 * q, G.RES + q))
        a("v_and_b32 v%d, 0xffff0000, v%d" % (2 * q + 1, G.RES + q))
    for r in range(16): a("v_add_f32 v%d, v%d, v16" % (r, r))
    srd(a, 20, 12, str(2048 * 896))
    stamp(a, 10)
    flag_check(a, WS, "s69", G.VZ, G.VT, "f4", PSL)
    stamp(a, 11)
    for t in range(NF - 1): s2.fload(t, 40)
    a("""
    s_lshl_b32 s56, s14, 14
    s_add_u32 s56, s56, {B0}
    s_lshl_b32 s57, s66, 16
    s_lshl_b32 s36, s14, 13
    s_add_u32 s57, s57, s36
    s_add_u32 s57, s57, {OFO}
    s_lshl_b32 s36, s14, 14
    s_and_b32 s36, s36, 0x8000
    s_xor_b32 s37, s36, 0x8000
    s_add_u32 s67, s57, s37
    s_add_u32 s57, s57, s36
    s_lshl_b32 s68, s66, 8
    s_add_u32 s68, s68, {REL}
    """.format(B0=112 * 2048, OFO=hex(OF_OFF), REL=hex(SYNC_OFF + S2_REL * SL)))
    free = [(p, G.B + 8 * (p % NB)) for p in range(28 - NB, 28)] + [(t, G.F + 8 * (t % NF)) for t in range(28 - NF, 28)]
    free.sort()
    oa = {}; ob = {}
    def oa_parts(j):
        def p0():
            if j % 2 == 0 and j > 0: a("s_add_u32 s56, s56, 4096")
            a.vmem("buffer_load_dwordx4 %s, v%d, s[40:43], s56 offen offset:%d sc1" % (vr(oa[j], 4), G.FA, (j % 2) * 2048), "oa%d" % j)
        def p1():
            a.vmem("buffer_load_dwordx4 %s, v%d, s[40:43], s56 offen offset:%d sc1" % (vr(oa[j] + 4, 4), G.FB, (j % 2) * 2048), "oa%d" % j)
        return [p0, p1]
    def ob_parts(j):
        def p0():
            if j == 4:
                a("s_add_u32 s57, s57, 4096")
                a("s_add_u32 s67, s67, 4096")
            a.vmem("buffer_load_dwordx4 %s, v%d, s[32:35], s57 offen offset:%d sc1" % (vr(ob[j], 4), G.L16, (j % 4) * 1024), "ob%d" % j)
        def p1():
            a.vmem("buffer_load_dwordx4 %s, v%d, s[32:35], s67 offen offset:%d sc1" % (vr(ob[j] + 4, 4), G.L16, (j % 4) * 1024), "ob%d" % j)
        return [p0, p1]
    def ostep(j, fill):
        a.wait(vm=["oa%d" % j, "ob%d" % j])
        for n in range(4):
            uw, uf = n >> 1, n & 1
            acc = vr(G.ACC + 16 * n, 16)
            a("%s %s, %s, %s, %s" % (MF, acc, vr(oa[j] + 4 * uf, 4), vr(ob[j] + 4 * uw, 4), acc))
            if fill: fill.pop(0)()
        for f in fill: f()
    TCHK = E("TCHK", 17)
    OLAG = E("OLAG", 5)
    want = []
    for j in range(8): want += [("a", j), ("b", j)]
    issued_at = {}; jo = 0
    def take(t, limit):
        out = []
        while want and free and free[0][0] < t and len(out) < limit:
            kind, j = want[0]
            if kind == "b" and t < TCHK:
                nxt = [w_ for w_ in want if w_[0] == "a"]
                if not nxt: break
                kind, j = nxt[0]
            want.remove((kind, j))
            reg = free.pop(0)[1]
            if kind == "a": oa[j] = reg; out += oa_parts(j)
            else: ob[j] = reg; out += ob_parts(j); issued_at[j] = t
        return out
    for t in range(28):
        if ONLY2 and t in (4, 8, 12, 16): stamp(a, 2 + t // 4)
        fill = s2.loop_fill(t, 40)
        if t == TCHK - 5:
            fill.append(lambda: a.vmem("buffer_load_dword v%d, v%d, s[32:35], s68 offen sc1" % (G.VT, G.VZ), "s2"))
        if t == TCHK:
            a.wait(vm="s2")
            a("v_readfirstlane_b32 s62, v%d" % G.VT)
            a("s_cmp_lg_u32 s62, 0")
            a("s_cbranch_scc1 G_S2_OK")
            poll(a, WS, "s68", G.VZ, G.VT, sleep=2, keep=True)
            a.label("G_S2_OK")
            stamp(a, 12)
        fill += take(t, 4)
        s2.step(t, False, fill)
        if jo in issued_at and issued_at[jo] + OLAG <= t:
            ostep(jo, take(t + 1, 4))
            free.append((t + 1, oa[jo])); free.append((t + 1, ob[jo])); free.sort()
            jo += 1
    assert s2.nr == 28
    if ONLY2: stamp(a, 7)
    for f in take(99, 99): f()
    assert not want
    while jo < 8: ostep(jo, []); jo += 1
    if ONLY2: stamp(a, 8)
    g_reduce_write(a)
    g_reduce_add(a)
    for r in range(8): a("v_cvt_pk_bf16_f32 v%d, v%d, v%d" % (32 + r, 2 * r, 2 * r + 1))
    a("s_nop 1")
    for i in range(2):
        a("v_permlane32_swap_b32 v%d, v%d" % (32 + 4 * i, 34 + 4 * i))
        a("v_permlane32_swap_b32 v%d, v%d" % (33 + 4 * i, 35 + 4 * i))
    for i in range(2): a("buffer_store_dwordx4 %s, v%d, s[20:23], 0 offen offset:%d %s" % (vr(32 + 4 * i, 4), G.VX, 32 * i, OUTPOL))
    stamp_flush(a, 13, 60, "G")

HEADER = open("cdna_kernels/%s.s.ref" % NAME).read().split("; Override launch geometry")[0]

def main(path):
    a = Asm()
    a.label(KNAME)
    a("s_cmp_ge_u32 s2, 512")
    a("s_cbranch_scc1 K_END")
    stamp(a, 0)
    a("""
    s_load_dwordx8 s[4:11], s[0:1], 0
    s_load_dwordx4 s[28:31], s[0:1], 80
    s_load_dwordx4 s[40:43], s[0:1], 40
    s_load_dwordx4 s[52:55], s[0:1], 56
    s_load_dwordx2 s[12:13], s[0:1], 72
    v_lshrrev_b32 v1, 6, v0
    s_and_b32 s56, s2, 7
    v_readfirstlane_b32 s14, v1
    s_bfe_u32 s57, s2, 0x50003
    s_cmp_lt_u32 s2, 256
    s_cbranch_scc1 ROLE_A
    s_cmp_ge_u32 s57, 28
    s_cbranch_scc1 K_P
    s_cmp_lg_u32 s56, 7
    s_cbranch_scc1 ROLE_G
    s_add_u32 s36, s57, 32
    s_lshl_b32 s37, s57, 2
    s_add_u32 s37, s37, s14
    s_cmp_lg_u32 s37, 111
    s_cbranch_scc1 ROLE_P
    v_and_b32 v6, 63, v0
    v_lshlrev_b32 v6, 8, v6
    v_add_u32 v6, {SYA}, v6
    v_mov_b32 v7, 0
    s_waitcnt lgkmcnt(0)
    global_store_dword v6, v7, s[30:31] sc1
    v_add_u32 v6, 0x4000, v6
    global_store_dword v6, v7, s[30:31] sc1
    v_add_u32 v6, 0x4000, v6
    global_store_dword v6, v7, s[30:31] sc1
    v_add_u32 v6, 0x4000, v6
    global_store_dword v6, v7, s[30:31] sc1
    s_mov_b32 s62, 1
    s_waitcnt vmcnt(0)
    s_atomic_add s62, s[28:29], 0x0
    s_branch ROLE_P
    K_P:
    s_sub_u32 s36, s2, 480
    s_branch ROLE_P
    """.format(SYA=hex(SYNC_OFF + WSBASE)))
    role_a(a)
    role_g(a)
    a.label("K_END")
    a("s_endpgm")
    a.vm.clear(); a.lg.clear()
    a.label("ROLE_P")
    if ONLY2 or ONLYG:
        a("s_cmp_lt_u32 s57, 28")
        a("s_cbranch_scc1 ROLE_G")
        a("s_endpgm")
    a("""
    s_lshl_b32 s36, s36, 2
    s_add_u32 s36, s36, s14
    v_and_b32 v1, 63, v0
    v_lshrrev_b32 v2, 3, v1
    v_and_b32 v3, 7, v1
    v_lshlrev_b32 v3, 4, v3
    v_mov_b32 v4, {BIG}
    s_mov_b64 s[64:65], -1
    s_mov_b32 s19, 0x20000
    s_lshl_b32 s49, s14, 13
    s_cmp_ge_u32 s36, 147
    s_cbranch_scc1 P_J2
    s_mul_i32 s37, s36, 3121
    s_lshr_b32 s37, s37, 16
    s_mul_i32 s38, s37, 21
    s_sub_u32 s38, s36, s38
    s_mul_i32 s20, s37, 172032
    s_lshl_b32 s39, s38, 7
    s_add_u32 s20, s20, s39
    s_add_u32 s21, s20, 43008
    s_add_u32 s22, s21, 43008
    s_add_u32 s23, s22, 43008
    s_movk_i32 s50, 2688
    s_mov_b32 s18, {WSZ}
    s_mov_b32 s51, 8
    s_waitcnt lgkmcnt(0)
    s_mov_b32 s16, s6
    s_and_b32 s17, s7, 0xffff
    s_branch P_LD
    P_J2:
    s_mov_b32 s51, 4
    s_cmp_ge_u32 s36, 203
    s_cbranch_scc1 P_J3
    s_sub_u32 s37, s36, 147
    s_and_b32 s38, s37, 7
    s_lshr_b32 s37, s37, 3
    s_mul_i32 s20, s38, 50176
    s_lshl_b32 s39, s37, 7
    s_add_u32 s20, s20, s39
    s_add_u32 s21, s20, 14336
    s_add_u32 s22, s20, 25088
    s_add_u32 s23, s20, 39424
    s_movk_i32 s50, 896
    s_mov_b32 s18, {OSZ}
    s_waitcnt lgkmcnt(0)
    s_mov_b32 s16, s10
    s_and_b32 s17, s11, 0xffff
    s_branch P_LD
    P_J3:
    s_sub_u32 s38, s36, 203
    s_mul_i32 s20, s38, 3136
    s_add_u32 s21, s20, 896
    s_add_u32 s22, s20, 1568
    s_add_u32 s23, s20, 2464
    s_movk_i32 s50, 56
    s_cmp_lt_u32 s38, 8
    s_cselect_b32 s18, 25088, 0
    s_waitcnt lgkmcnt(0)
    s_mov_b32 s16, s8
    s_and_b32 s17, s9, 0xffff
    P_LD:
    v_mul_lo_u32 v8, v2, s50
    s_lshl_b32 s39, s50, 3
    v_add_u32 v8, v8, v3
    v_cmp_gt_u32 vcc, s51, v2
    v_add_u32 v9, s39, v8
    s_mov_b32 m0, s49
    v_cndmask_b32 v10, v4, v9, vcc
    """.format(BIG=hex(BIG), WSZ=448 * 2688, OSZ=448 * 896))
    stamp(a, 2)
    for u in range(4):
        a.vmem("buffer_load_dwordx4 v8, s[16:19], s%d offen nt lds" % (20 + u), "u%d" % u)
        a("s_add_u32 m0, s49, %d" % (u * 2048 + 1024))
        a("s_nop 0")
        a.vmem("buffer_load_dwordx4 v%d, s[16:19], s%d offen nt lds" % (10 if u % 2 else 9, 20 + u), "u%d" % u)
        if u < 3:
            a("s_add_u32 m0, s49, %d" % (u * 2048 + 2048))
            a("s_nop 0")
    def code_pf():
        a("""
        s_cmp_lt_u32 s57, 28
        s_cbranch_scc1 P_NOCODE
        s_getpc_b64 s[60:61]
        K_PC:
        s_sub_u32 s60, s60, K_PC-{K}
        s_subb_u32 s61, s61, 0
        s_and_b32 s58, s57, 3
        s_lshl_b32 s58, s58, 12
        v_lshl_add_u32 v5, v0, 4, s58
        global_load_dwordx4 v[64:67], v5, s[60:61]
        v_add_u32 v5, 0x4000, v5
        v_min_u32 v5, CODE_END-{K}-16, v5
        global_load_dwordx4 v[68:71], v5, s[60:61]
        P_NOCODE:
        """.format(K=KNAME))
    if E("CODEPF", 1) == 1: code_pf()
    ws_base(a)
    srd(a, WS, 30, hex(WS_USED))
    srd(a, DBG, 28, "256")
    a("""
    v_mov_b32 v5, 0
    v_bfe_u32 v13, v1, 2, 2
    v_lshlrev_b32 v13, 7, v13
    v_lshrrev_b32 v14, 4, v1
    v_lshl_add_u32 v13, v14, 5, v13
    v_and_b32 v14, 3, v1
    v_lshl_add_u32 v13, v14, 3, v13
    v_add_u32 v13, s49, v13
    s_cmp_ge_u32 s36, 147
    s_cbranch_scc1 P_D2
    s_mul_i32 s39, s38, 37
    s_lshr_b32 s39, s39, 8
    s_mul_i32 s48, s39, 7
    s_sub_u32 s48, s38, s48
    s_lshl_b32 s48, s48, 6
    v_add_u32 v6, s48, v1
    v_mul_u32_u24 v7, 2341, v6
    v_lshrrev_b32 v7, 16, v7
    v_mul_u32_u24 v11, 28, v7
    v_sub_u32 v11, v6, v11
    v_lshlrev_b32 v11, 4, v11
    v_mul_u32_u24 v7, {WPH}, v7
    v_add_u32 v11, v11, v7
    v_add_u32 v12, 448, v11
    s_cmp_eq_u32 s39, 0
    s_cselect_b32 s48, 1, 2
    s_mul_i32 s48, s48, 896
    s_mul_i32 s24, s39, 896
    s_sub_u32 s24, s24, 896
    s_cmp_eq_u32 s39, 0
    s_cselect_b32 s24, {WPQ}, s24
    s_lshl_b32 s37, s37, 2
    s_mul_i32 s37, s37, s48
    s_add_u32 s24, s24, s37
    s_add_u32 s24, s24, {WPO}
    s_add_u32 s25, s24, s48
    s_add_u32 s26, s25, s48
    s_add_u32 s27, s26, s48
    v_add_u32 v14, 512, v13
    v_add_u32 v15, 1024, v13
    s_branch P_ST
    P_D2:
    v_add_u32 v14, 1024, v13
    v_add_u32 v15, 512, v13
    v_lshrrev_b32 v6, 5, v1
    v_and_b32 v7, 31, v1
    v_lshlrev_b32 v11, 4, v7
    s_cmp_ge_u32 s36, 203
    s_cbranch_scc1 P_D3
    v_lshl_add_u32 v11, v6, 10, v11
    v_add_u32 v12, 512, v11
    s_mul_i32 s24, s37, {UPG}
    s_lshl_b32 s39, s38, 13
    s_add_u32 s24, s24, s39
    s_add_u32 s24, s24, {OB}
    s_add_u32 s25, s24, 2048
    s_add_u32 s26, s24, 4096
    s_add_u32 s27, s24, 6144
    s_branch P_ST
    P_D3:
    v_mul_u32_u24 v6, 0x7f0000, v6
    v_lshl_add_u32 v11, v6, 4, v11
    v_add_u32 v12, 512, v11
    s_mul_i32 s24, s38, {WPH2}
    s_add_u32 s24, s24, {PHB}
    s_cmp_lt_u32 s38, 8
    s_cselect_b32 s24, s24, 0x08000000
    s_add_u32 s25, s24, 1024
    s_add_u32 s26, s24, {WPH}
    s_add_u32 s27, s26, 1024
    s_mov_b32 s64, 0x0fffffff
    P_ST:
    """.format(WPH=WP_H, WPQ=WP_Q, WPO=hex(WP_OFF), UPG=UP_G, OB=hex(UP_OFF + 112 * 2048), WPH2=2 * WP_H, PHB=hex(WP_OFF + WP_PHI)))
    stamp(a, 3)
    for u in range(4):
        b = 16 + 8 * u
        a.wait(vm="u%d" % u)
        a.ds("ds_read_b64_tr_b16 %s, v13 offset:%d" % (vr(b, 2), u * 2048), "t%d" % u)
        a.ds("ds_read_b64_tr_b16 %s, v14 offset:%d" % (vr(b + 2, 2), u * 2048), "t%d" % u)
        a.ds("ds_read_b64_tr_b16 %s, v15 offset:%d" % (vr(b + 4, 2), u * 2048), "t%d" % u)
        a.ds("ds_read_b64_tr_b16 %s, v13 offset:%d" % (vr(b + 6, 2), u * 2048 + 1536), "t%d" % u)
    stamp(a, 4)
    for u in range(4):
        b = 16 + 8 * u
        a.wait(lg="t%d" % u)
        for r in range(8): a("v_cndmask_b32 v%d, 0, v%d, s[64:65]" % (b + r, b + r))
        a.vmem("buffer_store_dwordx4 %s, v11, s[32:35], s%d offen sc1" % (vr(b, 4), 24 + u))
        a.vmem("buffer_store_dwordx4 %s, v12, s[32:35], s%d offen sc1" % (vr(b + 4, 4), 24 + u))
    a.vmem("buffer_load_dword v4, v5, s[44:47], 0 offen sc1")
    stamp(a, 5)
    a.drain()
    stamp(a, 6)
    a("s_barrier")
    a("s_cmp_lg_u32 s14, 0")
    a("s_cbranch_scc1 P_NOARR")
    a("v_readfirstlane_b32 s61, v4")
    a("s_cmp_lg_u32 s61, 0")
    a("s_cbranch_scc1 P_RDY")
    poll(a, DBG, "0", 5, 4)
    a.label("P_RDY")
    a("s_mov_b32 s20, %s" % hex(SYNC_OFF + SW_CNT * SL))
    arrive_issue(a, "s20")
    a.drain(vm=False)
    a("s_cmp_lg_u32 s62, 59")
    a("s_cbranch_scc1 P_NOARR")
    a("s_mov_b32 s62, 1")
    for i in range(8): a("s_atomic_add s62, s[30:31], s20 offset:%d" % ((SW_REL - SW_CNT + i) * SL))
    a("s_mov_b32 s20, %s" % hex(SYNC_OFF + SA_ROOT * SL))
    a("s_mov_b32 s63, 1")
    a("s_atomic_add s63, s[30:31], s20 glc")
    a.drain(vm=False)
    a("s_cmp_lg_u32 s63, 16")
    a("s_cbranch_scc1 P_NOARR")
    a("s_atomic_add s62, s[28:29], 0x80")
    a.label("P_NOARR")
    if WSBASE:
        a("s_sub_u32 s30, s30, %s" % hex(WSBASE))
        a("s_subb_u32 s31, s31, 0")
    a("s_cmp_lt_u32 s57, 28")
    a("s_cbranch_scc1 ROLE_G")
    if STAMP == 1:
        stamp(a, 1)
        stamp_flush(a, 7, 60)
        a("s_mov_b64 exec, -1")
    if ONLYA or not E("PON", 1): a("s_endpgm")
    a("""
    s_and_b32 s36, s57, 3
    s_lshl_b32 s37, s56, 2
    s_add_u32 s37, s37, s36
    s_lshl_b32 s37, s37, 7
    s_mul_i32 s58, s14, {W64}
    s_add_u32 s58, s58, s37
    s_add_u32 s58, s58, {R0}
    s_cmp_eq_u32 s56, 7
    s_cselect_b32 s58, 0x08000000, s58
    v_mul_u32_u24 v6, 3584, v2
    v_add_u32 v6, v6, v3
    """.format(W64=64 * 3584, R0=1792 * 3584))
    srd(a, 16, 40, str(2048 * 3584))
    for i in range(8):
        a("buffer_load_dwordx4 %s, v6, s[16:19], s58 offen nt" % vr(16 + 4 * i, 4))
        a("s_add_u32 s58, s58, %d" % (8 * 3584))
    a("""
    s_lshl_b32 s36, s36, 2
    s_add_u32 s36, s36, s14
    v_lshrrev_b32 v2, 5, v1
    v_lshlrev_b32 v2, 12, v2
    v_and_b32 v3, 31, v1
    v_lshl_add_u32 v2, v3, 4, v2
    s_lshl_b32 s58, s56, 9
    v_add_u32 v2, s58, v2
    v_lshlrev_b32 v1, 4, v1
    v_mov_b32 v3, 0
    s_mul_i32 s37, s56, 229376
    """)
    srd(a, 24, 52, str(1792 * 4096))
    srd(a, 16, 4, "229376", add="s37")
    a("s_cmp_lg_u32 s14, 0")
    a("s_cbranch_scc1 P_GO")
    a("s_movk_i32 s58, 0x80")
    poll(a, DBG, "s58", 3, 4, sleep=16)
    a.label("P_GO")
    a("s_barrier")
    PD = E("PDEPTH", 8)
    def pf_loop(lbl, srdn, vaddr, step, limit, pol):
        a.label(lbl)
        for i in range(8):
            a("s_waitcnt vmcnt(%d)" % (PD - 1))
            a("buffer_load_dwordx4 %s, v%d, s[%d:%d], s58 offen %s" % (vr(8 + 4 * i, 4), vaddr, srdn, srdn + 3, pol))
            a("s_add_u32 s58, s58, %d" % step)
        a("s_cmp_lt_u32 s58, %s" % limit)
        a("s_cbranch_scc1 %s" % lbl)
    a("s_lshl_b32 s58, s36, 10")
    pf_loop("P_X", 16, 1, 16 * 1024, "229376", PFPOL)
    a("s_lshl_b32 s58, s36, 13")
    pf_loop("P_W2", 24, 2, 16 * 8192, str(1792 * 4096), PFPOL)
    a("s_lshl_b32 s58, s36, 12")
    a("s_add_u32 s58, s58, %s" % hex(UP_OFF + 112 * 2048))
    for g_ in range(7):
        a("s_waitcnt vmcnt(4)")
        for i in range(4): a("buffer_load_dwordx4 %s, v1, s[32:35], s58 offen offset:%d sc1" % (vr(8 + 16 * (g_ % 2) + 4 * i, 4), i * 1024))
        a("s_add_u32 s58, s58, %d" % UP_G)
    a("s_endpgm")
    a.label("CODE_END")
    if DIAG:
        out = HEADER + "; @launch kernel=%s grid=(512,1,1) block=(256,1,1) lds=81920\n; @launch kernel=diag_kernel grid=(1,1,1) block=(64,1,1) lds=0\n" % KNAME
        a.lines += [".globl diag_kernel", ".p2align 8", ".type diag_kernel,@function"]
        a("""
        diag_kernel:
        s_cmp_lg_u32 s2, 0
        s_cbranch_scc1 DG_END
        s_load_dwordx2 s[4:5], s[0:1], 80
        s_waitcnt lgkmcnt(0)
        s_sub_u32 s4, s4, 512
        s_subb_u32 s5, s5, 0
        s_load_dwordx2 s[6:7], s[4:5], 128
        s_memrealtime s[8:9]
        s_waitcnt lgkmcnt(0)
        s_not_b32 s6, s6
        s_sub_u32 s6, s7, s6
        s_min_u32 s6, s6, 10000
        s_mul_i32 s6, s6, %d
        DG_L:
        s_memrealtime s[10:11]
        s_waitcnt lgkmcnt(0)
        s_sub_u32 s10, s10, s8
        s_cmp_lt_u32 s10, s6
        s_cbranch_scc1 DG_L
        DG_END:
        s_endpgm
        """ % E("AMP", 10))
    else:
        out = HEADER + "; @launch grid=(512,1,1) block=(256,1,1) lds=81920\n"
    out += '.amdgcn_target "amdgcn-amd-amdhsa--gfx950"\n.text\n.globl %s\n.p2align 8\n.type %s,@function\n' % (KNAME, KNAME)
    out += a.text()
    out += """.section .rodata,"a"
.p2align 6
.amdhsa_kernel {n}
  .amdhsa_next_free_vgpr 256
  .amdhsa_next_free_sgpr {s}
  .amdhsa_accum_offset 256
  .amdhsa_group_segment_fixed_size 0
  .amdhsa_kernarg_size 96
  .amdhsa_user_sgpr_count 2
  .amdhsa_user_sgpr_kernarg_segment_ptr 1
  .amdhsa_system_sgpr_workgroup_id_x 1
  .amdhsa_float_denorm_mode_32 3
.end_amdhsa_kernel
""".format(n=KNAME, s=100 if STAMP else 72)
    if DIAG:
        out += """.p2align 6
.amdhsa_kernel diag_kernel
  .amdhsa_next_free_vgpr 8
  .amdhsa_next_free_sgpr 32
  .amdhsa_accum_offset 8
  .amdhsa_group_segment_fixed_size 0
  .amdhsa_kernarg_size 96
  .amdhsa_user_sgpr_count 2
  .amdhsa_user_sgpr_kernarg_segment_ptr 1
  .amdhsa_system_sgpr_workgroup_id_x 1
.end_amdhsa_kernel
"""
    open(path, "w").write(out)

if __name__ == "__main__":
    main(sys.argv[1])
```

```python
import sys, struct, os

NAME = "parallel_sum__linear_kernel_hedgehog__mixer_token_mlp__prompt"
KNAME = NAME + "_kernel"
E = lambda k, d: int(os.environ.get(k, str(d)))

XN_OFF   = 0x000000
HT_OFF   = 0x200000
HT_G     = 128 * 2048
WP_OFF   = 0x400000
WP_Q     = 28 * 1792
WP_PHI   = 28 * 2688
WP_H     = WP_PHI + 2048 + 512
UP_OFF   = 0x600000
UP_G     = 144 * 2048
KVF_OFF  = 0x800000
SYNC_OFF = 0x840000
OF_OFF   = 0x900000
KVP_OFF  = 0xB00000
PART_OFF = 0xD00000
WS_USED  = 0x1000000
STAMP_OFF = 0xF00000
BIG      = 0x7ff00000
SL = 256
SX_CNT, SX_REL = 0, 16
SW_CNT, SW_REL = 32, 48
S1_CNT, S1_REL = 64, 80
SV_CNT, SV_REL = 96, 112
S2_CNT, S2_REL = 128, 160
S4_CNT, S4_REL = 192, 200
SA_ROOT = 216
SA_REP = 208
SH_REL = 224
NSYNC = 256
SPIN_MAX = 0x40000

STAMP = E("STAMP", 0); PRIO_A = E("PRIO_A", 2); PRIO_G = E("PRIO_G", 1); AHEAD = E("AHEAD", 4); W2START = E("W2START", 32)
NB, NF, NS = E("NB", 16), E("NF", 5), 10
LEAD = E("LEAD", 0)
XPRE = E("XPRE", 12)
PSL = E("PSL", 1)
WDMA1 = E("WDMA1", 0)
WPRE = E("WPRE", 0)
NOPK = E("NOPK", 0)
NOA = E("NOA", 0)
TWO = E("TWO", 0)
GTOP = E("GTOP", 2)
TAILM = E("TAILM", 3)
HELP = E("HELP", 0)
NK1 = 28 if HELP else 32
NB2 = NB - NOA
ROT2 = E("ROT2", 1)
INL0 = E("INL0", 18)
INLN = E("INLN", 0)
INLP = E("INLP", 1)
WPUMP = E("WPUMP", 0)
AHEAD2 = E("AHEAD2", 5)
PFW2 = E("PFW2", 0)
PRIO_Q = E("PRIO_Q", 0)
PRIO_K = E("PRIO_K", 2)
JOBLATE = E("JOBLATE", 1)
BURST = E("BURST", 4)
PFPOL = os.environ.get("PFPOL", "")
NP = E("NP", 0)
AHEAD0 = E("AHEAD0", 5)
ALOOK = E("ALOOK", 99)
W2POL = os.environ.get("W2POL", "")
W1POL2 = os.environ.get("W1POL2", "")
RESEARLY = E("RESEARLY", 0)
WSBASE = E("WSBASE", 0)
ONLY2 = E("ONLY2", 0)
ONLYG = E("ONLYG", 0)
ONLYA = E("ONLYA", 0)
GWAIT = E("GWAIT", 0)
PFWAIT = E("PFWAIT", 0)
OUTPOL = os.environ.get("OUTPOL", "")

def f32(x): return "0x%08x" % struct.unpack("<I", struct.pack("<f", x))[0]

class Q:
    def __init__(self, mx): self.ops = []; self.mx = mx
    def issue(self, tag): self.ops.append(tag)
    def need(self, tags):
        if not isinstance(tags, (list, tuple, set)): tags = [tags]
        idx = -1
        for i, t in enumerate(self.ops):
            if t in tags: idx = i
        if idx < 0: return None
        n = len(self.ops) - 1 - idx
        if n > self.mx: return self.mx
        self.ops = self.ops[idx + 1:]
        return n
    def clear(self): self.ops = []

class Asm:
    def __init__(self):
        self.lines = []; self.vm = Q(63); self.lg = Q(15); self.uid = 0; self.issued = []; self.spr = []; self.pending = False
    def sprinkle(self, fns, gap): self.spr = fns; self.gap = gap; self.cnt = 0
    def sprinkle_flush(self):
        fns, self.spr = self.spr, []
        for f in fns: f()
    def __call__(self, s):
        for l in s.strip().split("\n"):
            l = l.strip()
            if l.endswith(":"): self.lines.append(l)
            elif l: self.lines.append("    " + l)
        if self.spr and s.lstrip().startswith(("v_", "ds_")):
            self.cnt += 1
            if self.cnt >= self.gap:
                self.cnt = 0
                self.spr.pop(0)()
    def label(self, l): self.lines.append(l + ":")
    def vmem(self, s, tag=None): self(s); self.vm.issue(tag); self.issued.append(tag)
    def ds(self, s, tag=None): self(s); self.lg.issue(tag)
    def wait(self, vm=None, lg=None):
        p = []
        for q, t, nm in ((self.vm, vm, "vmcnt"), (self.lg, lg, "lgkmcnt")):
            if t is None: continue
            n = q.need(t)
            if n is None: continue
            if len(q.ops) > n: q.ops = q.ops[len(q.ops) - n:]
            p.append("%s(%d)" % (nm, n))
        if p: self("s_waitcnt " + " ".join(p))
    def drain(self, vm=True, lg=True):
        p = []
        if vm: p.append("vmcnt(0)"); self.vm.clear()
        if lg: p.append("lgkmcnt(0)"); self.lg.clear()
        self("s_waitcnt " + " ".join(p))
    def newlabel(self, p): self.uid += 1; return "%s_%d" % (p, self.uid)
    def text(self): return "\n".join(self.lines) + "\n"

def vr(a, n): return "v[%d:%d]" % (a, a + n - 1)

def srd(a, d, base, size, add=None):
    if add is None:
        a("s_mov_b32 s%d, s%d" % (d, base))
        a("s_and_b32 s%d, s%d, 0xffff" % (d + 1, base + 1))
    else:
        a("s_add_u32 s%d, s%d, %s" % (d, base, add))
        a("s_addc_u32 s%d, s%d, 0" % (d + 1, base + 1))
        a("s_and_b32 s%d, s%d, 0xffff" % (d + 1, d + 1))
    a("s_mov_b32 s%d, %s" % (d + 2, size))
    a("s_mov_b32 s%d, 0x20000" % (d + 3))

WS = 32
DBG = 44

def ws_base(a):
    if WSBASE:
        a("s_add_u32 s30, s30, %s" % hex(WSBASE))
        a("s_addc_u32 s31, s31, 0")

def stamp(a, i):
    if STAMP == 3 and i not in (0, 13): return
    if STAMP:
        a("%s s[%d:%d]" % ("s_memtime" if STAMP == 2 else "s_memrealtime", 70 + 2 * i, 71 + 2 * i))
        a.drain(vm=False)
DIAG = os.environ.get("DIAG", "")
def stamp_flush(a, n, tmp, role=""):
    if not STAMP: return
    a.drain()
    stamp(a, n)
    if DIAG:
        a("s_mov_b64 exec, 1")
        a("v_mov_b32 v%d, 0" % tmp)
        a("s_not_b32 s98, s70")
        a("v_mov_b32 v%d, s98" % (tmp + 1))
        a("buffer_atomic_umax v%d, v%d, s[44:47], 0 offen offset:128 sc1" % (tmp + 1, tmp))
        if DIAG[0] == role:
            a("v_mov_b32 v%d, s%d" % (tmp + 2, 70 + 2 * int(DIAG[1:])))
            a("buffer_atomic_umax v%d, v%d, s[44:47], 0 offen offset:132 sc1" % (tmp + 2, tmp))
        return
    a("s_mov_b64 exec, 1")
    a("s_lshl_b32 s98, s2, 8")
    a("s_lshl_b32 s99, s14, 6")
    a("s_add_u32 s98, s98, s99")
    a("s_add_u32 s98, s98, %s" % hex(STAMP_OFF))
    a("v_mov_b32 v%d, 0" % tmp)
    if STAMP == 3:
        if n == 13:
            a("v_mov_b32 v%d, s70" % (tmp + 1))
            a("v_mov_b32 v%d, s96" % (tmp + 2))
            a("buffer_store_dword v%d, v%d, s[32:35], s98 offen" % (tmp + 1, tmp))
            a("buffer_store_dword v%d, v%d, s[32:35], s98 offen offset:52" % (tmp + 2, tmp))
        return
    for i in range(n + 1):
        a("v_mov_b32 v%d, s%d" % (tmp + 1, 70 + 2 * i))
        a("buffer_store_dword v%d, v%d, s[32:35], s98 offen offset:%d" % (tmp + 1, tmp, 4 * i))
        a("s_waitcnt vmcnt(0)")

def poll(a, srdn, soff, vz, vt, sleep=1, target=1, keep=False):
    if ONLY2 or ONLYG: return
    sv = list(a.vm.ops)
    l = a.newlabel("POLL"); d = a.newlabel("POLLD")
    a("s_mov_b32 s60, 0")
    a("s_mov_b64 exec, 1")
    a.label(l)
    a("buffer_load_dword v%d, v%d, s[%d:%d], %s offen sc1" % (vt, vz, srdn, srdn + 3, soff))
    a("s_add_u32 s60, s60, 1")
    a.drain(lg=False)
    a("v_readfirstlane_b32 s61, v%d" % vt)
    a("s_cmp_ge_u32 s61, %d" % target)
    a("s_cbranch_scc1 %s" % d)
    if sleep: a("s_sleep %d" % sleep)
    a("s_cmp_lt_u32 s60, %s" % hex(SPIN_MAX))
    a("s_cbranch_scc1 %s" % l)
    a.label(d)
    a("s_mov_b64 exec, -1")
    if keep: a.vm.ops = sv

def arrive_issue(a, soff):
    a("s_mov_b32 s62, 1")
    a("s_atomic_add s62, s[30:31], %s glc" % soff)
def arrive_finish(a, last, srels, skip):
    a.drain(vm=False)
    a("s_cmp_lg_u32 s62, %d" % last)
    a("s_cbranch_scc1 %s" % skip)
    a("s_mov_b32 s62, 1")
    for r in srels: a("s_atomic_add s62, s[30:31], %s" % r)

def flag_issue(a, srdn, soff, vz, vt, tag):
    if ONLY2 or ONLYG: return
    a.vmem("buffer_load_dword v%d, v%d, s[%d:%d], %s offen sc1" % (vt, vz, srdn, srdn + 3, soff), tag)
def flag_check(a, srdn, soff, vz, vt, tag, sleep):
    if ONLY2 or ONLYG: return
    ok = a.newlabel("FLAG")
    a.wait(vm=tag)
    a("v_readfirstlane_b32 s61, v%d" % vt)
    a("s_cmp_lg_u32 s61, 0")
    a("s_cbranch_scc1 %s" % ok)
    poll(a, srdn, soff, vz, vt, sleep=sleep, keep=True)
    a.label(ok)

def arrive(a, soff):
    a("s_mov_b32 s62, 1")
    a("s_atomic_add s62, s[30:31], %s" % soff)

def round_bf16(a, d, s):
    a("v_cvt_pk_bf16_f32 v%d, v%d, v%d" % (d, s, s))
    a("v_lshlrev_b32 v%d, 16, v%d" % (d, d))

def half_reduce(a, regs, tmps):
    steps = ["quad_perm:[1,0,3,2] row_mask:0xf bank_mask:0xf", "quad_perm:[2,3,0,1] row_mask:0xf bank_mask:0xf",
             "row_half_mirror row_mask:0xf bank_mask:0xf", "row_mirror row_mask:0xf bank_mask:0xf"]
    for st in steps:
        a("s_nop %d" % (1 if len(regs) == 1 else 0))
        for r in regs: a("v_add_f32_dpp v%d, v%d, v%d %s" % (r, r, r, st))
    for r, t in zip(regs, tmps): a("v_mov_b32 v%d, v%d" % (t, r))
    a("s_nop 1")
    for r, t in zip(regs, tmps): a("v_permlane16_swap_b32 v%d, v%d" % (r, t))
    a("s_nop 0")
    for r, t in zip(regs, tmps): a("v_add_f32 v%d, v%d, v%d" % (r, r, t))

MF = "v_mfma_f32_32x32x16_bf16"

def role_a(a):
    LN, VA, VB, VC, VD, VZ, VT, VH = 250, 251, 252, 253, 254, 248, 249, 255
    a.label("ROLE_A")
    if ONLY2 or ONLYG: a("s_endpgm")
    JB = 16384
    a("""
    s_lshr_b32 s38, s56, 1
    s_lshl_b32 s38, s38, 2
    s_and_b32 s39, s57, 3
    s_add_u32 s38, s38, s39
    s_and_b32 s39, s56, 1
    s_lshl_b32 s39, s39, 3
    s_lshr_b32 s57, s57, 2
    s_add_u32 s39, s39, s57
    s_lshl_b32 s15, s38, 4
    s_add_u32 s15, s15, s39
    v_and_b32 v{VC}, 31, v0
    v_lshrrev_b32 v2, 5, v0
    s_mul_i32 s20, s15, 7168
    v_min_u32 v4, 27, v{VC}
    v_mul_u32_u24 v3, 896, v2
    v_lshl_add_u32 v3, v4, 5, v3
    v_add_u32 v4, s20, v3
    s_waitcnt lgkmcnt(0)
    global_load_dwordx4 v[8:11], v4, s[4:5] nt
    global_load_dwordx4 v[12:15], v4, s[4:5] offset:16 nt
    s_mov_b32 s58, 0x0fffffff
    s_mov_b32 s59, 0x0fffffff
    s_setprio {PRIO}
    s_mul_i32 s25, s39, {WPH}
    s_add_u32 s25, s25, {WPO}
    v_and_b32 v{LN}, 63, v0
    v_bfe_u32 v{VH}, v0, 5, 1
    v_mov_b32 v{VZ}, 0
    v_lshlrev_b32 v{VA}, 4, v{LN}
    v_mul_u32_u24 v{VB}, 448, v{VH}
    v_lshl_add_u32 v{VB}, v{VC}, 4, v{VB}
    """.format(VC=VC, SYA=hex(SYNC_OFF + WSBASE), PRIO=PRIO_A, WPH=WP_H, WPO=hex(WP_OFF), LN=LN, VH=VH, VZ=VZ, VA=VA, VB=VB))
    a.vm.issue("x"); a.vm.issue("x")
    ws_base(a)
    srd(a, WS, 30, hex(WS_USED))
    srd(a, DBG, 28, "256")
    P, X, T = 8, 16, 32
    def unpack(dst, src):
        for i in range(8):
            a("v_lshlrev_b32 v%d, 16, v%d" % (dst + 2 * i, src + i))
            a("v_and_b32 v%d, 0xffff0000, v%d" % (dst + 2 * i + 1, src + i))
    def pack(dst, src):
        for i in range(8): a("v_cvt_pk_bf16_f32 v%d, v%d, v%d" % (dst + i, src + 2 * i, src + 2 * i + 1))
    def pksum(dst, src):
        a("v_pk_add_f32 %s, %s, %s" % (vr(dst, 2), vr(src, 2), vr(src + 2, 2)))
        a("v_pk_add_f32 %s, %s, %s" % (vr(dst + 2, 2), vr(src + 4, 2), vr(src + 6, 2)))
        for i in (8, 12):
            a("v_pk_add_f32 %s, %s, %s" % (vr(dst, 2), vr(dst, 2), vr(src + i, 2)))
            a("v_pk_add_f32 %s, %s, %s" % (vr(dst + 2, 2), vr(dst + 2, 2), vr(src + i + 2, 2)))
        a("v_pk_add_f32 %s, %s, %s" % (vr(dst, 2), vr(dst, 2), vr(dst + 2, 2)))
        a("v_add_f32 v%d, v%d, v%d" % (dst, dst, dst + 1))
    def pksq(dst, src):
        a("v_pk_mul_f32 %s, %s, %s" % (vr(dst, 2), vr(src, 2), vr(src, 2)))
        a("v_pk_mul_f32 %s, %s, %s" % (vr(dst + 2, 2), vr(src + 2, 2), vr(src + 2, 2)))
        for i in (4, 8, 12):
            a("v_pk_fma_f32 %s, %s, %s, %s" % (vr(dst, 2), vr(src + i, 2), vr(src + i, 2), vr(dst, 2)))
            a("v_pk_fma_f32 %s, %s, %s, %s" % (vr(dst + 2, 2), vr(src + i + 2, 2), vr(src + i + 2, 2), vr(dst + 2, 2)))
        a("v_pk_add_f32 %s, %s, %s" % (vr(dst, 2), vr(dst, 2), vr(dst + 2, 2)))
        a("v_add_f32 v%d, v%d, v%d" % (dst, dst, dst + 1))
    def pksub(dst, src, m):
        for i in range(0, 16, 2):
            a("v_pk_add_f32 %s, %s, %s op_sel_hi:[1,0] neg_lo:[0,1] neg_hi:[0,1]" % (vr(dst + i, 2), vr(src + i, 2), vr(m, 2)))
    def pkmul(dst, src, m):
        for i in range(0, 16, 2): a("v_pk_mul_f32 %s, %s, %s op_sel_hi:[1,0]" % (vr(dst + i, 2), vr(src + i, 2), vr(m, 2)))
    def scale_from_var(r):
        round_bf16(a, r, r)
        a("v_add_f32 v%d, %s, v%d" % (r, f32(1e-5), r))
        round_bf16(a, r, r)
        a("v_sqrt_f32 v%d, v%d" % (r, r))
        a("s_nop 0")
        round_bf16(a, r, r)
        a("v_rcp_f32 v%d, v%d" % (r, r))
    inv = f32(1.0 / 448.0)
    S, S2, M, RS_, C2, D2 = 72, 76, 80, 82, 84, 86
    HB, HP = 7168, 912
    a("""
    v_lshl_add_u32 v5, v2, 4, v3
    v_bfe_u32 v88, v{LN}, 2, 2
    v_mul_u32_u24 v88, {HP}, v88
    v_lshrrev_b32 v89, 4, v{LN}
    v_lshl_add_u32 v88, v89, 5, v88
    v_and_b32 v89, 3, v{LN}
    v_lshl_add_u32 v88, v89, 3, v88
    s_lshl_b32 s20, s14, 7
    v_add_u32 v88, s20, v88
    v_lshlrev_b32 v92, 10, v{VH}
    v_lshl_add_u32 v92, v{VC}, 4, v92
    v_and_b32 v89, 7, v{LN}
    v_lshrrev_b32 v90, 3, v{LN}
    s_lshl_b32 s20, s14, 3
    v_add_u32 v90, s20, v90
    v_mul_u32_u24 v91, 896, v89
    v_lshl_add_u32 v91, v90, 4, v91
    v_lshlrev_b32 v89, 4, v89
    v_lshl_add_u32 v89, v90, 9, v89
    s_lshr_b32 s20, s15, 2
    s_mul_i32 s20, s20, 28672
    s_and_b32 s21, s15, 3
    s_lshl_b32 s21, s21, 7
    s_add_u32 s20, s20, s21
    s_lshl_b32 s21, s14, 18
    s_lshr_b32 s22, s15, 1
    s_lshl_b32 s22, s22, 11
    s_add_u32 s21, s21, s22
    s_and_b32 s22, s15, 1
    s_lshl_b32 s22, s22, 9
    s_add_u32 s21, s21, s22
    s_add_u32 s21, s21, {HTO}
    s_cmp_eq_u32 s14, 3
    s_cselect_b32 s23, 0x08000000, 0
    s_add_u32 s22, s21, {HG4}
    s_or_b32 s22, s22, s23
    s_add_u32 s24, s20, 16384
    s_or_b32 s24, s24, s23
    s_lshl_b32 s40, s39, 8
    s_add_u32 s40, s40, {SY}
    s_lshl_b32 s41, s38, 8
    s_add_u32 s41, s41, {SY}
    """.format(LN=LN, VH=VH, VC=VC, HP=HP, HG4=4 * HT_G, HTO=hex(HT_OFF), SY=hex(SYNC_OFF)))
    assert XN_OFF == 0 and HT_G == 1 << 18
    stamp(a, 1)
    a.wait(vm="x")
    stamp(a, 2)
    unpack(X, P)
    pksum(S, X)
    a("v_cndmask_b32 v%d, 0, v%d, s[58:59]" % (S, S))
    half_reduce(a, [S], [S + 1])
    a("v_mul_f32 v%d, %s, v%d" % (S, inv, S))
    round_bf16(a, M, S)
    pksub(X, X, M)
    pksq(S2, X)
    a("v_sub_f32 v%d, v%d, v%d" % (S, S, M))
    a("v_cndmask_b32 v%d, 0, v%d, s[58:59]" % (S2, S2))
    half_reduce(a, [S2], [S2 + 1])
    a("v_mul_f32 v%d, %s, v%d" % (S2, inv, S2))
    a("v_fma_f32 v%d, -v%d, v%d, v%d" % (S2, S, S, S2))
    a("v_max_f32 v%d, 0, v%d" % (S2, S2))
    a("v_mov_b32 v%d, v%d" % (RS_, S2))
    scale_from_var(RS_)
    a("s_nop 0")
    a("v_mul_f32 v%d, v%d, v%d" % (C2, S2, RS_))
    a("v_mul_f32 v%d, v%d, v%d" % (D2, S, RS_))
    a("v_mul_f32 v%d, v%d, v%d" % (C2, C2, RS_))
    round_bf16(a, D2, D2)
    pkmul(T, X, RS_)
    scale_from_var(C2)
    pack(P, T)
    a.ds("ds_write_b128 v3, v[8:11]")
    a.ds("ds_write_b128 v3, v[12:15] offset:16")
    a("v_mul_f32 v%d, v%d, v%d" % (D2, D2, C2))
    for i in range(0, 16, 2):
        a("v_pk_fma_f32 %s, %s, %s, %s op_sel_hi:[1,0,0] neg_lo:[0,0,1] neg_hi:[0,0,1]" % (vr(T + i, 2), vr(T + i, 2), vr(C2, 2), vr(D2, 2)))
    pack(X, T)
    a.ds("ds_write_b128 v5, v[16:19] offset:%d" % HB)
    a.ds("ds_write_b128 v5, v[20:23] offset:%d" % (HB + 16))
    stamp(a, 3)
    a.drain(vm=False)
    a("s_barrier")
    a.ds("ds_read_b64_tr_b16 v[28:29], v88 offset:%d" % HB, "h0")
    a.ds("ds_read_b64_tr_b16 v[30:31], v88 offset:%d" % (HB + 4 * HP), "h0")
    a.ds("ds_read_b128 v[36:39], v91", "x0")
    a.ds("ds_read_b64_tr_b16 v[32:33], v88 offset:%d" % (HB + 512), "h1")
    a.ds("ds_read_b64_tr_b16 v[34:35], v88 offset:%d" % (HB + 512 + 4 * HP), "h1")
    a.ds("ds_read_b128 v[40:43], v91 offset:512", "x1")
    a.wait(lg="h0"); a.vmem("buffer_store_dwordx4 v[28:31], v92, s[32:35], s21 offen sc1")
    FAKEX = E("FAKEX", 0)
    if not FAKEX: a.wait(lg="x0"); a.vmem("buffer_store_dwordx4 v[36:39], v89, s[32:35], s20 offen sc1")
    a.wait(lg="h1"); a.vmem("buffer_store_dwordx4 v[32:35], v92, s[32:35], s22 offen sc1")
    if not FAKEX: a.wait(lg="x1"); a.vmem("buffer_store_dwordx4 v[40:43], v89, s[32:35], s24 offen sc1")
    a.vmem("buffer_load_dword v%d, v%d, s[44:47], 0 offen sc1" % (VT, VZ), "ready")
    a("""
    s_lshl_b32 s36, s38, 2
    s_add_u32 s36, s36, s14
    s_mul_i32 s24, s36, 28672
    s_lshl_b32 s26, s14, 10
    s_add_u32 s25, s25, s26
    v_add_u32 v{VD}, 0x8000, v{VB}
    """.format(VB=VB, VD=VD))
    a.drain()
    stamp(a, 4)
    a("s_barrier")
    AQ, AK, AV = 0, 16, 32
    XF, WF, PH = 64, 176, 208
    a("s_cmp_lg_u32 s14, 0")
    a("s_cbranch_scc1 A_GO")
    a("v_readfirstlane_b32 s61, v%d" % VT)
    a("s_cmp_lg_u32 s61, 0")
    a("s_cbranch_scc1 A_RDY")
    poll(a, DBG, "0", VZ, VT)
    a.label("A_RDY")
    arrive_issue(a, "s41 offset:%d" % (SX_CNT * SL))
    a.drain(vm=False)
    a("s_cmp_lg_u32 s62, 15")
    a("s_cbranch_scc1 A_WAIT")
    a("s_mov_b32 s62, 1")
    a("s_atomic_add s62, s[30:31], s41 offset:%d" % (SX_REL * SL))
    a("s_mov_b32 s20, %s" % hex(SYNC_OFF + SA_ROOT * SL))
    a("s_mov_b32 s63, 1")
    a("s_atomic_add s63, s[30:31], s20 glc")
    a.drain(vm=False)
    a("s_cmp_lg_u32 s63, 15")
    a("s_cbranch_scc1 A_GO")
    a("s_atomic_add s62, s[28:29], 0x80")
    a("s_branch A_GO")
    a.label("A_WAIT")
    a("s_add_u32 s20, s41, %d" % (SX_REL * SL))
    poll(a, WS, "s20", VZ, VT, sleep=PSL)
    a.label("A_GO")
    a("s_barrier")
    stamp(a, 5)
    if E("FAKEA", 0) == 1: a("s_endpgm")
    def wdma(r, tag):
        a("s_add_u32 m0, s26, %d" % (r * 4096))
        a("s_add_u32 s28, s25, %d" % (r * 4096))
        a.vmem("buffer_load_dwordx4 v%d, s[32:35], s28 offen sc1 lds" % VA, tag)
    def xload(k):
        if FAKEX and k == 0:
            a("s_lshl_b32 s24, s36, 12")
            a("s_add_u32 s24, s24, %s" % hex(HT_OFF))
        if k % 4 == 0 and k > 0: a("s_add_u32 s24, s24, %d" % (HT_G if FAKEX else 4096))
        a.vmem("buffer_load_dwordx4 %s, v%d, s[32:35], s24 offen offset:%d sc1" % (vr(XF + 4 * k, 4), VA, (k % 4) * 1024), "x%d" % k)
    cuts = [0, 6, 13, 20, 28]; rnds = [0, 3, 6, 9, 13]
    XF1 = E("XFIRST", 16)
    a("s_lshl_b32 s20, s56, 8")
    a("s_add_u32 s20, s20, %s" % hex(SYNC_OFF + SW_REL * SL))
    for k in range(XF1):
        if k == max(XF1 - 6, 0): flag_issue(a, WS, "s20", VZ, VT, "fw")
        xload(k)
    if XF1 == 0: flag_issue(a, WS, "s20", VZ, VT, "fw")
    flag_check(a, WS, "s20", VZ, VT, "fw", PSL)
    stamp(a, 6)
    seq = []
    for c in range(4):
        seq += [(lambda r=r, c=c: wdma(r, "wc%d" % c)) for r in range(rnds[c], rnds[c + 1])]
        seq += [(lambda k=k: xload(k)) for k in range(max(cuts[c], XF1), cuts[c + 1])]
    if TWO:
        a("s_sub_u32 s27, s25, s26")
        a("s_add_u32 s27, s27, %d" % WP_PHI)
        a("s_add_u32 s20, s20, %d" % ((SV_REL - SW_REL) * SL))
        seq += [(lambda i=i: a.vmem("buffer_load_dwordx4 %s, v%d, s[32:35], s27 offen offset:%d sc1" % (vr(PH + 4 * i, 4), VA, i * 1024), "ph")) for i in range(2)]
        seq += [lambda: flag_issue(a, WS, "s20", VZ, VT, "fv")]
    else: seq += [(lambda r=r: wdma(r, "wq")) for r in (18, 13, 14, 15, 16, 17)]
    for f in seq[:XPRE]: f()
    pend = seq[XPRE:]
    def lread(dst, off, tag, base=None):
        if off < 65536: a.ds("ds_read_b128 %s, v%d offset:%d" % (vr(dst, 4), VB, off), tag)
        else: a.ds("ds_read_b128 %s, v%d offset:%d" % (vr(dst, 4), VD, off - 32768), tag)
    def wread(k):
        b = WF + 8 * (k % 3)
        lread(b, k * 1792, "w%d" % k); lread(b + 4, k * 1792 + 896, "w%d" % k)
    for c in range(4):
        k0, k1 = cuts[c], cuts[c + 1]
        assert k1 * 1792 + 64 <= rnds[c + 1] * 4096
        assert sum(1 for t_ in a.issued if t_ == "wc%d" % c) == rnds[c + 1] - rnds[c]
        a.wait(vm="wc%d" % c)
        a("s_barrier")
        wread(k0); wread(k0 + 1)
        for k in range(k0, k1):
            if k + 2 < k1: wread(k + 2)
            assert "x%d" % k in a.issued
            a.wait(vm="x%d" % k, lg="w%d" % k)
            b = WF + 8 * (k % 3); x = vr(XF + 4 * k, 4)
            a("%s %s, %s, %s, %s" % (MF, vr(AK, 16), vr(b, 4), x, "0" if k == 0 else vr(AK, 16)))
            if pend and len(a.vm.ops) < ALOOK: pend.pop(0)()
            a("%s %s, %s, %s, %s" % (MF, vr(AV, 16), x, vr(b + 4, 4), "0" if k == 0 else vr(AV, 16)))
            while pend and len(a.vm.ops) < min(ALOOK, 12): pend.pop(0)()
            if pend and len(a.vm.ops) < ALOOK: pend.pop(0)()
    for f in pend: f()
    pend = []
    assert not pend
    if TWO:
        flag_check(a, WS, "s20", VZ, VT, "fv", PSL)
        for r in range(12, 19): wdma(r, "wq")
        a("s_barrier")
    else:
        a.drain(lg=False)
        a("s_barrier")
        a("v_add_u32 v2, 0x8000, v%d" % VA)
        a.ds("ds_read_b128 %s, v2 offset:%d" % (vr(PH, 4), WP_PHI - 32768), "ph")
        a.ds("ds_read_b128 %s, v2 offset:%d" % (vr(PH + 4, 4), WP_PHI + 1024 - 32768), "ph")
    stamp(a, 7)
    PKK, PKV = 48, 56
    PP = 216; EP, EM = 16, 32; OUT = 176; S0 = 192; TA = S0 + 12
    a("""
    s_mov_b32 s56, 0
    s_mov_b32 s57, -1
    s_mov_b32 s37, {L2E}
    v_mul_u32_u24 v{t}, 136, v{VC}
    v_lshl_add_u32 v{t}, v{VH}, 3, v{t}
    s_mul_i32 s28, s14, 4352
    v_add_u32 v{t}, s28, v{t}
    s_lshl_b32 s28, s14, 11
    v_add_u32 v{u}, s28, v{VA}
    v_cmp_eq_u32 vcc, 28, v{VC}
    v_mov_b32 v{S0}, 0x3f803f80
    """.format(L2E=f32(1.4426950408889634), t=TA, u=TA + 1, VC=VC, VH=VH, VA=VA, S0=S0))
    for r in range(8): a("v_cvt_pk_bf16_f32 v%d, v%d, v%d" % (PKK + r, AK + 2 * r, AK + 2 * r + 1))
    a("v_cndmask_b32 v%d, 0, v%d, vcc" % (S0, S0))
    a.wait(lg="ph")
    a("%s %s, %s, %s, 0" % (MF, vr(PP, 16), vr(PH, 4), vr(PKK, 4)))
    a("%s %s, %s, %s, %s" % (MF, vr(PP, 16), vr(PH + 4, 4), vr(PKK + 4, 4), vr(PP, 16)))
    for r in range(8): a("v_cvt_pk_bf16_f32 v%d, v%d, v%d" % (PKV + r, AV + 2 * r, AV + 2 * r + 1))
    for r in range(8): a("v_cndmask_b32 v%d, v%d, v%d, s[58:59]" % (PKV + r, S0, PKV + r))
    a.ds("ds_write_b128 v%d, %s offset:17408" % (TA + 1, vr(PKV, 4)))
    a.ds("ds_write_b128 v%d, %s offset:%d" % (TA + 1, vr(PKV + 4, 4), 17408 + 1024))

    def softmax2(P, sink=None):
        mx, mn, t0, t1, t2, t3 = S0, S0 + 1, S0 + 2, S0 + 3, S0 + 4, S0 + 5
        for op, m, t in (("max", mx, t0), ("min", mn, t1)):
            a("v_%s3_f32 v%d, v%d, v%d, v%d" % (op, t, P + 12, P + 13, P + 14))
            a("v_%s3_f32 v%d, v%d, v%d, v%d" % (op, m, P, P + 1, P + 2))
            a("v_%s_f32 v%d, v%d, v%d" % (op, t, t, P + 15))
            for i in range(3, 11, 2): a("v_%s3_f32 v%d, v%d, v%d, v%d" % (op, m, m, P + i, P + i + 1))
            a("v_cndmask_b32 v%d, v%d, v%d, s[56:57]" % (t, t, P))
            a("v_%s3_f32 v%d, v%d, v%d, v%d" % (op, m, m, P + 11, t))
        a("v_mov_b32 v%d, v%d" % (t0, mx))
        a("v_mov_b32 v%d, v%d" % (t1, mn))
        a("v_mov_b32 v%d, 0x7f800000" % t2)
        a("v_mov_b32 v%d, 0xff800000" % t3)
        a("v_permlane32_swap_b32 v%d, v%d" % (mx, t0))
        a("v_permlane32_swap_b32 v%d, v%d" % (mn, t1))
        a("s_nop 0")
        a("v_max_f32 v%d, v%d, v%d" % (mx, mx, t0))
        a("v_min_f32 v%d, v%d, v%d" % (mn, mn, t1))
        a("v_mul_f32 v%d, s37, v%d" % (mx, mx))
        a("v_mul_f32 v%d, s37, v%d" % (mn, mn))
        a("v_cndmask_b32 v%d, v%d, v%d, s[56:57]" % (t2, mx, t2))
        a("v_cndmask_b32 v%d, v%d, v%d, s[56:57]" % (t3, mn, t3))
        for r in range(16):
            a("v_fma_f32 v%d, v%d, s37, -v%d" % (EP + r, P + r, mx if r < 12 else t2))
            a("v_fma_f32 v%d, -v%d, s37, v%d" % (EM + r, P + r, mn if r < 12 else t3))
        for r in range(16):
            a("v_exp_f32 v%d, v%d" % (EP + r, EP + r))
            a("v_exp_f32 v%d, v%d" % (EM + r, EM + r))
            if r == 2:
                a("v_add_f32 v%d, v%d, v%d" % (mx, EP, EP + 1))
                a("v_add_f32 v%d, v%d, v%d" % (mn, EM, EM + 1))
            if r > 2:
                a("v_add_f32 v%d, v%d, v%d" % (mx, mx, EP + r - 1))
                a("v_add_f32 v%d, v%d, v%d" % (mn, mn, EM + r - 1))
        a("v_add_f32 v%d, v%d, v%d" % (mx, mx, EP + 15))
        a("v_add_f32 v%d, v%d, v%d" % (mn, mn, EM + 15))
        a("v_mov_b32 v%d, v%d" % (t0, mx))
        a("v_mov_b32 v%d, v%d" % (t1, mn))
        a("s_nop 1")
        a("v_permlane32_swap_b32 v%d, v%d" % (mx, t0))
        a("v_permlane32_swap_b32 v%d, v%d" % (mn, t1))
        a("s_nop 0")
        a("v_add_f32 v%d, v%d, v%d" % (mx, mx, t0))
        a("v_add_f32 v%d, v%d, v%d" % (mn, mn, t1))
        a("v_rcp_f32 v%d, v%d" % (mx, mx))
        a("v_rcp_f32 v%d, v%d" % (mn, mn))
        for e, (E_, m) in enumerate(((EP, mx), (EM, mn))):
            for q in range(4):
                for r in range(4): a("v_mul_f32 v%d, v%d, v%d" % (E_ + 4 * q + r, E_ + 4 * q + r, m))
                for r in range(2): a("v_cvt_pk_bf16_f32 v%d, v%d, v%d" % (OUT + 8 * e + 2 * q + r, E_ + 4 * q + 2 * r, E_ + 4 * q + 2 * r + 1))
                if sink: sink(e, q)

    softmax2(PP, lambda e, q: a.ds("ds_write_b64 v%d, %s offset:%d" % (TA, vr(OUT + 8 * e + 2 * q, 2), e * 64 + q * 16)))
    a("""
    v_lshlrev_b32 v{t}, 2, v{VH}
    v_bfe_u32 v{u}, v{LN}, 2, 2
    v_add_u32 v{t}, v{t}, v{u}
    v_mul_u32_u24 v{t}, 136, v{t}
    v_bfe_u32 v{u}, v{LN}, 4, 1
    v_lshl_add_u32 v{t}, v{u}, 5, v{t}
    v_and_b32 v{u}, 3, v{LN}
    v_lshl_add_u32 v{t}, v{u}, 3, v{t}
    s_lshl_b32 s28, s14, 6
    v_add_u32 v{t}, s28, v{t}
    s_lshl_b32 s42, s39, 16
    s_add_u32 s42, s42, {KVP}
    s_lshl_b32 s28, s38, 10
    s_lshl_b32 s29, s14, 15
    s_add_u32 s28, s28, s29
    s_add_u32 s28, s28, s42
    s_add_u32 s29, s28, 16384
    """.format(t=TA + 2, u=TA + 3, LN=LN, VH=VH, KVP=hex(KVP_OFF)))
    a.drain()
    a("s_barrier")
    stamp(a, 8)
    a("s_cmp_ge_u32 s14, 2")
    a("s_cbranch_scc1 A_QPASS")
    KVA = 232
    for w in range(4):
        for i in range(2):
            n_ = 2 * w + i
            a.ds("ds_read_b64_tr_b16 %s, v%d offset:%d" % (vr(4 * n_, 2), TA + 2, w * 4352 + (16 * i) * 136), "kv%d" % n_)
            a.ds("ds_read_b64_tr_b16 %s, v%d offset:%d" % (vr(4 * n_ + 2, 2), TA + 2, w * 4352 + (16 * i + 8) * 136), "kv%d" % n_)
            a.ds("ds_read_b128 %s, v%d offset:%d" % (vr(32 + 4 * n_, 4), VA, 17408 + w * 2048 + i * 1024), "kv%d" % n_)
    for n_ in range(8):
        a.wait(lg="kv%d" % n_)
        a("%s %s, %s, %s, %s" % (MF, vr(KVA, 16), vr(4 * n_, 4), vr(32 + 4 * n_, 4), "0" if n_ == 0 else vr(KVA, 16)))
    a("s_nop 11")
    for i in range(2):
        for r in range(4): a("v_cvt_pk_bf16_f32 v%d, v%d, v%d" % (PKV + 4 * i + r, KVA + 8 * i + 2 * r, KVA + 8 * i + 2 * r + 1))
        a("buffer_store_dwordx4 %s, v%d, s[32:35], %s offen sc1" % (vr(PKV + 4 * i, 4), VA, "s29" if i else "s28"))
    a.label("A_QPASS")
    if E("FAKEA", 0) == 2: a("s_endpgm")
    a("s_setprio %d" % PRIO_Q)
    a("s_mov_b32 s62, 0")
    QB = 16
    def qread(k): lread(QB + 4 * (k % 8), WP_Q + k * 896, "q%d" % k)
    for k in range(4): qread(k)
    for k in range(28):
        if k + 4 < 28: qread(k + 4)
        a.wait(lg="q%d" % k)
        a("%s %s, %s, %s, %s" % (MF, vr(AQ, 16), vr(QB + 4 * (k % 8), 4), vr(XF + 4 * k, 4), "0" if k == 0 else vr(AQ, 16)))
        if k == E("S1K", 13):
            a("s_cmp_ge_u32 s14, 2")
            a("s_cbranch_scc1 A_NOARR")
            a.drain(lg=False)
            arrive_issue(a, "s40 offset:%d" % (S1_CNT * SL))
            a.label("A_NOARR")
    arrive_finish(a, 31, ["s40 offset:%d" % (S1_REL * SL)], "A_S1_NR")
    a.label("A_S1_NR")
    a("s_nop 9")
    for r in range(8): a("v_cvt_pk_bf16_f32 v%d, v%d, v%d" % (PKK + r, AQ + 2 * r, AQ + 2 * r + 1))
    a("s_nop 1")
    a("%s %s, %s, %s, 0" % (MF, vr(PP, 16), vr(PH, 4), vr(PKK, 4)))
    a("%s %s, %s, %s, %s" % (MF, vr(PP, 16), vr(PH + 4, 4), vr(PKK + 4, 4), vr(PP, 16)))
    a("s_nop 11")
    softmax2(PP)
    stamp(a, 9)
    SEL, KS, KVB, OD = 48, 0, 16, 32
    a("""
    s_setprio {PRIO}
    v_and_b32 v52, 3, v{VC}
    v_bfe_u32 v53, v{VC}, 3, 1
    v_lshl_add_u32 v52, v53, 2, v52
    v_and_b32 v53, 1, v52
    v_lshlrev_b32 v53, 4, v53
    v_mov_b32 v54, 0x3f80
    v_lshlrev_b32 v53, v53, v54
    v_lshrrev_b32 v52, 1, v52
    v_bfe_u32 v54, v{VC}, 2, 1
    v_xor_b32 v54, v54, v{VH}
    v_lshrrev_b32 v55, 4, v{VC}
    v_or_b32 v54, v54, v55
    v_lshl_add_u32 v52, v54, 2, v52
    s_lshl_b32 s28, s14, 14
    s_add_u32 s28, s28, s42
    s_add_u32 s41, s40, {REL}
    s_lshl_b32 s29, s14, 10
    v_add_u32 v55, s29, v{VA}
    """.format(PRIO=PRIO_K, VC=VC, VH=VH, VA=VA, REL=S1_REL * SL))
    for d in range(4):
        a("v_cmp_eq_u32 vcc, %d, v52" % d)
        a("s_nop 1")
        a("v_cndmask_b32 v%d, 0, v53, vcc" % (SEL + d))
    a("s_cmp_lg_u32 s14, 3")
    a("s_cbranch_scc1 A_S1_OK")
    poll(a, WS, "s41", VZ, VT, sleep=PSL)
    a.label("A_S1_OK")
    a("s_barrier")
    stamp(a, 10)
    for m in range(16):
        if E("FAKEG", 0) and m >= 4: continue
        if m % 4 == 0 and m: a("s_add_u32 s28, s28, 4096")
        a.vmem("buffer_load_dwordx4 %s, v%d, s[32:35], s28 offen offset:%d sc1" % (vr(64 + 4 * m, 4), VA, (m % 4) * 1024), "p%d" % m)
    a("""
    s_lshl_b32 s28, s36, 15
    s_lshl_b32 s29, s39, 11
    s_add_u32 s28, s28, s29
    s_add_u32 s28, s28, {OFO}
    s_lshr_b32 s40, s36, 1
    s_lshl_b32 s40, s40, 8
    s_add_u32 s40, s40, {SY}
    """.format(OFO=hex(OF_OFF), SY=hex(SYNC_OFF)))
    for m in range(16):
        a.wait(vm="p%d" % m)
        a("%s %s, %s, %s, %s" % (MF, vr(KS, 16), vr(SEL, 4), vr(64 + 4 * m, 4), "0" if m == 0 else vr(KS, 16)))
    a("s_nop 11")
    for r in range(4): a("v_cvt_pk_bf16_f32 v%d, v%d, v%d" % (KVB + r, KS + 2 * r, KS + 2 * r + 1))
    a.ds("ds_write_b128 v55, %s" % vr(KVB, 4))
    a.drain(vm=False)
    a("s_barrier")
    for n_ in range(4): a.ds("ds_read_b128 %s, v%d offset:%d" % (vr(KVB + 4 * n_, 4), VA, n_ * 1024), "kvl%d" % n_)
    for n_ in range(4):
        a.wait(lg="kvl%d" % n_)
        a("%s %s, %s, %s, %s" % (MF, vr(OD, 16), vr(KVB + 4 * n_, 4), vr(OUT + 4 * n_, 4), "0" if n_ == 0 else vr(OD, 16)))
    a("""
    s_nop 11
    v_mov_b32 v0, v{D12}
    v_mov_b32 v2, v{D12}
    s_nop 1
    v_permlane32_swap_b32 v0, v2
    s_nop 0
    v_add_f32 v2, {EPS}, v2
    v_rcp_f32 v2, v2
    s_nop 0
    """.format(D12=OD + 12, EPS=f32(1e-6)))
    for i in range(2):
        for r in range(8): a("v_mul_f32 v%d, v%d, v2" % (OD + 8 * i + r, OD + 8 * i + r))
        for r in range(4): a("v_cvt_pk_bf16_f32 v%d, v%d, v%d" % (KVB + 4 * i + r, OD + 8 * i + 2 * r, OD + 8 * i + 2 * r + 1))
        a.vmem("buffer_store_dwordx4 %s, v%d, s[32:35], s28 offen offset:%d sc1" % (vr(KVB + 4 * i, 4), VA, i * 1024))
    a.drain(lg=False)
    arrive_issue(a, "s40 offset:%d" % (S2_CNT * SL))
    arrive_finish(a, 31, ["s40 offset:%d" % (S2_REL * SL)], "A_FIN")
    a.label("A_FIN")
    stamp_flush(a, 11, 4, "A")
    a("s_endpgm")

class G:
    ACC = 0; B = 64; F = 64 + 8 * NB
    W0 = 232; W1 = 233; FA = 234; FB = 235; LA = 236; LB = 237
    LN = 238; L16 = 239; RES = 240
    VX = 248; VB2 = 249; VZ = 250; VT = 251; T0 = 252; T1 = 253; T2 = 254
assert G.F + 8 * NF <= 232
SLDS = 50
SJ = [6, 7, 8, 9, 10, 11, 48, 49]
SC = [51, 15, 59, 3]

def g_waddr(a, RS, scol):
    a("""
    v_lshrrev_b32 v{T0}, 3, v{L}
    v_mul_u32_u24 v{W0}, {RS}, v{T0}
    v_lshrrev_b32 v{T1}, 2, v{L}
    v_and_b32 v{T1}, 4, v{T1}
    v_and_b32 v{T2}, 7, v{L}
    v_xor_b32 v{T1}, v{T1}, v{T2}
    v_lshl_add_u32 v{W0}, v{T1}, 4, v{W0}
    v_add_u32 v{W0}, {scol}, v{W0}
    v_add_u32 v{W1}, {RS8}, v{W0}
    """.format(T0=G.T0, T1=G.T1, T2=G.T2, L=G.LN, W0=G.W0, W1=G.W1, RS=RS, RS8=8 * RS, scol=scol))
def g_laddr(a, perm2):
    a("""
    v_bfe_u32 v{T0}, v{L}, 4, 1
    v_lshrrev_b32 v{T1}, 5, v{L}
    v_lshlrev_b32 v{LA}, {HS}, v{T1}
    v_lshl_add_u32 v{LA}, v{T0}, 5, v{LA}
    v_bfe_u32 v{T1}, v{L}, 2, 2
    v_lshl_add_u32 v{LA}, v{T1}, 7, v{LA}
    v_lshrrev_b32 v{T1}, 1, v{T1}
    v_lshl_add_u32 v{LA}, v{T1}, 6, v{LA}
    v_and_b32 v{T1}, 3, v{L}
    v_lshl_add_u32 v{LA}, v{T1}, 3, v{LA}
    s_lshl_b32 s36, s14, 5
    s_and_b32 s36, s36, 64
    v_xor_b32 v{LA}, s36, v{LA}
    v_add_u32 v{LA}, s{SLDS}, v{LA}
    v_xor_b32 v{LB}, 64, v{LA}
    """.format(T0=G.T0, T1=G.T1, L=G.LN, LA=G.LA, LB=G.LB, HS=(9 if perm2 else 10), SLDS=SLDS))

class Stream:
    def __init__(self, a, name, srdw, RS, NK, perm2, pol, slots, nb):
        self.nb = nb
        self.a = a; self.n = name; self.srd = srdw; self.RS = RS; self.NK = NK; self.perm2 = perm2; self.pol = pol
        o = self.order(); first = [p for p in range(NK) if o[p][0] == 0]
        self.dorder = first + [p for p in range(NK) if p not in first]
        assert sorted(self.dorder[:self.nb]) == list(range(self.nb)) and self.dorder[self.nb:] == list(range(self.nb, NK))
        self.free = [(s, None) for s in slots]
        self.slot = {}; self.nd = 0; self.nr = 0
    def can_dma(self): return self.nd < self.NK and len(self.free) > 0
    def order(self):
        ng = self.NK // 4; o = [(j, 0) for j in range(min(LEAD, ng))]
        for j in range(ng):
            if j + LEAD < ng: o.append((j + LEAD, 0))
            o += [(j, 1), (j, 2), (j, 3)]
        if LEAD == 0: o = [(j, r) for j in range(ng) for r in range(4)]
        assert len(o) == self.NK
        return o
    def tstep(self, p, dst):
        j, rel = self.order()[p]
        if self.n == "b" and not ROT2: self.a("s_add_u32 %s, s%d, %d" % (dst, SC[rel], 16 * j))
        else: self.a("s_add_u32 %s, s%d, s%d" % (dst, SJ[j], SC[rel]))
    def dma_parts(self):
        a = self.a; p = self.dorder[self.nd]; self.nd += 1
        sl, tag = self.free.pop(0); self.slot[p] = sl
        def p0():
            if tag: a.wait(lg=tag)
            self.tstep(p, "s58")
            a("s_add_u32 m0, s%d, %d" % (SLDS, sl * 2048))
            a("s_mul_i32 s58, s58, %d" % (16 * self.RS))
            a.vmem("buffer_load_dwordx4 v%d, s[%d:%d], s58 offen %s lds" % (G.W0, self.srd, self.srd + 3, self.pol), "%sd%d" % (self.n, p))
            a("s_add_u32 m0, s%d, %d" % (SLDS, sl * 2048 + 1024))
        def p1():
            a("s_nop 0")
            a.vmem("buffer_load_dwordx4 v%d, s[%d:%d], s58 offen %s lds" % (G.W1, self.srd, self.srd + 3, self.pol), "%sd%d" % (self.n, p))
        return [p0, p1]
    def dma(self):
        for f in self.dma_parts(): f()
    def read_parts(self):
        a = self.a; p = self.dorder[self.nr]; self.nr += 1
        assert p in self.slot
        sl = self.slot[p]; b = G.B + 8 * (p % self.nb); io = 1024 if self.perm2 else 512
        self.free.append((sl, "%sr%d" % (self.n, p)))
        def part(u):
            def f():
                a.wait(vm="%sd%d" % (self.n, p))
                for i in range(2):
                    a.ds("ds_read_b64_tr_b16 %s, v%d offset:%d" % (vr(b + 4 * u + 2 * i, 2), G.LA + u, sl * 2048 + i * io), "%sr%d" % (self.n, p))
            return f
        return [part(0), part(1)]
    def read(self):
        for f in self.read_parts(): f()
    def inflight(self):
        seen = []
        for t in self.a.vm.ops:
            if t and t.startswith(self.n + "d") and t not in seen: seen.append(t)
        return seen
    def pump(self, ahead):
        did = False
        while self.can_dma() and len(self.inflight()) < ahead: self.dma(); did = True
        if self.nr < self.nb and self.nr < self.nd: self.read(); did = True
        elif self.can_dma():
            self.a.wait(vm=self.inflight()[0]); did = True
        return did
    def tables(self, srot, ssh, part=None):
        a = self.a; ng = self.NK // 4
        if part != 0:
            a("s_lshl_b32 s%d, %s, 4" % (SJ[0], srot))
            for j in range(1, 7):
                a("s_add_u32 s%d, s%d, 16" % (SJ[j], SJ[j - 1]))
                a("s_cmp_ge_u32 s%d, 112" % SJ[j])
                a("s_cselect_b32 s%d, 0, s%d" % (SJ[j], SJ[j]))
            a("s_movk_i32 s%d, 112" % SJ[7])
        if part != 1:
            a("s_lshl_b32 s61, %s, 2" % ssh)
            for r in range(4):
                a("s_add_u32 s%d, s61, %d" % (SC[r], 4 * r))
                a("s_and_b32 s%d, s%d, 12" % (SC[r], SC[r]))
                a("s_add_u32 s%d, s%d, s14" % (SC[r], SC[r]))
    def fload_parts(self, t, srdf):
        a = self.a; f = G.F + 8 * (t % NF)
        def p0():
            self.tstep(t, "s60")
            a("s_lshl_b32 s60, s60, 11")
            a.vmem("buffer_load_dwordx4 %s, v%d, s[%d:%d], s60 offen sc1" % (vr(f, 4), G.FA, srdf, srdf + 3), "%sf%d" % (self.n, t))
        def p1():
            a.vmem("buffer_load_dwordx4 %s, v%d, s[%d:%d], s60 offen sc1" % (vr(f + 4, 4), G.FB, srdf, srdf + 3), "%sf%d" % (self.n, t))
        return [p0, p1]
    def fload(self, t, srdf):
        for f in self.fload_parts(t, srdf): f()
    def step(self, t, weights_are_A, fill):
        a = self.a; b = G.B + 8 * (t % self.nb); f = G.F + 8 * (t % NF)
        a.wait(vm="%sf%d" % (self.n, t), lg="%sr%d" % (self.n, t))
        gaps = [[], [], [], []]
        for i, p in enumerate(fill): gaps[min(3, i * 4 // max(4, len(fill)))].append(p)
        for n in range(4):
            uw, uf = n >> 1, n & 1
            acc = vr(G.ACC + 16 * n, 16)
            W, F = vr(b + 4 * uw, 4), vr(f + 4 * uf, 4)
            A_, B_ = (W, F) if weights_are_A else (F, W)
            a("%s %s, %s, %s, %s" % (MF, acc, A_, B_, "0" if (t == 0 and n > 0) else acc))
            for p in gaps[n]: p()
    def loop_fill(self, t, srdf):
        fill = []
        if t + NF - 1 < self.NK: fill += self.fload_parts(t + NF - 1, srdf)
        dm = self.dma_parts() if self.can_dma() else []
        if t >= 1 and self.nr < self.NK and self.nr - self.nb <= t - 1: fill += self.read_parts()
        return fill + dm

def g_reduce_write(a, mid=None, pre=None, tail=None):
    a("v_add_u32 v%d, s%d, v%d" % (G.VT, SLDS, G.L16))
    def wr(t, q): a.ds("ds_write_b128 v%d, %s offset:%d" % (G.VT, vr(G.ACC + 16 * t + 4 * q, 4), 8192 + (t - 1) * 4096 + q * 1024), "rw")
    if tail:
        prev = None
        for n in (1, 2, 3, 0):
            acc = vr(G.ACC + 16 * n, 16); qs = [0, 1, 2, 3] if prev else []
            for i, pick in enumerate(tail):
                A_, B_ = pick(n)
                a("%s %s, %s, %s, %s" % (MF, acc, A_, B_, acc))
                if qs and i == 0: a("s_nop 10")
                for _ in range(1 if i == 0 else 2):
                    if qs: wr(prev, qs.pop(0))
            while qs: wr(prev, qs.pop(0))
            prev = n
    else:
        a("s_nop 10")
        for t in range(1, 4):
            for q in range(4): wr(t, q)
    for t in range(1, 4):
        a("s_xor_b32 s60, s14, %d" % t)
        a("s_mul_i32 s60, s60, %d" % (NS * 2048))
        a("v_add_u32 v%d, s60, v%d" % (G.T0 + t - 1, G.L16))
    if pre: pre()
    a.wait(lg="rw")
    a("s_barrier")
    if mid: mid()
    for t in range(1, 4):
        for q in range(4):
            a.ds("ds_read_b128 %s, v%d offset:%d" % (vr(G.ACC + 16 * t + 4 * q, 4), G.T0 + t - 1, 8192 + (t - 1) * 4096 + q * 1024), "rr%d" % t)
def v2(a, op, d, x, y, n, pk):
    if pk:
        for r in range(0, n, 2): a("v_pk_%s_f32 %s, %s, %s" % (op, vr(d + r, 2), vr(x + r, 2), vr(y + r, 2)))
    else:
        for r in range(n): a("v_%s_f32 v%d, v%d, v%d" % (op, d + r, x + r, y + r))
def g_reduce_add(a, pk=True):
    for t in range(1, 4):
        a.wait(lg="rr%d" % t)
        v2(a, "add", 0, 0, 16 * t, 16, pk)

def role_g(a):
    a.vm.clear(); a.lg.clear()
    a.label("ROLE_G")
    if ONLYA: a("s_endpgm")
    a("""
    v_and_b32 v{LN}, 63, v0
    s_mul_i32 s61, s57, 37
    s_lshr_b32 s61, s61, 8
    s_lshl_b32 s66, s56, 2
    s_add_u32 s66, s66, s61
    s_mul_i32 s61, s61, 7
    s_sub_u32 s64, s57, s61
    s_mul_i32 s{SLDS}, s14, {WB}
    s_lshl_b32 s67, s66, 7
    s_lshr_b32 s60, s14, 1
    s_lshl_b32 s60, s60, 6
    s_add_u32 s60, s60, s67
    v_lshrrev_b32 v{VT}, 5, v{LN}
    v_lshlrev_b32 v{VT}, 3, v{VT}
    """.format(LN=G.LN, SLDS=SLDS, WB=NS * 2048, VT=G.VT))
    s1 = Stream(a, "a", 16, 3584, NK1, False, os.environ.get("W1POL0", "nt"), list(range(NS)), NB)
    s2 = Stream(a, "b", 24, 4096, 28, True, W2POL, list(range(4)), NB2)
    def burst(st):
        for p in range(4):
            if len(st.inflight()) >= AHEAD0: a.wait(vm=st.inflight()[0])
            st.dma()
        if len(st.inflight()) >= AHEAD0: a.wait(vm=st.inflight()[0])
    g_waddr(a, 3584, "s67")
    s1.tables("s64", "s66", part=0)
    a("s_mov_b32 s18, %d" % (2048 * 3584))
    a("s_mov_b32 s19, 0x20000")
    a("s_waitcnt lgkmcnt(0)")
    a("s_mov_b32 s16, s40")
    a("s_and_b32 s17, s41, 0xffff")
    a("s_lshl_b32 s%d, s64, 4" % SJ[0])
    a("s_cmp_eq_u32 s56, 7")
    if ONLY2: a("s_branch G_SETUP")
    a("s_cbranch_scc1 G_SETUP")
    if GWAIT:
        a("global_load_dword v%d, v%d, s[42:43] nt" % (G.T0, G.VT))
        a("s_waitcnt vmcnt(0)")
    burst(s1)
    a.label("G_SETUP")
    stamp(a, 1)
    srd(a, 36, 42, str(1792 * 2))
    for q in range(4):
        a.vmem("buffer_load_dwordx2 %s, v%d, s[36:39], s60 offen offset:%d nt" % (vr(G.F + 2 * q, 2), G.VT, 16 * q), "b1")
    ws_base(a)
    srd(a, WS, 30, hex(WS_USED))
    a("""
    s_setprio {PRIO}
    v_lshlrev_b32 v{L16}, 4, v{LN}
    v_mov_b32 v{VZ}, 0
    s_lshr_b32 s60, s14, 1
    s_lshl_b32 s60, s60, 5
    s_lshl_b32 s61, s66, 6
    s_add_u32 s60, s60, s61
    v_and_b32 v{T0}, 31, v{LN}
    v_add_u32 v{T0}, s60, v{T0}
    v_mul_u32_u24 v{VX}, 896, v{T0}
    v_lshlrev_b32 v{T1}, 1, v{VT}
    s_lshl_b32 s60, s64, 7
    s_and_b32 s61, s14, 1
    s_lshl_b32 s61, s61, 6
    s_add_u32 s60, s60, s61
    v_add3_u32 v{VX}, v{VX}, v{T1}, s60
    v_lshlrev_b32 v{VB2}, 1, v{T0}
    s_and_b32 s60, s14, 1
    s_lshl_b32 s60, s60, 10
    v_add_u32 v{FA}, s60, v{L16}
    v_xor_b32 v{FB}, 0x400, v{FA}
    s_lshl_b32 s68, s64, 18
    s_add_u32 s68, s68, {HTO}
    s_mul_i32 s60, s64, {UG}
    s_add_u32 s60, s60, {UPO}
    """.format(PRIO=PRIO_G, L16=G.L16, LN=G.LN, VZ=G.VZ, T0=G.T0, T1=G.T1, VT=G.VT, VX=G.VX, VB2=G.VB2,
               FA=G.FA, FB=G.FB, HTO=hex(HT_OFF), UG=UP_G, UPO=hex(UP_OFF)))
    srd(a, 40, 30, str(UP_G), add="s60")
    srd(a, DBG, 28, "256")
    srd(a, 24, 52, str(1792 * 4096))
    srd(a, 20, 30, str(HT_G), add="s68")
    def sw2():
        g_waddr(a, 4096, "s67")
        g_laddr(a, True)
    def res_loads():
        for i in range(2):
            a.vmem("global_load_dwordx4 %s, v%d, s[4:5] offset:%d" % (vr(G.RES + 4 * i, 4), G.VX, 32 * i), "res")
    a.vmem("global_load_ushort v%d, v%d, s[54:55] nt" % (G.VB2, G.VB2), "b1")
    a("s_movk_i32 s68, 0x80")
    if not ONLY2:
        a("s_cmp_lt_u32 s56, 7")
        a("s_cbranch_scc1 G_TILE1")
    sv = list(a.vm.ops)
    if HELP and not ONLY2:
        a.vm.clear(); a.lg.clear()
        a("s_setprio %d" % E("PRIO_H", 3))
        a("s_lshl_b32 s36, s57, 7")
        g_waddr(a, 3584, "s36")
        a("s_lshl_b32 s58, s14, 2")
        a("s_add_u32 s58, s58, 112")
        a("s_mul_i32 s58, s58, %d" % (16 * 3584))
        a("s_lshl_b32 s59, s14, 13")
        for i in range(4):
            a("s_add_u32 m0, s59, %d" % (i * 2048))
            a("s_nop 0")
            a.vmem("buffer_load_dwordx4 v%d, s[16:19], s58 offen nt lds" % G.W0)
            a("s_add_u32 m0, s59, %d" % (i * 2048 + 1024))
            a("s_nop 0")
            a.vmem("buffer_load_dwordx4 v%d, s[16:19], s58 offen nt lds" % G.W1)
            a("s_add_u32 s58, s58, %d" % (16 * 3584))
        g_laddr(a, False)
        a("v_subrev_u32 v%d, s%d, v%d" % (G.LA, SLDS, G.LA))
        a("v_xor_b32 v%d, s36, v%d" % (G.LA, G.LA))
        a("v_xor_b32 v%d, 64, v%d" % (G.LB, G.LA))
        a.drain()
        a("s_barrier")
        for kk in range(16):
            for u in range(2):
                for i in range(2):
                    a.ds("ds_read_b64_tr_b16 %s, v%d offset:%d" % (vr(G.B + 8 * kk + 4 * u + 2 * i, 2), G.LA + u, kk * 2048 + i * 512))
        poll(a, DBG, "s68", G.VZ, G.VT, sleep=2)
        a.drain()
        stamp(a, 5)
        a("s_lshl_b32 s58, s14, 18")
        a("s_add_u32 s58, s58, %s" % hex(HT_OFF + 112 * 2048))
        a("s_mul_i32 s48, s57, 7")
        a("s_add_u32 s48, s48, s14")
        a("s_lshl_b32 s48, s48, 13")
        a("s_add_u32 s48, s48, %s" % hex(PART_OFF))
        a("s_cmp_eq_u32 s14, 3")
        a("s_cselect_b32 s49, 0x08000000, 0")
        def hload(kk):
            f = G.F + 8 * (kk % NF)
            if kk == 16:
                a("s_add_u32 s58, s58, %d" % (4 * HT_G - 7 * 4096))
                a("s_or_b32 s58, s58, s49")
            elif kk % 2 == 0 and kk: a("s_add_u32 s58, s58, 4096")
            for u in range(2):
                a.vmem("buffer_load_dwordx4 %s, v%d, s[32:35], s58 offen offset:%d sc1" % (vr(f + 4 * u, 4), G.L16, (kk % 2) * 2048 + u * 1024), "h%d" % kk)
        for kk in range(NF - 1): hload(kk)
        for kk in range(32):
            a.wait(vm="h%d" % kk)
            f = G.F + 8 * (kk % NF)
            for n in range(4):
                acc = vr(16 * n, 16)
                a("%s %s, %s, %s, %s" % (MF, acc, vr(G.B + 8 * (kk % 16) + 4 * (n >> 1), 4), vr(f + 4 * (n & 1), 4), "0" if kk % 16 == 0 else acc))
                if n == 0 and kk + NF - 1 < 32: hload(kk + NF - 1)
            if kk % 16 == 15:
                a("s_add_u32 s59, s48, 4096")
                a("s_nop 8")
                for n in range(8):
                    for r in range(4): a("v_cvt_pk_bf16_f32 v%d, v%d, v%d" % (4 * n + r, 8 * n + 2 * r, 8 * n + 2 * r + 1))
                    a.vmem("buffer_store_dwordx4 %s, v%d, s[32:35], %s offen offset:%d sc1" % (vr(4 * n, 4), G.L16, "s59" if n >= 4 else "s48", (n % 4) * 1024))
                if kk == 15:
                    a("s_add_u32 s48, s48, %d" % (4 * 8192))
                    a("s_cmp_eq_u32 s14, 3")
                    a("s_cbranch_scc1 H_FIN")
                    stamp(a, 6)
        a.label("H_FIN")
        a.drain()
        a("s_barrier")
        a("s_cmp_lg_u32 s14, 0")
        a("s_cbranch_scc1 H_DONE")
        a("s_lshl_b32 s58, s57, 8")
        a("s_add_u32 s58, s58, %s" % hex(SYNC_OFF + SH_REL * SL))
        arrive(a, "s58")
        a.label("H_DONE")
        a("s_setprio %d" % PRIO_G)
    MROW = E("MROW", 896)
    a.vm.clear(); a.lg.clear()
    poll(a, DBG, "s68", G.VZ, G.VT, sleep=8)
    if MROW < 1792 and not (ONLY2 or ONLYG):
        a("s_setprio %d" % E("PRIO_M", 0))
        a("s_lshl_b32 s58, s57, 2")
        a("s_add_u32 s58, s58, s14")
        a("s_lshl_b32 s58, s58, 10")
        a("s_add_u32 s58, s58, %d" % (MROW * 4096))
        a.label("M_W2")
        for i in range(4):
            a("s_waitcnt vmcnt(%d)" % (E("MDEPTH", 8) - 1))
            a("buffer_load_dwordx4 %s, v%d, s[24:27], s58 offen" % (vr(G.F + 8 + 4 * i, 4), G.L16))
            a("s_add_u32 s58, s58, %d" % (112 * 1024))
        a("s_cmp_lt_u32 s58, %d" % (1792 * 4096))
        a("s_cbranch_scc1 M_W2")
    a("s_setprio %d" % E("PRIO_7", 1))
    a("s_mov_b32 s69, %s" % hex(SYNC_OFF + ((SV_REL if TWO else SW_REL) + 7) * SL))
    poll(a, WS, "s69", G.VZ, G.VT, sleep=8)
    for i in range(7, 9): stamp(a, i)
    sw2()
    s2.tables("s64", "s66")
    a("s_mov_b32 s65, 1")
    a("s_branch G_JOIN")
    a.vm.ops = sv; a.lg.clear()
    a.label("G_TILE1")
    s1.tables("s64", "s66", part=1)
    g_laddr(a, False)
    if RESEARLY: res_loads()
    if E("BDRAIN", 1): a.drain(lg=False)
    else: a.wait(vm="ad%d" % s1.dorder[E("BWAIT", 1)])
    s1.pol = W1POL2
    stamp(a, 2)
    while s1.nd < NB + NS - 2: s1.pump(AHEAD)
    flag_issue(a, DBG, "s68", G.VZ, G.VT, "f0")
    a.wait(vm="b1")
    for q in range(8):
        a("v_lshlrev_b32 v%d, 16, v%d" % (2 * q, G.F + q))
        a("v_and_b32 v%d, 0xffff0000, v%d" % (2 * q + 1, G.F + q))
    while s1.pump(AHEAD): pass
    stamp(a, 3)
    flag_check(a, DBG, "s68", G.VZ, G.VT, "f0", 2)
    stamp(a, 4)
    for t in range(NF - 1): s1.fload(t, 20)
    log = []
    at = {}; fr_ok = [0]
    HP_ = G.B
    for t in range(NK1):
        if t in (8, 16, 24) and not E("WST", 0): stamp(a, 4 + t // 8)
        fill = s1.loop_fill(t, 20)
        if t == 16:
            def fw():
                a("s_lshl_b32 s69, s56, 8")
                a("s_add_u32 s69, s69, %s" % hex(SYNC_OFF + (SV_REL if TWO else SW_REL) * SL))
                flag_issue(a, WS, "s69", G.VZ, G.VT, "fw")
            fill.append(fw)
        if t == 22: flag_check(a, WS, "s69", G.VZ, G.VT, "fw", 2)
        if t == NK1 + 1 - NB:
            assert s1.nr == NK1
            fill.append(lambda: (a.drain(vm=False), sw2()))
        if HELP and t == NK1 - 1 - E("HLAG", 5):
            def fh():
                a("s_lshl_b32 s69, s66, 8")
                a("s_add_u32 s69, s69, %s" % hex(SYNC_OFF + SH_REL * SL))
                flag_issue(a, WS, "s69", G.VZ, G.VT, "fh")
            fill.append(fh)
        if HELP and t == NK1 - 1:
            def ph():
                flag_check(a, WS, "s69", G.VZ, G.VT, "fh", 1)
                a("s_mul_i32 s60, s66, 7")
                a("s_add_u32 s60, s60, s64")
                a("s_lshl_b32 s60, s60, 2")
                a("s_add_u32 s60, s60, s14")
                a("s_lshl_b32 s60, s60, 11")
                a("s_add_u32 s60, s60, %s" % hex(PART_OFF))
                for i in range(2):
                    a.vmem("buffer_load_dwordx4 %s, v%d, s[32:35], s60 offen offset:%d sc1" % (vr(HP_ + 4 * i, 4), G.L16, i * 1024), "hp")
            fill += [lambda: None] * 3 + [ph]
        if t >= NK1 - TAILM:
            assert not fill
            continue
        s1.step(t, True, fill)
    tail1 = []
    for t in range(NK1 - TAILM, NK1):
        a.wait(vm="af%d" % t, lg="ar%d" % t)
        tail1.append(lambda n, t=t: (vr(G.B + 8 * (t % NB) + 4 * (n >> 1), 4), vr(G.F + 8 * (t % NF) + 4 * (n & 1), 4)))
    stamp(a, 5 if E("WST", 0) else 8)
    def rd(n=1):
        for _ in range(n): s2.read(); log.append("r")
    def dm(n=1):
        for _ in range(n):
            first = s2.nd < 4
            s2.pol = os.environ.get("W2POL0", "") if first else W2POL
            s2.dma(); log.append("d")
            s2.pol = W2POL
            if first and s2.nd == 4 and E("TOUCH", 0):
                a("v_lshrrev_b32 v%d, 4, v%d" % (G.F, G.LN))
                a("v_lshlrev_b32 v%d, 18, v%d" % (G.F, G.F))
                a("v_and_b32 v%d, 15, v%d" % ((G.F + 1), G.LN))
                a("v_lshl_add_u32 v%d, v%d, 12, v%d" % (G.F, (G.F + 1), G.F))
                a("s_add_u32 s58, s%d, s14" % SJ[0])
                a("s_lshl_b32 s58, s58, 16")
                a("s_add_u32 s58, s58, s67")
                a.vmem("buffer_load_dword v%d, v%d, s[24:27], s58 offen" % ((G.F + 2), G.F), "touch")
    oa = {}; ob = {}
    def oa_parts(j):
        def p0():
            if j % 2 == 0 and j > 0: a("s_add_u32 s56, s56, 4096")
            a.vmem("buffer_load_dwordx4 %s, v%d, s[40:43], s56 offen offset:%d sc1" % (vr(oa[j], 4), G.FA, (j % 2) * 2048), "oa%d" % j)
        def p1():
            a.vmem("buffer_load_dwordx4 %s, v%d, s[40:43], s56 offen offset:%d sc1" % (vr(oa[j] + 4, 4), G.FB, (j % 2) * 2048), "oa%d" % j)
        return [p0, p1]
    def oa_base():
        a("s_lshl_b32 s56, s14, 14")
        a("s_add_u32 s56, s56, %d" % (112 * 2048))
    oa_base()
    early = []
    for j in range(NOA):
        oa[j] = G.B + 8 * (NB2 + j); early += oa_parts(j)
    g_reduce_write(a, mid=(lambda: (rd(WPUMP), dm(WPUMP))) if WPUMP else None, pre=lambda: (a.sprinkle(list(early), E("OAGAP", 5)), dm(WPRE)), tail=tail1)
    g_reduce_add(a, not NOPK)
    if HELP:
        a.wait(vm="hp")
        for q in range(8):
            a("v_lshlrev_b32 v%d, 16, v%d" % (16 + 2 * q, HP_ + q))
            a("v_and_b32 v%d, 0xffff0000, v%d" % (17 + 2 * q, HP_ + q))
        v2(a, "add", 0, 0, 16, 16, not NOPK)
    if E("WST", 0): stamp(a, 6)
    a("s_barrier")
    s2.free += [(s_, None) for s_ in range(4, NS)]
    log.append("f")
    if E("WST", 0): stamp(a, 7)
    c1 = -2.0 * 0.7978845608028654 * 1.4426950408889634
    c2 = c1 * 0.044715
    left = [WDMA1]
    def ride():
        if left[0] > 0: dm(); left[0] -= 1
    a("s_mov_b32 s60, %s" % f32(c2))
    a("v_mov_b32 v48, %s" % f32(c1))
    ride()
    v2(a, "mul", 16, 0, 0, 16, not NOPK)
    ride()
    for r in range(16): a("v_fma_f32 v%d, v%d, s60, v48" % (16 + r, 16 + r))
    ride()
    v2(a, "mul", 16, 16, 0, 16, not NOPK)
    for r in range(16): a("v_exp_f32 v%d, v%d" % (16 + r, 16 + r))
    ride()
    for r in range(16): a("v_add_f32 v%d, 1.0, v%d" % (16 + r, 16 + r))
    ride()
    for r in range(16): a("v_rcp_f32 v%d, v%d" % (16 + r, 16 + r))
    ride()
    a.sprinkle_flush()
    a("""
    s_lshl_b32 s60, s66, 2
    s_and_b32 s61, s14, 2
    s_add_u32 s60, s60, s61
    s_lshl_b32 s60, s60, 11
    """)
    for i in range(2):
        v2(a, "mul", 8 * i, 8 * i, 16 + 8 * i, 8, not NOPK)
        for r in range(4): a("v_cvt_pk_bf16_f32 v%d, v%d, v%d" % (32 + 4 * i + r, 8 * i + 2 * r, 8 * i + 2 * r + 1))
        a.vmem("buffer_store_dwordx4 %s, v%d, s[40:43], s60 offen offset:%d sc1" % (vr(32 + 4 * i, 4), G.FA, i * 2048), "ust")
    if E("WST", 0): stamp(a, 8)
    nb4 = s2.nd
    for p in range(E("WDMA2", 4)):
        if s2.can_dma(): dm()
    rd(min(nb4, NB2) - s2.nr)
    a.wait(vm="ust")
    state = (s2.nd, s2.nr, list(s2.free), dict(s2.slot), list(a.vm.ops), list(a.lg.ops))
    a("s_mov_b32 s65, s14")
    a("s_branch G_JOIN2")
    a.label("G_JOIN")
    a.vm.clear(); a.lg.clear()
    s2b = Stream(a, "b", 24, 4096, 28, True, "nt", list(range(4)), NB2)
    oa_base()
    for f in early: f()
    if RESEARLY: res_loads()
    s2b.pol = W2POL
    for act in log:
        if act == "r": s2b.read()
        elif act == "d": s2b.dma()
        else: s2b.free += [(s_, None) for s_ in range(4, NS)]
    assert (s2b.nd, s2b.nr, s2b.slot) == (state[0], state[1], state[3]) and [x[0] for x in s2b.free] == [x[0] for x in state[2]]
    a.drain()
    a.label("G_JOIN2")
    a.vm.ops = state[4]; a.lg.ops = state[5]
    stamp(a, 9)
    a("s_barrier")
    a("s_lshl_b32 s69, s64, 8")
    a("s_add_u32 s69, s69, %s" % hex(SYNC_OFF + S4_CNT * SL))
    a("s_mov_b32 s62, 0")
    a("s_cmp_lg_u32 s65, 0")
    a("s_cbranch_scc1 G_NOARR")
    arrive_issue(a, "s69")
    a.label("G_NOARR")
    while s2.can_dma() and len(s2.inflight()) < AHEAD2: s2.dma()
    if not RESEARLY: res_loads()
    arrive_finish(a, 27, ["s69 offset:%d" % ((S4_REL - S4_CNT) * SL)], "G_NOREL")
    a.label("G_NOREL")
    a("s_add_u32 s69, s69, %d" % ((S4_REL - S4_CNT) * SL))
    while s2.nd < NB2 + NS - 1: s2.pump(AHEAD2)
    flag_issue(a, WS, "s69", G.VZ, G.VT, "f4")
    while s2.pump(AHEAD2): pass
    a.wait(vm="res")
    a("v_lshlrev_b32 v16, 16, v%d" % G.VB2)
    for i in range(2):
        a("v_permlane32_swap_b32 v%d, v%d" % (G.RES + 4 * i, G.RES + 4 * i + 2))
        a("v_permlane32_swap_b32 v%d, v%d" % (G.RES + 4 * i + 1, G.RES + 4 * i + 3))
    a("s_nop 0")
    for q in range(8):
        a("v_lshlrev_b32 v%d, 16, v%d" % (2 * q, G.RES + q))
        a("v_and_b32 v%d, 0xffff0000, v%d" % (2 * q + 1, G.RES + q))
    for r in range(16): a("v_add_f32 v%d, v%d, v16" % (r, r))
    srd(a, 20, 12, str(2048 * 896))
    stamp(a, 10)
    flag_check(a, WS, "s69", G.VZ, G.VT, "f4", PSL)
    stamp(a, 11)
    for t in range(NF - 1): s2.fload(t, 40)
    a("""
    s_lshl_b32 s57, s66, 16
    s_lshl_b32 s36, s14, 13
    s_add_u32 s57, s57, s36
    s_add_u32 s57, s57, {OFO}
    s_lshl_b32 s36, s14, 14
    s_and_b32 s36, s36, 0x8000
    s_xor_b32 s37, s36, 0x8000
    s_add_u32 s67, s57, s37
    s_add_u32 s57, s57, s36
    s_lshl_b32 s68, s66, 8
    s_add_u32 s68, s68, {REL}
    """.format(OFO=hex(OF_OFF), REL=hex(SYNC_OFF + S2_REL * SL)))
    free = [(p, G.B + 8 * (p % NB2)) for p in range(28 - NB2, 28)] + [(t, G.F + 8 * (t % NF)) for t in range(28 - NF, 28)]
    free.append((-1, G.RES))
    free.sort()
    def ob_parts(j):
        def p0():
            if j == 4:
                a("s_add_u32 s57, s57, 4096")
                a("s_add_u32 s67, s67, 4096")
            a.vmem("buffer_load_dwordx4 %s, v%d, s[32:35], s57 offen offset:%d sc1" % (vr(ob[j], 4), G.L16, (j % 4) * 1024), "ob%d" % j)
        def p1():
            a.vmem("buffer_load_dwordx4 %s, v%d, s[32:35], s67 offen offset:%d sc1" % (vr(ob[j] + 4, 4), G.L16, (j % 4) * 1024), "ob%d" % j)
        return [p0, p1]
    def ostep(j, fill):
        a.wait(vm=["oa%d" % j, "ob%d" % j])
        for n in range(4):
            uw, uf = n >> 1, n & 1
            acc = vr(G.ACC + 16 * n, 16)
            a("%s %s, %s, %s, %s" % (MF, acc, vr(oa[j] + 4 * uf, 4), vr(ob[j] + 4 * uw, 4), acc))
            if fill: fill.pop(0)()
        for f in fill: f()
    TCHK = E("TCHK", 17)
    OLAG = E("OLAG", 5)
    want = []
    for j in range(8): want += ([("a", j)] if j >= NOA else []) + [("b", j)]
    issued_at = {}; jo = 0
    def take(t, limit):
        out = []
        while want and free and free[0][0] < t and len(out) < limit:
            kind, j = want[0]
            if kind == "b" and t < TCHK:
                nxt = [w_ for w_ in want if w_[0] == "a"]
                if not nxt: break
                kind, j = nxt[0]
            want.remove((kind, j))
            reg = free.pop(0)[1]
            if kind == "a": oa[j] = reg; out += oa_parts(j)
            else: ob[j] = reg; out += ob_parts(j); issued_at[j] = t
        return out
    for t in range(28):
        if ONLY2 and t in (4, 8, 12, 16): stamp(a, 2 + t // 4)
        fill = s2.loop_fill(t, 40)
        if t == TCHK - 5:
            fill.append(lambda: a.vmem("buffer_load_dword v%d, v%d, s[32:35], s68 offen sc1" % (G.VT, G.VZ), "s2"))
        if t == TCHK:
            a.wait(vm="s2")
            a("v_readfirstlane_b32 s62, v%d" % G.VT)
            a("s_cmp_lg_u32 s62, 0")
            a("s_cbranch_scc1 G_S2_OK")
            if not E("FAKEA", 0): poll(a, WS, "s68", G.VZ, G.VT, sleep=2, keep=True)
            a.label("G_S2_OK")
            stamp(a, 12)
        fill += take(t, 4)
        s2.step(t, False, fill)
        if jo in issued_at and issued_at[jo] + OLAG <= t:
            ostep(jo, take(t + 1, 4))
            free.append((t + 1, oa[jo])); free.append((t + 1, ob[jo])); free.sort()
            jo += 1
    assert s2.nr == 28
    if ONLY2: stamp(a, 7)
    for f in take(99, 99): f()
    assert not want
    while jo < 8 - TAILM: ostep(jo, []); jo += 1
    tail2 = []
    while jo < 8:
        a.wait(vm=["oa%d" % jo, "ob%d" % jo])
        tail2.append(lambda n, j=jo: (vr(oa[j] + 4 * (n & 1), 4), vr(ob[j] + 4 * (n >> 1), 4)))
        jo += 1
    if ONLY2: stamp(a, 8)
    g_reduce_write(a, tail=tail2)
    g_reduce_add(a)
    for r in range(8): a("v_cvt_pk_bf16_f32 v%d, v%d, v%d" % (32 + r, 2 * r, 2 * r + 1))
    a("s_nop 1")
    for i in range(2):
        a("v_permlane32_swap_b32 v%d, v%d" % (32 + 4 * i, 34 + 4 * i))
        a("v_permlane32_swap_b32 v%d, v%d" % (33 + 4 * i, 35 + 4 * i))
    for i in range(2): a("buffer_store_dwordx4 %s, v%d, s[20:23], 0 offen offset:%d %s" % (vr(32 + 4 * i, 4), G.VX, 32 * i, OUTPOL))
    stamp_flush(a, 13, 60, "G")

HEADER = open("cdna_kernels/%s.s.ref" % NAME).read().split("; Override launch geometry")[0]

def main(path):
    a = Asm()
    a.label(KNAME)
    a("s_cmp_ge_u32 s2, 512")
    a("s_cbranch_scc1 K_END")
    stamp(a, 0)
    a("""
    s_load_dwordx8 s[4:11], s[0:1], 0
    s_load_dwordx4 s[28:31], s[0:1], 80
    s_load_dwordx4 s[40:43], s[0:1], 40
    s_load_dwordx4 s[52:55], s[0:1], 56
    s_load_dwordx2 s[12:13], s[0:1], 72
    v_lshrrev_b32 v1, 6, v0
    s_and_b32 s56, s2, 7
    v_readfirstlane_b32 s14, v1
    s_bfe_u32 s57, s2, 0x50003
    s_cmp_lt_u32 s2, 256
    s_cbranch_scc1 ROLE_A
    s_cmp_ge_u32 s57, 28
    s_cbranch_scc1 K_P
    s_cmp_lg_u32 s56, 7
    s_cbranch_scc1 ROLE_G
    s_add_u32 s36, s57, 32
    s_lshl_b32 s37, s57, 2
    s_add_u32 s37, s37, s14
    s_cmp_lg_u32 s37, 111
    s_cbranch_scc1 ROLE_P
    v_and_b32 v6, 63, v0
    v_lshlrev_b32 v6, 8, v6
    v_add_u32 v6, {SYA}, v6
    v_mov_b32 v7, 0
    s_waitcnt lgkmcnt(0)
    global_store_dword v6, v7, s[30:31] sc1
    v_add_u32 v6, 0x4000, v6
    global_store_dword v6, v7, s[30:31] sc1
    v_add_u32 v6, 0x4000, v6
    global_store_dword v6, v7, s[30:31] sc1
    v_add_u32 v6, 0x4000, v6
    global_store_dword v6, v7, s[30:31] sc1
    s_mov_b32 s62, 1
    s_waitcnt vmcnt(0)
    s_atomic_add s62, s[28:29], 0x0
    s_branch ROLE_P
    K_P:
    s_sub_u32 s36, s2, 480
    s_branch ROLE_P
    """.format(SYA=hex(SYNC_OFF + WSBASE)))
    n0 = len(a.lines)
    role_a(a)
    n1 = len(a.lines)
    role_g(a)
    if GTOP:
        n2 = a.lines.index("G_SETUP:")
        head = a.lines[n1:n2] + ["    s_branch G_SETUP"]
        if GTOP == 1: a.lines = a.lines[:n0] + head + a.lines[n0:n1] + a.lines[n2:]
        else:
            k = n0 + next(i for i, l in enumerate(a.lines[n0:n1]) if "global_load_dwordx4 v[12:15]" in l) + 1
            a.lines = a.lines[:k] + ["    s_branch A_CONT"] + head + ["A_CONT:"] + a.lines[k:n1] + a.lines[n2:]
    a.label("K_END")
    a("s_endpgm")
    a.vm.clear(); a.lg.clear()
    a.label("ROLE_P")
    if ONLY2 or ONLYG:
        a("s_cmp_lt_u32 s57, 28")
        a("s_cbranch_scc1 ROLE_G")
        a("s_endpgm")
    a("""
    s_mov_b32 s66, s36
    s_lshl_b32 s36, s36, 2
    s_add_u32 s36, s36, s14
    REMAP
    v_and_b32 v1, 63, v0
    v_lshrrev_b32 v2, 3, v1
    v_and_b32 v3, 7, v1
    v_lshlrev_b32 v3, 4, v3
    v_mov_b32 v4, {BIG}
    s_mov_b64 s[64:65], -1
    s_mov_b32 s19, 0x20000
    s_lshl_b32 s49, s14, 13
    s_cmp_ge_u32 s36, 147
    s_cbranch_scc1 P_J2
    s_mul_i32 s37, s36, 3121
    s_lshr_b32 s37, s37, 16
    s_mul_i32 s38, s37, 21
    s_sub_u32 s38, s36, s38
    s_mul_i32 s20, s37, 172032
    s_lshl_b32 s39, s38, 7
    s_add_u32 s20, s20, s39
    s_add_u32 s21, s20, 43008
    s_add_u32 s22, s21, 43008
    s_add_u32 s23, s22, 43008
    s_movk_i32 s50, 2688
    s_mov_b32 s18, {WSZ}
    s_mov_b32 s51, 8
    s_waitcnt lgkmcnt(0)
    s_mov_b32 s16, s6
    s_and_b32 s17, s7, 0xffff
    s_branch P_LD
    P_J2:
    s_mov_b32 s51, 4
    s_cmp_ge_u32 s36, 203
    s_cbranch_scc1 P_J3
    s_sub_u32 s37, s36, 147
    s_and_b32 s38, s37, 7
    s_lshr_b32 s37, s37, 3
    s_mul_i32 s20, s38, 50176
    s_lshl_b32 s39, s37, 7
    s_add_u32 s20, s20, s39
    s_add_u32 s21, s20, 14336
    s_add_u32 s22, s20, 25088
    s_add_u32 s23, s20, 39424
    s_movk_i32 s50, 896
    s_mov_b32 s18, {OSZ}
    s_waitcnt lgkmcnt(0)
    s_mov_b32 s16, s10
    s_and_b32 s17, s11, 0xffff
    s_branch P_LD
    P_J3:
    s_sub_u32 s38, s36, 203
    s_mul_i32 s20, s38, 3136
    s_add_u32 s21, s20, 896
    s_add_u32 s22, s20, 1568
    s_add_u32 s23, s20, 2464
    s_movk_i32 s50, 56
    s_cmp_lt_u32 s38, 8
    s_cselect_b32 s18, 25088, 0
    s_waitcnt lgkmcnt(0)
    s_mov_b32 s16, s8
    s_and_b32 s17, s9, 0xffff
    P_LD:
    v_mul_lo_u32 v8, v2, s50
    s_lshl_b32 s39, s50, 3
    v_add_u32 v8, v8, v3
    v_cmp_gt_u32 vcc, s51, v2
    v_add_u32 v9, s39, v8
    s_mov_b32 m0, s49
    v_cndmask_b32 v10, v4, v9, vcc
    """.format(BIG=hex(BIG), WSZ=448 * 2688, OSZ=448 * 896).replace("REMAP", """
    s_cmp_ge_u32 s36, 98
    s_cbranch_scc1 P_M2
    s_mul_i32 s37, s36, 4682
    s_lshr_b32 s37, s37, 16
    s_mul_i32 s37, s37, 7
    s_add_u32 s36, s36, s37
    s_add_u32 s36, s36, 7
    s_branch P_M9
    P_M2:
    s_cmp_ge_u32 s36, 108
    s_cbranch_scc1 P_M3
    s_add_u32 s36, s36, 105
    s_branch P_M9
    P_M3:
    s_waitcnt lgkmcnt(0)
    s_mov_b32 s44, s28
    s_and_b32 s45, s29, 0xffff
    s_mov_b32 s46, 256
    s_mov_b32 s47, 0x20000
    v_mov_b32 v5, 0
    s_movk_i32 s58, 0x80
    s_mov_b32 s60, 0
    P_MW:
    buffer_load_dword v4, v5, s[44:47], s58 offen sc1
    s_add_u32 s60, s60, 1
    s_waitcnt vmcnt(0)
    v_readfirstlane_b32 s61, v4
    s_cmp_lg_u32 s61, 0
    s_cbranch_scc1 P_MD
    s_sleep 8
    s_cmp_lt_u32 s60, 0x40000
    s_cbranch_scc1 P_MW
    P_MD:
    s_setprio 3
    s_sub_u32 s36, s36, 108
    s_cmp_ge_u32 s36, 49
    s_cbranch_scc1 P_M4
    s_mul_i32 s37, s36, 37
    s_lshr_b32 s37, s37, 8
    s_mul_i32 s37, s37, 14
    s_add_u32 s36, s36, s37
    s_branch P_M9
    P_M4:
    s_add_u32 s36, s36, 98
    s_cmp_ge_u32 s36, 203
    s_cselect_b32 s36, 239, s36
    P_M9:
    """ if TWO else ""))
    stamp(a, 2)
    for u in range(4):
        a.vmem("buffer_load_dwordx4 v8, s[16:19], s%d offen nt lds" % (20 + u), "u%d" % u)
        a("s_add_u32 m0, s49, %d" % (u * 2048 + 1024))
        a("s_nop 0")
        a.vmem("buffer_load_dwordx4 v%d, s[16:19], s%d offen nt lds" % (10 if u % 2 else 9, 20 + u), "u%d" % u)
        if u < 3:
            a("s_add_u32 m0, s49, %d" % (u * 2048 + 2048))
            a("s_nop 0")
    def code_pf():
        a("""
        s_cmp_lt_u32 s57, 28
        s_cbranch_scc1 P_NOCODE
        s_getpc_b64 s[60:61]
        K_PC:
        s_sub_u32 s60, s60, K_PC-{K}
        s_subb_u32 s61, s61, 0
        s_and_b32 s58, s57, 3
        s_lshl_b32 s58, s58, 12
        v_lshl_add_u32 v5, v0, 4, s58
        global_load_dwordx4 v[64:67], v5, s[60:61]
        v_add_u32 v5, 0x4000, v5
        v_min_u32 v5, CODE_END-{K}-16, v5
        global_load_dwordx4 v[68:71], v5, s[60:61]
        P_NOCODE:
        """.format(K=KNAME))
    if E("CODEPF", 1) == 1: code_pf()
    ws_base(a)
    srd(a, WS, 30, hex(WS_USED))
    srd(a, DBG, 28, "256")
    a("""
    v_mov_b32 v5, 0
    v_bfe_u32 v13, v1, 2, 2
    v_lshlrev_b32 v13, 7, v13
    v_lshrrev_b32 v14, 4, v1
    v_lshl_add_u32 v13, v14, 5, v13
    v_and_b32 v14, 3, v1
    v_lshl_add_u32 v13, v14, 3, v13
    v_add_u32 v13, s49, v13
    s_cmp_ge_u32 s36, 147
    s_cbranch_scc1 P_D2
    s_mul_i32 s39, s38, 37
    s_lshr_b32 s39, s39, 8
    s_mul_i32 s48, s39, 7
    s_sub_u32 s48, s38, s48
    s_lshl_b32 s48, s48, 6
    v_add_u32 v6, s48, v1
    v_mul_u32_u24 v7, 2341, v6
    v_lshrrev_b32 v7, 16, v7
    v_mul_u32_u24 v11, 28, v7
    v_sub_u32 v11, v6, v11
    v_lshlrev_b32 v11, 4, v11
    v_mul_u32_u24 v7, {WPH}, v7
    v_add_u32 v11, v11, v7
    v_add_u32 v12, 448, v11
    s_cmp_eq_u32 s39, 0
    s_cselect_b32 s48, 1, 2
    s_mul_i32 s48, s48, 896
    s_mul_i32 s24, s39, 896
    s_sub_u32 s24, s24, 896
    s_cmp_eq_u32 s39, 0
    s_cselect_b32 s24, {WPQ}, s24
    s_lshl_b32 s37, s37, 2
    s_mul_i32 s37, s37, s48
    s_add_u32 s24, s24, s37
    s_add_u32 s24, s24, {WPO}
    s_add_u32 s25, s24, s48
    s_add_u32 s26, s25, s48
    s_add_u32 s27, s26, s48
    v_add_u32 v14, 512, v13
    v_add_u32 v15, 1024, v13
    s_branch P_ST
    P_D2:
    v_add_u32 v14, 1024, v13
    v_add_u32 v15, 512, v13
    v_lshrrev_b32 v6, 5, v1
    v_and_b32 v7, 31, v1
    v_lshlrev_b32 v11, 4, v7
    s_cmp_ge_u32 s36, 203
    s_cbranch_scc1 P_D3
    v_lshl_add_u32 v11, v6, 10, v11
    v_add_u32 v12, 512, v11
    s_mul_i32 s24, s37, {UPG}
    s_lshl_b32 s39, s38, 13
    s_add_u32 s24, s24, s39
    s_add_u32 s24, s24, {OB}
    s_add_u32 s25, s24, 2048
    s_add_u32 s26, s24, 4096
    s_add_u32 s27, s24, 6144
    s_branch P_ST
    P_D3:
    v_mul_u32_u24 v6, 0x7f0000, v6
    v_lshl_add_u32 v11, v6, 4, v11
    v_add_u32 v12, 512, v11
    s_mul_i32 s24, s38, {WPH2}
    s_add_u32 s24, s24, {PHB}
    s_cmp_lt_u32 s38, 8
    s_cselect_b32 s24, s24, 0x08000000
    s_add_u32 s25, s24, 1024
    s_add_u32 s26, s24, {WPH}
    s_add_u32 s27, s26, 1024
    s_mov_b32 s64, 0x0fffffff
    P_ST:
    """.format(WPH=WP_H, WPQ=WP_Q, WPO=hex(WP_OFF), UPG=UP_G, OB=hex(UP_OFF + 112 * 2048), WPH2=2 * WP_H, PHB=hex(WP_OFF + WP_PHI)))
    stamp(a, 3)
    for u in range(4):
        b = 16 + 8 * u
        a.wait(vm="u%d" % u)
        a.ds("ds_read_b64_tr_b16 %s, v13 offset:%d" % (vr(b, 2), u * 2048), "t%d" % u)
        a.ds("ds_read_b64_tr_b16 %s, v14 offset:%d" % (vr(b + 2, 2), u * 2048), "t%d" % u)
        a.ds("ds_read_b64_tr_b16 %s, v15 offset:%d" % (vr(b + 4, 2), u * 2048), "t%d" % u)
        a.ds("ds_read_b64_tr_b16 %s, v13 offset:%d" % (vr(b + 6, 2), u * 2048 + 1536), "t%d" % u)
    stamp(a, 4)
    for u in range(4):
        b = 16 + 8 * u
        a.wait(lg="t%d" % u)
        for r in range(8): a("v_cndmask_b32 v%d, 0, v%d, s[64:65]" % (b + r, b + r))
        a.vmem("buffer_store_dwordx4 %s, v11, s[32:35], s%d offen sc1" % (vr(b, 4), 24 + u))
        a.vmem("buffer_store_dwordx4 %s, v12, s[32:35], s%d offen sc1" % (vr(b + 4, 4), 24 + u))
    a.vmem("buffer_load_dword v4, v5, s[44:47], 0 offen sc1")
    stamp(a, 5)
    a.drain()
    stamp(a, 6)
    a("s_barrier")
    a("s_cmp_lg_u32 s14, 0")
    a("s_cbranch_scc1 P_NOARR")
    a("v_readfirstlane_b32 s61, v4")
    a("s_cmp_lg_u32 s61, 0")
    a("s_cbranch_scc1 P_RDY")
    poll(a, DBG, "0", 5, 4)
    a.label("P_RDY")
    assert SV_REL - SV_CNT == SW_REL - SW_CNT
    a("s_mov_b32 s20, %s" % hex(SYNC_OFF + SW_CNT * SL))
    a("s_mov_b32 s21, 59")
    if TWO:
        a("s_cmp_lt_u32 s66, 27")
        a("s_cselect_b32 s21, 26, 32")
        a("s_cselect_b32 s22, 0, %d" % ((SV_CNT - SW_CNT) * SL))
        a("s_add_u32 s20, s20, s22")
    arrive_issue(a, "s20")
    a.drain(vm=False)
    a("s_cmp_lg_u32 s62, s21")
    a("s_cbranch_scc1 P_NOARR")
    a("s_mov_b32 s62, 1")
    for i in range(8): a("s_atomic_add s62, s[30:31], s20 offset:%d" % ((SW_REL - SW_CNT + i) * SL))
    a.label("P_NOARR")
    if WSBASE:
        a("s_sub_u32 s30, s30, %s" % hex(WSBASE))
        a("s_subb_u32 s31, s31, 0")
    a("s_cmp_lt_u32 s57, 28")
    a("s_cbranch_scc1 ROLE_G")
    stamp(a, 1)
    if ONLYA or not E("PON", 1): a("s_endpgm")
    a("""
    s_and_b32 s36, s57, 3
    s_lshl_b32 s37, s56, 2
    s_add_u32 s37, s37, s36
    s_lshl_b32 s37, s37, 7
    s_mul_i32 s58, s14, {W64}
    s_add_u32 s58, s58, s37
    s_add_u32 s58, s58, {R0}
    s_cmp_eq_u32 s56, 7
    s_cselect_b32 s58, 0x08000000, s58
    v_mul_u32_u24 v6, 3584, v2
    v_add_u32 v6, v6, v3
    """.format(W64=64 * 3584, R0=1792 * 3584))
    srd(a, 16, 40, str(2048 * 3584))
    for i in range(0 if HELP else 8):
        a("buffer_load_dwordx4 %s, v6, s[16:19], s58 offen nt" % vr(16 + 4 * i, 4))
        a("s_add_u32 s58, s58, %d" % (8 * 3584))
    a("""
    s_lshl_b32 s36, s36, 2
    s_add_u32 s36, s36, s14
    v_lshrrev_b32 v2, 5, v1
    v_lshlrev_b32 v2, 12, v2
    v_and_b32 v3, 31, v1
    v_lshl_add_u32 v2, v3, 4, v2
    s_lshl_b32 s58, s56, 9
    v_add_u32 v2, s58, v2
    v_lshlrev_b32 v1, 4, v1
    v_mov_b32 v3, 0
    s_mul_i32 s37, s56, 229376
    """)
    srd(a, 24, 52, str(1792 * 4096))
    srd(a, 16, 4, "229376", add="s37")
    PD = E("PDEPTH", 8)
    a("s_setprio %d" % E("PRIO_P", 0))
    def pf_loop(lbl, srdn, vaddr, step, limit, pol):
        a.label(lbl)
        for i in range(8):
            a("s_waitcnt vmcnt(%d)" % (PD - 1))
            a("buffer_load_dwordx4 %s, v%d, s[%d:%d], s58 offen %s" % (vr(8 + 4 * i, 4), vaddr, srdn, srdn + 3, pol))
            a("s_add_u32 s58, s58, %d" % step)
        a("s_cmp_lt_u32 s58, %s" % limit)
        a("s_cbranch_scc1 %s" % lbl)
    def blk8k(sreg):
        a("s_waitcnt vmcnt(4)")
        for i in range(4): a("buffer_load_dwordx4 %s, v1, s[32:35], %s offen offset:%d sc1" % (vr(8 + 4 * i, 4), sreg, i * 1024))
        a("s_add_u32 s63, %s, 4096" % sreg)
        a("s_waitcnt vmcnt(4)")
        for i in range(4): a("buffer_load_dwordx4 %s, v1, s[32:35], s63 offen offset:%d sc1" % (vr(24 + 4 * i, 4), i * 1024))
    def tail_groups(lbl, base, gstride, n, with7, flag):
        a("s_and_b32 s48, s57, 3")
        a.label(lbl)
        if flag is not None:
            a("s_lshl_b32 s58, s48, 8")
            a("s_add_u32 s58, s58, %s" % hex(flag))
            poll(a, WS, "s58", 3, 4, sleep=4)
        a("s_mul_i32 s49, s48, %d" % gstride)
        a("s_lshl_b32 s50, s14, 13")
        a("s_add_u32 s49, s49, s50")
        a("s_add_u32 s49, s49, %s" % hex(base))
        for q in range(n):
            if with7 and q == n - 1: a("s_add_u32 s51, s49, %d" % (7 * 32768))
            else:
                back = n - (1 if with7 else 0) - q
                a("s_add_u32 s51, s48, %d" % (7 - back))
                a("s_sub_u32 s50, s51, 7")
                a("s_cselect_b32 s51, s51, s50")
                a("s_lshl_b32 s51, s51, 15")
                a("s_add_u32 s51, s51, s49")
            blk8k("s51")
        a("s_add_u32 s48, s48, 4")
        a("s_cmp_lt_u32 s48, 7")
        a("s_cbranch_scc1 %s" % lbl)
    def wait_s0():
        a("s_movk_i32 s58, 0x80")
        poll(a, DBG, "s58", 3, 4, sleep=8)
    def pf_wo():
        a("s_lshl_b32 s58, s36, 12")
        a("s_add_u32 s58, s58, %s" % hex(UP_OFF + 112 * 2048))
        for g_ in range(7):
            a("s_waitcnt vmcnt(4)")
            for i in range(4): a("buffer_load_dwordx4 %s, v1, s[32:35], s58 offen offset:%d sc1" % (vr(8 + 16 * (g_ % 2) + 4 * i, 4), i * 1024))
            a("s_add_u32 s58, s58, %d" % UP_G)
    if not E("PEARLY", 0): wait_s0()
    stamp(a, 2)
    a("s_lshl_b32 s58, s36, 13")
    pf_loop("P_W2", 24, 2, 16 * 8192, str(E("PFA", 1024) * 4096), PFPOL)
    stamp(a, 3)
    a("s_mov_b32 s48, s58")
    if E("PWO", 2) == 1: pf_wo()
    a("s_lshl_b32 s58, s36, 10")
    if E("PX", 1): pf_loop("P_X", 16, 1, 16 * 1024, "229376", PFPOL)
    stamp(a, 4)
    a("s_mov_b32 s58, s48")
    if E("PTAIL", 1): pf_loop("P_W3", 24, 2, 16 * 8192, str(1792 * 4096), PFPOL)
    stamp(a, 5)
    if E("PEARLY", 0): wait_s0()
    if E("PWO", 2) == 2: pf_wo()
    if E("NUT", 0): tail_groups("P_UT", UP_OFF, UP_G, E("NUT", 0), False, SYNC_OFF + S4_REL * SL)
    if E("POF", 0):
        a("s_and_b32 s48, s57, 3")
        a("s_lshl_b32 s49, s56, 2")
        a("s_add_u32 s48, s48, s49")
        a("s_lshl_b32 s58, s48, 8")
        a("s_add_u32 s58, s58, %s" % hex(SYNC_OFF + S2_REL * SL))
        poll(a, WS, "s58", 3, 4, sleep=4)
        a("s_lshl_b32 s51, s48, 16")
        a("s_lshl_b32 s50, s14, 14")
        a("s_add_u32 s51, s51, s50")
        a("s_add_u32 s51, s51, %s" % hex(OF_OFF))
        blk8k("s51")
        a("s_add_u32 s51, s51, 8192")
        blk8k("s51")
    if STAMP == 1: stamp_flush(a, 7, 60)
    a("s_endpgm")
    a.label("CODE_END")
    if DIAG:
        out = HEADER + "; @launch kernel=%s grid=(512,1,1) block=(256,1,1) lds=81920\n; @launch kernel=diag_kernel grid=(1,1,1) block=(64,1,1) lds=0\n" % KNAME
        a.lines += [".globl diag_kernel", ".p2align 8", ".type diag_kernel,@function"]
        a("""
        diag_kernel:
        s_cmp_lg_u32 s2, 0
        s_cbranch_scc1 DG_END
        s_load_dwordx2 s[4:5], s[0:1], 80
        s_waitcnt lgkmcnt(0)
        s_sub_u32 s4, s4, 512
        s_subb_u32 s5, s5, 0
        s_load_dwordx2 s[6:7], s[4:5], 128
        s_memrealtime s[8:9]
        s_waitcnt lgkmcnt(0)
        s_not_b32 s6, s6
        s_sub_u32 s6, s7, s6
        s_min_u32 s6, s6, 10000
        s_mul_i32 s6, s6, %d
        DG_L:
        s_memrealtime s[10:11]
        s_waitcnt lgkmcnt(0)
        s_sub_u32 s10, s10, s8
        s_cmp_lt_u32 s10, s6
        s_cbranch_scc1 DG_L
        DG_END:
        s_endpgm
        """ % E("AMP", 10))
    else:
        out = HEADER + "; @launch grid=(512,1,1) block=(256,1,1) lds=81920\n"
    out += '.amdgcn_target "amdgcn-amd-amdhsa--gfx950"\n.text\n.globl %s\n.p2align 8\n.type %s,@function\n' % (KNAME, KNAME)
    out += a.text()
    out += """.section .rodata,"a"
.p2align 6
.amdhsa_kernel {n}
  .amdhsa_next_free_vgpr 256
  .amdhsa_next_free_sgpr {s}
  .amdhsa_accum_offset 256
  .amdhsa_group_segment_fixed_size 0
  .amdhsa_kernarg_size 96
  .amdhsa_user_sgpr_count 2
  .amdhsa_user_sgpr_kernarg_segment_ptr 1
  .amdhsa_system_sgpr_workgroup_id_x 1
  .amdhsa_float_denorm_mode_32 3
.end_amdhsa_kernel
""".format(n=KNAME, s=100 if STAMP else 72)
    if DIAG:
        out += """.p2align 6
.amdhsa_kernel diag_kernel
  .amdhsa_next_free_vgpr 8
  .amdhsa_next_free_sgpr 32
  .amdhsa_accum_offset 8
  .amdhsa_group_segment_fixed_size 0
  .amdhsa_kernarg_size 96
  .amdhsa_user_sgpr_count 2
  .amdhsa_user_sgpr_kernarg_segment_ptr 1
  .amdhsa_system_sgpr_workgroup_id_x 1
.end_amdhsa_kernel
"""
    if E("NONT", 1):
        import re
        out = re.sub(r" nt$", "", out, flags=re.M).replace(" nt lds", " lds")
    open(path, "w").write(out)

if __name__ == "__main__":
    main(sys.argv[1])
```

```python
import sys, struct, os

NAME = "parallel_sum__linear_kernel_hedgehog__mixer_token_mlp__prompt"
KNAME = NAME + "_kernel"
E = lambda k, d: int(os.environ.get(k, str(d)))

XN_OFF   = 0x000000
HT_OFF   = 0x200000
HT_G     = 128 * 2048
WP_OFF   = 0x400000
WP_Q     = 28 * 1792
WP_PHI   = 28 * 2688
WP_H     = WP_PHI + 2048 + 512
UP_OFF   = 0x600000
UP_G     = 144 * 2048
KVF_OFF  = 0x800000
SYNC_OFF = 0x840000
OF_OFF   = 0x900000
KVP_OFF  = 0xB00000
PART_OFF = 0xD00000
WS_USED  = 0x1000000
STAMP_OFF = 0xF00000
BIG      = 0x7ff00000
SL = 256
SX_CNT, SX_REL = 0, 16
SW_CNT, SW_REL = 32, 48
S1_CNT, S1_REL = 64, 80
SV_CNT, SV_REL = 96, 112
S2_CNT, S2_REL = 128, 160
S4_CNT, S4_REL = 192, 200
SA_ROOT = 216
SA_REP = 208
SH_REL = 224
NSYNC = 256
SPIN_MAX = 0x40000

STAMP = E("STAMP", 0); PRIO_A = E("PRIO_A", 2); PRIO_G = E("PRIO_G", 1); AHEAD = E("AHEAD", 4); W2START = E("W2START", 32)
NB, NF, NS = E("NB", 16), E("NF", 5), 10
LEAD = E("LEAD", 0)
XPRE = E("XPRE", 12)
PSL = E("PSL", 1)
WDMA1 = E("WDMA1", 3)
WPRE = E("WPRE", 4)
NOPK = E("NOPK", 0)
NOA = E("NOA", 0)
TWO = E("TWO", 0)
GTOP = E("GTOP", 2)
TAILM = E("TAILM", 3)
HELP = E("HELP", 0)
NK1 = 28 if HELP else 32
NB2 = NB - NOA
ROT2 = E("ROT2", 1)
INL0 = E("INL0", 18)
INLN = E("INLN", 0)
INLP = E("INLP", 1)
WPUMP = E("WPUMP", 0)
AHEAD2 = E("AHEAD2", 5)
PFW2 = E("PFW2", 0)
PRIO_Q = E("PRIO_Q", 0)
PRIO_K = E("PRIO_K", 2)
JOBLATE = E("JOBLATE", 1)
BURST = E("BURST", 4)
PFPOL = os.environ.get("PFPOL", "")
NP = E("NP", 0)
AHEAD0 = E("AHEAD0", 5)
ALOOK = E("ALOOK", 99)
W2POL = os.environ.get("W2POL", "")
W1POL2 = os.environ.get("W1POL2", "")
RESEARLY = E("RESEARLY", 0)
WSBASE = E("WSBASE", 0)
ONLY2 = E("ONLY2", 0)
ONLYG = E("ONLYG", 0)
ONLYA = E("ONLYA", 0)
GWAIT = E("GWAIT", 0)
PFWAIT = E("PFWAIT", 0)
OUTPOL = os.environ.get("OUTPOL", "")

def f32(x): return "0x%08x" % struct.unpack("<I", struct.pack("<f", x))[0]

class Q:
    def __init__(self, mx): self.ops = []; self.mx = mx
    def issue(self, tag): self.ops.append(tag)
    def need(self, tags):
        if not isinstance(tags, (list, tuple, set)): tags = [tags]
        idx = -1
        for i, t in enumerate(self.ops):
            if t in tags: idx = i
        if idx < 0: return None
        n = len(self.ops) - 1 - idx
        if n > self.mx: return self.mx
        self.ops = self.ops[idx + 1:]
        return n
    def clear(self): self.ops = []

class Asm:
    def __init__(self):
        self.lines = []; self.vm = Q(63); self.lg = Q(15); self.uid = 0; self.issued = []; self.spr = []; self.pending = False
    def sprinkle(self, fns, gap): self.spr = fns; self.gap = gap; self.cnt = 0
    def sprinkle_flush(self):
        fns, self.spr = self.spr, []
        for f in fns: f()
    def __call__(self, s):
        for l in s.strip().split("\n"):
            l = l.strip()
            if l.endswith(":"): self.lines.append(l)
            elif l: self.lines.append("    " + l)
        if self.spr and s.lstrip().startswith(("v_", "ds_")):
            self.cnt += 1
            if self.cnt >= self.gap:
                self.cnt = 0
                self.spr.pop(0)()
    def label(self, l): self.lines.append(l + ":")
    def vmem(self, s, tag=None): self(s); self.vm.issue(tag); self.issued.append(tag)
    def ds(self, s, tag=None): self(s); self.lg.issue(tag)
    def wait(self, vm=None, lg=None):
        p = []
        for q, t, nm in ((self.vm, vm, "vmcnt"), (self.lg, lg, "lgkmcnt")):
            if t is None: continue
            n = q.need(t)
            if n is None: continue
            if len(q.ops) > n: q.ops = q.ops[len(q.ops) - n:]
            p.append("%s(%d)" % (nm, n))
        if p: self("s_waitcnt " + " ".join(p))
    def drain(self, vm=True, lg=True):
        p = []
        if vm: p.append("vmcnt(0)"); self.vm.clear()
        if lg: p.append("lgkmcnt(0)"); self.lg.clear()
        self("s_waitcnt " + " ".join(p))
    def newlabel(self, p): self.uid += 1; return "%s_%d" % (p, self.uid)
    def text(self): return "\n".join(self.lines) + "\n"

def vr(a, n): return "v[%d:%d]" % (a, a + n - 1)

def srd(a, d, base, size, add=None):
    if add is None:
        a("s_mov_b32 s%d, s%d" % (d, base))
        a("s_and_b32 s%d, s%d, 0xffff" % (d + 1, base + 1))
    else:
        a("s_add_u32 s%d, s%d, %s" % (d, base, add))
        a("s_addc_u32 s%d, s%d, 0" % (d + 1, base + 1))
        a("s_and_b32 s%d, s%d, 0xffff" % (d + 1, d + 1))
    a("s_mov_b32 s%d, %s" % (d + 2, size))
    a("s_mov_b32 s%d, 0x20000" % (d + 3))

WS = 32
DBG = 44

def ws_base(a):
    if WSBASE:
        a("s_add_u32 s30, s30, %s" % hex(WSBASE))
        a("s_addc_u32 s31, s31, 0")

def stamp(a, i):
    if STAMP == 3 and i not in (0, 13): return
    if STAMP:
        a("%s s[%d:%d]" % ("s_memtime" if STAMP == 2 else "s_memrealtime", 70 + 2 * i, 71 + 2 * i))
        a.drain(vm=False)
DIAG = os.environ.get("DIAG", "")
def stamp_flush(a, n, tmp, role=""):
    if not STAMP: return
    a.drain()
    stamp(a, n)
    if DIAG:
        a("s_mov_b64 exec, 1")
        a("v_mov_b32 v%d, 0" % tmp)
        a("s_not_b32 s98, s70")
        a("v_mov_b32 v%d, s98" % (tmp + 1))
        a("buffer_atomic_umax v%d, v%d, s[44:47], 0 offen offset:128 sc1" % (tmp + 1, tmp))
        if DIAG[0] == role:
            a("v_mov_b32 v%d, s%d" % (tmp + 2, 70 + 2 * int(DIAG[1:])))
            a("buffer_atomic_umax v%d, v%d, s[44:47], 0 offen offset:132 sc1" % (tmp + 2, tmp))
        return
    a("s_mov_b64 exec, 1")
    a("s_lshl_b32 s98, s2, 8")
    a("s_lshl_b32 s99, s14, 6")
    a("s_add_u32 s98, s98, s99")
    a("s_add_u32 s98, s98, %s" % hex(STAMP_OFF))
    a("v_mov_b32 v%d, 0" % tmp)
    if STAMP == 3:
        if n == 13:
            a("v_mov_b32 v%d, s70" % (tmp + 1))
            a("v_mov_b32 v%d, s96" % (tmp + 2))
            a("buffer_store_dword v%d, v%d, s[32:35], s98 offen" % (tmp + 1, tmp))
            a("buffer_store_dword v%d, v%d, s[32:35], s98 offen offset:52" % (tmp + 2, tmp))
        return
    for i in range(n + 1):
        a("v_mov_b32 v%d, s%d" % (tmp + 1, 70 + 2 * i))
        a("buffer_store_dword v%d, v%d, s[32:35], s98 offen offset:%d" % (tmp + 1, tmp, 4 * i))
        a("s_waitcnt vmcnt(0)")

def poll(a, srdn, soff, vz, vt, sleep=1, target=1, keep=False):
    if ONLY2 or ONLYG: return
    sv = list(a.vm.ops)
    l = a.newlabel("POLL"); d = a.newlabel("POLLD")
    a("s_mov_b32 s60, 0")
    a("s_mov_b64 exec, 1")
    a.label(l)
    a("buffer_load_dword v%d, v%d, s[%d:%d], %s offen sc1" % (vt, vz, srdn, srdn + 3, soff))
    a("s_add_u32 s60, s60, 1")
    a.drain(lg=False)
    a("v_readfirstlane_b32 s61, v%d" % vt)
    a("s_cmp_ge_u32 s61, %d" % target)
    a("s_cbranch_scc1 %s" % d)
    if sleep: a("s_sleep %d" % sleep)
    a("s_cmp_lt_u32 s60, %s" % hex(SPIN_MAX))
    a("s_cbranch_scc1 %s" % l)
    a.label(d)
    a("s_mov_b64 exec, -1")
    if keep: a.vm.ops = sv

def arrive_issue(a, soff):
    a("s_mov_b32 s62, 1")
    a("s_atomic_add s62, s[30:31], %s glc" % soff)
def arrive_finish(a, last, srels, skip):
    a.drain(vm=False)
    a("s_cmp_lg_u32 s62, %d" % last)
    a("s_cbranch_scc1 %s" % skip)
    a("s_mov_b32 s62, 1")
    for r in srels: a("s_atomic_add s62, s[30:31], %s" % r)

def flag_issue(a, srdn, soff, vz, vt, tag):
    if ONLY2 or ONLYG: return
    a.vmem("buffer_load_dword v%d, v%d, s[%d:%d], %s offen sc1" % (vt, vz, srdn, srdn + 3, soff), tag)
def flag_check(a, srdn, soff, vz, vt, tag, sleep):
    if ONLY2 or ONLYG: return
    ok = a.newlabel("FLAG")
    a.wait(vm=tag)
    a("v_readfirstlane_b32 s61, v%d" % vt)
    a("s_cmp_lg_u32 s61, 0")
    a("s_cbranch_scc1 %s" % ok)
    poll(a, srdn, soff, vz, vt, sleep=sleep, keep=True)
    a.label(ok)

def arrive(a, soff):
    a("s_mov_b32 s62, 1")
    a("s_atomic_add s62, s[30:31], %s" % soff)

def round_bf16(a, d, s):
    a("v_cvt_pk_bf16_f32 v%d, v%d, v%d" % (d, s, s))
    a("v_lshlrev_b32 v%d, 16, v%d" % (d, d))

def half_reduce(a, regs, tmps):
    steps = ["quad_perm:[1,0,3,2] row_mask:0xf bank_mask:0xf", "quad_perm:[2,3,0,1] row_mask:0xf bank_mask:0xf",
             "row_half_mirror row_mask:0xf bank_mask:0xf", "row_mirror row_mask:0xf bank_mask:0xf"]
    for st in steps:
        a("s_nop %d" % (1 if len(regs) == 1 else 0))
        for r in regs: a("v_add_f32_dpp v%d, v%d, v%d %s" % (r, r, r, st))
    for r, t in zip(regs, tmps): a("v_mov_b32 v%d, v%d" % (t, r))
    a("s_nop 1")
    for r, t in zip(regs, tmps): a("v_permlane16_swap_b32 v%d, v%d" % (r, t))
    a("s_nop 0")
    for r, t in zip(regs, tmps): a("v_add_f32 v%d, v%d, v%d" % (r, r, t))

MF = "v_mfma_f32_32x32x16_bf16"

def role_a(a):
    LN, VA, VB, VC, VD, VZ, VT, VH = 250, 251, 252, 253, 254, 248, 249, 255
    a.label("ROLE_A")
    if ONLY2 or ONLYG: a("s_endpgm")
    JB = 16384
    a("""
    s_lshr_b32 s38, s56, 1
    s_lshl_b32 s38, s38, 2
    s_and_b32 s39, s57, 3
    s_add_u32 s38, s38, s39
    s_and_b32 s39, s56, 1
    s_lshl_b32 s39, s39, 3
    s_lshr_b32 s57, s57, 2
    s_add_u32 s39, s39, s57
    s_lshl_b32 s15, s38, 4
    s_add_u32 s15, s15, s39
    v_and_b32 v{VC}, 31, v0
    v_lshrrev_b32 v2, 5, v0
    s_mul_i32 s20, s15, 7168
    v_min_u32 v4, 27, v{VC}
    v_mul_u32_u24 v3, 896, v2
    v_lshl_add_u32 v3, v4, 5, v3
    v_add_u32 v4, s20, v3
    s_waitcnt lgkmcnt(0)
    global_load_dwordx4 v[8:11], v4, s[4:5] nt
    global_load_dwordx4 v[12:15], v4, s[4:5] offset:16 nt
    s_mov_b32 s58, 0x0fffffff
    s_mov_b32 s59, 0x0fffffff
    s_setprio {PRIO}
    s_mul_i32 s25, s39, {WPH}
    s_add_u32 s25, s25, {WPO}
    v_and_b32 v{LN}, 63, v0
    v_bfe_u32 v{VH}, v0, 5, 1
    v_mov_b32 v{VZ}, 0
    v_lshlrev_b32 v{VA}, 4, v{LN}
    v_mul_u32_u24 v{VB}, 448, v{VH}
    v_lshl_add_u32 v{VB}, v{VC}, 4, v{VB}
    """.format(VC=VC, SYA=hex(SYNC_OFF + WSBASE), PRIO=PRIO_A, WPH=WP_H, WPO=hex(WP_OFF), LN=LN, VH=VH, VZ=VZ, VA=VA, VB=VB))
    a.vm.issue("x"); a.vm.issue("x")
    ws_base(a)
    srd(a, WS, 30, hex(WS_USED))
    srd(a, DBG, 28, "256")
    P, X, T = 8, 16, 32
    def unpack(dst, src):
        for i in range(8):
            a("v_lshlrev_b32 v%d, 16, v%d" % (dst + 2 * i, src + i))
            a("v_and_b32 v%d, 0xffff0000, v%d" % (dst + 2 * i + 1, src + i))
    def pack(dst, src):
        for i in range(8): a("v_cvt_pk_bf16_f32 v%d, v%d, v%d" % (dst + i, src + 2 * i, src + 2 * i + 1))
    def pksum(dst, src):
        a("v_pk_add_f32 %s, %s, %s" % (vr(dst, 2), vr(src, 2), vr(src + 2, 2)))
        a("v_pk_add_f32 %s, %s, %s" % (vr(dst + 2, 2), vr(src + 4, 2), vr(src + 6, 2)))
        for i in (8, 12):
            a("v_pk_add_f32 %s, %s, %s" % (vr(dst, 2), vr(dst, 2), vr(src + i, 2)))
            a("v_pk_add_f32 %s, %s, %s" % (vr(dst + 2, 2), vr(dst + 2, 2), vr(src + i + 2, 2)))
        a("v_pk_add_f32 %s, %s, %s" % (vr(dst, 2), vr(dst, 2), vr(dst + 2, 2)))
        a("v_add_f32 v%d, v%d, v%d" % (dst, dst, dst + 1))
    def pksq(dst, src):
        a("v_pk_mul_f32 %s, %s, %s" % (vr(dst, 2), vr(src, 2), vr(src, 2)))
        a("v_pk_mul_f32 %s, %s, %s" % (vr(dst + 2, 2), vr(src + 2, 2), vr(src + 2, 2)))
        for i in (4, 8, 12):
            a("v_pk_fma_f32 %s, %s, %s, %s" % (vr(dst, 2), vr(src + i, 2), vr(src + i, 2), vr(dst, 2)))
            a("v_pk_fma_f32 %s, %s, %s, %s" % (vr(dst + 2, 2), vr(src + i + 2, 2), vr(src + i + 2, 2), vr(dst + 2, 2)))
        a("v_pk_add_f32 %s, %s, %s" % (vr(dst, 2), vr(dst, 2), vr(dst + 2, 2)))
        a("v_add_f32 v%d, v%d, v%d" % (dst, dst, dst + 1))
    def pksub(dst, src, m):
        for i in range(0, 16, 2):
            a("v_pk_add_f32 %s, %s, %s op_sel_hi:[1,0] neg_lo:[0,1] neg_hi:[0,1]" % (vr(dst + i, 2), vr(src + i, 2), vr(m, 2)))
    def pkmul(dst, src, m):
        for i in range(0, 16, 2): a("v_pk_mul_f32 %s, %s, %s op_sel_hi:[1,0]" % (vr(dst + i, 2), vr(src + i, 2), vr(m, 2)))
    def scale_from_var(r):
        round_bf16(a, r, r)
        a("v_add_f32 v%d, %s, v%d" % (r, f32(1e-5), r))
        round_bf16(a, r, r)
        a("v_sqrt_f32 v%d, v%d" % (r, r))
        a("s_nop 0")
        round_bf16(a, r, r)
        a("v_rcp_f32 v%d, v%d" % (r, r))
    inv = f32(1.0 / 448.0)
    S, S2, M, RS_, C2, D2 = 72, 76, 80, 82, 84, 86
    HB, HP = 7168, 912
    a("""
    v_lshl_add_u32 v5, v2, 4, v3
    v_bfe_u32 v88, v{LN}, 2, 2
    v_mul_u32_u24 v88, {HP}, v88
    v_lshrrev_b32 v89, 4, v{LN}
    v_lshl_add_u32 v88, v89, 5, v88
    v_and_b32 v89, 3, v{LN}
    v_lshl_add_u32 v88, v89, 3, v88
    s_lshl_b32 s20, s14, 7
    v_add_u32 v88, s20, v88
    v_lshlrev_b32 v92, 10, v{VH}
    v_lshl_add_u32 v92, v{VC}, 4, v92
    v_and_b32 v89, 7, v{LN}
    v_lshrrev_b32 v90, 3, v{LN}
    s_lshl_b32 s20, s14, 3
    v_add_u32 v90, s20, v90
    v_mul_u32_u24 v91, 896, v89
    v_lshl_add_u32 v91, v90, 4, v91
    v_lshlrev_b32 v89, 4, v89
    v_lshl_add_u32 v89, v90, 9, v89
    s_lshr_b32 s20, s15, 2
    s_mul_i32 s20, s20, 28672
    s_and_b32 s21, s15, 3
    s_lshl_b32 s21, s21, 7
    s_add_u32 s20, s20, s21
    s_lshl_b32 s21, s14, 18
    s_lshr_b32 s22, s15, 1
    s_lshl_b32 s22, s22, 11
    s_add_u32 s21, s21, s22
    s_and_b32 s22, s15, 1
    s_lshl_b32 s22, s22, 9
    s_add_u32 s21, s21, s22
    s_add_u32 s21, s21, {HTO}
    s_cmp_eq_u32 s14, 3
    s_cselect_b32 s23, 0x08000000, 0
    s_add_u32 s22, s21, {HG4}
    s_or_b32 s22, s22, s23
    s_add_u32 s24, s20, 16384
    s_or_b32 s24, s24, s23
    s_lshl_b32 s40, s39, 8
    s_add_u32 s40, s40, {SY}
    s_lshl_b32 s41, s38, 8
    s_add_u32 s41, s41, {SY}
    """.format(LN=LN, VH=VH, VC=VC, HP=HP, HG4=4 * HT_G, HTO=hex(HT_OFF), SY=hex(SYNC_OFF)))
    assert XN_OFF == 0 and HT_G == 1 << 18
    stamp(a, 1)
    a.wait(vm="x")
    stamp(a, 2)
    unpack(X, P)
    pksum(S, X)
    a("v_cndmask_b32 v%d, 0, v%d, s[58:59]" % (S, S))
    half_reduce(a, [S], [S + 1])
    a("v_mul_f32 v%d, %s, v%d" % (S, inv, S))
    round_bf16(a, M, S)
    pksub(X, X, M)
    pksq(S2, X)
    a("v_sub_f32 v%d, v%d, v%d" % (S, S, M))
    a("v_cndmask_b32 v%d, 0, v%d, s[58:59]" % (S2, S2))
    half_reduce(a, [S2], [S2 + 1])
    a("v_mul_f32 v%d, %s, v%d" % (S2, inv, S2))
    a("v_fma_f32 v%d, -v%d, v%d, v%d" % (S2, S, S, S2))
    a("v_max_f32 v%d, 0, v%d" % (S2, S2))
    a("v_mov_b32 v%d, v%d" % (RS_, S2))
    scale_from_var(RS_)
    a("s_nop 0")
    a("v_mul_f32 v%d, v%d, v%d" % (C2, S2, RS_))
    a("v_mul_f32 v%d, v%d, v%d" % (D2, S, RS_))
    a("v_mul_f32 v%d, v%d, v%d" % (C2, C2, RS_))
    round_bf16(a, D2, D2)
    pkmul(T, X, RS_)
    scale_from_var(C2)
    pack(P, T)
    a.ds("ds_write_b128 v3, v[8:11]")
    a.ds("ds_write_b128 v3, v[12:15] offset:16")
    a("v_mul_f32 v%d, v%d, v%d" % (D2, D2, C2))
    for i in range(0, 16, 2):
        a("v_pk_fma_f32 %s, %s, %s, %s op_sel_hi:[1,0,0] neg_lo:[0,0,1] neg_hi:[0,0,1]" % (vr(T + i, 2), vr(T + i, 2), vr(C2, 2), vr(D2, 2)))
    pack(X, T)
    a.ds("ds_write_b128 v5, v[16:19] offset:%d" % HB)
    a.ds("ds_write_b128 v5, v[20:23] offset:%d" % (HB + 16))
    stamp(a, 3)
    a.drain(vm=False)
    a("s_barrier")
    a.ds("ds_read_b64_tr_b16 v[28:29], v88 offset:%d" % HB, "h0")
    a.ds("ds_read_b64_tr_b16 v[30:31], v88 offset:%d" % (HB + 4 * HP), "h0")
    a.ds("ds_read_b128 v[36:39], v91", "x0")
    a.ds("ds_read_b64_tr_b16 v[32:33], v88 offset:%d" % (HB + 512), "h1")
    a.ds("ds_read_b64_tr_b16 v[34:35], v88 offset:%d" % (HB + 512 + 4 * HP), "h1")
    a.ds("ds_read_b128 v[40:43], v91 offset:512", "x1")
    a.wait(lg="h0"); a.vmem("buffer_store_dwordx4 v[28:31], v92, s[32:35], s21 offen sc1")
    FAKEX = E("FAKEX", 0)
    if not FAKEX: a.wait(lg="x0"); a.vmem("buffer_store_dwordx4 v[36:39], v89, s[32:35], s20 offen sc1")
    a.wait(lg="h1"); a.vmem("buffer_store_dwordx4 v[32:35], v92, s[32:35], s22 offen sc1")
    if not FAKEX: a.wait(lg="x1"); a.vmem("buffer_store_dwordx4 v[40:43], v89, s[32:35], s24 offen sc1")
    a.vmem("buffer_load_dword v%d, v%d, s[44:47], 0 offen sc1" % (VT, VZ), "ready")
    a("""
    s_lshl_b32 s36, s38, 2
    s_add_u32 s36, s36, s14
    s_mul_i32 s24, s36, 28672
    s_lshl_b32 s26, s14, 10
    s_add_u32 s25, s25, s26
    v_add_u32 v{VD}, 0x8000, v{VB}
    """.format(VB=VB, VD=VD))
    a.drain()
    stamp(a, 4)
    a("s_barrier")
    AQ, AK, AV = 0, 16, 32
    XF, WF, PH = 64, 176, 208
    a("s_cmp_lg_u32 s14, 0")
    a("s_cbranch_scc1 A_GO")
    a("v_readfirstlane_b32 s61, v%d" % VT)
    a("s_cmp_lg_u32 s61, 0")
    a("s_cbranch_scc1 A_RDY")
    poll(a, DBG, "0", VZ, VT)
    a.label("A_RDY")
    arrive_issue(a, "s41 offset:%d" % (SX_CNT * SL))
    a.drain(vm=False)
    a("s_cmp_lg_u32 s62, 15")
    a("s_cbranch_scc1 A_WAIT")
    a("s_mov_b32 s62, 1")
    a("s_atomic_add s62, s[30:31], s41 offset:%d" % (SX_REL * SL))
    a("s_mov_b32 s20, %s" % hex(SYNC_OFF + SA_ROOT * SL))
    a("s_mov_b32 s63, 1")
    a("s_atomic_add s63, s[30:31], s20 glc")
    a.drain(vm=False)
    a("s_cmp_lg_u32 s63, 15")
    a("s_cbranch_scc1 A_GO")
    a("s_atomic_add s62, s[28:29], 0x80")
    a("s_branch A_GO")
    a.label("A_WAIT")
    a("s_add_u32 s20, s41, %d" % (SX_REL * SL))
    poll(a, WS, "s20", VZ, VT, sleep=PSL)
    a.label("A_GO")
    a("s_barrier")
    stamp(a, 5)
    if E("FAKEA", 0) == 1: a("s_endpgm")
    def wdma(r, tag):
        a("s_add_u32 m0, s26, %d" % (r * 4096))
        a("s_add_u32 s28, s25, %d" % (r * 4096))
        a.vmem("buffer_load_dwordx4 v%d, s[32:35], s28 offen sc1 lds" % VA, tag)
    def xload(k):
        if FAKEX and k == 0:
            a("s_lshl_b32 s24, s36, 12")
            a("s_add_u32 s24, s24, %s" % hex(HT_OFF))
        if k % 4 == 0 and k > 0: a("s_add_u32 s24, s24, %d" % (HT_G if FAKEX else 4096))
        a.vmem("buffer_load_dwordx4 %s, v%d, s[32:35], s24 offen offset:%d sc1" % (vr(XF + 4 * k, 4), VA, (k % 4) * 1024), "x%d" % k)
    cuts = [0, 6, 13, 20, 28]; rnds = [0, 3, 6, 9, 13]
    XF1 = E("XFIRST", 16)
    a("s_lshl_b32 s20, s56, 8")
    a("s_add_u32 s20, s20, %s" % hex(SYNC_OFF + SW_REL * SL))
    for k in range(XF1):
        if k == max(XF1 - 6, 0): flag_issue(a, WS, "s20", VZ, VT, "fw")
        xload(k)
    if XF1 == 0: flag_issue(a, WS, "s20", VZ, VT, "fw")
    flag_check(a, WS, "s20", VZ, VT, "fw", PSL)
    stamp(a, 6)
    seq = []
    for c in range(4):
        seq += [(lambda r=r, c=c: wdma(r, "wc%d" % c)) for r in range(rnds[c], rnds[c + 1])]
        seq += [(lambda k=k: xload(k)) for k in range(max(cuts[c], XF1), cuts[c + 1])]
    if TWO:
        a("s_sub_u32 s27, s25, s26")
        a("s_add_u32 s27, s27, %d" % WP_PHI)
        a("s_add_u32 s20, s20, %d" % ((SV_REL - SW_REL) * SL))
        seq += [(lambda i=i: a.vmem("buffer_load_dwordx4 %s, v%d, s[32:35], s27 offen offset:%d sc1" % (vr(PH + 4 * i, 4), VA, i * 1024), "ph")) for i in range(2)]
        seq += [lambda: flag_issue(a, WS, "s20", VZ, VT, "fv")]
    else: seq += [(lambda r=r: wdma(r, "wq")) for r in (18, 13, 14, 15, 16, 17)]
    for f in seq[:XPRE]: f()
    pend = seq[XPRE:]
    def lread(dst, off, tag, base=None):
        if off < 65536: a.ds("ds_read_b128 %s, v%d offset:%d" % (vr(dst, 4), VB, off), tag)
        else: a.ds("ds_read_b128 %s, v%d offset:%d" % (vr(dst, 4), VD, off - 32768), tag)
    def wread(k):
        b = WF + 8 * (k % 3)
        lread(b, k * 1792, "w%d" % k); lread(b + 4, k * 1792 + 896, "w%d" % k)
    for c in range(4):
        k0, k1 = cuts[c], cuts[c + 1]
        assert k1 * 1792 + 64 <= rnds[c + 1] * 4096
        assert sum(1 for t_ in a.issued if t_ == "wc%d" % c) == rnds[c + 1] - rnds[c]
        a.wait(vm="wc%d" % c)
        a("s_barrier")
        wread(k0); wread(k0 + 1)
        for k in range(k0, k1):
            if k + 2 < k1: wread(k + 2)
            assert "x%d" % k in a.issued
            a.wait(vm="x%d" % k, lg="w%d" % k)
            b = WF + 8 * (k % 3); x = vr(XF + 4 * k, 4)
            a("%s %s, %s, %s, %s" % (MF, vr(AK, 16), vr(b, 4), x, "0" if k == 0 else vr(AK, 16)))
            if pend and len(a.vm.ops) < ALOOK: pend.pop(0)()
            a("%s %s, %s, %s, %s" % (MF, vr(AV, 16), x, vr(b + 4, 4), "0" if k == 0 else vr(AV, 16)))
            while pend and len(a.vm.ops) < min(ALOOK, 12): pend.pop(0)()
            if pend and len(a.vm.ops) < ALOOK: pend.pop(0)()
    for f in pend: f()
    pend = []
    assert not pend
    if TWO:
        flag_check(a, WS, "s20", VZ, VT, "fv", PSL)
        for r in range(12, 19): wdma(r, "wq")
        a("s_barrier")
    else:
        a.drain(lg=False)
        a("s_barrier")
        a("v_add_u32 v2, 0x8000, v%d" % VA)
        a.ds("ds_read_b128 %s, v2 offset:%d" % (vr(PH, 4), WP_PHI - 32768), "ph")
        a.ds("ds_read_b128 %s, v2 offset:%d" % (vr(PH + 4, 4), WP_PHI + 1024 - 32768), "ph")
    stamp(a, 7)
    PKK, PKV = 48, 56
    PP = 216; EP, EM = 16, 32; OUT = 176; S0 = 192; TA = S0 + 12
    a("""
    s_mov_b32 s56, 0
    s_mov_b32 s57, -1
    s_mov_b32 s37, {L2E}
    v_mul_u32_u24 v{t}, 136, v{VC}
    v_lshl_add_u32 v{t}, v{VH}, 3, v{t}
    s_mul_i32 s28, s14, 4352
    v_add_u32 v{t}, s28, v{t}
    s_lshl_b32 s28, s14, 11
    v_add_u32 v{u}, s28, v{VA}
    v_cmp_eq_u32 vcc, 28, v{VC}
    v_mov_b32 v{S0}, 0x3f803f80
    """.format(L2E=f32(1.4426950408889634), t=TA, u=TA + 1, VC=VC, VH=VH, VA=VA, S0=S0))
    for r in range(8): a("v_cvt_pk_bf16_f32 v%d, v%d, v%d" % (PKK + r, AK + 2 * r, AK + 2 * r + 1))
    a("v_cndmask_b32 v%d, 0, v%d, vcc" % (S0, S0))
    a.wait(lg="ph")
    a("%s %s, %s, %s, 0" % (MF, vr(PP, 16), vr(PH, 4), vr(PKK, 4)))
    a("%s %s, %s, %s, %s" % (MF, vr(PP, 16), vr(PH + 4, 4), vr(PKK + 4, 4), vr(PP, 16)))
    for r in range(8): a("v_cvt_pk_bf16_f32 v%d, v%d, v%d" % (PKV + r, AV + 2 * r, AV + 2 * r + 1))
    for r in range(8): a("v_cndmask_b32 v%d, v%d, v%d, s[58:59]" % (PKV + r, S0, PKV + r))
    a.ds("ds_write_b128 v%d, %s offset:17408" % (TA + 1, vr(PKV, 4)))
    a.ds("ds_write_b128 v%d, %s offset:%d" % (TA + 1, vr(PKV + 4, 4), 17408 + 1024))

    def softmax2(P, sink=None):
        mx, mn, t0, t1, t2, t3 = S0, S0 + 1, S0 + 2, S0 + 3, S0 + 4, S0 + 5
        for op, m, t in (("max", mx, t0), ("min", mn, t1)):
            a("v_%s3_f32 v%d, v%d, v%d, v%d" % (op, t, P + 12, P + 13, P + 14))
            a("v_%s3_f32 v%d, v%d, v%d, v%d" % (op, m, P, P + 1, P + 2))
            a("v_%s_f32 v%d, v%d, v%d" % (op, t, t, P + 15))
            for i in range(3, 11, 2): a("v_%s3_f32 v%d, v%d, v%d, v%d" % (op, m, m, P + i, P + i + 1))
            a("v_cndmask_b32 v%d, v%d, v%d, s[56:57]" % (t, t, P))
            a("v_%s3_f32 v%d, v%d, v%d, v%d" % (op, m, m, P + 11, t))
        a("v_mov_b32 v%d, v%d" % (t0, mx))
        a("v_mov_b32 v%d, v%d" % (t1, mn))
        a("v_mov_b32 v%d, 0x7f800000" % t2)
        a("v_mov_b32 v%d, 0xff800000" % t3)
        a("v_permlane32_swap_b32 v%d, v%d" % (mx, t0))
        a("v_permlane32_swap_b32 v%d, v%d" % (mn, t1))
        a("s_nop 0")
        a("v_max_f32 v%d, v%d, v%d" % (mx, mx, t0))
        a("v_min_f32 v%d, v%d, v%d" % (mn, mn, t1))
        a("v_mul_f32 v%d, s37, v%d" % (mx, mx))
        a("v_mul_f32 v%d, s37, v%d" % (mn, mn))
        a("v_cndmask_b32 v%d, v%d, v%d, s[56:57]" % (t2, mx, t2))
        a("v_cndmask_b32 v%d, v%d, v%d, s[56:57]" % (t3, mn, t3))
        for r in range(16):
            a("v_fma_f32 v%d, v%d, s37, -v%d" % (EP + r, P + r, mx if r < 12 else t2))
            a("v_fma_f32 v%d, -v%d, s37, v%d" % (EM + r, P + r, mn if r < 12 else t3))
        for r in range(16):
            a("v_exp_f32 v%d, v%d" % (EP + r, EP + r))
            a("v_exp_f32 v%d, v%d" % (EM + r, EM + r))
            if r == 2:
                a("v_add_f32 v%d, v%d, v%d" % (mx, EP, EP + 1))
                a("v_add_f32 v%d, v%d, v%d" % (mn, EM, EM + 1))
            if r > 2:
                a("v_add_f32 v%d, v%d, v%d" % (mx, mx, EP + r - 1))
                a("v_add_f32 v%d, v%d, v%d" % (mn, mn, EM + r - 1))
        a("v_add_f32 v%d, v%d, v%d" % (mx, mx, EP + 15))
        a("v_add_f32 v%d, v%d, v%d" % (mn, mn, EM + 15))
        a("v_mov_b32 v%d, v%d" % (t0, mx))
        a("v_mov_b32 v%d, v%d" % (t1, mn))
        a("s_nop 1")
        a("v_permlane32_swap_b32 v%d, v%d" % (mx, t0))
        a("v_permlane32_swap_b32 v%d, v%d" % (mn, t1))
        a("s_nop 0")
        a("v_add_f32 v%d, v%d, v%d" % (mx, mx, t0))
        a("v_add_f32 v%d, v%d, v%d" % (mn, mn, t1))
        a("v_rcp_f32 v%d, v%d" % (mx, mx))
        a("v_rcp_f32 v%d, v%d" % (mn, mn))
        for e, (E_, m) in enumerate(((EP, mx), (EM, mn))):
            for q in range(4):
                for r in range(4): a("v_mul_f32 v%d, v%d, v%d" % (E_ + 4 * q + r, E_ + 4 * q + r, m))
                for r in range(2): a("v_cvt_pk_bf16_f32 v%d, v%d, v%d" % (OUT + 8 * e + 2 * q + r, E_ + 4 * q + 2 * r, E_ + 4 * q + 2 * r + 1))
                if sink: sink(e, q)

    softmax2(PP, lambda e, q: a.ds("ds_write_b64 v%d, %s offset:%d" % (TA, vr(OUT + 8 * e + 2 * q, 2), e * 64 + q * 16)))
    a("""
    v_lshlrev_b32 v{t}, 2, v{VH}
    v_bfe_u32 v{u}, v{LN}, 2, 2
    v_add_u32 v{t}, v{t}, v{u}
    v_mul_u32_u24 v{t}, 136, v{t}
    v_bfe_u32 v{u}, v{LN}, 4, 1
    v_lshl_add_u32 v{t}, v{u}, 5, v{t}
    v_and_b32 v{u}, 3, v{LN}
    v_lshl_add_u32 v{t}, v{u}, 3, v{t}
    s_lshl_b32 s28, s14, 6
    v_add_u32 v{t}, s28, v{t}
    s_lshl_b32 s42, s39, 16
    s_add_u32 s42, s42, {KVP}
    s_lshl_b32 s28, s38, 10
    s_lshl_b32 s29, s14, 15
    s_add_u32 s28, s28, s29
    s_add_u32 s28, s28, s42
    s_add_u32 s29, s28, 16384
    """.format(t=TA + 2, u=TA + 3, LN=LN, VH=VH, KVP=hex(KVP_OFF)))
    a.drain()
    a("s_barrier")
    stamp(a, 8)
    a("s_cmp_ge_u32 s14, 2")
    a("s_cbranch_scc1 A_QPASS")
    KVA = 232
    for w in range(4):
        for i in range(2):
            n_ = 2 * w + i
            a.ds("ds_read_b64_tr_b16 %s, v%d offset:%d" % (vr(4 * n_, 2), TA + 2, w * 4352 + (16 * i) * 136), "kv%d" % n_)
            a.ds("ds_read_b64_tr_b16 %s, v%d offset:%d" % (vr(4 * n_ + 2, 2), TA + 2, w * 4352 + (16 * i + 8) * 136), "kv%d" % n_)
            a.ds("ds_read_b128 %s, v%d offset:%d" % (vr(32 + 4 * n_, 4), VA, 17408 + w * 2048 + i * 1024), "kv%d" % n_)
    for n_ in range(8):
        a.wait(lg="kv%d" % n_)
        a("%s %s, %s, %s, %s" % (MF, vr(KVA, 16), vr(4 * n_, 4), vr(32 + 4 * n_, 4), "0" if n_ == 0 else vr(KVA, 16)))
    a("s_nop 11")
    for i in range(2):
        for r in range(4): a("v_cvt_pk_bf16_f32 v%d, v%d, v%d" % (PKV + 4 * i + r, KVA + 8 * i + 2 * r, KVA + 8 * i + 2 * r + 1))
        a("buffer_store_dwordx4 %s, v%d, s[32:35], %s offen sc1" % (vr(PKV + 4 * i, 4), VA, "s29" if i else "s28"))
    a.label("A_QPASS")
    if E("FAKEA", 0) == 2: a("s_endpgm")
    a("s_setprio %d" % PRIO_Q)
    a("s_mov_b32 s62, 0")
    QB = 16
    def qread(k): lread(QB + 4 * (k % 8), WP_Q + k * 896, "q%d" % k)
    for k in range(4): qread(k)
    for k in range(28):
        if k + 4 < 28: qread(k + 4)
        a.wait(lg="q%d" % k)
        a("%s %s, %s, %s, %s" % (MF, vr(AQ, 16), vr(QB + 4 * (k % 8), 4), vr(XF + 4 * k, 4), "0" if k == 0 else vr(AQ, 16)))
        if k == E("S1K", 13):
            a("s_cmp_ge_u32 s14, 2")
            a("s_cbranch_scc1 A_NOARR")
            a.drain(lg=False)
            arrive_issue(a, "s40 offset:%d" % (S1_CNT * SL))
            a.label("A_NOARR")
    arrive_finish(a, 31, ["s40 offset:%d" % (S1_REL * SL)], "A_S1_NR")
    a.label("A_S1_NR")
    a("s_nop 9")
    for r in range(8): a("v_cvt_pk_bf16_f32 v%d, v%d, v%d" % (PKK + r, AQ + 2 * r, AQ + 2 * r + 1))
    a("s_nop 1")
    a("%s %s, %s, %s, 0" % (MF, vr(PP, 16), vr(PH, 4), vr(PKK, 4)))
    a("%s %s, %s, %s, %s" % (MF, vr(PP, 16), vr(PH + 4, 4), vr(PKK + 4, 4), vr(PP, 16)))
    a("s_nop 11")
    softmax2(PP)
    stamp(a, 9)
    SEL, KS, KVB, OD = 48, 0, 16, 32
    a("""
    s_setprio {PRIO}
    v_and_b32 v52, 3, v{VC}
    v_bfe_u32 v53, v{VC}, 3, 1
    v_lshl_add_u32 v52, v53, 2, v52
    v_and_b32 v53, 1, v52
    v_lshlrev_b32 v53, 4, v53
    v_mov_b32 v54, 0x3f80
    v_lshlrev_b32 v53, v53, v54
    v_lshrrev_b32 v52, 1, v52
    v_bfe_u32 v54, v{VC}, 2, 1
    v_xor_b32 v54, v54, v{VH}
    v_lshrrev_b32 v55, 4, v{VC}
    v_or_b32 v54, v54, v55
    v_lshl_add_u32 v52, v54, 2, v52
    s_lshl_b32 s28, s14, 14
    s_add_u32 s28, s28, s42
    s_add_u32 s41, s40, {REL}
    s_lshl_b32 s29, s14, 10
    v_add_u32 v55, s29, v{VA}
    """.format(PRIO=PRIO_K, VC=VC, VH=VH, VA=VA, REL=S1_REL * SL))
    for d in range(4):
        a("v_cmp_eq_u32 vcc, %d, v52" % d)
        a("s_nop 1")
        a("v_cndmask_b32 v%d, 0, v53, vcc" % (SEL + d))
    a("s_cmp_lg_u32 s14, 3")
    a("s_cbranch_scc1 A_S1_OK")
    poll(a, WS, "s41", VZ, VT, sleep=PSL)
    a.label("A_S1_OK")
    a("s_barrier")
    stamp(a, 10)
    for m in range(16):
        if E("FAKEG", 0) and m >= 4: continue
        if m % 4 == 0 and m: a("s_add_u32 s28, s28, 4096")
        a.vmem("buffer_load_dwordx4 %s, v%d, s[32:35], s28 offen offset:%d sc1" % (vr(64 + 4 * m, 4), VA, (m % 4) * 1024), "p%d" % m)
    a("""
    s_lshl_b32 s28, s36, 15
    s_lshl_b32 s29, s39, 11
    s_add_u32 s28, s28, s29
    s_add_u32 s28, s28, {OFO}
    s_lshr_b32 s40, s36, 1
    s_lshl_b32 s40, s40, 8
    s_add_u32 s40, s40, {SY}
    """.format(OFO=hex(OF_OFF), SY=hex(SYNC_OFF)))
    for m in range(16):
        a.wait(vm="p%d" % m)
        a("%s %s, %s, %s, %s" % (MF, vr(KS, 16), vr(SEL, 4), vr(64 + 4 * m, 4), "0" if m == 0 else vr(KS, 16)))
    a("s_nop 11")
    for r in range(4): a("v_cvt_pk_bf16_f32 v%d, v%d, v%d" % (KVB + r, KS + 2 * r, KS + 2 * r + 1))
    a.ds("ds_write_b128 v55, %s" % vr(KVB, 4))
    a.drain(vm=False)
    a("s_barrier")
    for n_ in range(4): a.ds("ds_read_b128 %s, v%d offset:%d" % (vr(KVB + 4 * n_, 4), VA, n_ * 1024), "kvl%d" % n_)
    for n_ in range(4):
        a.wait(lg="kvl%d" % n_)
        a("%s %s, %s, %s, %s" % (MF, vr(OD, 16), vr(KVB + 4 * n_, 4), vr(OUT + 4 * n_, 4), "0" if n_ == 0 else vr(OD, 16)))
    a("""
    s_nop 11
    v_mov_b32 v0, v{D12}
    v_mov_b32 v2, v{D12}
    s_nop 1
    v_permlane32_swap_b32 v0, v2
    s_nop 0
    v_add_f32 v2, {EPS}, v2
    v_rcp_f32 v2, v2
    s_nop 0
    """.format(D12=OD + 12, EPS=f32(1e-6)))
    for i in range(2):
        for r in range(8): a("v_mul_f32 v%d, v%d, v2" % (OD + 8 * i + r, OD + 8 * i + r))
        for r in range(4): a("v_cvt_pk_bf16_f32 v%d, v%d, v%d" % (KVB + 4 * i + r, OD + 8 * i + 2 * r, OD + 8 * i + 2 * r + 1))
        a.vmem("buffer_store_dwordx4 %s, v%d, s[32:35], s28 offen offset:%d sc1" % (vr(KVB + 4 * i, 4), VA, i * 1024))
    a.drain(lg=False)
    arrive_issue(a, "s40 offset:%d" % (S2_CNT * SL))
    arrive_finish(a, 31, ["s40 offset:%d" % (S2_REL * SL)], "A_FIN")
    a.label("A_FIN")
    stamp_flush(a, 11, 4, "A")
    a("s_endpgm")

class G:
    ACC = 0; B = 64; F = 64 + 8 * NB
    W0 = 232; W1 = 233; FA = 234; FB = 235; LA = 236; LB = 237
    LN = 238; L16 = 239; RES = 240
    VX = 248; VB2 = 249; VZ = 250; VT = 251; T0 = 252; T1 = 253; T2 = 254
assert G.F + 8 * NF <= 232
SLDS = 50
SJ = [6, 7, 8, 9, 10, 11, 48, 49]
SC = [51, 15, 59, 3]

def g_waddr(a, RS, scol):
    a("""
    v_lshrrev_b32 v{T0}, 3, v{L}
    v_mul_u32_u24 v{W0}, {RS}, v{T0}
    v_lshrrev_b32 v{T1}, 2, v{L}
    v_and_b32 v{T1}, 4, v{T1}
    v_and_b32 v{T2}, 7, v{L}
    v_xor_b32 v{T1}, v{T1}, v{T2}
    v_lshl_add_u32 v{W0}, v{T1}, 4, v{W0}
    v_add_u32 v{W0}, {scol}, v{W0}
    v_add_u32 v{W1}, {RS8}, v{W0}
    """.format(T0=G.T0, T1=G.T1, T2=G.T2, L=G.LN, W0=G.W0, W1=G.W1, RS=RS, RS8=8 * RS, scol=scol))
def g_laddr(a, perm2):
    a("""
    v_bfe_u32 v{T0}, v{L}, 4, 1
    v_lshrrev_b32 v{T1}, 5, v{L}
    v_lshlrev_b32 v{LA}, {HS}, v{T1}
    v_lshl_add_u32 v{LA}, v{T0}, 5, v{LA}
    v_bfe_u32 v{T1}, v{L}, 2, 2
    v_lshl_add_u32 v{LA}, v{T1}, 7, v{LA}
    v_lshrrev_b32 v{T1}, 1, v{T1}
    v_lshl_add_u32 v{LA}, v{T1}, 6, v{LA}
    v_and_b32 v{T1}, 3, v{L}
    v_lshl_add_u32 v{LA}, v{T1}, 3, v{LA}
    s_lshl_b32 s36, s14, 5
    s_and_b32 s36, s36, 64
    v_xor_b32 v{LA}, s36, v{LA}
    v_add_u32 v{LA}, s{SLDS}, v{LA}
    v_xor_b32 v{LB}, 64, v{LA}
    """.format(T0=G.T0, T1=G.T1, L=G.LN, LA=G.LA, LB=G.LB, HS=(9 if perm2 else 10), SLDS=SLDS))

class Stream:
    def __init__(self, a, name, srdw, RS, NK, perm2, pol, slots, nb):
        self.nb = nb
        self.a = a; self.n = name; self.srd = srdw; self.RS = RS; self.NK = NK; self.perm2 = perm2; self.pol = pol
        o = self.order(); first = [p for p in range(NK) if o[p][0] == 0]
        self.dorder = first + [p for p in range(NK) if p not in first]
        assert sorted(self.dorder[:self.nb]) == list(range(self.nb)) and self.dorder[self.nb:] == list(range(self.nb, NK))
        self.free = [(s, None) for s in slots]
        self.slot = {}; self.nd = 0; self.nr = 0
    def can_dma(self): return self.nd < self.NK and len(self.free) > 0
    def order(self):
        ng = self.NK // 4; o = [(j, 0) for j in range(min(LEAD, ng))]
        for j in range(ng):
            if j + LEAD < ng: o.append((j + LEAD, 0))
            o += [(j, 1), (j, 2), (j, 3)]
        if LEAD == 0: o = [(j, r) for j in range(ng) for r in range(4)]
        assert len(o) == self.NK
        return o
    def tstep(self, p, dst):
        j, rel = self.order()[p]
        if self.n == "b" and not ROT2: self.a("s_add_u32 %s, s%d, %d" % (dst, SC[rel], 16 * j))
        else: self.a("s_add_u32 %s, s%d, s%d" % (dst, SJ[j], SC[rel]))
    def dma_parts(self):
        a = self.a; p = self.dorder[self.nd]; self.nd += 1
        sl, tag = self.free.pop(0); self.slot[p] = sl
        def p0():
            if tag: a.wait(lg=tag)
            self.tstep(p, "s58")
            a("s_add_u32 m0, s%d, %d" % (SLDS, sl * 2048))
            a("s_mul_i32 s58, s58, %d" % (16 * self.RS))
            a.vmem("buffer_load_dwordx4 v%d, s[%d:%d], s58 offen %s lds" % (G.W0, self.srd, self.srd + 3, self.pol), "%sd%d" % (self.n, p))
            a("s_add_u32 m0, s%d, %d" % (SLDS, sl * 2048 + 1024))
        def p1():
            a("s_nop 0")
            a.vmem("buffer_load_dwordx4 v%d, s[%d:%d], s58 offen %s lds" % (G.W1, self.srd, self.srd + 3, self.pol), "%sd%d" % (self.n, p))
        return [p0, p1]
    def dma(self):
        for f in self.dma_parts(): f()
    def read_parts(self):
        a = self.a; p = self.dorder[self.nr]; self.nr += 1
        assert p in self.slot
        sl = self.slot[p]; b = G.B + 8 * (p % self.nb); io = 1024 if self.perm2 else 512
        self.free.append((sl, "%sr%d" % (self.n, p)))
        def part(u):
            def f():
                a.wait(vm="%sd%d" % (self.n, p))
                for i in range(2):
                    a.ds("ds_read_b64_tr_b16 %s, v%d offset:%d" % (vr(b + 4 * u + 2 * i, 2), G.LA + u, sl * 2048 + i * io), "%sr%d" % (self.n, p))
            return f
        return [part(0), part(1)]
    def read(self):
        for f in self.read_parts(): f()
    def inflight(self):
        seen = []
        for t in self.a.vm.ops:
            if t and t.startswith(self.n + "d") and t not in seen: seen.append(t)
        return seen
    def pump(self, ahead):
        did = False
        while self.can_dma() and len(self.inflight()) < ahead: self.dma(); did = True
        if self.nr < self.nb and self.nr < self.nd: self.read(); did = True
        elif self.can_dma():
            self.a.wait(vm=self.inflight()[0]); did = True
        return did
    def tables(self, srot, ssh, part=None):
        a = self.a; ng = self.NK // 4
        if part != 0:
            a("s_lshl_b32 s%d, %s, 4" % (SJ[0], srot))
            for j in range(1, 7):
                a("s_add_u32 s%d, s%d, 16" % (SJ[j], SJ[j - 1]))
                a("s_cmp_ge_u32 s%d, 112" % SJ[j])
                a("s_cselect_b32 s%d, 0, s%d" % (SJ[j], SJ[j]))
            a("s_movk_i32 s%d, 112" % SJ[7])
        if part != 1:
            a("s_lshl_b32 s61, %s, 2" % ssh)
            for r in range(4):
                a("s_add_u32 s%d, s61, %d" % (SC[r], 4 * r))
                a("s_and_b32 s%d, s%d, 12" % (SC[r], SC[r]))
                a("s_add_u32 s%d, s%d, s14" % (SC[r], SC[r]))
    def fload_parts(self, t, srdf):
        a = self.a; f = G.F + 8 * (t % NF)
        def p0():
            self.tstep(t, "s60")
            a("s_lshl_b32 s60, s60, 11")
            a.vmem("buffer_load_dwordx4 %s, v%d, s[%d:%d], s60 offen sc1" % (vr(f, 4), G.FA, srdf, srdf + 3), "%sf%d" % (self.n, t))
        def p1():
            a.vmem("buffer_load_dwordx4 %s, v%d, s[%d:%d], s60 offen sc1" % (vr(f + 4, 4), G.FB, srdf, srdf + 3), "%sf%d" % (self.n, t))
        return [p0, p1]
    def fload(self, t, srdf):
        for f in self.fload_parts(t, srdf): f()
    def step(self, t, weights_are_A, fill):
        a = self.a; b = G.B + 8 * (t % self.nb); f = G.F + 8 * (t % NF)
        a.wait(vm="%sf%d" % (self.n, t), lg="%sr%d" % (self.n, t))
        gaps = [[], [], [], []]
        for i, p in enumerate(fill): gaps[min(3, i * 4 // max(4, len(fill)))].append(p)
        for n in range(4):
            uw, uf = n >> 1, n & 1
            acc = vr(G.ACC + 16 * n, 16)
            W, F = vr(b + 4 * uw, 4), vr(f + 4 * uf, 4)
            A_, B_ = (W, F) if weights_are_A else (F, W)
            a("%s %s, %s, %s, %s" % (MF, acc, A_, B_, "0" if (t == 0 and n > 0) else acc))
            for p in gaps[n]: p()
    def loop_fill(self, t, srdf):
        fill = []
        if t + NF - 1 < self.NK: fill += self.fload_parts(t + NF - 1, srdf)
        dm = self.dma_parts() if self.can_dma() else []
        if t >= 1 and self.nr < self.NK and self.nr - self.nb <= t - 1: fill += self.read_parts()
        return fill + dm

def g_reduce_write(a, mid=None, pre=None, tail=None):
    a("v_add_u32 v%d, s%d, v%d" % (G.VT, SLDS, G.L16))
    def wr(t, q): a.ds("ds_write_b128 v%d, %s offset:%d" % (G.VT, vr(G.ACC + 16 * t + 4 * q, 4), 8192 + (t - 1) * 4096 + q * 1024), "rw")
    if tail:
        prev = None
        for n in (1, 2, 3, 0):
            acc = vr(G.ACC + 16 * n, 16); qs = [0, 1, 2, 3] if prev else []
            for i, pick in enumerate(tail):
                A_, B_ = pick(n)
                a("%s %s, %s, %s, %s" % (MF, acc, A_, B_, acc))
                if qs and i == 0: a("s_nop 10")
                for _ in range(1 if i == 0 else 2):
                    if qs: wr(prev, qs.pop(0))
            while qs: wr(prev, qs.pop(0))
            prev = n
    else:
        a("s_nop 10")
        for t in range(1, 4):
            for q in range(4): wr(t, q)
    for t in range(1, 4):
        a("s_xor_b32 s60, s14, %d" % t)
        a("s_mul_i32 s60, s60, %d" % (NS * 2048))
        a("v_add_u32 v%d, s60, v%d" % (G.T0 + t - 1, G.L16))
    if pre: pre()
    a.wait(lg="rw")
    a("s_barrier")
    if mid: mid()
    for t in range(1, 4):
        for q in range(4):
            a.ds("ds_read_b128 %s, v%d offset:%d" % (vr(G.ACC + 16 * t + 4 * q, 4), G.T0 + t - 1, 8192 + (t - 1) * 4096 + q * 1024), "rr%d" % t)
def v2(a, op, d, x, y, n, pk):
    if pk:
        for r in range(0, n, 2): a("v_pk_%s_f32 %s, %s, %s" % (op, vr(d + r, 2), vr(x + r, 2), vr(y + r, 2)))
    else:
        for r in range(n): a("v_%s_f32 v%d, v%d, v%d" % (op, d + r, x + r, y + r))
def g_reduce_add(a, pk=True):
    for t in range(1, 4):
        a.wait(lg="rr%d" % t)
        v2(a, "add", 0, 0, 16 * t, 16, pk)

def role_g(a):
    a.vm.clear(); a.lg.clear()
    a.label("ROLE_G")
    if ONLYA: a("s_endpgm")
    a("""
    v_and_b32 v{LN}, 63, v0
    s_mul_i32 s61, s57, 37
    s_lshr_b32 s61, s61, 8
    s_lshl_b32 s66, s56, 2
    s_add_u32 s66, s66, s61
    s_mul_i32 s61, s61, 7
    s_sub_u32 s64, s57, s61
    s_mul_i32 s{SLDS}, s14, {WB}
    s_lshl_b32 s67, s66, 7
    s_lshr_b32 s60, s14, 1
    s_lshl_b32 s60, s60, 6
    s_add_u32 s60, s60, s67
    v_lshrrev_b32 v{VT}, 5, v{LN}
    v_lshlrev_b32 v{VT}, 3, v{VT}
    """.format(LN=G.LN, SLDS=SLDS, WB=NS * 2048, VT=G.VT))
    s1 = Stream(a, "a", 16, 3584, NK1, False, os.environ.get("W1POL0", "nt"), list(range(NS)), NB)
    s2 = Stream(a, "b", 24, 4096, 28, True, W2POL, list(range(4)), NB2)
    def burst(st):
        for p in range(4):
            if len(st.inflight()) >= AHEAD0: a.wait(vm=st.inflight()[0])
            st.dma()
        if len(st.inflight()) >= AHEAD0: a.wait(vm=st.inflight()[0])
    g_waddr(a, 3584, "s67")
    s1.tables("s64", "s66", part=0)
    a("s_mov_b32 s18, %d" % (2048 * 3584))
    a("s_mov_b32 s19, 0x20000")
    a("s_waitcnt lgkmcnt(0)")
    a("s_mov_b32 s16, s40")
    a("s_and_b32 s17, s41, 0xffff")
    a("s_lshl_b32 s%d, s64, 4" % SJ[0])
    a("s_cmp_eq_u32 s56, 7")
    if ONLY2: a("s_branch G_SETUP")
    a("s_cbranch_scc1 G_SETUP")
    if GWAIT:
        a("global_load_dword v%d, v%d, s[42:43] nt" % (G.T0, G.VT))
        a("s_waitcnt vmcnt(0)")
    burst(s1)
    a.label("G_SETUP")
    stamp(a, 1)
    srd(a, 36, 42, str(1792 * 2))
    for q in range(4):
        a.vmem("buffer_load_dwordx2 %s, v%d, s[36:39], s60 offen offset:%d nt" % (vr(G.F + 2 * q, 2), G.VT, 16 * q), "b1")
    ws_base(a)
    srd(a, WS, 30, hex(WS_USED))
    a("""
    s_setprio {PRIO}
    v_lshlrev_b32 v{L16}, 4, v{LN}
    v_mov_b32 v{VZ}, 0
    s_lshr_b32 s60, s14, 1
    s_lshl_b32 s60, s60, 5
    s_lshl_b32 s61, s66, 6
    s_add_u32 s60, s60, s61
    v_and_b32 v{T0}, 31, v{LN}
    v_add_u32 v{T0}, s60, v{T0}
    v_mul_u32_u24 v{VX}, 896, v{T0}
    v_lshlrev_b32 v{T1}, 1, v{VT}
    s_lshl_b32 s60, s64, 7
    s_and_b32 s61, s14, 1
    s_lshl_b32 s61, s61, 6
    s_add_u32 s60, s60, s61
    v_add3_u32 v{VX}, v{VX}, v{T1}, s60
    v_lshlrev_b32 v{VB2}, 1, v{T0}
    s_and_b32 s60, s14, 1
    s_lshl_b32 s60, s60, 10
    v_add_u32 v{FA}, s60, v{L16}
    v_xor_b32 v{FB}, 0x400, v{FA}
    s_lshl_b32 s68, s64, 18
    s_add_u32 s68, s68, {HTO}
    s_mul_i32 s60, s64, {UG}
    s_add_u32 s60, s60, {UPO}
    """.format(PRIO=PRIO_G, L16=G.L16, LN=G.LN, VZ=G.VZ, T0=G.T0, T1=G.T1, VT=G.VT, VX=G.VX, VB2=G.VB2,
               FA=G.FA, FB=G.FB, HTO=hex(HT_OFF), UG=UP_G, UPO=hex(UP_OFF)))
    srd(a, 40, 30, str(UP_G), add="s60")
    srd(a, DBG, 28, "256")
    srd(a, 24, 52, str(1792 * 4096))
    srd(a, 20, 30, str(HT_G), add="s68")
    def sw2():
        g_waddr(a, 4096, "s67")
        g_laddr(a, True)
    def res_loads():
        for i in range(2):
            a.vmem("global_load_dwordx4 %s, v%d, s[4:5] offset:%d" % (vr(G.RES + 4 * i, 4), G.VX, 32 * i), "res")
    a.vmem("global_load_ushort v%d, v%d, s[54:55] nt" % (G.VB2, G.VB2), "b1")
    a("s_movk_i32 s68, 0x80")
    if not ONLY2:
        a("s_cmp_lt_u32 s56, 7")
        a("s_cbranch_scc1 G_TILE1")
    sv = list(a.vm.ops)
    if HELP and not ONLY2:
        a.vm.clear(); a.lg.clear()
        a("s_setprio %d" % E("PRIO_H", 3))
        a("s_lshl_b32 s36, s57, 7")
        g_waddr(a, 3584, "s36")
        a("s_lshl_b32 s58, s14, 2")
        a("s_add_u32 s58, s58, 112")
        a("s_mul_i32 s58, s58, %d" % (16 * 3584))
        a("s_lshl_b32 s59, s14, 13")
        for i in range(4):
            a("s_add_u32 m0, s59, %d" % (i * 2048))
            a("s_nop 0")
            a.vmem("buffer_load_dwordx4 v%d, s[16:19], s58 offen nt lds" % G.W0)
            a("s_add_u32 m0, s59, %d" % (i * 2048 + 1024))
            a("s_nop 0")
            a.vmem("buffer_load_dwordx4 v%d, s[16:19], s58 offen nt lds" % G.W1)
            a("s_add_u32 s58, s58, %d" % (16 * 3584))
        g_laddr(a, False)
        a("v_subrev_u32 v%d, s%d, v%d" % (G.LA, SLDS, G.LA))
        a("v_xor_b32 v%d, s36, v%d" % (G.LA, G.LA))
        a("v_xor_b32 v%d, 64, v%d" % (G.LB, G.LA))
        a.drain()
        a("s_barrier")
        for kk in range(16):
            for u in range(2):
                for i in range(2):
                    a.ds("ds_read_b64_tr_b16 %s, v%d offset:%d" % (vr(G.B + 8 * kk + 4 * u + 2 * i, 2), G.LA + u, kk * 2048 + i * 512))
        poll(a, DBG, "s68", G.VZ, G.VT, sleep=2)
        a.drain()
        stamp(a, 5)
        a("s_lshl_b32 s58, s14, 18")
        a("s_add_u32 s58, s58, %s" % hex(HT_OFF + 112 * 2048))
        a("s_mul_i32 s48, s57, 7")
        a("s_add_u32 s48, s48, s14")
        a("s_lshl_b32 s48, s48, 13")
        a("s_add_u32 s48, s48, %s" % hex(PART_OFF))
        a("s_cmp_eq_u32 s14, 3")
        a("s_cselect_b32 s49, 0x08000000, 0")
        def hload(kk):
            f = G.F + 8 * (kk % NF)
            if kk == 16:
                a("s_add_u32 s58, s58, %d" % (4 * HT_G - 7 * 4096))
                a("s_or_b32 s58, s58, s49")
            elif kk % 2 == 0 and kk: a("s_add_u32 s58, s58, 4096")
            for u in range(2):
                a.vmem("buffer_load_dwordx4 %s, v%d, s[32:35], s58 offen offset:%d sc1" % (vr(f + 4 * u, 4), G.L16, (kk % 2) * 2048 + u * 1024), "h%d" % kk)
        for kk in range(NF - 1): hload(kk)
        for kk in range(32):
            a.wait(vm="h%d" % kk)
            f = G.F + 8 * (kk % NF)
            for n in range(4):
                acc = vr(16 * n, 16)
                a("%s %s, %s, %s, %s" % (MF, acc, vr(G.B + 8 * (kk % 16) + 4 * (n >> 1), 4), vr(f + 4 * (n & 1), 4), "0" if kk % 16 == 0 else acc))
                if n == 0 and kk + NF - 1 < 32: hload(kk + NF - 1)
            if kk % 16 == 15:
                a("s_add_u32 s59, s48, 4096")
                a("s_nop 8")
                for n in range(8):
                    for r in range(4): a("v_cvt_pk_bf16_f32 v%d, v%d, v%d" % (4 * n + r, 8 * n + 2 * r, 8 * n + 2 * r + 1))
                    a.vmem("buffer_store_dwordx4 %s, v%d, s[32:35], %s offen offset:%d sc1" % (vr(4 * n, 4), G.L16, "s59" if n >= 4 else "s48", (n % 4) * 1024))
                if kk == 15:
                    a("s_add_u32 s48, s48, %d" % (4 * 8192))
                    a("s_cmp_eq_u32 s14, 3")
                    a("s_cbranch_scc1 H_FIN")
                    stamp(a, 6)
        a.label("H_FIN")
        a.drain()
        a("s_barrier")
        a("s_cmp_lg_u32 s14, 0")
        a("s_cbranch_scc1 H_DONE")
        a("s_lshl_b32 s58, s57, 8")
        a("s_add_u32 s58, s58, %s" % hex(SYNC_OFF + SH_REL * SL))
        arrive(a, "s58")
        a.label("H_DONE")
        a("s_setprio %d" % PRIO_G)
    MROW = E("MROW", 896)
    a.vm.clear(); a.lg.clear()
    poll(a, DBG, "s68", G.VZ, G.VT, sleep=8)
    if MROW < 1792 and not (ONLY2 or ONLYG):
        a("s_setprio %d" % E("PRIO_M", 0))
        a("s_lshl_b32 s58, s57, 2")
        a("s_add_u32 s58, s58, s14")
        a("s_lshl_b32 s58, s58, 10")
        a("s_add_u32 s58, s58, %d" % (MROW * 4096))
        a.label("M_W2")
        for i in range(4):
            a("s_waitcnt vmcnt(%d)" % (E("MDEPTH", 8) - 1))
            a("buffer_load_dwordx4 %s, v%d, s[24:27], s58 offen" % (vr(G.F + 8 + 4 * i, 4), G.L16))
            a("s_add_u32 s58, s58, %d" % (112 * 1024))
        a("s_cmp_lt_u32 s58, %d" % (1792 * 4096))
        a("s_cbranch_scc1 M_W2")
    a("s_setprio %d" % E("PRIO_7", 1))
    a("s_mov_b32 s69, %s" % hex(SYNC_OFF + ((SV_REL if TWO else SW_REL) + 7) * SL))
    poll(a, WS, "s69", G.VZ, G.VT, sleep=8)
    for i in range(7, 9): stamp(a, i)
    sw2()
    s2.tables("s64", "s66")
    a("s_mov_b32 s65, 1")
    a("s_branch G_JOIN")
    a.vm.ops = sv; a.lg.clear()
    a.label("G_TILE1")
    s1.tables("s64", "s66", part=1)
    g_laddr(a, False)
    if RESEARLY: res_loads()
    if E("BDRAIN", 1): a.drain(lg=False)
    else: a.wait(vm="ad%d" % s1.dorder[E("BWAIT", 1)])
    s1.pol = W1POL2
    stamp(a, 2)
    while s1.nd < NB + NS - 2: s1.pump(AHEAD)
    flag_issue(a, DBG, "s68", G.VZ, G.VT, "f0")
    a.wait(vm="b1")
    for q in range(8):
        a("v_lshlrev_b32 v%d, 16, v%d" % (2 * q, G.F + q))
        a("v_and_b32 v%d, 0xffff0000, v%d" % (2 * q + 1, G.F + q))
    while s1.pump(AHEAD): pass
    stamp(a, 3)
    flag_check(a, DBG, "s68", G.VZ, G.VT, "f0", 2)
    stamp(a, 4)
    for t in range(NF - 1): s1.fload(t, 20)
    log = []
    at = {}; fr_ok = [0]
    HP_ = G.B
    for t in range(NK1):
        if t in (8, 16, 24) and not E("WST", 0): stamp(a, 4 + t // 8)
        fill = s1.loop_fill(t, 20)
        if t == 16:
            def fw():
                a("s_lshl_b32 s69, s56, 8")
                a("s_add_u32 s69, s69, %s" % hex(SYNC_OFF + (SV_REL if TWO else SW_REL) * SL))
                flag_issue(a, WS, "s69", G.VZ, G.VT, "fw")
            fill.append(fw)
        if t == 22: flag_check(a, WS, "s69", G.VZ, G.VT, "fw", 2)
        if t == NK1 + 1 - NB:
            assert s1.nr == NK1
            fill.append(lambda: (a.drain(vm=False), sw2()))
        if HELP and t == NK1 - 1 - E("HLAG", 5):
            def fh():
                a("s_lshl_b32 s69, s66, 8")
                a("s_add_u32 s69, s69, %s" % hex(SYNC_OFF + SH_REL * SL))
                flag_issue(a, WS, "s69", G.VZ, G.VT, "fh")
            fill.append(fh)
        if HELP and t == NK1 - 1:
            def ph():
                flag_check(a, WS, "s69", G.VZ, G.VT, "fh", 1)
                a("s_mul_i32 s60, s66, 7")
                a("s_add_u32 s60, s60, s64")
                a("s_lshl_b32 s60, s60, 2")
                a("s_add_u32 s60, s60, s14")
                a("s_lshl_b32 s60, s60, 11")
                a("s_add_u32 s60, s60, %s" % hex(PART_OFF))
                for i in range(2):
                    a.vmem("buffer_load_dwordx4 %s, v%d, s[32:35], s60 offen offset:%d sc1" % (vr(HP_ + 4 * i, 4), G.L16, i * 1024), "hp")
            fill += [lambda: None] * 3 + [ph]
        if t >= NK1 - TAILM:
            assert not fill
            continue
        s1.step(t, True, fill)
    tail1 = []
    for t in range(NK1 - TAILM, NK1):
        a.wait(vm="af%d" % t, lg="ar%d" % t)
        tail1.append(lambda n, t=t: (vr(G.B + 8 * (t % NB) + 4 * (n >> 1), 4), vr(G.F + 8 * (t % NF) + 4 * (n & 1), 4)))
    stamp(a, 5 if E("WST", 0) else 8)
    def rd(n=1):
        for _ in range(n): s2.read(); log.append("r")
    def dm(n=1):
        for _ in range(n):
            first = s2.nd < 4
            s2.pol = os.environ.get("W2POL0", "") if first else W2POL
            s2.dma(); log.append("d")
            s2.pol = W2POL
            if first and s2.nd == 4 and E("TOUCH", 0):
                a("v_lshrrev_b32 v%d, 4, v%d" % (G.F, G.LN))
                a("v_lshlrev_b32 v%d, 18, v%d" % (G.F, G.F))
                a("v_and_b32 v%d, 15, v%d" % ((G.F + 1), G.LN))
                a("v_lshl_add_u32 v%d, v%d, 12, v%d" % (G.F, (G.F + 1), G.F))
                a("s_add_u32 s58, s%d, s14" % SJ[0])
                a("s_lshl_b32 s58, s58, 16")
                a("s_add_u32 s58, s58, s67")
                a.vmem("buffer_load_dword v%d, v%d, s[24:27], s58 offen" % ((G.F + 2), G.F), "touch")
    oa = {}; ob = {}
    def oa_parts(j):
        def p0():
            if j % 2 == 0 and j > 0: a("s_add_u32 s56, s56, 4096")
            a.vmem("buffer_load_dwordx4 %s, v%d, s[40:43], s56 offen offset:%d sc1" % (vr(oa[j], 4), G.FA, (j % 2) * 2048), "oa%d" % j)
        def p1():
            a.vmem("buffer_load_dwordx4 %s, v%d, s[40:43], s56 offen offset:%d sc1" % (vr(oa[j] + 4, 4), G.FB, (j % 2) * 2048), "oa%d" % j)
        return [p0, p1]
    def oa_base():
        a("s_lshl_b32 s56, s14, 14")
        a("s_add_u32 s56, s56, %d" % (112 * 2048))
    oa_base()
    early = []
    for j in range(NOA):
        oa[j] = G.B + 8 * (NB2 + j); early += oa_parts(j)
    g_reduce_write(a, mid=(lambda: (rd(WPUMP), dm(WPUMP))) if WPUMP else None, pre=lambda: (a.sprinkle(list(early), E("OAGAP", 5)), dm(WPRE)), tail=tail1)
    g_reduce_add(a, not NOPK)
    if HELP:
        a.wait(vm="hp")
        for q in range(8):
            a("v_lshlrev_b32 v%d, 16, v%d" % (16 + 2 * q, HP_ + q))
            a("v_and_b32 v%d, 0xffff0000, v%d" % (17 + 2 * q, HP_ + q))
        v2(a, "add", 0, 0, 16, 16, not NOPK)
    if E("WST", 0): stamp(a, 6)
    a("s_barrier")
    s2.free += [(s_, None) for s_ in range(4, NS)]
    log.append("f")
    if E("WST", 0): stamp(a, 7)
    c1 = -2.0 * 0.7978845608028654 * 1.4426950408889634
    c2 = c1 * 0.044715
    left = [WDMA1]
    def ride():
        if left[0] > 0: dm(); left[0] -= 1
    a("s_mov_b32 s60, %s" % f32(c2))
    a("v_mov_b32 v48, %s" % f32(c1))
    ride()
    v2(a, "mul", 16, 0, 0, 16, not NOPK)
    ride()
    for r in range(16): a("v_fma_f32 v%d, v%d, s60, v48" % (16 + r, 16 + r))
    ride()
    v2(a, "mul", 16, 16, 0, 16, not NOPK)
    for r in range(16): a("v_exp_f32 v%d, v%d" % (16 + r, 16 + r))
    ride()
    for r in range(16): a("v_add_f32 v%d, 1.0, v%d" % (16 + r, 16 + r))
    ride()
    for r in range(16): a("v_rcp_f32 v%d, v%d" % (16 + r, 16 + r))
    ride()
    a.sprinkle_flush()
    a("""
    s_lshl_b32 s60, s66, 2
    s_and_b32 s61, s14, 2
    s_add_u32 s60, s60, s61
    s_lshl_b32 s60, s60, 11
    """)
    for i in range(2):
        v2(a, "mul", 8 * i, 8 * i, 16 + 8 * i, 8, not NOPK)
        for r in range(4): a("v_cvt_pk_bf16_f32 v%d, v%d, v%d" % (32 + 4 * i + r, 8 * i + 2 * r, 8 * i + 2 * r + 1))
        a.vmem("buffer_store_dwordx4 %s, v%d, s[40:43], s60 offen offset:%d sc1" % (vr(32 + 4 * i, 4), G.FA, i * 2048), "ust")
    if E("WST", 0): stamp(a, 8)
    nb4 = s2.nd
    for p in range(E("WDMA2", 4)):
        if s2.can_dma(): dm()
    rd(min(nb4, NB2) - s2.nr)
    a.wait(vm="ust")
    state = (s2.nd, s2.nr, list(s2.free), dict(s2.slot), list(a.vm.ops), list(a.lg.ops))
    a("s_mov_b32 s65, s14")
    a("s_branch G_JOIN2")
    a.label("G_JOIN")
    a.vm.clear(); a.lg.clear()
    s2b = Stream(a, "b", 24, 4096, 28, True, "nt", list(range(4)), NB2)
    oa_base()
    for f in early: f()
    if RESEARLY: res_loads()
    s2b.pol = W2POL
    for act in log:
        if act == "r": s2b.read()
        elif act == "d": s2b.dma()
        else: s2b.free += [(s_, None) for s_ in range(4, NS)]
    assert (s2b.nd, s2b.nr, s2b.slot) == (state[0], state[1], state[3]) and [x[0] for x in s2b.free] == [x[0] for x in state[2]]
    a.drain()
    a.label("G_JOIN2")
    a.vm.ops = state[4]; a.lg.ops = state[5]
    stamp(a, 9)
    a("s_barrier")
    a("s_lshl_b32 s69, s64, 8")
    a("s_add_u32 s69, s69, %s" % hex(SYNC_OFF + S4_CNT * SL))
    a("s_mov_b32 s62, 0")
    a("s_cmp_lg_u32 s65, 0")
    a("s_cbranch_scc1 G_NOARR")
    arrive_issue(a, "s69")
    a.label("G_NOARR")
    while s2.can_dma() and len(s2.inflight()) < AHEAD2: s2.dma()
    if not RESEARLY: res_loads()
    arrive_finish(a, 27, ["s69 offset:%d" % ((S4_REL - S4_CNT) * SL)], "G_NOREL")
    a.label("G_NOREL")
    a("s_add_u32 s69, s69, %d" % ((S4_REL - S4_CNT) * SL))
    while s2.nd < NB2 + NS - 1: s2.pump(AHEAD2)
    flag_issue(a, WS, "s69", G.VZ, G.VT, "f4")
    while s2.pump(AHEAD2): pass
    a.wait(vm="res")
    a("v_lshlrev_b32 v16, 16, v%d" % G.VB2)
    if os.environ.get("PERT"):
        a("s_cmp_eq_u32 s2, 300")
        a("s_cselect_b32 s61, %s, 0" % f32(float(os.environ["PERT"])))
        a("v_add_f32 v16, s61, v16")
    for i in range(2):
        a("v_permlane32_swap_b32 v%d, v%d" % (G.RES + 4 * i, G.RES + 4 * i + 2))
        a("v_permlane32_swap_b32 v%d, v%d" % (G.RES + 4 * i + 1, G.RES + 4 * i + 3))
    a("s_nop 0")
    for q in range(8):
        a("v_lshlrev_b32 v%d, 16, v%d" % (2 * q, G.RES + q))
        a("v_and_b32 v%d, 0xffff0000, v%d" % (2 * q + 1, G.RES + q))
    for r in range(16): a("v_add_f32 v%d, v%d, v16" % (r, r))
    srd(a, 20, 12, str(2048 * 896))
    stamp(a, 10)
    flag_check(a, WS, "s69", G.VZ, G.VT, "f4", PSL)
    stamp(a, 11)
    for t in range(NF - 1): s2.fload(t, 40)
    a("""
    s_lshl_b32 s57, s66, 16
    s_lshl_b32 s36, s14, 13
    s_add_u32 s57, s57, s36
    s_add_u32 s57, s57, {OFO}
    s_lshl_b32 s36, s14, 14
    s_and_b32 s36, s36, 0x8000
    s_xor_b32 s37, s36, 0x8000
    s_add_u32 s67, s57, s37
    s_add_u32 s57, s57, s36
    s_lshl_b32 s68, s66, 8
    s_add_u32 s68, s68, {REL}
    """.format(OFO=hex(OF_OFF), REL=hex(SYNC_OFF + S2_REL * SL)))
    free = [(p, G.B + 8 * (p % NB2)) for p in range(28 - NB2, 28)] + [(t, G.F + 8 * (t % NF)) for t in range(28 - NF, 28)]
    free.append((-1, G.RES))
    free.sort()
    def ob_parts(j):
        def p0():
            if j == 4:
                a("s_add_u32 s57, s57, 4096")
                a("s_add_u32 s67, s67, 4096")
            a.vmem("buffer_load_dwordx4 %s, v%d, s[32:35], s57 offen offset:%d sc1" % (vr(ob[j], 4), G.L16, (j % 4) * 1024), "ob%d" % j)
        def p1():
            a.vmem("buffer_load_dwordx4 %s, v%d, s[32:35], s67 offen offset:%d sc1" % (vr(ob[j] + 4, 4), G.L16, (j % 4) * 1024), "ob%d" % j)
        return [p0, p1]
    def ostep(j, fill):
        a.wait(vm=["oa%d" % j, "ob%d" % j])
        for n in range(4):
            uw, uf = n >> 1, n & 1
            acc = vr(G.ACC + 16 * n, 16)
            a("%s %s, %s, %s, %s" % (MF, acc, vr(oa[j] + 4 * uf, 4), vr(ob[j] + 4 * uw, 4), acc))
            if fill: fill.pop(0)()
        for f in fill: f()
    TCHK = E("TCHK", 17)
    OLAG = E("OLAG", 5)
    want = []
    for j in range(8): want += ([("a", j)] if j >= NOA else []) + [("b", j)]
    issued_at = {}; jo = 0
    def take(t, limit):
        out = []
        while want and free and free[0][0] < t and len(out) < limit:
            kind, j = want[0]
            if kind == "b" and t < TCHK:
                nxt = [w_ for w_ in want if w_[0] == "a"]
                if not nxt: break
                kind, j = nxt[0]
            want.remove((kind, j))
            reg = free.pop(0)[1]
            if kind == "a": oa[j] = reg; out += oa_parts(j)
            else: ob[j] = reg; out += ob_parts(j); issued_at[j] = t
        return out
    for t in range(28):
        if ONLY2 and t in (4, 8, 12, 16): stamp(a, 2 + t // 4)
        fill = s2.loop_fill(t, 40)
        if t == TCHK - 5:
            fill.append(lambda: a.vmem("buffer_load_dword v%d, v%d, s[32:35], s68 offen sc1" % (G.VT, G.VZ), "s2"))
        if t == TCHK:
            a.wait(vm="s2")
            a("v_readfirstlane_b32 s62, v%d" % G.VT)
            a("s_cmp_lg_u32 s62, 0")
            a("s_cbranch_scc1 G_S2_OK")
            if not E("FAKEA", 0): poll(a, WS, "s68", G.VZ, G.VT, sleep=2, keep=True)
            a.label("G_S2_OK")
            stamp(a, 12)
        fill += take(t, 4)
        s2.step(t, False, fill)
        if jo in issued_at and issued_at[jo] + OLAG <= t:
            ostep(jo, take(t + 1, 4))
            free.append((t + 1, oa[jo])); free.append((t + 1, ob[jo])); free.sort()
            jo += 1
    assert s2.nr == 28
    if ONLY2: stamp(a, 7)
    for f in take(99, 99): f()
    assert not want
    while jo < 8 - TAILM: ostep(jo, []); jo += 1
    tail2 = []
    while jo < 8:
        a.wait(vm=["oa%d" % jo, "ob%d" % jo])
        tail2.append(lambda n, j=jo: (vr(oa[j] + 4 * (n & 1), 4), vr(ob[j] + 4 * (n >> 1), 4)))
        jo += 1
    if ONLY2: stamp(a, 8)
    g_reduce_write(a, tail=tail2)
    g_reduce_add(a)
    for r in range(8): a("v_cvt_pk_bf16_f32 v%d, v%d, v%d" % (32 + r, 2 * r, 2 * r + 1))
    a("s_nop 1")
    for i in range(2):
        a("v_permlane32_swap_b32 v%d, v%d" % (32 + 4 * i, 34 + 4 * i))
        a("v_permlane32_swap_b32 v%d, v%d" % (33 + 4 * i, 35 + 4 * i))
    for i in range(2): a("buffer_store_dwordx4 %s, v%d, s[20:23], 0 offen offset:%d %s" % (vr(32 + 4 * i, 4), G.VX, 32 * i, OUTPOL))
    stamp_flush(a, 13, 60, "G")

HEADER = open("cdna_kernels/%s.s.ref" % NAME).read().split("; Override launch geometry")[0]

def main(path):
    a = Asm()
    a.label(KNAME)
    a("s_cmp_ge_u32 s2, 512")
    a("s_cbranch_scc1 K_END")
    stamp(a, 0)
    a("""
    s_load_dwordx8 s[4:11], s[0:1], 0
    s_load_dwordx4 s[28:31], s[0:1], 80
    s_load_dwordx4 s[40:43], s[0:1], 40
    s_load_dwordx4 s[52:55], s[0:1], 56
    s_load_dwordx2 s[12:13], s[0:1], 72
    v_lshrrev_b32 v1, 6, v0
    s_and_b32 s56, s2, 7
    v_readfirstlane_b32 s14, v1
    s_bfe_u32 s57, s2, 0x50003
    s_cmp_lt_u32 s2, 256
    s_cbranch_scc1 ROLE_A
    s_cmp_ge_u32 s57, 28
    s_cbranch_scc1 K_P
    s_cmp_lg_u32 s56, 7
    s_cbranch_scc1 ROLE_G
    s_add_u32 s36, s57, 32
    s_lshl_b32 s37, s57, 2
    s_add_u32 s37, s37, s14
    s_cmp_lg_u32 s37, 111
    s_cbranch_scc1 ROLE_P
    v_and_b32 v6, 63, v0
    v_lshlrev_b32 v6, 8, v6
    v_add_u32 v6, {SYA}, v6
    v_mov_b32 v7, 0
    s_waitcnt lgkmcnt(0)
    global_store_dword v6, v7, s[30:31] sc1
    v_add_u32 v6, 0x4000, v6
    global_store_dword v6, v7, s[30:31] sc1
    v_add_u32 v6, 0x4000, v6
    global_store_dword v6, v7, s[30:31] sc1
    v_add_u32 v6, 0x4000, v6
    global_store_dword v6, v7, s[30:31] sc1
    s_mov_b32 s62, 1
    s_waitcnt vmcnt(0)
    s_atomic_add s62, s[28:29], 0x0
    s_branch ROLE_P
    K_P:
    s_sub_u32 s36, s2, 480
    s_branch ROLE_P
    """.format(SYA=hex(SYNC_OFF + WSBASE)))
    n0 = len(a.lines)
    role_a(a)
    n1 = len(a.lines)
    role_g(a)
    if GTOP:
        n2 = a.lines.index("G_SETUP:")
        head = a.lines[n1:n2] + ["    s_branch G_SETUP"]
        if GTOP == 1: a.lines = a.lines[:n0] + head + a.lines[n0:n1] + a.lines[n2:]
        else:
            k = n0 + next(i for i, l in enumerate(a.lines[n0:n1]) if "global_load_dwordx4 v[12:15]" in l) + 1
            a.lines = a.lines[:k] + ["    s_branch A_CONT"] + head + ["A_CONT:"] + a.lines[k:n1] + a.lines[n2:]
    a.label("K_END")
    a("s_endpgm")
    a.vm.clear(); a.lg.clear()
    a.label("ROLE_P")
    if ONLY2 or ONLYG:
        a("s_cmp_lt_u32 s57, 28")
        a("s_cbranch_scc1 ROLE_G")
        a("s_endpgm")
    a("""
    s_mov_b32 s66, s36
    s_lshl_b32 s36, s36, 2
    s_add_u32 s36, s36, s14
    REMAP
    v_and_b32 v1, 63, v0
    v_lshrrev_b32 v2, 3, v1
    v_and_b32 v3, 7, v1
    v_lshlrev_b32 v3, 4, v3
    v_mov_b32 v4, {BIG}
    s_mov_b64 s[64:65], -1
    s_mov_b32 s19, 0x20000
    s_lshl_b32 s49, s14, 13
    s_cmp_ge_u32 s36, 147
    s_cbranch_scc1 P_J2
    s_mul_i32 s37, s36, 3121
    s_lshr_b32 s37, s37, 16
    s_mul_i32 s38, s37, 21
    s_sub_u32 s38, s36, s38
    s_mul_i32 s20, s37, 172032
    s_lshl_b32 s39, s38, 7
    s_add_u32 s20, s20, s39
    s_add_u32 s21, s20, 43008
    s_add_u32 s22, s21, 43008
    s_add_u32 s23, s22, 43008
    s_movk_i32 s50, 2688
    s_mov_b32 s18, {WSZ}
    s_mov_b32 s51, 8
    s_waitcnt lgkmcnt(0)
    s_mov_b32 s16, s6
    s_and_b32 s17, s7, 0xffff
    s_branch P_LD
    P_J2:
    s_mov_b32 s51, 4
    s_cmp_ge_u32 s36, 203
    s_cbranch_scc1 P_J3
    s_sub_u32 s37, s36, 147
    s_and_b32 s38, s37, 7
    s_lshr_b32 s37, s37, 3
    s_mul_i32 s20, s38, 50176
    s_lshl_b32 s39, s37, 7
    s_add_u32 s20, s20, s39
    s_add_u32 s21, s20, 14336
    s_add_u32 s22, s20, 25088
    s_add_u32 s23, s20, 39424
    s_movk_i32 s50, 896
    s_mov_b32 s18, {OSZ}
    s_waitcnt lgkmcnt(0)
    s_mov_b32 s16, s10
    s_and_b32 s17, s11, 0xffff
    s_branch P_LD
    P_J3:
    s_sub_u32 s38, s36, 203
    s_mul_i32 s20, s38, 3136
    s_add_u32 s21, s20, 896
    s_add_u32 s22, s20, 1568
    s_add_u32 s23, s20, 2464
    s_movk_i32 s50, 56
    s_cmp_lt_u32 s38, 8
    s_cselect_b32 s18, 25088, 0
    s_waitcnt lgkmcnt(0)
    s_mov_b32 s16, s8
    s_and_b32 s17, s9, 0xffff
    P_LD:
    v_mul_lo_u32 v8, v2, s50
    s_lshl_b32 s39, s50, 3
    v_add_u32 v8, v8, v3
    v_cmp_gt_u32 vcc, s51, v2
    v_add_u32 v9, s39, v8
    s_mov_b32 m0, s49
    v_cndmask_b32 v10, v4, v9, vcc
    """.format(BIG=hex(BIG), WSZ=448 * 2688, OSZ=448 * 896).replace("REMAP", """
    s_cmp_ge_u32 s36, 98
    s_cbranch_scc1 P_M2
    s_mul_i32 s37, s36, 4682
    s_lshr_b32 s37, s37, 16
    s_mul_i32 s37, s37, 7
    s_add_u32 s36, s36, s37
    s_add_u32 s36, s36, 7
    s_branch P_M9
    P_M2:
    s_cmp_ge_u32 s36, 108
    s_cbranch_scc1 P_M3
    s_add_u32 s36, s36, 105
    s_branch P_M9
    P_M3:
    s_waitcnt lgkmcnt(0)
    s_mov_b32 s44, s28
    s_and_b32 s45, s29, 0xffff
    s_mov_b32 s46, 256
    s_mov_b32 s47, 0x20000
    v_mov_b32 v5, 0
    s_movk_i32 s58, 0x80
    s_mov_b32 s60, 0
    P_MW:
    buffer_load_dword v4, v5, s[44:47], s58 offen sc1
    s_add_u32 s60, s60, 1
    s_waitcnt vmcnt(0)
    v_readfirstlane_b32 s61, v4
    s_cmp_lg_u32 s61, 0
    s_cbranch_scc1 P_MD
    s_sleep 8
    s_cmp_lt_u32 s60, 0x40000
    s_cbranch_scc1 P_MW
    P_MD:
    s_setprio 3
    s_sub_u32 s36, s36, 108
    s_cmp_ge_u32 s36, 49
    s_cbranch_scc1 P_M4
    s_mul_i32 s37, s36, 37
    s_lshr_b32 s37, s37, 8
    s_mul_i32 s37, s37, 14
    s_add_u32 s36, s36, s37
    s_branch P_M9
    P_M4:
    s_add_u32 s36, s36, 98
    s_cmp_ge_u32 s36, 203
    s_cselect_b32 s36, 239, s36
    P_M9:
    """ if TWO else ""))
    stamp(a, 2)
    for u in range(4):
        a.vmem("buffer_load_dwordx4 v8, s[16:19], s%d offen nt lds" % (20 + u), "u%d" % u)
        a("s_add_u32 m0, s49, %d" % (u * 2048 + 1024))
        a("s_nop 0")
        a.vmem("buffer_load_dwordx4 v%d, s[16:19], s%d offen nt lds" % (10 if u % 2 else 9, 20 + u), "u%d" % u)
        if u < 3:
            a("s_add_u32 m0, s49, %d" % (u * 2048 + 2048))
            a("s_nop 0")
    def code_pf():
        a("""
        s_cmp_lt_u32 s57, 28
        s_cbranch_scc1 P_NOCODE
        s_getpc_b64 s[60:61]
        K_PC:
        s_sub_u32 s60, s60, K_PC-{K}
        s_subb_u32 s61, s61, 0
        s_and_b32 s58, s57, 3
        s_lshl_b32 s58, s58, 12
        v_lshl_add_u32 v5, v0, 4, s58
        global_load_dwordx4 v[64:67], v5, s[60:61]
        v_add_u32 v5, 0x4000, v5
        v_min_u32 v5, CODE_END-{K}-16, v5
        global_load_dwordx4 v[68:71], v5, s[60:61]
        P_NOCODE:
        """.format(K=KNAME))
    if E("CODEPF", 1) == 1: code_pf()
    ws_base(a)
    srd(a, WS, 30, hex(WS_USED))
    srd(a, DBG, 28, "256")
    a("""
    v_mov_b32 v5, 0
    v_bfe_u32 v13, v1, 2, 2
    v_lshlrev_b32 v13, 7, v13
    v_lshrrev_b32 v14, 4, v1
    v_lshl_add_u32 v13, v14, 5, v13
    v_and_b32 v14, 3, v1
    v_lshl_add_u32 v13, v14, 3, v13
    v_add_u32 v13, s49, v13
    s_cmp_ge_u32 s36, 147
    s_cbranch_scc1 P_D2
    s_mul_i32 s39, s38, 37
    s_lshr_b32 s39, s39, 8
    s_mul_i32 s48, s39, 7
    s_sub_u32 s48, s38, s48
    s_lshl_b32 s48, s48, 6
    v_add_u32 v6, s48, v1
    v_mul_u32_u24 v7, 2341, v6
    v_lshrrev_b32 v7, 16, v7
    v_mul_u32_u24 v11, 28, v7
    v_sub_u32 v11, v6, v11
    v_lshlrev_b32 v11, 4, v11
    v_mul_u32_u24 v7, {WPH}, v7
    v_add_u32 v11, v11, v7
    v_add_u32 v12, 448, v11
    s_cmp_eq_u32 s39, 0
    s_cselect_b32 s48, 1, 2
    s_mul_i32 s48, s48, 896
    s_mul_i32 s24, s39, 896
    s_sub_u32 s24, s24, 896
    s_cmp_eq_u32 s39, 0
    s_cselect_b32 s24, {WPQ}, s24
    s_lshl_b32 s37, s37, 2
    s_mul_i32 s37, s37, s48
    s_add_u32 s24, s24, s37
    s_add_u32 s24, s24, {WPO}
    s_add_u32 s25, s24, s48
    s_add_u32 s26, s25, s48
    s_add_u32 s27, s26, s48
    v_add_u32 v14, 512, v13
    v_add_u32 v15, 1024, v13
    s_branch P_ST
    P_D2:
    v_add_u32 v14, 1024, v13
    v_add_u32 v15, 512, v13
    v_lshrrev_b32 v6, 5, v1
    v_and_b32 v7, 31, v1
    v_lshlrev_b32 v11, 4, v7
    s_cmp_ge_u32 s36, 203
    s_cbranch_scc1 P_D3
    v_lshl_add_u32 v11, v6, 10, v11
    v_add_u32 v12, 512, v11
    s_mul_i32 s24, s37, {UPG}
    s_lshl_b32 s39, s38, 13
    s_add_u32 s24, s24, s39
    s_add_u32 s24, s24, {OB}
    s_add_u32 s25, s24, 2048
    s_add_u32 s26, s24, 4096
    s_add_u32 s27, s24, 6144
    s_branch P_ST
    P_D3:
    v_mul_u32_u24 v6, 0x7f0000, v6
    v_lshl_add_u32 v11, v6, 4, v11
    v_add_u32 v12, 512, v11
    s_mul_i32 s24, s38, {WPH2}
    s_add_u32 s24, s24, {PHB}
    s_cmp_lt_u32 s38, 8
    s_cselect_b32 s24, s24, 0x08000000
    s_add_u32 s25, s24, 1024
    s_add_u32 s26, s24, {WPH}
    s_add_u32 s27, s26, 1024
    s_mov_b32 s64, 0x0fffffff
    P_ST:
    """.format(WPH=WP_H, WPQ=WP_Q, WPO=hex(WP_OFF), UPG=UP_G, OB=hex(UP_OFF + 112 * 2048), WPH2=2 * WP_H, PHB=hex(WP_OFF + WP_PHI)))
    stamp(a, 3)
    for u in range(4):
        b = 16 + 8 * u
        a.wait(vm="u%d" % u)
        a.ds("ds_read_b64_tr_b16 %s, v13 offset:%d" % (vr(b, 2), u * 2048), "t%d" % u)
        a.ds("ds_read_b64_tr_b16 %s, v14 offset:%d" % (vr(b + 2, 2), u * 2048), "t%d" % u)
        a.ds("ds_read_b64_tr_b16 %s, v15 offset:%d" % (vr(b + 4, 2), u * 2048), "t%d" % u)
        a.ds("ds_read_b64_tr_b16 %s, v13 offset:%d" % (vr(b + 6, 2), u * 2048 + 1536), "t%d" % u)
    stamp(a, 4)
    for u in range(4):
        b = 16 + 8 * u
        a.wait(lg="t%d" % u)
        for r in range(8): a("v_cndmask_b32 v%d, 0, v%d, s[64:65]" % (b + r, b + r))
        a.vmem("buffer_store_dwordx4 %s, v11, s[32:35], s%d offen sc1" % (vr(b, 4), 24 + u))
        a.vmem("buffer_store_dwordx4 %s, v12, s[32:35], s%d offen sc1" % (vr(b + 4, 4), 24 + u))
    a.vmem("buffer_load_dword v4, v5, s[44:47], 0 offen sc1")
    stamp(a, 5)
    a.drain()
    stamp(a, 6)
    a("s_barrier")
    a("s_cmp_lg_u32 s14, 0")
    a("s_cbranch_scc1 P_NOARR")
    a("v_readfirstlane_b32 s61, v4")
    a("s_cmp_lg_u32 s61, 0")
    a("s_cbranch_scc1 P_RDY")
    poll(a, DBG, "0", 5, 4)
    a.label("P_RDY")
    assert SV_REL - SV_CNT == SW_REL - SW_CNT
    a("s_mov_b32 s20, %s" % hex(SYNC_OFF + SW_CNT * SL))
    a("s_mov_b32 s21, 59")
    if TWO:
        a("s_cmp_lt_u32 s66, 27")
        a("s_cselect_b32 s21, 26, 32")
        a("s_cselect_b32 s22, 0, %d" % ((SV_CNT - SW_CNT) * SL))
        a("s_add_u32 s20, s20, s22")
    arrive_issue(a, "s20")
    a.drain(vm=False)
    a("s_cmp_lg_u32 s62, s21")
    a("s_cbranch_scc1 P_NOARR")
    a("s_mov_b32 s62, 1")
    for i in range(8): a("s_atomic_add s62, s[30:31], s20 offset:%d" % ((SW_REL - SW_CNT + i) * SL))
    a.label("P_NOARR")
    if WSBASE:
        a("s_sub_u32 s30, s30, %s" % hex(WSBASE))
        a("s_subb_u32 s31, s31, 0")
    a("s_cmp_lt_u32 s57, 28")
    a("s_cbranch_scc1 ROLE_G")
    stamp(a, 1)
    if ONLYA or not E("PON", 1): a("s_endpgm")
    a("""
    s_and_b32 s36, s57, 3
    s_lshl_b32 s37, s56, 2
    s_add_u32 s37, s37, s36
    s_lshl_b32 s37, s37, 7
    s_mul_i32 s58, s14, {W64}
    s_add_u32 s58, s58, s37
    s_add_u32 s58, s58, {R0}
    s_cmp_eq_u32 s56, 7
    s_cselect_b32 s58, 0x08000000, s58
    v_mul_u32_u24 v6, 3584, v2
    v_add_u32 v6, v6, v3
    """.format(W64=64 * 3584, R0=1792 * 3584))
    srd(a, 16, 40, str(2048 * 3584))
    for i in range(0 if HELP else 8):
        a("buffer_load_dwordx4 %s, v6, s[16:19], s58 offen nt" % vr(16 + 4 * i, 4))
        a("s_add_u32 s58, s58, %d" % (8 * 3584))
    a("""
    s_lshl_b32 s36, s36, 2
    s_add_u32 s36, s36, s14
    v_lshrrev_b32 v2, 5, v1
    v_lshlrev_b32 v2, 12, v2
    v_and_b32 v3, 31, v1
    v_lshl_add_u32 v2, v3, 4, v2
    s_lshl_b32 s58, s56, 9
    v_add_u32 v2, s58, v2
    v_lshlrev_b32 v1, 4, v1
    v_mov_b32 v3, 0
    s_mul_i32 s37, s56, 229376
    """)
    srd(a, 24, 52, str(1792 * 4096))
    srd(a, 16, 4, "229376", add="s37")
    PD = E("PDEPTH", 8)
    a("s_setprio %d" % E("PRIO_P", 0))
    def pf_loop(lbl, srdn, vaddr, step, limit, pol):
        a.label(lbl)
        for i in range(8):
            a("s_waitcnt vmcnt(%d)" % (PD - 1))
            a("buffer_load_dwordx4 %s, v%d, s[%d:%d], s58 offen %s" % (vr(8 + 4 * i, 4), vaddr, srdn, srdn + 3, pol))
            a("s_add_u32 s58, s58, %d" % step)
        a("s_cmp_lt_u32 s58, %s" % limit)
        a("s_cbranch_scc1 %s" % lbl)
    def blk8k(sreg):
        a("s_waitcnt vmcnt(4)")
        for i in range(4): a("buffer_load_dwordx4 %s, v1, s[32:35], %s offen offset:%d sc1" % (vr(8 + 4 * i, 4), sreg, i * 1024))
        a("s_add_u32 s63, %s, 4096" % sreg)
        a("s_waitcnt vmcnt(4)")
        for i in range(4): a("buffer_load_dwordx4 %s, v1, s[32:35], s63 offen offset:%d sc1" % (vr(24 + 4 * i, 4), i * 1024))
    def tail_groups(lbl, base, gstride, n, with7, flag):
        a("s_and_b32 s48, s57, 3")
        a.label(lbl)
        if flag is not None:
            a("s_lshl_b32 s58, s48, 8")
            a("s_add_u32 s58, s58, %s" % hex(flag))
            poll(a, WS, "s58", 3, 4, sleep=4)
        a("s_mul_i32 s49, s48, %d" % gstride)
        a("s_lshl_b32 s50, s14, 13")
        a("s_add_u32 s49, s49, s50")
        a("s_add_u32 s49, s49, %s" % hex(base))
        for q in range(n):
            if with7 and q == n - 1: a("s_add_u32 s51, s49, %d" % (7 * 32768))
            else:
                back = n - (1 if with7 else 0) - q
                a("s_add_u32 s51, s48, %d" % (7 - back))
                a("s_sub_u32 s50, s51, 7")
                a("s_cselect_b32 s51, s51, s50")
                a("s_lshl_b32 s51, s51, 15")
                a("s_add_u32 s51, s51, s49")
            blk8k("s51")
        a("s_add_u32 s48, s48, 4")
        a("s_cmp_lt_u32 s48, 7")
        a("s_cbranch_scc1 %s" % lbl)
    def wait_s0():
        a("s_movk_i32 s58, 0x80")
        poll(a, DBG, "s58", 3, 4, sleep=8)
    def pf_wo():
        a("s_lshl_b32 s58, s36, 12")
        a("s_add_u32 s58, s58, %s" % hex(UP_OFF + 112 * 2048))
        for g_ in range(7):
            a("s_waitcnt vmcnt(4)")
            for i in range(4): a("buffer_load_dwordx4 %s, v1, s[32:35], s58 offen offset:%d sc1" % (vr(8 + 16 * (g_ % 2) + 4 * i, 4), i * 1024))
            a("s_add_u32 s58, s58, %d" % UP_G)
    if not E("PEARLY", 0): wait_s0()
    stamp(a, 2)
    a("s_lshl_b32 s58, s36, 13")
    pf_loop("P_W2", 24, 2, 16 * 8192, str(E("PFA", 1024) * 4096), PFPOL)
    stamp(a, 3)
    a("s_mov_b32 s48, s58")
    if E("PWO", 2) == 1: pf_wo()
    a("s_lshl_b32 s58, s36, 10")
    if E("PX", 1): pf_loop("P_X", 16, 1, 16 * 1024, "229376", PFPOL)
    stamp(a, 4)
    a("s_mov_b32 s58, s48")
    if E("PTAIL", 1): pf_loop("P_W3", 24, 2, 16 * 8192, str(1792 * 4096), PFPOL)
    stamp(a, 5)
    if E("PEARLY", 0): wait_s0()
    if E("PWO", 2) == 2: pf_wo()
    if E("NUT", 0): tail_groups("P_UT", UP_OFF, UP_G, E("NUT", 0), False, SYNC_OFF + S4_REL * SL)
    if E("POF", 0):
        a("s_and_b32 s48, s57, 3")
        a("s_lshl_b32 s49, s56, 2")
        a("s_add_u32 s48, s48, s49")
        a("s_lshl_b32 s58, s48, 8")
        a("s_add_u32 s58, s58, %s" % hex(SYNC_OFF + S2_REL * SL))
        poll(a, WS, "s58", 3, 4, sleep=4)
        a("s_lshl_b32 s51, s48, 16")
        a("s_lshl_b32 s50, s14, 14")
        a("s_add_u32 s51, s51, s50")
        a("s_add_u32 s51, s51, %s" % hex(OF_OFF))
        blk8k("s51")
        a("s_add_u32 s51, s51, 8192")
        blk8k("s51")
    if STAMP == 1: stamp_flush(a, 7, 60)
    a("s_endpgm")
    a.label("CODE_END")
    if DIAG:
        out = HEADER + "; @launch kernel=%s grid=(512,1,1) block=(256,1,1) lds=81920\n; @launch kernel=diag_kernel grid=(1,1,1) block=(64,1,1) lds=0\n" % KNAME
        a.lines += [".globl diag_kernel", ".p2align 8", ".type diag_kernel,@function"]
        a("""
        diag_kernel:
        s_cmp_lg_u32 s2, 0
        s_cbranch_scc1 DG_END
        s_load_dwordx2 s[4:5], s[0:1], 80
        s_waitcnt lgkmcnt(0)
        s_sub_u32 s4, s4, 512
        s_subb_u32 s5, s5, 0
        s_load_dwordx2 s[6:7], s[4:5], 128
        s_memrealtime s[8:9]
        s_waitcnt lgkmcnt(0)
        s_not_b32 s6, s6
        s_sub_u32 s6, s7, s6
        s_min_u32 s6, s6, 10000
        s_mul_i32 s6, s6, %d
        DG_L:
        s_memrealtime s[10:11]
        s_waitcnt lgkmcnt(0)
        s_sub_u32 s10, s10, s8
        s_cmp_lt_u32 s10, s6
        s_cbranch_scc1 DG_L
        DG_END:
        s_endpgm
        """ % E("AMP", 10))
    else:
        out = HEADER + "; @launch grid=(512,1,1) block=(256,1,1) lds=81920\n"
    out += '.amdgcn_target "amdgcn-amd-amdhsa--gfx950"\n.text\n.globl %s\n.p2align 8\n.type %s,@function\n' % (KNAME, KNAME)
    out += a.text()
    out += """.section .rodata,"a"
.p2align 6
.amdhsa_kernel {n}
  .amdhsa_next_free_vgpr 256
  .amdhsa_next_free_sgpr {s}
  .amdhsa_accum_offset 256
  .amdhsa_group_segment_fixed_size 0
  .amdhsa_kernarg_size 96
  .amdhsa_user_sgpr_count 2
  .amdhsa_user_sgpr_kernarg_segment_ptr 1
  .amdhsa_system_sgpr_workgroup_id_x 1
  .amdhsa_float_denorm_mode_32 3
.end_amdhsa_kernel
""".format(n=KNAME, s=100 if STAMP else 72)
    if DIAG:
        out += """.p2align 6
.amdhsa_kernel diag_kernel
  .amdhsa_next_free_vgpr 8
  .amdhsa_next_free_sgpr 32
  .amdhsa_accum_offset 8
  .amdhsa_group_segment_fixed_size 0
  .amdhsa_kernarg_size 96
  .amdhsa_user_sgpr_count 2
  .amdhsa_user_sgpr_kernarg_segment_ptr 1
  .amdhsa_system_sgpr_workgroup_id_x 1
.end_amdhsa_kernel
"""
    if E("NONT", 1):
        import re
        out = re.sub(r" nt$", "", out, flags=re.M).replace(" nt lds", " lds")
    open(path, "w").write(out)

if __name__ == "__main__":
    main(sys.argv[1])
```

```python
import sys, struct, os

NAME = "parallel_sum__linear_kernel_hedgehog__mixer_token_mlp__prompt"
KNAME = NAME + "_kernel"
E = lambda k, d: int(os.environ.get(k, str(d)))

XN_OFF   = 0x000000
HT_OFF   = 0x200000
HT_G     = 128 * 2048
WP_OFF   = 0x400000
WP_Q     = 28 * 1792
WP_PHI   = 28 * 2688
WP_H     = WP_PHI + 2048 + 512
UP_OFF   = 0x600000
UP_G     = 144 * 2048
KVF_OFF  = 0x800000
SYNC_OFF = 0x840000
OF_OFF   = 0x900000
KVP_OFF  = 0xB00000
PART_OFF = 0xD00000
WS_USED  = 0x1000000
STAMP_OFF = 0xF00000
BIG      = 0x7ff00000
SL = 256
SX_CNT, SX_REL = 0, 16
SW_CNT, SW_REL = 32, 48
S1_CNT, S1_REL = 64, 80
SV_CNT, SV_REL = 96, 112
S2_CNT, S2_REL = 128, 160
S4_CNT, S4_REL = 192, 200
SA_ROOT = 60
SA_REP = 208
SH_REL = 224
F4 = 256
NSYNC = 512
SPIN_MAX = 0x40000

STAMP = E("STAMP", 0); PRIO_A = E("PRIO_A", 2); PRIO_G = E("PRIO_G", 1); AHEAD = E("AHEAD", 4); W2START = E("W2START", 32)
NB, NF, NS = E("NB", 16), E("NF", 5), 10
LEAD = E("LEAD", 0)
XPRE = E("XPRE", 12)
PSL = E("PSL", 1)
WDMA1 = E("WDMA1", 3)
WPRE = E("WPRE", 4)
NOPK = E("NOPK", 0)
NOA = E("NOA", 0)
TWO = E("TWO", 0)
GTOP = E("GTOP", 2)
TAILM = E("TAILM", 3)
FINE4 = E("FINE4", 1)
FLOOK = E("FLOOK", 7)
HELP = E("HELP", 0)
NK1 = 28 if HELP else 32
NB2 = NB - NOA
ROT2 = E("ROT2", 1)
INL0 = E("INL0", 18)
INLN = E("INLN", 0)
INLP = E("INLP", 1)
WPUMP = E("WPUMP", 0)
AHEAD2 = E("AHEAD2", 5)
PFW2 = E("PFW2", 0)
PRIO_Q = E("PRIO_Q", 0)
PRIO_K = E("PRIO_K", 2)
JOBLATE = E("JOBLATE", 1)
BURST = E("BURST", 4)
PFPOL = os.environ.get("PFPOL", "")
NP = E("NP", 0)
AHEAD0 = E("AHEAD0", 5)
ALOOK = E("ALOOK", 99)
W2POL = os.environ.get("W2POL", "")
W1POL2 = os.environ.get("W1POL2", "")
RESEARLY = E("RESEARLY", 0)
WSBASE = E("WSBASE", 0)
ONLY2 = E("ONLY2", 0)
ONLYG = E("ONLYG", 0)
ONLYA = E("ONLYA", 0)
GWAIT = E("GWAIT", 0)
PFWAIT = E("PFWAIT", 0)
OUTPOL = os.environ.get("OUTPOL", "")

def f32(x): return "0x%08x" % struct.unpack("<I", struct.pack("<f", x))[0]

class Q:
    def __init__(self, mx): self.ops = []; self.mx = mx
    def issue(self, tag): self.ops.append(tag)
    def need(self, tags):
        if not isinstance(tags, (list, tuple, set)): tags = [tags]
        idx = -1
        for i, t in enumerate(self.ops):
            if t in tags: idx = i
        if idx < 0: return None
        n = len(self.ops) - 1 - idx
        if n > self.mx: return self.mx
        self.ops = self.ops[idx + 1:]
        return n
    def clear(self): self.ops = []

class Asm:
    def __init__(self):
        self.lines = []; self.vm = Q(63); self.lg = Q(15); self.uid = 0; self.issued = []; self.spr = []; self.pending = False
    def sprinkle(self, fns, gap): self.spr = fns; self.gap = gap; self.cnt = 0
    def sprinkle_flush(self):
        fns, self.spr = self.spr, []
        for f in fns: f()
    def __call__(self, s):
        for l in s.strip().split("\n"):
            l = l.strip()
            if l.endswith(":"): self.lines.append(l)
            elif l: self.lines.append("    " + l)
        if self.spr and s.lstrip().startswith(("v_", "ds_")):
            self.cnt += 1
            if self.cnt >= self.gap:
                self.cnt = 0
                self.spr.pop(0)()
    def label(self, l): self.lines.append(l + ":")
    def vmem(self, s, tag=None): self(s); self.vm.issue(tag); self.issued.append(tag)
    def ds(self, s, tag=None): self(s); self.lg.issue(tag)
    def wait(self, vm=None, lg=None):
        p = []
        for q, t, nm in ((self.vm, vm, "vmcnt"), (self.lg, lg, "lgkmcnt")):
            if t is None: continue
            n = q.need(t)
            if n is None: continue
            if len(q.ops) > n: q.ops = q.ops[len(q.ops) - n:]
            p.append("%s(%d)" % (nm, n))
        if p: self("s_waitcnt " + " ".join(p))
    def drain(self, vm=True, lg=True):
        p = []
        if vm: p.append("vmcnt(0)"); self.vm.clear()
        if lg: p.append("lgkmcnt(0)"); self.lg.clear()
        self("s_waitcnt " + " ".join(p))
    def newlabel(self, p): self.uid += 1; return "%s_%d" % (p, self.uid)
    def text(self): return "\n".join(self.lines) + "\n"

def vr(a, n): return "v[%d:%d]" % (a, a + n - 1)

def srd(a, d, base, size, add=None):
    if add is None:
        a("s_mov_b32 s%d, s%d" % (d, base))
        a("s_and_b32 s%d, s%d, 0xffff" % (d + 1, base + 1))
    else:
        a("s_add_u32 s%d, s%d, %s" % (d, base, add))
        a("s_addc_u32 s%d, s%d, 0" % (d + 1, base + 1))
        a("s_and_b32 s%d, s%d, 0xffff" % (d + 1, d + 1))
    a("s_mov_b32 s%d, %s" % (d + 2, size))
    a("s_mov_b32 s%d, 0x20000" % (d + 3))

WS = 32
DBG = 44

def ws_base(a):
    if WSBASE:
        a("s_add_u32 s30, s30, %s" % hex(WSBASE))
        a("s_addc_u32 s31, s31, 0")

def stamp(a, i):
    if STAMP == 3 and i not in (0, 13): return
    if STAMP:
        a("%s s[%d:%d]" % ("s_memtime" if STAMP == 2 else "s_memrealtime", 70 + 2 * i, 71 + 2 * i))
        a.drain(vm=False)
DIAG = os.environ.get("DIAG", "")
def stamp_flush(a, n, tmp, role=""):
    if not STAMP: return
    a.drain()
    stamp(a, n)
    if DIAG:
        a("s_mov_b64 exec, 1")
        a("v_mov_b32 v%d, 0" % tmp)
        a("s_not_b32 s98, s70")
        a("v_mov_b32 v%d, s98" % (tmp + 1))
        a("buffer_atomic_umax v%d, v%d, s[44:47], 0 offen offset:128 sc1" % (tmp + 1, tmp))
        if DIAG[0] == role:
            a("v_mov_b32 v%d, s%d" % (tmp + 2, 70 + 2 * int(DIAG[1:])))
            a("buffer_atomic_umax v%d, v%d, s[44:47], 0 offen offset:132 sc1" % (tmp + 2, tmp))
        return
    a("s_mov_b64 exec, 1")
    a("s_lshl_b32 s98, s2, 8")
    a("s_lshl_b32 s99, s14, 6")
    a("s_add_u32 s98, s98, s99")
    a("s_add_u32 s98, s98, %s" % hex(STAMP_OFF))
    a("v_mov_b32 v%d, 0" % tmp)
    if STAMP == 3:
        if n == 13:
            a("v_mov_b32 v%d, s70" % (tmp + 1))
            a("v_mov_b32 v%d, s96" % (tmp + 2))
            a("buffer_store_dword v%d, v%d, s[32:35], s98 offen" % (tmp + 1, tmp))
            a("buffer_store_dword v%d, v%d, s[32:35], s98 offen offset:52" % (tmp + 2, tmp))
        return
    for i in range(n + 1):
        a("v_mov_b32 v%d, s%d" % (tmp + 1, 70 + 2 * i))
        a("buffer_store_dword v%d, v%d, s[32:35], s98 offen offset:%d" % (tmp + 1, tmp, 4 * i))
        a("s_waitcnt vmcnt(0)")

def poll(a, srdn, soff, vz, vt, sleep=1, target=1, keep=False):
    if ONLY2 or ONLYG: return
    sv = list(a.vm.ops)
    l = a.newlabel("POLL"); d = a.newlabel("POLLD")
    a("s_mov_b32 s60, 0")
    a("s_mov_b64 exec, 1")
    a.label(l)
    a("buffer_load_dword v%d, v%d, s[%d:%d], %s offen sc1" % (vt, vz, srdn, srdn + 3, soff))
    a("s_add_u32 s60, s60, 1")
    a.drain(lg=False)
    a("v_readfirstlane_b32 s61, v%d" % vt)
    a("s_cmp_ge_u32 s61, %d" % target)
    a("s_cbranch_scc1 %s" % d)
    if sleep: a("s_sleep %d" % sleep)
    a("s_cmp_lt_u32 s60, %s" % hex(SPIN_MAX))
    a("s_cbranch_scc1 %s" % l)
    a.label(d)
    a("s_mov_b64 exec, -1")
    if keep: a.vm.ops = sv

def arrive_issue(a, soff):
    a("s_mov_b32 s62, 1")
    a("s_atomic_add s62, s[30:31], %s glc" % soff)
def arrive_finish(a, last, srels, skip):
    a.drain(vm=False)
    a("s_cmp_lg_u32 s62, %d" % last)
    a("s_cbranch_scc1 %s" % skip)
    a("s_mov_b32 s62, 1")
    for r in srels: a("s_atomic_add s62, s[30:31], %s" % r)

def flag_issue(a, srdn, soff, vz, vt, tag):
    if ONLY2 or ONLYG: return
    a.vmem("buffer_load_dword v%d, v%d, s[%d:%d], %s offen sc1" % (vt, vz, srdn, srdn + 3, soff), tag)
def flag_check(a, srdn, soff, vz, vt, tag, sleep):
    if ONLY2 or ONLYG: return
    ok = a.newlabel("FLAG")
    a.wait(vm=tag)
    a("v_readfirstlane_b32 s61, v%d" % vt)
    a("s_cmp_lg_u32 s61, 0")
    a("s_cbranch_scc1 %s" % ok)
    poll(a, srdn, soff, vz, vt, sleep=sleep, keep=True)
    a.label(ok)

def arrive(a, soff):
    a("s_mov_b32 s62, 1")
    a("s_atomic_add s62, s[30:31], %s" % soff)

def round_bf16(a, d, s):
    a("v_cvt_pk_bf16_f32 v%d, v%d, v%d" % (d, s, s))
    a("v_lshlrev_b32 v%d, 16, v%d" % (d, d))

def half_reduce(a, regs, tmps):
    steps = ["quad_perm:[1,0,3,2] row_mask:0xf bank_mask:0xf", "quad_perm:[2,3,0,1] row_mask:0xf bank_mask:0xf",
             "row_half_mirror row_mask:0xf bank_mask:0xf", "row_mirror row_mask:0xf bank_mask:0xf"]
    for st in steps:
        a("s_nop %d" % (1 if len(regs) == 1 else 0))
        for r in regs: a("v_add_f32_dpp v%d, v%d, v%d %s" % (r, r, r, st))
    for r, t in zip(regs, tmps): a("v_mov_b32 v%d, v%d" % (t, r))
    a("s_nop 1")
    for r, t in zip(regs, tmps): a("v_permlane16_swap_b32 v%d, v%d" % (r, t))
    a("s_nop 0")
    for r, t in zip(regs, tmps): a("v_add_f32 v%d, v%d, v%d" % (r, r, t))

MF = "v_mfma_f32_32x32x16_bf16"

def role_a(a):
    LN, VA, VB, VC, VD, VZ, VT, VH = 250, 251, 252, 253, 254, 248, 249, 255
    a.label("ROLE_A")
    if ONLY2 or ONLYG: a("s_endpgm")
    JB = 16384
    a("""
    s_lshr_b32 s38, s56, 1
    s_lshl_b32 s38, s38, 2
    s_and_b32 s39, s57, 3
    s_add_u32 s38, s38, s39
    s_and_b32 s39, s56, 1
    s_lshl_b32 s39, s39, 3
    s_lshr_b32 s57, s57, 2
    s_add_u32 s39, s39, s57
    s_lshl_b32 s15, s38, 4
    s_add_u32 s15, s15, s39
    v_and_b32 v{VC}, 31, v0
    v_lshrrev_b32 v2, 5, v0
    s_mul_i32 s20, s15, 7168
    v_min_u32 v4, 27, v{VC}
    v_mul_u32_u24 v3, 896, v2
    v_lshl_add_u32 v3, v4, 5, v3
    v_add_u32 v4, s20, v3
    s_waitcnt lgkmcnt(0)
    global_load_dwordx4 v[8:11], v4, s[4:5] nt
    global_load_dwordx4 v[12:15], v4, s[4:5] offset:16 nt
    s_mov_b32 s58, 0x0fffffff
    s_mov_b32 s59, 0x0fffffff
    s_setprio {PRIO}
    s_mul_i32 s25, s39, {WPH}
    s_add_u32 s25, s25, {WPO}
    v_and_b32 v{LN}, 63, v0
    v_bfe_u32 v{VH}, v0, 5, 1
    v_mov_b32 v{VZ}, 0
    v_lshlrev_b32 v{VA}, 4, v{LN}
    v_mul_u32_u24 v{VB}, 448, v{VH}
    v_lshl_add_u32 v{VB}, v{VC}, 4, v{VB}
    """.format(VC=VC, SYA=hex(SYNC_OFF + WSBASE), PRIO=PRIO_A, WPH=WP_H, WPO=hex(WP_OFF), LN=LN, VH=VH, VZ=VZ, VA=VA, VB=VB))
    a.vm.issue("x"); a.vm.issue("x")
    ws_base(a)
    srd(a, WS, 30, hex(WS_USED))
    srd(a, DBG, 28, "256")
    P, X, T = 8, 16, 32
    def unpack(dst, src):
        for i in range(8):
            a("v_lshlrev_b32 v%d, 16, v%d" % (dst + 2 * i, src + i))
            a("v_and_b32 v%d, 0xffff0000, v%d" % (dst + 2 * i + 1, src + i))
    def pack(dst, src):
        for i in range(8): a("v_cvt_pk_bf16_f32 v%d, v%d, v%d" % (dst + i, src + 2 * i, src + 2 * i + 1))
    def pksum(dst, src):
        a("v_pk_add_f32 %s, %s, %s" % (vr(dst, 2), vr(src, 2), vr(src + 2, 2)))
        a("v_pk_add_f32 %s, %s, %s" % (vr(dst + 2, 2), vr(src + 4, 2), vr(src + 6, 2)))
        for i in (8, 12):
            a("v_pk_add_f32 %s, %s, %s" % (vr(dst, 2), vr(dst, 2), vr(src + i, 2)))
            a("v_pk_add_f32 %s, %s, %s" % (vr(dst + 2, 2), vr(dst + 2, 2), vr(src + i + 2, 2)))
        a("v_pk_add_f32 %s, %s, %s" % (vr(dst, 2), vr(dst, 2), vr(dst + 2, 2)))
        a("v_add_f32 v%d, v%d, v%d" % (dst, dst, dst + 1))
    def pksq(dst, src):
        a("v_pk_mul_f32 %s, %s, %s" % (vr(dst, 2), vr(src, 2), vr(src, 2)))
        a("v_pk_mul_f32 %s, %s, %s" % (vr(dst + 2, 2), vr(src + 2, 2), vr(src + 2, 2)))
        for i in (4, 8, 12):
            a("v_pk_fma_f32 %s, %s, %s, %s" % (vr(dst, 2), vr(src + i, 2), vr(src + i, 2), vr(dst, 2)))
            a("v_pk_fma_f32 %s, %s, %s, %s" % (vr(dst + 2, 2), vr(src + i + 2, 2), vr(src + i + 2, 2), vr(dst + 2, 2)))
        a("v_pk_add_f32 %s, %s, %s" % (vr(dst, 2), vr(dst, 2), vr(dst + 2, 2)))
        a("v_add_f32 v%d, v%d, v%d" % (dst, dst, dst + 1))
    def pksub(dst, src, m):
        for i in range(0, 16, 2):
            a("v_pk_add_f32 %s, %s, %s op_sel_hi:[1,0] neg_lo:[0,1] neg_hi:[0,1]" % (vr(dst + i, 2), vr(src + i, 2), vr(m, 2)))
    def pkmul(dst, src, m):
        for i in range(0, 16, 2): a("v_pk_mul_f32 %s, %s, %s op_sel_hi:[1,0]" % (vr(dst + i, 2), vr(src + i, 2), vr(m, 2)))
    def scale_from_var(r):
        round_bf16(a, r, r)
        a("v_add_f32 v%d, %s, v%d" % (r, f32(1e-5), r))
        round_bf16(a, r, r)
        a("v_sqrt_f32 v%d, v%d" % (r, r))
        a("s_nop 0")
        round_bf16(a, r, r)
        a("v_rcp_f32 v%d, v%d" % (r, r))
    inv = f32(1.0 / 448.0)
    S, S2, M, RS_, C2, D2 = 72, 76, 80, 82, 84, 86
    HB, HP = 7168, 912
    a("""
    v_lshl_add_u32 v5, v2, 4, v3
    v_bfe_u32 v88, v{LN}, 2, 2
    v_mul_u32_u24 v88, {HP}, v88
    v_lshrrev_b32 v89, 4, v{LN}
    v_lshl_add_u32 v88, v89, 5, v88
    v_and_b32 v89, 3, v{LN}
    v_lshl_add_u32 v88, v89, 3, v88
    s_lshl_b32 s20, s14, 7
    v_add_u32 v88, s20, v88
    v_lshlrev_b32 v92, 10, v{VH}
    v_lshl_add_u32 v92, v{VC}, 4, v92
    v_and_b32 v89, 7, v{LN}
    v_lshrrev_b32 v90, 3, v{LN}
    s_lshl_b32 s20, s14, 3
    v_add_u32 v90, s20, v90
    v_mul_u32_u24 v91, 896, v89
    v_lshl_add_u32 v91, v90, 4, v91
    v_lshlrev_b32 v89, 4, v89
    v_lshl_add_u32 v89, v90, 9, v89
    s_lshr_b32 s20, s15, 2
    s_mul_i32 s20, s20, 28672
    s_and_b32 s21, s15, 3
    s_lshl_b32 s21, s21, 7
    s_add_u32 s20, s20, s21
    s_lshl_b32 s21, s14, 18
    s_lshr_b32 s22, s15, 1
    s_lshl_b32 s22, s22, 11
    s_add_u32 s21, s21, s22
    s_and_b32 s22, s15, 1
    s_lshl_b32 s22, s22, 9
    s_add_u32 s21, s21, s22
    s_add_u32 s21, s21, {HTO}
    s_cmp_eq_u32 s14, 3
    s_cselect_b32 s23, 0x08000000, 0
    s_add_u32 s22, s21, {HG4}
    s_or_b32 s22, s22, s23
    s_add_u32 s24, s20, 16384
    s_or_b32 s24, s24, s23
    s_lshl_b32 s40, s39, 8
    s_add_u32 s40, s40, {SY}
    s_lshl_b32 s41, s38, 8
    s_add_u32 s41, s41, {SY}
    """.format(LN=LN, VH=VH, VC=VC, HP=HP, HG4=4 * HT_G, HTO=hex(HT_OFF), SY=hex(SYNC_OFF)))
    assert XN_OFF == 0 and HT_G == 1 << 18
    stamp(a, 1)
    a.wait(vm="x")
    stamp(a, 2)
    unpack(X, P)
    pksum(S, X)
    a("v_cndmask_b32 v%d, 0, v%d, s[58:59]" % (S, S))
    half_reduce(a, [S], [S + 1])
    a("v_mul_f32 v%d, %s, v%d" % (S, inv, S))
    round_bf16(a, M, S)
    pksub(X, X, M)
    pksq(S2, X)
    a("v_sub_f32 v%d, v%d, v%d" % (S, S, M))
    a("v_cndmask_b32 v%d, 0, v%d, s[58:59]" % (S2, S2))
    half_reduce(a, [S2], [S2 + 1])
    a("v_mul_f32 v%d, %s, v%d" % (S2, inv, S2))
    a("v_fma_f32 v%d, -v%d, v%d, v%d" % (S2, S, S, S2))
    a("v_max_f32 v%d, 0, v%d" % (S2, S2))
    a("v_mov_b32 v%d, v%d" % (RS_, S2))
    scale_from_var(RS_)
    a("s_nop 0")
    a("v_mul_f32 v%d, v%d, v%d" % (C2, S2, RS_))
    a("v_mul_f32 v%d, v%d, v%d" % (D2, S, RS_))
    a("v_mul_f32 v%d, v%d, v%d" % (C2, C2, RS_))
    round_bf16(a, D2, D2)
    pkmul(T, X, RS_)
    scale_from_var(C2)
    pack(P, T)
    a.ds("ds_write_b128 v3, v[8:11]")
    a.ds("ds_write_b128 v3, v[12:15] offset:16")
    a("v_mul_f32 v%d, v%d, v%d" % (D2, D2, C2))
    for i in range(0, 16, 2):
        a("v_pk_fma_f32 %s, %s, %s, %s op_sel_hi:[1,0,0] neg_lo:[0,0,1] neg_hi:[0,0,1]" % (vr(T + i, 2), vr(T + i, 2), vr(C2, 2), vr(D2, 2)))
    pack(X, T)
    a.ds("ds_write_b128 v5, v[16:19] offset:%d" % HB)
    a.ds("ds_write_b128 v5, v[20:23] offset:%d" % (HB + 16))
    stamp(a, 3)
    a.drain(vm=False)
    a("s_barrier")
    a.ds("ds_read_b64_tr_b16 v[28:29], v88 offset:%d" % HB, "h0")
    a.ds("ds_read_b64_tr_b16 v[30:31], v88 offset:%d" % (HB + 4 * HP), "h0")
    a.ds("ds_read_b128 v[36:39], v91", "x0")
    a.ds("ds_read_b64_tr_b16 v[32:33], v88 offset:%d" % (HB + 512), "h1")
    a.ds("ds_read_b64_tr_b16 v[34:35], v88 offset:%d" % (HB + 512 + 4 * HP), "h1")
    a.ds("ds_read_b128 v[40:43], v91 offset:512", "x1")
    a.wait(lg="h0"); a.vmem("buffer_store_dwordx4 v[28:31], v92, s[32:35], s21 offen sc1")
    FAKEX = E("FAKEX", 0)
    if not FAKEX: a.wait(lg="x0"); a.vmem("buffer_store_dwordx4 v[36:39], v89, s[32:35], s20 offen sc1")
    a.wait(lg="h1"); a.vmem("buffer_store_dwordx4 v[32:35], v92, s[32:35], s22 offen sc1")
    if not FAKEX: a.wait(lg="x1"); a.vmem("buffer_store_dwordx4 v[40:43], v89, s[32:35], s24 offen sc1")
    a.vmem("buffer_load_dword v%d, v%d, s[44:47], 0 offen sc1" % (VT, VZ), "ready")
    a("""
    s_lshl_b32 s36, s38, 2
    s_add_u32 s36, s36, s14
    s_mul_i32 s24, s36, 28672
    s_lshl_b32 s26, s14, 10
    s_add_u32 s25, s25, s26
    v_add_u32 v{VD}, 0x8000, v{VB}
    """.format(VB=VB, VD=VD))
    a.drain()
    stamp(a, 4)
    a("s_barrier")
    AQ, AK, AV = 0, 16, 32
    XF, WF, PH = 64, 176, 208
    a("s_cmp_lg_u32 s14, 0")
    a("s_cbranch_scc1 A_GO")
    a("v_readfirstlane_b32 s61, v%d" % VT)
    a("s_cmp_lg_u32 s61, 0")
    a("s_cbranch_scc1 A_RDY")
    poll(a, DBG, "0", VZ, VT)
    a.label("A_RDY")
    arrive_issue(a, "s41 offset:%d" % (SX_CNT * SL))
    a.drain(vm=False)
    a("s_cmp_lg_u32 s62, 15")
    a("s_cbranch_scc1 A_WAIT")
    a("s_mov_b32 s62, 1")
    a("s_atomic_add s62, s[30:31], s41 offset:%d" % (SX_REL * SL))
    a("s_mov_b32 s20, %s" % hex(SYNC_OFF + SA_ROOT * SL))
    a("s_mov_b32 s63, 1")
    a("s_atomic_add s63, s[30:31], s20 glc")
    a.drain(vm=False)
    a("s_cmp_lg_u32 s63, 15")
    a("s_cbranch_scc1 A_GO")
    a("s_atomic_add s62, s[28:29], 0x80")
    a("s_branch A_GO")
    a.label("A_WAIT")
    a("s_add_u32 s20, s41, %d" % (SX_REL * SL))
    poll(a, WS, "s20", VZ, VT, sleep=PSL)
    a.label("A_GO")
    a("s_barrier")
    stamp(a, 5)
    if E("FAKEA", 0) == 1: a("s_endpgm")
    def wdma(r, tag):
        a("s_add_u32 m0, s26, %d" % (r * 4096))
        a("s_add_u32 s28, s25, %d" % (r * 4096))
        a.vmem("buffer_load_dwordx4 v%d, s[32:35], s28 offen sc1 lds" % VA, tag)
    def xload(k):
        if FAKEX and k == 0:
            a("s_lshl_b32 s24, s36, 12")
            a("s_add_u32 s24, s24, %s" % hex(HT_OFF))
        if k % 4 == 0 and k > 0: a("s_add_u32 s24, s24, %d" % (HT_G if FAKEX else 4096))
        a.vmem("buffer_load_dwordx4 %s, v%d, s[32:35], s24 offen offset:%d sc1" % (vr(XF + 4 * k, 4), VA, (k % 4) * 1024), "x%d" % k)
    cuts = [0, 6, 13, 20, 28]; rnds = [0, 3, 6, 9, 13]
    XF1 = E("XFIRST", 16)
    a("s_lshl_b32 s20, s56, 8")
    a("s_add_u32 s20, s20, %s" % hex(SYNC_OFF + SW_REL * SL))
    for k in range(XF1):
        if k == max(XF1 - 6, 0): flag_issue(a, WS, "s20", VZ, VT, "fw")
        xload(k)
    if XF1 == 0: flag_issue(a, WS, "s20", VZ, VT, "fw")
    flag_check(a, WS, "s20", VZ, VT, "fw", PSL)
    stamp(a, 6)
    seq = []
    for c in range(4):
        seq += [(lambda r=r, c=c: wdma(r, "wc%d" % c)) for r in range(rnds[c], rnds[c + 1])]
        seq += [(lambda k=k: xload(k)) for k in range(max(cuts[c], XF1), cuts[c + 1])]
    if TWO:
        a("s_sub_u32 s27, s25, s26")
        a("s_add_u32 s27, s27, %d" % WP_PHI)
        a("s_add_u32 s20, s20, %d" % ((SV_REL - SW_REL) * SL))
        seq += [(lambda i=i: a.vmem("buffer_load_dwordx4 %s, v%d, s[32:35], s27 offen offset:%d sc1" % (vr(PH + 4 * i, 4), VA, i * 1024), "ph")) for i in range(2)]
        seq += [lambda: flag_issue(a, WS, "s20", VZ, VT, "fv")]
    else: seq += [(lambda r=r: wdma(r, "wq")) for r in (18, 13, 14, 15, 16, 17)]
    for f in seq[:XPRE]: f()
    pend = seq[XPRE:]
    def lread(dst, off, tag, base=None):
        if off < 65536: a.ds("ds_read_b128 %s, v%d offset:%d" % (vr(dst, 4), VB, off), tag)
        else: a.ds("ds_read_b128 %s, v%d offset:%d" % (vr(dst, 4), VD, off - 32768), tag)
    def wread(k):
        b = WF + 8 * (k % 3)
        lread(b, k * 1792, "w%d" % k); lread(b + 4, k * 1792 + 896, "w%d" % k)
    for c in range(4):
        k0, k1 = cuts[c], cuts[c + 1]
        assert k1 * 1792 + 64 <= rnds[c + 1] * 4096
        assert sum(1 for t_ in a.issued if t_ == "wc%d" % c) == rnds[c + 1] - rnds[c]
        a.wait(vm="wc%d" % c)
        a("s_barrier")
        wread(k0); wread(k0 + 1)
        for k in range(k0, k1):
            if k + 2 < k1: wread(k + 2)
            assert "x%d" % k in a.issued
            a.wait(vm="x%d" % k, lg="w%d" % k)
            b = WF + 8 * (k % 3); x = vr(XF + 4 * k, 4)
            a("%s %s, %s, %s, %s" % (MF, vr(AK, 16), vr(b, 4), x, "0" if k == 0 else vr(AK, 16)))
            if pend and len(a.vm.ops) < ALOOK: pend.pop(0)()
            a("%s %s, %s, %s, %s" % (MF, vr(AV, 16), x, vr(b + 4, 4), "0" if k == 0 else vr(AV, 16)))
            while pend and len(a.vm.ops) < min(ALOOK, 12): pend.pop(0)()
            if pend and len(a.vm.ops) < ALOOK: pend.pop(0)()
    for f in pend: f()
    pend = []
    assert not pend
    if TWO:
        flag_check(a, WS, "s20", VZ, VT, "fv", PSL)
        for r in range(12, 19): wdma(r, "wq")
        a("s_barrier")
    else:
        a.drain(lg=False)
        a("s_barrier")
        a("v_add_u32 v2, 0x8000, v%d" % VA)
        a.ds("ds_read_b128 %s, v2 offset:%d" % (vr(PH, 4), WP_PHI - 32768), "ph")
        a.ds("ds_read_b128 %s, v2 offset:%d" % (vr(PH + 4, 4), WP_PHI + 1024 - 32768), "ph")
    stamp(a, 7)
    PKK, PKV = 48, 56
    PP = 216; EP, EM = 16, 32; OUT = 176; S0 = 192; TA = S0 + 12
    a("""
    s_mov_b32 s56, 0
    s_mov_b32 s57, -1
    s_mov_b32 s37, {L2E}
    v_mul_u32_u24 v{t}, 136, v{VC}
    v_lshl_add_u32 v{t}, v{VH}, 3, v{t}
    s_mul_i32 s28, s14, 4352
    v_add_u32 v{t}, s28, v{t}
    s_lshl_b32 s28, s14, 11
    v_add_u32 v{u}, s28, v{VA}
    v_cmp_eq_u32 vcc, 28, v{VC}
    v_mov_b32 v{S0}, 0x3f803f80
    """.format(L2E=f32(1.4426950408889634), t=TA, u=TA + 1, VC=VC, VH=VH, VA=VA, S0=S0))
    for r in range(8): a("v_cvt_pk_bf16_f32 v%d, v%d, v%d" % (PKK + r, AK + 2 * r, AK + 2 * r + 1))
    a("v_cndmask_b32 v%d, 0, v%d, vcc" % (S0, S0))
    a.wait(lg="ph")
    a("%s %s, %s, %s, 0" % (MF, vr(PP, 16), vr(PH, 4), vr(PKK, 4)))
    a("%s %s, %s, %s, %s" % (MF, vr(PP, 16), vr(PH + 4, 4), vr(PKK + 4, 4), vr(PP, 16)))
    for r in range(8): a("v_cvt_pk_bf16_f32 v%d, v%d, v%d" % (PKV + r, AV + 2 * r, AV + 2 * r + 1))
    for r in range(8): a("v_cndmask_b32 v%d, v%d, v%d, s[58:59]" % (PKV + r, S0, PKV + r))
    a.ds("ds_write_b128 v%d, %s offset:17408" % (TA + 1, vr(PKV, 4)))
    a.ds("ds_write_b128 v%d, %s offset:%d" % (TA + 1, vr(PKV + 4, 4), 17408 + 1024))

    def softmax2(P, sink=None):
        mx, mn, t0, t1, t2, t3 = S0, S0 + 1, S0 + 2, S0 + 3, S0 + 4, S0 + 5
        for op, m, t in (("max", mx, t0), ("min", mn, t1)):
            a("v_%s3_f32 v%d, v%d, v%d, v%d" % (op, t, P + 12, P + 13, P + 14))
            a("v_%s3_f32 v%d, v%d, v%d, v%d" % (op, m, P, P + 1, P + 2))
            a("v_%s_f32 v%d, v%d, v%d" % (op, t, t, P + 15))
            for i in range(3, 11, 2): a("v_%s3_f32 v%d, v%d, v%d, v%d" % (op, m, m, P + i, P + i + 1))
            a("v_cndmask_b32 v%d, v%d, v%d, s[56:57]" % (t, t, P))
            a("v_%s3_f32 v%d, v%d, v%d, v%d" % (op, m, m, P + 11, t))
        a("v_mov_b32 v%d, v%d" % (t0, mx))
        a("v_mov_b32 v%d, v%d" % (t1, mn))
        a("v_mov_b32 v%d, 0x7f800000" % t2)
        a("v_mov_b32 v%d, 0xff800000" % t3)
        a("v_permlane32_swap_b32 v%d, v%d" % (mx, t0))
        a("v_permlane32_swap_b32 v%d, v%d" % (mn, t1))
        a("s_nop 0")
        a("v_max_f32 v%d, v%d, v%d" % (mx, mx, t0))
        a("v_min_f32 v%d, v%d, v%d" % (mn, mn, t1))
        a("v_mul_f32 v%d, s37, v%d" % (mx, mx))
        a("v_mul_f32 v%d, s37, v%d" % (mn, mn))
        a("v_cndmask_b32 v%d, v%d, v%d, s[56:57]" % (t2, mx, t2))
        a("v_cndmask_b32 v%d, v%d, v%d, s[56:57]" % (t3, mn, t3))
        for r in range(16):
            a("v_fma_f32 v%d, v%d, s37, -v%d" % (EP + r, P + r, mx if r < 12 else t2))
            a("v_fma_f32 v%d, -v%d, s37, v%d" % (EM + r, P + r, mn if r < 12 else t3))
        for r in range(16):
            a("v_exp_f32 v%d, v%d" % (EP + r, EP + r))
            a("v_exp_f32 v%d, v%d" % (EM + r, EM + r))
            if r == 2:
                a("v_add_f32 v%d, v%d, v%d" % (mx, EP, EP + 1))
                a("v_add_f32 v%d, v%d, v%d" % (mn, EM, EM + 1))
            if r > 2:
                a("v_add_f32 v%d, v%d, v%d" % (mx, mx, EP + r - 1))
                a("v_add_f32 v%d, v%d, v%d" % (mn, mn, EM + r - 1))
        a("v_add_f32 v%d, v%d, v%d" % (mx, mx, EP + 15))
        a("v_add_f32 v%d, v%d, v%d" % (mn, mn, EM + 15))
        a("v_mov_b32 v%d, v%d" % (t0, mx))
        a("v_mov_b32 v%d, v%d" % (t1, mn))
        a("s_nop 1")
        a("v_permlane32_swap_b32 v%d, v%d" % (mx, t0))
        a("v_permlane32_swap_b32 v%d, v%d" % (mn, t1))
        a("s_nop 0")
        a("v_add_f32 v%d, v%d, v%d" % (mx, mx, t0))
        a("v_add_f32 v%d, v%d, v%d" % (mn, mn, t1))
        a("v_rcp_f32 v%d, v%d" % (mx, mx))
        a("v_rcp_f32 v%d, v%d" % (mn, mn))
        for e, (E_, m) in enumerate(((EP, mx), (EM, mn))):
            for q in range(4):
                for r in range(4): a("v_mul_f32 v%d, v%d, v%d" % (E_ + 4 * q + r, E_ + 4 * q + r, m))
                for r in range(2): a("v_cvt_pk_bf16_f32 v%d, v%d, v%d" % (OUT + 8 * e + 2 * q + r, E_ + 4 * q + 2 * r, E_ + 4 * q + 2 * r + 1))
                if sink: sink(e, q)

    softmax2(PP, lambda e, q: a.ds("ds_write_b64 v%d, %s offset:%d" % (TA, vr(OUT + 8 * e + 2 * q, 2), e * 64 + q * 16)))
    a("""
    v_lshlrev_b32 v{t}, 2, v{VH}
    v_bfe_u32 v{u}, v{LN}, 2, 2
    v_add_u32 v{t}, v{t}, v{u}
    v_mul_u32_u24 v{t}, 136, v{t}
    v_bfe_u32 v{u}, v{LN}, 4, 1
    v_lshl_add_u32 v{t}, v{u}, 5, v{t}
    v_and_b32 v{u}, 3, v{LN}
    v_lshl_add_u32 v{t}, v{u}, 3, v{t}
    s_lshl_b32 s28, s14, 6
    v_add_u32 v{t}, s28, v{t}
    s_lshl_b32 s42, s39, 16
    s_add_u32 s42, s42, {KVP}
    s_lshl_b32 s28, s38, 10
    s_lshl_b32 s29, s14, 15
    s_add_u32 s28, s28, s29
    s_add_u32 s28, s28, s42
    s_add_u32 s29, s28, 16384
    """.format(t=TA + 2, u=TA + 3, LN=LN, VH=VH, KVP=hex(KVP_OFF)))
    a.drain()
    a("s_barrier")
    stamp(a, 8)
    a("s_cmp_ge_u32 s14, 2")
    a("s_cbranch_scc1 A_QPASS")
    KVA = 232
    for w in range(4):
        for i in range(2):
            n_ = 2 * w + i
            a.ds("ds_read_b64_tr_b16 %s, v%d offset:%d" % (vr(4 * n_, 2), TA + 2, w * 4352 + (16 * i) * 136), "kv%d" % n_)
            a.ds("ds_read_b64_tr_b16 %s, v%d offset:%d" % (vr(4 * n_ + 2, 2), TA + 2, w * 4352 + (16 * i + 8) * 136), "kv%d" % n_)
            a.ds("ds_read_b128 %s, v%d offset:%d" % (vr(32 + 4 * n_, 4), VA, 17408 + w * 2048 + i * 1024), "kv%d" % n_)
    for n_ in range(8):
        a.wait(lg="kv%d" % n_)
        a("%s %s, %s, %s, %s" % (MF, vr(KVA, 16), vr(4 * n_, 4), vr(32 + 4 * n_, 4), "0" if n_ == 0 else vr(KVA, 16)))
    a("s_nop 11")
    for i in range(2):
        for r in range(4): a("v_cvt_pk_bf16_f32 v%d, v%d, v%d" % (PKV + 4 * i + r, KVA + 8 * i + 2 * r, KVA + 8 * i + 2 * r + 1))
        a("buffer_store_dwordx4 %s, v%d, s[32:35], %s offen sc1" % (vr(PKV + 4 * i, 4), VA, "s29" if i else "s28"))
    a.label("A_QPASS")
    if E("FAKEA", 0) == 2: a("s_endpgm")
    a("s_setprio %d" % PRIO_Q)
    a("s_mov_b32 s62, 0")
    QB = 16
    def qread(k): lread(QB + 4 * (k % 8), WP_Q + k * 896, "q%d" % k)
    for k in range(4): qread(k)
    for k in range(28):
        if k + 4 < 28: qread(k + 4)
        a.wait(lg="q%d" % k)
        a("%s %s, %s, %s, %s" % (MF, vr(AQ, 16), vr(QB + 4 * (k % 8), 4), vr(XF + 4 * k, 4), "0" if k == 0 else vr(AQ, 16)))
        if k == E("S1K", 13):
            a("s_cmp_ge_u32 s14, 2")
            a("s_cbranch_scc1 A_NOARR")
            a.drain(lg=False)
            arrive_issue(a, "s40 offset:%d" % (S1_CNT * SL))
            a.label("A_NOARR")
    arrive_finish(a, 31, ["s40 offset:%d" % (S1_REL * SL)], "A_S1_NR")
    a.label("A_S1_NR")
    a("s_nop 9")
    for r in range(8): a("v_cvt_pk_bf16_f32 v%d, v%d, v%d" % (PKK + r, AQ + 2 * r, AQ + 2 * r + 1))
    a("s_nop 1")
    a("%s %s, %s, %s, 0" % (MF, vr(PP, 16), vr(PH, 4), vr(PKK, 4)))
    a("%s %s, %s, %s, %s" % (MF, vr(PP, 16), vr(PH + 4, 4), vr(PKK + 4, 4), vr(PP, 16)))
    a("s_nop 11")
    softmax2(PP)
    stamp(a, 9)
    SEL, KS, KVB, OD = 48, 0, 16, 32
    a("""
    s_setprio {PRIO}
    v_and_b32 v52, 3, v{VC}
    v_bfe_u32 v53, v{VC}, 3, 1
    v_lshl_add_u32 v52, v53, 2, v52
    v_and_b32 v53, 1, v52
    v_lshlrev_b32 v53, 4, v53
    v_mov_b32 v54, 0x3f80
    v_lshlrev_b32 v53, v53, v54
    v_lshrrev_b32 v52, 1, v52
    v_bfe_u32 v54, v{VC}, 2, 1
    v_xor_b32 v54, v54, v{VH}
    v_lshrrev_b32 v55, 4, v{VC}
    v_or_b32 v54, v54, v55
    v_lshl_add_u32 v52, v54, 2, v52
    s_lshl_b32 s28, s14, 14
    s_add_u32 s28, s28, s42
    s_add_u32 s41, s40, {REL}
    s_lshl_b32 s29, s14, 10
    v_add_u32 v55, s29, v{VA}
    """.format(PRIO=PRIO_K, VC=VC, VH=VH, VA=VA, REL=S1_REL * SL))
    for d in range(4):
        a("v_cmp_eq_u32 vcc, %d, v52" % d)
        a("s_nop 1")
        a("v_cndmask_b32 v%d, 0, v53, vcc" % (SEL + d))
    a("s_cmp_lg_u32 s14, 3")
    a("s_cbranch_scc1 A_S1_OK")
    poll(a, WS, "s41", VZ, VT, sleep=PSL)
    a.label("A_S1_OK")
    a("s_barrier")
    stamp(a, 10)
    for m in range(16):
        if E("FAKEG", 0) and m >= 4: continue
        if m % 4 == 0 and m: a("s_add_u32 s28, s28, 4096")
        a.vmem("buffer_load_dwordx4 %s, v%d, s[32:35], s28 offen offset:%d sc1" % (vr(64 + 4 * m, 4), VA, (m % 4) * 1024), "p%d" % m)
    a("""
    s_lshl_b32 s28, s36, 15
    s_lshl_b32 s29, s39, 11
    s_add_u32 s28, s28, s29
    s_add_u32 s28, s28, {OFO}
    s_lshr_b32 s40, s36, 1
    s_lshl_b32 s40, s40, 8
    s_add_u32 s40, s40, {SY}
    """.format(OFO=hex(OF_OFF), SY=hex(SYNC_OFF)))
    for m in range(16):
        a.wait(vm="p%d" % m)
        a("%s %s, %s, %s, %s" % (MF, vr(KS, 16), vr(SEL, 4), vr(64 + 4 * m, 4), "0" if m == 0 else vr(KS, 16)))
    a("s_nop 11")
    for r in range(4): a("v_cvt_pk_bf16_f32 v%d, v%d, v%d" % (KVB + r, KS + 2 * r, KS + 2 * r + 1))
    a.ds("ds_write_b128 v55, %s" % vr(KVB, 4))
    a.drain(vm=False)
    a("s_barrier")
    for n_ in range(4): a.ds("ds_read_b128 %s, v%d offset:%d" % (vr(KVB + 4 * n_, 4), VA, n_ * 1024), "kvl%d" % n_)
    for n_ in range(4):
        a.wait(lg="kvl%d" % n_)
        a("%s %s, %s, %s, %s" % (MF, vr(OD, 16), vr(KVB + 4 * n_, 4), vr(OUT + 4 * n_, 4), "0" if n_ == 0 else vr(OD, 16)))
    a("""
    s_nop 11
    v_mov_b32 v0, v{D12}
    v_mov_b32 v2, v{D12}
    s_nop 1
    v_permlane32_swap_b32 v0, v2
    s_nop 0
    v_add_f32 v2, {EPS}, v2
    v_rcp_f32 v2, v2
    s_nop 0
    """.format(D12=OD + 12, EPS=f32(1e-6)))
    for i in range(2):
        for r in range(8): a("v_mul_f32 v%d, v%d, v2" % (OD + 8 * i + r, OD + 8 * i + r))
        for r in range(4): a("v_cvt_pk_bf16_f32 v%d, v%d, v%d" % (KVB + 4 * i + r, OD + 8 * i + 2 * r, OD + 8 * i + 2 * r + 1))
        a.vmem("buffer_store_dwordx4 %s, v%d, s[32:35], s28 offen offset:%d sc1" % (vr(KVB + 4 * i, 4), VA, i * 1024))
    a.drain(lg=False)
    arrive_issue(a, "s40 offset:%d" % (S2_CNT * SL))
    arrive_finish(a, 31, ["s40 offset:%d" % (S2_REL * SL)], "A_FIN")
    a.label("A_FIN")
    stamp_flush(a, 11, 4, "A")
    a("s_endpgm")

class G:
    ACC = 0; B = 64; F = 64 + 8 * NB
    W0 = 232; W1 = 233; FA = 234; FB = 235; LA = 236; LB = 237
    LN = 238; L16 = 239; RES = 240
    VX = 248; VB2 = 249; VZ = 250; VT = 251; T0 = 252; T1 = 253; T2 = 254
assert G.F + 8 * NF <= 232
SLDS = 50
SJ = [6, 7, 8, 9, 10, 11, 48, 49]
SC = [51, 15, 59, 3]

def g_waddr(a, RS, scol):
    a("""
    v_lshrrev_b32 v{T0}, 3, v{L}
    v_mul_u32_u24 v{W0}, {RS}, v{T0}
    v_lshrrev_b32 v{T1}, 2, v{L}
    v_and_b32 v{T1}, 4, v{T1}
    v_and_b32 v{T2}, 7, v{L}
    v_xor_b32 v{T1}, v{T1}, v{T2}
    v_lshl_add_u32 v{W0}, v{T1}, 4, v{W0}
    v_add_u32 v{W0}, {scol}, v{W0}
    v_add_u32 v{W1}, {RS8}, v{W0}
    """.format(T0=G.T0, T1=G.T1, T2=G.T2, L=G.LN, W0=G.W0, W1=G.W1, RS=RS, RS8=8 * RS, scol=scol))
def g_laddr(a, perm2):
    a("""
    v_bfe_u32 v{T0}, v{L}, 4, 1
    v_lshrrev_b32 v{T1}, 5, v{L}
    v_lshlrev_b32 v{LA}, {HS}, v{T1}
    v_lshl_add_u32 v{LA}, v{T0}, 5, v{LA}
    v_bfe_u32 v{T1}, v{L}, 2, 2
    v_lshl_add_u32 v{LA}, v{T1}, 7, v{LA}
    v_lshrrev_b32 v{T1}, 1, v{T1}
    v_lshl_add_u32 v{LA}, v{T1}, 6, v{LA}
    v_and_b32 v{T1}, 3, v{L}
    v_lshl_add_u32 v{LA}, v{T1}, 3, v{LA}
    s_lshl_b32 s36, s14, 5
    s_and_b32 s36, s36, 64
    v_xor_b32 v{LA}, s36, v{LA}
    v_add_u32 v{LA}, s{SLDS}, v{LA}
    v_xor_b32 v{LB}, 64, v{LA}
    """.format(T0=G.T0, T1=G.T1, L=G.LN, LA=G.LA, LB=G.LB, HS=(9 if perm2 else 10), SLDS=SLDS))

class Stream:
    def __init__(self, a, name, srdw, RS, NK, perm2, pol, slots, nb):
        self.nb = nb
        self.fb = {}; self.nf = 0; self.ffree = None; self.ring = [G.F + 8 * i for i in range(NF)]
        self.a = a; self.n = name; self.srd = srdw; self.RS = RS; self.NK = NK; self.perm2 = perm2; self.pol = pol
        o = self.order(); first = [p for p in range(NK) if o[p][0] == 0]
        self.dorder = first + [p for p in range(NK) if p not in first]
        assert sorted(self.dorder[:self.nb]) == list(range(self.nb)) and self.dorder[self.nb:] == list(range(self.nb, NK))
        self.free = [(s, None) for s in slots]
        self.slot = {}; self.nd = 0; self.nr = 0
    def can_dma(self): return self.nd < self.NK and len(self.free) > 0
    def order(self):
        ng = self.NK // 4; o = [(j, 0) for j in range(min(LEAD, ng))]
        for j in range(ng):
            if j + LEAD < ng: o.append((j + LEAD, 0))
            o += [(j, 1), (j, 2), (j, 3)]
        if LEAD == 0: o = [(j, r) for j in range(ng) for r in range(4)]
        assert len(o) == self.NK
        return o
    def tstep(self, p, dst):
        j, rel = self.order()[p]
        if self.n == "b" and not ROT2: self.a("s_add_u32 %s, s%d, %d" % (dst, SC[rel], 16 * j))
        else: self.a("s_add_u32 %s, s%d, s%d" % (dst, SJ[j], SC[rel]))
    def dma_parts(self):
        a = self.a; p = self.dorder[self.nd]; self.nd += 1
        sl, tag = self.free.pop(0); self.slot[p] = sl
        def p0():
            if tag: a.wait(lg=tag)
            self.tstep(p, "s58")
            a("s_add_u32 m0, s%d, %d" % (SLDS, sl * 2048))
            a("s_mul_i32 s58, s58, %d" % (16 * self.RS))
            a.vmem("buffer_load_dwordx4 v%d, s[%d:%d], s58 offen %s lds" % (G.W0, self.srd, self.srd + 3, self.pol), "%sd%d" % (self.n, p))
            a("s_add_u32 m0, s%d, %d" % (SLDS, sl * 2048 + 1024))
        def p1():
            a("s_nop 0")
            a.vmem("buffer_load_dwordx4 v%d, s[%d:%d], s58 offen %s lds" % (G.W1, self.srd, self.srd + 3, self.pol), "%sd%d" % (self.n, p))
        return [p0, p1]
    def dma(self):
        for f in self.dma_parts(): f()
    def read_parts(self):
        a = self.a; p = self.dorder[self.nr]; self.nr += 1
        assert p in self.slot
        sl = self.slot[p]; b = G.B + 8 * (p % self.nb); io = 1024 if self.perm2 else 512
        self.free.append((sl, "%sr%d" % (self.n, p)))
        def part(u):
            def f():
                a.wait(vm="%sd%d" % (self.n, p))
                for i in range(2):
                    a.ds("ds_read_b64_tr_b16 %s, v%d offset:%d" % (vr(b + 4 * u + 2 * i, 2), G.LA + u, sl * 2048 + i * io), "%sr%d" % (self.n, p))
            return f
        return [part(0), part(1)]
    def read(self):
        for f in self.read_parts(): f()
    def inflight(self):
        seen = []
        for t in self.a.vm.ops:
            if t and t.startswith(self.n + "d") and t not in seen: seen.append(t)
        return seen
    def pump(self, ahead):
        did = False
        while self.can_dma() and len(self.inflight()) < ahead: self.dma(); did = True
        if self.nr < self.nb and self.nr < self.nd: self.read(); did = True
        elif self.can_dma():
            self.a.wait(vm=self.inflight()[0]); did = True
        return did
    def tables(self, srot, ssh, part=None):
        a = self.a; ng = self.NK // 4
        if part != 0:
            a("s_lshl_b32 s%d, %s, 4" % (SJ[0], srot))
            for j in range(1, 7):
                a("s_add_u32 s%d, s%d, 16" % (SJ[j], SJ[j - 1]))
                a("s_cmp_ge_u32 s%d, 112" % SJ[j])
                a("s_cselect_b32 s%d, 0, s%d" % (SJ[j], SJ[j]))
            a("s_movk_i32 s%d, 112" % SJ[7])
        if part != 1:
            a("s_lshl_b32 s61, %s, 2" % ssh)
            for r in range(4):
                a("s_add_u32 s%d, s61, %d" % (SC[r], 4 * r))
                a("s_and_b32 s%d, s%d, 12" % (SC[r], SC[r]))
                a("s_add_u32 s%d, s%d, s14" % (SC[r], SC[r]))
    def freg(self, t): return self.fb.get(t, self.ring[t % len(self.ring)])
    def fnext(self, t, srdf, maxn):
        out = []
        while self.nf < self.NK and len(out) < 2 * maxn and self.nf - t <= FLOOK:
            c = [x for x in self.ffree if x[0] < t]
            if not c: break
            self.ffree.remove(c[0]); self.fb[self.nf] = c[0][1]
            self.ffree.append((self.nf, c[0][1]))
            out += self.fload_parts(self.nf, srdf); self.nf += 1
        return out
    def fload_parts(self, t, srdf):
        a = self.a; f = self.freg(t)
        def p0():
            self.tstep(t, "s60")
            a("s_lshl_b32 s60, s60, 11")
            a.vmem("buffer_load_dwordx4 %s, v%d, s[%d:%d], s60 offen sc1" % (vr(f, 4), G.FA, srdf, srdf + 3), "%sf%d" % (self.n, t))
        def p1():
            a.vmem("buffer_load_dwordx4 %s, v%d, s[%d:%d], s60 offen sc1" % (vr(f + 4, 4), G.FB, srdf, srdf + 3), "%sf%d" % (self.n, t))
        return [p0, p1]
    def fload(self, t, srdf):
        for f in self.fload_parts(t, srdf): f()
    def step(self, t, weights_are_A, fill):
        a = self.a; b = G.B + 8 * (t % self.nb); f = self.freg(t)
        a.wait(vm="%sf%d" % (self.n, t), lg="%sr%d" % (self.n, t))
        gaps = [[], [], [], []]
        for i, p in enumerate(fill): gaps[min(3, i * 4 // max(4, len(fill)))].append(p)
        for n in range(4):
            uw, uf = n >> 1, n & 1
            acc = vr(G.ACC + 16 * n, 16)
            W, F = vr(b + 4 * uw, 4), vr(f + 4 * uf, 4)
            A_, B_ = (W, F) if weights_are_A else (F, W)
            a("%s %s, %s, %s, %s" % (MF, acc, A_, B_, "0" if (t == 0 and n > 0) else acc))
            for p in gaps[n]: p()
    def loop_fill(self, t, srdf):
        fill = []
        if self.ffree is not None: fill += self.fnext(t, srdf, 2)
        elif t + len(self.ring) - 1 < self.NK: fill += self.fload_parts(t + len(self.ring) - 1, srdf)
        dm = self.dma_parts() if self.can_dma() else []
        if t >= 1 and self.nr < self.NK and self.nr - self.nb <= t - 1: fill += self.read_parts()
        return fill + dm

def g_reduce_write(a, mid=None, pre=None, tail=None):
    a("v_add_u32 v%d, s%d, v%d" % (G.VT, SLDS, G.L16))
    def wr(t, q): a.ds("ds_write_b128 v%d, %s offset:%d" % (G.VT, vr(G.ACC + 16 * t + 4 * q, 4), 8192 + (t - 1) * 4096 + q * 1024), "rw")
    if tail:
        prev = None
        for n in (1, 2, 3, 0):
            acc = vr(G.ACC + 16 * n, 16); qs = [0, 1, 2, 3] if prev else []
            for i, pick in enumerate(tail):
                A_, B_ = pick(n)
                a("%s %s, %s, %s, %s" % (MF, acc, A_, B_, acc))
                if qs and i == 0: a("s_nop 10")
                for _ in range(1 if i == 0 else 2):
                    if qs: wr(prev, qs.pop(0))
            while qs: wr(prev, qs.pop(0))
            prev = n
    else:
        a("s_nop 10")
        for t in range(1, 4):
            for q in range(4): wr(t, q)
    for t in range(1, 4):
        a("s_xor_b32 s60, s14, %d" % t)
        a("s_mul_i32 s60, s60, %d" % (NS * 2048))
        a("v_add_u32 v%d, s60, v%d" % (G.T0 + t - 1, G.L16))
    if pre: pre()
    a.wait(lg="rw")
    a("s_barrier")
    if mid: mid()
    for t in range(1, 4):
        for q in range(4):
            a.ds("ds_read_b128 %s, v%d offset:%d" % (vr(G.ACC + 16 * t + 4 * q, 4), G.T0 + t - 1, 8192 + (t - 1) * 4096 + q * 1024), "rr%d" % t)
def v2(a, op, d, x, y, n, pk):
    if pk:
        for r in range(0, n, 2): a("v_pk_%s_f32 %s, %s, %s" % (op, vr(d + r, 2), vr(x + r, 2), vr(y + r, 2)))
    else:
        for r in range(n): a("v_%s_f32 v%d, v%d, v%d" % (op, d + r, x + r, y + r))
def g_reduce_add(a, pk=True):
    for t in range(1, 4):
        a.wait(lg="rr%d" % t)
        v2(a, "add", 0, 0, 16 * t, 16, pk)

def role_g(a):
    a.vm.clear(); a.lg.clear()
    a.label("ROLE_G")
    if ONLYA: a("s_endpgm")
    a("""
    v_and_b32 v{LN}, 63, v0
    s_mul_i32 s61, s57, 37
    s_lshr_b32 s61, s61, 8
    s_lshl_b32 s66, s56, 2
    s_add_u32 s66, s66, s61
    s_mul_i32 s61, s61, 7
    s_sub_u32 s64, s57, s61
    s_mul_i32 s{SLDS}, s14, {WB}
    s_lshl_b32 s67, s66, 7
    s_lshr_b32 s60, s14, 1
    s_lshl_b32 s60, s60, 6
    s_add_u32 s60, s60, s67
    v_lshrrev_b32 v{VT}, 5, v{LN}
    v_lshlrev_b32 v{VT}, 3, v{VT}
    """.format(LN=G.LN, SLDS=SLDS, WB=NS * 2048, VT=G.VT))
    s1 = Stream(a, "a", 16, 3584, NK1, False, os.environ.get("W1POL0", "nt"), list(range(NS)), NB)
    s2 = Stream(a, "b", 24, 4096, 28, True, W2POL, list(range(4)), NB2)
    def burst(st):
        for p in range(4):
            if len(st.inflight()) >= AHEAD0: a.wait(vm=st.inflight()[0])
            st.dma()
        if len(st.inflight()) >= AHEAD0: a.wait(vm=st.inflight()[0])
    g_waddr(a, 3584, "s67")
    s1.tables("s64", "s66", part=0)
    a("s_mov_b32 s18, %d" % (2048 * 3584))
    a("s_mov_b32 s19, 0x20000")
    a("s_waitcnt lgkmcnt(0)")
    a("s_mov_b32 s16, s40")
    a("s_and_b32 s17, s41, 0xffff")
    a("s_lshl_b32 s%d, s64, 4" % SJ[0])
    a("s_cmp_eq_u32 s56, 7")
    if ONLY2: a("s_branch G_SETUP")
    a("s_cbranch_scc1 G_SETUP")
    if GWAIT:
        a("global_load_dword v%d, v%d, s[42:43] nt" % (G.T0, G.VT))
        a("s_waitcnt vmcnt(0)")
    burst(s1)
    a.label("G_SETUP")
    stamp(a, 1)
    srd(a, 36, 42, str(1792 * 2))
    for q in range(4):
        a.vmem("buffer_load_dwordx2 %s, v%d, s[36:39], s60 offen offset:%d nt" % (vr(G.F + 2 * q, 2), G.VT, 16 * q), "b1")
    ws_base(a)
    srd(a, WS, 30, hex(WS_USED))
    a("""
    s_setprio {PRIO}
    v_lshlrev_b32 v{L16}, 4, v{LN}
    v_mov_b32 v{VZ}, 0
    s_lshr_b32 s60, s14, 1
    s_lshl_b32 s60, s60, 5
    s_lshl_b32 s61, s66, 6
    s_add_u32 s60, s60, s61
    v_and_b32 v{T0}, 31, v{LN}
    v_add_u32 v{T0}, s60, v{T0}
    v_mul_u32_u24 v{VX}, 896, v{T0}
    v_lshlrev_b32 v{T1}, 1, v{VT}
    s_lshl_b32 s60, s64, 7
    s_and_b32 s61, s14, 1
    s_lshl_b32 s61, s61, 6
    s_add_u32 s60, s60, s61
    v_add3_u32 v{VX}, v{VX}, v{T1}, s60
    v_lshlrev_b32 v{VB2}, 1, v{T0}
    s_and_b32 s60, s14, 1
    s_lshl_b32 s60, s60, 10
    v_add_u32 v{FA}, s60, v{L16}
    v_xor_b32 v{FB}, 0x400, v{FA}
    s_lshl_b32 s68, s64, 18
    s_add_u32 s68, s68, {HTO}
    s_mul_i32 s60, s64, {UG}
    s_add_u32 s60, s60, {UPO}
    """.format(PRIO=PRIO_G, L16=G.L16, LN=G.LN, VZ=G.VZ, T0=G.T0, T1=G.T1, VT=G.VT, VX=G.VX, VB2=G.VB2,
               FA=G.FA, FB=G.FB, HTO=hex(HT_OFF), UG=UP_G, UPO=hex(UP_OFF)))
    srd(a, 40, 30, str(UP_G), add="s60")
    srd(a, DBG, 28, "256")
    srd(a, 24, 52, str(1792 * 4096))
    srd(a, 20, 30, str(HT_G), add="s68")
    def sw2():
        g_waddr(a, 4096, "s67")
        g_laddr(a, True)
    def res_loads():
        for i in range(2):
            a.vmem("global_load_dwordx4 %s, v%d, s[4:5] offset:%d" % (vr(G.RES + 4 * i, 4), G.VX, 32 * i), "res")
    a.vmem("global_load_ushort v%d, v%d, s[54:55] nt" % (G.VB2, G.VB2), "b1")
    a("s_movk_i32 s68, 0x80")
    if not ONLY2:
        a("s_cmp_lt_u32 s56, 7")
        a("s_cbranch_scc1 G_TILE1")
    sv = list(a.vm.ops)
    if HELP and not ONLY2:
        a.vm.clear(); a.lg.clear()
        a("s_setprio %d" % E("PRIO_H", 3))
        a("s_lshl_b32 s36, s57, 7")
        g_waddr(a, 3584, "s36")
        a("s_lshl_b32 s58, s14, 2")
        a("s_add_u32 s58, s58, 112")
        a("s_mul_i32 s58, s58, %d" % (16 * 3584))
        a("s_lshl_b32 s59, s14, 13")
        for i in range(4):
            a("s_add_u32 m0, s59, %d" % (i * 2048))
            a("s_nop 0")
            a.vmem("buffer_load_dwordx4 v%d, s[16:19], s58 offen nt lds" % G.W0)
            a("s_add_u32 m0, s59, %d" % (i * 2048 + 1024))
            a("s_nop 0")
            a.vmem("buffer_load_dwordx4 v%d, s[16:19], s58 offen nt lds" % G.W1)
            a("s_add_u32 s58, s58, %d" % (16 * 3584))
        g_laddr(a, False)
        a("v_subrev_u32 v%d, s%d, v%d" % (G.LA, SLDS, G.LA))
        a("v_xor_b32 v%d, s36, v%d" % (G.LA, G.LA))
        a("v_xor_b32 v%d, 64, v%d" % (G.LB, G.LA))
        a.drain()
        a("s_barrier")
        for kk in range(16):
            for u in range(2):
                for i in range(2):
                    a.ds("ds_read_b64_tr_b16 %s, v%d offset:%d" % (vr(G.B + 8 * kk + 4 * u + 2 * i, 2), G.LA + u, kk * 2048 + i * 512))
        poll(a, DBG, "s68", G.VZ, G.VT, sleep=2)
        a.drain()
        stamp(a, 5)
        a("s_lshl_b32 s58, s14, 18")
        a("s_add_u32 s58, s58, %s" % hex(HT_OFF + 112 * 2048))
        a("s_mul_i32 s48, s57, 7")
        a("s_add_u32 s48, s48, s14")
        a("s_lshl_b32 s48, s48, 13")
        a("s_add_u32 s48, s48, %s" % hex(PART_OFF))
        a("s_cmp_eq_u32 s14, 3")
        a("s_cselect_b32 s49, 0x08000000, 0")
        def hload(kk):
            f = G.F + 8 * (kk % NF)
            if kk == 16:
                a("s_add_u32 s58, s58, %d" % (4 * HT_G - 7 * 4096))
                a("s_or_b32 s58, s58, s49")
            elif kk % 2 == 0 and kk: a("s_add_u32 s58, s58, 4096")
            for u in range(2):
                a.vmem("buffer_load_dwordx4 %s, v%d, s[32:35], s58 offen offset:%d sc1" % (vr(f + 4 * u, 4), G.L16, (kk % 2) * 2048 + u * 1024), "h%d" % kk)
        for kk in range(NF - 1): hload(kk)
        for kk in range(32):
            a.wait(vm="h%d" % kk)
            f = G.F + 8 * (kk % NF)
            for n in range(4):
                acc = vr(16 * n, 16)
                a("%s %s, %s, %s, %s" % (MF, acc, vr(G.B + 8 * (kk % 16) + 4 * (n >> 1), 4), vr(f + 4 * (n & 1), 4), "0" if kk % 16 == 0 else acc))
                if n == 0 and kk + NF - 1 < 32: hload(kk + NF - 1)
            if kk % 16 == 15:
                a("s_add_u32 s59, s48, 4096")
                a("s_nop 8")
                for n in range(8):
                    for r in range(4): a("v_cvt_pk_bf16_f32 v%d, v%d, v%d" % (4 * n + r, 8 * n + 2 * r, 8 * n + 2 * r + 1))
                    a.vmem("buffer_store_dwordx4 %s, v%d, s[32:35], %s offen offset:%d sc1" % (vr(4 * n, 4), G.L16, "s59" if n >= 4 else "s48", (n % 4) * 1024))
                if kk == 15:
                    a("s_add_u32 s48, s48, %d" % (4 * 8192))
                    a("s_cmp_eq_u32 s14, 3")
                    a("s_cbranch_scc1 H_FIN")
                    stamp(a, 6)
        a.label("H_FIN")
        a.drain()
        a("s_barrier")
        a("s_cmp_lg_u32 s14, 0")
        a("s_cbranch_scc1 H_DONE")
        a("s_lshl_b32 s58, s57, 8")
        a("s_add_u32 s58, s58, %s" % hex(SYNC_OFF + SH_REL * SL))
        arrive(a, "s58")
        a.label("H_DONE")
        a("s_setprio %d" % PRIO_G)
    MROW = E("MROW", 896)
    a.vm.clear(); a.lg.clear()
    poll(a, DBG, "s68", G.VZ, G.VT, sleep=8)
    if MROW < 1792 and not (ONLY2 or ONLYG):
        a("s_setprio %d" % E("PRIO_M", 0))
        a("s_lshl_b32 s58, s57, 2")
        a("s_add_u32 s58, s58, s14")
        a("s_lshl_b32 s58, s58, 10")
        a("s_add_u32 s58, s58, %d" % (MROW * 4096))
        a.label("M_W2")
        for i in range(4):
            a("s_waitcnt vmcnt(%d)" % (E("MDEPTH", 8) - 1))
            a("buffer_load_dwordx4 %s, v%d, s[24:27], s58 offen" % (vr(G.F + 8 + 4 * i, 4), G.L16))
            a("s_add_u32 s58, s58, %d" % (112 * 1024))
        a("s_cmp_lt_u32 s58, %d" % (1792 * 4096))
        a("s_cbranch_scc1 M_W2")
    a("s_setprio %d" % E("PRIO_7", 1))
    a("s_mov_b32 s69, %s" % hex(SYNC_OFF + ((SV_REL if TWO else SW_REL) + 7) * SL))
    poll(a, WS, "s69", G.VZ, G.VT, sleep=8)
    for i in range(7, 9): stamp(a, i)
    sw2()
    s2.tables("s64", "s66")
    a("s_mov_b32 s65, 1")
    a("s_branch G_JOIN")
    a.vm.ops = sv; a.lg.clear()
    a.label("G_TILE1")
    s1.tables("s64", "s66", part=1)
    g_laddr(a, False)
    if RESEARLY: res_loads()
    if E("BDRAIN", 1): a.drain(lg=False)
    else: a.wait(vm="ad%d" % s1.dorder[E("BWAIT", 1)])
    s1.pol = W1POL2
    stamp(a, 2)
    while s1.nd < NB + NS - 2: s1.pump(AHEAD)
    flag_issue(a, DBG, "s68", G.VZ, G.VT, "f0")
    a.wait(vm="b1")
    for q in range(8):
        a("v_lshlrev_b32 v%d, 16, v%d" % (2 * q, G.F + q))
        a("v_and_b32 v%d, 0xffff0000, v%d" % (2 * q + 1, G.F + q))
    while s1.pump(AHEAD): pass
    stamp(a, 3)
    flag_check(a, DBG, "s68", G.VZ, G.VT, "f0", 2)
    stamp(a, 4)
    if FLOOK:
        s1.ffree = [(-2, G.F + 8 * i) for i in range(NF)] + ([(-2, G.RES)] if not RESEARLY else []) + [(p, G.B + 8 * (p % NB)) for p in range(NK1 - NB, NK1)]
        for f in s1.fnext(-1, 20, 99): f()
    else:
        for t in range(NF - 1): s1.fload(t, 20)
    log = []
    at = {}; fr_ok = [0]
    HP_ = G.B
    for t in range(NK1):
        if t in (8, 16, 24) and not E("WST", 0): stamp(a, 4 + t // 8)
        fill = s1.loop_fill(t, 20)
        if t == 16:
            def fw():
                a("s_lshl_b32 s69, s56, 8")
                a("s_add_u32 s69, s69, %s" % hex(SYNC_OFF + (SV_REL if TWO else SW_REL) * SL))
                flag_issue(a, WS, "s69", G.VZ, G.VT, "fw")
            fill.append(fw)
        if t == 22: flag_check(a, WS, "s69", G.VZ, G.VT, "fw", 2)
        if t == NK1 + 1 - NB:
            assert s1.nr == NK1
            fill.append(lambda: (a.drain(vm=False), sw2()))
        if HELP and t == NK1 - 1 - E("HLAG", 5):
            def fh():
                a("s_lshl_b32 s69, s66, 8")
                a("s_add_u32 s69, s69, %s" % hex(SYNC_OFF + SH_REL * SL))
                flag_issue(a, WS, "s69", G.VZ, G.VT, "fh")
            fill.append(fh)
        if HELP and t == NK1 - 1:
            def ph():
                flag_check(a, WS, "s69", G.VZ, G.VT, "fh", 1)
                a("s_mul_i32 s60, s66, 7")
                a("s_add_u32 s60, s60, s64")
                a("s_lshl_b32 s60, s60, 2")
                a("s_add_u32 s60, s60, s14")
                a("s_lshl_b32 s60, s60, 11")
                a("s_add_u32 s60, s60, %s" % hex(PART_OFF))
                for i in range(2):
                    a.vmem("buffer_load_dwordx4 %s, v%d, s[32:35], s60 offen offset:%d sc1" % (vr(HP_ + 4 * i, 4), G.L16, i * 1024), "hp")
            fill += [lambda: None] * 3 + [ph]
        W2S = E("W2S", 0)
        if W2S and W2S <= t < W2S + 4:
            fill += s2.dma_parts(); log.append("d")
        if t >= NK1 - TAILM:
            assert not fill
            continue
        s1.step(t, True, fill)
    tail1 = []
    for t in range(NK1 - TAILM, NK1):
        a.wait(vm="af%d" % t, lg="ar%d" % t)
        tail1.append(lambda n, t=t: (vr(G.B + 8 * (t % NB) + 4 * (n >> 1), 4), vr(s1.freg(t) + 4 * (n & 1), 4)))
    stamp(a, 5 if E("WST", 0) else 8)
    def rd(n=1):
        for _ in range(n): s2.read(); log.append("r")
    def dm(n=1):
        for _ in range(n):
            first = s2.nd < 4
            s2.pol = os.environ.get("W2POL0", "") if first else W2POL
            s2.dma(); log.append("d")
            s2.pol = W2POL
            if first and s2.nd == 4 and E("TOUCH", 0):
                a("v_lshrrev_b32 v%d, 4, v%d" % (G.F, G.LN))
                a("v_lshlrev_b32 v%d, 18, v%d" % (G.F, G.F))
                a("v_and_b32 v%d, 15, v%d" % ((G.F + 1), G.LN))
                a("v_lshl_add_u32 v%d, v%d, 12, v%d" % (G.F, (G.F + 1), G.F))
                a("s_add_u32 s58, s%d, s14" % SJ[0])
                a("s_lshl_b32 s58, s58, 16")
                a("s_add_u32 s58, s58, s67")
                a.vmem("buffer_load_dword v%d, v%d, s[24:27], s58 offen" % ((G.F + 2), G.F), "touch")
    oa = {}; ob = {}
    def oa_parts(j):
        def p0():
            if j % 2 == 0 and j > 0: a("s_add_u32 s56, s56, 4096")
            a.vmem("buffer_load_dwordx4 %s, v%d, s[40:43], s56 offen offset:%d sc1" % (vr(oa[j], 4), G.FA, (j % 2) * 2048), "oa%d" % j)
        def p1():
            a.vmem("buffer_load_dwordx4 %s, v%d, s[40:43], s56 offen offset:%d sc1" % (vr(oa[j] + 4, 4), G.FB, (j % 2) * 2048), "oa%d" % j)
        return [p0, p1]
    def oa_base():
        a("s_lshl_b32 s56, s14, 14")
        a("s_add_u32 s56, s56, %d" % (112 * 2048))
    oa_base()
    early = []
    for j in range(NOA):
        oa[j] = G.B + 8 * (NB2 + j); early += oa_parts(j)
    g_reduce_write(a, mid=(lambda: (rd(WPUMP), dm(WPUMP))) if WPUMP else None, pre=lambda: (a.sprinkle(list(early), E("OAGAP", 5)), (rd(E("WRD", 0)), dm(WPRE))), tail=tail1)
    g_reduce_add(a, not NOPK)
    if HELP:
        a.wait(vm="hp")
        for q in range(8):
            a("v_lshlrev_b32 v%d, 16, v%d" % (16 + 2 * q, HP_ + q))
            a("v_and_b32 v%d, 0xffff0000, v%d" % (17 + 2 * q, HP_ + q))
        v2(a, "add", 0, 0, 16, 16, not NOPK)
    if E("WST", 0): stamp(a, 6)
    a("s_barrier")
    s2.free += [(s_, None) for s_ in range(4, NS)]
    log.append("f")
    if E("WST", 0): stamp(a, 7)
    c1 = -2.0 * 0.7978845608028654 * 1.4426950408889634
    c2 = c1 * 0.044715
    left = [WDMA1]
    def ride():
        if left[0] > 0: dm(); left[0] -= 1
    a("s_mov_b32 s60, %s" % f32(c2))
    a("v_mov_b32 v48, %s" % f32(c1))
    ride()
    v2(a, "mul", 16, 0, 0, 16, not NOPK)
    ride()
    for r in range(16): a("v_fma_f32 v%d, v%d, s60, v48" % (16 + r, 16 + r))
    ride()
    v2(a, "mul", 16, 16, 0, 16, not NOPK)
    for r in range(16): a("v_exp_f32 v%d, v%d" % (16 + r, 16 + r))
    ride()
    for r in range(16): a("v_add_f32 v%d, 1.0, v%d" % (16 + r, 16 + r))
    ride()
    for r in range(16): a("v_rcp_f32 v%d, v%d" % (16 + r, 16 + r))
    ride()
    a.sprinkle_flush()
    a("""
    s_lshl_b32 s60, s66, 2
    s_and_b32 s61, s14, 2
    s_add_u32 s60, s60, s61
    s_lshl_b32 s60, s60, 11
    """)
    for i in range(2):
        v2(a, "mul", 8 * i, 8 * i, 16 + 8 * i, 8, not NOPK)
        for r in range(4): a("v_cvt_pk_bf16_f32 v%d, v%d, v%d" % (32 + 4 * i + r, 8 * i + 2 * r, 8 * i + 2 * r + 1))
        a.vmem("buffer_store_dwordx4 %s, v%d, s[40:43], s60 offen offset:%d sc1" % (vr(32 + 4 * i, 4), G.FA, i * 2048), "ust")
    if E("WST", 0): stamp(a, 8)
    nb4 = s2.nd
    for p in range(E("WDMA2", 4)):
        if s2.can_dma(): dm()
    rd(min(nb4, NB2) - s2.nr)
    a.wait(vm="ust")
    state = (s2.nd, s2.nr, list(s2.free), dict(s2.slot), list(a.vm.ops), list(a.lg.ops))
    a("s_mov_b32 s65, s14")
    a("s_branch G_JOIN2")
    a.label("G_JOIN")
    a.vm.clear(); a.lg.clear()
    s2b = Stream(a, "b", 24, 4096, 28, True, "nt", list(range(4)), NB2)
    oa_base()
    for f in early: f()
    if RESEARLY: res_loads()
    s2b.pol = W2POL
    for act in log:
        if act == "r": s2b.read()
        elif act == "d": s2b.dma()
        else: s2b.free += [(s_, None) for s_ in range(4, NS)]
    assert (s2b.nd, s2b.nr, s2b.slot) == (state[0], state[1], state[3]) and [x[0] for x in s2b.free] == [x[0] for x in state[2]]
    a.drain()
    a.label("G_JOIN2")
    a.vm.ops = state[4]; a.lg.ops = state[5]
    stamp(a, 9)
    a("s_barrier")
    live = not (ONLY2 or ONLYG)
    def f4_load(tag):
        if not live: return
        a("s_mov_b64 exec, 0x0fffffff")
        a.vmem("buffer_load_dword v%d, v%d, s[32:35], s69 offen sc1" % (G.VT, G.T0), tag)
        a("s_mov_b64 exec, -1")
    def f4_check(tag, upto):
        if not live: return
        l = a.newlabel("F4"); d = a.newlabel("F4D")
        if upto is None: a("s_mov_b32 s63, 0x0fffffff")
        else:
            a("s_mov_b32 s63, 0")
            for j_ in range(upto):
                a("s_lshr_b32 s61, s%d, 2" % SJ[j_])
                a("s_lshl_b32 s61, 15, s61")
                a("s_or_b32 s63, s63, s61")
        a.wait(vm=tag)
        sv4 = list(a.vm.ops)
        a("s_mov_b32 s60, 0")
        a.label(l)
        a("v_cmp_ne_u32 vcc, 0, v%d" % G.VT)
        a("s_and_b32 s61, vcc_lo, s63")
        a("s_cmp_eq_u32 s61, s63")
        a("s_cbranch_scc1 %s" % d)
        a("s_sleep %d" % PSL)
        f4_load(tag)
        a("s_add_u32 s60, s60, 1")
        a.drain(lg=False)
        a("s_cmp_lt_u32 s60, %s" % hex(SPIN_MAX))
        a("s_cbranch_scc1 %s" % l)
        a.label(d)
        a.vm.ops = sv4
    if FINE4:
        assert ROT2 and LEAD == 0
        a("s_lshl_b32 s69, s64, 13")
        a("s_add_u32 s69, s69, %s" % hex(SYNC_OFF + F4 * SL))
        a("s_cmp_lg_u32 s65, 0")
        a("s_cbranch_scc1 G_NOARR")
        a("s_lshl_b32 s61, s66, 8")
        a("s_add_u32 s61, s61, s69")
        arrive(a, "s61")
        a.label("G_NOARR")
        a("v_lshlrev_b32 v%d, 8, v%d" % (G.T0, G.LN))
        while s2.can_dma() and len(s2.inflight()) < AHEAD2: s2.dma()
        if not RESEARLY: res_loads()
        while s2.nd < NB2 + NS - 1: s2.pump(AHEAD2)
        f4_load("f4")
    else:
        a("s_lshl_b32 s69, s64, 8")
        a("s_add_u32 s69, s69, %s" % hex(SYNC_OFF + S4_CNT * SL))
        a("s_mov_b32 s62, 0")
        a("s_cmp_lg_u32 s65, 0")
        a("s_cbranch_scc1 G_NOARR")
        arrive_issue(a, "s69")
        a.label("G_NOARR")
        while s2.can_dma() and len(s2.inflight()) < AHEAD2: s2.dma()
        if not RESEARLY: res_loads()
        arrive_finish(a, 27, ["s69 offset:%d" % ((S4_REL - S4_CNT) * SL)], "G_NOREL")
        a.label("G_NOREL")
        a("s_add_u32 s69, s69, %d" % ((S4_REL - S4_CNT) * SL))
        while s2.nd < NB2 + NS - 1: s2.pump(AHEAD2)
        flag_issue(a, WS, "s69", G.VZ, G.VT, "f4")
    while s2.pump(AHEAD2): pass
    a.wait(vm="res")
    a("v_lshlrev_b32 v16, 16, v%d" % G.VB2)
    for i in range(2):
        a("v_permlane32_swap_b32 v%d, v%d" % (G.RES + 4 * i, G.RES + 4 * i + 2))
        a("v_permlane32_swap_b32 v%d, v%d" % (G.RES + 4 * i + 1, G.RES + 4 * i + 3))
    a("s_nop 0")
    for q in range(8):
        a("v_lshlrev_b32 v%d, 16, v%d" % (2 * q, G.RES + q))
        a("v_and_b32 v%d, 0xffff0000, v%d" % (2 * q + 1, G.RES + q))
    for r in range(16): a("v_add_f32 v%d, v%d, v16" % (r, r))
    srd(a, 20, 12, str(2048 * 896))
    stamp(a, 10)
    if E("RING6", 1): s2.ring.append(G.RES)
    LK = len(s2.ring) - 1
    G4 = E("G4", 0)
    got = [(LK + 3) // 4]
    if FINE4:
        f4_check("f4", got[0] if got[0] <= G4 else None)
        if got[0] <= G4: f4_load("f4")
    else: flag_check(a, WS, "s69", G.VZ, G.VT, "f4", PSL)
    stamp(a, 11)
    for t in range(len(s2.ring) - 1): s2.fload(t, 40)
    a("""
    s_lshl_b32 s57, s66, 16
    s_lshl_b32 s36, s14, 13
    s_add_u32 s57, s57, s36
    s_add_u32 s57, s57, {OFO}
    s_lshl_b32 s36, s14, 14
    s_and_b32 s36, s36, 0x8000
    s_xor_b32 s37, s36, 0x8000
    s_add_u32 s67, s57, s37
    s_add_u32 s57, s57, s36
    s_lshl_b32 s68, s66, 8
    s_add_u32 s68, s68, {REL}
    """.format(OFO=hex(OF_OFF), REL=hex(SYNC_OFF + S2_REL * SL)))
    free = [(p, G.B + 8 * (p % NB2)) for p in range(28 - NB2, 28)] + [(t, s2.freg(t)) for t in range(28 - len(s2.ring), 28)]
    if not E("RING6", 1): free.append((-1, G.RES))
    free.sort()
    def ob_parts(j):
        def p0():
            if j == 4:
                a("s_add_u32 s57, s57, 4096")
                a("s_add_u32 s67, s67, 4096")
            a.vmem("buffer_load_dwordx4 %s, v%d, s[32:35], s57 offen offset:%d sc1" % (vr(ob[j], 4), G.L16, (j % 4) * 1024), "ob%d" % j)
        def p1():
            a.vmem("buffer_load_dwordx4 %s, v%d, s[32:35], s67 offen offset:%d sc1" % (vr(ob[j] + 4, 4), G.L16, (j % 4) * 1024), "ob%d" % j)
        return [p0, p1]
    def ostep(j, fill):
        a.wait(vm=["oa%d" % j, "ob%d" % j])
        for n in range(4):
            uw, uf = n >> 1, n & 1
            acc = vr(G.ACC + 16 * n, 16)
            a("%s %s, %s, %s, %s" % (MF, acc, vr(oa[j] + 4 * uf, 4), vr(ob[j] + 4 * uw, 4), acc))
            if fill: fill.pop(0)()
        for f in fill: f()
    TCHK = E("TCHK", 17)
    OLAG = E("OLAG", 5)
    want = []
    for j in range(8): want += ([("a", j)] if j >= NOA else []) + [("b", j)]
    issued_at = {}; jo = 0
    def take(t, limit):
        out = []
        while want and free and free[0][0] < t and len(out) < limit:
            kind, j = want[0]
            if kind == "b" and t < TCHK:
                nxt = [w_ for w_ in want if w_[0] == "a"]
                if not nxt: break
                kind, j = nxt[0]
            want.remove((kind, j))
            reg = free.pop(0)[1]
            if kind == "a": oa[j] = reg; out += oa_parts(j)
            else: ob[j] = reg; out += ob_parts(j); issued_at[j] = t
        return out
    for t in range(28):
        if ONLY2 and t in (4, 8, 12, 16): stamp(a, 2 + t // 4)
        if FINE4 and got[0] <= G4 and (t + LK) // 4 + 1 > got[0]:
            got[0] += 1
            assert t < TCHK - 5
            f4_check("f4", got[0] if got[0] <= G4 else None)
            if got[0] <= G4: f4_load("f4")
        fill = s2.loop_fill(t, 40)
        if t == TCHK - 5:
            fill.append(lambda: a.vmem("buffer_load_dword v%d, v%d, s[32:35], s68 offen sc1" % (G.VT, G.VZ), "s2"))
        if t == TCHK:
            a.wait(vm="s2")
            a("v_readfirstlane_b32 s62, v%d" % G.VT)
            a("s_cmp_lg_u32 s62, 0")
            a("s_cbranch_scc1 G_S2_OK")
            if not E("FAKEA", 0): poll(a, WS, "s68", G.VZ, G.VT, sleep=2, keep=True)
            a.label("G_S2_OK")
            stamp(a, 12)
        fill += take(t, 4)
        s2.step(t, False, fill)
        if jo in issued_at and issued_at[jo] + OLAG <= t:
            ostep(jo, take(t + 1, 4))
            free.append((t + 1, oa[jo])); free.append((t + 1, ob[jo])); free.sort()
            jo += 1
    assert s2.nr == 28
    if ONLY2: stamp(a, 7)
    for f in take(99, 99): f()
    assert not want
    while jo < 8 - TAILM: ostep(jo, []); jo += 1
    tail2 = []
    while jo < 8:
        a.wait(vm=["oa%d" % jo, "ob%d" % jo])
        tail2.append(lambda n, j=jo: (vr(oa[j] + 4 * (n & 1), 4), vr(ob[j] + 4 * (n >> 1), 4)))
        jo += 1
    if ONLY2: stamp(a, 8)
    g_reduce_write(a, tail=tail2)
    g_reduce_add(a)
    for r in range(8): a("v_cvt_pk_bf16_f32 v%d, v%d, v%d" % (32 + r, 2 * r, 2 * r + 1))
    a("s_nop 1")
    for i in range(2):
        a("v_permlane32_swap_b32 v%d, v%d" % (32 + 4 * i, 34 + 4 * i))
        a("v_permlane32_swap_b32 v%d, v%d" % (33 + 4 * i, 35 + 4 * i))
    for i in range(2): a("buffer_store_dwordx4 %s, v%d, s[20:23], 0 offen offset:%d %s" % (vr(32 + 4 * i, 4), G.VX, 32 * i, OUTPOL))
    stamp_flush(a, 13, 60, "G")

HEADER = open("cdna_kernels/%s.s.ref" % NAME).read().split("; Override launch geometry")[0]

def main(path):
    a = Asm()
    a.label(KNAME)
    a("s_cmp_ge_u32 s2, 512")
    a("s_cbranch_scc1 K_END")
    stamp(a, 0)
    a("""
    s_load_dwordx8 s[4:11], s[0:1], 0
    s_load_dwordx4 s[28:31], s[0:1], 80
    s_load_dwordx4 s[40:43], s[0:1], 40
    s_load_dwordx4 s[52:55], s[0:1], 56
    s_load_dwordx2 s[12:13], s[0:1], 72
    v_lshrrev_b32 v1, 6, v0
    s_and_b32 s56, s2, 7
    v_readfirstlane_b32 s14, v1
    s_bfe_u32 s57, s2, 0x50003
    s_cmp_lt_u32 s2, 256
    s_cbranch_scc1 ROLE_A
    s_cmp_ge_u32 s57, 28
    s_cbranch_scc1 K_P
    s_cmp_lg_u32 s56, 7
    s_cbranch_scc1 ROLE_G
    s_add_u32 s36, s57, 32
    s_lshl_b32 s37, s57, 2
    s_add_u32 s37, s37, s14
    s_cmp_lt_u32 s37, 83
    s_cbranch_scc1 ROLE_P
    s_cmp_lg_u32 s14, 3
    s_cbranch_scc1 ROLE_P
    s_sub_u32 s37, 27, s57
    s_lshl_b32 s38, s37, 14
    v_and_b32 v6, 63, v0
    v_lshlrev_b32 v6, 8, v6
    v_add_u32 v6, {SYA}, v6
    v_add_u32 v6, s38, v6
    v_mov_b32 v7, 0
    s_waitcnt lgkmcnt(0)
    global_store_dword v6, v7, s[30:31] sc1
    s_cmp_lg_u32 s37, 0
    s_cbranch_scc1 ROLE_P
    s_mov_b32 s62, 1
    s_waitcnt vmcnt(0)
    s_atomic_add s62, s[28:29], 0x0
    s_branch ROLE_P
    K_P:
    s_sub_u32 s36, s2, 480
    s_branch ROLE_P
    """.format(SYA=hex(SYNC_OFF + WSBASE)))
    n0 = len(a.lines)
    role_a(a)
    n1 = len(a.lines)
    role_g(a)
    if GTOP:
        n2 = a.lines.index("G_SETUP:")
        head = a.lines[n1:n2] + ["    s_branch G_SETUP"]
        if GTOP == 1: a.lines = a.lines[:n0] + head + a.lines[n0:n1] + a.lines[n2:]
        else:
            k = n0 + next(i for i, l in enumerate(a.lines[n0:n1]) if "global_load_dwordx4 v[12:15]" in l) + 1
            a.lines = a.lines[:k] + ["    s_branch A_CONT"] + head + ["A_CONT:"] + a.lines[k:n1] + a.lines[n2:]
    a.label("K_END")
    a("s_endpgm")
    a.vm.clear(); a.lg.clear()
    a.label("ROLE_P")
    if ONLY2 or ONLYG:
        a("s_cmp_lt_u32 s57, 28")
        a("s_cbranch_scc1 ROLE_G")
        a("s_endpgm")
    a("""
    s_mov_b32 s66, s36
    s_lshl_b32 s36, s36, 2
    s_add_u32 s36, s36, s14
    REMAP
    v_and_b32 v1, 63, v0
    v_lshrrev_b32 v2, 3, v1
    v_and_b32 v3, 7, v1
    v_lshlrev_b32 v3, 4, v3
    v_mov_b32 v4, {BIG}
    s_mov_b64 s[64:65], -1
    s_mov_b32 s19, 0x20000
    s_lshl_b32 s49, s14, 13
    s_cmp_ge_u32 s36, 147
    s_cbranch_scc1 P_J2
    s_mul_i32 s37, s36, 3121
    s_lshr_b32 s37, s37, 16
    s_mul_i32 s38, s37, 21
    s_sub_u32 s38, s36, s38
    s_mul_i32 s20, s37, 172032
    s_lshl_b32 s39, s38, 7
    s_add_u32 s20, s20, s39
    s_add_u32 s21, s20, 43008
    s_add_u32 s22, s21, 43008
    s_add_u32 s23, s22, 43008
    s_movk_i32 s50, 2688
    s_mov_b32 s18, {WSZ}
    s_mov_b32 s51, 8
    s_waitcnt lgkmcnt(0)
    s_mov_b32 s16, s6
    s_and_b32 s17, s7, 0xffff
    s_branch P_LD
    P_J2:
    s_mov_b32 s51, 4
    s_cmp_ge_u32 s36, 203
    s_cbranch_scc1 P_J3
    s_sub_u32 s37, s36, 147
    s_and_b32 s38, s37, 7
    s_lshr_b32 s37, s37, 3
    s_mul_i32 s20, s38, 50176
    s_lshl_b32 s39, s37, 7
    s_add_u32 s20, s20, s39
    s_add_u32 s21, s20, 14336
    s_add_u32 s22, s20, 25088
    s_add_u32 s23, s20, 39424
    s_movk_i32 s50, 896
    s_mov_b32 s18, {OSZ}
    s_waitcnt lgkmcnt(0)
    s_mov_b32 s16, s10
    s_and_b32 s17, s11, 0xffff
    s_branch P_LD
    P_J3:
    s_sub_u32 s38, s36, 203
    s_mul_i32 s20, s38, 3136
    s_add_u32 s21, s20, 896
    s_add_u32 s22, s20, 1568
    s_add_u32 s23, s20, 2464
    s_movk_i32 s50, 56
    s_cmp_lt_u32 s38, 8
    s_cselect_b32 s18, 25088, 0
    s_waitcnt lgkmcnt(0)
    s_mov_b32 s16, s8
    s_and_b32 s17, s9, 0xffff
    P_LD:
    v_mul_lo_u32 v8, v2, s50
    s_lshl_b32 s39, s50, 3
    v_add_u32 v8, v8, v3
    v_cmp_gt_u32 vcc, s51, v2
    v_add_u32 v9, s39, v8
    s_mov_b32 m0, s49
    v_cndmask_b32 v10, v4, v9, vcc
    """.format(BIG=hex(BIG), WSZ=448 * 2688, OSZ=448 * 896).replace("REMAP", """
    s_cmp_ge_u32 s36, 98
    s_cbranch_scc1 P_M2
    s_mul_i32 s37, s36, 4682
    s_lshr_b32 s37, s37, 16
    s_mul_i32 s37, s37, 7
    s_add_u32 s36, s36, s37
    s_add_u32 s36, s36, 7
    s_branch P_M9
    P_M2:
    s_cmp_ge_u32 s36, 108
    s_cbranch_scc1 P_M3
    s_add_u32 s36, s36, 105
    s_branch P_M9
    P_M3:
    s_waitcnt lgkmcnt(0)
    s_mov_b32 s44, s28
    s_and_b32 s45, s29, 0xffff
    s_mov_b32 s46, 256
    s_mov_b32 s47, 0x20000
    v_mov_b32 v5, 0
    s_movk_i32 s58, 0x80
    s_mov_b32 s60, 0
    P_MW:
    buffer_load_dword v4, v5, s[44:47], s58 offen sc1
    s_add_u32 s60, s60, 1
    s_waitcnt vmcnt(0)
    v_readfirstlane_b32 s61, v4
    s_cmp_lg_u32 s61, 0
    s_cbranch_scc1 P_MD
    s_sleep 8
    s_cmp_lt_u32 s60, 0x40000
    s_cbranch_scc1 P_MW
    P_MD:
    s_setprio 3
    s_sub_u32 s36, s36, 108
    s_cmp_ge_u32 s36, 49
    s_cbranch_scc1 P_M4
    s_mul_i32 s37, s36, 37
    s_lshr_b32 s37, s37, 8
    s_mul_i32 s37, s37, 14
    s_add_u32 s36, s36, s37
    s_branch P_M9
    P_M4:
    s_add_u32 s36, s36, 98
    s_cmp_ge_u32 s36, 203
    s_cselect_b32 s36, 239, s36
    P_M9:
    """ if TWO else ""))
    stamp(a, 2)
    for u in range(4):
        a.vmem("buffer_load_dwordx4 v8, s[16:19], s%d offen nt lds" % (20 + u), "u%d" % u)
        a("s_add_u32 m0, s49, %d" % (u * 2048 + 1024))
        a("s_nop 0")
        a.vmem("buffer_load_dwordx4 v%d, s[16:19], s%d offen nt lds" % (10 if u % 2 else 9, 20 + u), "u%d" % u)
        if u < 3:
            a("s_add_u32 m0, s49, %d" % (u * 2048 + 2048))
            a("s_nop 0")
    def code_pf():
        a("""
        s_cmp_lt_u32 s57, 28
        s_cbranch_scc1 P_NOCODE
        s_getpc_b64 s[60:61]
        K_PC:
        s_sub_u32 s60, s60, K_PC-{K}
        s_subb_u32 s61, s61, 0
        s_and_b32 s58, s57, 3
        s_lshl_b32 s58, s58, 12
        v_lshl_add_u32 v5, v0, 4, s58
        global_load_dwordx4 v[64:67], v5, s[60:61]
        v_add_u32 v5, 0x4000, v5
        v_min_u32 v5, CODE_END-{K}-16, v5
        global_load_dwordx4 v[68:71], v5, s[60:61]
        P_NOCODE:
        """.format(K=KNAME))
    if E("CODEPF", 1) == 1: code_pf()
    ws_base(a)
    srd(a, WS, 30, hex(WS_USED))
    srd(a, DBG, 28, "256")
    a("""
    v_mov_b32 v5, 0
    v_bfe_u32 v13, v1, 2, 2
    v_lshlrev_b32 v13, 7, v13
    v_lshrrev_b32 v14, 4, v1
    v_lshl_add_u32 v13, v14, 5, v13
    v_and_b32 v14, 3, v1
    v_lshl_add_u32 v13, v14, 3, v13
    v_add_u32 v13, s49, v13
    s_cmp_ge_u32 s36, 147
    s_cbranch_scc1 P_D2
    s_mul_i32 s39, s38, 37
    s_lshr_b32 s39, s39, 8
    s_mul_i32 s48, s39, 7
    s_sub_u32 s48, s38, s48
    s_lshl_b32 s48, s48, 6
    v_add_u32 v6, s48, v1
    v_mul_u32_u24 v7, 2341, v6
    v_lshrrev_b32 v7, 16, v7
    v_mul_u32_u24 v11, 28, v7
    v_sub_u32 v11, v6, v11
    v_lshlrev_b32 v11, 4, v11
    v_mul_u32_u24 v7, {WPH}, v7
    v_add_u32 v11, v11, v7
    v_add_u32 v12, 448, v11
    s_cmp_eq_u32 s39, 0
    s_cselect_b32 s48, 1, 2
    s_mul_i32 s48, s48, 896
    s_mul_i32 s24, s39, 896
    s_sub_u32 s24, s24, 896
    s_cmp_eq_u32 s39, 0
    s_cselect_b32 s24, {WPQ}, s24
    s_lshl_b32 s37, s37, 2
    s_mul_i32 s37, s37, s48
    s_add_u32 s24, s24, s37
    s_add_u32 s24, s24, {WPO}
    s_add_u32 s25, s24, s48
    s_add_u32 s26, s25, s48
    s_add_u32 s27, s26, s48
    v_add_u32 v14, 512, v13
    v_add_u32 v15, 1024, v13
    s_branch P_ST
    P_D2:
    v_add_u32 v14, 1024, v13
    v_add_u32 v15, 512, v13
    v_lshrrev_b32 v6, 5, v1
    v_and_b32 v7, 31, v1
    v_lshlrev_b32 v11, 4, v7
    s_cmp_ge_u32 s36, 203
    s_cbranch_scc1 P_D3
    v_lshl_add_u32 v11, v6, 10, v11
    v_add_u32 v12, 512, v11
    s_mul_i32 s24, s37, {UPG}
    s_lshl_b32 s39, s38, 13
    s_add_u32 s24, s24, s39
    s_add_u32 s24, s24, {OB}
    s_add_u32 s25, s24, 2048
    s_add_u32 s26, s24, 4096
    s_add_u32 s27, s24, 6144
    s_branch P_ST
    P_D3:
    v_mul_u32_u24 v6, 0x7f0000, v6
    v_lshl_add_u32 v11, v6, 4, v11
    v_add_u32 v12, 512, v11
    s_mul_i32 s24, s38, {WPH2}
    s_add_u32 s24, s24, {PHB}
    s_cmp_lt_u32 s38, 8
    s_cselect_b32 s24, s24, 0x08000000
    s_add_u32 s25, s24, 1024
    s_add_u32 s26, s24, {WPH}
    s_add_u32 s27, s26, 1024
    s_mov_b32 s64, 0x0fffffff
    P_ST:
    """.format(WPH=WP_H, WPQ=WP_Q, WPO=hex(WP_OFF), UPG=UP_G, OB=hex(UP_OFF + 112 * 2048), WPH2=2 * WP_H, PHB=hex(WP_OFF + WP_PHI)))
    stamp(a, 3)
    for u in range(4):
        b = 16 + 8 * u
        a.wait(vm="u%d" % u)
        a.ds("ds_read_b64_tr_b16 %s, v13 offset:%d" % (vr(b, 2), u * 2048), "t%d" % u)
        a.ds("ds_read_b64_tr_b16 %s, v14 offset:%d" % (vr(b + 2, 2), u * 2048), "t%d" % u)
        a.ds("ds_read_b64_tr_b16 %s, v15 offset:%d" % (vr(b + 4, 2), u * 2048), "t%d" % u)
        a.ds("ds_read_b64_tr_b16 %s, v13 offset:%d" % (vr(b + 6, 2), u * 2048 + 1536), "t%d" % u)
    stamp(a, 4)
    for u in range(4):
        b = 16 + 8 * u
        a.wait(lg="t%d" % u)
        for r in range(8): a("v_cndmask_b32 v%d, 0, v%d, s[64:65]" % (b + r, b + r))
        a.vmem("buffer_store_dwordx4 %s, v11, s[32:35], s%d offen sc1" % (vr(b, 4), 24 + u))
        a.vmem("buffer_store_dwordx4 %s, v12, s[32:35], s%d offen sc1" % (vr(b + 4, 4), 24 + u))
    a.vmem("buffer_load_dword v4, v5, s[44:47], 0 offen sc1")
    stamp(a, 5)
    a.drain()
    stamp(a, 6)
    a("s_barrier")
    a("s_cmp_lg_u32 s14, 0")
    a("s_cbranch_scc1 P_NOARR")
    a("v_readfirstlane_b32 s61, v4")
    a("s_cmp_lg_u32 s61, 0")
    a("s_cbranch_scc1 P_RDY")
    poll(a, DBG, "0", 5, 4)
    a.label("P_RDY")
    assert SV_REL - SV_CNT == SW_REL - SW_CNT
    a("s_mov_b32 s20, %s" % hex(SYNC_OFF + SW_CNT * SL))
    a("s_mov_b32 s21, 59")
    if TWO:
        a("s_cmp_lt_u32 s66, 27")
        a("s_cselect_b32 s21, 26, 32")
        a("s_cselect_b32 s22, 0, %d" % ((SV_CNT - SW_CNT) * SL))
        a("s_add_u32 s20, s20, s22")
    arrive_issue(a, "s20")
    a.drain(vm=False)
    a("s_cmp_lg_u32 s62, s21")
    a("s_cbranch_scc1 P_NOARR")
    a("s_mov_b32 s62, 1")
    for i in range(8): a("s_atomic_add s62, s[30:31], s20 offset:%d" % ((SW_REL - SW_CNT + i) * SL))
    a.label("P_NOARR")
    if WSBASE:
        a("s_sub_u32 s30, s30, %s" % hex(WSBASE))
        a("s_subb_u32 s31, s31, 0")
    a("s_cmp_lt_u32 s57, 28")
    a("s_cbranch_scc1 ROLE_G")
    stamp(a, 1)
    if ONLYA or not E("PON", 1): a("s_endpgm")
    a("""
    s_and_b32 s36, s57, 3
    s_lshl_b32 s37, s56, 2
    s_add_u32 s37, s37, s36
    s_lshl_b32 s37, s37, 7
    s_mul_i32 s58, s14, {W64}
    s_add_u32 s58, s58, s37
    s_add_u32 s58, s58, {R0}
    s_cmp_eq_u32 s56, 7
    s_cselect_b32 s58, 0x08000000, s58
    v_mul_u32_u24 v6, 3584, v2
    v_add_u32 v6, v6, v3
    """.format(W64=64 * 3584, R0=1792 * 3584))
    srd(a, 16, 40, str(2048 * 3584))
    for i in range(0 if HELP else 8):
        a("buffer_load_dwordx4 %s, v6, s[16:19], s58 offen nt" % vr(16 + 4 * i, 4))
        a("s_add_u32 s58, s58, %d" % (8 * 3584))
    a("""
    s_lshl_b32 s36, s36, 2
    s_add_u32 s36, s36, s14
    v_lshrrev_b32 v2, 5, v1
    v_lshlrev_b32 v2, 12, v2
    v_and_b32 v3, 31, v1
    v_lshl_add_u32 v2, v3, 4, v2
    s_lshl_b32 s58, s56, 9
    v_add_u32 v2, s58, v2
    v_lshlrev_b32 v1, 4, v1
    v_mov_b32 v3, 0
    s_mul_i32 s37, s56, 229376
    """)
    srd(a, 24, 52, str(1792 * 4096))
    srd(a, 16, 4, "229376", add="s37")
    PD = E("PDEPTH", 8)
    a("s_setprio %d" % E("PRIO_P", 0))
    def pf_loop(lbl, srdn, vaddr, step, limit, pol):
        a.label(lbl)
        for i in range(8):
            a("s_waitcnt vmcnt(%d)" % (PD - 1))
            a("buffer_load_dwordx4 %s, v%d, s[%d:%d], s58 offen %s" % (vr(8 + 4 * i, 4), vaddr, srdn, srdn + 3, pol))
            a("s_add_u32 s58, s58, %d" % step)
        a("s_cmp_lt_u32 s58, %s" % limit)
        a("s_cbranch_scc1 %s" % lbl)
    def blk8k(sreg):
        a("s_waitcnt vmcnt(4)")
        for i in range(4): a("buffer_load_dwordx4 %s, v1, s[32:35], %s offen offset:%d sc1" % (vr(8 + 4 * i, 4), sreg, i * 1024))
        a("s_add_u32 s63, %s, 4096" % sreg)
        a("s_waitcnt vmcnt(4)")
        for i in range(4): a("buffer_load_dwordx4 %s, v1, s[32:35], s63 offen offset:%d sc1" % (vr(24 + 4 * i, 4), i * 1024))
    def tail_groups(lbl, base, gstride, n, with7, flag):
        a("s_and_b32 s48, s57, 3")
        a.label(lbl)
        if flag is not None:
            a("s_lshl_b32 s58, s48, 8")
            a("s_add_u32 s58, s58, %s" % hex(flag))
            poll(a, WS, "s58", 3, 4, sleep=4)
        a("s_mul_i32 s49, s48, %d" % gstride)
        a("s_lshl_b32 s50, s14, 13")
        a("s_add_u32 s49, s49, s50")
        a("s_add_u32 s49, s49, %s" % hex(base))
        for q in range(n):
            if with7 and q == n - 1: a("s_add_u32 s51, s49, %d" % (7 * 32768))
            else:
                back = n - (1 if with7 else 0) - q
                a("s_add_u32 s51, s48, %d" % (7 - back))
                a("s_sub_u32 s50, s51, 7")
                a("s_cselect_b32 s51, s51, s50")
                a("s_lshl_b32 s51, s51, 15")
                a("s_add_u32 s51, s51, s49")
            blk8k("s51")
        a("s_add_u32 s48, s48, 4")
        a("s_cmp_lt_u32 s48, 7")
        a("s_cbranch_scc1 %s" % lbl)
    def wait_s0():
        a("s_movk_i32 s58, 0x80")
        poll(a, DBG, "s58", 3, 4, sleep=8)
    def pf_wo():
        a("s_lshl_b32 s58, s36, 12")
        a("s_add_u32 s58, s58, %s" % hex(UP_OFF + 112 * 2048))
        for g_ in range(7):
            a("s_waitcnt vmcnt(4)")
            for i in range(4): a("buffer_load_dwordx4 %s, v1, s[32:35], s58 offen offset:%d sc1" % (vr(8 + 16 * (g_ % 2) + 4 * i, 4), i * 1024))
            a("s_add_u32 s58, s58, %d" % UP_G)
    if not E("PEARLY", 0): wait_s0()
    stamp(a, 2)
    a("s_lshl_b32 s58, s36, 13")
    pf_loop("P_W2", 24, 2, 16 * 8192, str(E("PFA", 1024) * 4096), PFPOL)
    stamp(a, 3)
    a("s_mov_b32 s48, s58")
    if E("PWO", 2) == 1: pf_wo()
    a("s_lshl_b32 s58, s36, 10")
    if E("PX", 1): pf_loop("P_X", 16, 1, 16 * 1024, "229376", PFPOL)
    stamp(a, 4)
    a("s_mov_b32 s58, s48")
    if E("PTAIL", 1): pf_loop("P_W3", 24, 2, 16 * 8192, str(1792 * 4096), PFPOL)
    stamp(a, 5)
    if E("PEARLY", 0): wait_s0()
    if E("PWO", 2) == 2: pf_wo()
    if E("NUT", 0): tail_groups("P_UT", UP_OFF, UP_G, E("NUT", 0), False, SYNC_OFF + S4_REL * SL)
    if E("POF", 0):
        a("s_and_b32 s48, s57, 3")
        a("s_lshl_b32 s49, s56, 2")
        a("s_add_u32 s48, s48, s49")
        a("s_lshl_b32 s58, s48, 8")
        a("s_add_u32 s58, s58, %s" % hex(SYNC_OFF + S2_REL * SL))
        poll(a, WS, "s58", 3, 4, sleep=4)
        a("s_lshl_b32 s51, s48, 16")
        a("s_lshl_b32 s50, s14, 14")
        a("s_add_u32 s51, s51, s50")
        a("s_add_u32 s51, s51, %s" % hex(OF_OFF))
        blk8k("s51")
        a("s_add_u32 s51, s51, 8192")
        blk8k("s51")
    if STAMP == 1: stamp_flush(a, 7, 60)
    a("s_endpgm")
    a.label("CODE_END")
    if DIAG:
        out = HEADER + "; @launch kernel=%s grid=(512,1,1) block=(256,1,1) lds=81920\n; @launch kernel=diag_kernel grid=(1,1,1) block=(64,1,1) lds=0\n" % KNAME
        a.lines += [".globl diag_kernel", ".p2align 8", ".type diag_kernel,@function"]
        a("""
        diag_kernel:
        s_cmp_lg_u32 s2, 0
        s_cbranch_scc1 DG_END
        s_load_dwordx2 s[4:5], s[0:1], 80
        s_waitcnt lgkmcnt(0)
        s_sub_u32 s4, s4, 512
        s_subb_u32 s5, s5, 0
        s_load_dwordx2 s[6:7], s[4:5], 128
        s_memrealtime s[8:9]
        s_waitcnt lgkmcnt(0)
        s_not_b32 s6, s6
        s_sub_u32 s6, s7, s6
        s_min_u32 s6, s6, 10000
        s_mul_i32 s6, s6, %d
        DG_L:
        s_memrealtime s[10:11]
        s_waitcnt lgkmcnt(0)
        s_sub_u32 s10, s10, s8
        s_cmp_lt_u32 s10, s6
        s_cbranch_scc1 DG_L
        DG_END:
        s_endpgm
        """ % E("AMP", 10))
    else:
        out = HEADER + "; @launch grid=(512,1,1) block=(256,1,1) lds=81920\n"
    out += '.amdgcn_target "amdgcn-amd-amdhsa--gfx950"\n.text\n.globl %s\n.p2align 8\n.type %s,@function\n' % (KNAME, KNAME)
    out += a.text()
    out += """.section .rodata,"a"
.p2align 6
.amdhsa_kernel {n}
  .amdhsa_next_free_vgpr 256
  .amdhsa_next_free_sgpr {s}
  .amdhsa_accum_offset 256
  .amdhsa_group_segment_fixed_size 0
  .amdhsa_kernarg_size 96
  .amdhsa_user_sgpr_count 2
  .amdhsa_user_sgpr_kernarg_segment_ptr 1
  .amdhsa_system_sgpr_workgroup_id_x 1
  .amdhsa_float_denorm_mode_32 3
.end_amdhsa_kernel
""".format(n=KNAME, s=100 if STAMP else 72)
    if DIAG:
        out += """.p2align 6
.amdhsa_kernel diag_kernel
  .amdhsa_next_free_vgpr 8
  .amdhsa_next_free_sgpr 32
  .amdhsa_accum_offset 8
  .amdhsa_group_segment_fixed_size 0
  .amdhsa_kernarg_size 96
  .amdhsa_user_sgpr_count 2
  .amdhsa_user_sgpr_kernarg_segment_ptr 1
  .amdhsa_system_sgpr_workgroup_id_x 1
.end_amdhsa_kernel
"""
    if E("NONT", 1):
        import re
        out = re.sub(r" nt$", "", out, flags=re.M).replace(" nt lds", " lds")
    open(path, "w").write(out)

if __name__ == "__main__":
    main(sys.argv[1])
```

```python
import sys, struct, os

NAME = "parallel_sum__linear_kernel_hedgehog__mixer_token_mlp__prompt"
KNAME = NAME + "_kernel"
E = lambda k, d: int(os.environ.get(k, str(d)))

XN_OFF   = 0x000000
HT_OFF   = 0x200000
HT_G     = 128 * 2048
WP_OFF   = 0x400000
WP_Q     = 28 * 1792
WP_PHI   = 28 * 2688
WP_H     = WP_PHI + 2048 + 512
UP_OFF   = 0x600000
UP_G     = 144 * 2048
KVF_OFF  = 0x800000
SYNC_OFF = 0x840000
OF_OFF   = 0x900000
KVP_OFF  = 0xB00000
PART_OFF = 0xD00000
WS_USED  = 0x1000000
STAMP_OFF = 0xF00000
BIG      = 0x7ff00000
SL = 256
SX_CNT, SX_REL = 0, 16
SW_CNT, SW_REL = 32, 48
S1_CNT, S1_REL = 64, 80
SV_CNT, SV_REL = 96, 112
S2_CNT, S2_REL = 128, 160
S4_CNT, S4_REL = 192, 200
SA_ROOT = 60
SA_REP = 208
SH_REL = 224
F4 = 256
F1 = 512
NSYNC = 768
DF1 = E("DF1", 0)
SPIN_MAX = 0x40000

STAMP = E("STAMP", 0); PRIO_A = E("PRIO_A", 2); PRIO_G = E("PRIO_G", 1); AHEAD = E("AHEAD", 4); W2START = E("W2START", 32)
NB, NF, NS = E("NB", 16), E("NF", 5), 10
LEAD = E("LEAD", 0)
XPRE = E("XPRE", 12)
PSL = E("PSL", 1)
WDMA1 = E("WDMA1", 3)
WPRE = E("WPRE", 4)
NOPK = E("NOPK", 0)
NOA = E("NOA", 0)
TWO = E("TWO", 0)
GTOP = E("GTOP", 2)
TAILM = E("TAILM", 3)
FINE4 = E("FINE4", 1)
FLOOK = E("FLOOK", 7)
HELP = E("HELP", 0)
NK1 = 28 if HELP else 32
NB2 = NB - NOA
ROT2 = E("ROT2", 1)
INL0 = E("INL0", 18)
INLN = E("INLN", 0)
INLP = E("INLP", 1)
WPUMP = E("WPUMP", 0)
AHEAD2 = E("AHEAD2", 5)
PFW2 = E("PFW2", 0)
PRIO_Q = E("PRIO_Q", 0)
PRIO_K = E("PRIO_K", 2)
JOBLATE = E("JOBLATE", 1)
BURST = E("BURST", 4)
PFPOL = os.environ.get("PFPOL", "")
NP = E("NP", 0)
AHEAD0 = E("AHEAD0", 5)
ALOOK = E("ALOOK", 99)
W2POL = os.environ.get("W2POL", "")
W1POL2 = os.environ.get("W1POL2", "")
RESEARLY = E("RESEARLY", 0)
WSBASE = E("WSBASE", 0)
ONLY2 = E("ONLY2", 0)
ONLYG = E("ONLYG", 0)
ONLYA = E("ONLYA", 0)
GWAIT = E("GWAIT", 0)
PFWAIT = E("PFWAIT", 0)
OUTPOL = os.environ.get("OUTPOL", "")

def f32(x): return "0x%08x" % struct.unpack("<I", struct.pack("<f", x))[0]

class Q:
    def __init__(self, mx): self.ops = []; self.mx = mx
    def issue(self, tag): self.ops.append(tag)
    def need(self, tags):
        if not isinstance(tags, (list, tuple, set)): tags = [tags]
        idx = -1
        for i, t in enumerate(self.ops):
            if t in tags: idx = i
        if idx < 0: return None
        n = len(self.ops) - 1 - idx
        if n > self.mx: return self.mx
        self.ops = self.ops[idx + 1:]
        return n
    def clear(self): self.ops = []

class Asm:
    def __init__(self):
        self.lines = []; self.vm = Q(63); self.lg = Q(15); self.uid = 0; self.issued = []; self.spr = []; self.pending = False
    def sprinkle(self, fns, gap): self.spr = fns; self.gap = gap; self.cnt = 0
    def sprinkle_flush(self):
        fns, self.spr = self.spr, []
        for f in fns: f()
    def __call__(self, s):
        for l in s.strip().split("\n"):
            l = l.strip()
            if l.endswith(":"): self.lines.append(l)
            elif l: self.lines.append("    " + l)
        if self.spr and s.lstrip().startswith(("v_", "ds_")):
            self.cnt += 1
            if self.cnt >= self.gap:
                self.cnt = 0
                self.spr.pop(0)()
    def label(self, l): self.lines.append(l + ":")
    def vmem(self, s, tag=None): self(s); self.vm.issue(tag); self.issued.append(tag)
    def ds(self, s, tag=None): self(s); self.lg.issue(tag)
    def wait(self, vm=None, lg=None):
        p = []
        for q, t, nm in ((self.vm, vm, "vmcnt"), (self.lg, lg, "lgkmcnt")):
            if t is None: continue
            n = q.need(t)
            if n is None: continue
            if len(q.ops) > n: q.ops = q.ops[len(q.ops) - n:]
            p.append("%s(%d)" % (nm, n))
        if p: self("s_waitcnt " + " ".join(p))
    def drain(self, vm=True, lg=True):
        p = []
        if vm: p.append("vmcnt(0)"); self.vm.clear()
        if lg: p.append("lgkmcnt(0)"); self.lg.clear()
        self("s_waitcnt " + " ".join(p))
    def newlabel(self, p): self.uid += 1; return "%s_%d" % (p, self.uid)
    def text(self): return "\n".join(self.lines) + "\n"

def vr(a, n): return "v[%d:%d]" % (a, a + n - 1)

def srd(a, d, base, size, add=None):
    if add is None:
        a("s_mov_b32 s%d, s%d" % (d, base))
        a("s_and_b32 s%d, s%d, 0xffff" % (d + 1, base + 1))
    else:
        a("s_add_u32 s%d, s%d, %s" % (d, base, add))
        a("s_addc_u32 s%d, s%d, 0" % (d + 1, base + 1))
        a("s_and_b32 s%d, s%d, 0xffff" % (d + 1, d + 1))
    a("s_mov_b32 s%d, %s" % (d + 2, size))
    a("s_mov_b32 s%d, 0x20000" % (d + 3))

WS = 32
DBG = 44

def ws_base(a):
    if WSBASE:
        a("s_add_u32 s30, s30, %s" % hex(WSBASE))
        a("s_addc_u32 s31, s31, 0")

def stamp(a, i):
    if STAMP == 3 and i not in (0, 13): return
    if STAMP:
        a("%s s[%d:%d]" % ("s_memtime" if STAMP == 2 else "s_memrealtime", 70 + 2 * i, 71 + 2 * i))
        a.drain(vm=False)
DIAG = os.environ.get("DIAG", "")
def stamp_flush(a, n, tmp, role=""):
    if not STAMP: return
    a.drain()
    stamp(a, n)
    if DIAG:
        a("s_mov_b64 exec, 1")
        a("v_mov_b32 v%d, 0" % tmp)
        a("s_not_b32 s98, s70")
        a("v_mov_b32 v%d, s98" % (tmp + 1))
        a("buffer_atomic_umax v%d, v%d, s[44:47], 0 offen offset:128 sc1" % (tmp + 1, tmp))
        if DIAG[0] == role:
            a("v_mov_b32 v%d, s%d" % (tmp + 2, 70 + 2 * int(DIAG[1:])))
            a("buffer_atomic_umax v%d, v%d, s[44:47], 0 offen offset:132 sc1" % (tmp + 2, tmp))
        return
    a("s_mov_b64 exec, 1")
    a("s_lshl_b32 s98, s2, 8")
    a("s_lshl_b32 s99, s14, 6")
    a("s_add_u32 s98, s98, s99")
    a("s_add_u32 s98, s98, %s" % hex(STAMP_OFF))
    a("v_mov_b32 v%d, 0" % tmp)
    if STAMP == 3:
        if n == 13:
            a("v_mov_b32 v%d, s70" % (tmp + 1))
            a("v_mov_b32 v%d, s96" % (tmp + 2))
            a("buffer_store_dword v%d, v%d, s[32:35], s98 offen" % (tmp + 1, tmp))
            a("buffer_store_dword v%d, v%d, s[32:35], s98 offen offset:52" % (tmp + 2, tmp))
        return
    for i in range(n + 1):
        a("v_mov_b32 v%d, s%d" % (tmp + 1, 70 + 2 * i))
        a("buffer_store_dword v%d, v%d, s[32:35], s98 offen offset:%d" % (tmp + 1, tmp, 4 * i))
        a("s_waitcnt vmcnt(0)")

def poll(a, srdn, soff, vz, vt, sleep=1, target=1, keep=False):
    if ONLY2 or ONLYG: return
    sv = list(a.vm.ops)
    l = a.newlabel("POLL"); d = a.newlabel("POLLD")
    a("s_mov_b32 s60, 0")
    a("s_mov_b64 exec, 1")
    a.label(l)
    a("buffer_load_dword v%d, v%d, s[%d:%d], %s offen sc1" % (vt, vz, srdn, srdn + 3, soff))
    a("s_add_u32 s60, s60, 1")
    a.drain(lg=False)
    a("v_readfirstlane_b32 s61, v%d" % vt)
    a("s_cmp_ge_u32 s61, %d" % target)
    a("s_cbranch_scc1 %s" % d)
    if sleep: a("s_sleep %d" % sleep)
    a("s_cmp_lt_u32 s60, %s" % hex(SPIN_MAX))
    a("s_cbranch_scc1 %s" % l)
    a.label(d)
    a("s_mov_b64 exec, -1")
    if keep: a.vm.ops = sv

def arrive_issue(a, soff):
    a("s_mov_b32 s62, 1")
    a("s_atomic_add s62, s[30:31], %s glc" % soff)
def arrive_finish(a, last, srels, skip):
    a.drain(vm=False)
    a("s_cmp_lg_u32 s62, %d" % last)
    a("s_cbranch_scc1 %s" % skip)
    a("s_mov_b32 s62, 1")
    for r in srels: a("s_atomic_add s62, s[30:31], %s" % r)

def flag_issue(a, srdn, soff, vz, vt, tag):
    if ONLY2 or ONLYG: return
    a.vmem("buffer_load_dword v%d, v%d, s[%d:%d], %s offen sc1" % (vt, vz, srdn, srdn + 3, soff), tag)
def flag_check(a, srdn, soff, vz, vt, tag, sleep):
    if ONLY2 or ONLYG: return
    ok = a.newlabel("FLAG")
    a.wait(vm=tag)
    a("v_readfirstlane_b32 s61, v%d" % vt)
    a("s_cmp_lg_u32 s61, 0")
    a("s_cbranch_scc1 %s" % ok)
    poll(a, srdn, soff, vz, vt, sleep=sleep, keep=True)
    a.label(ok)

def multi_load(a, n, soff, vaddr, vt, tag):
    if n == 32:
        a("s_mov_b32 exec_hi, 0")
    else: a("s_mov_b64 exec, %s" % hex((1 << n) - 1))
    a.vmem("buffer_load_dword v%d, v%d, s[32:35], %s offen sc1" % (vt, vaddr, soff), tag)
    a("s_mov_b64 exec, -1")
def multi_check(a, n, soff, vaddr, vt, tag, sleep):
    l = a.newlabel("MF"); d = a.newlabel("MFD")
    a.wait(vm=tag)
    sv = list(a.vm.ops)
    a("s_mov_b32 s60, 0")
    a.label(l)
    a("v_cmp_ne_u32 vcc, 0, v%d" % vt)
    if n < 32: a("s_or_b32 vcc_lo, vcc_lo, %s" % hex(0xffffffff ^ ((1 << n) - 1)))
    a("s_cmp_eq_u32 vcc_lo, -1")
    a("s_cbranch_scc1 %s" % d)
    a("s_sleep %d" % sleep)
    multi_load(a, n, soff, vaddr, vt, tag)
    a("s_add_u32 s60, s60, 1")
    a.drain(lg=False)
    a("s_cmp_lt_u32 s60, %s" % hex(SPIN_MAX))
    a("s_cbranch_scc1 %s" % l)
    a.label(d)
    a.vm.ops = sv

def arrive(a, soff):
    a("s_mov_b32 s62, 1")
    a("s_atomic_add s62, s[30:31], %s" % soff)

def round_bf16(a, d, s):
    a("v_cvt_pk_bf16_f32 v%d, v%d, v%d" % (d, s, s))
    a("v_lshlrev_b32 v%d, 16, v%d" % (d, d))

def half_reduce(a, regs, tmps):
    steps = ["quad_perm:[1,0,3,2] row_mask:0xf bank_mask:0xf", "quad_perm:[2,3,0,1] row_mask:0xf bank_mask:0xf",
             "row_half_mirror row_mask:0xf bank_mask:0xf", "row_mirror row_mask:0xf bank_mask:0xf"]
    for st in steps:
        a("s_nop %d" % (1 if len(regs) == 1 else 0))
        for r in regs: a("v_add_f32_dpp v%d, v%d, v%d %s" % (r, r, r, st))
    for r, t in zip(regs, tmps): a("v_mov_b32 v%d, v%d" % (t, r))
    a("s_nop 1")
    for r, t in zip(regs, tmps): a("v_permlane16_swap_b32 v%d, v%d" % (r, t))
    a("s_nop 0")
    for r, t in zip(regs, tmps): a("v_add_f32 v%d, v%d, v%d" % (r, r, t))

MF = "v_mfma_f32_32x32x16_bf16"

def role_a(a):
    LN, VA, VB, VC, VD, VZ, VT, VH = 250, 251, 252, 253, 254, 248, 249, 255
    a.label("ROLE_A")
    if ONLY2 or ONLYG: a("s_endpgm")
    JB = 16384
    a("""
    s_lshr_b32 s38, s56, 1
    s_lshl_b32 s38, s38, 2
    s_and_b32 s39, s57, 3
    s_add_u32 s38, s38, s39
    s_and_b32 s39, s56, 1
    s_lshl_b32 s39, s39, 3
    s_lshr_b32 s57, s57, 2
    s_add_u32 s39, s39, s57
    s_lshl_b32 s15, s38, 4
    s_add_u32 s15, s15, s39
    v_and_b32 v{VC}, 31, v0
    v_lshrrev_b32 v2, 5, v0
    s_mul_i32 s20, s15, 7168
    v_min_u32 v4, 27, v{VC}
    v_mul_u32_u24 v3, 896, v2
    v_lshl_add_u32 v3, v4, 5, v3
    v_add_u32 v4, s20, v3
    s_waitcnt lgkmcnt(0)
    global_load_dwordx4 v[8:11], v4, s[4:5] nt
    global_load_dwordx4 v[12:15], v4, s[4:5] offset:16 nt
    s_mov_b32 s58, 0x0fffffff
    s_mov_b32 s59, 0x0fffffff
    s_setprio {PRIO}
    s_mul_i32 s25, s39, {WPH}
    s_add_u32 s25, s25, {WPO}
    v_and_b32 v{LN}, 63, v0
    v_bfe_u32 v{VH}, v0, 5, 1
    v_mov_b32 v{VZ}, 0
    v_lshlrev_b32 v{VA}, 4, v{LN}
    v_mul_u32_u24 v{VB}, 448, v{VH}
    v_lshl_add_u32 v{VB}, v{VC}, 4, v{VB}
    """.format(VC=VC, SYA=hex(SYNC_OFF + WSBASE), PRIO=PRIO_A, WPH=WP_H, WPO=hex(WP_OFF), LN=LN, VH=VH, VZ=VZ, VA=VA, VB=VB))
    a.vm.issue("x"); a.vm.issue("x")
    ws_base(a)
    srd(a, WS, 30, hex(WS_USED))
    srd(a, DBG, 28, "256")
    P, X, T = 8, 16, 32
    def unpack(dst, src):
        for i in range(8):
            a("v_lshlrev_b32 v%d, 16, v%d" % (dst + 2 * i, src + i))
            a("v_and_b32 v%d, 0xffff0000, v%d" % (dst + 2 * i + 1, src + i))
    def pack(dst, src):
        for i in range(8): a("v_cvt_pk_bf16_f32 v%d, v%d, v%d" % (dst + i, src + 2 * i, src + 2 * i + 1))
    def pksum(dst, src):
        a("v_pk_add_f32 %s, %s, %s" % (vr(dst, 2), vr(src, 2), vr(src + 2, 2)))
        a("v_pk_add_f32 %s, %s, %s" % (vr(dst + 2, 2), vr(src + 4, 2), vr(src + 6, 2)))
        for i in (8, 12):
            a("v_pk_add_f32 %s, %s, %s" % (vr(dst, 2), vr(dst, 2), vr(src + i, 2)))
            a("v_pk_add_f32 %s, %s, %s" % (vr(dst + 2, 2), vr(dst + 2, 2), vr(src + i + 2, 2)))
        a("v_pk_add_f32 %s, %s, %s" % (vr(dst, 2), vr(dst, 2), vr(dst + 2, 2)))
        a("v_add_f32 v%d, v%d, v%d" % (dst, dst, dst + 1))
    def pksq(dst, src):
        a("v_pk_mul_f32 %s, %s, %s" % (vr(dst, 2), vr(src, 2), vr(src, 2)))
        a("v_pk_mul_f32 %s, %s, %s" % (vr(dst + 2, 2), vr(src + 2, 2), vr(src + 2, 2)))
        for i in (4, 8, 12):
            a("v_pk_fma_f32 %s, %s, %s, %s" % (vr(dst, 2), vr(src + i, 2), vr(src + i, 2), vr(dst, 2)))
            a("v_pk_fma_f32 %s, %s, %s, %s" % (vr(dst + 2, 2), vr(src + i + 2, 2), vr(src + i + 2, 2), vr(dst + 2, 2)))
        a("v_pk_add_f32 %s, %s, %s" % (vr(dst, 2), vr(dst, 2), vr(dst + 2, 2)))
        a("v_add_f32 v%d, v%d, v%d" % (dst, dst, dst + 1))
    def pksub(dst, src, m):
        for i in range(0, 16, 2):
            a("v_pk_add_f32 %s, %s, %s op_sel_hi:[1,0] neg_lo:[0,1] neg_hi:[0,1]" % (vr(dst + i, 2), vr(src + i, 2), vr(m, 2)))
    def pkmul(dst, src, m):
        for i in range(0, 16, 2): a("v_pk_mul_f32 %s, %s, %s op_sel_hi:[1,0]" % (vr(dst + i, 2), vr(src + i, 2), vr(m, 2)))
    def scale_from_var(r):
        round_bf16(a, r, r)
        a("v_add_f32 v%d, %s, v%d" % (r, f32(1e-5), r))
        round_bf16(a, r, r)
        a("v_sqrt_f32 v%d, v%d" % (r, r))
        a("s_nop 0")
        round_bf16(a, r, r)
        a("v_rcp_f32 v%d, v%d" % (r, r))
    inv = f32(1.0 / 448.0)
    S, S2, M, RS_, C2, D2 = 72, 76, 80, 82, 84, 86
    HB, HP = 7168, 912
    a("""
    v_lshl_add_u32 v5, v2, 4, v3
    v_bfe_u32 v88, v{LN}, 2, 2
    v_mul_u32_u24 v88, {HP}, v88
    v_lshrrev_b32 v89, 4, v{LN}
    v_lshl_add_u32 v88, v89, 5, v88
    v_and_b32 v89, 3, v{LN}
    v_lshl_add_u32 v88, v89, 3, v88
    s_lshl_b32 s20, s14, 7
    v_add_u32 v88, s20, v88
    v_lshlrev_b32 v92, 10, v{VH}
    v_lshl_add_u32 v92, v{VC}, 4, v92
    v_and_b32 v89, 7, v{LN}
    v_lshrrev_b32 v90, 3, v{LN}
    s_lshl_b32 s20, s14, 3
    v_add_u32 v90, s20, v90
    v_mul_u32_u24 v91, 896, v89
    v_lshl_add_u32 v91, v90, 4, v91
    v_lshlrev_b32 v89, 4, v89
    v_lshl_add_u32 v89, v90, 9, v89
    s_lshr_b32 s20, s15, 2
    s_mul_i32 s20, s20, 28672
    s_and_b32 s21, s15, 3
    s_lshl_b32 s21, s21, 7
    s_add_u32 s20, s20, s21
    s_lshl_b32 s21, s14, 18
    s_lshr_b32 s22, s15, 1
    s_lshl_b32 s22, s22, 11
    s_add_u32 s21, s21, s22
    s_and_b32 s22, s15, 1
    s_lshl_b32 s22, s22, 9
    s_add_u32 s21, s21, s22
    s_add_u32 s21, s21, {HTO}
    s_cmp_eq_u32 s14, 3
    s_cselect_b32 s23, 0x08000000, 0
    s_add_u32 s22, s21, {HG4}
    s_or_b32 s22, s22, s23
    s_add_u32 s24, s20, 16384
    s_or_b32 s24, s24, s23
    s_lshl_b32 s40, s39, 8
    s_add_u32 s40, s40, {SY}
    s_lshl_b32 s41, s38, 8
    s_add_u32 s41, s41, {SY}
    """.format(LN=LN, VH=VH, VC=VC, HP=HP, HG4=4 * HT_G, HTO=hex(HT_OFF), SY=hex(SYNC_OFF)))
    assert XN_OFF == 0 and HT_G == 1 << 18
    stamp(a, 1)
    a.wait(vm="x")
    stamp(a, 2)
    unpack(X, P)
    pksum(S, X)
    a("v_cndmask_b32 v%d, 0, v%d, s[58:59]" % (S, S))
    half_reduce(a, [S], [S + 1])
    a("v_mul_f32 v%d, %s, v%d" % (S, inv, S))
    round_bf16(a, M, S)
    pksub(X, X, M)
    pksq(S2, X)
    a("v_sub_f32 v%d, v%d, v%d" % (S, S, M))
    a("v_cndmask_b32 v%d, 0, v%d, s[58:59]" % (S2, S2))
    half_reduce(a, [S2], [S2 + 1])
    a("v_mul_f32 v%d, %s, v%d" % (S2, inv, S2))
    a("v_fma_f32 v%d, -v%d, v%d, v%d" % (S2, S, S, S2))
    a("v_max_f32 v%d, 0, v%d" % (S2, S2))
    a("v_mov_b32 v%d, v%d" % (RS_, S2))
    scale_from_var(RS_)
    a("s_nop 0")
    a("v_mul_f32 v%d, v%d, v%d" % (C2, S2, RS_))
    a("v_mul_f32 v%d, v%d, v%d" % (D2, S, RS_))
    a("v_mul_f32 v%d, v%d, v%d" % (C2, C2, RS_))
    round_bf16(a, D2, D2)
    pkmul(T, X, RS_)
    scale_from_var(C2)
    pack(P, T)
    a.ds("ds_write_b128 v3, v[8:11]")
    a.ds("ds_write_b128 v3, v[12:15] offset:16")
    a("v_mul_f32 v%d, v%d, v%d" % (D2, D2, C2))
    for i in range(0, 16, 2):
        a("v_pk_fma_f32 %s, %s, %s, %s op_sel_hi:[1,0,0] neg_lo:[0,0,1] neg_hi:[0,0,1]" % (vr(T + i, 2), vr(T + i, 2), vr(C2, 2), vr(D2, 2)))
    pack(X, T)
    a.ds("ds_write_b128 v5, v[16:19] offset:%d" % HB)
    a.ds("ds_write_b128 v5, v[20:23] offset:%d" % (HB + 16))
    stamp(a, 3)
    a.drain(vm=False)
    a("s_barrier")
    a.ds("ds_read_b64_tr_b16 v[28:29], v88 offset:%d" % HB, "h0")
    a.ds("ds_read_b64_tr_b16 v[30:31], v88 offset:%d" % (HB + 4 * HP), "h0")
    a.ds("ds_read_b128 v[36:39], v91", "x0")
    a.ds("ds_read_b64_tr_b16 v[32:33], v88 offset:%d" % (HB + 512), "h1")
    a.ds("ds_read_b64_tr_b16 v[34:35], v88 offset:%d" % (HB + 512 + 4 * HP), "h1")
    a.ds("ds_read_b128 v[40:43], v91 offset:512", "x1")
    a.wait(lg="h0"); a.vmem("buffer_store_dwordx4 v[28:31], v92, s[32:35], s21 offen sc1")
    FAKEX = E("FAKEX", 0)
    if not FAKEX: a.wait(lg="x0"); a.vmem("buffer_store_dwordx4 v[36:39], v89, s[32:35], s20 offen sc1")
    a.wait(lg="h1"); a.vmem("buffer_store_dwordx4 v[32:35], v92, s[32:35], s22 offen sc1")
    if not FAKEX: a.wait(lg="x1"); a.vmem("buffer_store_dwordx4 v[40:43], v89, s[32:35], s24 offen sc1")
    a.vmem("buffer_load_dword v%d, v%d, s[44:47], 0 offen sc1" % (VT, VZ), "ready")
    a("""
    s_lshl_b32 s36, s38, 2
    s_add_u32 s36, s36, s14
    s_mul_i32 s24, s36, 28672
    s_lshl_b32 s26, s14, 10
    s_add_u32 s25, s25, s26
    v_add_u32 v{VD}, 0x8000, v{VB}
    """.format(VB=VB, VD=VD))
    a.drain()
    stamp(a, 4)
    a("s_barrier")
    AQ, AK, AV = 0, 16, 32
    XF, WF, PH = 64, 176, 208
    a("s_cmp_lg_u32 s14, 0")
    a("s_cbranch_scc1 A_GO")
    a("v_readfirstlane_b32 s61, v%d" % VT)
    a("s_cmp_lg_u32 s61, 0")
    a("s_cbranch_scc1 A_RDY")
    poll(a, DBG, "0", VZ, VT)
    a.label("A_RDY")
    arrive_issue(a, "s41 offset:%d" % (SX_CNT * SL))
    a.drain(vm=False)
    a("s_cmp_lg_u32 s62, 15")
    a("s_cbranch_scc1 A_WAIT")
    a("s_mov_b32 s62, 1")
    a("s_atomic_add s62, s[30:31], s41 offset:%d" % (SX_REL * SL))
    a("s_mov_b32 s20, %s" % hex(SYNC_OFF + SA_ROOT * SL))
    a("s_mov_b32 s63, 1")
    a("s_atomic_add s63, s[30:31], s20 glc")
    a.drain(vm=False)
    a("s_cmp_lg_u32 s63, 15")
    a("s_cbranch_scc1 A_GO")
    a("s_atomic_add s62, s[28:29], 0x80")
    a("s_branch A_GO")
    a.label("A_WAIT")
    a("s_add_u32 s20, s41, %d" % (SX_REL * SL))
    poll(a, WS, "s20", VZ, VT, sleep=PSL)
    a.label("A_GO")
    a("s_barrier")
    stamp(a, 5)
    if E("FAKEA", 0) == 1: a("s_endpgm")
    def wdma(r, tag):
        a("s_add_u32 m0, s26, %d" % (r * 4096))
        a("s_add_u32 s28, s25, %d" % (r * 4096))
        a.vmem("buffer_load_dwordx4 v%d, s[32:35], s28 offen sc1 lds" % VA, tag)
    def xload(k):
        if FAKEX and k == 0:
            a("s_lshl_b32 s24, s36, 12")
            a("s_add_u32 s24, s24, %s" % hex(HT_OFF))
        if k % 4 == 0 and k > 0: a("s_add_u32 s24, s24, %d" % (HT_G if FAKEX else 4096))
        a.vmem("buffer_load_dwordx4 %s, v%d, s[32:35], s24 offen offset:%d sc1" % (vr(XF + 4 * k, 4), VA, (k % 4) * 1024), "x%d" % k)
    cuts = [0, 6, 13, 20, 28]; rnds = [0, 3, 6, 9, 13]
    XF1 = E("XFIRST", 16)
    a("s_setprio %d" % E("PRIO_X", 2))
    a("s_lshl_b32 s20, s56, 8")
    a("s_add_u32 s20, s20, %s" % hex(SYNC_OFF + SW_REL * SL))
    for k in range(XF1):
        if k == max(XF1 - 6, 0): flag_issue(a, WS, "s20", VZ, VT, "fw")
        xload(k)
    if XF1 == 0: flag_issue(a, WS, "s20", VZ, VT, "fw")
    flag_check(a, WS, "s20", VZ, VT, "fw", PSL)
    a("s_setprio %d" % PRIO_A)
    stamp(a, 6)
    seq = []
    for c in range(4):
        seq += [(lambda r=r, c=c: wdma(r, "wc%d" % c)) for r in range(rnds[c], rnds[c + 1])]
        seq += [(lambda k=k: xload(k)) for k in range(max(cuts[c], XF1), cuts[c + 1])]
    if TWO:
        a("s_sub_u32 s27, s25, s26")
        a("s_add_u32 s27, s27, %d" % WP_PHI)
        a("s_add_u32 s20, s20, %d" % ((SV_REL - SW_REL) * SL))
        seq += [(lambda i=i: a.vmem("buffer_load_dwordx4 %s, v%d, s[32:35], s27 offen offset:%d sc1" % (vr(PH + 4 * i, 4), VA, i * 1024), "ph")) for i in range(2)]
        seq += [lambda: flag_issue(a, WS, "s20", VZ, VT, "fv")]
    else: seq += [(lambda r=r: wdma(r, "wq")) for r in (18, 13, 14, 15, 16, 17)]
    for f in seq[:XPRE]: f()
    pend = seq[XPRE:]
    def lread(dst, off, tag, base=None):
        if off < 65536: a.ds("ds_read_b128 %s, v%d offset:%d" % (vr(dst, 4), VB, off), tag)
        else: a.ds("ds_read_b128 %s, v%d offset:%d" % (vr(dst, 4), VD, off - 32768), tag)
    def wread(k):
        b = WF + 8 * (k % 3)
        lread(b, k * 1792, "w%d" % k); lread(b + 4, k * 1792 + 896, "w%d" % k)
    for c in range(4):
        k0, k1 = cuts[c], cuts[c + 1]
        assert k1 * 1792 + 64 <= rnds[c + 1] * 4096
        assert sum(1 for t_ in a.issued if t_ == "wc%d" % c) == rnds[c + 1] - rnds[c]
        a.wait(vm="wc%d" % c)
        a("s_barrier")
        wread(k0); wread(k0 + 1)
        for k in range(k0, k1):
            if k + 2 < k1: wread(k + 2)
            assert "x%d" % k in a.issued
            a.wait(vm="x%d" % k, lg="w%d" % k)
            b = WF + 8 * (k % 3); x = vr(XF + 4 * k, 4)
            a("%s %s, %s, %s, %s" % (MF, vr(AK, 16), vr(b, 4), x, "0" if k == 0 else vr(AK, 16)))
            if pend and len(a.vm.ops) < ALOOK: pend.pop(0)()
            a("%s %s, %s, %s, %s" % (MF, vr(AV, 16), x, vr(b + 4, 4), "0" if k == 0 else vr(AV, 16)))
            while pend and len(a.vm.ops) < min(ALOOK, 12): pend.pop(0)()
            if pend and len(a.vm.ops) < ALOOK: pend.pop(0)()
    for f in pend: f()
    pend = []
    assert not pend
    if TWO:
        flag_check(a, WS, "s20", VZ, VT, "fv", PSL)
        for r in range(12, 19): wdma(r, "wq")
        a("s_barrier")
    else:
        a.drain(lg=False)
        a("s_barrier")
        a("v_add_u32 v2, 0x8000, v%d" % VA)
        a.ds("ds_read_b128 %s, v2 offset:%d" % (vr(PH, 4), WP_PHI - 32768), "ph")
        a.ds("ds_read_b128 %s, v2 offset:%d" % (vr(PH + 4, 4), WP_PHI + 1024 - 32768), "ph")
    stamp(a, 7)
    PKK, PKV = 48, 56
    PP = 216; EP, EM = 16, 32; OUT = 176; S0 = 192; TA = S0 + 12
    a("""
    s_mov_b32 s56, 0
    s_mov_b32 s57, -1
    s_mov_b32 s37, {L2E}
    v_mul_u32_u24 v{t}, 136, v{VC}
    v_lshl_add_u32 v{t}, v{VH}, 3, v{t}
    s_mul_i32 s28, s14, 4352
    v_add_u32 v{t}, s28, v{t}
    s_lshl_b32 s28, s14, 11
    v_add_u32 v{u}, s28, v{VA}
    v_cmp_eq_u32 vcc, 28, v{VC}
    v_mov_b32 v{S0}, 0x3f803f80
    """.format(L2E=f32(1.4426950408889634), t=TA, u=TA + 1, VC=VC, VH=VH, VA=VA, S0=S0))
    for r in range(8): a("v_cvt_pk_bf16_f32 v%d, v%d, v%d" % (PKK + r, AK + 2 * r, AK + 2 * r + 1))
    a("v_cndmask_b32 v%d, 0, v%d, vcc" % (S0, S0))
    a.wait(lg="ph")
    a("%s %s, %s, %s, 0" % (MF, vr(PP, 16), vr(PH, 4), vr(PKK, 4)))
    a("%s %s, %s, %s, %s" % (MF, vr(PP, 16), vr(PH + 4, 4), vr(PKK + 4, 4), vr(PP, 16)))
    for r in range(8): a("v_cvt_pk_bf16_f32 v%d, v%d, v%d" % (PKV + r, AV + 2 * r, AV + 2 * r + 1))
    for r in range(8): a("v_cndmask_b32 v%d, v%d, v%d, s[58:59]" % (PKV + r, S0, PKV + r))
    a.ds("ds_write_b128 v%d, %s offset:17408" % (TA + 1, vr(PKV, 4)))
    a.ds("ds_write_b128 v%d, %s offset:%d" % (TA + 1, vr(PKV + 4, 4), 17408 + 1024))

    def softmax2(P, sink=None):
        mx, mn, t0, t1, t2, t3 = S0, S0 + 1, S0 + 2, S0 + 3, S0 + 4, S0 + 5
        for op, m, t in (("max", mx, t0), ("min", mn, t1)):
            a("v_%s3_f32 v%d, v%d, v%d, v%d" % (op, t, P + 12, P + 13, P + 14))
            a("v_%s3_f32 v%d, v%d, v%d, v%d" % (op, m, P, P + 1, P + 2))
            a("v_%s_f32 v%d, v%d, v%d" % (op, t, t, P + 15))
            for i in range(3, 11, 2): a("v_%s3_f32 v%d, v%d, v%d, v%d" % (op, m, m, P + i, P + i + 1))
            a("v_cndmask_b32 v%d, v%d, v%d, s[56:57]" % (t, t, P))
            a("v_%s3_f32 v%d, v%d, v%d, v%d" % (op, m, m, P + 11, t))
        a("v_mov_b32 v%d, v%d" % (t0, mx))
        a("v_mov_b32 v%d, v%d" % (t1, mn))
        a("v_mov_b32 v%d, 0x7f800000" % t2)
        a("v_mov_b32 v%d, 0xff800000" % t3)
        a("v_permlane32_swap_b32 v%d, v%d" % (mx, t0))
        a("v_permlane32_swap_b32 v%d, v%d" % (mn, t1))
        a("s_nop 0")
        a("v_max_f32 v%d, v%d, v%d" % (mx, mx, t0))
        a("v_min_f32 v%d, v%d, v%d" % (mn, mn, t1))
        a("v_mul_f32 v%d, s37, v%d" % (mx, mx))
        a("v_mul_f32 v%d, s37, v%d" % (mn, mn))
        a("v_cndmask_b32 v%d, v%d, v%d, s[56:57]" % (t2, mx, t2))
        a("v_cndmask_b32 v%d, v%d, v%d, s[56:57]" % (t3, mn, t3))
        for r in range(16):
            a("v_fma_f32 v%d, v%d, s37, -v%d" % (EP + r, P + r, mx if r < 12 else t2))
            a("v_fma_f32 v%d, -v%d, s37, v%d" % (EM + r, P + r, mn if r < 12 else t3))
        for r in range(16):
            a("v_exp_f32 v%d, v%d" % (EP + r, EP + r))
            a("v_exp_f32 v%d, v%d" % (EM + r, EM + r))
            if r == 2:
                a("v_add_f32 v%d, v%d, v%d" % (mx, EP, EP + 1))
                a("v_add_f32 v%d, v%d, v%d" % (mn, EM, EM + 1))
            if r > 2:
                a("v_add_f32 v%d, v%d, v%d" % (mx, mx, EP + r - 1))
                a("v_add_f32 v%d, v%d, v%d" % (mn, mn, EM + r - 1))
        a("v_add_f32 v%d, v%d, v%d" % (mx, mx, EP + 15))
        a("v_add_f32 v%d, v%d, v%d" % (mn, mn, EM + 15))
        a("v_mov_b32 v%d, v%d" % (t0, mx))
        a("v_mov_b32 v%d, v%d" % (t1, mn))
        a("s_nop 1")
        a("v_permlane32_swap_b32 v%d, v%d" % (mx, t0))
        a("v_permlane32_swap_b32 v%d, v%d" % (mn, t1))
        a("s_nop 0")
        a("v_add_f32 v%d, v%d, v%d" % (mx, mx, t0))
        a("v_add_f32 v%d, v%d, v%d" % (mn, mn, t1))
        a("v_rcp_f32 v%d, v%d" % (mx, mx))
        a("v_rcp_f32 v%d, v%d" % (mn, mn))
        for e, (E_, m) in enumerate(((EP, mx), (EM, mn))):
            for q in range(4):
                for r in range(4): a("v_mul_f32 v%d, v%d, v%d" % (E_ + 4 * q + r, E_ + 4 * q + r, m))
                for r in range(2): a("v_cvt_pk_bf16_f32 v%d, v%d, v%d" % (OUT + 8 * e + 2 * q + r, E_ + 4 * q + 2 * r, E_ + 4 * q + 2 * r + 1))
                if sink: sink(e, q)

    softmax2(PP, lambda e, q: a.ds("ds_write_b64 v%d, %s offset:%d" % (TA, vr(OUT + 8 * e + 2 * q, 2), e * 64 + q * 16)))
    a("""
    v_lshlrev_b32 v{t}, 2, v{VH}
    v_bfe_u32 v{u}, v{LN}, 2, 2
    v_add_u32 v{t}, v{t}, v{u}
    v_mul_u32_u24 v{t}, 136, v{t}
    v_bfe_u32 v{u}, v{LN}, 4, 1
    v_lshl_add_u32 v{t}, v{u}, 5, v{t}
    v_and_b32 v{u}, 3, v{LN}
    v_lshl_add_u32 v{t}, v{u}, 3, v{t}
    s_lshl_b32 s28, s14, 6
    v_add_u32 v{t}, s28, v{t}
    s_lshl_b32 s42, s39, 16
    s_add_u32 s42, s42, {KVP}
    s_lshl_b32 s28, s38, 10
    s_lshl_b32 s29, s14, 15
    s_add_u32 s28, s28, s29
    s_add_u32 s28, s28, s42
    s_add_u32 s29, s28, 16384
    """.format(t=TA + 2, u=TA + 3, LN=LN, VH=VH, KVP=hex(KVP_OFF)))
    a.drain()
    a("s_barrier")
    stamp(a, 8)
    a("s_cmp_ge_u32 s14, 2")
    a("s_cbranch_scc1 A_QPASS")
    KVA = 232
    for w in range(4):
        for i in range(2):
            n_ = 2 * w + i
            a.ds("ds_read_b64_tr_b16 %s, v%d offset:%d" % (vr(4 * n_, 2), TA + 2, w * 4352 + (16 * i) * 136), "kv%d" % n_)
            a.ds("ds_read_b64_tr_b16 %s, v%d offset:%d" % (vr(4 * n_ + 2, 2), TA + 2, w * 4352 + (16 * i + 8) * 136), "kv%d" % n_)
            a.ds("ds_read_b128 %s, v%d offset:%d" % (vr(32 + 4 * n_, 4), VA, 17408 + w * 2048 + i * 1024), "kv%d" % n_)
    for n_ in range(8):
        a.wait(lg="kv%d" % n_)
        a("%s %s, %s, %s, %s" % (MF, vr(KVA, 16), vr(4 * n_, 4), vr(32 + 4 * n_, 4), "0" if n_ == 0 else vr(KVA, 16)))
    a("s_nop 11")
    for i in range(2):
        for r in range(4): a("v_cvt_pk_bf16_f32 v%d, v%d, v%d" % (PKV + 4 * i + r, KVA + 8 * i + 2 * r, KVA + 8 * i + 2 * r + 1))
        a("buffer_store_dwordx4 %s, v%d, s[32:35], %s offen sc1" % (vr(PKV + 4 * i, 4), VA, "s29" if i else "s28"))
    QLATE = E("QLATE", 0)
    def s1_flag():
        a("s_lshl_b32 s20, s39, 4")
        a("s_add_u32 s20, s20, s38")
        a("s_lshl_b32 s20, s20, 8")
        a("s_lshl_b32 s21, s14, 2")
        a("s_add_u32 s20, s20, s21")
        a("s_add_u32 s20, s20, %s" % hex(SYNC_OFF + F1 * SL))
        arrive(a, "s20")
    if QLATE:
        a.drain(lg=False)
        if DF1: s1_flag()
        else:
            arrive_issue(a, "s40 offset:%d" % (S1_CNT * SL))
            arrive_finish(a, 31, ["s40 offset:%d" % (S1_REL * SL)], "A_QPASS")
    a.label("A_QPASS")
    if E("FAKEA", 0) == 2: a("s_endpgm")
    SEL, KS, KVB, OD = 48, 0, 16, 32
    def qpass():
        a("s_setprio %d" % PRIO_Q)
        a("s_mov_b32 s62, 0")
        QB = 16
        def qread(k): lread(QB + 4 * (k % 8), WP_Q + k * 896, "q%d" % k)
        for k in range(4): qread(k)
        for k in range(28):
            if k + 4 < 28: qread(k + 4)
            a.wait(lg="q%d" % k)
            a("%s %s, %s, %s, %s" % (MF, vr(AQ, 16), vr(QB + 4 * (k % 8), 4), vr(XF + 4 * k, 4), "0" if k == 0 else vr(AQ, 16)))
            if k == E("S1K", 13) and not QLATE:
                a("s_cmp_ge_u32 s14, 2")
                a("s_cbranch_scc1 A_NOARR")
                a.drain(lg=False)
                if DF1: s1_flag()
                else: arrive_issue(a, "s40 offset:%d" % (S1_CNT * SL))
                a.label("A_NOARR")
        if not QLATE and not DF1:
            arrive_finish(a, 31, ["s40 offset:%d" % (S1_REL * SL)], "A_S1_NR")
            a.label("A_S1_NR")
        a("s_nop 11")
        for r in range(8): a("v_cvt_pk_bf16_f32 v%d, v%d, v%d" % (PKK + r, AQ + 2 * r, AQ + 2 * r + 1))
        a("s_nop 1")
        a("%s %s, %s, %s, 0" % (MF, vr(PP, 16), vr(PH, 4), vr(PKK, 4)))
        a("%s %s, %s, %s, %s" % (MF, vr(PP, 16), vr(PH + 4, 4), vr(PKK + 4, 4), vr(PP, 16)))
        a("s_nop 11")
        softmax2(PP)
    def gather():
        a("""
        s_setprio {PRIO}
        v_and_b32 v52, 3, v{VC}
        v_bfe_u32 v53, v{VC}, 3, 1
        v_lshl_add_u32 v52, v53, 2, v52
        v_and_b32 v53, 1, v52
        v_lshlrev_b32 v53, 4, v53
        v_mov_b32 v54, 0x3f80
        v_lshlrev_b32 v53, v53, v54
        v_lshrrev_b32 v52, 1, v52
        v_bfe_u32 v54, v{VC}, 2, 1
        v_xor_b32 v54, v54, v{VH}
        v_lshrrev_b32 v55, 4, v{VC}
        v_or_b32 v54, v54, v55
        v_lshl_add_u32 v52, v54, 2, v52
        s_lshl_b32 s28, s14, 14
        s_add_u32 s28, s28, s42
        s_add_u32 s41, s40, {REL}
        s_lshl_b32 s29, s14, 10
        v_add_u32 v55, s29, v{VA}
        """.format(PRIO=PRIO_K, VC=VC, VH=VH, VA=VA, REL=S1_REL * SL))
        for d in range(4):
            a("v_cmp_eq_u32 vcc, %d, v52" % d)
            a("s_nop 1")
            a("v_cndmask_b32 v%d, 0, v53, vcc" % (SEL + d))
        a("s_cmp_lg_u32 s14, 3")
        a("s_cbranch_scc1 A_S1_OK")
        if DF1:
            a("s_lshl_b32 s41, s39, 12")
            a("s_add_u32 s41, s41, %s" % hex(SYNC_OFF + F1 * SL))
            a("v_lshrrev_b32 v54, 1, v%d" % LN)
            a("v_lshlrev_b32 v54, 8, v54")
            a("v_and_b32 v53, 1, v%d" % LN)
            a("v_lshl_add_u32 v54, v53, 2, v54")
            multi_load(a, 32, "s41", 54, VT, "m1")
            multi_check(a, 32, "s41", 54, VT, "m1", PSL)
        else: poll(a, WS, "s41", VZ, VT, sleep=PSL)
        a.label("A_S1_OK")
        a("s_barrier")
        stamp(a, 9 if QLATE else 10)
        gd = (lambda m: 16 + 4 * m if m < 8 else 216 + 4 * (m - 8)) if QLATE else (lambda m: 64 + 4 * m)
        for m in range(16):
            if m % 4 == 0 and m: a("s_add_u32 s28, s28, 4096")
            a.vmem("buffer_load_dwordx4 %s, v%d, s[32:35], s28 offen offset:%d sc1" % (vr(gd(m), 4), VA, (m % 4) * 1024), "p%d" % m)
        a("""
        s_lshl_b32 s28, s36, 15
        s_lshl_b32 s29, s39, 11
        s_add_u32 s28, s28, s29
        s_add_u32 s28, s28, {OFO}
        s_lshr_b32 s40, s36, 1
        s_lshl_b32 s40, s40, 8
        s_add_u32 s40, s40, {SY}
        """.format(OFO=hex(OF_OFF), SY=hex(SYNC_OFF)))
        for m in range(16):
            a.wait(vm="p%d" % m)
            a("%s %s, %s, %s, %s" % (MF, vr(KS, 16), vr(SEL, 4), vr(gd(m), 4), "0" if m == 0 else vr(KS, 16)))
        a("s_nop 11")
        for r in range(4): a("v_cvt_pk_bf16_f32 v%d, v%d, v%d" % (56 + r, KS + 2 * r, KS + 2 * r + 1))
        a.ds("ds_write_b128 v55, %s" % vr(56, 4))
    if QLATE:
        gather(); stamp(a, 10); qpass(); a("s_setprio %d" % PRIO_K)
    else:
        qpass(); stamp(a, 9); gather()
    a.drain(vm=False)
    a("s_barrier")
    for n_ in range(4): a.ds("ds_read_b128 %s, v%d offset:%d" % (vr(KVB + 4 * n_, 4), VA, n_ * 1024), "kvl%d" % n_)
    for n_ in range(4):
        a.wait(lg="kvl%d" % n_)
        a("%s %s, %s, %s, %s" % (MF, vr(OD, 16), vr(KVB + 4 * n_, 4), vr(OUT + 4 * n_, 4), "0" if n_ == 0 else vr(OD, 16)))
    a("""
    s_nop 11
    v_mov_b32 v0, v{D12}
    v_mov_b32 v2, v{D12}
    s_nop 1
    v_permlane32_swap_b32 v0, v2
    s_nop 0
    v_add_f32 v2, {EPS}, v2
    v_rcp_f32 v2, v2
    s_nop 0
    """.format(D12=OD + 12, EPS=f32(1e-6)))
    for i in range(2):
        for r in range(8): a("v_mul_f32 v%d, v%d, v2" % (OD + 8 * i + r, OD + 8 * i + r))
        for r in range(4): a("v_cvt_pk_bf16_f32 v%d, v%d, v%d" % (KVB + 4 * i + r, OD + 8 * i + 2 * r, OD + 8 * i + 2 * r + 1))
        a.vmem("buffer_store_dwordx4 %s, v%d, s[32:35], s28 offen offset:%d sc1" % (vr(KVB + 4 * i, 4), VA, i * 1024))
    a.drain(lg=False)
    arrive_issue(a, "s40 offset:%d" % (S2_CNT * SL))
    arrive_finish(a, 31, ["s40 offset:%d" % (S2_REL * SL)], "A_FIN")
    a.label("A_FIN")
    stamp_flush(a, 11, 4, "A")
    a("s_endpgm")

class G:
    ACC = 0; B = 64; F = 64 + 8 * NB
    W0 = 232; W1 = 233; FA = 234; FB = 235; LA = 236; LB = 237
    LN = 238; L16 = 239; RES = 240
    VX = 248; VB2 = 249; VZ = 250; VT = 251; T0 = 252; T1 = 253; T2 = 254
assert G.F + 8 * NF <= 232
SLDS = 50
SJ = [6, 7, 8, 9, 10, 11, 48, 49]
SC = [51, 15, 59, 3]

def g_waddr(a, RS, scol):
    a("""
    v_lshrrev_b32 v{T0}, 3, v{L}
    v_mul_u32_u24 v{W0}, {RS}, v{T0}
    v_lshrrev_b32 v{T1}, 2, v{L}
    v_and_b32 v{T1}, 4, v{T1}
    v_and_b32 v{T2}, 7, v{L}
    v_xor_b32 v{T1}, v{T1}, v{T2}
    v_lshl_add_u32 v{W0}, v{T1}, 4, v{W0}
    v_add_u32 v{W0}, {scol}, v{W0}
    v_add_u32 v{W1}, {RS8}, v{W0}
    """.format(T0=G.T0, T1=G.T1, T2=G.T2, L=G.LN, W0=G.W0, W1=G.W1, RS=RS, RS8=8 * RS, scol=scol))
def g_laddr(a, perm2):
    a("""
    v_bfe_u32 v{T0}, v{L}, 4, 1
    v_lshrrev_b32 v{T1}, 5, v{L}
    v_lshlrev_b32 v{LA}, {HS}, v{T1}
    v_lshl_add_u32 v{LA}, v{T0}, 5, v{LA}
    v_bfe_u32 v{T1}, v{L}, 2, 2
    v_lshl_add_u32 v{LA}, v{T1}, 7, v{LA}
    v_lshrrev_b32 v{T1}, 1, v{T1}
    v_lshl_add_u32 v{LA}, v{T1}, 6, v{LA}
    v_and_b32 v{T1}, 3, v{L}
    v_lshl_add_u32 v{LA}, v{T1}, 3, v{LA}
    s_lshl_b32 s36, s14, 5
    s_and_b32 s36, s36, 64
    v_xor_b32 v{LA}, s36, v{LA}
    v_add_u32 v{LA}, s{SLDS}, v{LA}
    v_xor_b32 v{LB}, 64, v{LA}
    """.format(T0=G.T0, T1=G.T1, L=G.LN, LA=G.LA, LB=G.LB, HS=(9 if perm2 else 10), SLDS=SLDS))

class Stream:
    def __init__(self, a, name, srdw, RS, NK, perm2, pol, slots, nb):
        self.nb = nb
        self.fb = {}; self.nf = 0; self.ffree = None; self.ring = [G.F + 8 * i for i in range(NF)]
        self.a = a; self.n = name; self.srd = srdw; self.RS = RS; self.NK = NK; self.perm2 = perm2; self.pol = pol
        o = self.order(); first = [p for p in range(NK) if o[p][0] == 0]
        self.dorder = first + [p for p in range(NK) if p not in first]
        assert sorted(self.dorder[:self.nb]) == list(range(self.nb)) and self.dorder[self.nb:] == list(range(self.nb, NK))
        self.free = [(s, None) for s in slots]
        self.slot = {}; self.nd = 0; self.nr = 0
    def can_dma(self): return self.nd < self.NK and len(self.free) > 0
    def order(self):
        ng = self.NK // 4; o = [(j, 0) for j in range(min(LEAD, ng))]
        for j in range(ng):
            if j + LEAD < ng: o.append((j + LEAD, 0))
            o += [(j, 1), (j, 2), (j, 3)]
        if LEAD == 0: o = [(j, r) for j in range(ng) for r in range(4)]
        assert len(o) == self.NK
        return o
    def tstep(self, p, dst):
        j, rel = self.order()[p]
        if self.n == "b" and not ROT2: self.a("s_add_u32 %s, s%d, %d" % (dst, SC[rel], 16 * j))
        else: self.a("s_add_u32 %s, s%d, s%d" % (dst, SJ[j], SC[rel]))
    def dma_parts(self):
        a = self.a; p = self.dorder[self.nd]; self.nd += 1
        sl, tag = self.free.pop(0); self.slot[p] = sl
        def p0():
            if tag: a.wait(lg=tag)
            self.tstep(p, "s58")
            a("s_add_u32 m0, s%d, %d" % (SLDS, sl * 2048))
            a("s_mul_i32 s58, s58, %d" % (16 * self.RS))
            a.vmem("buffer_load_dwordx4 v%d, s[%d:%d], s58 offen %s lds" % (G.W0, self.srd, self.srd + 3, self.pol), "%sd%d" % (self.n, p))
            a("s_add_u32 m0, s%d, %d" % (SLDS, sl * 2048 + 1024))
        def p1():
            a("s_nop 0")
            a.vmem("buffer_load_dwordx4 v%d, s[%d:%d], s58 offen %s lds" % (G.W1, self.srd, self.srd + 3, self.pol), "%sd%d" % (self.n, p))
        return [p0, p1]
    def dma(self):
        for f in self.dma_parts(): f()
    def read_parts(self):
        a = self.a; p = self.dorder[self.nr]; self.nr += 1
        assert p in self.slot
        sl = self.slot[p]; b = G.B + 8 * (p % self.nb); io = 1024 if self.perm2 else 512
        self.free.append((sl, "%sr%d" % (self.n, p)))
        def part(u):
            def f():
                a.wait(vm="%sd%d" % (self.n, p))
                for i in range(2):
                    a.ds("ds_read_b64_tr_b16 %s, v%d offset:%d" % (vr(b + 4 * u + 2 * i, 2), G.LA + u, sl * 2048 + i * io), "%sr%d" % (self.n, p))
            return f
        return [part(0), part(1)]
    def read(self):
        for f in self.read_parts(): f()
    def inflight(self):
        seen = []
        for t in self.a.vm.ops:
            if t and t.startswith(self.n + "d") and t not in seen: seen.append(t)
        return seen
    def pump(self, ahead):
        did = False
        while self.can_dma() and len(self.inflight()) < ahead: self.dma(); did = True
        if self.nr < self.nb and self.nr < self.nd: self.read(); did = True
        elif self.can_dma():
            self.a.wait(vm=self.inflight()[0]); did = True
        return did
    def tables(self, srot, ssh, part=None):
        a = self.a; ng = self.NK // 4
        if part != 0:
            a("s_lshl_b32 s%d, %s, 4" % (SJ[0], srot))
            for j in range(1, 7):
                a("s_add_u32 s%d, s%d, 16" % (SJ[j], SJ[j - 1]))
                a("s_cmp_ge_u32 s%d, 112" % SJ[j])
                a("s_cselect_b32 s%d, 0, s%d" % (SJ[j], SJ[j]))
            a("s_movk_i32 s%d, 112" % SJ[7])
        if part != 1:
            a("s_lshl_b32 s61, %s, 2" % ssh)
            for r in range(4):
                a("s_add_u32 s%d, s61, %d" % (SC[r], 4 * r))
                a("s_and_b32 s%d, s%d, 12" % (SC[r], SC[r]))
                a("s_add_u32 s%d, s%d, s14" % (SC[r], SC[r]))
    def freg(self, t): return self.fb.get(t, self.ring[t % len(self.ring)])
    def fnext(self, t, srdf, maxn):
        out = []
        while self.nf < self.NK and len(out) < 2 * maxn and self.nf - t <= FLOOK:
            c = [x for x in self.ffree if x[0] < t]
            if not c: break
            self.ffree.remove(c[0]); self.fb[self.nf] = c[0][1]
            self.ffree.append((self.nf, c[0][1]))
            out += self.fload_parts(self.nf, srdf); self.nf += 1
        return out
    def fload_parts(self, t, srdf):
        a = self.a; f = self.freg(t)
        def p0():
            self.tstep(t, "s60")
            a("s_lshl_b32 s60, s60, 11")
            a.vmem("buffer_load_dwordx4 %s, v%d, s[%d:%d], s60 offen sc1" % (vr(f, 4), G.FA, srdf, srdf + 3), "%sf%d" % (self.n, t))
        def p1():
            a.vmem("buffer_load_dwordx4 %s, v%d, s[%d:%d], s60 offen sc1" % (vr(f + 4, 4), G.FB, srdf, srdf + 3), "%sf%d" % (self.n, t))
        return [p0, p1]
    def fload(self, t, srdf):
        for f in self.fload_parts(t, srdf): f()
    def step(self, t, weights_are_A, fill):
        a = self.a; b = G.B + 8 * (t % self.nb); f = self.freg(t)
        a.wait(vm="%sf%d" % (self.n, t), lg="%sr%d" % (self.n, t))
        gaps = [[], [], [], []]
        for i, p in enumerate(fill): gaps[min(3, i * 4 // max(4, len(fill)))].append(p)
        for n in range(4):
            uw, uf = n >> 1, n & 1
            acc = vr(G.ACC + 16 * n, 16)
            W, F = vr(b + 4 * uw, 4), vr(f + 4 * uf, 4)
            A_, B_ = (W, F) if weights_are_A else (F, W)
            a("%s %s, %s, %s, %s" % (MF, acc, A_, B_, "0" if (t == 0 and n > 0) else acc))
            for p in gaps[n]: p()
    def loop_fill(self, t, srdf):
        fill = []
        if self.ffree is not None: fill += self.fnext(t, srdf, 2)
        elif t + len(self.ring) - 1 < self.NK: fill += self.fload_parts(t + len(self.ring) - 1, srdf)
        dm = self.dma_parts() if self.can_dma() else []
        if t >= 1 and self.nr < self.NK and self.nr - self.nb <= t - 1: fill += self.read_parts()
        return fill + dm

def g_reduce_write(a, mid=None, pre=None, tail=None):
    a("v_add_u32 v%d, s%d, v%d" % (G.VT, SLDS, G.L16))
    def wr(t, q): a.ds("ds_write_b128 v%d, %s offset:%d" % (G.VT, vr(G.ACC + 16 * t + 4 * q, 4), 8192 + (t - 1) * 4096 + q * 1024), "rw")
    if tail:
        prev = None
        for n in (1, 2, 3, 0):
            acc = vr(G.ACC + 16 * n, 16); qs = [0, 1, 2, 3] if prev else []
            for i, pick in enumerate(tail):
                A_, B_ = pick(n)
                a("%s %s, %s, %s, %s" % (MF, acc, A_, B_, acc))
                if qs and i == 0: a("s_nop 10")
                for _ in range(1 if i == 0 else 2):
                    if qs: wr(prev, qs.pop(0))
            while qs: wr(prev, qs.pop(0))
            prev = n
    else:
        a("s_nop 10")
        for t in range(1, 4):
            for q in range(4): wr(t, q)
    for t in range(1, 4):
        a("s_xor_b32 s60, s14, %d" % t)
        a("s_mul_i32 s60, s60, %d" % (NS * 2048))
        a("v_add_u32 v%d, s60, v%d" % (G.T0 + t - 1, G.L16))
    if pre: pre()
    a.wait(lg="rw")
    a("s_barrier")
    if mid: mid()
    for t in range(1, 4):
        for q in range(4):
            a.ds("ds_read_b128 %s, v%d offset:%d" % (vr(G.ACC + 16 * t + 4 * q, 4), G.T0 + t - 1, 8192 + (t - 1) * 4096 + q * 1024), "rr%d" % t)
def v2(a, op, d, x, y, n, pk):
    if pk:
        for r in range(0, n, 2): a("v_pk_%s_f32 %s, %s, %s" % (op, vr(d + r, 2), vr(x + r, 2), vr(y + r, 2)))
    else:
        for r in range(n): a("v_%s_f32 v%d, v%d, v%d" % (op, d + r, x + r, y + r))
def g_reduce_add(a, pk=True):
    for t in range(1, 4):
        a.wait(lg="rr%d" % t)
        v2(a, "add", 0, 0, 16 * t, 16, pk)

def role_g(a):
    a.vm.clear(); a.lg.clear()
    a.label("ROLE_G")
    if ONLYA: a("s_endpgm")
    a("""
    v_and_b32 v{LN}, 63, v0
    s_mul_i32 s61, s57, 37
    s_lshr_b32 s61, s61, 8
    s_lshl_b32 s66, s56, 2
    s_add_u32 s66, s66, s61
    s_mul_i32 s61, s61, 7
    s_sub_u32 s64, s57, s61
    s_mul_i32 s{SLDS}, s14, {WB}
    s_lshl_b32 s67, s66, 7
    s_lshr_b32 s60, s14, 1
    s_lshl_b32 s60, s60, 6
    s_add_u32 s60, s60, s67
    v_lshrrev_b32 v{VT}, 5, v{LN}
    v_lshlrev_b32 v{VT}, 3, v{VT}
    """.format(LN=G.LN, SLDS=SLDS, WB=NS * 2048, VT=G.VT))
    s1 = Stream(a, "a", 16, 3584, NK1, False, os.environ.get("W1POL0", "nt"), list(range(NS)), NB)
    s2 = Stream(a, "b", 24, 4096, 28, True, W2POL, list(range(4)), NB2)
    def burst(st):
        for p in range(4):
            if len(st.inflight()) >= AHEAD0: a.wait(vm=st.inflight()[0])
            st.dma()
        if len(st.inflight()) >= AHEAD0: a.wait(vm=st.inflight()[0])
    g_waddr(a, 3584, "s67")
    s1.tables("s64", "s66", part=0)
    a("s_mov_b32 s18, %d" % (2048 * 3584))
    a("s_mov_b32 s19, 0x20000")
    a("s_waitcnt lgkmcnt(0)")
    a("s_mov_b32 s16, s40")
    a("s_and_b32 s17, s41, 0xffff")
    a("s_lshl_b32 s%d, s64, 4" % SJ[0])
    a("s_cmp_eq_u32 s56, 7")
    if ONLY2: a("s_branch G_SETUP")
    a("s_cbranch_scc1 G_SETUP")
    if GWAIT:
        a("global_load_dword v%d, v%d, s[42:43] nt" % (G.T0, G.VT))
        a("s_waitcnt vmcnt(0)")
    burst(s1)
    a.label("G_SETUP")
    stamp(a, 1)
    srd(a, 36, 42, str(1792 * 2))
    for q in range(4):
        a.vmem("buffer_load_dwordx2 %s, v%d, s[36:39], s60 offen offset:%d nt" % (vr(G.F + 2 * q, 2), G.VT, 16 * q), "b1")
    ws_base(a)
    srd(a, WS, 30, hex(WS_USED))
    a("""
    s_setprio {PRIO}
    v_lshlrev_b32 v{L16}, 4, v{LN}
    v_mov_b32 v{VZ}, 0
    s_lshr_b32 s60, s14, 1
    s_lshl_b32 s60, s60, 5
    s_lshl_b32 s61, s66, 6
    s_add_u32 s60, s60, s61
    v_and_b32 v{T0}, 31, v{LN}
    v_add_u32 v{T0}, s60, v{T0}
    v_mul_u32_u24 v{VX}, 896, v{T0}
    v_lshlrev_b32 v{T1}, 1, v{VT}
    s_lshl_b32 s60, s64, 7
    s_and_b32 s61, s14, 1
    s_lshl_b32 s61, s61, 6
    s_add_u32 s60, s60, s61
    v_add3_u32 v{VX}, v{VX}, v{T1}, s60
    v_lshlrev_b32 v{VB2}, 1, v{T0}
    s_and_b32 s60, s14, 1
    s_lshl_b32 s60, s60, 10
    v_add_u32 v{FA}, s60, v{L16}
    v_xor_b32 v{FB}, 0x400, v{FA}
    s_lshl_b32 s68, s64, 18
    s_add_u32 s68, s68, {HTO}
    s_mul_i32 s60, s64, {UG}
    s_add_u32 s60, s60, {UPO}
    """.format(PRIO=PRIO_G, L16=G.L16, LN=G.LN, VZ=G.VZ, T0=G.T0, T1=G.T1, VT=G.VT, VX=G.VX, VB2=G.VB2,
               FA=G.FA, FB=G.FB, HTO=hex(HT_OFF), UG=UP_G, UPO=hex(UP_OFF)))
    srd(a, 40, 30, str(UP_G), add="s60")
    srd(a, DBG, 28, "256")
    srd(a, 24, 52, str(1792 * 4096))
    srd(a, 20, 30, str(HT_G), add="s68")
    def sw2():
        g_waddr(a, 4096, "s67")
        g_laddr(a, True)
    def res_loads():
        for i in range(2):
            a.vmem("global_load_dwordx4 %s, v%d, s[4:5] offset:%d" % (vr(G.RES + 4 * i, 4), G.VX, 32 * i), "res")
    a.vmem("global_load_ushort v%d, v%d, s[54:55] nt" % (G.VB2, G.VB2), "b1")
    a("s_movk_i32 s68, 0x80")
    if not ONLY2:
        a("s_cmp_lt_u32 s56, 7")
        a("s_cbranch_scc1 G_TILE1")
    sv = list(a.vm.ops)
    if HELP and not ONLY2:
        a.vm.clear(); a.lg.clear()
        a("s_setprio %d" % E("PRIO_H", 3))
        a("s_lshl_b32 s36, s57, 7")
        g_waddr(a, 3584, "s36")
        a("s_lshl_b32 s58, s14, 2")
        a("s_add_u32 s58, s58, 112")
        a("s_mul_i32 s58, s58, %d" % (16 * 3584))
        a("s_lshl_b32 s59, s14, 13")
        for i in range(4):
            a("s_add_u32 m0, s59, %d" % (i * 2048))
            a("s_nop 0")
            a.vmem("buffer_load_dwordx4 v%d, s[16:19], s58 offen nt lds" % G.W0)
            a("s_add_u32 m0, s59, %d" % (i * 2048 + 1024))
            a("s_nop 0")
            a.vmem("buffer_load_dwordx4 v%d, s[16:19], s58 offen nt lds" % G.W1)
            a("s_add_u32 s58, s58, %d" % (16 * 3584))
        g_laddr(a, False)
        a("v_subrev_u32 v%d, s%d, v%d" % (G.LA, SLDS, G.LA))
        a("v_xor_b32 v%d, s36, v%d" % (G.LA, G.LA))
        a("v_xor_b32 v%d, 64, v%d" % (G.LB, G.LA))
        a.drain()
        a("s_barrier")
        for kk in range(16):
            for u in range(2):
                for i in range(2):
                    a.ds("ds_read_b64_tr_b16 %s, v%d offset:%d" % (vr(G.B + 8 * kk + 4 * u + 2 * i, 2), G.LA + u, kk * 2048 + i * 512))
        poll(a, DBG, "s68", G.VZ, G.VT, sleep=2)
        a.drain()
        stamp(a, 5)
        a("s_lshl_b32 s58, s14, 18")
        a("s_add_u32 s58, s58, %s" % hex(HT_OFF + 112 * 2048))
        a("s_mul_i32 s48, s57, 7")
        a("s_add_u32 s48, s48, s14")
        a("s_lshl_b32 s48, s48, 13")
        a("s_add_u32 s48, s48, %s" % hex(PART_OFF))
        a("s_cmp_eq_u32 s14, 3")
        a("s_cselect_b32 s49, 0x08000000, 0")
        def hload(kk):
            f = G.F + 8 * (kk % NF)
            if kk == 16:
                a("s_add_u32 s58, s58, %d" % (4 * HT_G - 7 * 4096))
                a("s_or_b32 s58, s58, s49")
            elif kk % 2 == 0 and kk: a("s_add_u32 s58, s58, 4096")
            for u in range(2):
                a.vmem("buffer_load_dwordx4 %s, v%d, s[32:35], s58 offen offset:%d sc1" % (vr(f + 4 * u, 4), G.L16, (kk % 2) * 2048 + u * 1024), "h%d" % kk)
        for kk in range(NF - 1): hload(kk)
        for kk in range(32):
            a.wait(vm="h%d" % kk)
            f = G.F + 8 * (kk % NF)
            for n in range(4):
                acc = vr(16 * n, 16)
                a("%s %s, %s, %s, %s" % (MF, acc, vr(G.B + 8 * (kk % 16) + 4 * (n >> 1), 4), vr(f + 4 * (n & 1), 4), "0" if kk % 16 == 0 else acc))
                if n == 0 and kk + NF - 1 < 32: hload(kk + NF - 1)
            if kk % 16 == 15:
                a("s_add_u32 s59, s48, 4096")
                a("s_nop 8")
                for n in range(8):
                    for r in range(4): a("v_cvt_pk_bf16_f32 v%d, v%d, v%d" % (4 * n + r, 8 * n + 2 * r, 8 * n + 2 * r + 1))
                    a.vmem("buffer_store_dwordx4 %s, v%d, s[32:35], %s offen offset:%d sc1" % (vr(4 * n, 4), G.L16, "s59" if n >= 4 else "s48", (n % 4) * 1024))
                if kk == 15:
                    a("s_add_u32 s48, s48, %d" % (4 * 8192))
                    a("s_cmp_eq_u32 s14, 3")
                    a("s_cbranch_scc1 H_FIN")
                    stamp(a, 6)
        a.label("H_FIN")
        a.drain()
        a("s_barrier")
        a("s_cmp_lg_u32 s14, 0")
        a("s_cbranch_scc1 H_DONE")
        a("s_lshl_b32 s58, s57, 8")
        a("s_add_u32 s58, s58, %s" % hex(SYNC_OFF + SH_REL * SL))
        arrive(a, "s58")
        a.label("H_DONE")
        a("s_setprio %d" % PRIO_G)
    MROW = E("MROW", 896)
    a.vm.clear(); a.lg.clear()
    poll(a, DBG, "s68", G.VZ, G.VT, sleep=8)
    if MROW < 1792 and not (ONLY2 or ONLYG):
        a("s_setprio %d" % E("PRIO_M", 0))
        a("s_lshl_b32 s58, s57, 2")
        a("s_add_u32 s58, s58, s14")
        a("s_lshl_b32 s58, s58, 10")
        a("s_add_u32 s58, s58, %d" % (MROW * 4096))
        a.label("M_W2")
        for i in range(4):
            a("s_waitcnt vmcnt(%d)" % (E("MDEPTH", 8) - 1))
            a("buffer_load_dwordx4 %s, v%d, s[24:27], s58 offen" % (vr(G.F + 8 + 4 * i, 4), G.L16))
            a("s_add_u32 s58, s58, %d" % (112 * 1024))
        a("s_cmp_lt_u32 s58, %d" % (1792 * 4096))
        a("s_cbranch_scc1 M_W2")
    a("s_setprio %d" % E("PRIO_7", 1))
    a("s_mov_b32 s69, %s" % hex(SYNC_OFF + ((SV_REL if TWO else SW_REL) + 7) * SL))
    poll(a, WS, "s69", G.VZ, G.VT, sleep=8)
    for i in range(7, 9): stamp(a, i)
    sw2()
    s2.tables("s64", "s66")
    a("s_mov_b32 s65, 1")
    a("s_branch G_JOIN")
    a.vm.ops = sv; a.lg.clear()
    a.label("G_TILE1")
    s1.tables("s64", "s66", part=1)
    g_laddr(a, False)
    if RESEARLY: res_loads()
    if E("BDRAIN", 1): a.drain(lg=False)
    else: a.wait(vm="ad%d" % s1.dorder[E("BWAIT", 1)])
    s1.pol = W1POL2
    stamp(a, 2)
    X16 = E("X16", 0) and not ONLYG
    if X16:
        while s1.nd < NB + NS - 8: s1.pump(AHEAD)
        flag_issue(a, DBG, "0", G.VZ, G.VT, "fr")
        a("v_lshlrev_b32 v%d, 8, v%d" % (G.T0, G.LN))
        a("s_mov_b32 s69, %s" % hex(SYNC_OFF + SX_REL * SL))
    while s1.nd < NB + NS - 2: s1.pump(AHEAD)
    def x16_load(tag):
        a("s_mov_b64 exec, 0xffff")
        a.vmem("buffer_load_dword v%d, v%d, s[32:35], s69 offen sc1" % (G.VT, G.T0), tag)
        a("s_mov_b64 exec, -1")
    if X16:
        flag_check(a, DBG, "0", G.VZ, G.VT, "fr", 2)
        x16_load("f0")
    else: flag_issue(a, DBG, "s68", G.VZ, G.VT, "f0")
    a.wait(vm="b1")
    for q in range(8):
        a("v_lshlrev_b32 v%d, 16, v%d" % (2 * q, G.F + q))
        a("v_and_b32 v%d, 0xffff0000, v%d" % (2 * q + 1, G.F + q))
    while s1.pump(AHEAD): pass
    stamp(a, 3)
    if X16:
        a.wait(vm="f0")
        sv0 = list(a.vm.ops)
        a("s_mov_b32 s60, 0")
        a.label("G_X16")
        a("v_cmp_ne_u32 vcc, 0, v%d" % G.VT)
        a("s_and_b32 s61, vcc_lo, 0xffff")
        a("s_cmp_eq_u32 s61, 0xffff")
        a("s_cbranch_scc1 G_X16D")
        a("s_sleep %d" % E("X16S", 2))
        x16_load("f0")
        a("s_add_u32 s60, s60, 1")
        a.drain(lg=False)
        a("s_cmp_lt_u32 s60, %s" % hex(SPIN_MAX))
        a("s_cbranch_scc1 G_X16")
        a.label("G_X16D")
        a.vm.ops = sv0
    else: flag_check(a, DBG, "s68", G.VZ, G.VT, "f0", 2)
    stamp(a, 4)
    if FLOOK:
        s1.ffree = [(-2, G.F + 8 * i) for i in range(NF)] + ([(-2, G.RES)] if not RESEARLY else []) + [(p, G.B + 8 * (p % NB)) for p in range(NK1 - NB, NK1)]
        for f in s1.fnext(-1, 20, 99): f()
    else:
        for t in range(NF - 1): s1.fload(t, 20)
    log = []
    at = {}; fr_ok = [0]
    HP_ = G.B
    for t in range(NK1):
        if t in (8, 16, 24) and not E("WST", 0): stamp(a, 4 + t // 8)
        fill = s1.loop_fill(t, 20)
        if t == 16:
            def fw():
                a("s_lshl_b32 s69, s56, 8")
                a("s_add_u32 s69, s69, %s" % hex(SYNC_OFF + (SV_REL if TWO else SW_REL) * SL))
                flag_issue(a, WS, "s69", G.VZ, G.VT, "fw")
            fill.append(fw)
        if t == 22: flag_check(a, WS, "s69", G.VZ, G.VT, "fw", 2)
        if t == NK1 + 1 - NB:
            assert s1.nr == NK1
            fill.append(lambda: (a.drain(vm=False), sw2()))
        if HELP and t == NK1 - 1 - E("HLAG", 5):
            def fh():
                a("s_lshl_b32 s69, s66, 8")
                a("s_add_u32 s69, s69, %s" % hex(SYNC_OFF + SH_REL * SL))
                flag_issue(a, WS, "s69", G.VZ, G.VT, "fh")
            fill.append(fh)
        if HELP and t == NK1 - 1:
            def ph():
                flag_check(a, WS, "s69", G.VZ, G.VT, "fh", 1)
                a("s_mul_i32 s60, s66, 7")
                a("s_add_u32 s60, s60, s64")
                a("s_lshl_b32 s60, s60, 2")
                a("s_add_u32 s60, s60, s14")
                a("s_lshl_b32 s60, s60, 11")
                a("s_add_u32 s60, s60, %s" % hex(PART_OFF))
                for i in range(2):
                    a.vmem("buffer_load_dwordx4 %s, v%d, s[32:35], s60 offen offset:%d sc1" % (vr(HP_ + 4 * i, 4), G.L16, i * 1024), "hp")
            fill += [lambda: None] * 3 + [ph]
        W2S = E("W2S", 0)
        if W2S and W2S <= t < W2S + 4:
            fill += s2.dma_parts(); log.append("d")
        if t >= NK1 - TAILM:
            assert not fill
            continue
        s1.step(t, True, fill)
    tail1 = []
    for t in range(NK1 - TAILM, NK1):
        a.wait(vm="af%d" % t, lg="ar%d" % t)
        tail1.append(lambda n, t=t: (vr(G.B + 8 * (t % NB) + 4 * (n >> 1), 4), vr(s1.freg(t) + 4 * (n & 1), 4)))
    stamp(a, 5 if E("WST", 0) else 8)
    def rd(n=1):
        for _ in range(n): s2.read(); log.append("r")
    def dm(n=1):
        for _ in range(n):
            first = s2.nd < 4
            s2.pol = os.environ.get("W2POL0", "") if first else W2POL
            s2.dma(); log.append("d")
            s2.pol = W2POL
            if first and s2.nd == 4 and E("TOUCH", 0):
                a("v_lshrrev_b32 v%d, 4, v%d" % (G.F, G.LN))
                a("v_lshlrev_b32 v%d, 18, v%d" % (G.F, G.F))
                a("v_and_b32 v%d, 15, v%d" % ((G.F + 1), G.LN))
                a("v_lshl_add_u32 v%d, v%d, 12, v%d" % (G.F, (G.F + 1), G.F))
                a("s_add_u32 s58, s%d, s14" % SJ[0])
                a("s_lshl_b32 s58, s58, 16")
                a("s_add_u32 s58, s58, s67")
                a.vmem("buffer_load_dword v%d, v%d, s[24:27], s58 offen" % ((G.F + 2), G.F), "touch")
    oa = {}; ob = {}
    def oa_parts(j):
        def p0():
            if j % 2 == 0 and j > 0: a("s_add_u32 s56, s56, 4096")
            a.vmem("buffer_load_dwordx4 %s, v%d, s[40:43], s56 offen offset:%d sc1" % (vr(oa[j], 4), G.FA, (j % 2) * 2048), "oa%d" % j)
        def p1():
            a.vmem("buffer_load_dwordx4 %s, v%d, s[40:43], s56 offen offset:%d sc1" % (vr(oa[j] + 4, 4), G.FB, (j % 2) * 2048), "oa%d" % j)
        return [p0, p1]
    def oa_base():
        a("s_lshl_b32 s56, s14, 14")
        a("s_add_u32 s56, s56, %d" % (112 * 2048))
    oa_base()
    early = []
    for j in range(NOA):
        oa[j] = G.B + 8 * (NB2 + j); early += oa_parts(j)
    g_reduce_write(a, mid=(lambda: (rd(WPUMP), dm(WPUMP))) if WPUMP else None, pre=lambda: (a.sprinkle(list(early), E("OAGAP", 5)), (rd(E("WRD", 0)), dm(WPRE))), tail=tail1)
    g_reduce_add(a, not NOPK)
    if HELP:
        a.wait(vm="hp")
        for q in range(8):
            a("v_lshlrev_b32 v%d, 16, v%d" % (16 + 2 * q, HP_ + q))
            a("v_and_b32 v%d, 0xffff0000, v%d" % (17 + 2 * q, HP_ + q))
        v2(a, "add", 0, 0, 16, 16, not NOPK)
    if E("WST", 0): stamp(a, 6)
    a("s_barrier")
    s2.free += [(s_, None) for s_ in range(4, NS)]
    log.append("f")
    if E("WST", 0): stamp(a, 7)
    c1 = -2.0 * 0.7978845608028654 * 1.4426950408889634
    c2 = c1 * 0.044715
    left = [WDMA1]
    def ride():
        if left[0] > 0: dm(); left[0] -= 1
    a("s_mov_b32 s60, %s" % f32(c2))
    a("v_mov_b32 v48, %s" % f32(c1))
    ride()
    v2(a, "mul", 16, 0, 0, 16, not NOPK)
    ride()
    for r in range(16): a("v_fma_f32 v%d, v%d, s60, v48" % (16 + r, 16 + r))
    ride()
    v2(a, "mul", 16, 16, 0, 16, not NOPK)
    for r in range(16): a("v_exp_f32 v%d, v%d" % (16 + r, 16 + r))
    ride()
    for r in range(16): a("v_add_f32 v%d, 1.0, v%d" % (16 + r, 16 + r))
    ride()
    for r in range(16): a("v_rcp_f32 v%d, v%d" % (16 + r, 16 + r))
    ride()
    a.sprinkle_flush()
    a("""
    s_lshl_b32 s60, s66, 2
    s_and_b32 s61, s14, 2
    s_add_u32 s60, s60, s61
    s_lshl_b32 s60, s60, 11
    """)
    for i in range(2):
        v2(a, "mul", 8 * i, 8 * i, 16 + 8 * i, 8, not NOPK)
        for r in range(4): a("v_cvt_pk_bf16_f32 v%d, v%d, v%d" % (32 + 4 * i + r, 8 * i + 2 * r, 8 * i + 2 * r + 1))
        a.vmem("buffer_store_dwordx4 %s, v%d, s[40:43], s60 offen offset:%d sc1" % (vr(32 + 4 * i, 4), G.FA, i * 2048), "ust")
    if E("WST", 0): stamp(a, 8)
    nb4 = s2.nd
    for p in range(E("WDMA2", 4)):
        if s2.can_dma(): dm()
    rd(min(nb4, NB2) - s2.nr)
    a.wait(vm="ust")
    state = (s2.nd, s2.nr, list(s2.free), dict(s2.slot), list(a.vm.ops), list(a.lg.ops))
    a("s_mov_b32 s65, s14")
    a("s_branch G_JOIN2")
    a.label("G_JOIN")
    a.vm.clear(); a.lg.clear()
    s2b = Stream(a, "b", 24, 4096, 28, True, "nt", list(range(4)), NB2)
    oa_base()
    for f in early: f()
    if RESEARLY: res_loads()
    s2b.pol = W2POL
    for act in log:
        if act == "r": s2b.read()
        elif act == "d": s2b.dma()
        else: s2b.free += [(s_, None) for s_ in range(4, NS)]
    assert (s2b.nd, s2b.nr, s2b.slot) == (state[0], state[1], state[3]) and [x[0] for x in s2b.free] == [x[0] for x in state[2]]
    a.drain()
    a.label("G_JOIN2")
    a.vm.ops = state[4]; a.lg.ops = state[5]
    stamp(a, 9)
    a("s_barrier")
    live = not (ONLY2 or ONLYG)
    def f4_load(tag):
        if not live: return
        a("s_mov_b64 exec, 0x0fffffff")
        a.vmem("buffer_load_dword v%d, v%d, s[32:35], s69 offen sc1" % (G.VT, G.T0), tag)
        a("s_mov_b64 exec, -1")
    def f4_check(tag, upto):
        if not live: return
        l = a.newlabel("F4"); d = a.newlabel("F4D")
        if upto is None: a("s_mov_b32 s63, 0x0fffffff")
        else:
            a("s_mov_b32 s63, 0")
            for j_ in range(upto):
                a("s_lshr_b32 s61, s%d, 2" % SJ[j_])
                a("s_lshl_b32 s61, 15, s61")
                a("s_or_b32 s63, s63, s61")
        a.wait(vm=tag)
        sv4 = list(a.vm.ops)
        a("s_mov_b32 s60, 0")
        a.label(l)
        a("v_cmp_ne_u32 vcc, 0, v%d" % G.VT)
        a("s_and_b32 s61, vcc_lo, s63")
        a("s_cmp_eq_u32 s61, s63")
        a("s_cbranch_scc1 %s" % d)
        a("s_sleep %d" % PSL)
        f4_load(tag)
        a("s_add_u32 s60, s60, 1")
        a.drain(lg=False)
        a("s_cmp_lt_u32 s60, %s" % hex(SPIN_MAX))
        a("s_cbranch_scc1 %s" % l)
        a.label(d)
        a.vm.ops = sv4
    if FINE4:
        assert ROT2 and LEAD == 0
        a("s_lshl_b32 s69, s64, 13")
        a("s_add_u32 s69, s69, %s" % hex(SYNC_OFF + F4 * SL))
        a("s_cmp_lg_u32 s65, 0")
        a("s_cbranch_scc1 G_NOARR")
        a("s_lshl_b32 s61, s66, 8")
        a("s_add_u32 s61, s61, s69")
        arrive(a, "s61")
        a.label("G_NOARR")
        a("v_lshlrev_b32 v%d, 8, v%d" % (G.T0, G.LN))
        while s2.can_dma() and len(s2.inflight()) < AHEAD2: s2.dma()
        if not RESEARLY: res_loads()
        while s2.nd < NB2 + NS - 1: s2.pump(AHEAD2)
        f4_load("f4")
    else:
        a("s_lshl_b32 s69, s64, 8")
        a("s_add_u32 s69, s69, %s" % hex(SYNC_OFF + S4_CNT * SL))
        a("s_mov_b32 s62, 0")
        a("s_cmp_lg_u32 s65, 0")
        a("s_cbranch_scc1 G_NOARR")
        arrive_issue(a, "s69")
        a.label("G_NOARR")
        while s2.can_dma() and len(s2.inflight()) < AHEAD2: s2.dma()
        if not RESEARLY: res_loads()
        arrive_finish(a, 27, ["s69 offset:%d" % ((S4_REL - S4_CNT) * SL)], "G_NOREL")
        a.label("G_NOREL")
        a("s_add_u32 s69, s69, %d" % ((S4_REL - S4_CNT) * SL))
        while s2.nd < NB2 + NS - 1: s2.pump(AHEAD2)
        flag_issue(a, WS, "s69", G.VZ, G.VT, "f4")
    while s2.pump(AHEAD2): pass
    a.wait(vm="res")
    a("v_lshlrev_b32 v16, 16, v%d" % G.VB2)
    for i in range(2):
        a("v_permlane32_swap_b32 v%d, v%d" % (G.RES + 4 * i, G.RES + 4 * i + 2))
        a("v_permlane32_swap_b32 v%d, v%d" % (G.RES + 4 * i + 1, G.RES + 4 * i + 3))
    a("s_nop 0")
    for q in range(8):
        a("v_lshlrev_b32 v%d, 16, v%d" % (2 * q, G.RES + q))
        a("v_and_b32 v%d, 0xffff0000, v%d" % (2 * q + 1, G.RES + q))
    for r in range(16): a("v_add_f32 v%d, v%d, v16" % (r, r))
    srd(a, 20, 12, str(2048 * 896))
    stamp(a, 10)
    if E("RING6", 1): s2.ring.append(G.RES)
    LK = len(s2.ring) - 1
    G4 = E("G4", 0)
    got = [(LK + 3) // 4]
    if FINE4:
        f4_check("f4", got[0] if got[0] <= G4 else None)
        if got[0] <= G4: f4_load("f4")
    else: flag_check(a, WS, "s69", G.VZ, G.VT, "f4", PSL)
    stamp(a, 11)
    for t in range(len(s2.ring) - 1): s2.fload(t, 40)
    a("""
    s_lshl_b32 s57, s66, 16
    s_lshl_b32 s36, s14, 13
    s_add_u32 s57, s57, s36
    s_add_u32 s57, s57, {OFO}
    s_lshl_b32 s36, s14, 14
    s_and_b32 s36, s36, 0x8000
    s_xor_b32 s37, s36, 0x8000
    s_add_u32 s67, s57, s37
    s_add_u32 s57, s57, s36
    s_lshl_b32 s68, s66, 8
    s_add_u32 s68, s68, {REL}
    """.format(OFO=hex(OF_OFF), REL=hex(SYNC_OFF + S2_REL * SL)))
    free = [(p, G.B + 8 * (p % NB2)) for p in range(28 - NB2, 28)] + [(t, s2.freg(t)) for t in range(28 - len(s2.ring), 28)]
    if not E("RING6", 1): free.append((-1, G.RES))
    free.sort()
    def ob_parts(j):
        def p0():
            if j == 4:
                a("s_add_u32 s57, s57, 4096")
                a("s_add_u32 s67, s67, 4096")
            a.vmem("buffer_load_dwordx4 %s, v%d, s[32:35], s57 offen offset:%d sc1" % (vr(ob[j], 4), G.L16, (j % 4) * 1024), "ob%d" % j)
        def p1():
            a.vmem("buffer_load_dwordx4 %s, v%d, s[32:35], s67 offen offset:%d sc1" % (vr(ob[j] + 4, 4), G.L16, (j % 4) * 1024), "ob%d" % j)
        return [p0, p1]
    def ostep(j, fill):
        a.wait(vm=["oa%d" % j, "ob%d" % j])
        for n in range(4):
            uw, uf = n >> 1, n & 1
            acc = vr(G.ACC + 16 * n, 16)
            a("%s %s, %s, %s, %s" % (MF, acc, vr(oa[j] + 4 * uf, 4), vr(ob[j] + 4 * uw, 4), acc))
            if fill: fill.pop(0)()
        for f in fill: f()
    TCHK = E("TCHK", 17)
    OLAG = E("OLAG", 5)
    want = []
    for j in range(8): want += ([("a", j)] if j >= NOA else []) + [("b", j)]
    issued_at = {}; jo = 0
    def take(t, limit):
        out = []
        while want and free and free[0][0] < t and len(out) < limit:
            kind, j = want[0]
            if kind == "b" and t < TCHK:
                nxt = [w_ for w_ in want if w_[0] == "a"]
                if not nxt: break
                kind, j = nxt[0]
            want.remove((kind, j))
            reg = free.pop(0)[1]
            if kind == "a": oa[j] = reg; out += oa_parts(j)
            else: ob[j] = reg; out += ob_parts(j); issued_at[j] = t
        return out
    for t in range(28):
        if ONLY2 and t in (4, 8, 12, 16): stamp(a, 2 + t // 4)
        if FINE4 and got[0] <= G4 and (t + LK) // 4 + 1 > got[0]:
            got[0] += 1
            assert t < TCHK - 5
            f4_check("f4", got[0] if got[0] <= G4 else None)
            if got[0] <= G4: f4_load("f4")
        fill = s2.loop_fill(t, 40)
        if t == TCHK - 5:
            fill.append(lambda: a.vmem("buffer_load_dword v%d, v%d, s[32:35], s68 offen sc1" % (G.VT, G.VZ), "s2"))
        if t == TCHK:
            a.wait(vm="s2")
            a("v_readfirstlane_b32 s62, v%d" % G.VT)
            a("s_cmp_lg_u32 s62, 0")
            a("s_cbranch_scc1 G_S2_OK")
            if not E("FAKEA", 0): poll(a, WS, "s68", G.VZ, G.VT, sleep=2, keep=True)
            a.label("G_S2_OK")
            stamp(a, 12)
        fill += take(t, 4)
        s2.step(t, False, fill)
        if jo in issued_at and issued_at[jo] + OLAG <= t:
            ostep(jo, take(t + 1, 4))
            free.append((t + 1, oa[jo])); free.append((t + 1, ob[jo])); free.sort()
            jo += 1
    assert s2.nr == 28
    if ONLY2: stamp(a, 7)
    for f in take(99, 99): f()
    assert not want
    while jo < 8 - TAILM: ostep(jo, []); jo += 1
    tail2 = []
    while jo < 8:
        a.wait(vm=["oa%d" % jo, "ob%d" % jo])
        tail2.append(lambda n, j=jo: (vr(oa[j] + 4 * (n & 1), 4), vr(ob[j] + 4 * (n >> 1), 4)))
        jo += 1
    if ONLY2: stamp(a, 8)
    g_reduce_write(a, tail=tail2)
    g_reduce_add(a)
    for r in range(8): a("v_cvt_pk_bf16_f32 v%d, v%d, v%d" % (32 + r, 2 * r, 2 * r + 1))
    a("s_nop 1")
    for i in range(2):
        a("v_permlane32_swap_b32 v%d, v%d" % (32 + 4 * i, 34 + 4 * i))
        a("v_permlane32_swap_b32 v%d, v%d" % (33 + 4 * i, 35 + 4 * i))
    for i in range(2): a("buffer_store_dwordx4 %s, v%d, s[20:23], 0 offen offset:%d %s" % (vr(32 + 4 * i, 4), G.VX, 32 * i, OUTPOL))
    stamp_flush(a, 13, 60, "G")

HEADER = open("cdna_kernels/%s.s.ref" % NAME).read().split("; Override launch geometry")[0]

def main(path):
    a = Asm()
    a.label(KNAME)
    a("s_cmp_ge_u32 s2, 512")
    a("s_cbranch_scc1 K_END")
    stamp(a, 0)
    a("""
    s_load_dwordx8 s[4:11], s[0:1], 0
    s_load_dwordx4 s[28:31], s[0:1], 80
    s_load_dwordx4 s[40:43], s[0:1], 40
    s_load_dwordx4 s[52:55], s[0:1], 56
    s_load_dwordx2 s[12:13], s[0:1], 72
    v_lshrrev_b32 v1, 6, v0
    s_and_b32 s56, s2, 7
    v_readfirstlane_b32 s14, v1
    s_bfe_u32 s57, s2, 0x50003
    s_cmp_lt_u32 s2, 256
    s_cbranch_scc1 ROLE_A
    s_cmp_ge_u32 s57, 28
    s_cbranch_scc1 K_P
    s_cmp_lg_u32 s56, 7
    s_cbranch_scc1 ROLE_G
    s_add_u32 s36, s57, 32
    s_lshl_b32 s37, s57, 2
    s_add_u32 s37, s37, s14
    s_cmp_lt_u32 s37, 83
    s_cbranch_scc1 ROLE_P
    s_cmp_lt_u32 s14, {ZW}
    s_cbranch_scc1 ROLE_P
    s_sub_u32 s37, 27, s57
    s_cmp_eq_u32 s14, 3
    s_cbranch_scc1 K_Z
    s_add_u32 s37, s37, 5
    s_cmp_lt_u32 s37, 8
    s_cbranch_scc1 ROLE_P
    K_Z:
    s_lshl_b32 s38, s37, 14
    v_and_b32 v6, 63, v0
    v_lshlrev_b32 v6, 8, v6
    v_add_u32 v6, {SYA}, v6
    v_add_u32 v6, s38, v6
    v_mov_b64 v[8:9], 0
    s_waitcnt lgkmcnt(0)
    global_store_dwordx2 v6, v[8:9], s[30:31] sc1
    s_cmp_lg_u32 s37, 0
    s_cbranch_scc1 ROLE_P
    s_mov_b32 s62, 1
    s_waitcnt vmcnt(0)
    s_atomic_add s62, s[28:29], 0x0
    s_branch ROLE_P
    K_P:
    s_sub_u32 s36, s2, 480
    s_branch ROLE_P
    """.format(SYA=hex(SYNC_OFF + WSBASE), ZW=2 if DF1 else 3))
    n0 = len(a.lines)
    role_a(a)
    n1 = len(a.lines)
    role_g(a)
    if GTOP:
        n2 = a.lines.index("G_SETUP:")
        head = a.lines[n1:n2] + ["    s_branch G_SETUP"]
        if GTOP == 1: a.lines = a.lines[:n0] + head + a.lines[n0:n1] + a.lines[n2:]
        else:
            k = n0 + next(i for i, l in enumerate(a.lines[n0:n1]) if "global_load_dwordx4 v[12:15]" in l) + 1
            a.lines = a.lines[:k] + ["    s_branch A_CONT"] + head + ["A_CONT:"] + a.lines[k:n1] + a.lines[n2:]
    a.label("K_END")
    a("s_endpgm")
    a.vm.clear(); a.lg.clear()
    a.label("ROLE_P")
    if ONLY2 or ONLYG:
        a("s_cmp_lt_u32 s57, 28")
        a("s_cbranch_scc1 ROLE_G")
        a("s_endpgm")
    a("""
    s_mov_b32 s66, s36
    s_lshl_b32 s36, s36, 2
    s_add_u32 s36, s36, s14
    REMAP
    v_and_b32 v1, 63, v0
    v_lshrrev_b32 v2, 3, v1
    v_and_b32 v3, 7, v1
    v_lshlrev_b32 v3, 4, v3
    v_mov_b32 v4, {BIG}
    s_mov_b64 s[64:65], -1
    s_mov_b32 s19, 0x20000
    s_lshl_b32 s49, s14, 13
    s_cmp_ge_u32 s36, 147
    s_cbranch_scc1 P_J2
    s_mul_i32 s37, s36, 3121
    s_lshr_b32 s37, s37, 16
    s_mul_i32 s38, s37, 21
    s_sub_u32 s38, s36, s38
    s_mul_i32 s20, s37, 172032
    s_lshl_b32 s39, s38, 7
    s_add_u32 s20, s20, s39
    s_add_u32 s21, s20, 43008
    s_add_u32 s22, s21, 43008
    s_add_u32 s23, s22, 43008
    s_movk_i32 s50, 2688
    s_mov_b32 s18, {WSZ}
    s_mov_b32 s51, 8
    s_waitcnt lgkmcnt(0)
    s_mov_b32 s16, s6
    s_and_b32 s17, s7, 0xffff
    s_branch P_LD
    P_J2:
    s_mov_b32 s51, 4
    s_cmp_ge_u32 s36, 203
    s_cbranch_scc1 P_J3
    s_sub_u32 s37, s36, 147
    s_and_b32 s38, s37, 7
    s_lshr_b32 s37, s37, 3
    s_mul_i32 s20, s38, 50176
    s_lshl_b32 s39, s37, 7
    s_add_u32 s20, s20, s39
    s_add_u32 s21, s20, 14336
    s_add_u32 s22, s20, 25088
    s_add_u32 s23, s20, 39424
    s_movk_i32 s50, 896
    s_mov_b32 s18, {OSZ}
    s_waitcnt lgkmcnt(0)
    s_mov_b32 s16, s10
    s_and_b32 s17, s11, 0xffff
    s_branch P_LD
    P_J3:
    s_sub_u32 s38, s36, 203
    s_mul_i32 s20, s38, 3136
    s_add_u32 s21, s20, 896
    s_add_u32 s22, s20, 1568
    s_add_u32 s23, s20, 2464
    s_movk_i32 s50, 56
    s_cmp_lt_u32 s38, 8
    s_cselect_b32 s18, 25088, 0
    s_waitcnt lgkmcnt(0)
    s_mov_b32 s16, s8
    s_and_b32 s17, s9, 0xffff
    P_LD:
    v_mul_lo_u32 v8, v2, s50
    s_lshl_b32 s39, s50, 3
    v_add_u32 v8, v8, v3
    v_cmp_gt_u32 vcc, s51, v2
    v_add_u32 v9, s39, v8
    s_mov_b32 m0, s49
    v_cndmask_b32 v10, v4, v9, vcc
    """.format(BIG=hex(BIG), WSZ=448 * 2688, OSZ=448 * 896).replace("REMAP", """
    s_cmp_ge_u32 s36, 98
    s_cbranch_scc1 P_M2
    s_mul_i32 s37, s36, 4682
    s_lshr_b32 s37, s37, 16
    s_mul_i32 s37, s37, 7
    s_add_u32 s36, s36, s37
    s_add_u32 s36, s36, 7
    s_branch P_M9
    P_M2:
    s_cmp_ge_u32 s36, 108
    s_cbranch_scc1 P_M3
    s_add_u32 s36, s36, 105
    s_branch P_M9
    P_M3:
    s_waitcnt lgkmcnt(0)
    s_mov_b32 s44, s28
    s_and_b32 s45, s29, 0xffff
    s_mov_b32 s46, 256
    s_mov_b32 s47, 0x20000
    v_mov_b32 v5, 0
    s_movk_i32 s58, 0x80
    s_mov_b32 s60, 0
    P_MW:
    buffer_load_dword v4, v5, s[44:47], s58 offen sc1
    s_add_u32 s60, s60, 1
    s_waitcnt vmcnt(0)
    v_readfirstlane_b32 s61, v4
    s_cmp_lg_u32 s61, 0
    s_cbranch_scc1 P_MD
    s_sleep 8
    s_cmp_lt_u32 s60, 0x40000
    s_cbranch_scc1 P_MW
    P_MD:
    s_setprio 3
    s_sub_u32 s36, s36, 108
    s_cmp_ge_u32 s36, 49
    s_cbranch_scc1 P_M4
    s_mul_i32 s37, s36, 37
    s_lshr_b32 s37, s37, 8
    s_mul_i32 s37, s37, 14
    s_add_u32 s36, s36, s37
    s_branch P_M9
    P_M4:
    s_add_u32 s36, s36, 98
    s_cmp_ge_u32 s36, 203
    s_cselect_b32 s36, 239, s36
    P_M9:
    """ if TWO else ""))
    stamp(a, 2)
    for u in range(4):
        a.vmem("buffer_load_dwordx4 v8, s[16:19], s%d offen nt lds" % (20 + u), "u%d" % u)
        a("s_add_u32 m0, s49, %d" % (u * 2048 + 1024))
        a("s_nop 0")
        a.vmem("buffer_load_dwordx4 v%d, s[16:19], s%d offen nt lds" % (10 if u % 2 else 9, 20 + u), "u%d" % u)
        if u < 3:
            a("s_add_u32 m0, s49, %d" % (u * 2048 + 2048))
            a("s_nop 0")
    def code_pf():
        a("""
        s_cmp_lt_u32 s57, 28
        s_cbranch_scc1 P_NOCODE
        s_getpc_b64 s[60:61]
        K_PC:
        s_sub_u32 s60, s60, K_PC-{K}
        s_subb_u32 s61, s61, 0
        s_and_b32 s58, s57, 3
        s_lshl_b32 s58, s58, 12
        v_lshl_add_u32 v5, v0, 4, s58
        global_load_dwordx4 v[64:67], v5, s[60:61]
        v_add_u32 v5, 0x4000, v5
        v_min_u32 v5, CODE_END-{K}-16, v5
        global_load_dwordx4 v[68:71], v5, s[60:61]
        P_NOCODE:
        """.format(K=KNAME))
    if E("CODEPF", 1) == 1: code_pf()
    ws_base(a)
    srd(a, WS, 30, hex(WS_USED))
    srd(a, DBG, 28, "256")
    a("""
    v_mov_b32 v5, 0
    v_bfe_u32 v13, v1, 2, 2
    v_lshlrev_b32 v13, 7, v13
    v_lshrrev_b32 v14, 4, v1
    v_lshl_add_u32 v13, v14, 5, v13
    v_and_b32 v14, 3, v1
    v_lshl_add_u32 v13, v14, 3, v13
    v_add_u32 v13, s49, v13
    s_cmp_ge_u32 s36, 147
    s_cbranch_scc1 P_D2
    s_mul_i32 s39, s38, 37
    s_lshr_b32 s39, s39, 8
    s_mul_i32 s48, s39, 7
    s_sub_u32 s48, s38, s48
    s_lshl_b32 s48, s48, 6
    v_add_u32 v6, s48, v1
    v_mul_u32_u24 v7, 2341, v6
    v_lshrrev_b32 v7, 16, v7
    v_mul_u32_u24 v11, 28, v7
    v_sub_u32 v11, v6, v11
    v_lshlrev_b32 v11, 4, v11
    v_mul_u32_u24 v7, {WPH}, v7
    v_add_u32 v11, v11, v7
    v_add_u32 v12, 448, v11
    s_cmp_eq_u32 s39, 0
    s_cselect_b32 s48, 1, 2
    s_mul_i32 s48, s48, 896
    s_mul_i32 s24, s39, 896
    s_sub_u32 s24, s24, 896
    s_cmp_eq_u32 s39, 0
    s_cselect_b32 s24, {WPQ}, s24
    s_lshl_b32 s37, s37, 2
    s_mul_i32 s37, s37, s48
    s_add_u32 s24, s24, s37
    s_add_u32 s24, s24, {WPO}
    s_add_u32 s25, s24, s48
    s_add_u32 s26, s25, s48
    s_add_u32 s27, s26, s48
    v_add_u32 v14, 512, v13
    v_add_u32 v15, 1024, v13
    s_branch P_ST
    P_D2:
    v_add_u32 v14, 1024, v13
    v_add_u32 v15, 512, v13
    v_lshrrev_b32 v6, 5, v1
    v_and_b32 v7, 31, v1
    v_lshlrev_b32 v11, 4, v7
    s_cmp_ge_u32 s36, 203
    s_cbranch_scc1 P_D3
    v_lshl_add_u32 v11, v6, 10, v11
    v_add_u32 v12, 512, v11
    s_mul_i32 s24, s37, {UPG}
    s_lshl_b32 s39, s38, 13
    s_add_u32 s24, s24, s39
    s_add_u32 s24, s24, {OB}
    s_add_u32 s25, s24, 2048
    s_add_u32 s26, s24, 4096
    s_add_u32 s27, s24, 6144
    s_branch P_ST
    P_D3:
    v_mul_u32_u24 v6, 0x7f0000, v6
    v_lshl_add_u32 v11, v6, 4, v11
    v_add_u32 v12, 512, v11
    s_mul_i32 s24, s38, {WPH2}
    s_add_u32 s24, s24, {PHB}
    s_cmp_lt_u32 s38, 8
    s_cselect_b32 s24, s24, 0x08000000
    s_add_u32 s25, s24, 1024
    s_add_u32 s26, s24, {WPH}
    s_add_u32 s27, s26, 1024
    s_mov_b32 s64, 0x0fffffff
    P_ST:
    """.format(WPH=WP_H, WPQ=WP_Q, WPO=hex(WP_OFF), UPG=UP_G, OB=hex(UP_OFF + 112 * 2048), WPH2=2 * WP_H, PHB=hex(WP_OFF + WP_PHI)))
    stamp(a, 3)
    for u in range(4):
        b = 16 + 8 * u
        a.wait(vm="u%d" % u)
        a.ds("ds_read_b64_tr_b16 %s, v13 offset:%d" % (vr(b, 2), u * 2048), "t%d" % u)
        a.ds("ds_read_b64_tr_b16 %s, v14 offset:%d" % (vr(b + 2, 2), u * 2048), "t%d" % u)
        a.ds("ds_read_b64_tr_b16 %s, v15 offset:%d" % (vr(b + 4, 2), u * 2048), "t%d" % u)
        a.ds("ds_read_b64_tr_b16 %s, v13 offset:%d" % (vr(b + 6, 2), u * 2048 + 1536), "t%d" % u)
    stamp(a, 4)
    for u in range(4):
        b = 16 + 8 * u
        a.wait(lg="t%d" % u)
        for r in range(8): a("v_cndmask_b32 v%d, 0, v%d, s[64:65]" % (b + r, b + r))
        a.vmem("buffer_store_dwordx4 %s, v11, s[32:35], s%d offen sc1" % (vr(b, 4), 24 + u))
        a.vmem("buffer_store_dwordx4 %s, v12, s[32:35], s%d offen sc1" % (vr(b + 4, 4), 24 + u))
    a.vmem("buffer_load_dword v4, v5, s[44:47], 0 offen sc1")
    stamp(a, 5)
    a.drain()
    stamp(a, 6)
    a("s_barrier")
    a("s_cmp_lg_u32 s14, 0")
    a("s_cbranch_scc1 P_NOARR")
    a("v_readfirstlane_b32 s61, v4")
    a("s_cmp_lg_u32 s61, 0")
    a("s_cbranch_scc1 P_RDY")
    poll(a, DBG, "0", 5, 4)
    a.label("P_RDY")
    assert SV_REL - SV_CNT == SW_REL - SW_CNT
    a("s_mov_b32 s20, %s" % hex(SYNC_OFF + SW_CNT * SL))
    a("s_mov_b32 s21, 59")
    if TWO:
        a("s_cmp_lt_u32 s66, 27")
        a("s_cselect_b32 s21, 26, 32")
        a("s_cselect_b32 s22, 0, %d" % ((SV_CNT - SW_CNT) * SL))
        a("s_add_u32 s20, s20, s22")
    arrive_issue(a, "s20")
    a.drain(vm=False)
    a("s_cmp_lg_u32 s62, s21")
    a("s_cbranch_scc1 P_NOARR")
    a("s_mov_b32 s62, 1")
    for i in range(8): a("s_atomic_add s62, s[30:31], s20 offset:%d" % ((SW_REL - SW_CNT + i) * SL))
    a.label("P_NOARR")
    if WSBASE:
        a("s_sub_u32 s30, s30, %s" % hex(WSBASE))
        a("s_subb_u32 s31, s31, 0")
    a("s_cmp_lt_u32 s57, 28")
    a("s_cbranch_scc1 ROLE_G")
    stamp(a, 1)
    if ONLYA or not E("PON", 1): a("s_endpgm")
    a("""
    s_and_b32 s36, s57, 3
    s_lshl_b32 s37, s56, 2
    s_add_u32 s37, s37, s36
    s_lshl_b32 s37, s37, 7
    s_mul_i32 s58, s14, {W64}
    s_add_u32 s58, s58, s37
    s_add_u32 s58, s58, {R0}
    s_cmp_eq_u32 s56, 7
    s_cselect_b32 s58, 0x08000000, s58
    v_mul_u32_u24 v6, 3584, v2
    v_add_u32 v6, v6, v3
    """.format(W64=64 * 3584, R0=1792 * 3584))
    srd(a, 16, 40, str(2048 * 3584))
    for i in range(0 if HELP else 8):
        a("buffer_load_dwordx4 %s, v6, s[16:19], s58 offen nt" % vr(16 + 4 * i, 4))
        a("s_add_u32 s58, s58, %d" % (8 * 3584))
    a("""
    s_lshl_b32 s36, s36, 2
    s_add_u32 s36, s36, s14
    v_lshrrev_b32 v2, 5, v1
    v_lshlrev_b32 v2, 12, v2
    v_and_b32 v3, 31, v1
    v_lshl_add_u32 v2, v3, 4, v2
    s_lshl_b32 s58, s56, 9
    v_add_u32 v2, s58, v2
    v_lshlrev_b32 v1, 4, v1
    v_mov_b32 v3, 0
    s_mul_i32 s37, s56, 229376
    """)
    srd(a, 24, 52, str(1792 * 4096))
    srd(a, 16, 4, "229376", add="s37")
    PD = E("PDEPTH", 8)
    a("s_setprio %d" % E("PRIO_P", 0))
    def pf_loop(lbl, srdn, vaddr, step, limit, pol):
        a.label(lbl)
        for i in range(8):
            a("s_waitcnt vmcnt(%d)" % (PD - 1))
            a("buffer_load_dwordx4 %s, v%d, s[%d:%d], s58 offen %s" % (vr(8 + 4 * i, 4), vaddr, srdn, srdn + 3, pol))
            a("s_add_u32 s58, s58, %d" % step)
        a("s_cmp_lt_u32 s58, %s" % limit)
        a("s_cbranch_scc1 %s" % lbl)
    def blk8k(sreg):
        a("s_waitcnt vmcnt(4)")
        for i in range(4): a("buffer_load_dwordx4 %s, v1, s[32:35], %s offen offset:%d sc1" % (vr(8 + 4 * i, 4), sreg, i * 1024))
        a("s_add_u32 s63, %s, 4096" % sreg)
        a("s_waitcnt vmcnt(4)")
        for i in range(4): a("buffer_load_dwordx4 %s, v1, s[32:35], s63 offen offset:%d sc1" % (vr(24 + 4 * i, 4), i * 1024))
    def tail_groups(lbl, base, gstride, n, with7, flag):
        a("s_and_b32 s48, s57, 3")
        a.label(lbl)
        if flag is not None:
            a("s_lshl_b32 s58, s48, 8")
            a("s_add_u32 s58, s58, %s" % hex(flag))
            poll(a, WS, "s58", 3, 4, sleep=4)
        a("s_mul_i32 s49, s48, %d" % gstride)
        a("s_lshl_b32 s50, s14, 13")
        a("s_add_u32 s49, s49, s50")
        a("s_add_u32 s49, s49, %s" % hex(base))
        for q in range(n):
            if with7 and q == n - 1: a("s_add_u32 s51, s49, %d" % (7 * 32768))
            else:
                back = n - (1 if with7 else 0) - q
                a("s_add_u32 s51, s48, %d" % (7 - back))
                a("s_sub_u32 s50, s51, 7")
                a("s_cselect_b32 s51, s51, s50")
                a("s_lshl_b32 s51, s51, 15")
                a("s_add_u32 s51, s51, s49")
            blk8k("s51")
        a("s_add_u32 s48, s48, 4")
        a("s_cmp_lt_u32 s48, 7")
        a("s_cbranch_scc1 %s" % lbl)
    def wait_s0():
        a("s_movk_i32 s58, 0x80")
        poll(a, DBG, "s58", 3, 4, sleep=8)
    def pf_wo():
        a("s_lshl_b32 s58, s36, 12")
        a("s_add_u32 s58, s58, %s" % hex(UP_OFF + 112 * 2048))
        for g_ in range(7):
            a("s_waitcnt vmcnt(4)")
            for i in range(4): a("buffer_load_dwordx4 %s, v1, s[32:35], s58 offen offset:%d sc1" % (vr(8 + 16 * (g_ % 2) + 4 * i, 4), i * 1024))
            a("s_add_u32 s58, s58, %d" % UP_G)
    if not E("PEARLY", 0): wait_s0()
    stamp(a, 2)
    a("s_lshl_b32 s58, s36, 13")
    pf_loop("P_W2", 24, 2, 16 * 8192, str(E("PFA", 1024) * 4096), PFPOL)
    stamp(a, 3)
    a("s_mov_b32 s48, s58")
    if E("PWO", 2) == 1: pf_wo()
    a("s_lshl_b32 s58, s36, 10")
    if E("PX", 1): pf_loop("P_X", 16, 1, 16 * 1024, "229376", PFPOL)
    stamp(a, 4)
    a("s_mov_b32 s58, s48")
    if E("PTAIL", 1): pf_loop("P_W3", 24, 2, 16 * 8192, str(1792 * 4096), PFPOL)
    stamp(a, 5)
    if E("PEARLY", 0): wait_s0()
    if E("PWO", 2) == 2: pf_wo()
    if E("NUT", 0): tail_groups("P_UT", UP_OFF, UP_G, E("NUT", 0), False, SYNC_OFF + S4_REL * SL)
    if E("POF", 0):
        a("s_and_b32 s48, s57, 3")
        a("s_lshl_b32 s49, s56, 2")
        a("s_add_u32 s48, s48, s49")
        a("s_lshl_b32 s58, s48, 8")
        a("s_add_u32 s58, s58, %s" % hex(SYNC_OFF + S2_REL * SL))
        poll(a, WS, "s58", 3, 4, sleep=4)
        a("s_lshl_b32 s51, s48, 16")
        a("s_lshl_b32 s50, s14, 14")
        a("s_add_u32 s51, s51, s50")
        a("s_add_u32 s51, s51, %s" % hex(OF_OFF))
        blk8k("s51")
        a("s_add_u32 s51, s51, 8192")
        blk8k("s51")
    if STAMP == 1: stamp_flush(a, 7, 60)
    a("s_endpgm")
    a.label("CODE_END")
    if DIAG:
        out = HEADER + "; @launch kernel=%s grid=(512,1,1) block=(256,1,1) lds=81920\n; @launch kernel=diag_kernel grid=(1,1,1) block=(64,1,1) lds=0\n" % KNAME
        a.lines += [".globl diag_kernel", ".p2align 8", ".type diag_kernel,@function"]
        a("""
        diag_kernel:
        s_cmp_lg_u32 s2, 0
        s_cbranch_scc1 DG_END
        s_load_dwordx2 s[4:5], s[0:1], 80
        s_waitcnt lgkmcnt(0)
        s_sub_u32 s4, s4, 512
        s_subb_u32 s5, s5, 0
        s_load_dwordx2 s[6:7], s[4:5], 128
        s_memrealtime s[8:9]
        s_waitcnt lgkmcnt(0)
        s_not_b32 s6, s6
        s_sub_u32 s6, s7, s6
        s_min_u32 s6, s6, 10000
        s_mul_i32 s6, s6, %d
        DG_L:
        s_memrealtime s[10:11]
        s_waitcnt lgkmcnt(0)
        s_sub_u32 s10, s10, s8
        s_cmp_lt_u32 s10, s6
        s_cbranch_scc1 DG_L
        DG_END:
        s_endpgm
        """ % E("AMP", 10))
    else:
        out = HEADER + "; @launch grid=(512,1,1) block=(256,1,1) lds=81920\n"
    out += '.amdgcn_target "amdgcn-amd-amdhsa--gfx950"\n.text\n.globl %s\n.p2align 8\n.type %s,@function\n' % (KNAME, KNAME)
    out += a.text()
    out += """.section .rodata,"a"
.p2align 6
.amdhsa_kernel {n}
  .amdhsa_next_free_vgpr 256
  .amdhsa_next_free_sgpr {s}
  .amdhsa_accum_offset 256
  .amdhsa_group_segment_fixed_size 0
  .amdhsa_kernarg_size 96
  .amdhsa_user_sgpr_count 2
  .amdhsa_user_sgpr_kernarg_segment_ptr 1
  .amdhsa_system_sgpr_workgroup_id_x 1
  .amdhsa_float_denorm_mode_32 3
.end_amdhsa_kernel
""".format(n=KNAME, s=100 if STAMP else 72)
    if DIAG:
        out += """.p2align 6
.amdhsa_kernel diag_kernel
  .amdhsa_next_free_vgpr 8
  .amdhsa_next_free_sgpr 32
  .amdhsa_accum_offset 8
  .amdhsa_group_segment_fixed_size 0
  .amdhsa_kernarg_size 96
  .amdhsa_user_sgpr_count 2
  .amdhsa_user_sgpr_kernarg_segment_ptr 1
  .amdhsa_system_sgpr_workgroup_id_x 1
.end_amdhsa_kernel
"""
    if E("NONT", 1):
        import re
        out = re.sub(r" nt$", "", out, flags=re.M).replace(" nt lds", " lds")
    open(path, "w").write(out)

if __name__ == "__main__":
    main(sys.argv[1])
```

```python
import sys, struct, os

NAME = "parallel_sum__linear_kernel_hedgehog__mixer_token_mlp__prompt"
KNAME = NAME + "_kernel"
E = lambda k, d: int(os.environ.get(k, str(d)))

XN_OFF   = 0x000000
HT_OFF   = 0x200000
HT_G     = 128 * 2048
WP_OFF   = 0x400000
WP_Q     = 28 * 1792
WP_PHI   = 28 * 2688
WP_H     = WP_PHI + 2048 + 512
UP_OFF   = 0x600000
UP_G     = 144 * 2048
KVF_OFF  = 0x800000
SYNC_OFF = 0x840000
OF_OFF   = 0x900000
KVP_OFF  = 0xB00000
PART_OFF = 0xD00000
WS_USED  = 0x1000000
STAMP_OFF = 0xF00000
BIG      = 0x7ff00000
SL = 256
SX_CNT, SX_REL = 0, 16
SW_CNT, SW_REL = 32, 48
S1_CNT, S1_REL = 64, 80
SV_CNT, SV_REL = 96, 112
S2_CNT, S2_REL = 128, 160
S4_CNT, S4_REL = 192, 200
SA_ROOT = 60
SA_REP = 208
SH_REL = 224
F4 = 256
NSYNC = 512
SPIN_MAX = 0x40000

STAMP = E("STAMP", 0); PRIO_A = E("PRIO_A", 2); PRIO_G = E("PRIO_G", 1); AHEAD = E("AHEAD", 4); W2START = E("W2START", 32)
NB, NF, NS = E("NB", 16), E("NF", 5), 10
LEAD = E("LEAD", 0)
XPRE = E("XPRE", 12)
PSL = E("PSL", 1)
WDMA1 = E("WDMA1", 3)
WPRE = E("WPRE", 4)
NOPK = E("NOPK", 0)
NOA = E("NOA", 0)
TWO = E("TWO", 0)
GTOP = E("GTOP", 2)
TAILM = E("TAILM", 3)
FINE4 = E("FINE4", 1)
FLOOK = E("FLOOK", 7)
HELP = E("HELP", 0)
NK1 = 28 if HELP else 32
NB2 = NB - NOA
ROT2 = E("ROT2", 1)
INL0 = E("INL0", 18)
INLN = E("INLN", 0)
INLP = E("INLP", 1)
WPUMP = E("WPUMP", 0)
AHEAD2 = E("AHEAD2", 5)
PFW2 = E("PFW2", 0)
PRIO_Q = E("PRIO_Q", 0)
PRIO_K = E("PRIO_K", 2)
JOBLATE = E("JOBLATE", 1)
BURST = E("BURST", 4)
PFPOL = os.environ.get("PFPOL", "")
NP = E("NP", 0)
AHEAD0 = E("AHEAD0", 5)
ALOOK = E("ALOOK", 99)
W2POL = os.environ.get("W2POL", "")
W1POL2 = os.environ.get("W1POL2", "")
RESEARLY = E("RESEARLY", 0)
WSBASE = E("WSBASE", 0)
ONLY2 = E("ONLY2", 0)
ONLYG = E("ONLYG", 0)
ONLYA = E("ONLYA", 0)
GWAIT = E("GWAIT", 0)
PFWAIT = E("PFWAIT", 0)
OUTPOL = os.environ.get("OUTPOL", "")

def f32(x): return "0x%08x" % struct.unpack("<I", struct.pack("<f", x))[0]

class Q:
    def __init__(self, mx): self.ops = []; self.mx = mx
    def issue(self, tag): self.ops.append(tag)
    def need(self, tags):
        if not isinstance(tags, (list, tuple, set)): tags = [tags]
        idx = -1
        for i, t in enumerate(self.ops):
            if t in tags: idx = i
        if idx < 0: return None
        n = len(self.ops) - 1 - idx
        if n > self.mx: return self.mx
        self.ops = self.ops[idx + 1:]
        return n
    def clear(self): self.ops = []

class Asm:
    def __init__(self):
        self.lines = []; self.vm = Q(63); self.lg = Q(15); self.uid = 0; self.issued = []; self.spr = []; self.pending = False
    def sprinkle(self, fns, gap): self.spr = fns; self.gap = gap; self.cnt = 0
    def sprinkle_flush(self):
        fns, self.spr = self.spr, []
        for f in fns: f()
    def __call__(self, s):
        for l in s.strip().split("\n"):
            l = l.strip()
            if l.endswith(":"): self.lines.append(l)
            elif l: self.lines.append("    " + l)
        if self.spr and s.lstrip().startswith(("v_", "ds_")):
            self.cnt += 1
            if self.cnt >= self.gap:
                self.cnt = 0
                self.spr.pop(0)()
    def label(self, l): self.lines.append(l + ":")
    def vmem(self, s, tag=None): self(s); self.vm.issue(tag); self.issued.append(tag)
    def ds(self, s, tag=None): self(s); self.lg.issue(tag)
    def wait(self, vm=None, lg=None):
        p = []
        for q, t, nm in ((self.vm, vm, "vmcnt"), (self.lg, lg, "lgkmcnt")):
            if t is None: continue
            n = q.need(t)
            if n is None: continue
            if len(q.ops) > n: q.ops = q.ops[len(q.ops) - n:]
            p.append("%s(%d)" % (nm, n))
        if p: self("s_waitcnt " + " ".join(p))
    def drain(self, vm=True, lg=True):
        p = []
        if vm: p.append("vmcnt(0)"); self.vm.clear()
        if lg: p.append("lgkmcnt(0)"); self.lg.clear()
        self("s_waitcnt " + " ".join(p))
    def newlabel(self, p): self.uid += 1; return "%s_%d" % (p, self.uid)
    def text(self): return "\n".join(self.lines) + "\n"

def vr(a, n): return "v[%d:%d]" % (a, a + n - 1)

def srd(a, d, base, size, add=None):
    if add is None:
        a("s_mov_b32 s%d, s%d" % (d, base))
        a("s_and_b32 s%d, s%d, 0xffff" % (d + 1, base + 1))
    else:
        a("s_add_u32 s%d, s%d, %s" % (d, base, add))
        a("s_addc_u32 s%d, s%d, 0" % (d + 1, base + 1))
        a("s_and_b32 s%d, s%d, 0xffff" % (d + 1, d + 1))
    a("s_mov_b32 s%d, %s" % (d + 2, size))
    a("s_mov_b32 s%d, 0x20000" % (d + 3))

WS = 32
DBG = 44

def ws_base(a):
    if WSBASE:
        a("s_add_u32 s30, s30, %s" % hex(WSBASE))
        a("s_addc_u32 s31, s31, 0")

def stamp(a, i):
    if STAMP == 3 and i not in (0, 13): return
    if STAMP:
        a("%s s[%d:%d]" % ("s_memtime" if STAMP == 2 else "s_memrealtime", 70 + 2 * i, 71 + 2 * i))
        a.drain(vm=False)
DIAG = os.environ.get("DIAG", "")
def stamp_flush(a, n, tmp, role=""):
    if not STAMP: return
    a.drain()
    stamp(a, n)
    if DIAG:
        a("s_mov_b64 exec, 1")
        a("v_mov_b32 v%d, 0" % tmp)
        a("s_not_b32 s98, s70")
        a("v_mov_b32 v%d, s98" % (tmp + 1))
        a("buffer_atomic_umax v%d, v%d, s[44:47], 0 offen offset:128 sc1" % (tmp + 1, tmp))
        if DIAG[0] == role:
            a("v_mov_b32 v%d, s%d" % (tmp + 2, 70 + 2 * int(DIAG[1:])))
            a("buffer_atomic_umax v%d, v%d, s[44:47], 0 offen offset:132 sc1" % (tmp + 2, tmp))
        return
    a("s_mov_b64 exec, 1")
    a("s_lshl_b32 s98, s2, 8")
    a("s_lshl_b32 s99, s14, 6")
    a("s_add_u32 s98, s98, s99")
    a("s_add_u32 s98, s98, %s" % hex(STAMP_OFF))
    a("v_mov_b32 v%d, 0" % tmp)
    if STAMP == 3:
        if n == 13:
            a("v_mov_b32 v%d, s70" % (tmp + 1))
            a("v_mov_b32 v%d, s96" % (tmp + 2))
            a("buffer_store_dword v%d, v%d, s[32:35], s98 offen" % (tmp + 1, tmp))
            a("buffer_store_dword v%d, v%d, s[32:35], s98 offen offset:52" % (tmp + 2, tmp))
        return
    for i in range(n + 1):
        a("v_mov_b32 v%d, s%d" % (tmp + 1, 70 + 2 * i))
        a("buffer_store_dword v%d, v%d, s[32:35], s98 offen offset:%d" % (tmp + 1, tmp, 4 * i))
        a("s_waitcnt vmcnt(0)")

def poll(a, srdn, soff, vz, vt, sleep=1, target=1, keep=False):
    if ONLY2 or ONLYG: return
    sv = list(a.vm.ops)
    l = a.newlabel("POLL"); d = a.newlabel("POLLD")
    a("s_mov_b32 s60, 0")
    a("s_mov_b64 exec, 1")
    a.label(l)
    a("buffer_load_dword v%d, v%d, s[%d:%d], %s offen sc1" % (vt, vz, srdn, srdn + 3, soff))
    a("s_add_u32 s60, s60, 1")
    a.drain(lg=False)
    a("v_readfirstlane_b32 s61, v%d" % vt)
    a("s_cmp_ge_u32 s61, %d" % target)
    a("s_cbranch_scc1 %s" % d)
    if sleep: a("s_sleep %d" % sleep)
    a("s_cmp_lt_u32 s60, %s" % hex(SPIN_MAX))
    a("s_cbranch_scc1 %s" % l)
    a.label(d)
    a("s_mov_b64 exec, -1")
    if keep: a.vm.ops = sv

def arrive_issue(a, soff):
    a("s_mov_b32 s62, 1")
    a("s_atomic_add s62, s[30:31], %s glc" % soff)
def arrive_finish(a, last, srels, skip):
    a.drain(vm=False)
    a("s_cmp_lg_u32 s62, %d" % last)
    a("s_cbranch_scc1 %s" % skip)
    a("s_mov_b32 s62, 1")
    for r in srels: a("s_atomic_add s62, s[30:31], %s" % r)

def flag_issue(a, srdn, soff, vz, vt, tag):
    if ONLY2 or ONLYG: return
    a.vmem("buffer_load_dword v%d, v%d, s[%d:%d], %s offen sc1" % (vt, vz, srdn, srdn + 3, soff), tag)
def flag_check(a, srdn, soff, vz, vt, tag, sleep):
    if ONLY2 or ONLYG: return
    ok = a.newlabel("FLAG")
    a.wait(vm=tag)
    a("v_readfirstlane_b32 s61, v%d" % vt)
    a("s_cmp_lg_u32 s61, 0")
    a("s_cbranch_scc1 %s" % ok)
    poll(a, srdn, soff, vz, vt, sleep=sleep, keep=True)
    a.label(ok)

def arrive(a, soff):
    a("s_mov_b32 s62, 1")
    a("s_atomic_add s62, s[30:31], %s" % soff)

def round_bf16(a, d, s):
    a("v_cvt_pk_bf16_f32 v%d, v%d, v%d" % (d, s, s))
    a("v_lshlrev_b32 v%d, 16, v%d" % (d, d))

def half_reduce(a, regs, tmps):
    steps = ["quad_perm:[1,0,3,2] row_mask:0xf bank_mask:0xf", "quad_perm:[2,3,0,1] row_mask:0xf bank_mask:0xf",
             "row_half_mirror row_mask:0xf bank_mask:0xf", "row_mirror row_mask:0xf bank_mask:0xf"]
    for st in steps:
        a("s_nop %d" % (1 if len(regs) == 1 else 0))
        for r in regs: a("v_add_f32_dpp v%d, v%d, v%d %s" % (r, r, r, st))
    for r, t in zip(regs, tmps): a("v_mov_b32 v%d, v%d" % (t, r))
    a("s_nop 1")
    for r, t in zip(regs, tmps): a("v_permlane16_swap_b32 v%d, v%d" % (r, t))
    a("s_nop 0")
    for r, t in zip(regs, tmps): a("v_add_f32 v%d, v%d, v%d" % (r, r, t))

MF = "v_mfma_f32_32x32x16_bf16"

def role_a(a):
    LN, VA, VB, VC, VD, VZ, VT, VH = 250, 251, 252, 253, 254, 248, 249, 255
    a.label("ROLE_A")
    if ONLY2 or ONLYG: a("s_endpgm")
    JB = 16384
    a("""
    s_lshr_b32 s38, s56, 1
    s_lshl_b32 s38, s38, 2
    s_and_b32 s39, s57, 3
    s_add_u32 s38, s38, s39
    s_and_b32 s39, s56, 1
    s_lshl_b32 s39, s39, 3
    s_lshr_b32 s57, s57, 2
    s_add_u32 s39, s39, s57
    s_lshl_b32 s15, s38, 4
    s_add_u32 s15, s15, s39
    v_and_b32 v{VC}, 31, v0
    v_lshrrev_b32 v2, 5, v0
    s_mul_i32 s20, s15, 7168
    v_min_u32 v4, 27, v{VC}
    v_mul_u32_u24 v3, 896, v2
    v_lshl_add_u32 v3, v4, 5, v3
    v_add_u32 v4, s20, v3
    s_waitcnt lgkmcnt(0)
    global_load_dwordx4 v[8:11], v4, s[4:5] nt
    global_load_dwordx4 v[12:15], v4, s[4:5] offset:16 nt
    s_mov_b32 s58, 0x0fffffff
    s_mov_b32 s59, 0x0fffffff
    s_setprio {PRIO}
    s_mul_i32 s25, s39, {WPH}
    s_add_u32 s25, s25, {WPO}
    v_and_b32 v{LN}, 63, v0
    v_bfe_u32 v{VH}, v0, 5, 1
    v_mov_b32 v{VZ}, 0
    v_lshlrev_b32 v{VA}, 4, v{LN}
    v_mul_u32_u24 v{VB}, 448, v{VH}
    v_lshl_add_u32 v{VB}, v{VC}, 4, v{VB}
    """.format(VC=VC, SYA=hex(SYNC_OFF + WSBASE), PRIO=PRIO_A, WPH=WP_H, WPO=hex(WP_OFF), LN=LN, VH=VH, VZ=VZ, VA=VA, VB=VB))
    a.vm.issue("x"); a.vm.issue("x")
    ws_base(a)
    srd(a, WS, 30, hex(WS_USED))
    srd(a, DBG, 28, "256")
    P, X, T = 8, 16, 32
    def unpack(dst, src):
        for i in range(8):
            a("v_lshlrev_b32 v%d, 16, v%d" % (dst + 2 * i, src + i))
            a("v_and_b32 v%d, 0xffff0000, v%d" % (dst + 2 * i + 1, src + i))
    def pack(dst, src):
        for i in range(8): a("v_cvt_pk_bf16_f32 v%d, v%d, v%d" % (dst + i, src + 2 * i, src + 2 * i + 1))
    def pksum(dst, src):
        a("v_pk_add_f32 %s, %s, %s" % (vr(dst, 2), vr(src, 2), vr(src + 2, 2)))
        a("v_pk_add_f32 %s, %s, %s" % (vr(dst + 2, 2), vr(src + 4, 2), vr(src + 6, 2)))
        for i in (8, 12):
            a("v_pk_add_f32 %s, %s, %s" % (vr(dst, 2), vr(dst, 2), vr(src + i, 2)))
            a("v_pk_add_f32 %s, %s, %s" % (vr(dst + 2, 2), vr(dst + 2, 2), vr(src + i + 2, 2)))
        a("v_pk_add_f32 %s, %s, %s" % (vr(dst, 2), vr(dst, 2), vr(dst + 2, 2)))
        a("v_add_f32 v%d, v%d, v%d" % (dst, dst, dst + 1))
    def pksq(dst, src):
        a("v_pk_mul_f32 %s, %s, %s" % (vr(dst, 2), vr(src, 2), vr(src, 2)))
        a("v_pk_mul_f32 %s, %s, %s" % (vr(dst + 2, 2), vr(src + 2, 2), vr(src + 2, 2)))
        for i in (4, 8, 12):
            a("v_pk_fma_f32 %s, %s, %s, %s" % (vr(dst, 2), vr(src + i, 2), vr(src + i, 2), vr(dst, 2)))
            a("v_pk_fma_f32 %s, %s, %s, %s" % (vr(dst + 2, 2), vr(src + i + 2, 2), vr(src + i + 2, 2), vr(dst + 2, 2)))
        a("v_pk_add_f32 %s, %s, %s" % (vr(dst, 2), vr(dst, 2), vr(dst + 2, 2)))
        a("v_add_f32 v%d, v%d, v%d" % (dst, dst, dst + 1))
    def pksub(dst, src, m):
        for i in range(0, 16, 2):
            a("v_pk_add_f32 %s, %s, %s op_sel_hi:[1,0] neg_lo:[0,1] neg_hi:[0,1]" % (vr(dst + i, 2), vr(src + i, 2), vr(m, 2)))
    def pkmul(dst, src, m):
        for i in range(0, 16, 2): a("v_pk_mul_f32 %s, %s, %s op_sel_hi:[1,0]" % (vr(dst + i, 2), vr(src + i, 2), vr(m, 2)))
    def scale_from_var(r):
        round_bf16(a, r, r)
        a("v_add_f32 v%d, %s, v%d" % (r, f32(1e-5), r))
        round_bf16(a, r, r)
        a("v_sqrt_f32 v%d, v%d" % (r, r))
        a("s_nop 0")
        round_bf16(a, r, r)
        a("v_rcp_f32 v%d, v%d" % (r, r))
    inv = f32(1.0 / 448.0)
    S, S2, M, RS_, C2, D2 = 72, 76, 80, 82, 84, 86
    HB, HP = 7168, 912
    a("""
    v_lshl_add_u32 v5, v2, 4, v3
    v_bfe_u32 v88, v{LN}, 2, 2
    v_mul_u32_u24 v88, {HP}, v88
    v_lshrrev_b32 v89, 4, v{LN}
    v_lshl_add_u32 v88, v89, 5, v88
    v_and_b32 v89, 3, v{LN}
    v_lshl_add_u32 v88, v89, 3, v88
    s_lshl_b32 s20, s14, 7
    v_add_u32 v88, s20, v88
    v_lshlrev_b32 v92, 10, v{VH}
    v_lshl_add_u32 v92, v{VC}, 4, v92
    v_and_b32 v89, 7, v{LN}
    v_lshrrev_b32 v90, 3, v{LN}
    s_lshl_b32 s20, s14, 3
    v_add_u32 v90, s20, v90
    v_mul_u32_u24 v91, 896, v89
    v_lshl_add_u32 v91, v90, 4, v91
    v_lshlrev_b32 v89, 4, v89
    v_lshl_add_u32 v89, v90, 9, v89
    s_lshr_b32 s20, s15, 2
    s_mul_i32 s20, s20, 28672
    s_and_b32 s21, s15, 3
    s_lshl_b32 s21, s21, 7
    s_add_u32 s20, s20, s21
    s_lshl_b32 s21, s14, 18
    s_lshr_b32 s22, s15, 1
    s_lshl_b32 s22, s22, 11
    s_add_u32 s21, s21, s22
    s_and_b32 s22, s15, 1
    s_lshl_b32 s22, s22, 9
    s_add_u32 s21, s21, s22
    s_add_u32 s21, s21, {HTO}
    s_cmp_eq_u32 s14, 3
    s_cselect_b32 s23, 0x08000000, 0
    s_add_u32 s22, s21, {HG4}
    s_or_b32 s22, s22, s23
    s_add_u32 s24, s20, 16384
    s_or_b32 s24, s24, s23
    s_lshl_b32 s40, s39, 8
    s_add_u32 s40, s40, {SY}
    s_lshl_b32 s41, s38, 8
    s_add_u32 s41, s41, {SY}
    """.format(LN=LN, VH=VH, VC=VC, HP=HP, HG4=4 * HT_G, HTO=hex(HT_OFF), SY=hex(SYNC_OFF)))
    assert XN_OFF == 0 and HT_G == 1 << 18
    stamp(a, 1)
    a.wait(vm="x")
    stamp(a, 2)
    unpack(X, P)
    pksum(S, X)
    a("v_cndmask_b32 v%d, 0, v%d, s[58:59]" % (S, S))
    half_reduce(a, [S], [S + 1])
    a("v_mul_f32 v%d, %s, v%d" % (S, inv, S))
    round_bf16(a, M, S)
    pksub(X, X, M)
    pksq(S2, X)
    a("v_sub_f32 v%d, v%d, v%d" % (S, S, M))
    a("v_cndmask_b32 v%d, 0, v%d, s[58:59]" % (S2, S2))
    half_reduce(a, [S2], [S2 + 1])
    a("v_mul_f32 v%d, %s, v%d" % (S2, inv, S2))
    a("v_fma_f32 v%d, -v%d, v%d, v%d" % (S2, S, S, S2))
    a("v_max_f32 v%d, 0, v%d" % (S2, S2))
    a("v_mov_b32 v%d, v%d" % (RS_, S2))
    scale_from_var(RS_)
    a("s_nop 0")
    a("v_mul_f32 v%d, v%d, v%d" % (C2, S2, RS_))
    a("v_mul_f32 v%d, v%d, v%d" % (D2, S, RS_))
    a("v_mul_f32 v%d, v%d, v%d" % (C2, C2, RS_))
    round_bf16(a, D2, D2)
    pkmul(T, X, RS_)
    scale_from_var(C2)
    pack(P, T)
    a.ds("ds_write_b128 v3, v[8:11]")
    a.ds("ds_write_b128 v3, v[12:15] offset:16")
    a("v_mul_f32 v%d, v%d, v%d" % (D2, D2, C2))
    for i in range(0, 16, 2):
        a("v_pk_fma_f32 %s, %s, %s, %s op_sel_hi:[1,0,0] neg_lo:[0,0,1] neg_hi:[0,0,1]" % (vr(T + i, 2), vr(T + i, 2), vr(C2, 2), vr(D2, 2)))
    pack(X, T)
    a.ds("ds_write_b128 v5, v[16:19] offset:%d" % HB)
    a.ds("ds_write_b128 v5, v[20:23] offset:%d" % (HB + 16))
    stamp(a, 3)
    a.drain(vm=False)
    a("s_barrier")
    a.ds("ds_read_b64_tr_b16 v[28:29], v88 offset:%d" % HB, "h0")
    a.ds("ds_read_b64_tr_b16 v[30:31], v88 offset:%d" % (HB + 4 * HP), "h0")
    a.ds("ds_read_b128 v[36:39], v91", "x0")
    a.ds("ds_read_b64_tr_b16 v[32:33], v88 offset:%d" % (HB + 512), "h1")
    a.ds("ds_read_b64_tr_b16 v[34:35], v88 offset:%d" % (HB + 512 + 4 * HP), "h1")
    a.ds("ds_read_b128 v[40:43], v91 offset:512", "x1")
    a.wait(lg="h0"); a.vmem("buffer_store_dwordx4 v[28:31], v92, s[32:35], s21 offen sc1")
    FAKEX = E("FAKEX", 0)
    if not FAKEX: a.wait(lg="x0"); a.vmem("buffer_store_dwordx4 v[36:39], v89, s[32:35], s20 offen sc1")
    a.wait(lg="h1"); a.vmem("buffer_store_dwordx4 v[32:35], v92, s[32:35], s22 offen sc1")
    if not FAKEX: a.wait(lg="x1"); a.vmem("buffer_store_dwordx4 v[40:43], v89, s[32:35], s24 offen sc1")
    a.vmem("buffer_load_dword v%d, v%d, s[44:47], 0 offen sc1" % (VT, VZ), "ready")
    a("""
    s_lshl_b32 s36, s38, 2
    s_add_u32 s36, s36, s14
    s_mul_i32 s24, s36, 28672
    s_lshl_b32 s26, s14, 10
    s_add_u32 s25, s25, s26
    v_add_u32 v{VD}, 0x8000, v{VB}
    """.format(VB=VB, VD=VD))
    a.drain()
    stamp(a, 4)
    a("s_barrier")
    AQ, AK, AV = 0, 16, 32
    XF, WF, PH = 64, 176, 208
    a("s_cmp_lg_u32 s14, 0")
    a("s_cbranch_scc1 A_GO")
    a("v_readfirstlane_b32 s61, v%d" % VT)
    a("s_cmp_lg_u32 s61, 0")
    a("s_cbranch_scc1 A_RDY")
    poll(a, DBG, "0", VZ, VT)
    a.label("A_RDY")
    arrive_issue(a, "s41 offset:%d" % (SX_CNT * SL))
    a.drain(vm=False)
    a("s_cmp_lg_u32 s62, 15")
    a("s_cbranch_scc1 A_WAIT")
    a("s_mov_b32 s62, 1")
    a("s_atomic_add s62, s[30:31], s41 offset:%d" % (SX_REL * SL))
    a("s_mov_b32 s20, %s" % hex(SYNC_OFF + SA_ROOT * SL))
    a("s_mov_b32 s63, 1")
    a("s_atomic_add s63, s[30:31], s20 glc")
    a.drain(vm=False)
    a("s_cmp_lg_u32 s63, 15")
    a("s_cbranch_scc1 A_GO")
    a("s_atomic_add s62, s[28:29], 0x80")
    a("s_branch A_GO")
    a.label("A_WAIT")
    a("s_add_u32 s20, s41, %d" % (SX_REL * SL))
    poll(a, WS, "s20", VZ, VT, sleep=PSL)
    a.label("A_GO")
    a("s_barrier")
    stamp(a, 5)
    if E("FAKEA", 0) == 1: a("s_endpgm")
    def wdma(r, tag):
        a("s_add_u32 m0, s26, %d" % (r * 4096))
        a("s_add_u32 s28, s25, %d" % (r * 4096))
        a.vmem("buffer_load_dwordx4 v%d, s[32:35], s28 offen sc1 lds" % VA, tag)
    def xload(k):
        if FAKEX and k == 0:
            a("s_lshl_b32 s24, s36, 12")
            a("s_add_u32 s24, s24, %s" % hex(HT_OFF))
        if k % 4 == 0 and k > 0: a("s_add_u32 s24, s24, %d" % (HT_G if FAKEX else 4096))
        a.vmem("buffer_load_dwordx4 %s, v%d, s[32:35], s24 offen offset:%d sc1" % (vr(XF + 4 * k, 4), VA, (k % 4) * 1024), "x%d" % k)
    cuts = [0, 6, 13, 20, 28]; rnds = [0, 3, 6, 9, 13]
    XF1 = E("XFIRST", 16)
    a("s_lshl_b32 s20, s56, 8")
    a("s_add_u32 s20, s20, %s" % hex(SYNC_OFF + SW_REL * SL))
    for k in range(XF1):
        if k == max(XF1 - 6, 0): flag_issue(a, WS, "s20", VZ, VT, "fw")
        xload(k)
    if XF1 == 0: flag_issue(a, WS, "s20", VZ, VT, "fw")
    flag_check(a, WS, "s20", VZ, VT, "fw", PSL)
    stamp(a, 6)
    seq = []
    for c in range(4):
        seq += [(lambda r=r, c=c: wdma(r, "wc%d" % c)) for r in range(rnds[c], rnds[c + 1])]
        seq += [(lambda k=k: xload(k)) for k in range(max(cuts[c], XF1), cuts[c + 1])]
    if TWO:
        a("s_sub_u32 s27, s25, s26")
        a("s_add_u32 s27, s27, %d" % WP_PHI)
        a("s_add_u32 s20, s20, %d" % ((SV_REL - SW_REL) * SL))
        seq += [(lambda i=i: a.vmem("buffer_load_dwordx4 %s, v%d, s[32:35], s27 offen offset:%d sc1" % (vr(PH + 4 * i, 4), VA, i * 1024), "ph")) for i in range(2)]
        seq += [lambda: flag_issue(a, WS, "s20", VZ, VT, "fv")]
    else: seq += [(lambda r=r: wdma(r, "wq")) for r in (18, 13, 14, 15, 16, 17)]
    for f in seq[:XPRE]: f()
    pend = seq[XPRE:]
    def lread(dst, off, tag, base=None):
        if off < 65536: a.ds("ds_read_b128 %s, v%d offset:%d" % (vr(dst, 4), VB, off), tag)
        else: a.ds("ds_read_b128 %s, v%d offset:%d" % (vr(dst, 4), VD, off - 32768), tag)
    def wread(k):
        b = WF + 8 * (k % 3)
        lread(b, k * 1792, "w%d" % k); lread(b + 4, k * 1792 + 896, "w%d" % k)
    for c in range(4):
        k0, k1 = cuts[c], cuts[c + 1]
        assert k1 * 1792 + 64 <= rnds[c + 1] * 4096
        assert sum(1 for t_ in a.issued if t_ == "wc%d" % c) == rnds[c + 1] - rnds[c]
        a.wait(vm="wc%d" % c)
        a("s_barrier")
        wread(k0); wread(k0 + 1)
        for k in range(k0, k1):
            if k + 2 < k1: wread(k + 2)
            assert "x%d" % k in a.issued
            a.wait(vm="x%d" % k, lg="w%d" % k)
            b = WF + 8 * (k % 3); x = vr(XF + 4 * k, 4)
            a("%s %s, %s, %s, %s" % (MF, vr(AK, 16), vr(b, 4), x, "0" if k == 0 else vr(AK, 16)))
            if pend and len(a.vm.ops) < ALOOK: pend.pop(0)()
            a("%s %s, %s, %s, %s" % (MF, vr(AV, 16), x, vr(b + 4, 4), "0" if k == 0 else vr(AV, 16)))
            while pend and len(a.vm.ops) < min(ALOOK, 12): pend.pop(0)()
            if pend and len(a.vm.ops) < ALOOK: pend.pop(0)()
    for f in pend: f()
    pend = []
    assert not pend
    if TWO:
        flag_check(a, WS, "s20", VZ, VT, "fv", PSL)
        for r in range(12, 19): wdma(r, "wq")
        a("s_barrier")
    else:
        a.drain(lg=False)
        a("s_barrier")
        a("v_add_u32 v2, 0x8000, v%d" % VA)
        a.ds("ds_read_b128 %s, v2 offset:%d" % (vr(PH, 4), WP_PHI - 32768), "ph")
        a.ds("ds_read_b128 %s, v2 offset:%d" % (vr(PH + 4, 4), WP_PHI + 1024 - 32768), "ph")
    stamp(a, 7)
    PKK, PKV = 48, 56
    PP = 216; EP, EM = 16, 32; OUT = 176; S0 = 192; TA = S0 + 12
    a("""
    s_mov_b32 s56, 0
    s_mov_b32 s57, -1
    s_mov_b32 s37, {L2E}
    v_mul_u32_u24 v{t}, 136, v{VC}
    v_lshl_add_u32 v{t}, v{VH}, 3, v{t}
    s_mul_i32 s28, s14, 4352
    v_add_u32 v{t}, s28, v{t}
    s_lshl_b32 s28, s14, 11
    v_add_u32 v{u}, s28, v{VA}
    v_cmp_eq_u32 vcc, 28, v{VC}
    v_mov_b32 v{S0}, 0x3f803f80
    """.format(L2E=f32(1.4426950408889634), t=TA, u=TA + 1, VC=VC, VH=VH, VA=VA, S0=S0))
    for r in range(8): a("v_cvt_pk_bf16_f32 v%d, v%d, v%d" % (PKK + r, AK + 2 * r, AK + 2 * r + 1))
    a("v_cndmask_b32 v%d, 0, v%d, vcc" % (S0, S0))
    a.wait(lg="ph")
    a("%s %s, %s, %s, 0" % (MF, vr(PP, 16), vr(PH, 4), vr(PKK, 4)))
    a("%s %s, %s, %s, %s" % (MF, vr(PP, 16), vr(PH + 4, 4), vr(PKK + 4, 4), vr(PP, 16)))
    for r in range(8): a("v_cvt_pk_bf16_f32 v%d, v%d, v%d" % (PKV + r, AV + 2 * r, AV + 2 * r + 1))
    for r in range(8): a("v_cndmask_b32 v%d, v%d, v%d, s[58:59]" % (PKV + r, S0, PKV + r))
    a.ds("ds_write_b128 v%d, %s offset:17408" % (TA + 1, vr(PKV, 4)))
    a.ds("ds_write_b128 v%d, %s offset:%d" % (TA + 1, vr(PKV + 4, 4), 17408 + 1024))

    def softmax2(P, sink=None):
        mx, mn, t0, t1, t2, t3 = S0, S0 + 1, S0 + 2, S0 + 3, S0 + 4, S0 + 5
        for op, m, t in (("max", mx, t0), ("min", mn, t1)):
            a("v_%s3_f32 v%d, v%d, v%d, v%d" % (op, t, P + 12, P + 13, P + 14))
            a("v_%s3_f32 v%d, v%d, v%d, v%d" % (op, m, P, P + 1, P + 2))
            a("v_%s_f32 v%d, v%d, v%d" % (op, t, t, P + 15))
            for i in range(3, 11, 2): a("v_%s3_f32 v%d, v%d, v%d, v%d" % (op, m, m, P + i, P + i + 1))
            a("v_cndmask_b32 v%d, v%d, v%d, s[56:57]" % (t, t, P))
            a("v_%s3_f32 v%d, v%d, v%d, v%d" % (op, m, m, P + 11, t))
        a("v_mov_b32 v%d, v%d" % (t0, mx))
        a("v_mov_b32 v%d, v%d" % (t1, mn))
        a("v_mov_b32 v%d, 0x7f800000" % t2)
        a("v_mov_b32 v%d, 0xff800000" % t3)
        a("v_permlane32_swap_b32 v%d, v%d" % (mx, t0))
        a("v_permlane32_swap_b32 v%d, v%d" % (mn, t1))
        a("s_nop 0")
        a("v_max_f32 v%d, v%d, v%d" % (mx, mx, t0))
        a("v_min_f32 v%d, v%d, v%d" % (mn, mn, t1))
        a("v_mul_f32 v%d, s37, v%d" % (mx, mx))
        a("v_mul_f32 v%d, s37, v%d" % (mn, mn))
        a("v_cndmask_b32 v%d, v%d, v%d, s[56:57]" % (t2, mx, t2))
        a("v_cndmask_b32 v%d, v%d, v%d, s[56:57]" % (t3, mn, t3))
        for r in range(16):
            a("v_fma_f32 v%d, v%d, s37, -v%d" % (EP + r, P + r, mx if r < 12 else t2))
            a("v_fma_f32 v%d, -v%d, s37, v%d" % (EM + r, P + r, mn if r < 12 else t3))
        for r in range(16):
            a("v_exp_f32 v%d, v%d" % (EP + r, EP + r))
            a("v_exp_f32 v%d, v%d" % (EM + r, EM + r))
            if r == 2:
                a("v_add_f32 v%d, v%d, v%d" % (mx, EP, EP + 1))
                a("v_add_f32 v%d, v%d, v%d" % (mn, EM, EM + 1))
            if r > 2:
                a("v_add_f32 v%d, v%d, v%d" % (mx, mx, EP + r - 1))
                a("v_add_f32 v%d, v%d, v%d" % (mn, mn, EM + r - 1))
        a("v_add_f32 v%d, v%d, v%d" % (mx, mx, EP + 15))
        a("v_add_f32 v%d, v%d, v%d" % (mn, mn, EM + 15))
        a("v_mov_b32 v%d, v%d" % (t0, mx))
        a("v_mov_b32 v%d, v%d" % (t1, mn))
        a("s_nop 1")
        a("v_permlane32_swap_b32 v%d, v%d" % (mx, t0))
        a("v_permlane32_swap_b32 v%d, v%d" % (mn, t1))
        a("s_nop 0")
        a("v_add_f32 v%d, v%d, v%d" % (mx, mx, t0))
        a("v_add_f32 v%d, v%d, v%d" % (mn, mn, t1))
        a("v_rcp_f32 v%d, v%d" % (mx, mx))
        a("v_rcp_f32 v%d, v%d" % (mn, mn))
        for e, (E_, m) in enumerate(((EP, mx), (EM, mn))):
            for q in range(4):
                for r in range(4): a("v_mul_f32 v%d, v%d, v%d" % (E_ + 4 * q + r, E_ + 4 * q + r, m))
                for r in range(2): a("v_cvt_pk_bf16_f32 v%d, v%d, v%d" % (OUT + 8 * e + 2 * q + r, E_ + 4 * q + 2 * r, E_ + 4 * q + 2 * r + 1))
                if sink: sink(e, q)

    softmax2(PP, lambda e, q: a.ds("ds_write_b64 v%d, %s offset:%d" % (TA, vr(OUT + 8 * e + 2 * q, 2), e * 64 + q * 16)))
    a("""
    v_lshlrev_b32 v{t}, 2, v{VH}
    v_bfe_u32 v{u}, v{LN}, 2, 2
    v_add_u32 v{t}, v{t}, v{u}
    v_mul_u32_u24 v{t}, 136, v{t}
    v_bfe_u32 v{u}, v{LN}, 4, 1
    v_lshl_add_u32 v{t}, v{u}, 5, v{t}
    v_and_b32 v{u}, 3, v{LN}
    v_lshl_add_u32 v{t}, v{u}, 3, v{t}
    s_lshl_b32 s28, s14, 6
    v_add_u32 v{t}, s28, v{t}
    s_lshl_b32 s42, s39, 16
    s_add_u32 s42, s42, {KVP}
    s_lshl_b32 s28, s38, 10
    s_lshl_b32 s29, s14, 15
    s_add_u32 s28, s28, s29
    s_add_u32 s28, s28, s42
    s_add_u32 s29, s28, 16384
    """.format(t=TA + 2, u=TA + 3, LN=LN, VH=VH, KVP=hex(KVP_OFF)))
    a.drain()
    a("s_barrier")
    stamp(a, 8)
    a("s_cmp_ge_u32 s14, 2")
    a("s_cbranch_scc1 A_QPASS")
    KVA = 232
    for w in range(4):
        for i in range(2):
            n_ = 2 * w + i
            a.ds("ds_read_b64_tr_b16 %s, v%d offset:%d" % (vr(4 * n_, 2), TA + 2, w * 4352 + (16 * i) * 136), "kv%d" % n_)
            a.ds("ds_read_b64_tr_b16 %s, v%d offset:%d" % (vr(4 * n_ + 2, 2), TA + 2, w * 4352 + (16 * i + 8) * 136), "kv%d" % n_)
            a.ds("ds_read_b128 %s, v%d offset:%d" % (vr(32 + 4 * n_, 4), VA, 17408 + w * 2048 + i * 1024), "kv%d" % n_)
    for n_ in range(8):
        a.wait(lg="kv%d" % n_)
        a("%s %s, %s, %s, %s" % (MF, vr(KVA, 16), vr(4 * n_, 4), vr(32 + 4 * n_, 4), "0" if n_ == 0 else vr(KVA, 16)))
    a("s_nop 11")
    for i in range(2):
        for r in range(4): a("v_cvt_pk_bf16_f32 v%d, v%d, v%d" % (PKV + 4 * i + r, KVA + 8 * i + 2 * r, KVA + 8 * i + 2 * r + 1))
        a("buffer_store_dwordx4 %s, v%d, s[32:35], %s offen sc1" % (vr(PKV + 4 * i, 4), VA, "s29" if i else "s28"))
    a.label("A_QPASS")
    if E("FAKEA", 0) == 2: a("s_endpgm")
    a("s_setprio %d" % PRIO_Q)
    a("s_mov_b32 s62, 0")
    QB = 16
    def qread(k): lread(QB + 4 * (k % 8), WP_Q + k * 896, "q%d" % k)
    for k in range(4): qread(k)
    for k in range(28):
        if k + 4 < 28: qread(k + 4)
        a.wait(lg="q%d" % k)
        a("%s %s, %s, %s, %s" % (MF, vr(AQ, 16), vr(QB + 4 * (k % 8), 4), vr(XF + 4 * k, 4), "0" if k == 0 else vr(AQ, 16)))
        if k == E("S1K", 13):
            a("s_cmp_ge_u32 s14, 2")
            a("s_cbranch_scc1 A_NOARR")
            a.drain(lg=False)
            arrive_issue(a, "s40 offset:%d" % (S1_CNT * SL))
            a.label("A_NOARR")
    arrive_finish(a, 31, ["s40 offset:%d" % (S1_REL * SL)], "A_S1_NR")
    a.label("A_S1_NR")
    a("s_nop 9")
    for r in range(8): a("v_cvt_pk_bf16_f32 v%d, v%d, v%d" % (PKK + r, AQ + 2 * r, AQ + 2 * r + 1))
    a("s_nop 1")
    a("%s %s, %s, %s, 0" % (MF, vr(PP, 16), vr(PH, 4), vr(PKK, 4)))
    a("%s %s, %s, %s, %s" % (MF, vr(PP, 16), vr(PH + 4, 4), vr(PKK + 4, 4), vr(PP, 16)))
    a("s_nop 11")
    softmax2(PP)
    stamp(a, 9)
    SEL, KS, KVB, OD = 48, 0, 16, 32
    a("""
    s_setprio {PRIO}
    v_and_b32 v52, 3, v{VC}
    v_bfe_u32 v53, v{VC}, 3, 1
    v_lshl_add_u32 v52, v53, 2, v52
    v_and_b32 v53, 1, v52
    v_lshlrev_b32 v53, 4, v53
    v_mov_b32 v54, 0x3f80
    v_lshlrev_b32 v53, v53, v54
    v_lshrrev_b32 v52, 1, v52
    v_bfe_u32 v54, v{VC}, 2, 1
    v_xor_b32 v54, v54, v{VH}
    v_lshrrev_b32 v55, 4, v{VC}
    v_or_b32 v54, v54, v55
    v_lshl_add_u32 v52, v54, 2, v52
    s_lshl_b32 s28, s14, 14
    s_add_u32 s28, s28, s42
    s_add_u32 s41, s40, {REL}
    s_lshl_b32 s29, s14, 10
    v_add_u32 v55, s29, v{VA}
    """.format(PRIO=PRIO_K, VC=VC, VH=VH, VA=VA, REL=S1_REL * SL))
    for d in range(4):
        a("v_cmp_eq_u32 vcc, %d, v52" % d)
        a("s_nop 1")
        a("v_cndmask_b32 v%d, 0, v53, vcc" % (SEL + d))
    a("s_cmp_lg_u32 s14, 3")
    a("s_cbranch_scc1 A_S1_OK")
    poll(a, WS, "s41", VZ, VT, sleep=PSL)
    a.label("A_S1_OK")
    a("s_barrier")
    stamp(a, 10)
    for m in range(16):
        if E("FAKEG", 0) and m >= 4: continue
        if m % 4 == 0 and m: a("s_add_u32 s28, s28, 4096")
        a.vmem("buffer_load_dwordx4 %s, v%d, s[32:35], s28 offen offset:%d sc1" % (vr(64 + 4 * m, 4), VA, (m % 4) * 1024), "p%d" % m)
    a("""
    s_lshl_b32 s28, s36, 15
    s_lshl_b32 s29, s39, 11
    s_add_u32 s28, s28, s29
    s_add_u32 s28, s28, {OFO}
    s_lshr_b32 s40, s36, 1
    s_lshl_b32 s40, s40, 8
    s_add_u32 s40, s40, {SY}
    """.format(OFO=hex(OF_OFF), SY=hex(SYNC_OFF)))
    for m in range(16):
        a.wait(vm="p%d" % m)
        a("%s %s, %s, %s, %s" % (MF, vr(KS, 16), vr(SEL, 4), vr(64 + 4 * m, 4), "0" if m == 0 else vr(KS, 16)))
    a("s_nop 11")
    for r in range(4): a("v_cvt_pk_bf16_f32 v%d, v%d, v%d" % (KVB + r, KS + 2 * r, KS + 2 * r + 1))
    a.ds("ds_write_b128 v55, %s" % vr(KVB, 4))
    a.drain(vm=False)
    a("s_barrier")
    for n_ in range(4): a.ds("ds_read_b128 %s, v%d offset:%d" % (vr(KVB + 4 * n_, 4), VA, n_ * 1024), "kvl%d" % n_)
    for n_ in range(4):
        a.wait(lg="kvl%d" % n_)
        a("%s %s, %s, %s, %s" % (MF, vr(OD, 16), vr(KVB + 4 * n_, 4), vr(OUT + 4 * n_, 4), "0" if n_ == 0 else vr(OD, 16)))
    a("""
    s_nop 11
    v_mov_b32 v0, v{D12}
    v_mov_b32 v2, v{D12}
    s_nop 1
    v_permlane32_swap_b32 v0, v2
    s_nop 0
    v_add_f32 v2, {EPS}, v2
    v_rcp_f32 v2, v2
    s_nop 0
    """.format(D12=OD + 12, EPS=f32(1e-6)))
    for i in range(2):
        for r in range(8): a("v_mul_f32 v%d, v%d, v2" % (OD + 8 * i + r, OD + 8 * i + r))
        for r in range(4): a("v_cvt_pk_bf16_f32 v%d, v%d, v%d" % (KVB + 4 * i + r, OD + 8 * i + 2 * r, OD + 8 * i + 2 * r + 1))
        a.vmem("buffer_store_dwordx4 %s, v%d, s[32:35], s28 offen offset:%d sc1" % (vr(KVB + 4 * i, 4), VA, i * 1024))
    a.drain(lg=False)
    arrive_issue(a, "s40 offset:%d" % (S2_CNT * SL))
    arrive_finish(a, 31, ["s40 offset:%d" % (S2_REL * SL)], "A_FIN")
    a.label("A_FIN")
    stamp_flush(a, 11, 4, "A")
    a("s_endpgm")

class G:
    ACC = 0; B = 64; F = 64 + 8 * NB
    W0 = 232; W1 = 233; FA = 234; FB = 235; LA = 236; LB = 237
    LN = 238; L16 = 239; RES = 240
    VX = 248; VB2 = 249; VZ = 250; VT = 251; T0 = 252; T1 = 253; T2 = 254
assert G.F + 8 * NF <= 232
SLDS = 50
SJ = [6, 7, 8, 9, 10, 11, 48, 49]
SC = [51, 15, 59, 3]

def g_waddr(a, RS, scol):
    a("""
    v_lshrrev_b32 v{T0}, 3, v{L}
    v_mul_u32_u24 v{W0}, {RS}, v{T0}
    v_lshrrev_b32 v{T1}, 2, v{L}
    v_and_b32 v{T1}, 4, v{T1}
    v_and_b32 v{T2}, 7, v{L}
    v_xor_b32 v{T1}, v{T1}, v{T2}
    v_lshl_add_u32 v{W0}, v{T1}, 4, v{W0}
    v_add_u32 v{W0}, {scol}, v{W0}
    v_add_u32 v{W1}, {RS8}, v{W0}
    """.format(T0=G.T0, T1=G.T1, T2=G.T2, L=G.LN, W0=G.W0, W1=G.W1, RS=RS, RS8=8 * RS, scol=scol))
def g_laddr(a, perm2):
    a("""
    v_bfe_u32 v{T0}, v{L}, 4, 1
    v_lshrrev_b32 v{T1}, 5, v{L}
    v_lshlrev_b32 v{LA}, {HS}, v{T1}
    v_lshl_add_u32 v{LA}, v{T0}, 5, v{LA}
    v_bfe_u32 v{T1}, v{L}, 2, 2
    v_lshl_add_u32 v{LA}, v{T1}, 7, v{LA}
    v_lshrrev_b32 v{T1}, 1, v{T1}
    v_lshl_add_u32 v{LA}, v{T1}, 6, v{LA}
    v_and_b32 v{T1}, 3, v{L}
    v_lshl_add_u32 v{LA}, v{T1}, 3, v{LA}
    s_lshl_b32 s36, s14, 5
    s_and_b32 s36, s36, 64
    v_xor_b32 v{LA}, s36, v{LA}
    v_add_u32 v{LA}, s{SLDS}, v{LA}
    v_xor_b32 v{LB}, 64, v{LA}
    """.format(T0=G.T0, T1=G.T1, L=G.LN, LA=G.LA, LB=G.LB, HS=(9 if perm2 else 10), SLDS=SLDS))

class Stream:
    def __init__(self, a, name, srdw, RS, NK, perm2, pol, slots, nb):
        self.nb = nb
        self.fb = {}; self.nf = 0; self.ffree = None; self.ring = [G.F + 8 * i for i in range(NF)]
        self.a = a; self.n = name; self.srd = srdw; self.RS = RS; self.NK = NK; self.perm2 = perm2; self.pol = pol
        o = self.order(); first = [p for p in range(NK) if o[p][0] == 0]
        self.dorder = first + [p for p in range(NK) if p not in first]
        assert sorted(self.dorder[:self.nb]) == list(range(self.nb)) and self.dorder[self.nb:] == list(range(self.nb, NK))
        self.free = [(s, None) for s in slots]
        self.slot = {}; self.nd = 0; self.nr = 0
    def can_dma(self): return self.nd < self.NK and len(self.free) > 0
    def order(self):
        ng = self.NK // 4; o = [(j, 0) for j in range(min(LEAD, ng))]
        for j in range(ng):
            if j + LEAD < ng: o.append((j + LEAD, 0))
            o += [(j, 1), (j, 2), (j, 3)]
        if LEAD == 0: o = [(j, r) for j in range(ng) for r in range(4)]
        assert len(o) == self.NK
        return o
    def tstep(self, p, dst):
        j, rel = self.order()[p]
        if self.n == "b" and not ROT2: self.a("s_add_u32 %s, s%d, %d" % (dst, SC[rel], 16 * j))
        else: self.a("s_add_u32 %s, s%d, s%d" % (dst, SJ[j], SC[rel]))
    def dma_parts(self):
        a = self.a; p = self.dorder[self.nd]; self.nd += 1
        sl, tag = self.free.pop(0); self.slot[p] = sl
        def p0():
            if tag: a.wait(lg=tag)
            self.tstep(p, "s58")
            a("s_add_u32 m0, s%d, %d" % (SLDS, sl * 2048))
            a("s_mul_i32 s58, s58, %d" % (16 * self.RS))
            a.vmem("buffer_load_dwordx4 v%d, s[%d:%d], s58 offen %s lds" % (G.W0, self.srd, self.srd + 3, self.pol), "%sd%d" % (self.n, p))
            a("s_add_u32 m0, s%d, %d" % (SLDS, sl * 2048 + 1024))
        def p1():
            a("s_nop 0")
            a.vmem("buffer_load_dwordx4 v%d, s[%d:%d], s58 offen %s lds" % (G.W1, self.srd, self.srd + 3, self.pol), "%sd%d" % (self.n, p))
        return [p0, p1]
    def dma(self):
        for f in self.dma_parts(): f()
    def read_parts(self):
        a = self.a; p = self.dorder[self.nr]; self.nr += 1
        assert p in self.slot
        sl = self.slot[p]; b = G.B + 8 * (p % self.nb); io = 1024 if self.perm2 else 512
        self.free.append((sl, "%sr%d" % (self.n, p)))
        def part(u):
            def f():
                a.wait(vm="%sd%d" % (self.n, p))
                for i in range(2):
                    a.ds("ds_read_b64_tr_b16 %s, v%d offset:%d" % (vr(b + 4 * u + 2 * i, 2), G.LA + u, sl * 2048 + i * io), "%sr%d" % (self.n, p))
            return f
        return [part(0), part(1)]
    def read(self):
        for f in self.read_parts(): f()
    def inflight(self):
        seen = []
        for t in self.a.vm.ops:
            if t and t.startswith(self.n + "d") and t not in seen: seen.append(t)
        return seen
    def pump(self, ahead):
        did = False
        while self.can_dma() and len(self.inflight()) < ahead: self.dma(); did = True
        if self.nr < self.nb and self.nr < self.nd: self.read(); did = True
        elif self.can_dma():
            self.a.wait(vm=self.inflight()[0]); did = True
        return did
    def tables(self, srot, ssh, part=None):
        a = self.a; ng = self.NK // 4
        if part != 0:
            a("s_lshl_b32 s%d, %s, 4" % (SJ[0], srot))
            for j in range(1, 7):
                a("s_add_u32 s%d, s%d, 16" % (SJ[j], SJ[j - 1]))
                a("s_cmp_ge_u32 s%d, 112" % SJ[j])
                a("s_cselect_b32 s%d, 0, s%d" % (SJ[j], SJ[j]))
            a("s_movk_i32 s%d, 112" % SJ[7])
        if part != 1:
            a("s_lshl_b32 s61, %s, 2" % ssh)
            for r in range(4):
                a("s_add_u32 s%d, s61, %d" % (SC[r], 4 * r))
                a("s_and_b32 s%d, s%d, 12" % (SC[r], SC[r]))
                a("s_add_u32 s%d, s%d, s14" % (SC[r], SC[r]))
    def freg(self, t): return self.fb.get(t, self.ring[t % len(self.ring)])
    def fnext(self, t, srdf, maxn):
        out = []
        while self.nf < self.NK and len(out) < 2 * maxn and self.nf - t <= FLOOK:
            c = [x for x in self.ffree if x[0] < t]
            if not c: break
            self.ffree.remove(c[0]); self.fb[self.nf] = c[0][1]
            self.ffree.append((self.nf, c[0][1]))
            out += self.fload_parts(self.nf, srdf); self.nf += 1
        return out
    def fload_parts(self, t, srdf):
        a = self.a; f = self.freg(t)
        def p0():
            self.tstep(t, "s60")
            a("s_lshl_b32 s60, s60, 11")
            a.vmem("buffer_load_dwordx4 %s, v%d, s[%d:%d], s60 offen sc1" % (vr(f, 4), G.FA, srdf, srdf + 3), "%sf%d" % (self.n, t))
        def p1():
            a.vmem("buffer_load_dwordx4 %s, v%d, s[%d:%d], s60 offen sc1" % (vr(f + 4, 4), G.FB, srdf, srdf + 3), "%sf%d" % (self.n, t))
        return [p0, p1]
    def fload(self, t, srdf):
        for f in self.fload_parts(t, srdf): f()
    def step(self, t, weights_are_A, fill):
        a = self.a; b = G.B + 8 * (t % self.nb); f = self.freg(t)
        a.wait(vm="%sf%d" % (self.n, t), lg="%sr%d" % (self.n, t))
        gaps = [[], [], [], []]
        for i, p in enumerate(fill): gaps[min(3, i * 4 // max(4, len(fill)))].append(p)
        for n in range(4):
            uw, uf = n >> 1, n & 1
            acc = vr(G.ACC + 16 * n, 16)
            W, F = vr(b + 4 * uw, 4), vr(f + 4 * uf, 4)
            A_, B_ = (W, F) if weights_are_A else (F, W)
            a("%s %s, %s, %s, %s" % (MF, acc, A_, B_, "0" if (t == 0 and n > 0) else acc))
            for p in gaps[n]: p()
    def loop_fill(self, t, srdf):
        fill = []
        if self.ffree is not None: fill += self.fnext(t, srdf, 2)
        elif t + len(self.ring) - 1 < self.NK: fill += self.fload_parts(t + len(self.ring) - 1, srdf)
        dm = self.dma_parts() if self.can_dma() else []
        if t >= 1 and self.nr < self.NK and self.nr - self.nb <= t - 1: fill += self.read_parts()
        return fill + dm

def g_reduce_write(a, mid=None, pre=None, tail=None):
    a("v_add_u32 v%d, s%d, v%d" % (G.VT, SLDS, G.L16))
    def wr(t, q): a.ds("ds_write_b128 v%d, %s offset:%d" % (G.VT, vr(G.ACC + 16 * t + 4 * q, 4), 8192 + (t - 1) * 4096 + q * 1024), "rw")
    if tail:
        prev = None
        for n in (1, 2, 3, 0):
            acc = vr(G.ACC + 16 * n, 16); qs = [0, 1, 2, 3] if prev else []
            for i, pick in enumerate(tail):
                A_, B_ = pick(n)
                a("%s %s, %s, %s, %s" % (MF, acc, A_, B_, acc))
                if qs and i == 0: a("s_nop 10")
                for _ in range(1 if i == 0 else 2):
                    if qs: wr(prev, qs.pop(0))
            while qs: wr(prev, qs.pop(0))
            prev = n
    else:
        a("s_nop 10")
        for t in range(1, 4):
            for q in range(4): wr(t, q)
    for t in range(1, 4):
        a("s_xor_b32 s60, s14, %d" % t)
        a("s_mul_i32 s60, s60, %d" % (NS * 2048))
        a("v_add_u32 v%d, s60, v%d" % (G.T0 + t - 1, G.L16))
    if pre: pre()
    a.wait(lg="rw")
    a("s_barrier")
    if mid: mid()
    for t in range(1, 4):
        for q in range(4):
            a.ds("ds_read_b128 %s, v%d offset:%d" % (vr(G.ACC + 16 * t + 4 * q, 4), G.T0 + t - 1, 8192 + (t - 1) * 4096 + q * 1024), "rr%d" % t)
def v2(a, op, d, x, y, n, pk):
    if pk:
        for r in range(0, n, 2): a("v_pk_%s_f32 %s, %s, %s" % (op, vr(d + r, 2), vr(x + r, 2), vr(y + r, 2)))
    else:
        for r in range(n): a("v_%s_f32 v%d, v%d, v%d" % (op, d + r, x + r, y + r))
def g_reduce_add(a, pk=True):
    for t in range(1, 4):
        a.wait(lg="rr%d" % t)
        v2(a, "add", 0, 0, 16 * t, 16, pk)

def role_g(a):
    a.vm.clear(); a.lg.clear()
    a.label("ROLE_G")
    if ONLYA: a("s_endpgm")
    a("""
    v_and_b32 v{LN}, 63, v0
    s_mul_i32 s61, s57, 37
    s_lshr_b32 s61, s61, 8
    s_lshl_b32 s66, s56, 2
    s_add_u32 s66, s66, s61
    s_mul_i32 s61, s61, 7
    s_sub_u32 s64, s57, s61
    s_mul_i32 s{SLDS}, s14, {WB}
    s_lshl_b32 s67, s66, 7
    s_lshr_b32 s60, s14, 1
    s_lshl_b32 s60, s60, 6
    s_add_u32 s60, s60, s67
    v_lshrrev_b32 v{VT}, 5, v{LN}
    v_lshlrev_b32 v{VT}, 3, v{VT}
    """.format(LN=G.LN, SLDS=SLDS, WB=NS * 2048, VT=G.VT))
    s1 = Stream(a, "a", 16, 3584, NK1, False, os.environ.get("W1POL0", "nt"), list(range(NS)), NB)
    s2 = Stream(a, "b", 24, 4096, 28, True, W2POL, list(range(4)), NB2)
    def burst(st):
        for p in range(4):
            if len(st.inflight()) >= AHEAD0: a.wait(vm=st.inflight()[0])
            st.dma()
        if len(st.inflight()) >= AHEAD0: a.wait(vm=st.inflight()[0])
    g_waddr(a, 3584, "s67")
    s1.tables("s64", "s66", part=0)
    a("s_mov_b32 s18, %d" % (2048 * 3584))
    a("s_mov_b32 s19, 0x20000")
    a("s_waitcnt lgkmcnt(0)")
    a("s_mov_b32 s16, s40")
    a("s_and_b32 s17, s41, 0xffff")
    a("s_lshl_b32 s%d, s64, 4" % SJ[0])
    a("s_cmp_eq_u32 s56, 7")
    if ONLY2: a("s_branch G_SETUP")
    a("s_cbranch_scc1 G_SETUP")
    if GWAIT:
        a("global_load_dword v%d, v%d, s[42:43] nt" % (G.T0, G.VT))
        a("s_waitcnt vmcnt(0)")
    burst(s1)
    a.label("G_SETUP")
    stamp(a, 1)
    srd(a, 36, 42, str(1792 * 2))
    for q in range(4):
        a.vmem("buffer_load_dwordx2 %s, v%d, s[36:39], s60 offen offset:%d nt" % (vr(G.F + 2 * q, 2), G.VT, 16 * q), "b1")
    ws_base(a)
    srd(a, WS, 30, hex(WS_USED))
    a("""
    s_setprio {PRIO}
    v_lshlrev_b32 v{L16}, 4, v{LN}
    v_mov_b32 v{VZ}, 0
    s_lshr_b32 s60, s14, 1
    s_lshl_b32 s60, s60, 5
    s_lshl_b32 s61, s66, 6
    s_add_u32 s60, s60, s61
    v_and_b32 v{T0}, 31, v{LN}
    v_add_u32 v{T0}, s60, v{T0}
    v_mul_u32_u24 v{VX}, 896, v{T0}
    v_lshlrev_b32 v{T1}, 1, v{VT}
    s_lshl_b32 s60, s64, 7
    s_and_b32 s61, s14, 1
    s_lshl_b32 s61, s61, 6
    s_add_u32 s60, s60, s61
    v_add3_u32 v{VX}, v{VX}, v{T1}, s60
    v_lshlrev_b32 v{VB2}, 1, v{T0}
    s_and_b32 s60, s14, 1
    s_lshl_b32 s60, s60, 10
    v_add_u32 v{FA}, s60, v{L16}
    v_xor_b32 v{FB}, 0x400, v{FA}
    s_lshl_b32 s68, s64, 18
    s_add_u32 s68, s68, {HTO}
    s_mul_i32 s60, s64, {UG}
    s_add_u32 s60, s60, {UPO}
    """.format(PRIO=PRIO_G, L16=G.L16, LN=G.LN, VZ=G.VZ, T0=G.T0, T1=G.T1, VT=G.VT, VX=G.VX, VB2=G.VB2,
               FA=G.FA, FB=G.FB, HTO=hex(HT_OFF), UG=UP_G, UPO=hex(UP_OFF)))
    srd(a, 40, 30, str(UP_G), add="s60")
    srd(a, DBG, 28, "256")
    srd(a, 24, 52, str(1792 * 4096))
    srd(a, 20, 30, str(HT_G), add="s68")
    def sw2():
        g_waddr(a, 4096, "s67")
        g_laddr(a, True)
    def res_loads():
        for i in range(2):
            a.vmem("global_load_dwordx4 %s, v%d, s[4:5] offset:%d" % (vr(G.RES + 4 * i, 4), G.VX, 32 * i), "res")
    a.vmem("global_load_ushort v%d, v%d, s[54:55] nt" % (G.VB2, G.VB2), "b1")
    a("s_movk_i32 s68, 0x80")
    if not ONLY2:
        a("s_cmp_lt_u32 s56, 7")
        a("s_cbranch_scc1 G_TILE1")
    sv = list(a.vm.ops)
    if HELP and not ONLY2:
        a.vm.clear(); a.lg.clear()
        a("s_setprio %d" % E("PRIO_H", 3))
        a("s_lshl_b32 s36, s57, 7")
        g_waddr(a, 3584, "s36")
        a("s_lshl_b32 s58, s14, 2")
        a("s_add_u32 s58, s58, 112")
        a("s_mul_i32 s58, s58, %d" % (16 * 3584))
        a("s_lshl_b32 s59, s14, 13")
        for i in range(4):
            a("s_add_u32 m0, s59, %d" % (i * 2048))
            a("s_nop 0")
            a.vmem("buffer_load_dwordx4 v%d, s[16:19], s58 offen nt lds" % G.W0)
            a("s_add_u32 m0, s59, %d" % (i * 2048 + 1024))
            a("s_nop 0")
            a.vmem("buffer_load_dwordx4 v%d, s[16:19], s58 offen nt lds" % G.W1)
            a("s_add_u32 s58, s58, %d" % (16 * 3584))
        g_laddr(a, False)
        a("v_subrev_u32 v%d, s%d, v%d" % (G.LA, SLDS, G.LA))
        a("v_xor_b32 v%d, s36, v%d" % (G.LA, G.LA))
        a("v_xor_b32 v%d, 64, v%d" % (G.LB, G.LA))
        a.drain()
        a("s_barrier")
        for kk in range(16):
            for u in range(2):
                for i in range(2):
                    a.ds("ds_read_b64_tr_b16 %s, v%d offset:%d" % (vr(G.B + 8 * kk + 4 * u + 2 * i, 2), G.LA + u, kk * 2048 + i * 512))
        poll(a, DBG, "s68", G.VZ, G.VT, sleep=2)
        a.drain()
        stamp(a, 5)
        a("s_lshl_b32 s58, s14, 18")
        a("s_add_u32 s58, s58, %s" % hex(HT_OFF + 112 * 2048))
        a("s_mul_i32 s48, s57, 7")
        a("s_add_u32 s48, s48, s14")
        a("s_lshl_b32 s48, s48, 13")
        a("s_add_u32 s48, s48, %s" % hex(PART_OFF))
        a("s_cmp_eq_u32 s14, 3")
        a("s_cselect_b32 s49, 0x08000000, 0")
        def hload(kk):
            f = G.F + 8 * (kk % NF)
            if kk == 16:
                a("s_add_u32 s58, s58, %d" % (4 * HT_G - 7 * 4096))
                a("s_or_b32 s58, s58, s49")
            elif kk % 2 == 0 and kk: a("s_add_u32 s58, s58, 4096")
            for u in range(2):
                a.vmem("buffer_load_dwordx4 %s, v%d, s[32:35], s58 offen offset:%d sc1" % (vr(f + 4 * u, 4), G.L16, (kk % 2) * 2048 + u * 1024), "h%d" % kk)
        for kk in range(NF - 1): hload(kk)
        for kk in range(32):
            a.wait(vm="h%d" % kk)
            f = G.F + 8 * (kk % NF)
            for n in range(4):
                acc = vr(16 * n, 16)
                a("%s %s, %s, %s, %s" % (MF, acc, vr(G.B + 8 * (kk % 16) + 4 * (n >> 1), 4), vr(f + 4 * (n & 1), 4), "0" if kk % 16 == 0 else acc))
                if n == 0 and kk + NF - 1 < 32: hload(kk + NF - 1)
            if kk % 16 == 15:
                a("s_add_u32 s59, s48, 4096")
                a("s_nop 8")
                for n in range(8):
                    for r in range(4): a("v_cvt_pk_bf16_f32 v%d, v%d, v%d" % (4 * n + r, 8 * n + 2 * r, 8 * n + 2 * r + 1))
                    a.vmem("buffer_store_dwordx4 %s, v%d, s[32:35], %s offen offset:%d sc1" % (vr(4 * n, 4), G.L16, "s59" if n >= 4 else "s48", (n % 4) * 1024))
                if kk == 15:
                    a("s_add_u32 s48, s48, %d" % (4 * 8192))
                    a("s_cmp_eq_u32 s14, 3")
                    a("s_cbranch_scc1 H_FIN")
                    stamp(a, 6)
        a.label("H_FIN")
        a.drain()
        a("s_barrier")
        a("s_cmp_lg_u32 s14, 0")
        a("s_cbranch_scc1 H_DONE")
        a("s_lshl_b32 s58, s57, 8")
        a("s_add_u32 s58, s58, %s" % hex(SYNC_OFF + SH_REL * SL))
        arrive(a, "s58")
        a.label("H_DONE")
        a("s_setprio %d" % PRIO_G)
    MROW = E("MROW", 896)
    a.vm.clear(); a.lg.clear()
    poll(a, DBG, "s68", G.VZ, G.VT, sleep=8)
    if MROW < 1792 and not (ONLY2 or ONLYG):
        a("s_setprio %d" % E("PRIO_M", 0))
        a("s_lshl_b32 s58, s57, 2")
        a("s_add_u32 s58, s58, s14")
        a("s_lshl_b32 s58, s58, 10")
        a("s_add_u32 s58, s58, %d" % (MROW * 4096))
        a.label("M_W2")
        for i in range(4):
            a("s_waitcnt vmcnt(%d)" % (E("MDEPTH", 8) - 1))
            a("buffer_load_dwordx4 %s, v%d, s[24:27], s58 offen" % (vr(G.F + 8 + 4 * i, 4), G.L16))
            a("s_add_u32 s58, s58, %d" % (112 * 1024))
        a("s_cmp_lt_u32 s58, %d" % (1792 * 4096))
        a("s_cbranch_scc1 M_W2")
    a("s_setprio %d" % E("PRIO_7", 1))
    a("s_mov_b32 s69, %s" % hex(SYNC_OFF + ((SV_REL if TWO else SW_REL) + 7) * SL))
    poll(a, WS, "s69", G.VZ, G.VT, sleep=8)
    for i in range(7, 9): stamp(a, i)
    sw2()
    s2.tables("s64", "s66")
    a("s_mov_b32 s65, 1")
    a("s_branch G_JOIN")
    a.vm.ops = sv; a.lg.clear()
    a.label("G_TILE1")
    s1.tables("s64", "s66", part=1)
    g_laddr(a, False)
    if RESEARLY: res_loads()
    if E("BDRAIN", 1): a.drain(lg=False)
    else: a.wait(vm="ad%d" % s1.dorder[E("BWAIT", 1)])
    s1.pol = W1POL2
    stamp(a, 2)
    while s1.nd < NB + NS - 2: s1.pump(AHEAD)
    flag_issue(a, DBG, "s68", G.VZ, G.VT, "f0")
    a.wait(vm="b1")
    for q in range(8):
        a("v_lshlrev_b32 v%d, 16, v%d" % (2 * q, G.F + q))
        a("v_and_b32 v%d, 0xffff0000, v%d" % (2 * q + 1, G.F + q))
    while s1.pump(AHEAD): pass
    stamp(a, 3)
    flag_check(a, DBG, "s68", G.VZ, G.VT, "f0", 2)
    stamp(a, 4)
    if FLOOK:
        s1.ffree = [(-2, G.F + 8 * i) for i in range(NF)] + ([(-2, G.RES)] if not RESEARLY else []) + [(p, G.B + 8 * (p % NB)) for p in range(NK1 - NB, NK1)]
        for f in s1.fnext(-1, 20, 99): f()
    else:
        for t in range(NF - 1): s1.fload(t, 20)
    log = []
    at = {}; fr_ok = [0]
    HP_ = G.B
    for t in range(NK1):
        if t in (8, 16, 24) and not E("WST", 0): stamp(a, 4 + t // 8)
        fill = s1.loop_fill(t, 20)
        if t == 16:
            def fw():
                a("s_lshl_b32 s69, s56, 8")
                a("s_add_u32 s69, s69, %s" % hex(SYNC_OFF + (SV_REL if TWO else SW_REL) * SL))
                flag_issue(a, WS, "s69", G.VZ, G.VT, "fw")
            fill.append(fw)
        if t == 22: flag_check(a, WS, "s69", G.VZ, G.VT, "fw", 2)
        if t == NK1 + 1 - NB:
            assert s1.nr == NK1
            fill.append(lambda: (a.drain(vm=False), sw2()))
        if HELP and t == NK1 - 1 - E("HLAG", 5):
            def fh():
                a("s_lshl_b32 s69, s66, 8")
                a("s_add_u32 s69, s69, %s" % hex(SYNC_OFF + SH_REL * SL))
                flag_issue(a, WS, "s69", G.VZ, G.VT, "fh")
            fill.append(fh)
        if HELP and t == NK1 - 1:
            def ph():
                flag_check(a, WS, "s69", G.VZ, G.VT, "fh", 1)
                a("s_mul_i32 s60, s66, 7")
                a("s_add_u32 s60, s60, s64")
                a("s_lshl_b32 s60, s60, 2")
                a("s_add_u32 s60, s60, s14")
                a("s_lshl_b32 s60, s60, 11")
                a("s_add_u32 s60, s60, %s" % hex(PART_OFF))
                for i in range(2):
                    a.vmem("buffer_load_dwordx4 %s, v%d, s[32:35], s60 offen offset:%d sc1" % (vr(HP_ + 4 * i, 4), G.L16, i * 1024), "hp")
            fill += [lambda: None] * 3 + [ph]
        W2S = E("W2S", 0)
        if W2S and W2S <= t < W2S + 4:
            fill += s2.dma_parts(); log.append("d")
        if t >= NK1 - TAILM:
            assert not fill
            continue
        s1.step(t, True, fill)
    tail1 = []
    for t in range(NK1 - TAILM, NK1):
        a.wait(vm="af%d" % t, lg="ar%d" % t)
        tail1.append(lambda n, t=t: (vr(G.B + 8 * (t % NB) + 4 * (n >> 1), 4), vr(s1.freg(t) + 4 * (n & 1), 4)))
    stamp(a, 5 if E("WST", 0) else 8)
    def rd(n=1):
        for _ in range(n): s2.read(); log.append("r")
    def dm(n=1):
        for _ in range(n):
            first = s2.nd < 4
            s2.pol = os.environ.get("W2POL0", "") if first else W2POL
            s2.dma(); log.append("d")
            s2.pol = W2POL
            if first and s2.nd == 4 and E("TOUCH", 0):
                a("v_lshrrev_b32 v%d, 4, v%d" % (G.F, G.LN))
                a("v_lshlrev_b32 v%d, 18, v%d" % (G.F, G.F))
                a("v_and_b32 v%d, 15, v%d" % ((G.F + 1), G.LN))
                a("v_lshl_add_u32 v%d, v%d, 12, v%d" % (G.F, (G.F + 1), G.F))
                a("s_add_u32 s58, s%d, s14" % SJ[0])
                a("s_lshl_b32 s58, s58, 16")
                a("s_add_u32 s58, s58, s67")
                a.vmem("buffer_load_dword v%d, v%d, s[24:27], s58 offen" % ((G.F + 2), G.F), "touch")
    oa = {}; ob = {}
    def oa_parts(j):
        def p0():
            if j % 2 == 0 and j > 0: a("s_add_u32 s56, s56, 4096")
            a.vmem("buffer_load_dwordx4 %s, v%d, s[40:43], s56 offen offset:%d sc1" % (vr(oa[j], 4), G.FA, (j % 2) * 2048), "oa%d" % j)
        def p1():
            a.vmem("buffer_load_dwordx4 %s, v%d, s[40:43], s56 offen offset:%d sc1" % (vr(oa[j] + 4, 4), G.FB, (j % 2) * 2048), "oa%d" % j)
        return [p0, p1]
    def oa_base():
        a("s_lshl_b32 s56, s14, 14")
        a("s_add_u32 s56, s56, %d" % (112 * 2048))
    oa_base()
    early = []
    for j in range(NOA):
        oa[j] = G.B + 8 * (NB2 + j); early += oa_parts(j)
    g_reduce_write(a, mid=(lambda: (rd(WPUMP), dm(WPUMP))) if WPUMP else None, pre=lambda: (a.sprinkle(list(early), E("OAGAP", 5)), (rd(E("WRD", 0)), dm(WPRE))), tail=tail1)
    g_reduce_add(a, not NOPK)
    if HELP:
        a.wait(vm="hp")
        for q in range(8):
            a("v_lshlrev_b32 v%d, 16, v%d" % (16 + 2 * q, HP_ + q))
            a("v_and_b32 v%d, 0xffff0000, v%d" % (17 + 2 * q, HP_ + q))
        v2(a, "add", 0, 0, 16, 16, not NOPK)
    if E("WST", 0): stamp(a, 6)
    a("s_barrier")
    s2.free += [(s_, None) for s_ in range(4, NS)]
    log.append("f")
    if E("WST", 0): stamp(a, 7)
    c1 = -2.0 * 0.7978845608028654 * 1.4426950408889634
    c2 = c1 * 0.044715
    left = [WDMA1]
    def ride():
        if left[0] > 0: dm(); left[0] -= 1
    a("s_mov_b32 s60, %s" % f32(c2))
    a("v_mov_b32 v48, %s" % f32(c1))
    ride()
    v2(a, "mul", 16, 0, 0, 16, not NOPK)
    ride()
    for r in range(16): a("v_fma_f32 v%d, v%d, s60, v48" % (16 + r, 16 + r))
    ride()
    v2(a, "mul", 16, 16, 0, 16, not NOPK)
    for r in range(16): a("v_exp_f32 v%d, v%d" % (16 + r, 16 + r))
    ride()
    for r in range(16): a("v_add_f32 v%d, 1.0, v%d" % (16 + r, 16 + r))
    ride()
    for r in range(16): a("v_rcp_f32 v%d, v%d" % (16 + r, 16 + r))
    ride()
    a.sprinkle_flush()
    a("""
    s_lshl_b32 s60, s66, 2
    s_and_b32 s61, s14, 2
    s_add_u32 s60, s60, s61
    s_lshl_b32 s60, s60, 11
    """)
    for i in range(2):
        v2(a, "mul", 8 * i, 8 * i, 16 + 8 * i, 8, not NOPK)
        for r in range(4): a("v_cvt_pk_bf16_f32 v%d, v%d, v%d" % (32 + 4 * i + r, 8 * i + 2 * r, 8 * i + 2 * r + 1))
        a.vmem("buffer_store_dwordx4 %s, v%d, s[40:43], s60 offen offset:%d sc1" % (vr(32 + 4 * i, 4), G.FA, i * 2048), "ust")
    if E("WST", 0): stamp(a, 8)
    nb4 = s2.nd
    for p in range(E("WDMA2", 4)):
        if s2.can_dma(): dm()
    rd(min(nb4, NB2) - s2.nr)
    a.wait(vm="ust")
    state = (s2.nd, s2.nr, list(s2.free), dict(s2.slot), list(a.vm.ops), list(a.lg.ops))
    a("s_mov_b32 s65, s14")
    a("s_branch G_JOIN2")
    a.label("G_JOIN")
    a.vm.clear(); a.lg.clear()
    s2b = Stream(a, "b", 24, 4096, 28, True, "nt", list(range(4)), NB2)
    oa_base()
    for f in early: f()
    if RESEARLY: res_loads()
    s2b.pol = W2POL
    for act in log:
        if act == "r": s2b.read()
        elif act == "d": s2b.dma()
        else: s2b.free += [(s_, None) for s_ in range(4, NS)]
    assert (s2b.nd, s2b.nr, s2b.slot) == (state[0], state[1], state[3]) and [x[0] for x in s2b.free] == [x[0] for x in state[2]]
    a.drain()
    a.label("G_JOIN2")
    a.vm.ops = state[4]; a.lg.ops = state[5]
    stamp(a, 9)
    a("s_barrier")
    live = not (ONLY2 or ONLYG)
    def f4_load(tag):
        if not live: return
        a("s_mov_b64 exec, 0x0fffffff")
        a.vmem("buffer_load_dword v%d, v%d, s[32:35], s69 offen sc1" % (G.VT, G.T0), tag)
        a("s_mov_b64 exec, -1")
    def f4_check(tag, upto):
        if not live: return
        l = a.newlabel("F4"); d = a.newlabel("F4D")
        if upto is None: a("s_mov_b32 s63, 0x0fffffff")
        else:
            a("s_mov_b32 s63, 0")
            for j_ in range(upto):
                a("s_lshr_b32 s61, s%d, 2" % SJ[j_])
                a("s_lshl_b32 s61, 15, s61")
                a("s_or_b32 s63, s63, s61")
        a.wait(vm=tag)
        sv4 = list(a.vm.ops)
        a("s_mov_b32 s60, 0")
        a.label(l)
        a("v_cmp_ne_u32 vcc, 0, v%d" % G.VT)
        a("s_and_b32 s61, vcc_lo, s63")
        a("s_cmp_eq_u32 s61, s63")
        a("s_cbranch_scc1 %s" % d)
        a("s_sleep %d" % PSL)
        f4_load(tag)
        a("s_add_u32 s60, s60, 1")
        a.drain(lg=False)
        a("s_cmp_lt_u32 s60, %s" % hex(SPIN_MAX))
        a("s_cbranch_scc1 %s" % l)
        a.label(d)
        a.vm.ops = sv4
    if FINE4:
        assert ROT2 and LEAD == 0
        a("s_lshl_b32 s69, s64, 13")
        a("s_add_u32 s69, s69, %s" % hex(SYNC_OFF + F4 * SL))
        a("s_cmp_lg_u32 s65, 0")
        a("s_cbranch_scc1 G_NOARR")
        a("s_lshl_b32 s61, s66, 8")
        a("s_add_u32 s61, s61, s69")
        arrive(a, "s61")
        a.label("G_NOARR")
        a("v_lshlrev_b32 v%d, 8, v%d" % (G.T0, G.LN))
        while s2.can_dma() and len(s2.inflight()) < AHEAD2: s2.dma()
        if not RESEARLY: res_loads()
        while s2.nd < NB2 + NS - 1: s2.pump(AHEAD2)
        f4_load("f4")
    else:
        a("s_lshl_b32 s69, s64, 8")
        a("s_add_u32 s69, s69, %s" % hex(SYNC_OFF + S4_CNT * SL))
        a("s_mov_b32 s62, 0")
        a("s_cmp_lg_u32 s65, 0")
        a("s_cbranch_scc1 G_NOARR")
        arrive_issue(a, "s69")
        a.label("G_NOARR")
        while s2.can_dma() and len(s2.inflight()) < AHEAD2: s2.dma()
        if not RESEARLY: res_loads()
        arrive_finish(a, 27, ["s69 offset:%d" % ((S4_REL - S4_CNT) * SL)], "G_NOREL")
        a.label("G_NOREL")
        a("s_add_u32 s69, s69, %d" % ((S4_REL - S4_CNT) * SL))
        while s2.nd < NB2 + NS - 1: s2.pump(AHEAD2)
        flag_issue(a, WS, "s69", G.VZ, G.VT, "f4")
    while s2.pump(AHEAD2): pass
    a.wait(vm="res")
    a("v_lshlrev_b32 v16, 16, v%d" % G.VB2)
    for i in range(2):
        a("v_permlane32_swap_b32 v%d, v%d" % (G.RES + 4 * i, G.RES + 4 * i + 2))
        a("v_permlane32_swap_b32 v%d, v%d" % (G.RES + 4 * i + 1, G.RES + 4 * i + 3))
    a("s_nop 0")
    for q in range(8):
        a("v_lshlrev_b32 v%d, 16, v%d" % (2 * q, G.RES + q))
        a("v_and_b32 v%d, 0xffff0000, v%d" % (2 * q + 1, G.RES + q))
    for r in range(16): a("v_add_f32 v%d, v%d, v16" % (r, r))
    srd(a, 20, 12, str(2048 * 896))
    stamp(a, 10)
    if E("RING6", 1): s2.ring.append(G.RES)
    LK = len(s2.ring) - 1
    G4 = E("G4", 0)
    got = [(LK + 3) // 4]
    if FINE4:
        f4_check("f4", got[0] if got[0] <= G4 else None)
        if got[0] <= G4: f4_load("f4")
    else: flag_check(a, WS, "s69", G.VZ, G.VT, "f4", PSL)
    stamp(a, 11)
    for t in range(len(s2.ring) - 1): s2.fload(t, 40)
    a("""
    s_lshl_b32 s57, s66, 16
    s_lshl_b32 s36, s14, 13
    s_add_u32 s57, s57, s36
    s_add_u32 s57, s57, {OFO}
    s_lshl_b32 s36, s14, 14
    s_and_b32 s36, s36, 0x8000
    s_xor_b32 s37, s36, 0x8000
    s_add_u32 s67, s57, s37
    s_add_u32 s57, s57, s36
    s_lshl_b32 s68, s66, 8
    s_add_u32 s68, s68, {REL}
    """.format(OFO=hex(OF_OFF), REL=hex(SYNC_OFF + S2_REL * SL)))
    free = [(p, G.B + 8 * (p % NB2)) for p in range(28 - NB2, 28)] + [(t, s2.freg(t)) for t in range(28 - len(s2.ring), 28)]
    if not E("RING6", 1): free.append((-1, G.RES))
    free.sort()
    def ob_parts(j):
        def p0():
            if j == 4:
                a("s_add_u32 s57, s57, 4096")
                a("s_add_u32 s67, s67, 4096")
            a.vmem("buffer_load_dwordx4 %s, v%d, s[32:35], s57 offen offset:%d sc1" % (vr(ob[j], 4), G.L16, (j % 4) * 1024), "ob%d" % j)
        def p1():
            a.vmem("buffer_load_dwordx4 %s, v%d, s[32:35], s67 offen offset:%d sc1" % (vr(ob[j] + 4, 4), G.L16, (j % 4) * 1024), "ob%d" % j)
        return [p0, p1]
    def ostep(j, fill):
        a.wait(vm=["oa%d" % j, "ob%d" % j])
        for n in range(4):
            uw, uf = n >> 1, n & 1
            acc = vr(G.ACC + 16 * n, 16)
            a("%s %s, %s, %s, %s" % (MF, acc, vr(oa[j] + 4 * uf, 4), vr(ob[j] + 4 * uw, 4), acc))
            if fill: fill.pop(0)()
        for f in fill: f()
    TCHK = E("TCHK", 17)
    OLAG = E("OLAG", 5)
    want = []
    for j in range(8): want += ([("a", j)] if j >= NOA else []) + [("b", j)]
    issued_at = {}; jo = 0
    def take(t, limit):
        out = []
        while want and free and free[0][0] < t and len(out) < limit:
            kind, j = want[0]
            if kind == "b" and t < TCHK:
                nxt = [w_ for w_ in want if w_[0] == "a"]
                if not nxt: break
                kind, j = nxt[0]
            want.remove((kind, j))
            reg = free.pop(0)[1]
            if kind == "a": oa[j] = reg; out += oa_parts(j)
            else: ob[j] = reg; out += ob_parts(j); issued_at[j] = t
        return out
    for t in range(28):
        if ONLY2 and t in (4, 8, 12, 16): stamp(a, 2 + t // 4)
        if FINE4 and got[0] <= G4 and (t + LK) // 4 + 1 > got[0]:
            got[0] += 1
            assert t < TCHK - 5
            f4_check("f4", got[0] if got[0] <= G4 else None)
            if got[0] <= G4: f4_load("f4")
        fill = s2.loop_fill(t, 40)
        if t == TCHK - 5:
            fill.append(lambda: a.vmem("buffer_load_dword v%d, v%d, s[32:35], s68 offen sc1" % (G.VT, G.VZ), "s2"))
        if t == TCHK:
            a.wait(vm="s2")
            a("v_readfirstlane_b32 s62, v%d" % G.VT)
            a("s_cmp_lg_u32 s62, 0")
            a("s_cbranch_scc1 G_S2_OK")
            if not E("FAKEA", 0): poll(a, WS, "s68", G.VZ, G.VT, sleep=2, keep=True)
            a.label("G_S2_OK")
            stamp(a, 12)
        fill += take(t, 4)
        s2.step(t, False, fill)
        if jo in issued_at and issued_at[jo] + OLAG <= t:
            ostep(jo, take(t + 1, 4))
            free.append((t + 1, oa[jo])); free.append((t + 1, ob[jo])); free.sort()
            jo += 1
    assert s2.nr == 28
    if ONLY2: stamp(a, 7)
    for f in take(99, 99): f()
    assert not want
    while jo < 8 - TAILM: ostep(jo, []); jo += 1
    tail2 = []
    while jo < 8:
        a.wait(vm=["oa%d" % jo, "ob%d" % jo])
        tail2.append(lambda n, j=jo: (vr(oa[j] + 4 * (n & 1), 4), vr(ob[j] + 4 * (n >> 1), 4)))
        jo += 1
    if ONLY2: stamp(a, 8)
    g_reduce_write(a, tail=tail2)
    g_reduce_add(a)
    for r in range(8): a("v_cvt_pk_bf16_f32 v%d, v%d, v%d" % (32 + r, 2 * r, 2 * r + 1))
    a("s_nop 1")
    for i in range(2):
        a("v_permlane32_swap_b32 v%d, v%d" % (32 + 4 * i, 34 + 4 * i))
        a("v_permlane32_swap_b32 v%d, v%d" % (33 + 4 * i, 35 + 4 * i))
    for i in range(2): a("buffer_store_dwordx4 %s, v%d, s[20:23], 0 offen offset:%d %s" % (vr(32 + 4 * i, 4), G.VX, 32 * i, OUTPOL))
    stamp_flush(a, 13, 60, "G")

DOC = """; ---------------------------------------------------------------------------------------------------------
; ---------------------------------------------------------------------------------------------------------
"""
HEADER = open("cdna_kernels/%s.s.ref" % NAME).read().split("; Override launch geometry")[0]

def main(path):
    a = Asm()
    a.label(KNAME)
    a("s_cmp_ge_u32 s2, 512")
    a("s_cbranch_scc1 K_END")
    stamp(a, 0)
    a("""
    s_load_dwordx8 s[4:11], s[0:1], 0
    s_load_dwordx4 s[28:31], s[0:1], 80
    s_load_dwordx4 s[40:43], s[0:1], 40
    s_load_dwordx4 s[52:55], s[0:1], 56
    s_load_dwordx2 s[12:13], s[0:1], 72
    v_lshrrev_b32 v1, 6, v0
    s_and_b32 s56, s2, 7
    v_readfirstlane_b32 s14, v1
    s_bfe_u32 s57, s2, 0x50003
    s_cmp_lt_u32 s2, 256
    s_cbranch_scc1 ROLE_A
    s_cmp_ge_u32 s57, 28
    s_cbranch_scc1 K_P
    s_cmp_lg_u32 s56, 7
    s_cbranch_scc1 ROLE_G
    s_add_u32 s36, s57, 32
    s_lshl_b32 s37, s57, 2
    s_add_u32 s37, s37, s14
    s_cmp_lt_u32 s37, 83
    s_cbranch_scc1 ROLE_P
    s_cmp_lg_u32 s14, 3
    s_cbranch_scc1 ROLE_P
    s_sub_u32 s37, 27, s57
    s_lshl_b32 s38, s37, 14
    v_and_b32 v6, 63, v0
    v_lshlrev_b32 v6, 8, v6
    v_add_u32 v6, {SYA}, v6
    v_add_u32 v6, s38, v6
    v_mov_b32 v7, 0
    s_waitcnt lgkmcnt(0)
    global_store_dword v6, v7, s[30:31] sc1
    s_cmp_lg_u32 s37, 0
    s_cbranch_scc1 ROLE_P
    s_mov_b32 s62, 1
    s_waitcnt vmcnt(0)
    s_atomic_add s62, s[28:29], 0x0
    s_branch ROLE_P
    K_P:
    {CPF}
    s_sub_u32 s36, s2, 480
    s_branch ROLE_P
    """.format(SYA=hex(SYNC_OFF + WSBASE), CPF="""
    s_getpc_b64 s[60:61]
    K_PC:
    s_and_b32 s36, s57, 3
    s_lshl_b32 s36, s36, 12
    v_lshl_add_u32 v1, v0, 4, s36
    global_load_dwordx4 v[64:67], v1, s[60:61]
    v_add_u32 v1, 0x4000, v1
    v_min_u32 v1, CODE_END-K_PC-16, v1
    global_load_dwordx4 v[68:71], v1, s[60:61]
    """ if E("CODEPF", 1) == 2 else ""))
    n0 = len(a.lines)
    role_a(a)
    n1 = len(a.lines)
    role_g(a)
    if GTOP:
        n2 = a.lines.index("G_SETUP:")
        head = a.lines[n1:n2] + ["    s_branch G_SETUP"]
        if GTOP == 1: a.lines = a.lines[:n0] + head + a.lines[n0:n1] + a.lines[n2:]
        else:
            k = n0 + next(i for i, l in enumerate(a.lines[n0:n1]) if "global_load_dwordx4 v[12:15]" in l) + 1
            a.lines = a.lines[:k] + ["    s_branch A_CONT"] + head + ["A_CONT:"] + a.lines[k:n1] + a.lines[n2:]
    a.label("K_END")
    a("s_endpgm")
    a.vm.clear(); a.lg.clear()
    a.label("ROLE_P")
    if ONLY2 or ONLYG:
        a("s_cmp_lt_u32 s57, 28")
        a("s_cbranch_scc1 ROLE_G")
        a("s_endpgm")
    a("""
    s_mov_b32 s66, s36
    s_lshl_b32 s36, s36, 2
    s_add_u32 s36, s36, s14
    REMAP
    v_and_b32 v1, 63, v0
    v_lshrrev_b32 v2, 3, v1
    v_and_b32 v3, 7, v1
    v_lshlrev_b32 v3, 4, v3
    v_mov_b32 v4, {BIG}
    s_mov_b64 s[64:65], -1
    s_mov_b32 s19, 0x20000
    s_lshl_b32 s49, s14, 13
    s_cmp_ge_u32 s36, 147
    s_cbranch_scc1 P_J2
    s_mul_i32 s37, s36, 3121
    s_lshr_b32 s37, s37, 16
    s_mul_i32 s38, s37, 21
    s_sub_u32 s38, s36, s38
    s_mul_i32 s20, s37, 172032
    s_lshl_b32 s39, s38, 7
    s_add_u32 s20, s20, s39
    s_add_u32 s21, s20, 43008
    s_add_u32 s22, s21, 43008
    s_add_u32 s23, s22, 43008
    s_movk_i32 s50, 2688
    s_mov_b32 s18, {WSZ}
    s_mov_b32 s51, 8
    s_waitcnt lgkmcnt(0)
    s_mov_b32 s16, s6
    s_and_b32 s17, s7, 0xffff
    s_branch P_LD
    P_J2:
    s_mov_b32 s51, 4
    s_cmp_ge_u32 s36, 203
    s_cbranch_scc1 P_J3
    s_sub_u32 s37, s36, 147
    s_and_b32 s38, s37, 7
    s_lshr_b32 s37, s37, 3
    s_mul_i32 s20, s38, 50176
    s_lshl_b32 s39, s37, 7
    s_add_u32 s20, s20, s39
    s_add_u32 s21, s20, 14336
    s_add_u32 s22, s20, 25088
    s_add_u32 s23, s20, 39424
    s_movk_i32 s50, 896
    s_mov_b32 s18, {OSZ}
    s_waitcnt lgkmcnt(0)
    s_mov_b32 s16, s10
    s_and_b32 s17, s11, 0xffff
    s_branch P_LD
    P_J3:
    s_sub_u32 s38, s36, 203
    s_mul_i32 s20, s38, 3136
    s_add_u32 s21, s20, 896
    s_add_u32 s22, s20, 1568
    s_add_u32 s23, s20, 2464
    s_movk_i32 s50, 56
    s_cmp_lt_u32 s38, 8
    s_cselect_b32 s18, 25088, 0
    s_waitcnt lgkmcnt(0)
    s_mov_b32 s16, s8
    s_and_b32 s17, s9, 0xffff
    P_LD:
    v_mul_lo_u32 v8, v2, s50
    s_lshl_b32 s39, s50, 3
    v_add_u32 v8, v8, v3
    v_cmp_gt_u32 vcc, s51, v2
    v_add_u32 v9, s39, v8
    s_mov_b32 m0, s49
    v_cndmask_b32 v10, v4, v9, vcc
    """.format(BIG=hex(BIG), WSZ=448 * 2688, OSZ=448 * 896).replace("REMAP", """
    s_cmp_ge_u32 s36, 98
    s_cbranch_scc1 P_M2
    s_mul_i32 s37, s36, 4682
    s_lshr_b32 s37, s37, 16
    s_mul_i32 s37, s37, 7
    s_add_u32 s36, s36, s37
    s_add_u32 s36, s36, 7
    s_branch P_M9
    P_M2:
    s_cmp_ge_u32 s36, 108
    s_cbranch_scc1 P_M3
    s_add_u32 s36, s36, 105
    s_branch P_M9
    P_M3:
    s_waitcnt lgkmcnt(0)
    s_mov_b32 s44, s28
    s_and_b32 s45, s29, 0xffff
    s_mov_b32 s46, 256
    s_mov_b32 s47, 0x20000
    v_mov_b32 v5, 0
    s_movk_i32 s58, 0x80
    s_mov_b32 s60, 0
    P_MW:
    buffer_load_dword v4, v5, s[44:47], s58 offen sc1
    s_add_u32 s60, s60, 1
    s_waitcnt vmcnt(0)
    v_readfirstlane_b32 s61, v4
    s_cmp_lg_u32 s61, 0
    s_cbranch_scc1 P_MD
    s_sleep 8
    s_cmp_lt_u32 s60, 0x40000
    s_cbranch_scc1 P_MW
    P_MD:
    s_setprio 3
    s_sub_u32 s36, s36, 108
    s_cmp_ge_u32 s36, 49
    s_cbranch_scc1 P_M4
    s_mul_i32 s37, s36, 37
    s_lshr_b32 s37, s37, 8
    s_mul_i32 s37, s37, 14
    s_add_u32 s36, s36, s37
    s_branch P_M9
    P_M4:
    s_add_u32 s36, s36, 98
    s_cmp_ge_u32 s36, 203
    s_cselect_b32 s36, 239, s36
    P_M9:
    """ if TWO else ""))
    stamp(a, 2)
    for u in range(4):
        a.vmem("buffer_load_dwordx4 v8, s[16:19], s%d offen nt lds" % (20 + u), "u%d" % u)
        a("s_add_u32 m0, s49, %d" % (u * 2048 + 1024))
        a("s_nop 0")
        a.vmem("buffer_load_dwordx4 v%d, s[16:19], s%d offen nt lds" % (10 if u % 2 else 9, 20 + u), "u%d" % u)
        if u < 3:
            a("s_add_u32 m0, s49, %d" % (u * 2048 + 2048))
            a("s_nop 0")
    def code_pf():
        a("""
        s_cmp_lt_u32 s57, 28
        s_cbranch_scc1 P_NOCODE
        s_getpc_b64 s[60:61]
        K_PC:
        s_sub_u32 s60, s60, K_PC-{K}
        s_subb_u32 s61, s61, 0
        s_and_b32 s58, s57, 3
        s_lshl_b32 s58, s58, 12
        v_lshl_add_u32 v5, v0, 4, s58
        global_load_dwordx4 v[64:67], v5, s[60:61]
        v_add_u32 v5, 0x4000, v5
        v_min_u32 v5, CODE_END-{K}-16, v5
        global_load_dwordx4 v[68:71], v5, s[60:61]
        P_NOCODE:
        """.format(K=KNAME))
    if E("CODEPF", 1) == 1: code_pf()
    ws_base(a)
    srd(a, WS, 30, hex(WS_USED))
    srd(a, DBG, 28, "256")
    a("""
    v_mov_b32 v5, 0
    v_bfe_u32 v13, v1, 2, 2
    v_lshlrev_b32 v13, 7, v13
    v_lshrrev_b32 v14, 4, v1
    v_lshl_add_u32 v13, v14, 5, v13
    v_and_b32 v14, 3, v1
    v_lshl_add_u32 v13, v14, 3, v13
    v_add_u32 v13, s49, v13
    s_cmp_ge_u32 s36, 147
    s_cbranch_scc1 P_D2
    s_mul_i32 s39, s38, 37
    s_lshr_b32 s39, s39, 8
    s_mul_i32 s48, s39, 7
    s_sub_u32 s48, s38, s48
    s_lshl_b32 s48, s48, 6
    v_add_u32 v6, s48, v1
    v_mul_u32_u24 v7, 2341, v6
    v_lshrrev_b32 v7, 16, v7
    v_mul_u32_u24 v11, 28, v7
    v_sub_u32 v11, v6, v11
    v_lshlrev_b32 v11, 4, v11
    v_mul_u32_u24 v7, {WPH}, v7
    v_add_u32 v11, v11, v7
    v_add_u32 v12, 448, v11
    s_cmp_eq_u32 s39, 0
    s_cselect_b32 s48, 1, 2
    s_mul_i32 s48, s48, 896
    s_mul_i32 s24, s39, 896
    s_sub_u32 s24, s24, 896
    s_cmp_eq_u32 s39, 0
    s_cselect_b32 s24, {WPQ}, s24
    s_lshl_b32 s37, s37, 2
    s_mul_i32 s37, s37, s48
    s_add_u32 s24, s24, s37
    s_add_u32 s24, s24, {WPO}
    s_add_u32 s25, s24, s48
    s_add_u32 s26, s25, s48
    s_add_u32 s27, s26, s48
    v_add_u32 v14, 512, v13
    v_add_u32 v15, 1024, v13
    s_branch P_ST
    P_D2:
    v_add_u32 v14, 1024, v13
    v_add_u32 v15, 512, v13
    v_lshrrev_b32 v6, 5, v1
    v_and_b32 v7, 31, v1
    v_lshlrev_b32 v11, 4, v7
    s_cmp_ge_u32 s36, 203
    s_cbranch_scc1 P_D3
    v_lshl_add_u32 v11, v6, 10, v11
    v_add_u32 v12, 512, v11
    s_mul_i32 s24, s37, {UPG}
    s_lshl_b32 s39, s38, 13
    s_add_u32 s24, s24, s39
    s_add_u32 s24, s24, {OB}
    s_add_u32 s25, s24, 2048
    s_add_u32 s26, s24, 4096
    s_add_u32 s27, s24, 6144
    s_branch P_ST
    P_D3:
    v_mul_u32_u24 v6, 0x7f0000, v6
    v_lshl_add_u32 v11, v6, 4, v11
    v_add_u32 v12, 512, v11
    s_mul_i32 s24, s38, {WPH2}
    s_add_u32 s24, s24, {PHB}
    s_cmp_lt_u32 s38, 8
    s_cselect_b32 s24, s24, 0x08000000
    s_add_u32 s25, s24, 1024
    s_add_u32 s26, s24, {WPH}
    s_add_u32 s27, s26, 1024
    s_mov_b32 s64, 0x0fffffff
    P_ST:
    """.format(WPH=WP_H, WPQ=WP_Q, WPO=hex(WP_OFF), UPG=UP_G, OB=hex(UP_OFF + 112 * 2048), WPH2=2 * WP_H, PHB=hex(WP_OFF + WP_PHI)))
    stamp(a, 3)
    for u in range(4):
        b = 16 + 8 * u
        a.wait(vm="u%d" % u)
        a.ds("ds_read_b64_tr_b16 %s, v13 offset:%d" % (vr(b, 2), u * 2048), "t%d" % u)
        a.ds("ds_read_b64_tr_b16 %s, v14 offset:%d" % (vr(b + 2, 2), u * 2048), "t%d" % u)
        a.ds("ds_read_b64_tr_b16 %s, v15 offset:%d" % (vr(b + 4, 2), u * 2048), "t%d" % u)
        a.ds("ds_read_b64_tr_b16 %s, v13 offset:%d" % (vr(b + 6, 2), u * 2048 + 1536), "t%d" % u)
    stamp(a, 4)
    for u in range(4):
        b = 16 + 8 * u
        a.wait(lg="t%d" % u)
        for r in range(8): a("v_cndmask_b32 v%d, 0, v%d, s[64:65]" % (b + r, b + r))
        a.vmem("buffer_store_dwordx4 %s, v11, s[32:35], s%d offen sc1" % (vr(b, 4), 24 + u))
        a.vmem("buffer_store_dwordx4 %s, v12, s[32:35], s%d offen sc1" % (vr(b + 4, 4), 24 + u))
    a.vmem("buffer_load_dword v4, v5, s[44:47], 0 offen sc1")
    stamp(a, 5)
    a.drain()
    stamp(a, 6)
    a("s_barrier")
    a("s_cmp_lg_u32 s14, 0")
    a("s_cbranch_scc1 P_NOARR")
    a("v_readfirstlane_b32 s61, v4")
    a("s_cmp_lg_u32 s61, 0")
    a("s_cbranch_scc1 P_RDY")
    poll(a, DBG, "0", 5, 4)
    a.label("P_RDY")
    assert SV_REL - SV_CNT == SW_REL - SW_CNT
    a("s_mov_b32 s20, %s" % hex(SYNC_OFF + SW_CNT * SL))
    a("s_mov_b32 s21, 59")
    if TWO:
        a("s_cmp_lt_u32 s66, 27")
        a("s_cselect_b32 s21, 26, 32")
        a("s_cselect_b32 s22, 0, %d" % ((SV_CNT - SW_CNT) * SL))
        a("s_add_u32 s20, s20, s22")
    arrive_issue(a, "s20")
    a.drain(vm=False)
    a("s_cmp_lg_u32 s62, s21")
    a("s_cbranch_scc1 P_NOARR")
    a("s_mov_b32 s62, 1")
    for i in range(8): a("s_atomic_add s62, s[30:31], s20 offset:%d" % ((SW_REL - SW_CNT + i) * SL))
    a.label("P_NOARR")
    if WSBASE:
        a("s_sub_u32 s30, s30, %s" % hex(WSBASE))
        a("s_subb_u32 s31, s31, 0")
    a("s_cmp_lt_u32 s57, 28")
    a("s_cbranch_scc1 ROLE_G")
    stamp(a, 1)
    if ONLYA or not E("PON", 1): a("s_endpgm")
    a("""
    s_and_b32 s36, s57, 3
    s_lshl_b32 s37, s56, 2
    s_add_u32 s37, s37, s36
    s_lshl_b32 s37, s37, 7
    s_mul_i32 s58, s14, {W64}
    s_add_u32 s58, s58, s37
    s_add_u32 s58, s58, {R0}
    s_cmp_eq_u32 s56, 7
    s_cselect_b32 s58, 0x08000000, s58
    v_mul_u32_u24 v6, 3584, v2
    v_add_u32 v6, v6, v3
    """.format(W64=64 * 3584, R0=1792 * 3584))
    srd(a, 16, 40, str(2048 * 3584))
    for i in range(0 if HELP else 8):
        a("buffer_load_dwordx4 %s, v6, s[16:19], s58 offen nt" % vr(16 + 4 * i, 4))
        a("s_add_u32 s58, s58, %d" % (8 * 3584))
    a("""
    s_lshl_b32 s36, s36, 2
    s_add_u32 s36, s36, s14
    v_lshrrev_b32 v2, 5, v1
    v_lshlrev_b32 v2, 12, v2
    v_and_b32 v3, 31, v1
    v_lshl_add_u32 v2, v3, 4, v2
    s_lshl_b32 s58, s56, 9
    v_add_u32 v2, s58, v2
    v_lshlrev_b32 v1, 4, v1
    v_mov_b32 v3, 0
    s_mul_i32 s37, s56, 229376
    """)
    srd(a, 24, 52, str(1792 * 4096))
    srd(a, 16, 4, "229376", add="s37")
    PD = E("PDEPTH", 8)
    a("s_setprio %d" % E("PRIO_P", 0))
    def pf_loop(lbl, srdn, vaddr, step, limit, pol):
        a.label(lbl)
        for i in range(8):
            a("s_waitcnt vmcnt(%d)" % (PD - 1))
            a("buffer_load_dwordx4 %s, v%d, s[%d:%d], s58 offen %s" % (vr(8 + 4 * i, 4), vaddr, srdn, srdn + 3, pol))
            a("s_add_u32 s58, s58, %d" % step)
        a("s_cmp_lt_u32 s58, %s" % limit)
        a("s_cbranch_scc1 %s" % lbl)
    def blk8k(sreg):
        a("s_waitcnt vmcnt(4)")
        for i in range(4): a("buffer_load_dwordx4 %s, v1, s[32:35], %s offen offset:%d sc1" % (vr(8 + 4 * i, 4), sreg, i * 1024))
        a("s_add_u32 s63, %s, 4096" % sreg)
        a("s_waitcnt vmcnt(4)")
        for i in range(4): a("buffer_load_dwordx4 %s, v1, s[32:35], s63 offen offset:%d sc1" % (vr(24 + 4 * i, 4), i * 1024))
    def tail_groups(lbl, base, gstride, n, with7, flag):
        a("s_and_b32 s48, s57, 3")
        a.label(lbl)
        if flag is not None:
            a("s_lshl_b32 s58, s48, 8")
            a("s_add_u32 s58, s58, %s" % hex(flag))
            poll(a, WS, "s58", 3, 4, sleep=4)
        a("s_mul_i32 s49, s48, %d" % gstride)
        a("s_lshl_b32 s50, s14, 13")
        a("s_add_u32 s49, s49, s50")
        a("s_add_u32 s49, s49, %s" % hex(base))
        for q in range(n):
            if with7 and q == n - 1: a("s_add_u32 s51, s49, %d" % (7 * 32768))
            else:
                back = n - (1 if with7 else 0) - q
                a("s_add_u32 s51, s48, %d" % (7 - back))
                a("s_sub_u32 s50, s51, 7")
                a("s_cselect_b32 s51, s51, s50")
                a("s_lshl_b32 s51, s51, 15")
                a("s_add_u32 s51, s51, s49")
            blk8k("s51")
        a("s_add_u32 s48, s48, 4")
        a("s_cmp_lt_u32 s48, 7")
        a("s_cbranch_scc1 %s" % lbl)
    def wait_s0():
        a("s_movk_i32 s58, 0x80")
        poll(a, DBG, "s58", 3, 4, sleep=8)
    def pf_wo():
        a("s_lshl_b32 s58, s36, 12")
        a("s_add_u32 s58, s58, %s" % hex(UP_OFF + 112 * 2048))
        for g_ in range(7):
            a("s_waitcnt vmcnt(4)")
            for i in range(4): a("buffer_load_dwordx4 %s, v1, s[32:35], s58 offen offset:%d sc1" % (vr(8 + 16 * (g_ % 2) + 4 * i, 4), i * 1024))
            a("s_add_u32 s58, s58, %d" % UP_G)
    if not E("PEARLY", 0): wait_s0()
    stamp(a, 2)
    a("s_lshl_b32 s58, s36, 13")
    pf_loop("P_W2", 24, 2, 16 * 8192, str(E("PFA", 1024) * 4096), PFPOL)
    stamp(a, 3)
    a("s_mov_b32 s48, s58")
    if E("PWO", 2) == 1: pf_wo()
    a("s_lshl_b32 s58, s36, 10")
    if E("PX", 1): pf_loop("P_X", 16, 1, 16 * 1024, "229376", PFPOL)
    stamp(a, 4)
    a("s_mov_b32 s58, s48")
    if E("PTAIL", 1): pf_loop("P_W3", 24, 2, 16 * 8192, str(1792 * 4096), PFPOL)
    stamp(a, 5)
    if E("PEARLY", 0): wait_s0()
    if E("PWO", 2) == 2: pf_wo()
    if E("NUT", 0): tail_groups("P_UT", UP_OFF, UP_G, E("NUT", 0), False, SYNC_OFF + S4_REL * SL)
    if E("POF", 0):
        a("s_and_b32 s48, s57, 3")
        a("s_lshl_b32 s49, s56, 2")
        a("s_add_u32 s48, s48, s49")
        a("s_lshl_b32 s58, s48, 8")
        a("s_add_u32 s58, s58, %s" % hex(SYNC_OFF + S2_REL * SL))
        poll(a, WS, "s58", 3, 4, sleep=4)
        a("s_lshl_b32 s51, s48, 16")
        a("s_lshl_b32 s50, s14, 14")
        a("s_add_u32 s51, s51, s50")
        a("s_add_u32 s51, s51, %s" % hex(OF_OFF))
        blk8k("s51")
        a("s_add_u32 s51, s51, 8192")
        blk8k("s51")
    if STAMP == 1: stamp_flush(a, 7, 60)
    a("s_endpgm")
    if E("PTOP", 0):
        p0 = a.lines.index("ROLE_P:")
        p1 = max(i for i, l in enumerate(a.lines) if "buffer_load_dwordx4 v10, s[16:19], s23" in l) + 1
        head = a.lines[p0:p1] + ["    s_branch P_CONT"]
        k = a.lines.index("A_CONT:")
        a.lines = a.lines[:k] + head + a.lines[k:p0] + ["P_CONT:"] + a.lines[p1:]
    a.label("CODE_END")
    if DIAG:
        out = HEADER + "; @launch kernel=%s grid=(512,1,1) block=(256,1,1) lds=81920\n; @launch kernel=diag_kernel grid=(1,1,1) block=(64,1,1) lds=0\n" % KNAME
        a.lines += [".globl diag_kernel", ".p2align 8", ".type diag_kernel,@function"]
        a("""
        diag_kernel:
        s_cmp_lg_u32 s2, 0
        s_cbranch_scc1 DG_END
        s_load_dwordx2 s[4:5], s[0:1], 80
        s_waitcnt lgkmcnt(0)
        s_sub_u32 s4, s4, 512
        s_subb_u32 s5, s5, 0
        s_load_dwordx2 s[6:7], s[4:5], 128
        s_memrealtime s[8:9]
        s_waitcnt lgkmcnt(0)
        s_not_b32 s6, s6
        s_sub_u32 s6, s7, s6
        s_min_u32 s6, s6, 10000
        s_mul_i32 s6, s6, %d
        DG_L:
        s_memrealtime s[10:11]
        s_waitcnt lgkmcnt(0)
        s_sub_u32 s10, s10, s8
        s_cmp_lt_u32 s10, s6
        s_cbranch_scc1 DG_L
        DG_END:
        s_endpgm
        """ % E("AMP", 10))
    else:
        out = HEADER + "; @launch grid=(512,1,1) block=(256,1,1) lds=81920\n"
    out += '.amdgcn_target "amdgcn-amd-amdhsa--gfx950"\n' + DOC + '.text\n.globl %s\n.p2align 8\n.type %s,@function\n' % (KNAME, KNAME)
    out += a.text()
    out += """.section .rodata,"a"
.p2align 6
.amdhsa_kernel {n}
  .amdhsa_next_free_vgpr 256
  .amdhsa_next_free_sgpr {s}
  .amdhsa_accum_offset 256
  .amdhsa_group_segment_fixed_size 0
  .amdhsa_kernarg_size 96
  .amdhsa_user_sgpr_count 2
  .amdhsa_user_sgpr_kernarg_segment_ptr 1
  .amdhsa_system_sgpr_workgroup_id_x 1
  .amdhsa_float_denorm_mode_32 3
.end_amdhsa_kernel
""".format(n=KNAME, s=100 if STAMP else 72)
    if DIAG:
        out += """.p2align 6
.amdhsa_kernel diag_kernel
  .amdhsa_next_free_vgpr 8
  .amdhsa_next_free_sgpr 32
  .amdhsa_accum_offset 8
  .amdhsa_group_segment_fixed_size 0
  .amdhsa_kernarg_size 96
  .amdhsa_user_sgpr_count 2
  .amdhsa_user_sgpr_kernarg_segment_ptr 1
  .amdhsa_system_sgpr_workgroup_id_x 1
.end_amdhsa_kernel
"""
    if E("NONT", 1):
        import re
        out = re.sub(r" nt$", "", out, flags=re.M).replace(" nt lds", " lds")
    open(path, "w").write(out)

if __name__ == "__main__":
    main(sys.argv[1])
```

```python
import sys, struct, os

NAME = "parallel_sum__linear_kernel_hedgehog__mixer_token_mlp__prompt"
KNAME = NAME + "_kernel"
E = lambda k, d: int(os.environ.get(k, str(d)))

XN_OFF   = 0x000000
HT_OFF   = 0x200000
HT_G     = 128 * 2048
WP_OFF   = 0x400000
WP_Q     = 28 * 1792
WP_PHI   = 28 * 2688
WP_H     = WP_PHI + 2048 + 512
UP_OFF   = 0x600000
UP_G     = 144 * 2048
KVF_OFF  = 0x800000
SYNC_OFF = 0x840000
OF_OFF   = 0x900000
KVP_OFF  = 0xB00000
PART_OFF = 0xD00000
WS_USED  = 0x1000000
STAMP_OFF = 0xF00000
BIG      = 0x7ff00000
SL = 256
SX_CNT, SX_REL = 0, 16
SW_CNT, SW_REL = 32, 48
S1_CNT, S1_REL = 64, 80
SV_CNT, SV_REL = 40, 56
S2_CNT, S2_REL = 128, 160
S4_CNT, S4_REL = 192, 200
SA_ROOT = 36
SA_REP = 208
SH_REL = 224
F4 = 256
NSYNC = 512
SPIN_MAX = 0x40000

STAMP = E("STAMP", 0); PRIO_A = E("PRIO_A", 2); PRIO_G = E("PRIO_G", 1); AHEAD = E("AHEAD", 4); W2START = E("W2START", 32)
NB, NF, NS = E("NB", 16), E("NF", 5), 10
LEAD = E("LEAD", 0)
XPRE = E("XPRE", 12)
PSL = E("PSL", 1)
WDMA1 = E("WDMA1", 3)
WPRE = E("WPRE", 4)
NOPK = E("NOPK", 0)
NOA = E("NOA", 0)
TWO = 1
GTOP = E("GTOP", 2)
TAILM = E("TAILM", 3)
FINE4 = E("FINE4", 1)
FLOOK = E("FLOOK", 7)
HELP = E("HELP", 0)
NK1 = 28 if HELP else 32
NB2 = NB - NOA
ROT2 = E("ROT2", 1)
INL0 = E("INL0", 18)
INLN = E("INLN", 0)
INLP = E("INLP", 1)
WPUMP = E("WPUMP", 0)
AHEAD2 = E("AHEAD2", 5)
PFW2 = E("PFW2", 0)
PRIO_Q = E("PRIO_Q", 0)
PRIO_K = E("PRIO_K", 2)
JOBLATE = E("JOBLATE", 1)
BURST = E("BURST", 4)
PFPOL = os.environ.get("PFPOL", "")
NP = E("NP", 0)
AHEAD0 = E("AHEAD0", 5)
ALOOK = E("ALOOK", 99)
W2POL = os.environ.get("W2POL", "")
W1POL2 = os.environ.get("W1POL2", "")
RESEARLY = E("RESEARLY", 0)
WSBASE = E("WSBASE", 0)
ONLY2 = E("ONLY2", 0)
ONLYG = E("ONLYG", 0)
ONLYA = E("ONLYA", 0)
GWAIT = E("GWAIT", 0)
PFWAIT = E("PFWAIT", 0)
OUTPOL = os.environ.get("OUTPOL", "")

def f32(x): return "0x%08x" % struct.unpack("<I", struct.pack("<f", x))[0]

class Q:
    def __init__(self, mx): self.ops = []; self.mx = mx
    def issue(self, tag): self.ops.append(tag)
    def need(self, tags):
        if not isinstance(tags, (list, tuple, set)): tags = [tags]
        idx = -1
        for i, t in enumerate(self.ops):
            if t in tags: idx = i
        if idx < 0: return None
        n = len(self.ops) - 1 - idx
        if n > self.mx: return self.mx
        self.ops = self.ops[idx + 1:]
        return n
    def clear(self): self.ops = []

class Asm:
    def __init__(self):
        self.lines = []; self.vm = Q(63); self.lg = Q(15); self.uid = 0; self.issued = []; self.spr = []; self.pending = False
    def sprinkle(self, fns, gap): self.spr = fns; self.gap = gap; self.cnt = 0
    def sprinkle_flush(self):
        fns, self.spr = self.spr, []
        for f in fns: f()
    def __call__(self, s):
        for l in s.strip().split("\n"):
            l = l.strip()
            if l.endswith(":"): self.lines.append(l)
            elif l: self.lines.append("    " + l)
        if self.spr and s.lstrip().startswith(("v_", "ds_")):
            self.cnt += 1
            if self.cnt >= self.gap:
                self.cnt = 0
                self.spr.pop(0)()
    def label(self, l): self.lines.append(l + ":")
    def vmem(self, s, tag=None): self(s); self.vm.issue(tag); self.issued.append(tag)
    def ds(self, s, tag=None): self(s); self.lg.issue(tag)
    def wait(self, vm=None, lg=None):
        p = []
        for q, t, nm in ((self.vm, vm, "vmcnt"), (self.lg, lg, "lgkmcnt")):
            if t is None: continue
            n = q.need(t)
            if n is None: continue
            if len(q.ops) > n: q.ops = q.ops[len(q.ops) - n:]
            p.append("%s(%d)" % (nm, n))
        if p: self("s_waitcnt " + " ".join(p))
    def drain(self, vm=True, lg=True):
        p = []
        if vm: p.append("vmcnt(0)"); self.vm.clear()
        if lg: p.append("lgkmcnt(0)"); self.lg.clear()
        self("s_waitcnt " + " ".join(p))
    def newlabel(self, p): self.uid += 1; return "%s_%d" % (p, self.uid)
    def text(self): return "\n".join(self.lines) + "\n"

def vr(a, n): return "v[%d:%d]" % (a, a + n - 1)

def srd(a, d, base, size, add=None):
    if add is None:
        a("s_mov_b32 s%d, s%d" % (d, base))
        a("s_and_b32 s%d, s%d, 0xffff" % (d + 1, base + 1))
    else:
        a("s_add_u32 s%d, s%d, %s" % (d, base, add))
        a("s_addc_u32 s%d, s%d, 0" % (d + 1, base + 1))
        a("s_and_b32 s%d, s%d, 0xffff" % (d + 1, d + 1))
    a("s_mov_b32 s%d, %s" % (d + 2, size))
    a("s_mov_b32 s%d, 0x20000" % (d + 3))

WS = 32
DBG = 44

def ws_base(a):
    if WSBASE:
        a("s_add_u32 s30, s30, %s" % hex(WSBASE))
        a("s_addc_u32 s31, s31, 0")

def stamp(a, i):
    if STAMP == 3 and i not in (0, 13): return
    if STAMP:
        a("%s s[%d:%d]" % ("s_memtime" if STAMP == 2 else "s_memrealtime", 70 + 2 * i, 71 + 2 * i))
        a.drain(vm=False)
DIAG = os.environ.get("DIAG", "")
def stamp_flush(a, n, tmp, role=""):
    if not STAMP: return
    a.drain()
    stamp(a, n)
    if DIAG:
        a("s_mov_b64 exec, 1")
        a("v_mov_b32 v%d, 0" % tmp)
        a("s_not_b32 s98, s70")
        a("v_mov_b32 v%d, s98" % (tmp + 1))
        a("buffer_atomic_umax v%d, v%d, s[44:47], 0 offen offset:128 sc1" % (tmp + 1, tmp))
        if DIAG[0] == role:
            a("v_mov_b32 v%d, s%d" % (tmp + 2, 70 + 2 * int(DIAG[1:])))
            a("buffer_atomic_umax v%d, v%d, s[44:47], 0 offen offset:132 sc1" % (tmp + 2, tmp))
        return
    a("s_mov_b64 exec, 1")
    a("s_lshl_b32 s98, s2, 8")
    a("s_lshl_b32 s99, s14, 6")
    a("s_add_u32 s98, s98, s99")
    a("s_add_u32 s98, s98, %s" % hex(STAMP_OFF))
    a("v_mov_b32 v%d, 0" % tmp)
    if STAMP == 3:
        if n == 13:
            a("v_mov_b32 v%d, s70" % (tmp + 1))
            a("v_mov_b32 v%d, s96" % (tmp + 2))
            a("buffer_store_dword v%d, v%d, s[32:35], s98 offen" % (tmp + 1, tmp))
            a("buffer_store_dword v%d, v%d, s[32:35], s98 offen offset:52" % (tmp + 2, tmp))
        return
    for i in range(n + 1):
        a("v_mov_b32 v%d, s%d" % (tmp + 1, 70 + 2 * i))
        a("buffer_store_dword v%d, v%d, s[32:35], s98 offen offset:%d" % (tmp + 1, tmp, 4 * i))
        a("s_waitcnt vmcnt(0)")

def poll(a, srdn, soff, vz, vt, sleep=1, target=1, keep=False):
    if ONLY2 or ONLYG: return
    sv = list(a.vm.ops)
    l = a.newlabel("POLL"); d = a.newlabel("POLLD")
    a("s_mov_b32 s60, 0")
    a("s_mov_b64 exec, 1")
    a.label(l)
    a("buffer_load_dword v%d, v%d, s[%d:%d], %s offen sc1" % (vt, vz, srdn, srdn + 3, soff))
    a("s_add_u32 s60, s60, 1")
    a.drain(lg=False)
    a("v_readfirstlane_b32 s61, v%d" % vt)
    a("s_cmp_ge_u32 s61, %d" % target)
    a("s_cbranch_scc1 %s" % d)
    if sleep: a("s_sleep %d" % sleep)
    a("s_cmp_lt_u32 s60, %s" % hex(SPIN_MAX))
    a("s_cbranch_scc1 %s" % l)
    a.label(d)
    a("s_mov_b64 exec, -1")
    if keep: a.vm.ops = sv

def arrive_issue(a, soff):
    a("s_mov_b32 s62, 1")
    a("s_atomic_add s62, s[30:31], %s glc" % soff)
def arrive_finish(a, last, srels, skip):
    a.drain(vm=False)
    a("s_cmp_lg_u32 s62, %d" % last)
    a("s_cbranch_scc1 %s" % skip)
    a("s_mov_b32 s62, 1")
    for r in srels: a("s_atomic_add s62, s[30:31], %s" % r)

def flag_issue(a, srdn, soff, vz, vt, tag):
    if ONLY2 or ONLYG: return
    a.vmem("buffer_load_dword v%d, v%d, s[%d:%d], %s offen sc1" % (vt, vz, srdn, srdn + 3, soff), tag)
def flag_check(a, srdn, soff, vz, vt, tag, sleep):
    if ONLY2 or ONLYG: return
    ok = a.newlabel("FLAG")
    a.wait(vm=tag)
    a("v_readfirstlane_b32 s61, v%d" % vt)
    a("s_cmp_lg_u32 s61, 0")
    a("s_cbranch_scc1 %s" % ok)
    poll(a, srdn, soff, vz, vt, sleep=sleep, keep=True)
    a.label(ok)

def arrive(a, soff):
    a("s_mov_b32 s62, 1")
    a("s_atomic_add s62, s[30:31], %s" % soff)

def round_bf16(a, d, s):
    a("v_cvt_pk_bf16_f32 v%d, v%d, v%d" % (d, s, s))
    a("v_lshlrev_b32 v%d, 16, v%d" % (d, d))

def half_reduce(a, regs, tmps):
    steps = ["quad_perm:[1,0,3,2] row_mask:0xf bank_mask:0xf", "quad_perm:[2,3,0,1] row_mask:0xf bank_mask:0xf",
             "row_half_mirror row_mask:0xf bank_mask:0xf", "row_mirror row_mask:0xf bank_mask:0xf"]
    for st in steps:
        a("s_nop %d" % (1 if len(regs) == 1 else 0))
        for r in regs: a("v_add_f32_dpp v%d, v%d, v%d %s" % (r, r, r, st))
    for r, t in zip(regs, tmps): a("v_mov_b32 v%d, v%d" % (t, r))
    a("s_nop 1")
    for r, t in zip(regs, tmps): a("v_permlane16_swap_b32 v%d, v%d" % (r, t))
    a("s_nop 0")
    for r, t in zip(regs, tmps): a("v_add_f32 v%d, v%d, v%d" % (r, r, t))

MF = "v_mfma_f32_32x32x16_bf16"

def role_a(a):
    LN, VA, VB, VC, VD, VZ, VT, VH = 250, 251, 252, 253, 254, 248, 249, 255
    a.label("ROLE_A")
    if ONLY2 or ONLYG: a("s_endpgm")
    JB = 16384
    a("""
    s_lshr_b32 s38, s56, 1
    s_lshl_b32 s38, s38, 2
    s_and_b32 s39, s57, 3
    s_add_u32 s38, s38, s39
    s_and_b32 s39, s56, 1
    s_lshl_b32 s39, s39, 3
    s_lshr_b32 s57, s57, 2
    s_add_u32 s39, s39, s57
    s_lshl_b32 s15, s38, 4
    s_add_u32 s15, s15, s39
    v_and_b32 v{VC}, 31, v0
    v_lshrrev_b32 v2, 5, v0
    s_mul_i32 s20, s15, 7168
    v_min_u32 v4, 27, v{VC}
    v_mul_u32_u24 v3, 896, v2
    v_lshl_add_u32 v3, v4, 5, v3
    v_add_u32 v4, s20, v3
    s_waitcnt lgkmcnt(0)
    global_load_dwordx4 v[8:11], v4, s[4:5] nt
    global_load_dwordx4 v[12:15], v4, s[4:5] offset:16 nt
    s_mov_b32 s58, 0x0fffffff
    s_mov_b32 s59, 0x0fffffff
    s_setprio {PRIO}
    s_mul_i32 s25, s39, {WPH}
    s_add_u32 s25, s25, {WPO}
    v_and_b32 v{LN}, 63, v0
    v_bfe_u32 v{VH}, v0, 5, 1
    v_mov_b32 v{VZ}, 0
    v_lshlrev_b32 v{VA}, 4, v{LN}
    v_mul_u32_u24 v{VB}, 448, v{VH}
    v_lshl_add_u32 v{VB}, v{VC}, 4, v{VB}
    """.format(VC=VC, SYA=hex(SYNC_OFF + WSBASE), PRIO=PRIO_A, WPH=WP_H, WPO=hex(WP_OFF), LN=LN, VH=VH, VZ=VZ, VA=VA, VB=VB))
    a.vm.issue("x"); a.vm.issue("x")
    ws_base(a)
    srd(a, WS, 30, hex(WS_USED))
    srd(a, DBG, 28, "256")
    P, X, T = 8, 16, 32
    def unpack(dst, src):
        for i in range(8):
            a("v_lshlrev_b32 v%d, 16, v%d" % (dst + 2 * i, src + i))
            a("v_and_b32 v%d, 0xffff0000, v%d" % (dst + 2 * i + 1, src + i))
    def pack(dst, src):
        for i in range(8): a("v_cvt_pk_bf16_f32 v%d, v%d, v%d" % (dst + i, src + 2 * i, src + 2 * i + 1))
    def pksum(dst, src):
        a("v_pk_add_f32 %s, %s, %s" % (vr(dst, 2), vr(src, 2), vr(src + 2, 2)))
        a("v_pk_add_f32 %s, %s, %s" % (vr(dst + 2, 2), vr(src + 4, 2), vr(src + 6, 2)))
        for i in (8, 12):
            a("v_pk_add_f32 %s, %s, %s" % (vr(dst, 2), vr(dst, 2), vr(src + i, 2)))
            a("v_pk_add_f32 %s, %s, %s" % (vr(dst + 2, 2), vr(dst + 2, 2), vr(src + i + 2, 2)))
        a("v_pk_add_f32 %s, %s, %s" % (vr(dst, 2), vr(dst, 2), vr(dst + 2, 2)))
        a("v_add_f32 v%d, v%d, v%d" % (dst, dst, dst + 1))
    def pksq(dst, src):
        a("v_pk_mul_f32 %s, %s, %s" % (vr(dst, 2), vr(src, 2), vr(src, 2)))
        a("v_pk_mul_f32 %s, %s, %s" % (vr(dst + 2, 2), vr(src + 2, 2), vr(src + 2, 2)))
        for i in (4, 8, 12):
            a("v_pk_fma_f32 %s, %s, %s, %s" % (vr(dst, 2), vr(src + i, 2), vr(src + i, 2), vr(dst, 2)))
            a("v_pk_fma_f32 %s, %s, %s, %s" % (vr(dst + 2, 2), vr(src + i + 2, 2), vr(src + i + 2, 2), vr(dst + 2, 2)))
        a("v_pk_add_f32 %s, %s, %s" % (vr(dst, 2), vr(dst, 2), vr(dst + 2, 2)))
        a("v_add_f32 v%d, v%d, v%d" % (dst, dst, dst + 1))
    def pksub(dst, src, m):
        for i in range(0, 16, 2):
            a("v_pk_add_f32 %s, %s, %s op_sel_hi:[1,0] neg_lo:[0,1] neg_hi:[0,1]" % (vr(dst + i, 2), vr(src + i, 2), vr(m, 2)))
    def pkmul(dst, src, m):
        for i in range(0, 16, 2): a("v_pk_mul_f32 %s, %s, %s op_sel_hi:[1,0]" % (vr(dst + i, 2), vr(src + i, 2), vr(m, 2)))
    def scale_from_var(r):
        round_bf16(a, r, r)
        a("v_add_f32 v%d, %s, v%d" % (r, f32(1e-5), r))
        round_bf16(a, r, r)
        a("v_sqrt_f32 v%d, v%d" % (r, r))
        a("s_nop 0")
        round_bf16(a, r, r)
        a("v_rcp_f32 v%d, v%d" % (r, r))
    inv = f32(1.0 / 448.0)
    S, S2, M, RS_, C2, D2 = 72, 76, 80, 82, 84, 86
    HB, HP = 7168, 912
    a("""
    v_lshl_add_u32 v5, v2, 4, v3
    v_bfe_u32 v88, v{LN}, 2, 2
    v_mul_u32_u24 v88, {HP}, v88
    v_lshrrev_b32 v89, 4, v{LN}
    v_lshl_add_u32 v88, v89, 5, v88
    v_and_b32 v89, 3, v{LN}
    v_lshl_add_u32 v88, v89, 3, v88
    s_lshl_b32 s20, s14, 7
    v_add_u32 v88, s20, v88
    v_lshlrev_b32 v92, 10, v{VH}
    v_lshl_add_u32 v92, v{VC}, 4, v92
    v_and_b32 v89, 7, v{LN}
    v_lshrrev_b32 v90, 3, v{LN}
    s_lshl_b32 s20, s14, 3
    v_add_u32 v90, s20, v90
    v_mul_u32_u24 v91, 896, v89
    v_lshl_add_u32 v91, v90, 4, v91
    v_lshlrev_b32 v89, 4, v89
    v_lshl_add_u32 v89, v90, 9, v89
    s_lshr_b32 s20, s15, 2
    s_mul_i32 s20, s20, 28672
    s_and_b32 s21, s15, 3
    s_lshl_b32 s21, s21, 7
    s_add_u32 s20, s20, s21
    s_lshl_b32 s21, s14, 18
    s_lshr_b32 s22, s15, 1
    s_lshl_b32 s22, s22, 11
    s_add_u32 s21, s21, s22
    s_and_b32 s22, s15, 1
    s_lshl_b32 s22, s22, 9
    s_add_u32 s21, s21, s22
    s_add_u32 s21, s21, {HTO}
    s_cmp_eq_u32 s14, 3
    s_cselect_b32 s23, 0x08000000, 0
    s_add_u32 s22, s21, {HG4}
    s_or_b32 s22, s22, s23
    s_add_u32 s24, s20, 16384
    s_or_b32 s24, s24, s23
    s_lshl_b32 s40, s39, 8
    s_add_u32 s40, s40, {SY}
    s_lshl_b32 s41, s38, 8
    s_add_u32 s41, s41, {SY}
    """.format(LN=LN, VH=VH, VC=VC, HP=HP, HG4=4 * HT_G, HTO=hex(HT_OFF), SY=hex(SYNC_OFF)))
    assert XN_OFF == 0 and HT_G == 1 << 18
    stamp(a, 1)
    a.wait(vm="x")
    stamp(a, 2)
    unpack(X, P)
    pksum(S, X)
    a("v_cndmask_b32 v%d, 0, v%d, s[58:59]" % (S, S))
    half_reduce(a, [S], [S + 1])
    a("v_mul_f32 v%d, %s, v%d" % (S, inv, S))
    round_bf16(a, M, S)
    pksub(X, X, M)
    pksq(S2, X)
    a("v_sub_f32 v%d, v%d, v%d" % (S, S, M))
    a("v_cndmask_b32 v%d, 0, v%d, s[58:59]" % (S2, S2))
    half_reduce(a, [S2], [S2 + 1])
    a("v_mul_f32 v%d, %s, v%d" % (S2, inv, S2))
    a("v_fma_f32 v%d, -v%d, v%d, v%d" % (S2, S, S, S2))
    a("v_max_f32 v%d, 0, v%d" % (S2, S2))
    a("v_mov_b32 v%d, v%d" % (RS_, S2))
    scale_from_var(RS_)
    a("s_nop 0")
    a("v_mul_f32 v%d, v%d, v%d" % (C2, S2, RS_))
    a("v_mul_f32 v%d, v%d, v%d" % (D2, S, RS_))
    a("v_mul_f32 v%d, v%d, v%d" % (C2, C2, RS_))
    round_bf16(a, D2, D2)
    pkmul(T, X, RS_)
    scale_from_var(C2)
    pack(P, T)
    a.ds("ds_write_b128 v3, v[8:11]")
    a.ds("ds_write_b128 v3, v[12:15] offset:16")
    a("v_mul_f32 v%d, v%d, v%d" % (D2, D2, C2))
    for i in range(0, 16, 2):
        a("v_pk_fma_f32 %s, %s, %s, %s op_sel_hi:[1,0,0] neg_lo:[0,0,1] neg_hi:[0,0,1]" % (vr(T + i, 2), vr(T + i, 2), vr(C2, 2), vr(D2, 2)))
    pack(X, T)
    a.ds("ds_write_b128 v5, v[16:19] offset:%d" % HB)
    a.ds("ds_write_b128 v5, v[20:23] offset:%d" % (HB + 16))
    stamp(a, 3)
    a.drain(vm=False)
    a("s_barrier")
    a.ds("ds_read_b64_tr_b16 v[28:29], v88 offset:%d" % HB, "h0")
    a.ds("ds_read_b64_tr_b16 v[30:31], v88 offset:%d" % (HB + 4 * HP), "h0")
    a.ds("ds_read_b128 v[36:39], v91", "x0")
    a.ds("ds_read_b64_tr_b16 v[32:33], v88 offset:%d" % (HB + 512), "h1")
    a.ds("ds_read_b64_tr_b16 v[34:35], v88 offset:%d" % (HB + 512 + 4 * HP), "h1")
    a.ds("ds_read_b128 v[40:43], v91 offset:512", "x1")
    a.wait(lg="h0"); a.vmem("buffer_store_dwordx4 v[28:31], v92, s[32:35], s21 offen sc1")
    FAKEX = E("FAKEX", 0)
    if not FAKEX: a.wait(lg="x0"); a.vmem("buffer_store_dwordx4 v[36:39], v89, s[32:35], s20 offen sc1")
    a.wait(lg="h1"); a.vmem("buffer_store_dwordx4 v[32:35], v92, s[32:35], s22 offen sc1")
    if not FAKEX: a.wait(lg="x1"); a.vmem("buffer_store_dwordx4 v[40:43], v89, s[32:35], s24 offen sc1")
    a.vmem("buffer_load_dword v%d, v%d, s[44:47], 0 offen sc1" % (VT, VZ), "ready")
    a("""
    s_lshl_b32 s36, s38, 2
    s_add_u32 s36, s36, s14
    s_mul_i32 s24, s36, 28672
    s_lshl_b32 s26, s14, 10
    s_add_u32 s25, s25, s26
    v_add_u32 v{VD}, 0x8000, v{VB}
    """.format(VB=VB, VD=VD))
    a.drain()
    stamp(a, 4)
    a("s_barrier")
    AQ, AK, AV = 0, 16, 32
    XF, WF, PH = 64, 176, 208
    WF1 = E("WFIRST", 6)
    cuts = [0, 6, 13, 20, 28]; rnds = [0, 3, 6, 9, 13]
    def wdma(r, tag):
        a("s_add_u32 m0, s26, %d" % (r * 4096))
        a("s_add_u32 s28, s25, %d" % (r * 4096))
        a.vmem("buffer_load_dwordx4 v%d, s[32:35], s28 offen sc1 lds" % VA, tag)
    rtag = lambda r: "wc%d" % max(c for c in range(4) if rnds[c] <= r)
    if not WF1:
        a("s_cmp_lg_u32 s14, 0")
        a("s_cbranch_scc1 A_GO")
    a("v_readfirstlane_b32 s61, v%d" % VT)
    a("s_cmp_lg_u32 s61, 0")
    a("s_cbranch_scc1 A_RDY")
    poll(a, DBG, "0", VZ, VT)
    a.label("A_RDY")
    a("s_mov_b32 s43, 1")
    a("s_cmp_lg_u32 s14, 0")
    a("s_cbranch_scc1 A_ARR")
    arrive_issue(a, "s41 offset:%d" % (SX_CNT * SL))
    a.drain(vm=False)
    a("s_cmp_eq_u32 s62, 15")
    a("s_cselect_b32 s43, 1, 0")
    a("s_cbranch_scc0 A_ARR")
    a("s_mov_b32 s62, 1")
    a("s_atomic_add s62, s[30:31], s41 offset:%d" % (SX_REL * SL))
    a("s_mov_b32 s20, %s" % hex(SYNC_OFF + SA_ROOT * SL))
    a("s_mov_b32 s63, 1")
    a("s_atomic_add s63, s[30:31], s20 glc")
    a.drain(vm=False)
    a("s_cmp_lg_u32 s63, 15")
    a("s_cbranch_scc1 A_ARR")
    a("s_atomic_add s62, s[28:29], 0x80")
    a.label("A_ARR")
    if WF1:
        a("s_lshl_b32 s20, s56, 8")
        a("s_add_u32 s20, s20, %s" % hex(SYNC_OFF + SW_REL * SL))
        poll(a, WS, "s20", VZ, VT, sleep=PSL)
        stamp(a, 6)
        for r in range(WF1): wdma(r, rtag(r))
    a("s_cmp_lg_u32 s43, 0")
    a("s_cbranch_scc1 A_GO")
    a("s_add_u32 s21, s41, %d" % (SX_REL * SL))
    poll(a, WS, "s21", VZ, VT, sleep=PSL, keep=True)
    a.label("A_GO")
    a("s_barrier")
    stamp(a, 5)
    if E("FAKEA", 0) == 1: a("s_endpgm")
    def xload(k):
        if FAKEX and k == 0:
            a("s_lshl_b32 s24, s36, 12")
            a("s_add_u32 s24, s24, %s" % hex(HT_OFF))
        if k % 4 == 0 and k > 0: a("s_add_u32 s24, s24, %d" % (HT_G if FAKEX else 4096))
        a.vmem("buffer_load_dwordx4 %s, v%d, s[32:35], s24 offen offset:%d sc1" % (vr(XF + 4 * k, 4), VA, (k % 4) * 1024), "x%d" % k)
    XF1 = 0 if WF1 else E("XFIRST", 0)
    if not WF1:
        a("s_lshl_b32 s20, s56, 8")
        a("s_add_u32 s20, s20, %s" % hex(SYNC_OFF + SW_REL * SL))
        for k in range(XF1):
            if k == max(XF1 - 6, 0): flag_issue(a, WS, "s20", VZ, VT, "fw")
            xload(k)
        if XF1 == 0: flag_issue(a, WS, "s20", VZ, VT, "fw")
        flag_check(a, WS, "s20", VZ, VT, "fw", PSL)
        stamp(a, 6)
    seq = []
    for c in range(4):
        seq += [(lambda r=r, c=c: wdma(r, "wc%d" % c)) for r in range(max(rnds[c], WF1), rnds[c + 1])]
        seq += [(lambda k=k: xload(k)) for k in range(max(cuts[c], XF1), cuts[c + 1])]
    if TWO:
        a("s_sub_u32 s27, s25, s26")
        a("s_add_u32 s27, s27, %d" % WP_PHI)
        a("s_add_u32 s20, s20, %d" % ((SV_REL - SW_REL) * SL))
        seq += [(lambda i=i: a.vmem("buffer_load_dwordx4 %s, v%d, s[32:35], s27 offen offset:%d sc1" % (vr(PH + 4 * i, 4), VA, i * 1024), "ph")) for i in range(2)]
        if not E("WQMID", 1): seq += [lambda: flag_issue(a, WS, "s20", VZ, VT, "fv")]
    else: seq += [(lambda r=r: wdma(r, "wq")) for r in (18, 13, 14, 15, 16, 17)]
    for f in seq[:XPRE]: f()
    pend = seq[XPRE:]
    def lread(dst, off, tag, base=None):
        if off < 65536: a.ds("ds_read_b128 %s, v%d offset:%d" % (vr(dst, 4), VB, off), tag)
        else: a.ds("ds_read_b128 %s, v%d offset:%d" % (vr(dst, 4), VD, off - 32768), tag)
    def wread(k):
        b = WF + 8 * (k % 3)
        lread(b, k * 1792, "w%d" % k); lread(b + 4, k * 1792 + 896, "w%d" % k)
    for c in range(4):
        k0, k1 = cuts[c], cuts[c + 1]
        assert k1 * 1792 + 64 <= rnds[c + 1] * 4096
        assert sum(1 for t_ in a.issued if t_ == "wc%d" % c) == rnds[c + 1] - rnds[c]
        a.wait(vm="wc%d" % c)
        a("s_barrier")
        wread(k0); wread(k0 + 1)
        for k in range(k0, k1):
            if k + 2 < k1: wread(k + 2)
            assert "x%d" % k in a.issued
            a.wait(vm="x%d" % k, lg="w%d" % k)
            b = WF + 8 * (k % 3); x = vr(XF + 4 * k, 4)
            a("%s %s, %s, %s, %s" % (MF, vr(AK, 16), vr(b, 4), x, "0" if k == 0 else vr(AK, 16)))
            if pend and len(a.vm.ops) < ALOOK: pend.pop(0)()
            a("%s %s, %s, %s, %s" % (MF, vr(AV, 16), x, vr(b + 4, 4), "0" if k == 0 else vr(AV, 16)))
            while pend and len(a.vm.ops) < min(ALOOK, 12): pend.pop(0)()
            if pend and len(a.vm.ops) < ALOOK: pend.pop(0)()
    for f in pend: f()
    pend = []
    assert not pend
    if TWO:
        def wq_req():
            flag_check(a, WS, "s20", VZ, VT, "fv", PSL)
            for r in range(12, 19): wdma(r, "wq")
        if E("WQMID", 1):
            a.wait(vm="ph")
            flag_issue(a, WS, "s20", VZ, VT, "fv")
        else: wq_req()
        a("s_barrier")
    else:
        a.drain(lg=False)
        a("s_barrier")
        a("v_add_u32 v2, 0x8000, v%d" % VA)
        a.ds("ds_read_b128 %s, v2 offset:%d" % (vr(PH, 4), WP_PHI - 32768), "ph")
        a.ds("ds_read_b128 %s, v2 offset:%d" % (vr(PH + 4, 4), WP_PHI + 1024 - 32768), "ph")
    stamp(a, 7)
    PKK, PKV = 48, 56
    PP = 216; EP, EM = 16, 32; OUT = 176; S0 = 192; TA = S0 + 12
    a("""
    s_mov_b32 s56, 0
    s_mov_b32 s57, -1
    s_mov_b32 s37, {L2E}
    v_mul_u32_u24 v{t}, 136, v{VC}
    v_lshl_add_u32 v{t}, v{VH}, 3, v{t}
    s_mul_i32 s28, s14, 4352
    v_add_u32 v{t}, s28, v{t}
    s_lshl_b32 s28, s14, 11
    v_add_u32 v{u}, s28, v{VA}
    v_cmp_eq_u32 vcc, 28, v{VC}
    v_mov_b32 v{S0}, 0x3f803f80
    """.format(L2E=f32(1.4426950408889634), t=TA, u=TA + 1, VC=VC, VH=VH, VA=VA, S0=S0))
    for r in range(8): a("v_cvt_pk_bf16_f32 v%d, v%d, v%d" % (PKK + r, AK + 2 * r, AK + 2 * r + 1))
    a("v_cndmask_b32 v%d, 0, v%d, vcc" % (S0, S0))
    a.wait(lg="ph")
    a("%s %s, %s, %s, 0" % (MF, vr(PP, 16), vr(PH, 4), vr(PKK, 4)))
    a("%s %s, %s, %s, %s" % (MF, vr(PP, 16), vr(PH + 4, 4), vr(PKK + 4, 4), vr(PP, 16)))
    for r in range(8): a("v_cvt_pk_bf16_f32 v%d, v%d, v%d" % (PKV + r, AV + 2 * r, AV + 2 * r + 1))
    for r in range(8): a("v_cndmask_b32 v%d, v%d, v%d, s[58:59]" % (PKV + r, S0, PKV + r))
    a.ds("ds_write_b128 v%d, %s offset:17408" % (TA + 1, vr(PKV, 4)))
    a.ds("ds_write_b128 v%d, %s offset:%d" % (TA + 1, vr(PKV + 4, 4), 17408 + 1024))

    def softmax2(P, sink=None, mid=None):
        mx, mn, t0, t1, t2, t3 = S0, S0 + 1, S0 + 2, S0 + 3, S0 + 4, S0 + 5
        for op, m, t in (("max", mx, t0), ("min", mn, t1)):
            a("v_%s3_f32 v%d, v%d, v%d, v%d" % (op, t, P + 12, P + 13, P + 14))
            a("v_%s3_f32 v%d, v%d, v%d, v%d" % (op, m, P, P + 1, P + 2))
            a("v_%s_f32 v%d, v%d, v%d" % (op, t, t, P + 15))
            for i in range(3, 11, 2): a("v_%s3_f32 v%d, v%d, v%d, v%d" % (op, m, m, P + i, P + i + 1))
            a("v_cndmask_b32 v%d, v%d, v%d, s[56:57]" % (t, t, P))
            a("v_%s3_f32 v%d, v%d, v%d, v%d" % (op, m, m, P + 11, t))
        a("v_mov_b32 v%d, v%d" % (t0, mx))
        a("v_mov_b32 v%d, v%d" % (t1, mn))
        a("v_mov_b32 v%d, 0x7f800000" % t2)
        a("v_mov_b32 v%d, 0xff800000" % t3)
        a("v_permlane32_swap_b32 v%d, v%d" % (mx, t0))
        a("v_permlane32_swap_b32 v%d, v%d" % (mn, t1))
        a("s_nop 0")
        a("v_max_f32 v%d, v%d, v%d" % (mx, mx, t0))
        a("v_min_f32 v%d, v%d, v%d" % (mn, mn, t1))
        a("v_mul_f32 v%d, s37, v%d" % (mx, mx))
        a("v_mul_f32 v%d, s37, v%d" % (mn, mn))
        a("v_cndmask_b32 v%d, v%d, v%d, s[56:57]" % (t2, mx, t2))
        a("v_cndmask_b32 v%d, v%d, v%d, s[56:57]" % (t3, mn, t3))
        if mid: mid()
        for r in range(16):
            a("v_fma_f32 v%d, v%d, s37, -v%d" % (EP + r, P + r, mx if r < 12 else t2))
            a("v_fma_f32 v%d, -v%d, s37, v%d" % (EM + r, P + r, mn if r < 12 else t3))
        for r in range(16):
            a("v_exp_f32 v%d, v%d" % (EP + r, EP + r))
            a("v_exp_f32 v%d, v%d" % (EM + r, EM + r))
            if r == 2:
                a("v_add_f32 v%d, v%d, v%d" % (mx, EP, EP + 1))
                a("v_add_f32 v%d, v%d, v%d" % (mn, EM, EM + 1))
            if r > 2:
                a("v_add_f32 v%d, v%d, v%d" % (mx, mx, EP + r - 1))
                a("v_add_f32 v%d, v%d, v%d" % (mn, mn, EM + r - 1))
        a("v_add_f32 v%d, v%d, v%d" % (mx, mx, EP + 15))
        a("v_add_f32 v%d, v%d, v%d" % (mn, mn, EM + 15))
        a("v_mov_b32 v%d, v%d" % (t0, mx))
        a("v_mov_b32 v%d, v%d" % (t1, mn))
        a("s_nop 1")
        a("v_permlane32_swap_b32 v%d, v%d" % (mx, t0))
        a("v_permlane32_swap_b32 v%d, v%d" % (mn, t1))
        a("s_nop 0")
        a("v_add_f32 v%d, v%d, v%d" % (mx, mx, t0))
        a("v_add_f32 v%d, v%d, v%d" % (mn, mn, t1))
        a("v_rcp_f32 v%d, v%d" % (mx, mx))
        a("v_rcp_f32 v%d, v%d" % (mn, mn))
        for e, (E_, m) in enumerate(((EP, mx), (EM, mn))):
            for q in range(4):
                for r in range(4): a("v_mul_f32 v%d, v%d, v%d" % (E_ + 4 * q + r, E_ + 4 * q + r, m))
                for r in range(2): a("v_cvt_pk_bf16_f32 v%d, v%d, v%d" % (OUT + 8 * e + 2 * q + r, E_ + 4 * q + 2 * r, E_ + 4 * q + 2 * r + 1))
                if sink: sink(e, q)

    softmax2(PP, lambda e, q: a.ds("ds_write_b64 v%d, %s offset:%d" % (TA, vr(OUT + 8 * e + 2 * q, 2), e * 64 + q * 16)), mid=wq_req if E("WQMID", 1) else None)
    a("""
    v_lshlrev_b32 v{t}, 2, v{VH}
    v_bfe_u32 v{u}, v{LN}, 2, 2
    v_add_u32 v{t}, v{t}, v{u}
    v_mul_u32_u24 v{t}, 136, v{t}
    v_bfe_u32 v{u}, v{LN}, 4, 1
    v_lshl_add_u32 v{t}, v{u}, 5, v{t}
    v_and_b32 v{u}, 3, v{LN}
    v_lshl_add_u32 v{t}, v{u}, 3, v{t}
    s_lshl_b32 s28, s14, 6
    v_add_u32 v{t}, s28, v{t}
    s_lshl_b32 s42, s39, 16
    s_add_u32 s42, s42, {KVP}
    s_lshl_b32 s28, s38, 10
    s_lshl_b32 s29, s14, 15
    s_add_u32 s28, s28, s29
    s_add_u32 s28, s28, s42
    s_add_u32 s29, s28, 16384
    """.format(t=TA + 2, u=TA + 3, LN=LN, VH=VH, KVP=hex(KVP_OFF)))
    a.drain()
    a("s_barrier")
    stamp(a, 8)
    a("s_cmp_ge_u32 s14, 2")
    a("s_cbranch_scc1 A_QPASS")
    KVA = 232
    for w in range(4):
        for i in range(2):
            n_ = 2 * w + i
            a.ds("ds_read_b64_tr_b16 %s, v%d offset:%d" % (vr(4 * n_, 2), TA + 2, w * 4352 + (16 * i) * 136), "kv%d" % n_)
            a.ds("ds_read_b64_tr_b16 %s, v%d offset:%d" % (vr(4 * n_ + 2, 2), TA + 2, w * 4352 + (16 * i + 8) * 136), "kv%d" % n_)
            a.ds("ds_read_b128 %s, v%d offset:%d" % (vr(32 + 4 * n_, 4), VA, 17408 + w * 2048 + i * 1024), "kv%d" % n_)
    for n_ in range(8):
        a.wait(lg="kv%d" % n_)
        a("%s %s, %s, %s, %s" % (MF, vr(KVA, 16), vr(4 * n_, 4), vr(32 + 4 * n_, 4), "0" if n_ == 0 else vr(KVA, 16)))
    a("s_nop 11")
    for i in range(2):
        for r in range(4): a("v_cvt_pk_bf16_f32 v%d, v%d, v%d" % (PKV + 4 * i + r, KVA + 8 * i + 2 * r, KVA + 8 * i + 2 * r + 1))
        a("buffer_store_dwordx4 %s, v%d, s[32:35], %s offen sc1" % (vr(PKV + 4 * i, 4), VA, "s29" if i else "s28"))
    a.label("A_QPASS")
    if E("FAKEA", 0) == 2: a("s_endpgm")
    a("s_setprio %d" % PRIO_Q)
    a("s_mov_b32 s62, 0")
    QB = 16
    def qread(k): lread(QB + 4 * (k % 8), WP_Q + k * 896, "q%d" % k)
    for k in range(4): qread(k)
    for k in range(28):
        if k + 4 < 28: qread(k + 4)
        a.wait(lg="q%d" % k)
        a("%s %s, %s, %s, %s" % (MF, vr(AQ, 16), vr(QB + 4 * (k % 8), 4), vr(XF + 4 * k, 4), "0" if k == 0 else vr(AQ, 16)))
        if k == E("S1K", 13):
            a("s_cmp_ge_u32 s14, 2")
            a("s_cbranch_scc1 A_NOARR")
            a.drain(lg=False)
            arrive_issue(a, "s40 offset:%d" % (S1_CNT * SL))
            a.label("A_NOARR")
    arrive_finish(a, 31, ["s40 offset:%d" % (S1_REL * SL)], "A_S1_NR")
    a.label("A_S1_NR")
    a("s_nop 9")
    for r in range(8): a("v_cvt_pk_bf16_f32 v%d, v%d, v%d" % (PKK + r, AQ + 2 * r, AQ + 2 * r + 1))
    a("s_nop 1")
    a("%s %s, %s, %s, 0" % (MF, vr(PP, 16), vr(PH, 4), vr(PKK, 4)))
    a("%s %s, %s, %s, %s" % (MF, vr(PP, 16), vr(PH + 4, 4), vr(PKK + 4, 4), vr(PP, 16)))
    a("s_nop 11")
    softmax2(PP)
    stamp(a, 9)
    SEL, KS, KVB, OD = 48, 0, 16, 32
    a("""
    s_setprio {PRIO}
    v_and_b32 v52, 3, v{VC}
    v_bfe_u32 v53, v{VC}, 3, 1
    v_lshl_add_u32 v52, v53, 2, v52
    v_and_b32 v53, 1, v52
    v_lshlrev_b32 v53, 4, v53
    v_mov_b32 v54, 0x3f80
    v_lshlrev_b32 v53, v53, v54
    v_lshrrev_b32 v52, 1, v52
    v_bfe_u32 v54, v{VC}, 2, 1
    v_xor_b32 v54, v54, v{VH}
    v_lshrrev_b32 v55, 4, v{VC}
    v_or_b32 v54, v54, v55
    v_lshl_add_u32 v52, v54, 2, v52
    s_lshl_b32 s28, s14, 14
    s_add_u32 s28, s28, s42
    s_add_u32 s41, s40, {REL}
    s_lshl_b32 s29, s14, 10
    v_add_u32 v55, s29, v{VA}
    """.format(PRIO=PRIO_K, VC=VC, VH=VH, VA=VA, REL=S1_REL * SL))
    for d in range(4):
        a("v_cmp_eq_u32 vcc, %d, v52" % d)
        a("s_nop 1")
        a("v_cndmask_b32 v%d, 0, v53, vcc" % (SEL + d))
    a("s_cmp_lg_u32 s14, 3")
    a("s_cbranch_scc1 A_S1_OK")
    poll(a, WS, "s41", VZ, VT, sleep=PSL)
    a.label("A_S1_OK")
    a("s_barrier")
    stamp(a, 10)
    for m in range(16):
        if E("FAKEG", 0) and m >= 4: continue
        if m % 4 == 0 and m: a("s_add_u32 s28, s28, 4096")
        a.vmem("buffer_load_dwordx4 %s, v%d, s[32:35], s28 offen offset:%d sc1" % (vr(64 + 4 * m, 4), VA, (m % 4) * 1024), "p%d" % m)
    a("""
    s_lshl_b32 s28, s36, 15
    s_lshl_b32 s29, s39, 11
    s_add_u32 s28, s28, s29
    s_add_u32 s28, s28, {OFO}
    s_lshr_b32 s40, s36, 1
    s_lshl_b32 s40, s40, 8
    s_add_u32 s40, s40, {SY}
    """.format(OFO=hex(OF_OFF), SY=hex(SYNC_OFF)))
    for m in range(16):
        a.wait(vm="p%d" % m)
        a("%s %s, %s, %s, %s" % (MF, vr(KS, 16), vr(SEL, 4), vr(64 + 4 * m, 4), "0" if m == 0 else vr(KS, 16)))
    a("s_nop 11")
    for r in range(4): a("v_cvt_pk_bf16_f32 v%d, v%d, v%d" % (KVB + r, KS + 2 * r, KS + 2 * r + 1))
    a.ds("ds_write_b128 v55, %s" % vr(KVB, 4))
    a.drain(vm=False)
    a("s_barrier")
    for n_ in range(4): a.ds("ds_read_b128 %s, v%d offset:%d" % (vr(KVB + 4 * n_, 4), VA, n_ * 1024), "kvl%d" % n_)
    for n_ in range(4):
        a.wait(lg="kvl%d" % n_)
        a("%s %s, %s, %s, %s" % (MF, vr(OD, 16), vr(KVB + 4 * n_, 4), vr(OUT + 4 * n_, 4), "0" if n_ == 0 else vr(OD, 16)))
    a("""
    s_nop 11
    v_mov_b32 v0, v{D12}
    v_mov_b32 v2, v{D12}
    s_nop 1
    v_permlane32_swap_b32 v0, v2
    s_nop 0
    v_add_f32 v2, {EPS}, v2
    v_rcp_f32 v2, v2
    s_nop 0
    """.format(D12=OD + 12, EPS=f32(1e-6)))
    for i in range(2):
        for r in range(8): a("v_mul_f32 v%d, v%d, v2" % (OD + 8 * i + r, OD + 8 * i + r))
        for r in range(4): a("v_cvt_pk_bf16_f32 v%d, v%d, v%d" % (KVB + 4 * i + r, OD + 8 * i + 2 * r, OD + 8 * i + 2 * r + 1))
        a.vmem("buffer_store_dwordx4 %s, v%d, s[32:35], s28 offen offset:%d sc1" % (vr(KVB + 4 * i, 4), VA, i * 1024))
    a.drain(lg=False)
    arrive_issue(a, "s40 offset:%d" % (S2_CNT * SL))
    arrive_finish(a, 31, ["s40 offset:%d" % (S2_REL * SL)], "A_FIN")
    a.label("A_FIN")
    stamp_flush(a, 11, 4, "A")
    a("s_endpgm")

class G:
    ACC = 0; B = 64; F = 64 + 8 * NB
    W0 = 232; W1 = 233; FA = 234; FB = 235; LA = 236; LB = 237
    LN = 238; L16 = 239; RES = 240
    VX = 248; VB2 = 249; VZ = 250; VT = 251; T0 = 252; T1 = 253; T2 = 254
assert G.F + 8 * NF <= 232
SLDS = 50
SJ = [6, 7, 8, 9, 10, 11, 48, 49]
SC = [51, 15, 59, 3]

def g_waddr(a, RS, scol):
    a("""
    v_lshrrev_b32 v{T0}, 3, v{L}
    v_mul_u32_u24 v{W0}, {RS}, v{T0}
    v_lshrrev_b32 v{T1}, 2, v{L}
    v_and_b32 v{T1}, 4, v{T1}
    v_and_b32 v{T2}, 7, v{L}
    v_xor_b32 v{T1}, v{T1}, v{T2}
    v_lshl_add_u32 v{W0}, v{T1}, 4, v{W0}
    v_add_u32 v{W0}, {scol}, v{W0}
    v_add_u32 v{W1}, {RS8}, v{W0}
    """.format(T0=G.T0, T1=G.T1, T2=G.T2, L=G.LN, W0=G.W0, W1=G.W1, RS=RS, RS8=8 * RS, scol=scol))
def g_laddr(a, perm2):
    a("""
    v_bfe_u32 v{T0}, v{L}, 4, 1
    v_lshrrev_b32 v{T1}, 5, v{L}
    v_lshlrev_b32 v{LA}, {HS}, v{T1}
    v_lshl_add_u32 v{LA}, v{T0}, 5, v{LA}
    v_bfe_u32 v{T1}, v{L}, 2, 2
    v_lshl_add_u32 v{LA}, v{T1}, 7, v{LA}
    v_lshrrev_b32 v{T1}, 1, v{T1}
    v_lshl_add_u32 v{LA}, v{T1}, 6, v{LA}
    v_and_b32 v{T1}, 3, v{L}
    v_lshl_add_u32 v{LA}, v{T1}, 3, v{LA}
    s_lshl_b32 s36, s14, 5
    s_and_b32 s36, s36, 64
    v_xor_b32 v{LA}, s36, v{LA}
    v_add_u32 v{LA}, s{SLDS}, v{LA}
    v_xor_b32 v{LB}, 64, v{LA}
    """.format(T0=G.T0, T1=G.T1, L=G.LN, LA=G.LA, LB=G.LB, HS=(9 if perm2 else 10), SLDS=SLDS))

class Stream:
    def __init__(self, a, name, srdw, RS, NK, perm2, pol, slots, nb):
        self.nb = nb
        self.fb = {}; self.nf = 0; self.ffree = None; self.ring = [G.F + 8 * i for i in range(NF)]
        self.a = a; self.n = name; self.srd = srdw; self.RS = RS; self.NK = NK; self.perm2 = perm2; self.pol = pol
        o = self.order(); first = [p for p in range(NK) if o[p][0] == 0]
        self.dorder = first + [p for p in range(NK) if p not in first]
        assert sorted(self.dorder[:self.nb]) == list(range(self.nb)) and self.dorder[self.nb:] == list(range(self.nb, NK))
        self.free = [(s, None) for s in slots]
        self.slot = {}; self.nd = 0; self.nr = 0
    def can_dma(self): return self.nd < self.NK and len(self.free) > 0
    def order(self):
        ng = self.NK // 4; o = [(j, 0) for j in range(min(LEAD, ng))]
        for j in range(ng):
            if j + LEAD < ng: o.append((j + LEAD, 0))
            o += [(j, 1), (j, 2), (j, 3)]
        if LEAD == 0: o = [(j, r) for j in range(ng) for r in range(4)]
        assert len(o) == self.NK
        return o
    def tstep(self, p, dst):
        j, rel = self.order()[p]
        if self.n == "b" and not ROT2: self.a("s_add_u32 %s, s%d, %d" % (dst, SC[rel], 16 * j))
        else: self.a("s_add_u32 %s, s%d, s%d" % (dst, SJ[j], SC[rel]))
    def dma_parts(self):
        a = self.a; p = self.dorder[self.nd]; self.nd += 1
        sl, tag = self.free.pop(0); self.slot[p] = sl
        def p0():
            if tag: a.wait(lg=tag)
            self.tstep(p, "s58")
            a("s_add_u32 m0, s%d, %d" % (SLDS, sl * 2048))
            a("s_mul_i32 s58, s58, %d" % (16 * self.RS))
            a.vmem("buffer_load_dwordx4 v%d, s[%d:%d], s58 offen %s lds" % (G.W0, self.srd, self.srd + 3, self.pol), "%sd%d" % (self.n, p))
            a("s_add_u32 m0, s%d, %d" % (SLDS, sl * 2048 + 1024))
        def p1():
            a("s_nop 0")
            a.vmem("buffer_load_dwordx4 v%d, s[%d:%d], s58 offen %s lds" % (G.W1, self.srd, self.srd + 3, self.pol), "%sd%d" % (self.n, p))
        return [p0, p1]
    def dma(self):
        for f in self.dma_parts(): f()
    def read_parts(self):
        a = self.a; p = self.dorder[self.nr]; self.nr += 1
        assert p in self.slot
        sl = self.slot[p]; b = G.B + 8 * (p % self.nb); io = 1024 if self.perm2 else 512
        self.free.append((sl, "%sr%d" % (self.n, p)))
        def part(u):
            def f():
                a.wait(vm="%sd%d" % (self.n, p))
                for i in range(2):
                    a.ds("ds_read_b64_tr_b16 %s, v%d offset:%d" % (vr(b + 4 * u + 2 * i, 2), G.LA + u, sl * 2048 + i * io), "%sr%d" % (self.n, p))
            return f
        return [part(0), part(1)]
    def read(self):
        for f in self.read_parts(): f()
    def inflight(self):
        seen = []
        for t in self.a.vm.ops:
            if t and t.startswith(self.n + "d") and t not in seen: seen.append(t)
        return seen
    def pump(self, ahead):
        did = False
        while self.can_dma() and len(self.inflight()) < ahead: self.dma(); did = True
        if self.nr < self.nb and self.nr < self.nd: self.read(); did = True
        elif self.can_dma():
            self.a.wait(vm=self.inflight()[0]); did = True
        return did
    def tables(self, srot, ssh, part=None):
        a = self.a; ng = self.NK // 4
        if part != 0:
            a("s_lshl_b32 s%d, %s, 4" % (SJ[0], srot))
            for j in range(1, 7):
                a("s_add_u32 s%d, s%d, 16" % (SJ[j], SJ[j - 1]))
                a("s_cmp_ge_u32 s%d, 112" % SJ[j])
                a("s_cselect_b32 s%d, 0, s%d" % (SJ[j], SJ[j]))
            a("s_movk_i32 s%d, 112" % SJ[7])
        if part != 1:
            a("s_lshl_b32 s61, %s, 2" % ssh)
            for r in range(4):
                a("s_add_u32 s%d, s61, %d" % (SC[r], 4 * r))
                a("s_and_b32 s%d, s%d, 12" % (SC[r], SC[r]))
                a("s_add_u32 s%d, s%d, s14" % (SC[r], SC[r]))
    def freg(self, t): return self.fb.get(t, self.ring[t % len(self.ring)])
    def fnext(self, t, srdf, maxn):
        out = []
        while self.nf < self.NK and len(out) < 2 * maxn and self.nf - t <= FLOOK:
            c = [x for x in self.ffree if x[0] < t]
            if not c: break
            self.ffree.remove(c[0]); self.fb[self.nf] = c[0][1]
            self.ffree.append((self.nf, c[0][1]))
            out += self.fload_parts(self.nf, srdf); self.nf += 1
        return out
    def fload_parts(self, t, srdf):
        a = self.a; f = self.freg(t)
        def p0():
            self.tstep(t, "s60")
            a("s_lshl_b32 s60, s60, 11")
            a.vmem("buffer_load_dwordx4 %s, v%d, s[%d:%d], s60 offen sc1" % (vr(f, 4), G.FA, srdf, srdf + 3), "%sf%d" % (self.n, t))
        def p1():
            a.vmem("buffer_load_dwordx4 %s, v%d, s[%d:%d], s60 offen sc1" % (vr(f + 4, 4), G.FB, srdf, srdf + 3), "%sf%d" % (self.n, t))
        return [p0, p1]
    def fload(self, t, srdf):
        for f in self.fload_parts(t, srdf): f()
    def step(self, t, weights_are_A, fill):
        a = self.a; b = G.B + 8 * (t % self.nb); f = self.freg(t)
        a.wait(vm="%sf%d" % (self.n, t), lg="%sr%d" % (self.n, t))
        gaps = [[], [], [], []]
        for i, p in enumerate(fill): gaps[min(3, i * 4 // max(4, len(fill)))].append(p)
        for n in range(4):
            uw, uf = n >> 1, n & 1
            acc = vr(G.ACC + 16 * n, 16)
            W, F = vr(b + 4 * uw, 4), vr(f + 4 * uf, 4)
            A_, B_ = (W, F) if weights_are_A else (F, W)
            a("%s %s, %s, %s, %s" % (MF, acc, A_, B_, "0" if (t == 0 and n > 0) else acc))
            for p in gaps[n]: p()
    def loop_fill(self, t, srdf):
        fill = []
        if self.ffree is not None: fill += self.fnext(t, srdf, 2)
        elif t + len(self.ring) - 1 < self.NK: fill += self.fload_parts(t + len(self.ring) - 1, srdf)
        dm = self.dma_parts() if self.can_dma() else []
        if t >= 1 and self.nr < self.NK and self.nr - self.nb <= t - 1: fill += self.read_parts()
        return fill + dm

def g_reduce_write(a, mid=None, pre=None, tail=None):
    a("v_add_u32 v%d, s%d, v%d" % (G.VT, SLDS, G.L16))
    def wr(t, q): a.ds("ds_write_b128 v%d, %s offset:%d" % (G.VT, vr(G.ACC + 16 * t + 4 * q, 4), 8192 + (t - 1) * 4096 + q * 1024), "rw")
    if tail:
        prev = None
        for n in (1, 2, 3, 0):
            acc = vr(G.ACC + 16 * n, 16); qs = [0, 1, 2, 3] if prev else []
            for i, pick in enumerate(tail):
                A_, B_ = pick(n)
                a("%s %s, %s, %s, %s" % (MF, acc, A_, B_, acc))
                if qs and i == 0: a("s_nop 10")
                for _ in range(1 if i == 0 else 2):
                    if qs: wr(prev, qs.pop(0))
            while qs: wr(prev, qs.pop(0))
            prev = n
    else:
        a("s_nop 10")
        for t in range(1, 4):
            for q in range(4): wr(t, q)
    for t in range(1, 4):
        a("s_xor_b32 s60, s14, %d" % t)
        a("s_mul_i32 s60, s60, %d" % (NS * 2048))
        a("v_add_u32 v%d, s60, v%d" % (G.T0 + t - 1, G.L16))
    if pre: pre()
    a.wait(lg="rw")
    a("s_barrier")
    if mid: mid()
    for t in range(1, 4):
        for q in range(4):
            a.ds("ds_read_b128 %s, v%d offset:%d" % (vr(G.ACC + 16 * t + 4 * q, 4), G.T0 + t - 1, 8192 + (t - 1) * 4096 + q * 1024), "rr%d" % t)
def v2(a, op, d, x, y, n, pk):
    if pk:
        for r in range(0, n, 2): a("v_pk_%s_f32 %s, %s, %s" % (op, vr(d + r, 2), vr(x + r, 2), vr(y + r, 2)))
    else:
        for r in range(n): a("v_%s_f32 v%d, v%d, v%d" % (op, d + r, x + r, y + r))
def g_reduce_add(a, pk=True):
    for t in range(1, 4):
        a.wait(lg="rr%d" % t)
        v2(a, "add", 0, 0, 16 * t, 16, pk)

def role_g(a):
    a.vm.clear(); a.lg.clear()
    a.label("ROLE_G")
    if ONLYA: a("s_endpgm")
    a("""
    v_and_b32 v{LN}, 63, v0
    s_mul_i32 s61, s57, 37
    s_lshr_b32 s61, s61, 8
    s_lshl_b32 s66, s56, 2
    s_add_u32 s66, s66, s61
    s_mul_i32 s61, s61, 7
    s_sub_u32 s64, s57, s61
    s_mul_i32 s{SLDS}, s14, {WB}
    s_lshl_b32 s67, s66, 7
    s_lshr_b32 s60, s14, 1
    s_lshl_b32 s60, s60, 6
    s_add_u32 s60, s60, s67
    v_lshrrev_b32 v{VT}, 5, v{LN}
    v_lshlrev_b32 v{VT}, 3, v{VT}
    """.format(LN=G.LN, SLDS=SLDS, WB=NS * 2048, VT=G.VT))
    s1 = Stream(a, "a", 16, 3584, NK1, False, os.environ.get("W1POL0", "nt"), list(range(NS)), NB)
    s2 = Stream(a, "b", 24, 4096, 28, True, W2POL, list(range(4)), NB2)
    def burst(st):
        for p in range(4):
            if len(st.inflight()) >= AHEAD0: a.wait(vm=st.inflight()[0])
            st.dma()
        if len(st.inflight()) >= AHEAD0: a.wait(vm=st.inflight()[0])
    g_waddr(a, 3584, "s67")
    s1.tables("s64", "s66", part=0)
    a("s_mov_b32 s18, %d" % (2048 * 3584))
    a("s_mov_b32 s19, 0x20000")
    a("s_waitcnt lgkmcnt(0)")
    a("s_mov_b32 s16, s40")
    a("s_and_b32 s17, s41, 0xffff")
    a("s_lshl_b32 s%d, s64, 4" % SJ[0])
    a("s_cmp_eq_u32 s56, 7")
    if ONLY2: a("s_branch G_SETUP")
    a("s_cbranch_scc1 G_SETUP")
    if GWAIT:
        a("global_load_dword v%d, v%d, s[42:43] nt" % (G.T0, G.VT))
        a("s_waitcnt vmcnt(0)")
    burst(s1)
    a.label("G_SETUP")
    stamp(a, 1)
    srd(a, 36, 42, str(1792 * 2))
    for q in range(4):
        a.vmem("buffer_load_dwordx2 %s, v%d, s[36:39], s60 offen offset:%d nt" % (vr(G.F + 2 * q, 2), G.VT, 16 * q), "b1")
    ws_base(a)
    srd(a, WS, 30, hex(WS_USED))
    a("""
    s_setprio {PRIO}
    v_lshlrev_b32 v{L16}, 4, v{LN}
    v_mov_b32 v{VZ}, 0
    s_lshr_b32 s60, s14, 1
    s_lshl_b32 s60, s60, 5
    s_lshl_b32 s61, s66, 6
    s_add_u32 s60, s60, s61
    v_and_b32 v{T0}, 31, v{LN}
    v_add_u32 v{T0}, s60, v{T0}
    v_mul_u32_u24 v{VX}, 896, v{T0}
    v_lshlrev_b32 v{T1}, 1, v{VT}
    s_lshl_b32 s60, s64, 7
    s_and_b32 s61, s14, 1
    s_lshl_b32 s61, s61, 6
    s_add_u32 s60, s60, s61
    v_add3_u32 v{VX}, v{VX}, v{T1}, s60
    v_lshlrev_b32 v{VB2}, 1, v{T0}
    s_and_b32 s60, s14, 1
    s_lshl_b32 s60, s60, 10
    v_add_u32 v{FA}, s60, v{L16}
    v_xor_b32 v{FB}, 0x400, v{FA}
    s_lshl_b32 s68, s64, 18
    s_add_u32 s68, s68, {HTO}
    s_mul_i32 s60, s64, {UG}
    s_add_u32 s60, s60, {UPO}
    """.format(PRIO=PRIO_G, L16=G.L16, LN=G.LN, VZ=G.VZ, T0=G.T0, T1=G.T1, VT=G.VT, VX=G.VX, VB2=G.VB2,
               FA=G.FA, FB=G.FB, HTO=hex(HT_OFF), UG=UP_G, UPO=hex(UP_OFF)))
    srd(a, 40, 30, str(UP_G), add="s60")
    srd(a, DBG, 28, "256")
    srd(a, 24, 52, str(1792 * 4096))
    srd(a, 20, 30, str(HT_G), add="s68")
    def sw2():
        g_waddr(a, 4096, "s67")
        g_laddr(a, True)
    def res_loads():
        for i in range(2):
            a.vmem("global_load_dwordx4 %s, v%d, s[4:5] offset:%d" % (vr(G.RES + 4 * i, 4), G.VX, 32 * i), "res")
    a.vmem("global_load_ushort v%d, v%d, s[54:55] nt" % (G.VB2, G.VB2), "b1")
    a("s_movk_i32 s68, 0x80")
    if not ONLY2:
        a("s_cmp_lt_u32 s56, 7")
        a("s_cbranch_scc1 G_TILE1")
    sv = list(a.vm.ops)
    if HELP and not ONLY2:
        a.vm.clear(); a.lg.clear()
        a("s_setprio %d" % E("PRIO_H", 3))
        a("s_lshl_b32 s36, s57, 7")
        g_waddr(a, 3584, "s36")
        a("s_lshl_b32 s58, s14, 2")
        a("s_add_u32 s58, s58, 112")
        a("s_mul_i32 s58, s58, %d" % (16 * 3584))
        a("s_lshl_b32 s59, s14, 13")
        for i in range(4):
            a("s_add_u32 m0, s59, %d" % (i * 2048))
            a("s_nop 0")
            a.vmem("buffer_load_dwordx4 v%d, s[16:19], s58 offen nt lds" % G.W0)
            a("s_add_u32 m0, s59, %d" % (i * 2048 + 1024))
            a("s_nop 0")
            a.vmem("buffer_load_dwordx4 v%d, s[16:19], s58 offen nt lds" % G.W1)
            a("s_add_u32 s58, s58, %d" % (16 * 3584))
        g_laddr(a, False)
        a("v_subrev_u32 v%d, s%d, v%d" % (G.LA, SLDS, G.LA))
        a("v_xor_b32 v%d, s36, v%d" % (G.LA, G.LA))
        a("v_xor_b32 v%d, 64, v%d" % (G.LB, G.LA))
        a.drain()
        a("s_barrier")
        for kk in range(16):
            for u in range(2):
                for i in range(2):
                    a.ds("ds_read_b64_tr_b16 %s, v%d offset:%d" % (vr(G.B + 8 * kk + 4 * u + 2 * i, 2), G.LA + u, kk * 2048 + i * 512))
        poll(a, DBG, "s68", G.VZ, G.VT, sleep=2)
        a.drain()
        stamp(a, 5)
        a("s_lshl_b32 s58, s14, 18")
        a("s_add_u32 s58, s58, %s" % hex(HT_OFF + 112 * 2048))
        a("s_mul_i32 s48, s57, 7")
        a("s_add_u32 s48, s48, s14")
        a("s_lshl_b32 s48, s48, 13")
        a("s_add_u32 s48, s48, %s" % hex(PART_OFF))
        a("s_cmp_eq_u32 s14, 3")
        a("s_cselect_b32 s49, 0x08000000, 0")
        def hload(kk):
            f = G.F + 8 * (kk % NF)
            if kk == 16:
                a("s_add_u32 s58, s58, %d" % (4 * HT_G - 7 * 4096))
                a("s_or_b32 s58, s58, s49")
            elif kk % 2 == 0 and kk: a("s_add_u32 s58, s58, 4096")
            for u in range(2):
                a.vmem("buffer_load_dwordx4 %s, v%d, s[32:35], s58 offen offset:%d sc1" % (vr(f + 4 * u, 4), G.L16, (kk % 2) * 2048 + u * 1024), "h%d" % kk)
        for kk in range(NF - 1): hload(kk)
        for kk in range(32):
            a.wait(vm="h%d" % kk)
            f = G.F + 8 * (kk % NF)
            for n in range(4):
                acc = vr(16 * n, 16)
                a("%s %s, %s, %s, %s" % (MF, acc, vr(G.B + 8 * (kk % 16) + 4 * (n >> 1), 4), vr(f + 4 * (n & 1), 4), "0" if kk % 16 == 0 else acc))
                if n == 0 and kk + NF - 1 < 32: hload(kk + NF - 1)
            if kk % 16 == 15:
                a("s_add_u32 s59, s48, 4096")
                a("s_nop 8")
                for n in range(8):
                    for r in range(4): a("v_cvt_pk_bf16_f32 v%d, v%d, v%d" % (4 * n + r, 8 * n + 2 * r, 8 * n + 2 * r + 1))
                    a.vmem("buffer_store_dwordx4 %s, v%d, s[32:35], %s offen offset:%d sc1" % (vr(4 * n, 4), G.L16, "s59" if n >= 4 else "s48", (n % 4) * 1024))
                if kk == 15:
                    a("s_add_u32 s48, s48, %d" % (4 * 8192))
                    a("s_cmp_eq_u32 s14, 3")
                    a("s_cbranch_scc1 H_FIN")
                    stamp(a, 6)
        a.label("H_FIN")
        a.drain()
        a("s_barrier")
        a("s_cmp_lg_u32 s14, 0")
        a("s_cbranch_scc1 H_DONE")
        a("s_lshl_b32 s58, s57, 8")
        a("s_add_u32 s58, s58, %s" % hex(SYNC_OFF + SH_REL * SL))
        arrive(a, "s58")
        a.label("H_DONE")
        a("s_setprio %d" % PRIO_G)
    MROW = E("MROW", 896)
    a.vm.clear(); a.lg.clear()
    poll(a, DBG, "s68", G.VZ, G.VT, sleep=8)
    if MROW < 1792 and not (ONLY2 or ONLYG):
        a("s_setprio %d" % E("PRIO_M", 0))
        a("s_lshl_b32 s58, s57, 2")
        a("s_add_u32 s58, s58, s14")
        a("s_lshl_b32 s58, s58, 10")
        a("s_add_u32 s58, s58, %d" % (MROW * 4096))
        a.label("M_W2")
        for i in range(4):
            a("s_waitcnt vmcnt(%d)" % (E("MDEPTH", 8) - 1))
            a("buffer_load_dwordx4 %s, v%d, s[24:27], s58 offen" % (vr(G.F + 8 + 4 * i, 4), G.L16))
            a("s_add_u32 s58, s58, %d" % (112 * 1024))
        a("s_cmp_lt_u32 s58, %d" % (1792 * 4096))
        a("s_cbranch_scc1 M_W2")
    a("s_setprio %d" % E("PRIO_7", 1))
    a("s_mov_b32 s69, %s" % hex(SYNC_OFF + ((SV_REL if TWO else SW_REL) + 7) * SL))
    poll(a, WS, "s69", G.VZ, G.VT, sleep=8)
    for i in range(7, 9): stamp(a, i)
    sw2()
    s2.tables("s64", "s66")
    a("s_mov_b32 s65, 1")
    a("s_branch G_JOIN")
    a.vm.ops = sv; a.lg.clear()
    a.label("G_TILE1")
    s1.tables("s64", "s66", part=1)
    g_laddr(a, False)
    if RESEARLY: res_loads()
    if E("BDRAIN", 1): a.drain(lg=False)
    else: a.wait(vm="ad%d" % s1.dorder[E("BWAIT", 1)])
    s1.pol = W1POL2
    stamp(a, 2)
    while s1.nd < NB + NS - 2: s1.pump(AHEAD)
    flag_issue(a, DBG, "s68", G.VZ, G.VT, "f0")
    a.wait(vm="b1")
    for q in range(8):
        a("v_lshlrev_b32 v%d, 16, v%d" % (2 * q, G.F + q))
        a("v_and_b32 v%d, 0xffff0000, v%d" % (2 * q + 1, G.F + q))
    while s1.pump(AHEAD): pass
    stamp(a, 3)
    flag_check(a, DBG, "s68", G.VZ, G.VT, "f0", 2)
    stamp(a, 4)
    if FLOOK:
        s1.ffree = [(-2, G.F + 8 * i) for i in range(NF)] + ([(-2, G.RES)] if not RESEARLY else []) + [(p, G.B + 8 * (p % NB)) for p in range(NK1 - NB, NK1)]
        for f in s1.fnext(-1, 20, 99): f()
    else:
        for t in range(NF - 1): s1.fload(t, 20)
    log = []
    at = {}; fr_ok = [0]
    HP_ = G.B
    for t in range(NK1):
        if t in (8, 16, 24) and not E("WST", 0): stamp(a, 4 + t // 8)
        fill = s1.loop_fill(t, 20)
        if t == 16:
            def fw():
                a("s_lshl_b32 s69, s56, 8")
                a("s_add_u32 s69, s69, %s" % hex(SYNC_OFF + (SV_REL if TWO else SW_REL) * SL))
                flag_issue(a, WS, "s69", G.VZ, G.VT, "fw")
            fill.append(fw)
        if t == 22: flag_check(a, WS, "s69", G.VZ, G.VT, "fw", 2)
        if t == NK1 + 1 - NB:
            assert s1.nr == NK1
            fill.append(lambda: (a.drain(vm=False), sw2()))
        if HELP and t == NK1 - 1 - E("HLAG", 5):
            def fh():
                a("s_lshl_b32 s69, s66, 8")
                a("s_add_u32 s69, s69, %s" % hex(SYNC_OFF + SH_REL * SL))
                flag_issue(a, WS, "s69", G.VZ, G.VT, "fh")
            fill.append(fh)
        if HELP and t == NK1 - 1:
            def ph():
                flag_check(a, WS, "s69", G.VZ, G.VT, "fh", 1)
                a("s_mul_i32 s60, s66, 7")
                a("s_add_u32 s60, s60, s64")
                a("s_lshl_b32 s60, s60, 2")
                a("s_add_u32 s60, s60, s14")
                a("s_lshl_b32 s60, s60, 11")
                a("s_add_u32 s60, s60, %s" % hex(PART_OFF))
                for i in range(2):
                    a.vmem("buffer_load_dwordx4 %s, v%d, s[32:35], s60 offen offset:%d sc1" % (vr(HP_ + 4 * i, 4), G.L16, i * 1024), "hp")
            fill += [lambda: None] * 3 + [ph]
        W2S = E("W2S", 0)
        if W2S and W2S <= t < W2S + 4:
            fill += s2.dma_parts(); log.append("d")
        if t >= NK1 - TAILM:
            assert not fill
            continue
        s1.step(t, True, fill)
    tail1 = []
    for t in range(NK1 - TAILM, NK1):
        a.wait(vm="af%d" % t, lg="ar%d" % t)
        tail1.append(lambda n, t=t: (vr(G.B + 8 * (t % NB) + 4 * (n >> 1), 4), vr(s1.freg(t) + 4 * (n & 1), 4)))
    stamp(a, 5 if E("WST", 0) else 8)
    def rd(n=1):
        for _ in range(n): s2.read(); log.append("r")
    def dm(n=1):
        for _ in range(n):
            first = s2.nd < 4
            s2.pol = os.environ.get("W2POL0", "") if first else W2POL
            s2.dma(); log.append("d")
            s2.pol = W2POL
            if first and s2.nd == 4 and E("TOUCH", 0):
                a("v_lshrrev_b32 v%d, 4, v%d" % (G.F, G.LN))
                a("v_lshlrev_b32 v%d, 18, v%d" % (G.F, G.F))
                a("v_and_b32 v%d, 15, v%d" % ((G.F + 1), G.LN))
                a("v_lshl_add_u32 v%d, v%d, 12, v%d" % (G.F, (G.F + 1), G.F))
                a("s_add_u32 s58, s%d, s14" % SJ[0])
                a("s_lshl_b32 s58, s58, 16")
                a("s_add_u32 s58, s58, s67")
                a.vmem("buffer_load_dword v%d, v%d, s[24:27], s58 offen" % ((G.F + 2), G.F), "touch")
    oa = {}; ob = {}
    def oa_parts(j):
        def p0():
            if j % 2 == 0 and j > 0: a("s_add_u32 s56, s56, 4096")
            a.vmem("buffer_load_dwordx4 %s, v%d, s[40:43], s56 offen offset:%d sc1" % (vr(oa[j], 4), G.FA, (j % 2) * 2048), "oa%d" % j)
        def p1():
            a.vmem("buffer_load_dwordx4 %s, v%d, s[40:43], s56 offen offset:%d sc1" % (vr(oa[j] + 4, 4), G.FB, (j % 2) * 2048), "oa%d" % j)
        return [p0, p1]
    def oa_base():
        a("s_lshl_b32 s56, s14, 14")
        a("s_add_u32 s56, s56, %d" % (112 * 2048))
    oa_base()
    early = []
    for j in range(NOA):
        oa[j] = G.B + 8 * (NB2 + j); early += oa_parts(j)
    g_reduce_write(a, mid=(lambda: (rd(WPUMP), dm(WPUMP))) if WPUMP else None, pre=lambda: (a.sprinkle(list(early), E("OAGAP", 5)), (rd(E("WRD", 0)), dm(WPRE))), tail=tail1)
    g_reduce_add(a, not NOPK)
    if HELP:
        a.wait(vm="hp")
        for q in range(8):
            a("v_lshlrev_b32 v%d, 16, v%d" % (16 + 2 * q, HP_ + q))
            a("v_and_b32 v%d, 0xffff0000, v%d" % (17 + 2 * q, HP_ + q))
        v2(a, "add", 0, 0, 16, 16, not NOPK)
    if E("WST", 0): stamp(a, 6)
    a("s_barrier")
    s2.free += [(s_, None) for s_ in range(4, NS)]
    log.append("f")
    if E("WST", 0): stamp(a, 7)
    c1 = -2.0 * 0.7978845608028654 * 1.4426950408889634
    c2 = c1 * 0.044715
    left = [WDMA1]
    def ride():
        if left[0] > 0: dm(); left[0] -= 1
    a("s_mov_b32 s60, %s" % f32(c2))
    a("v_mov_b32 v48, %s" % f32(c1))
    ride()
    v2(a, "mul", 16, 0, 0, 16, not NOPK)
    ride()
    for r in range(16): a("v_fma_f32 v%d, v%d, s60, v48" % (16 + r, 16 + r))
    ride()
    v2(a, "mul", 16, 16, 0, 16, not NOPK)
    for r in range(16): a("v_exp_f32 v%d, v%d" % (16 + r, 16 + r))
    ride()
    for r in range(16): a("v_add_f32 v%d, 1.0, v%d" % (16 + r, 16 + r))
    ride()
    for r in range(16): a("v_rcp_f32 v%d, v%d" % (16 + r, 16 + r))
    ride()
    a.sprinkle_flush()
    a("""
    s_lshl_b32 s60, s66, 2
    s_and_b32 s61, s14, 2
    s_add_u32 s60, s60, s61
    s_lshl_b32 s60, s60, 11
    """)
    for i in range(2):
        v2(a, "mul", 8 * i, 8 * i, 16 + 8 * i, 8, not NOPK)
        for r in range(4): a("v_cvt_pk_bf16_f32 v%d, v%d, v%d" % (32 + 4 * i + r, 8 * i + 2 * r, 8 * i + 2 * r + 1))
        a.vmem("buffer_store_dwordx4 %s, v%d, s[40:43], s60 offen offset:%d sc1" % (vr(32 + 4 * i, 4), G.FA, i * 2048), "ust")
    if E("WST", 0): stamp(a, 8)
    nb4 = s2.nd
    for p in range(E("WDMA2", 4)):
        if s2.can_dma(): dm()
    rd(min(nb4, NB2) - s2.nr)
    a.wait(vm="ust")
    state = (s2.nd, s2.nr, list(s2.free), dict(s2.slot), list(a.vm.ops), list(a.lg.ops))
    a("s_mov_b32 s65, s14")
    a("s_branch G_JOIN2")
    a.label("G_JOIN")
    a.vm.clear(); a.lg.clear()
    s2b = Stream(a, "b", 24, 4096, 28, True, "nt", list(range(4)), NB2)
    oa_base()
    for f in early: f()
    if RESEARLY: res_loads()
    s2b.pol = W2POL
    for act in log:
        if act == "r": s2b.read()
        elif act == "d": s2b.dma()
        else: s2b.free += [(s_, None) for s_ in range(4, NS)]
    assert (s2b.nd, s2b.nr, s2b.slot) == (state[0], state[1], state[3]) and [x[0] for x in s2b.free] == [x[0] for x in state[2]]
    a.drain()
    a.label("G_JOIN2")
    a.vm.ops = state[4]; a.lg.ops = state[5]
    stamp(a, 9)
    a("s_barrier")
    live = not (ONLY2 or ONLYG)
    def f4_load(tag):
        if not live: return
        a("s_mov_b64 exec, 0x0fffffff")
        a.vmem("buffer_load_dword v%d, v%d, s[32:35], s69 offen sc1" % (G.VT, G.T0), tag)
        a("s_mov_b64 exec, -1")
    def f4_check(tag, upto):
        if not live: return
        l = a.newlabel("F4"); d = a.newlabel("F4D")
        if upto is None: a("s_mov_b32 s63, 0x0fffffff")
        else:
            a("s_mov_b32 s63, 0")
            for j_ in range(upto):
                a("s_lshr_b32 s61, s%d, 2" % SJ[j_])
                a("s_lshl_b32 s61, 15, s61")
                a("s_or_b32 s63, s63, s61")
        a.wait(vm=tag)
        sv4 = list(a.vm.ops)
        a("s_mov_b32 s60, 0")
        a.label(l)
        a("v_cmp_ne_u32 vcc, 0, v%d" % G.VT)
        a("s_and_b32 s61, vcc_lo, s63")
        a("s_cmp_eq_u32 s61, s63")
        a("s_cbranch_scc1 %s" % d)
        a("s_sleep %d" % PSL)
        f4_load(tag)
        a("s_add_u32 s60, s60, 1")
        a.drain(lg=False)
        a("s_cmp_lt_u32 s60, %s" % hex(SPIN_MAX))
        a("s_cbranch_scc1 %s" % l)
        a.label(d)
        a.vm.ops = sv4
    if FINE4:
        assert ROT2 and LEAD == 0
        a("s_lshl_b32 s69, s64, 13")
        a("s_add_u32 s69, s69, %s" % hex(SYNC_OFF + F4 * SL))
        a("s_cmp_lg_u32 s65, 0")
        a("s_cbranch_scc1 G_NOARR")
        a("s_lshl_b32 s61, s66, 8")
        a("s_add_u32 s61, s61, s69")
        arrive(a, "s61")
        a.label("G_NOARR")
        a("v_lshlrev_b32 v%d, 8, v%d" % (G.T0, G.LN))
        while s2.can_dma() and len(s2.inflight()) < AHEAD2: s2.dma()
        if not RESEARLY: res_loads()
        while s2.nd < NB2 + NS - 1: s2.pump(AHEAD2)
        f4_load("f4")
    else:
        a("s_lshl_b32 s69, s64, 8")
        a("s_add_u32 s69, s69, %s" % hex(SYNC_OFF + S4_CNT * SL))
        a("s_mov_b32 s62, 0")
        a("s_cmp_lg_u32 s65, 0")
        a("s_cbranch_scc1 G_NOARR")
        arrive_issue(a, "s69")
        a.label("G_NOARR")
        while s2.can_dma() and len(s2.inflight()) < AHEAD2: s2.dma()
        if not RESEARLY: res_loads()
        arrive_finish(a, 27, ["s69 offset:%d" % ((S4_REL - S4_CNT) * SL)], "G_NOREL")
        a.label("G_NOREL")
        a("s_add_u32 s69, s69, %d" % ((S4_REL - S4_CNT) * SL))
        while s2.nd < NB2 + NS - 1: s2.pump(AHEAD2)
        flag_issue(a, WS, "s69", G.VZ, G.VT, "f4")
    while s2.pump(AHEAD2): pass
    a.wait(vm="res")
    a("v_lshlrev_b32 v16, 16, v%d" % G.VB2)
    for i in range(2):
        a("v_permlane32_swap_b32 v%d, v%d" % (G.RES + 4 * i, G.RES + 4 * i + 2))
        a("v_permlane32_swap_b32 v%d, v%d" % (G.RES + 4 * i + 1, G.RES + 4 * i + 3))
    a("s_nop 0")
    for q in range(8):
        a("v_lshlrev_b32 v%d, 16, v%d" % (2 * q, G.RES + q))
        a("v_and_b32 v%d, 0xffff0000, v%d" % (2 * q + 1, G.RES + q))
    for r in range(16): a("v_add_f32 v%d, v%d, v16" % (r, r))
    srd(a, 20, 12, str(2048 * 896))
    stamp(a, 10)
    if E("RING6", 1): s2.ring.append(G.RES)
    LK = len(s2.ring) - 1
    G4 = E("G4", 0)
    got = [(LK + 3) // 4]
    if FINE4:
        f4_check("f4", got[0] if got[0] <= G4 else None)
        if got[0] <= G4: f4_load("f4")
    else: flag_check(a, WS, "s69", G.VZ, G.VT, "f4", PSL)
    stamp(a, 11)
    for t in range(len(s2.ring) - 1): s2.fload(t, 40)
    a("""
    s_lshl_b32 s57, s66, 16
    s_lshl_b32 s36, s14, 13
    s_add_u32 s57, s57, s36
    s_add_u32 s57, s57, {OFO}
    s_lshl_b32 s36, s14, 14
    s_and_b32 s36, s36, 0x8000
    s_xor_b32 s37, s36, 0x8000
    s_add_u32 s67, s57, s37
    s_add_u32 s57, s57, s36
    s_lshl_b32 s68, s66, 8
    s_add_u32 s68, s68, {REL}
    """.format(OFO=hex(OF_OFF), REL=hex(SYNC_OFF + S2_REL * SL)))
    free = [(p, G.B + 8 * (p % NB2)) for p in range(28 - NB2, 28)] + [(t, s2.freg(t)) for t in range(28 - len(s2.ring), 28)]
    if not E("RING6", 1): free.append((-1, G.RES))
    free.sort()
    def ob_parts(j):
        def p0():
            if j == 4:
                a("s_add_u32 s57, s57, 4096")
                a("s_add_u32 s67, s67, 4096")
            a.vmem("buffer_load_dwordx4 %s, v%d, s[32:35], s57 offen offset:%d sc1" % (vr(ob[j], 4), G.L16, (j % 4) * 1024), "ob%d" % j)
        def p1():
            a.vmem("buffer_load_dwordx4 %s, v%d, s[32:35], s67 offen offset:%d sc1" % (vr(ob[j] + 4, 4), G.L16, (j % 4) * 1024), "ob%d" % j)
        return [p0, p1]
    def ostep(j, fill):
        a.wait(vm=["oa%d" % j, "ob%d" % j])
        for n in range(4):
            uw, uf = n >> 1, n & 1
            acc = vr(G.ACC + 16 * n, 16)
            a("%s %s, %s, %s, %s" % (MF, acc, vr(oa[j] + 4 * uf, 4), vr(ob[j] + 4 * uw, 4), acc))
            if fill: fill.pop(0)()
        for f in fill: f()
    TCHK = E("TCHK", 17)
    OLAG = E("OLAG", 5)
    want = []
    for j in range(8): want += ([("a", j)] if j >= NOA else []) + [("b", j)]
    issued_at = {}; jo = 0
    def take(t, limit):
        out = []
        while want and free and free[0][0] < t and len(out) < limit:
            kind, j = want[0]
            if kind == "b" and t < TCHK:
                nxt = [w_ for w_ in want if w_[0] == "a"]
                if not nxt: break
                kind, j = nxt[0]
            want.remove((kind, j))
            reg = free.pop(0)[1]
            if kind == "a": oa[j] = reg; out += oa_parts(j)
            else: ob[j] = reg; out += ob_parts(j); issued_at[j] = t
        return out
    for t in range(28):
        if ONLY2 and t in (4, 8, 12, 16): stamp(a, 2 + t // 4)
        if FINE4 and got[0] <= G4 and (t + LK) // 4 + 1 > got[0]:
            got[0] += 1
            assert t < TCHK - 5
            f4_check("f4", got[0] if got[0] <= G4 else None)
            if got[0] <= G4: f4_load("f4")
        fill = s2.loop_fill(t, 40)
        if t == TCHK - 5:
            fill.append(lambda: a.vmem("buffer_load_dword v%d, v%d, s[32:35], s68 offen sc1" % (G.VT, G.VZ), "s2"))
        if t == TCHK:
            a.wait(vm="s2")
            a("v_readfirstlane_b32 s62, v%d" % G.VT)
            a("s_cmp_lg_u32 s62, 0")
            a("s_cbranch_scc1 G_S2_OK")
            if not E("FAKEA", 0): poll(a, WS, "s68", G.VZ, G.VT, sleep=2, keep=True)
            a.label("G_S2_OK")
            stamp(a, 12)
        fill += take(t, 4)
        s2.step(t, False, fill)
        if jo in issued_at and issued_at[jo] + OLAG <= t:
            ostep(jo, take(t + 1, 4))
            free.append((t + 1, oa[jo])); free.append((t + 1, ob[jo])); free.sort()
            jo += 1
    assert s2.nr == 28
    if ONLY2: stamp(a, 7)
    for f in take(99, 99): f()
    assert not want
    while jo < 8 - TAILM: ostep(jo, []); jo += 1
    tail2 = []
    while jo < 8:
        a.wait(vm=["oa%d" % jo, "ob%d" % jo])
        tail2.append(lambda n, j=jo: (vr(oa[j] + 4 * (n & 1), 4), vr(ob[j] + 4 * (n >> 1), 4)))
        jo += 1
    if ONLY2: stamp(a, 8)
    g_reduce_write(a, tail=tail2)
    g_reduce_add(a)
    for r in range(8): a("v_cvt_pk_bf16_f32 v%d, v%d, v%d" % (32 + r, 2 * r, 2 * r + 1))
    a("s_nop 1")
    for i in range(2):
        a("v_permlane32_swap_b32 v%d, v%d" % (32 + 4 * i, 34 + 4 * i))
        a("v_permlane32_swap_b32 v%d, v%d" % (33 + 4 * i, 35 + 4 * i))
    for i in range(2): a("buffer_store_dwordx4 %s, v%d, s[20:23], 0 offen offset:%d %s" % (vr(32 + 4 * i, 4), G.VX, 32 * i, OUTPOL))
    stamp_flush(a, 13, 60, "G")

DOC = """; ---------------------------------------------------------------------------------------------------------
; ---------------------------------------------------------------------------------------------------------
"""
HEADER = open("cdna_kernels/%s.s.ref" % NAME).read().split("; Override launch geometry")[0]

def main(path):
    a = Asm()
    a.label(KNAME)
    a("s_cmp_ge_u32 s2, 512")
    a("s_cbranch_scc1 K_END")
    stamp(a, 0)
    a("""
    s_load_dwordx8 s[4:11], s[0:1], 0
    s_load_dwordx4 s[28:31], s[0:1], 80
    s_load_dwordx4 s[40:43], s[0:1], 40
    s_load_dwordx4 s[52:55], s[0:1], 56
    s_load_dwordx2 s[12:13], s[0:1], 72
    v_lshrrev_b32 v1, 6, v0
    s_and_b32 s56, s2, 7
    v_readfirstlane_b32 s14, v1
    s_bfe_u32 s57, s2, 0x50003
    s_cmp_lt_u32 s2, 256
    s_cbranch_scc1 ROLE_A
    s_cmp_ge_u32 s57, 28
    s_cbranch_scc1 K_P
    s_cmp_lg_u32 s56, 7
    s_cbranch_scc1 ROLE_G
    s_add_u32 s36, s57, 32
    s_lshl_b32 s37, s57, 2
    s_add_u32 s37, s37, s14
    s_cmp_lt_u32 s37, 83
    s_cbranch_scc1 ROLE_P
    s_cmp_lg_u32 s14, 3
    s_cbranch_scc1 ROLE_P
    s_sub_u32 s37, 27, s57
    s_lshl_b32 s38, s37, 14
    v_and_b32 v6, 63, v0
    v_lshlrev_b32 v6, 8, v6
    v_add_u32 v6, {SYA}, v6
    v_add_u32 v6, s38, v6
    v_mov_b32 v7, 0
    s_waitcnt lgkmcnt(0)
    global_store_dword v6, v7, s[30:31] sc1
    s_cmp_lg_u32 s37, 0
    s_cbranch_scc1 ROLE_P
    s_mov_b32 s62, 1
    s_waitcnt vmcnt(0)
    s_atomic_add s62, s[28:29], 0x0
    s_branch ROLE_P
    K_P:
    s_sub_u32 s36, s2, 480
    s_branch ROLE_P
    """.format(SYA=hex(SYNC_OFF + WSBASE)))
    n0 = len(a.lines)
    role_a(a)
    n1 = len(a.lines)
    role_g(a)
    if GTOP:
        n2 = a.lines.index("G_SETUP:")
        head = a.lines[n1:n2] + ["    s_branch G_SETUP"]
        if GTOP == 1: a.lines = a.lines[:n0] + head + a.lines[n0:n1] + a.lines[n2:]
        else:
            k = n0 + next(i for i, l in enumerate(a.lines[n0:n1]) if "global_load_dwordx4 v[12:15]" in l) + 1
            a.lines = a.lines[:k] + ["    s_branch A_CONT"] + head + ["A_CONT:"] + a.lines[k:n1] + a.lines[n2:]
    a.label("K_END")
    a("s_endpgm")
    a.vm.clear(); a.lg.clear()
    a.label("ROLE_P")
    if ONLY2 or ONLYG:
        a("s_cmp_lt_u32 s57, 28")
        a("s_cbranch_scc1 ROLE_G")
        a("s_endpgm")
    a("""
    s_lshl_b32 s36, s36, 2
    s_add_u32 s36, s36, s14
    v_and_b32 v1, 63, v0
    v_lshrrev_b32 v2, 3, v1
    v_and_b32 v3, 7, v1
    v_lshlrev_b32 v3, 4, v3
    s_mov_b32 s19, 0x20000
    s_lshl_b32 s49, s14, 12
    s_mov_b32 s66, 0
    s_cmp_ge_u32 s36, 196
    s_cbranch_scc1 P_JPHI
    s_mul_i32 s37, s36, 4682
    s_lshr_b32 s37, s37, 16
    s_mul_i32 s38, s37, 14
    s_sub_u32 s38, s36, s38
    s_add_u32 s38, s38, 7
    P_JW:
    s_mov_b32 s67, 0
    s_mul_i32 s20, s37, 86016
    s_lshl_b32 s39, s38, 7
    s_add_u32 s20, s20, s39
    s_add_u32 s21, s20, 43008
    s_movk_i32 s50, 2688
    s_mov_b32 s18, {WSZ}
    s_mov_b32 s51, 8
    s_waitcnt lgkmcnt(0)
    s_mov_b32 s16, s6
    s_and_b32 s17, s7, 0xffff
    s_branch P_LD
    P_JPHI:
    s_mov_b32 s67, 2
    s_sub_u32 s38, s36, 196
    s_mul_i32 s20, s38, 1568
    s_add_u32 s21, s20, 896
    s_movk_i32 s50, 56
    s_mov_b32 s51, 4
    s_cmp_lt_u32 s38, 16
    s_cselect_b32 s18, 25088, 0
    s_waitcnt lgkmcnt(0)
    s_mov_b32 s16, s8
    s_and_b32 s17, s9, 0xffff
    s_branch P_LD
    P_PASS1:
    s_mul_i32 s37, s36, 9363
    s_lshr_b32 s37, s37, 16
    s_mul_i32 s38, s37, 7
    s_sub_u32 s38, s36, s38
    s_cmp_lt_u32 s36, 98
    s_cbranch_scc1 P_JW
    s_mov_b32 s67, 1
    s_sub_u32 s37, s36, 98
    s_and_b32 s38, s37, 15
    s_lshr_b32 s37, s37, 4
    s_mul_i32 s20, s38, 25088
    s_lshl_b32 s39, s37, 7
    s_add_u32 s20, s20, s39
    s_add_u32 s21, s20, 14336
    s_movk_i32 s50, 896
    s_mov_b32 s51, 4
    s_cmp_lt_u32 s37, 7
    s_cselect_b32 s18, {OSZ}, 0
    s_mov_b32 s16, s10
    s_and_b32 s17, s11, 0xffff
    P_LD:
    v_mov_b32 v4, {BIG}
    v_mul_lo_u32 v8, v2, s50
    s_lshl_b32 s39, s50, 3
    v_add_u32 v8, v8, v3
    v_cmp_gt_u32 vcc, s51, v2
    v_add_u32 v9, s39, v8
    s_mov_b32 m0, s49
    v_cndmask_b32 v10, v4, v9, vcc
    """.format(BIG=hex(BIG), WSZ=448 * 2688, OSZ=448 * 896))
    for u in range(2):
        a.vmem("buffer_load_dwordx4 v8, s[16:19], s%d offen lds" % (20 + u), "u%d" % u)
        a("s_add_u32 m0, s49, %d" % (u * 2048 + 1024))
        a("s_nop 0")
        a.vmem("buffer_load_dwordx4 v%d, s[16:19], s%d offen lds" % (10 if u else 9, 20 + u), "u%d" % u)
        if u == 0:
            a("s_add_u32 m0, s49, 2048")
            a("s_nop 0")
    assert not WSBASE
    a("""
    s_cmp_lt_u32 s57, 28
    s_cbranch_scc1 P_NOCODE
    s_cmp_lg_u32 s66, {CP}
    s_cbranch_scc1 P_NOCODE
    s_getpc_b64 s[60:61]
    K_PC:
    s_sub_u32 s60, s60, K_PC-{K}
    s_subb_u32 s61, s61, 0
    s_and_b32 s58, s57, 3
    s_lshl_b32 s58, s58, 12
    v_lshl_add_u32 v5, v0, 4, s58
    global_load_dwordx4 v[64:67], v5, s[60:61]
    v_add_u32 v5, 0x4000, v5
    v_min_u32 v5, CODE_END-{K}-16, v5
    global_load_dwordx4 v[68:71], v5, s[60:61]
    P_NOCODE:
    """.format(K=KNAME, CP=E("CPASS", 1)))
    srd(a, WS, 30, hex(WS_USED))
    srd(a, DBG, 28, "256")
    a("""
    s_mov_b64 s[64:65], -1
    v_mov_b32 v5, 0
    v_bfe_u32 v13, v1, 2, 2
    v_lshlrev_b32 v13, 7, v13
    v_lshrrev_b32 v14, 4, v1
    v_lshl_add_u32 v13, v14, 5, v13
    v_and_b32 v14, 3, v1
    v_lshl_add_u32 v13, v14, 3, v13
    v_add_u32 v13, s49, v13
    s_cmp_lg_u32 s67, 0
    s_cbranch_scc1 P_D2
    s_mul_i32 s39, s38, 37
    s_lshr_b32 s39, s39, 8
    s_mul_i32 s48, s39, 7
    s_sub_u32 s48, s38, s48
    s_lshl_b32 s48, s48, 6
    v_add_u32 v6, s48, v1
    v_mul_u32_u24 v7, 2341, v6
    v_lshrrev_b32 v7, 16, v7
    v_mul_u32_u24 v11, 28, v7
    v_sub_u32 v11, v6, v11
    v_lshlrev_b32 v11, 4, v11
    v_mul_u32_u24 v7, {WPH}, v7
    v_add_u32 v11, v11, v7
    v_add_u32 v12, 448, v11
    s_cmp_eq_u32 s39, 0
    s_cselect_b32 s48, 1, 2
    s_mul_i32 s48, s48, 896
    s_mul_i32 s24, s39, 896
    s_sub_u32 s24, s24, 896
    s_cmp_eq_u32 s39, 0
    s_cselect_b32 s24, {WPQ}, s24
    s_lshl_b32 s37, s37, 1
    s_mul_i32 s37, s37, s48
    s_add_u32 s24, s24, s37
    s_add_u32 s24, s24, {WPO}
    s_add_u32 s25, s24, s48
    v_add_u32 v14, 512, v13
    v_add_u32 v15, 1024, v13
    s_branch P_ST
    P_D2:
    v_add_u32 v14, 1024, v13
    v_add_u32 v15, 512, v13
    v_lshrrev_b32 v6, 5, v1
    v_and_b32 v7, 31, v1
    v_lshlrev_b32 v11, 4, v7
    s_cmp_eq_u32 s67, 2
    s_cbranch_scc1 P_D3
    v_lshl_add_u32 v11, v6, 10, v11
    v_add_u32 v12, 512, v11
    s_mul_i32 s24, s37, {UPG}
    s_lshl_b32 s39, s38, 12
    s_add_u32 s24, s24, s39
    s_add_u32 s24, s24, {OB}
    s_cmp_lt_u32 s37, 7
    s_cselect_b32 s24, s24, 0x08000000
    s_add_u32 s25, s24, 2048
    s_branch P_ST
    P_D3:
    v_mul_u32_u24 v6, 0x7f0000, v6
    v_lshl_add_u32 v11, v6, 4, v11
    v_add_u32 v12, 512, v11
    s_mul_i32 s24, s38, {WPH}
    s_add_u32 s24, s24, {PHB}
    s_cmp_lt_u32 s38, 16
    s_cselect_b32 s24, s24, 0x08000000
    s_add_u32 s25, s24, 1024
    s_mov_b32 s64, 0x0fffffff
    P_ST:
    """.format(WPH=WP_H, WPQ=WP_Q, WPO=hex(WP_OFF), UPG=UP_G, OB=hex(UP_OFF + 112 * 2048), PHB=hex(WP_OFF + WP_PHI)))
    for u in range(2):
        b = 16 + 8 * u
        a.wait(vm="u%d" % u)
        a.ds("ds_read_b64_tr_b16 %s, v13 offset:%d" % (vr(b, 2), u * 2048), "t%d" % u)
        a.ds("ds_read_b64_tr_b16 %s, v14 offset:%d" % (vr(b + 2, 2), u * 2048), "t%d" % u)
        a.ds("ds_read_b64_tr_b16 %s, v15 offset:%d" % (vr(b + 4, 2), u * 2048), "t%d" % u)
        a.ds("ds_read_b64_tr_b16 %s, v13 offset:%d" % (vr(b + 6, 2), u * 2048 + 1536), "t%d" % u)
    a.drain(vm=False)
    for u in range(2):
        b = 16 + 8 * u
        for r in range(8): a("v_cndmask_b32 v%d, 0, v%d, s[64:65]" % (b + r, b + r))
        a.vmem("buffer_store_dwordx4 %s, v11, s[32:35], s%d offen sc1" % (vr(b, 4), 24 + u))
        a.vmem("buffer_store_dwordx4 %s, v12, s[32:35], s%d offen sc1" % (vr(b + 4, 4), 24 + u))
    a.vmem("buffer_load_dword v4, v5, s[44:47], 0 offen sc1")
    a.drain()
    a("s_barrier")
    a("s_cmp_lg_u32 s14, 3")
    a("s_cbranch_scc1 P_NEXT")
    a("v_readfirstlane_b32 s61, v4")
    a("s_cmp_lg_u32 s61, 0")
    a("s_cbranch_scc1 P_RDY")
    poll(a, DBG, "0", 5, 4)
    a.label("P_RDY")
    assert SV_REL - SV_CNT == SW_REL - SW_CNT
    a("s_mul_i32 s20, s66, %d" % ((SV_CNT - SW_CNT) * SL))
    a("s_add_u32 s20, s20, %s" % hex(SYNC_OFF + SW_CNT * SL))
    arrive_issue(a, "s20")
    a.drain(vm=False)
    a("s_cmp_lg_u32 s62, 59")
    a("s_cbranch_scc1 P_NEXT")
    a("s_mov_b32 s62, 1")
    for i in range(8): a("s_atomic_add s62, s[30:31], s20 offset:%d" % ((SW_REL - SW_CNT + i) * SL))
    a.label("P_NEXT")
    if STAMP == 1:
        a("s_cmp_lg_u32 s66, 0")
        a("s_cbranch_scc1 P_NS")
        stamp(a, 6)
        a.label("P_NS")
    a("s_add_u32 s66, s66, 1")
    a("s_cmp_eq_u32 s66, 1")
    a("s_cbranch_scc1 P_PASS1")
    a.label("P_NOARR")
    if WSBASE:
        a("s_sub_u32 s30, s30, %s" % hex(WSBASE))
        a("s_subb_u32 s31, s31, 0")
    a("s_cmp_lt_u32 s57, 28")
    a("s_cbranch_scc1 ROLE_G")
    stamp(a, 1)
    if ONLYA or not E("PON", 1): a("s_endpgm")
    a("""
    s_and_b32 s36, s57, 3
    s_lshl_b32 s37, s56, 2
    s_add_u32 s37, s37, s36
    s_lshl_b32 s37, s37, 7
    s_mul_i32 s58, s14, {W64}
    s_add_u32 s58, s58, s37
    s_add_u32 s58, s58, {R0}
    s_cmp_eq_u32 s56, 7
    s_cselect_b32 s58, 0x08000000, s58
    v_mul_u32_u24 v6, 3584, v2
    v_add_u32 v6, v6, v3
    """.format(W64=64 * 3584, R0=1792 * 3584))
    srd(a, 16, 40, str(2048 * 3584))
    for i in range(0 if HELP else 8):
        a("buffer_load_dwordx4 %s, v6, s[16:19], s58 offen nt" % vr(16 + 4 * i, 4))
        a("s_add_u32 s58, s58, %d" % (8 * 3584))
    a("""
    s_lshl_b32 s36, s36, 2
    s_add_u32 s36, s36, s14
    v_lshrrev_b32 v2, 5, v1
    v_lshlrev_b32 v2, 12, v2
    v_and_b32 v3, 31, v1
    v_lshl_add_u32 v2, v3, 4, v2
    s_lshl_b32 s58, s56, 9
    v_add_u32 v2, s58, v2
    v_lshlrev_b32 v1, 4, v1
    v_mov_b32 v3, 0
    s_mul_i32 s37, s56, 229376
    """)
    srd(a, 24, 52, str(1792 * 4096))
    srd(a, 16, 4, "229376", add="s37")
    PD = E("PDEPTH", 8)
    a("s_setprio %d" % E("PRIO_P", 0))
    def pf_loop(lbl, srdn, vaddr, step, limit, pol):
        a.label(lbl)
        for i in range(8):
            a("s_waitcnt vmcnt(%d)" % (PD - 1))
            a("buffer_load_dwordx4 %s, v%d, s[%d:%d], s58 offen %s" % (vr(8 + 4 * i, 4), vaddr, srdn, srdn + 3, pol))
            a("s_add_u32 s58, s58, %d" % step)
        a("s_cmp_lt_u32 s58, %s" % limit)
        a("s_cbranch_scc1 %s" % lbl)
    def blk8k(sreg):
        a("s_waitcnt vmcnt(4)")
        for i in range(4): a("buffer_load_dwordx4 %s, v1, s[32:35], %s offen offset:%d sc1" % (vr(8 + 4 * i, 4), sreg, i * 1024))
        a("s_add_u32 s63, %s, 4096" % sreg)
        a("s_waitcnt vmcnt(4)")
        for i in range(4): a("buffer_load_dwordx4 %s, v1, s[32:35], s63 offen offset:%d sc1" % (vr(24 + 4 * i, 4), i * 1024))
    def tail_groups(lbl, base, gstride, n, with7, flag):
        a("s_and_b32 s48, s57, 3")
        a.label(lbl)
        if flag is not None:
            a("s_lshl_b32 s58, s48, 8")
            a("s_add_u32 s58, s58, %s" % hex(flag))
            poll(a, WS, "s58", 3, 4, sleep=4)
        a("s_mul_i32 s49, s48, %d" % gstride)
        a("s_lshl_b32 s50, s14, 13")
        a("s_add_u32 s49, s49, s50")
        a("s_add_u32 s49, s49, %s" % hex(base))
        for q in range(n):
            if with7 and q == n - 1: a("s_add_u32 s51, s49, %d" % (7 * 32768))
            else:
                back = n - (1 if with7 else 0) - q
                a("s_add_u32 s51, s48, %d" % (7 - back))
                a("s_sub_u32 s50, s51, 7")
                a("s_cselect_b32 s51, s51, s50")
                a("s_lshl_b32 s51, s51, 15")
                a("s_add_u32 s51, s51, s49")
            blk8k("s51")
        a("s_add_u32 s48, s48, 4")
        a("s_cmp_lt_u32 s48, 7")
        a("s_cbranch_scc1 %s" % lbl)
    def wait_s0():
        a("s_movk_i32 s58, 0x80")
        poll(a, DBG, "s58", 3, 4, sleep=8)
    def pf_wo():
        a("s_lshl_b32 s58, s36, 12")
        a("s_add_u32 s58, s58, %s" % hex(UP_OFF + 112 * 2048))
        for g_ in range(7):
            a("s_waitcnt vmcnt(4)")
            for i in range(4): a("buffer_load_dwordx4 %s, v1, s[32:35], s58 offen offset:%d sc1" % (vr(8 + 16 * (g_ % 2) + 4 * i, 4), i * 1024))
            a("s_add_u32 s58, s58, %d" % UP_G)
    if not E("PEARLY", 0): wait_s0()
    stamp(a, 2)
    a("s_lshl_b32 s58, s36, 13")
    pf_loop("P_W2", 24, 2, 16 * 8192, str(E("PFA", 1024) * 4096), PFPOL)
    stamp(a, 3)
    a("s_mov_b32 s48, s58")
    if E("PWO", 2) == 1: pf_wo()
    a("s_lshl_b32 s58, s36, 10")
    if E("PX", 1): pf_loop("P_X", 16, 1, 16 * 1024, "229376", PFPOL)
    stamp(a, 4)
    a("s_mov_b32 s58, s48")
    if E("PTAIL", 1): pf_loop("P_W3", 24, 2, 16 * 8192, str(1792 * 4096), PFPOL)
    stamp(a, 5)
    if E("PEARLY", 0): wait_s0()
    if E("PWO", 2) == 2: pf_wo()
    if E("NUT", 0): tail_groups("P_UT", UP_OFF, UP_G, E("NUT", 0), False, SYNC_OFF + S4_REL * SL)
    if E("POF", 0):
        a("s_and_b32 s48, s57, 3")
        a("s_lshl_b32 s49, s56, 2")
        a("s_add_u32 s48, s48, s49")
        a("s_lshl_b32 s58, s48, 8")
        a("s_add_u32 s58, s58, %s" % hex(SYNC_OFF + S2_REL * SL))
        poll(a, WS, "s58", 3, 4, sleep=4)
        a("s_lshl_b32 s51, s48, 16")
        a("s_lshl_b32 s50, s14, 14")
        a("s_add_u32 s51, s51, s50")
        a("s_add_u32 s51, s51, %s" % hex(OF_OFF))
        blk8k("s51")
        a("s_add_u32 s51, s51, 8192")
        blk8k("s51")
    if STAMP == 1: stamp_flush(a, 7, 60)
    a("s_endpgm")
    a.label("CODE_END")
    if DIAG:
        out = HEADER + "; @launch kernel=%s grid=(512,1,1) block=(256,1,1) lds=81920\n; @launch kernel=diag_kernel grid=(1,1,1) block=(64,1,1) lds=0\n" % KNAME
        a.lines += [".globl diag_kernel", ".p2align 8", ".type diag_kernel,@function"]
        a("""
        diag_kernel:
        s_cmp_lg_u32 s2, 0
        s_cbranch_scc1 DG_END
        s_load_dwordx2 s[4:5], s[0:1], 80
        s_waitcnt lgkmcnt(0)
        s_sub_u32 s4, s4, 512
        s_subb_u32 s5, s5, 0
        s_load_dwordx2 s[6:7], s[4:5], 128
        s_memrealtime s[8:9]
        s_waitcnt lgkmcnt(0)
        s_not_b32 s6, s6
        s_sub_u32 s6, s7, s6
        s_min_u32 s6, s6, 10000
        s_mul_i32 s6, s6, %d
        DG_L:
        s_memrealtime s[10:11]
        s_waitcnt lgkmcnt(0)
        s_sub_u32 s10, s10, s8
        s_cmp_lt_u32 s10, s6
        s_cbranch_scc1 DG_L
        DG_END:
        s_endpgm
        """ % E("AMP", 10))
    else:
        out = HEADER + "; @launch grid=(512,1,1) block=(256,1,1) lds=81920\n"
    out += '.amdgcn_target "amdgcn-amd-amdhsa--gfx950"\n' + DOC + '.text\n.globl %s\n.p2align 8\n.type %s,@function\n' % (KNAME, KNAME)
    out += a.text()
    out += """.section .rodata,"a"
.p2align 6
.amdhsa_kernel {n}
  .amdhsa_next_free_vgpr 256
  .amdhsa_next_free_sgpr {s}
  .amdhsa_accum_offset 256
  .amdhsa_group_segment_fixed_size 0
  .amdhsa_kernarg_size 96
  .amdhsa_user_sgpr_count 2
  .amdhsa_user_sgpr_kernarg_segment_ptr 1
  .amdhsa_system_sgpr_workgroup_id_x 1
  .amdhsa_float_denorm_mode_32 3
.end_amdhsa_kernel
""".format(n=KNAME, s=100 if STAMP else 72)
    if DIAG:
        out += """.p2align 6
.amdhsa_kernel diag_kernel
  .amdhsa_next_free_vgpr 8
  .amdhsa_next_free_sgpr 32
  .amdhsa_accum_offset 8
  .amdhsa_group_segment_fixed_size 0
  .amdhsa_kernarg_size 96
  .amdhsa_user_sgpr_count 2
  .amdhsa_user_sgpr_kernarg_segment_ptr 1
  .amdhsa_system_sgpr_workgroup_id_x 1
.end_amdhsa_kernel
"""
    if E("NONT", 1):
        import re
        out = re.sub(r" nt$", "", out, flags=re.M).replace(" nt lds", " lds")
    open(path, "w").write(out)

if __name__ == "__main__":
    main(sys.argv[1])
```

```python
import sys, struct, os

NAME = "parallel_sum__linear_kernel_hedgehog__mixer_token_mlp__prompt"
KNAME = NAME + "_kernel"
E = lambda k, d: int(os.environ.get(k, str(d)))

XN_OFF   = 0x000000
HT_OFF   = 0x200000
HT_G     = 128 * 2048
WP_OFF   = 0x400000
WP_Q     = 28 * 1792
WP_PHI   = 28 * 2688
WP_H     = WP_PHI + 2048 + 512
UP_OFF   = 0x600000
UP_G     = 144 * 2048
KVF_OFF  = 0x800000
SYNC_OFF = 0x840000
OF_OFF   = 0x900000
KVP_OFF  = 0xB00000
PART_OFF = 0xD00000
WS_USED  = 0x1000000
STAMP_OFF = 0xF00000
BIG      = 0x7ff00000
SL = 256
SX_CNT, SX_REL = 0, 16
SW_CNT, SW_REL = 32, 48
S1_CNT, S1_REL = 64, 80
SV_CNT, SV_REL = 40, 56
S2_CNT, S2_REL = 128, 160
S4_CNT, S4_REL = 192, 200
SA_ROOT = 36
SA_REP = 208
SH_REL = 224
F4 = 256
NSYNC = 512
SPIN_MAX = 0x40000

STAMP = E("STAMP", 0); PRIO_A = E("PRIO_A", 2); PRIO_G = E("PRIO_G", 1); AHEAD = E("AHEAD", 4); W2START = E("W2START", 32)
NB, NF, NS = E("NB", 16), E("NF", 5), 10
LEAD = E("LEAD", 0)
XPRE = E("XPRE", 12)
PSL = E("PSL", 1)
WDMA1 = E("WDMA1", 3)
WPRE = E("WPRE", 4)
NOPK = E("NOPK", 0)
NOA = E("NOA", 0)
TWO = 1
GTOP = E("GTOP", 2)
TAILM = E("TAILM", 3)
FINE4 = E("FINE4", 1)
FLOOK = E("FLOOK", 7)
HELP = E("HELP", 0)
NK1 = 28 if HELP else 32
NB2 = NB - NOA
ROT2 = E("ROT2", 1)
INL0 = E("INL0", 18)
INLN = E("INLN", 0)
INLP = E("INLP", 1)
WPUMP = E("WPUMP", 0)
AHEAD2 = E("AHEAD2", 5)
PFW2 = E("PFW2", 0)
PRIO_Q = E("PRIO_Q", 0)
PRIO_K = E("PRIO_K", 2)
JOBLATE = E("JOBLATE", 1)
BURST = E("BURST", 4)
PFPOL = os.environ.get("PFPOL", "")
NP = E("NP", 0)
AHEAD0 = E("AHEAD0", 5)
ALOOK = E("ALOOK", 99)
W2POL = os.environ.get("W2POL", "")
W1POL2 = os.environ.get("W1POL2", "")
RESEARLY = E("RESEARLY", 0)
WSBASE = E("WSBASE", 0)
ONLY2 = E("ONLY2", 0)
ONLYG = E("ONLYG", 0)
ONLYA = E("ONLYA", 0)
GWAIT = E("GWAIT", 0)
PFWAIT = E("PFWAIT", 0)
OUTPOL = os.environ.get("OUTPOL", "")

def f32(x): return "0x%08x" % struct.unpack("<I", struct.pack("<f", x))[0]

class Q:
    def __init__(self, mx): self.ops = []; self.mx = mx
    def issue(self, tag): self.ops.append(tag)
    def need(self, tags):
        if not isinstance(tags, (list, tuple, set)): tags = [tags]
        idx = -1
        for i, t in enumerate(self.ops):
            if t in tags: idx = i
        if idx < 0: return None
        n = len(self.ops) - 1 - idx
        if n > self.mx: return self.mx
        self.ops = self.ops[idx + 1:]
        return n
    def clear(self): self.ops = []

class Asm:
    def __init__(self):
        self.lines = []; self.vm = Q(63); self.lg = Q(15); self.uid = 0; self.issued = []; self.spr = []; self.pending = False
    def sprinkle(self, fns, gap): self.spr = fns; self.gap = gap; self.cnt = 0
    def sprinkle_flush(self):
        fns, self.spr = self.spr, []
        for f in fns: f()
    def __call__(self, s):
        for l in s.strip().split("\n"):
            l = l.strip()
            if l.endswith(":"): self.lines.append(l)
            elif l: self.lines.append("    " + l)
        if self.spr and s.lstrip().startswith(("v_", "ds_")):
            self.cnt += 1
            if self.cnt >= self.gap:
                self.cnt = 0
                self.spr.pop(0)()
    def label(self, l): self.lines.append(l + ":")
    def vmem(self, s, tag=None): self(s); self.vm.issue(tag); self.issued.append(tag)
    def ds(self, s, tag=None): self(s); self.lg.issue(tag)
    def wait(self, vm=None, lg=None):
        p = []
        for q, t, nm in ((self.vm, vm, "vmcnt"), (self.lg, lg, "lgkmcnt")):
            if t is None: continue
            n = q.need(t)
            if n is None: continue
            if len(q.ops) > n: q.ops = q.ops[len(q.ops) - n:]
            p.append("%s(%d)" % (nm, n))
        if p: self("s_waitcnt " + " ".join(p))
    def drain(self, vm=True, lg=True):
        p = []
        if vm: p.append("vmcnt(0)"); self.vm.clear()
        if lg: p.append("lgkmcnt(0)"); self.lg.clear()
        self("s_waitcnt " + " ".join(p))
    def newlabel(self, p): self.uid += 1; return "%s_%d" % (p, self.uid)
    def text(self): return "\n".join(self.lines) + "\n"

def vr(a, n): return "v[%d:%d]" % (a, a + n - 1)

def srd(a, d, base, size, add=None):
    if add is None:
        a("s_mov_b32 s%d, s%d" % (d, base))
        a("s_and_b32 s%d, s%d, 0xffff" % (d + 1, base + 1))
    else:
        a("s_add_u32 s%d, s%d, %s" % (d, base, add))
        a("s_addc_u32 s%d, s%d, 0" % (d + 1, base + 1))
        a("s_and_b32 s%d, s%d, 0xffff" % (d + 1, d + 1))
    a("s_mov_b32 s%d, %s" % (d + 2, size))
    a("s_mov_b32 s%d, 0x20000" % (d + 3))

WS = 32
DBG = 44

def ws_base(a):
    if WSBASE:
        a("s_add_u32 s30, s30, %s" % hex(WSBASE))
        a("s_addc_u32 s31, s31, 0")

def stamp(a, i):
    if STAMP == 3 and i not in (0, 13): return
    if STAMP:
        a("%s s[%d:%d]" % ("s_memtime" if STAMP == 2 else "s_memrealtime", 70 + 2 * i, 71 + 2 * i))
        a.drain(vm=False)
DIAG = os.environ.get("DIAG", "")
def stamp_flush(a, n, tmp, role=""):
    if not STAMP: return
    a.drain()
    stamp(a, n)
    if DIAG:
        a("s_mov_b64 exec, 1")
        a("v_mov_b32 v%d, 0" % tmp)
        a("s_not_b32 s98, s70")
        a("v_mov_b32 v%d, s98" % (tmp + 1))
        a("buffer_atomic_umax v%d, v%d, s[44:47], 0 offen offset:128 sc1" % (tmp + 1, tmp))
        if DIAG[0] == role:
            a("v_mov_b32 v%d, s%d" % (tmp + 2, 70 + 2 * int(DIAG[1:])))
            a("buffer_atomic_umax v%d, v%d, s[44:47], 0 offen offset:132 sc1" % (tmp + 2, tmp))
        return
    a("s_mov_b64 exec, 1")
    a("s_lshl_b32 s98, s2, 8")
    a("s_lshl_b32 s99, s14, 6")
    a("s_add_u32 s98, s98, s99")
    a("s_add_u32 s98, s98, %s" % hex(STAMP_OFF))
    a("v_mov_b32 v%d, 0" % tmp)
    if STAMP == 3:
        if n == 13:
            a("v_mov_b32 v%d, s70" % (tmp + 1))
            a("v_mov_b32 v%d, s96" % (tmp + 2))
            a("buffer_store_dword v%d, v%d, s[32:35], s98 offen" % (tmp + 1, tmp))
            a("buffer_store_dword v%d, v%d, s[32:35], s98 offen offset:52" % (tmp + 2, tmp))
        return
    for i in range(n + 1):
        a("v_mov_b32 v%d, s%d" % (tmp + 1, 70 + 2 * i))
        a("buffer_store_dword v%d, v%d, s[32:35], s98 offen offset:%d" % (tmp + 1, tmp, 4 * i))
        a("s_waitcnt vmcnt(0)")

def poll(a, srdn, soff, vz, vt, sleep=1, target=1, keep=False):
    if ONLY2 or ONLYG: return
    sv = list(a.vm.ops)
    l = a.newlabel("POLL"); d = a.newlabel("POLLD")
    a("s_mov_b32 s60, 0")
    a("s_mov_b64 exec, 1")
    a.label(l)
    a("buffer_load_dword v%d, v%d, s[%d:%d], %s offen sc1" % (vt, vz, srdn, srdn + 3, soff))
    a("s_add_u32 s60, s60, 1")
    a.drain(lg=False)
    a("v_readfirstlane_b32 s61, v%d" % vt)
    a("s_cmp_ge_u32 s61, %d" % target)
    a("s_cbranch_scc1 %s" % d)
    if sleep: a("s_sleep %d" % sleep)
    a("s_cmp_lt_u32 s60, %s" % hex(SPIN_MAX))
    a("s_cbranch_scc1 %s" % l)
    a.label(d)
    a("s_mov_b64 exec, -1")
    if keep: a.vm.ops = sv

def arrive_issue(a, soff):
    a("s_mov_b32 s62, 1")
    a("s_atomic_add s62, s[30:31], %s glc" % soff)
def arrive_finish(a, last, srels, skip):
    a.drain(vm=False)
    a("s_cmp_lg_u32 s62, %d" % last)
    a("s_cbranch_scc1 %s" % skip)
    a("s_mov_b32 s62, 1")
    for r in srels: a("s_atomic_add s62, s[30:31], %s" % r)

def flag_issue(a, srdn, soff, vz, vt, tag):
    if ONLY2 or ONLYG: return
    a.vmem("buffer_load_dword v%d, v%d, s[%d:%d], %s offen sc1" % (vt, vz, srdn, srdn + 3, soff), tag)
def flag_check(a, srdn, soff, vz, vt, tag, sleep):
    if ONLY2 or ONLYG: return
    ok = a.newlabel("FLAG")
    a.wait(vm=tag)
    a("v_readfirstlane_b32 s61, v%d" % vt)
    a("s_cmp_lg_u32 s61, 0")
    a("s_cbranch_scc1 %s" % ok)
    poll(a, srdn, soff, vz, vt, sleep=sleep, keep=True)
    a.label(ok)

def arrive(a, soff):
    a("s_mov_b32 s62, 1")
    a("s_atomic_add s62, s[30:31], %s" % soff)

def round_bf16(a, d, s):
    a("v_cvt_pk_bf16_f32 v%d, v%d, v%d" % (d, s, s))
    a("v_lshlrev_b32 v%d, 16, v%d" % (d, d))

def half_reduce(a, regs, tmps):
    steps = ["quad_perm:[1,0,3,2] row_mask:0xf bank_mask:0xf", "quad_perm:[2,3,0,1] row_mask:0xf bank_mask:0xf",
             "row_half_mirror row_mask:0xf bank_mask:0xf", "row_mirror row_mask:0xf bank_mask:0xf"]
    for st in steps:
        a("s_nop %d" % (1 if len(regs) == 1 else 0))
        for r in regs: a("v_add_f32_dpp v%d, v%d, v%d %s" % (r, r, r, st))
    for r, t in zip(regs, tmps): a("v_mov_b32 v%d, v%d" % (t, r))
    a("s_nop 1")
    for r, t in zip(regs, tmps): a("v_permlane16_swap_b32 v%d, v%d" % (r, t))
    a("s_nop 0")
    for r, t in zip(regs, tmps): a("v_add_f32 v%d, v%d, v%d" % (r, r, t))

MF = "v_mfma_f32_32x32x16_bf16"

def role_a(a):
    LN, VA, VB, VC, VD, VZ, VT, VH = 250, 251, 252, 253, 254, 248, 249, 255
    a.label("ROLE_A")
    if ONLY2 or ONLYG: a("s_endpgm")
    JB = 16384
    a("""
    s_lshr_b32 s38, s56, 1
    s_lshl_b32 s38, s38, 2
    s_and_b32 s39, s57, 3
    s_add_u32 s38, s38, s39
    s_and_b32 s39, s56, 1
    s_lshl_b32 s39, s39, 3
    s_lshr_b32 s57, s57, 2
    s_add_u32 s39, s39, s57
    s_lshl_b32 s15, s38, 4
    s_add_u32 s15, s15, s39
    v_and_b32 v{VC}, 31, v0
    v_lshrrev_b32 v2, 5, v0
    s_mul_i32 s20, s15, 7168
    v_min_u32 v4, 27, v{VC}
    v_mul_u32_u24 v3, 896, v2
    v_lshl_add_u32 v3, v4, 5, v3
    v_add_u32 v4, s20, v3
    s_waitcnt lgkmcnt(0)
    global_load_dwordx4 v[8:11], v4, s[4:5] nt
    global_load_dwordx4 v[12:15], v4, s[4:5] offset:16 nt
    s_mov_b32 s58, 0x0fffffff
    s_mov_b32 s59, 0x0fffffff
    s_setprio {PRIO}
    s_mul_i32 s25, s39, {WPH}
    s_add_u32 s25, s25, {WPO}
    v_and_b32 v{LN}, 63, v0
    v_bfe_u32 v{VH}, v0, 5, 1
    v_mov_b32 v{VZ}, 0
    v_lshlrev_b32 v{VA}, 4, v{LN}
    v_mul_u32_u24 v{VB}, 448, v{VH}
    v_lshl_add_u32 v{VB}, v{VC}, 4, v{VB}
    """.format(VC=VC, SYA=hex(SYNC_OFF + WSBASE), PRIO=PRIO_A, WPH=WP_H, WPO=hex(WP_OFF), LN=LN, VH=VH, VZ=VZ, VA=VA, VB=VB))
    a.vm.issue("x"); a.vm.issue("x")
    ws_base(a)
    srd(a, WS, 30, hex(WS_USED))
    srd(a, DBG, 28, "256")
    P, X, T = 8, 16, 32
    def unpack(dst, src):
        for i in range(8):
            a("v_lshlrev_b32 v%d, 16, v%d" % (dst + 2 * i, src + i))
            a("v_and_b32 v%d, 0xffff0000, v%d" % (dst + 2 * i + 1, src + i))
    def pack(dst, src):
        for i in range(8): a("v_cvt_pk_bf16_f32 v%d, v%d, v%d" % (dst + i, src + 2 * i, src + 2 * i + 1))
    def pksum(dst, src):
        a("v_pk_add_f32 %s, %s, %s" % (vr(dst, 2), vr(src, 2), vr(src + 2, 2)))
        a("v_pk_add_f32 %s, %s, %s" % (vr(dst + 2, 2), vr(src + 4, 2), vr(src + 6, 2)))
        for i in (8, 12):
            a("v_pk_add_f32 %s, %s, %s" % (vr(dst, 2), vr(dst, 2), vr(src + i, 2)))
            a("v_pk_add_f32 %s, %s, %s" % (vr(dst + 2, 2), vr(dst + 2, 2), vr(src + i + 2, 2)))
        a("v_pk_add_f32 %s, %s, %s" % (vr(dst, 2), vr(dst, 2), vr(dst + 2, 2)))
        a("v_add_f32 v%d, v%d, v%d" % (dst, dst, dst + 1))
    def pksq(dst, src):
        a("v_pk_mul_f32 %s, %s, %s" % (vr(dst, 2), vr(src, 2), vr(src, 2)))
        a("v_pk_mul_f32 %s, %s, %s" % (vr(dst + 2, 2), vr(src + 2, 2), vr(src + 2, 2)))
        for i in (4, 8, 12):
            a("v_pk_fma_f32 %s, %s, %s, %s" % (vr(dst, 2), vr(src + i, 2), vr(src + i, 2), vr(dst, 2)))
            a("v_pk_fma_f32 %s, %s, %s, %s" % (vr(dst + 2, 2), vr(src + i + 2, 2), vr(src + i + 2, 2), vr(dst + 2, 2)))
        a("v_pk_add_f32 %s, %s, %s" % (vr(dst, 2), vr(dst, 2), vr(dst + 2, 2)))
        a("v_add_f32 v%d, v%d, v%d" % (dst, dst, dst + 1))
    def pksub(dst, src, m):
        for i in range(0, 16, 2):
            a("v_pk_add_f32 %s, %s, %s op_sel_hi:[1,0] neg_lo:[0,1] neg_hi:[0,1]" % (vr(dst + i, 2), vr(src + i, 2), vr(m, 2)))
    def pkmul(dst, src, m):
        for i in range(0, 16, 2): a("v_pk_mul_f32 %s, %s, %s op_sel_hi:[1,0]" % (vr(dst + i, 2), vr(src + i, 2), vr(m, 2)))
    def scale_from_var(r):
        round_bf16(a, r, r)
        a("v_add_f32 v%d, %s, v%d" % (r, f32(1e-5), r))
        round_bf16(a, r, r)
        a("v_sqrt_f32 v%d, v%d" % (r, r))
        a("s_nop 0")
        round_bf16(a, r, r)
        a("v_rcp_f32 v%d, v%d" % (r, r))
    inv = f32(1.0 / 448.0)
    S, S2, M, RS_, C2, D2 = 72, 76, 80, 82, 84, 86
    HB, HP = 7168, 912
    a("""
    v_lshl_add_u32 v5, v2, 4, v3
    v_bfe_u32 v88, v{LN}, 2, 2
    v_mul_u32_u24 v88, {HP}, v88
    v_lshrrev_b32 v89, 4, v{LN}
    v_lshl_add_u32 v88, v89, 5, v88
    v_and_b32 v89, 3, v{LN}
    v_lshl_add_u32 v88, v89, 3, v88
    s_lshl_b32 s20, s14, 7
    v_add_u32 v88, s20, v88
    v_lshlrev_b32 v92, 10, v{VH}
    v_lshl_add_u32 v92, v{VC}, 4, v92
    v_and_b32 v89, 7, v{LN}
    v_lshrrev_b32 v90, 3, v{LN}
    s_lshl_b32 s20, s14, 3
    v_add_u32 v90, s20, v90
    v_mul_u32_u24 v91, 896, v89
    v_lshl_add_u32 v91, v90, 4, v91
    v_lshlrev_b32 v89, 4, v89
    v_lshl_add_u32 v89, v90, 9, v89
    s_lshr_b32 s20, s15, 2
    s_mul_i32 s20, s20, 28672
    s_and_b32 s21, s15, 3
    s_lshl_b32 s21, s21, 7
    s_add_u32 s20, s20, s21
    s_lshl_b32 s21, s14, 18
    s_lshr_b32 s22, s15, 1
    s_lshl_b32 s22, s22, 11
    s_add_u32 s21, s21, s22
    s_and_b32 s22, s15, 1
    s_lshl_b32 s22, s22, 9
    s_add_u32 s21, s21, s22
    s_add_u32 s21, s21, {HTO}
    s_cmp_eq_u32 s14, 3
    s_cselect_b32 s23, 0x08000000, 0
    s_add_u32 s22, s21, {HG4}
    s_or_b32 s22, s22, s23
    s_add_u32 s24, s20, 16384
    s_or_b32 s24, s24, s23
    s_lshl_b32 s40, s39, 8
    s_add_u32 s40, s40, {SY}
    s_lshl_b32 s41, s38, 8
    s_add_u32 s41, s41, {SY}
    """.format(LN=LN, VH=VH, VC=VC, HP=HP, HG4=4 * HT_G, HTO=hex(HT_OFF), SY=hex(SYNC_OFF)))
    assert XN_OFF == 0 and HT_G == 1 << 18
    stamp(a, 1)
    a.wait(vm="x")
    stamp(a, 2)
    unpack(X, P)
    pksum(S, X)
    a("v_cndmask_b32 v%d, 0, v%d, s[58:59]" % (S, S))
    half_reduce(a, [S], [S + 1])
    a("v_mul_f32 v%d, %s, v%d" % (S, inv, S))
    round_bf16(a, M, S)
    pksub(X, X, M)
    pksq(S2, X)
    a("v_sub_f32 v%d, v%d, v%d" % (S, S, M))
    a("v_cndmask_b32 v%d, 0, v%d, s[58:59]" % (S2, S2))
    half_reduce(a, [S2], [S2 + 1])
    a("v_mul_f32 v%d, %s, v%d" % (S2, inv, S2))
    a("v_fma_f32 v%d, -v%d, v%d, v%d" % (S2, S, S, S2))
    a("v_max_f32 v%d, 0, v%d" % (S2, S2))
    a("v_mov_b32 v%d, v%d" % (RS_, S2))
    scale_from_var(RS_)
    a("s_nop 0")
    a("v_mul_f32 v%d, v%d, v%d" % (C2, S2, RS_))
    a("v_mul_f32 v%d, v%d, v%d" % (D2, S, RS_))
    a("v_mul_f32 v%d, v%d, v%d" % (C2, C2, RS_))
    round_bf16(a, D2, D2)
    pkmul(T, X, RS_)
    scale_from_var(C2)
    pack(P, T)
    a.ds("ds_write_b128 v3, v[8:11]")
    a.ds("ds_write_b128 v3, v[12:15] offset:16")
    a("v_mul_f32 v%d, v%d, v%d" % (D2, D2, C2))
    for i in range(0, 16, 2):
        a("v_pk_fma_f32 %s, %s, %s, %s op_sel_hi:[1,0,0] neg_lo:[0,0,1] neg_hi:[0,0,1]" % (vr(T + i, 2), vr(T + i, 2), vr(C2, 2), vr(D2, 2)))
    pack(X, T)
    a.ds("ds_write_b128 v5, v[16:19] offset:%d" % HB)
    a.ds("ds_write_b128 v5, v[20:23] offset:%d" % (HB + 16))
    stamp(a, 3)
    a.drain(vm=False)
    a("s_barrier")
    a.ds("ds_read_b64_tr_b16 v[28:29], v88 offset:%d" % HB, "h0")
    a.ds("ds_read_b64_tr_b16 v[30:31], v88 offset:%d" % (HB + 4 * HP), "h0")
    a.ds("ds_read_b128 v[36:39], v91", "x0")
    a.ds("ds_read_b64_tr_b16 v[32:33], v88 offset:%d" % (HB + 512), "h1")
    a.ds("ds_read_b64_tr_b16 v[34:35], v88 offset:%d" % (HB + 512 + 4 * HP), "h1")
    a.ds("ds_read_b128 v[40:43], v91 offset:512", "x1")
    a.wait(lg="h0"); a.vmem("buffer_store_dwordx4 v[28:31], v92, s[32:35], s21 offen sc1")
    FAKEX = E("FAKEX", 0)
    if not FAKEX: a.wait(lg="x0"); a.vmem("buffer_store_dwordx4 v[36:39], v89, s[32:35], s20 offen sc1")
    a.wait(lg="h1"); a.vmem("buffer_store_dwordx4 v[32:35], v92, s[32:35], s22 offen sc1")
    if not FAKEX: a.wait(lg="x1"); a.vmem("buffer_store_dwordx4 v[40:43], v89, s[32:35], s24 offen sc1")
    a.vmem("buffer_load_dword v%d, v%d, s[44:47], 0 offen sc1" % (VT, VZ), "ready")
    a("""
    s_lshl_b32 s36, s38, 2
    s_add_u32 s36, s36, s14
    s_mul_i32 s24, s36, 28672
    s_lshl_b32 s26, s14, 10
    s_add_u32 s25, s25, s26
    v_add_u32 v{VD}, 0x8000, v{VB}
    """.format(VB=VB, VD=VD))
    a.drain()
    stamp(a, 4)
    a("s_barrier")
    AQ, AK, AV = 0, 16, 32
    XF, WF, PH = 64, 176, 208
    WF1 = E("WFIRST", 6)
    cuts = [0, 6, 13, 20, 28]; rnds = [0, 3, 6, 9, 13]
    def wdma(r, tag):
        a("s_add_u32 m0, s26, %d" % (r * 4096))
        a("s_add_u32 s28, s25, %d" % (r * 4096))
        a.vmem("buffer_load_dwordx4 v%d, s[32:35], s28 offen sc1 lds" % VA, tag)
    rtag = lambda r: "wc%d" % max(c for c in range(4) if rnds[c] <= r)
    if not WF1:
        a("s_cmp_lg_u32 s14, 0")
        a("s_cbranch_scc1 A_GO")
    a("v_readfirstlane_b32 s61, v%d" % VT)
    a("s_cmp_lg_u32 s61, 0")
    a("s_cbranch_scc1 A_RDY")
    poll(a, DBG, "0", VZ, VT)
    a.label("A_RDY")
    a("s_mov_b32 s43, 1")
    a("s_cmp_lg_u32 s14, 0")
    a("s_cbranch_scc1 A_ARR")
    arrive_issue(a, "s41 offset:%d" % (SX_CNT * SL))
    a.drain(vm=False)
    a("s_cmp_eq_u32 s62, 15")
    a("s_cselect_b32 s43, 1, 0")
    a("s_cbranch_scc0 A_ARR")
    a("s_mov_b32 s62, 1")
    a("s_atomic_add s62, s[30:31], s41 offset:%d" % (SX_REL * SL))
    a("s_mov_b32 s20, %s" % hex(SYNC_OFF + SA_ROOT * SL))
    a("s_mov_b32 s63, 1")
    a("s_atomic_add s63, s[30:31], s20 glc")
    a.drain(vm=False)
    a("s_cmp_lg_u32 s63, 15")
    a("s_cbranch_scc1 A_ARR")
    a("s_atomic_add s62, s[28:29], 0x80")
    a.label("A_ARR")
    if WF1:
        a("s_lshl_b32 s20, s56, 8")
        a("s_add_u32 s20, s20, %s" % hex(SYNC_OFF + SW_REL * SL))
        poll(a, WS, "s20", VZ, VT, sleep=PSL)
        stamp(a, 6)
        a("s_setprio %d" % E("PRIO_W", 2))
        for r in range(WF1): wdma(r, rtag(r))
        a("s_setprio %d" % PRIO_A)
    a("s_cmp_lg_u32 s43, 0")
    a("s_cbranch_scc1 A_GO")
    a("s_add_u32 s21, s41, %d" % (SX_REL * SL))
    poll(a, WS, "s21", VZ, VT, sleep=PSL, keep=True)
    a.label("A_GO")
    a("s_barrier")
    stamp(a, 5)
    if E("FAKEA", 0) == 1: a("s_endpgm")
    def xload(k):
        if FAKEX and k == 0:
            a("s_lshl_b32 s24, s36, 12")
            a("s_add_u32 s24, s24, %s" % hex(HT_OFF))
        if k % 4 == 0 and k > 0: a("s_add_u32 s24, s24, %d" % (HT_G if FAKEX else 4096))
        a.vmem("buffer_load_dwordx4 %s, v%d, s[32:35], s24 offen offset:%d sc1" % (vr(XF + 4 * k, 4), VA, (k % 4) * 1024), "x%d" % k)
    XF1 = 0 if WF1 else E("XFIRST", 0)
    if not WF1:
        a("s_lshl_b32 s20, s56, 8")
        a("s_add_u32 s20, s20, %s" % hex(SYNC_OFF + SW_REL * SL))
        for k in range(XF1):
            if k == max(XF1 - 6, 0): flag_issue(a, WS, "s20", VZ, VT, "fw")
            xload(k)
        if XF1 == 0: flag_issue(a, WS, "s20", VZ, VT, "fw")
        flag_check(a, WS, "s20", VZ, VT, "fw", PSL)
        stamp(a, 6)
    seq = []
    for c in range(4):
        seq += [(lambda r=r, c=c: wdma(r, "wc%d" % c)) for r in range(max(rnds[c], WF1), rnds[c + 1])]
        seq += [(lambda k=k: xload(k)) for k in range(max(cuts[c], XF1), cuts[c + 1])]
    if TWO:
        a("s_sub_u32 s27, s25, s26")
        a("s_add_u32 s27, s27, %d" % WP_PHI)
        a("s_add_u32 s20, s20, %d" % ((SV_REL - SW_REL) * SL))
        seq += [(lambda i=i: a.vmem("buffer_load_dwordx4 %s, v%d, s[32:35], s27 offen offset:%d sc1" % (vr(PH + 4 * i, 4), VA, i * 1024), "ph")) for i in range(2)]
        if not E("WQMID", 1): seq += [lambda: flag_issue(a, WS, "s20", VZ, VT, "fv")]
    else: seq += [(lambda r=r: wdma(r, "wq")) for r in (18, 13, 14, 15, 16, 17)]
    for f in seq[:XPRE]: f()
    pend = seq[XPRE:]
    def lread(dst, off, tag, base=None):
        if off < 65536: a.ds("ds_read_b128 %s, v%d offset:%d" % (vr(dst, 4), VB, off), tag)
        else: a.ds("ds_read_b128 %s, v%d offset:%d" % (vr(dst, 4), VD, off - 32768), tag)
    def wread(k):
        b = WF + 8 * (k % 3)
        lread(b, k * 1792, "w%d" % k); lread(b + 4, k * 1792 + 896, "w%d" % k)
    for c in range(4):
        k0, k1 = cuts[c], cuts[c + 1]
        assert k1 * 1792 + 64 <= rnds[c + 1] * 4096
        assert sum(1 for t_ in a.issued if t_ == "wc%d" % c) == rnds[c + 1] - rnds[c]
        a.wait(vm="wc%d" % c)
        a("s_barrier")
        wread(k0); wread(k0 + 1)
        for k in range(k0, k1):
            if k + 2 < k1: wread(k + 2)
            assert "x%d" % k in a.issued
            a.wait(vm="x%d" % k, lg="w%d" % k)
            b = WF + 8 * (k % 3); x = vr(XF + 4 * k, 4)
            a("%s %s, %s, %s, %s" % (MF, vr(AK, 16), vr(b, 4), x, "0" if k == 0 else vr(AK, 16)))
            if pend and len(a.vm.ops) < ALOOK: pend.pop(0)()
            a("%s %s, %s, %s, %s" % (MF, vr(AV, 16), x, vr(b + 4, 4), "0" if k == 0 else vr(AV, 16)))
            while pend and len(a.vm.ops) < min(ALOOK, 12): pend.pop(0)()
            if pend and len(a.vm.ops) < ALOOK: pend.pop(0)()
    for f in pend: f()
    pend = []
    assert not pend
    if TWO:
        def wq_req():
            flag_check(a, WS, "s20", VZ, VT, "fv", PSL)
            for r in range(12, 19): wdma(r, "wq")
        if E("WQMID", 1):
            a.wait(vm="ph")
            flag_issue(a, WS, "s20", VZ, VT, "fv")
        else: wq_req()
        a("s_barrier")
    else:
        a.drain(lg=False)
        a("s_barrier")
        a("v_add_u32 v2, 0x8000, v%d" % VA)
        a.ds("ds_read_b128 %s, v2 offset:%d" % (vr(PH, 4), WP_PHI - 32768), "ph")
        a.ds("ds_read_b128 %s, v2 offset:%d" % (vr(PH + 4, 4), WP_PHI + 1024 - 32768), "ph")
    stamp(a, 7)
    PKK, PKV = 48, 56
    PP = 216; EP, EM = 16, 32; OUT = 176; S0 = 192; TA = S0 + 12
    a("""
    s_mov_b32 s56, 0
    s_mov_b32 s57, -1
    s_mov_b32 s37, {L2E}
    v_mul_u32_u24 v{t}, 136, v{VC}
    v_lshl_add_u32 v{t}, v{VH}, 3, v{t}
    s_mul_i32 s28, s14, 4352
    v_add_u32 v{t}, s28, v{t}
    s_lshl_b32 s28, s14, 11
    v_add_u32 v{u}, s28, v{VA}
    v_cmp_eq_u32 vcc, 28, v{VC}
    v_mov_b32 v{S0}, 0x3f803f80
    """.format(L2E=f32(1.4426950408889634), t=TA, u=TA + 1, VC=VC, VH=VH, VA=VA, S0=S0))
    for r in range(8): a("v_cvt_pk_bf16_f32 v%d, v%d, v%d" % (PKK + r, AK + 2 * r, AK + 2 * r + 1))
    a("v_cndmask_b32 v%d, 0, v%d, vcc" % (S0, S0))
    a.wait(lg="ph")
    a("%s %s, %s, %s, 0" % (MF, vr(PP, 16), vr(PH, 4), vr(PKK, 4)))
    a("%s %s, %s, %s, %s" % (MF, vr(PP, 16), vr(PH + 4, 4), vr(PKK + 4, 4), vr(PP, 16)))
    for r in range(8): a("v_cvt_pk_bf16_f32 v%d, v%d, v%d" % (PKV + r, AV + 2 * r, AV + 2 * r + 1))
    for r in range(8): a("v_cndmask_b32 v%d, v%d, v%d, s[58:59]" % (PKV + r, S0, PKV + r))
    a.ds("ds_write_b128 v%d, %s offset:17408" % (TA + 1, vr(PKV, 4)))
    a.ds("ds_write_b128 v%d, %s offset:%d" % (TA + 1, vr(PKV + 4, 4), 17408 + 1024))

    def softmax2(P, sink=None, mid=None):
        mx, mn, t0, t1, t2, t3 = S0, S0 + 1, S0 + 2, S0 + 3, S0 + 4, S0 + 5
        for op, m, t in (("max", mx, t0), ("min", mn, t1)):
            a("v_%s3_f32 v%d, v%d, v%d, v%d" % (op, t, P + 12, P + 13, P + 14))
            a("v_%s3_f32 v%d, v%d, v%d, v%d" % (op, m, P, P + 1, P + 2))
            a("v_%s_f32 v%d, v%d, v%d" % (op, t, t, P + 15))
            for i in range(3, 11, 2): a("v_%s3_f32 v%d, v%d, v%d, v%d" % (op, m, m, P + i, P + i + 1))
            a("v_cndmask_b32 v%d, v%d, v%d, s[56:57]" % (t, t, P))
            a("v_%s3_f32 v%d, v%d, v%d, v%d" % (op, m, m, P + 11, t))
        a("v_mov_b32 v%d, v%d" % (t0, mx))
        a("v_mov_b32 v%d, v%d" % (t1, mn))
        a("v_mov_b32 v%d, 0x7f800000" % t2)
        a("v_mov_b32 v%d, 0xff800000" % t3)
        a("v_permlane32_swap_b32 v%d, v%d" % (mx, t0))
        a("v_permlane32_swap_b32 v%d, v%d" % (mn, t1))
        a("s_nop 0")
        a("v_max_f32 v%d, v%d, v%d" % (mx, mx, t0))
        a("v_min_f32 v%d, v%d, v%d" % (mn, mn, t1))
        a("v_mul_f32 v%d, s37, v%d" % (mx, mx))
        a("v_mul_f32 v%d, s37, v%d" % (mn, mn))
        a("v_cndmask_b32 v%d, v%d, v%d, s[56:57]" % (t2, mx, t2))
        a("v_cndmask_b32 v%d, v%d, v%d, s[56:57]" % (t3, mn, t3))
        if mid: mid()
        for r in range(16):
            a("v_fma_f32 v%d, v%d, s37, -v%d" % (EP + r, P + r, mx if r < 12 else t2))
            a("v_fma_f32 v%d, -v%d, s37, v%d" % (EM + r, P + r, mn if r < 12 else t3))
        for r in range(16):
            a("v_exp_f32 v%d, v%d" % (EP + r, EP + r))
            a("v_exp_f32 v%d, v%d" % (EM + r, EM + r))
            if r == 2:
                a("v_add_f32 v%d, v%d, v%d" % (mx, EP, EP + 1))
                a("v_add_f32 v%d, v%d, v%d" % (mn, EM, EM + 1))
            if r > 2:
                a("v_add_f32 v%d, v%d, v%d" % (mx, mx, EP + r - 1))
                a("v_add_f32 v%d, v%d, v%d" % (mn, mn, EM + r - 1))
        a("v_add_f32 v%d, v%d, v%d" % (mx, mx, EP + 15))
        a("v_add_f32 v%d, v%d, v%d" % (mn, mn, EM + 15))
        a("v_mov_b32 v%d, v%d" % (t0, mx))
        a("v_mov_b32 v%d, v%d" % (t1, mn))
        a("s_nop 1")
        a("v_permlane32_swap_b32 v%d, v%d" % (mx, t0))
        a("v_permlane32_swap_b32 v%d, v%d" % (mn, t1))
        a("s_nop 0")
        a("v_add_f32 v%d, v%d, v%d" % (mx, mx, t0))
        a("v_add_f32 v%d, v%d, v%d" % (mn, mn, t1))
        a("v_rcp_f32 v%d, v%d" % (mx, mx))
        a("v_rcp_f32 v%d, v%d" % (mn, mn))
        for e, (E_, m) in enumerate(((EP, mx), (EM, mn))):
            for q in range(4):
                for r in range(4): a("v_mul_f32 v%d, v%d, v%d" % (E_ + 4 * q + r, E_ + 4 * q + r, m))
                for r in range(2): a("v_cvt_pk_bf16_f32 v%d, v%d, v%d" % (OUT + 8 * e + 2 * q + r, E_ + 4 * q + 2 * r, E_ + 4 * q + 2 * r + 1))
                if sink: sink(e, q)

    softmax2(PP, lambda e, q: a.ds("ds_write_b64 v%d, %s offset:%d" % (TA, vr(OUT + 8 * e + 2 * q, 2), e * 64 + q * 16)), mid=wq_req if E("WQMID", 1) == 1 else None)
    a("""
    v_lshlrev_b32 v{t}, 2, v{VH}
    v_bfe_u32 v{u}, v{LN}, 2, 2
    v_add_u32 v{t}, v{t}, v{u}
    v_mul_u32_u24 v{t}, 136, v{t}
    v_bfe_u32 v{u}, v{LN}, 4, 1
    v_lshl_add_u32 v{t}, v{u}, 5, v{t}
    v_and_b32 v{u}, 3, v{LN}
    v_lshl_add_u32 v{t}, v{u}, 3, v{t}
    s_lshl_b32 s28, s14, 6
    v_add_u32 v{t}, s28, v{t}
    s_lshl_b32 s42, s39, 16
    s_add_u32 s42, s42, {KVP}
    s_lshl_b32 s28, s38, 10
    s_lshl_b32 s29, s14, 15
    s_add_u32 s28, s28, s29
    s_add_u32 s28, s28, s42
    s_add_u32 s29, s28, 16384
    """.format(t=TA + 2, u=TA + 3, LN=LN, VH=VH, KVP=hex(KVP_OFF)))
    QBAR = E("QBAR", 0)
    a.drain(vm=not QBAR)
    a("s_barrier")
    stamp(a, 8)
    a("s_cmp_ge_u32 s14, 2")
    a("s_cbranch_scc1 A_QPASS")
    KVA = 232
    for w in range(4):
        for i in range(2):
            n_ = 2 * w + i
            a.ds("ds_read_b64_tr_b16 %s, v%d offset:%d" % (vr(4 * n_, 2), TA + 2, w * 4352 + (16 * i) * 136), "kv%d" % n_)
            a.ds("ds_read_b64_tr_b16 %s, v%d offset:%d" % (vr(4 * n_ + 2, 2), TA + 2, w * 4352 + (16 * i + 8) * 136), "kv%d" % n_)
            a.ds("ds_read_b128 %s, v%d offset:%d" % (vr(32 + 4 * n_, 4), VA, 17408 + w * 2048 + i * 1024), "kv%d" % n_)
    for n_ in range(8):
        a.wait(lg="kv%d" % n_)
        a("%s %s, %s, %s, %s" % (MF, vr(KVA, 16), vr(4 * n_, 4), vr(32 + 4 * n_, 4), "0" if n_ == 0 else vr(KVA, 16)))
    a("s_nop 11")
    for i in range(2):
        for r in range(4): a("v_cvt_pk_bf16_f32 v%d, v%d, v%d" % (PKV + 4 * i + r, KVA + 8 * i + 2 * r, KVA + 8 * i + 2 * r + 1))
        a("buffer_store_dwordx4 %s, v%d, s[32:35], %s offen sc1" % (vr(PKV + 4 * i, 4), VA, "s29" if i else "s28"))
    if QBAR:
        a("s_waitcnt vmcnt(2)")
        a("s_branch A_QB")
    a.label("A_QPASS")
    if E("WQMID", 1) == 2:
        assert not QBAR
        a("s_setprio %d" % E("PRIO_WQ", 0))
        wq_req()
        a.drain(lg=False)
        a("s_barrier")
    if QBAR:
        a.drain(lg=False)
        a.label("A_QB")
        a("s_barrier")
    if E("FAKEA", 0) == 2: a("s_endpgm")
    a("s_setprio %d" % PRIO_Q)
    a("s_mov_b32 s62, 0")
    QB = 16
    def qread(k): lread(QB + 4 * (k % 8), WP_Q + k * 896, "q%d" % k)
    for k in range(4): qread(k)
    for k in range(28):
        if k + 4 < 28: qread(k + 4)
        a.wait(lg="q%d" % k)
        a("%s %s, %s, %s, %s" % (MF, vr(AQ, 16), vr(QB + 4 * (k % 8), 4), vr(XF + 4 * k, 4), "0" if k == 0 else vr(AQ, 16)))
        if k == E("S1K", 13):
            a("s_cmp_ge_u32 s14, 2")
            a("s_cbranch_scc1 A_NOARR")
            a.drain(lg=False)
            arrive_issue(a, "s40 offset:%d" % (S1_CNT * SL))
            a.label("A_NOARR")
    arrive_finish(a, 31, ["s40 offset:%d" % (S1_REL * SL)], "A_S1_NR")
    a.label("A_S1_NR")
    a("s_nop 9")
    for r in range(8): a("v_cvt_pk_bf16_f32 v%d, v%d, v%d" % (PKK + r, AQ + 2 * r, AQ + 2 * r + 1))
    a("s_nop 1")
    a("%s %s, %s, %s, 0" % (MF, vr(PP, 16), vr(PH, 4), vr(PKK, 4)))
    a("%s %s, %s, %s, %s" % (MF, vr(PP, 16), vr(PH + 4, 4), vr(PKK + 4, 4), vr(PP, 16)))
    a("s_nop 11")
    softmax2(PP)
    stamp(a, 9)
    SEL, KS, KVB, OD = 48, 0, 16, 32
    a("""
    s_setprio {PRIO}
    v_and_b32 v52, 3, v{VC}
    v_bfe_u32 v53, v{VC}, 3, 1
    v_lshl_add_u32 v52, v53, 2, v52
    v_and_b32 v53, 1, v52
    v_lshlrev_b32 v53, 4, v53
    v_mov_b32 v54, 0x3f80
    v_lshlrev_b32 v53, v53, v54
    v_lshrrev_b32 v52, 1, v52
    v_bfe_u32 v54, v{VC}, 2, 1
    v_xor_b32 v54, v54, v{VH}
    v_lshrrev_b32 v55, 4, v{VC}
    v_or_b32 v54, v54, v55
    v_lshl_add_u32 v52, v54, 2, v52
    s_lshl_b32 s28, s14, 14
    s_add_u32 s28, s28, s42
    s_add_u32 s41, s40, {REL}
    s_lshl_b32 s29, s14, 10
    v_add_u32 v55, s29, v{VA}
    """.format(PRIO=PRIO_K, VC=VC, VH=VH, VA=VA, REL=S1_REL * SL))
    for d in range(4):
        a("v_cmp_eq_u32 vcc, %d, v52" % d)
        a("s_nop 1")
        a("v_cndmask_b32 v%d, 0, v53, vcc" % (SEL + d))
    a("s_cmp_lg_u32 s14, 3")
    a("s_cbranch_scc1 A_S1_OK")
    poll(a, WS, "s41", VZ, VT, sleep=PSL)
    a.label("A_S1_OK")
    a("s_barrier")
    stamp(a, 10)
    for m in range(16):
        if E("FAKEG", 0) and m >= 4: continue
        if m % 4 == 0 and m: a("s_add_u32 s28, s28, 4096")
        a.vmem("buffer_load_dwordx4 %s, v%d, s[32:35], s28 offen offset:%d sc1" % (vr(64 + 4 * m, 4), VA, (m % 4) * 1024), "p%d" % m)
    a("""
    s_lshl_b32 s28, s36, 15
    s_lshl_b32 s29, s39, 11
    s_add_u32 s28, s28, s29
    s_add_u32 s28, s28, {OFO}
    s_lshr_b32 s40, s36, 1
    s_lshl_b32 s40, s40, 8
    s_add_u32 s40, s40, {SY}
    """.format(OFO=hex(OF_OFF), SY=hex(SYNC_OFF)))
    for m in range(16):
        a.wait(vm="p%d" % m)
        a("%s %s, %s, %s, %s" % (MF, vr(KS, 16), vr(SEL, 4), vr(64 + 4 * m, 4), "0" if m == 0 else vr(KS, 16)))
    a("s_nop 11")
    for r in range(4): a("v_cvt_pk_bf16_f32 v%d, v%d, v%d" % (KVB + r, KS + 2 * r, KS + 2 * r + 1))
    a.ds("ds_write_b128 v55, %s" % vr(KVB, 4))
    a.drain(vm=False)
    a("s_barrier")
    for n_ in range(4): a.ds("ds_read_b128 %s, v%d offset:%d" % (vr(KVB + 4 * n_, 4), VA, n_ * 1024), "kvl%d" % n_)
    for n_ in range(4):
        a.wait(lg="kvl%d" % n_)
        a("%s %s, %s, %s, %s" % (MF, vr(OD, 16), vr(KVB + 4 * n_, 4), vr(OUT + 4 * n_, 4), "0" if n_ == 0 else vr(OD, 16)))
    a("""
    s_nop 11
    v_mov_b32 v0, v{D12}
    v_mov_b32 v2, v{D12}
    s_nop 1
    v_permlane32_swap_b32 v0, v2
    s_nop 0
    v_add_f32 v2, {EPS}, v2
    v_rcp_f32 v2, v2
    s_nop 0
    """.format(D12=OD + 12, EPS=f32(1e-6)))
    for i in range(2):
        for r in range(8): a("v_mul_f32 v%d, v%d, v2" % (OD + 8 * i + r, OD + 8 * i + r))
        for r in range(4): a("v_cvt_pk_bf16_f32 v%d, v%d, v%d" % (KVB + 4 * i + r, OD + 8 * i + 2 * r, OD + 8 * i + 2 * r + 1))
        a.vmem("buffer_store_dwordx4 %s, v%d, s[32:35], s28 offen offset:%d sc1" % (vr(KVB + 4 * i, 4), VA, i * 1024))
    a.drain(lg=False)
    arrive_issue(a, "s40 offset:%d" % (S2_CNT * SL))
    arrive_finish(a, 31, ["s40 offset:%d" % (S2_REL * SL)], "A_FIN")
    a.label("A_FIN")
    stamp_flush(a, 11, 4, "A")
    a("s_endpgm")

class G:
    ACC = 0; B = 64; F = 64 + 8 * NB
    W0 = 232; W1 = 233; FA = 234; FB = 235; LA = 236; LB = 237
    LN = 238; L16 = 239; RES = 240
    VX = 248; VB2 = 249; VZ = 250; VT = 251; T0 = 252; T1 = 253; T2 = 254
assert G.F + 8 * NF <= 232
SLDS = 50
SJ = [6, 7, 8, 9, 10, 11, 48, 49]
SC = [51, 15, 59, 3]

def g_waddr(a, RS, scol):
    a("""
    v_lshrrev_b32 v{T0}, 3, v{L}
    v_mul_u32_u24 v{W0}, {RS}, v{T0}
    v_lshrrev_b32 v{T1}, 2, v{L}
    v_and_b32 v{T1}, 4, v{T1}
    v_and_b32 v{T2}, 7, v{L}
    v_xor_b32 v{T1}, v{T1}, v{T2}
    v_lshl_add_u32 v{W0}, v{T1}, 4, v{W0}
    v_add_u32 v{W0}, {scol}, v{W0}
    v_add_u32 v{W1}, {RS8}, v{W0}
    """.format(T0=G.T0, T1=G.T1, T2=G.T2, L=G.LN, W0=G.W0, W1=G.W1, RS=RS, RS8=8 * RS, scol=scol))
def g_laddr(a, perm2):
    a("""
    v_bfe_u32 v{T0}, v{L}, 4, 1
    v_lshrrev_b32 v{T1}, 5, v{L}
    v_lshlrev_b32 v{LA}, {HS}, v{T1}
    v_lshl_add_u32 v{LA}, v{T0}, 5, v{LA}
    v_bfe_u32 v{T1}, v{L}, 2, 2
    v_lshl_add_u32 v{LA}, v{T1}, 7, v{LA}
    v_lshrrev_b32 v{T1}, 1, v{T1}
    v_lshl_add_u32 v{LA}, v{T1}, 6, v{LA}
    v_and_b32 v{T1}, 3, v{L}
    v_lshl_add_u32 v{LA}, v{T1}, 3, v{LA}
    s_lshl_b32 s36, s14, 5
    s_and_b32 s36, s36, 64
    v_xor_b32 v{LA}, s36, v{LA}
    v_add_u32 v{LA}, s{SLDS}, v{LA}
    v_xor_b32 v{LB}, 64, v{LA}
    """.format(T0=G.T0, T1=G.T1, L=G.LN, LA=G.LA, LB=G.LB, HS=(9 if perm2 else 10), SLDS=SLDS))

class Stream:
    def __init__(self, a, name, srdw, RS, NK, perm2, pol, slots, nb):
        self.nb = nb
        self.fb = {}; self.nf = 0; self.ffree = None; self.ring = [G.F + 8 * i for i in range(NF)]
        self.a = a; self.n = name; self.srd = srdw; self.RS = RS; self.NK = NK; self.perm2 = perm2; self.pol = pol
        o = self.order(); first = [p for p in range(NK) if o[p][0] == 0]
        self.dorder = first + [p for p in range(NK) if p not in first]
        assert sorted(self.dorder[:self.nb]) == list(range(self.nb)) and self.dorder[self.nb:] == list(range(self.nb, NK))
        self.free = [(s, None) for s in slots]
        self.slot = {}; self.nd = 0; self.nr = 0
    def can_dma(self): return self.nd < self.NK and len(self.free) > 0
    def order(self):
        ng = self.NK // 4; o = [(j, 0) for j in range(min(LEAD, ng))]
        for j in range(ng):
            if j + LEAD < ng: o.append((j + LEAD, 0))
            o += [(j, 1), (j, 2), (j, 3)]
        if LEAD == 0: o = [(j, r) for j in range(ng) for r in range(4)]
        assert len(o) == self.NK
        return o
    def tstep(self, p, dst):
        j, rel = self.order()[p]
        if self.n == "b" and not ROT2: self.a("s_add_u32 %s, s%d, %d" % (dst, SC[rel], 16 * j))
        else: self.a("s_add_u32 %s, s%d, s%d" % (dst, SJ[j], SC[rel]))
    def dma_parts(self):
        a = self.a; p = self.dorder[self.nd]; self.nd += 1
        sl, tag = self.free.pop(0); self.slot[p] = sl
        def p0():
            if tag: a.wait(lg=tag)
            self.tstep(p, "s58")
            a("s_add_u32 m0, s%d, %d" % (SLDS, sl * 2048))
            a("s_mul_i32 s58, s58, %d" % (16 * self.RS))
            a.vmem("buffer_load_dwordx4 v%d, s[%d:%d], s58 offen %s lds" % (G.W0, self.srd, self.srd + 3, self.pol), "%sd%d" % (self.n, p))
            a("s_add_u32 m0, s%d, %d" % (SLDS, sl * 2048 + 1024))
        def p1():
            a("s_nop 0")
            a.vmem("buffer_load_dwordx4 v%d, s[%d:%d], s58 offen %s lds" % (G.W1, self.srd, self.srd + 3, self.pol), "%sd%d" % (self.n, p))
        return [p0, p1]
    def dma(self):
        for f in self.dma_parts(): f()
    def read_parts(self):
        a = self.a; p = self.dorder[self.nr]; self.nr += 1
        assert p in self.slot
        sl = self.slot[p]; b = G.B + 8 * (p % self.nb); io = 1024 if self.perm2 else 512
        self.free.append((sl, "%sr%d" % (self.n, p)))
        def part(u):
            def f():
                a.wait(vm="%sd%d" % (self.n, p))
                for i in range(2):
                    a.ds("ds_read_b64_tr_b16 %s, v%d offset:%d" % (vr(b + 4 * u + 2 * i, 2), G.LA + u, sl * 2048 + i * io), "%sr%d" % (self.n, p))
            return f
        return [part(0), part(1)]
    def read(self):
        for f in self.read_parts(): f()
    def inflight(self):
        seen = []
        for t in self.a.vm.ops:
            if t and t.startswith(self.n + "d") and t not in seen: seen.append(t)
        return seen
    def pump(self, ahead):
        did = False
        while self.can_dma() and len(self.inflight()) < ahead: self.dma(); did = True
        if self.nr < self.nb and self.nr < self.nd: self.read(); did = True
        elif self.can_dma():
            self.a.wait(vm=self.inflight()[0]); did = True
        return did
    def tables(self, srot, ssh, part=None):
        a = self.a; ng = self.NK // 4
        if part != 0:
            a("s_lshl_b32 s%d, %s, 4" % (SJ[0], srot))
            for j in range(1, 7):
                a("s_add_u32 s%d, s%d, 16" % (SJ[j], SJ[j - 1]))
                a("s_cmp_ge_u32 s%d, 112" % SJ[j])
                a("s_cselect_b32 s%d, 0, s%d" % (SJ[j], SJ[j]))
            a("s_movk_i32 s%d, 112" % SJ[7])
        if part != 1:
            a("s_lshl_b32 s61, %s, 2" % ssh)
            for r in range(4):
                a("s_add_u32 s%d, s61, %d" % (SC[r], 4 * r))
                a("s_and_b32 s%d, s%d, 12" % (SC[r], SC[r]))
                a("s_add_u32 s%d, s%d, s14" % (SC[r], SC[r]))
    def freg(self, t): return self.fb.get(t, self.ring[t % len(self.ring)])
    def fnext(self, t, srdf, maxn):
        out = []
        while self.nf < self.NK and len(out) < 2 * maxn and self.nf - t <= FLOOK:
            c = [x for x in self.ffree if x[0] < t]
            if not c: break
            self.ffree.remove(c[0]); self.fb[self.nf] = c[0][1]
            self.ffree.append((self.nf, c[0][1]))
            out += self.fload_parts(self.nf, srdf); self.nf += 1
        return out
    def fload_parts(self, t, srdf):
        a = self.a; f = self.freg(t)
        def p0():
            self.tstep(t, "s60")
            a("s_lshl_b32 s60, s60, 11")
            a.vmem("buffer_load_dwordx4 %s, v%d, s[%d:%d], s60 offen sc1" % (vr(f, 4), G.FA, srdf, srdf + 3), "%sf%d" % (self.n, t))
        def p1():
            a.vmem("buffer_load_dwordx4 %s, v%d, s[%d:%d], s60 offen sc1" % (vr(f + 4, 4), G.FB, srdf, srdf + 3), "%sf%d" % (self.n, t))
        return [p0, p1]
    def fload(self, t, srdf):
        for f in self.fload_parts(t, srdf): f()
    def step(self, t, weights_are_A, fill):
        a = self.a; b = G.B + 8 * (t % self.nb); f = self.freg(t)
        a.wait(vm="%sf%d" % (self.n, t), lg="%sr%d" % (self.n, t))
        gaps = [[], [], [], []]
        for i, p in enumerate(fill): gaps[min(3, i * 4 // max(4, len(fill)))].append(p)
        for n in range(4):
            uw, uf = n >> 1, n & 1
            acc = vr(G.ACC + 16 * n, 16)
            W, F = vr(b + 4 * uw, 4), vr(f + 4 * uf, 4)
            A_, B_ = (W, F) if weights_are_A else (F, W)
            a("%s %s, %s, %s, %s" % (MF, acc, A_, B_, "0" if (t == 0 and n > 0) else acc))
            for p in gaps[n]: p()
    def loop_fill(self, t, srdf):
        fill = []
        if self.ffree is not None: fill += self.fnext(t, srdf, 2)
        elif t + len(self.ring) - 1 < self.NK: fill += self.fload_parts(t + len(self.ring) - 1, srdf)
        dm = self.dma_parts() if self.can_dma() else []
        if t >= 1 and self.nr < self.NK and self.nr - self.nb <= t - 1: fill += self.read_parts()
        return fill + dm

def g_reduce_write(a, mid=None, pre=None, tail=None):
    a("v_add_u32 v%d, s%d, v%d" % (G.VT, SLDS, G.L16))
    def wr(t, q): a.ds("ds_write_b128 v%d, %s offset:%d" % (G.VT, vr(G.ACC + 16 * t + 4 * q, 4), 8192 + (t - 1) * 4096 + q * 1024), "rw")
    if tail:
        prev = None
        for n in (1, 2, 3, 0):
            acc = vr(G.ACC + 16 * n, 16); qs = [0, 1, 2, 3] if prev else []
            for i, pick in enumerate(tail):
                A_, B_ = pick(n)
                a("%s %s, %s, %s, %s" % (MF, acc, A_, B_, acc))
                if qs and i == 0: a("s_nop 10")
                for _ in range(1 if i == 0 else 2):
                    if qs: wr(prev, qs.pop(0))
            while qs: wr(prev, qs.pop(0))
            prev = n
    else:
        a("s_nop 10")
        for t in range(1, 4):
            for q in range(4): wr(t, q)
    for t in range(1, 4):
        a("s_xor_b32 s60, s14, %d" % t)
        a("s_mul_i32 s60, s60, %d" % (NS * 2048))
        a("v_add_u32 v%d, s60, v%d" % (G.T0 + t - 1, G.L16))
    if pre: pre()
    a.wait(lg="rw")
    a("s_barrier")
    if mid: mid()
    for t in range(1, 4):
        for q in range(4):
            a.ds("ds_read_b128 %s, v%d offset:%d" % (vr(G.ACC + 16 * t + 4 * q, 4), G.T0 + t - 1, 8192 + (t - 1) * 4096 + q * 1024), "rr%d" % t)
def v2(a, op, d, x, y, n, pk):
    if pk:
        for r in range(0, n, 2): a("v_pk_%s_f32 %s, %s, %s" % (op, vr(d + r, 2), vr(x + r, 2), vr(y + r, 2)))
    else:
        for r in range(n): a("v_%s_f32 v%d, v%d, v%d" % (op, d + r, x + r, y + r))
def g_reduce_add(a, pk=True):
    for t in range(1, 4):
        a.wait(lg="rr%d" % t)
        v2(a, "add", 0, 0, 16 * t, 16, pk)

def role_g(a):
    a.vm.clear(); a.lg.clear()
    a.label("ROLE_G")
    if ONLYA: a("s_endpgm")
    a("""
    v_and_b32 v{LN}, 63, v0
    s_mul_i32 s61, s57, 37
    s_lshr_b32 s61, s61, 8
    s_lshl_b32 s66, s56, 2
    s_add_u32 s66, s66, s61
    s_mul_i32 s61, s61, 7
    s_sub_u32 s64, s57, s61
    s_mul_i32 s{SLDS}, s14, {WB}
    s_lshl_b32 s67, s66, 7
    s_lshr_b32 s60, s14, 1
    s_lshl_b32 s60, s60, 6
    s_add_u32 s60, s60, s67
    v_lshrrev_b32 v{VT}, 5, v{LN}
    v_lshlrev_b32 v{VT}, 3, v{VT}
    """.format(LN=G.LN, SLDS=SLDS, WB=NS * 2048, VT=G.VT))
    s1 = Stream(a, "a", 16, 3584, NK1, False, os.environ.get("W1POL0", "nt"), list(range(NS)), NB)
    s2 = Stream(a, "b", 24, 4096, 28, True, W2POL, list(range(4)), NB2)
    def burst(st):
        for p in range(4):
            if len(st.inflight()) >= AHEAD0: a.wait(vm=st.inflight()[0])
            st.dma()
        if len(st.inflight()) >= AHEAD0: a.wait(vm=st.inflight()[0])
    g_waddr(a, 3584, "s67")
    s1.tables("s64", "s66", part=0)
    a("s_mov_b32 s18, %d" % (2048 * 3584))
    a("s_mov_b32 s19, 0x20000")
    a("s_waitcnt lgkmcnt(0)")
    a("s_mov_b32 s16, s40")
    a("s_and_b32 s17, s41, 0xffff")
    a("s_lshl_b32 s%d, s64, 4" % SJ[0])
    a("s_cmp_eq_u32 s56, 7")
    if ONLY2: a("s_branch G_SETUP")
    a("s_cbranch_scc1 G_SETUP")
    if GWAIT:
        a("global_load_dword v%d, v%d, s[42:43] nt" % (G.T0, G.VT))
        a("s_waitcnt vmcnt(0)")
    burst(s1)
    a.label("G_SETUP")
    stamp(a, 1)
    srd(a, 36, 42, str(1792 * 2))
    for q in range(4):
        a.vmem("buffer_load_dwordx2 %s, v%d, s[36:39], s60 offen offset:%d nt" % (vr(G.F + 2 * q, 2), G.VT, 16 * q), "b1")
    ws_base(a)
    srd(a, WS, 30, hex(WS_USED))
    a("""
    s_setprio {PRIO}
    v_lshlrev_b32 v{L16}, 4, v{LN}
    v_mov_b32 v{VZ}, 0
    s_lshr_b32 s60, s14, 1
    s_lshl_b32 s60, s60, 5
    s_lshl_b32 s61, s66, 6
    s_add_u32 s60, s60, s61
    v_and_b32 v{T0}, 31, v{LN}
    v_add_u32 v{T0}, s60, v{T0}
    v_mul_u32_u24 v{VX}, 896, v{T0}
    v_lshlrev_b32 v{T1}, 1, v{VT}
    s_lshl_b32 s60, s64, 7
    s_and_b32 s61, s14, 1
    s_lshl_b32 s61, s61, 6
    s_add_u32 s60, s60, s61
    v_add3_u32 v{VX}, v{VX}, v{T1}, s60
    v_lshlrev_b32 v{VB2}, 1, v{T0}
    s_and_b32 s60, s14, 1
    s_lshl_b32 s60, s60, 10
    v_add_u32 v{FA}, s60, v{L16}
    v_xor_b32 v{FB}, 0x400, v{FA}
    s_lshl_b32 s68, s64, 18
    s_add_u32 s68, s68, {HTO}
    s_mul_i32 s60, s64, {UG}
    s_add_u32 s60, s60, {UPO}
    """.format(PRIO=PRIO_G, L16=G.L16, LN=G.LN, VZ=G.VZ, T0=G.T0, T1=G.T1, VT=G.VT, VX=G.VX, VB2=G.VB2,
               FA=G.FA, FB=G.FB, HTO=hex(HT_OFF), UG=UP_G, UPO=hex(UP_OFF)))
    srd(a, 40, 30, str(UP_G), add="s60")
    srd(a, DBG, 28, "256")
    srd(a, 24, 52, str(1792 * 4096))
    srd(a, 20, 30, str(HT_G), add="s68")
    def sw2():
        g_waddr(a, 4096, "s67")
        g_laddr(a, True)
    def res_loads():
        for i in range(2):
            a.vmem("global_load_dwordx4 %s, v%d, s[4:5] offset:%d" % (vr(G.RES + 4 * i, 4), G.VX, 32 * i), "res")
    a.vmem("global_load_ushort v%d, v%d, s[54:55] nt" % (G.VB2, G.VB2), "b1")
    a("s_movk_i32 s68, 0x80")
    if not ONLY2:
        a("s_cmp_lt_u32 s56, 7")
        a("s_cbranch_scc1 G_TILE1")
    sv = list(a.vm.ops)
    if HELP and not ONLY2:
        a.vm.clear(); a.lg.clear()
        a("s_setprio %d" % E("PRIO_H", 3))
        a("s_lshl_b32 s36, s57, 7")
        g_waddr(a, 3584, "s36")
        a("s_lshl_b32 s58, s14, 2")
        a("s_add_u32 s58, s58, 112")
        a("s_mul_i32 s58, s58, %d" % (16 * 3584))
        a("s_lshl_b32 s59, s14, 13")
        for i in range(4):
            a("s_add_u32 m0, s59, %d" % (i * 2048))
            a("s_nop 0")
            a.vmem("buffer_load_dwordx4 v%d, s[16:19], s58 offen nt lds" % G.W0)
            a("s_add_u32 m0, s59, %d" % (i * 2048 + 1024))
            a("s_nop 0")
            a.vmem("buffer_load_dwordx4 v%d, s[16:19], s58 offen nt lds" % G.W1)
            a("s_add_u32 s58, s58, %d" % (16 * 3584))
        g_laddr(a, False)
        a("v_subrev_u32 v%d, s%d, v%d" % (G.LA, SLDS, G.LA))
        a("v_xor_b32 v%d, s36, v%d" % (G.LA, G.LA))
        a("v_xor_b32 v%d, 64, v%d" % (G.LB, G.LA))
        a.drain()
        a("s_barrier")
        for kk in range(16):
            for u in range(2):
                for i in range(2):
                    a.ds("ds_read_b64_tr_b16 %s, v%d offset:%d" % (vr(G.B + 8 * kk + 4 * u + 2 * i, 2), G.LA + u, kk * 2048 + i * 512))
        poll(a, DBG, "s68", G.VZ, G.VT, sleep=2)
        a.drain()
        stamp(a, 5)
        a("s_lshl_b32 s58, s14, 18")
        a("s_add_u32 s58, s58, %s" % hex(HT_OFF + 112 * 2048))
        a("s_mul_i32 s48, s57, 7")
        a("s_add_u32 s48, s48, s14")
        a("s_lshl_b32 s48, s48, 13")
        a("s_add_u32 s48, s48, %s" % hex(PART_OFF))
        a("s_cmp_eq_u32 s14, 3")
        a("s_cselect_b32 s49, 0x08000000, 0")
        def hload(kk):
            f = G.F + 8 * (kk % NF)
            if kk == 16:
                a("s_add_u32 s58, s58, %d" % (4 * HT_G - 7 * 4096))
                a("s_or_b32 s58, s58, s49")
            elif kk % 2 == 0 and kk: a("s_add_u32 s58, s58, 4096")
            for u in range(2):
                a.vmem("buffer_load_dwordx4 %s, v%d, s[32:35], s58 offen offset:%d sc1" % (vr(f + 4 * u, 4), G.L16, (kk % 2) * 2048 + u * 1024), "h%d" % kk)
        for kk in range(NF - 1): hload(kk)
        for kk in range(32):
            a.wait(vm="h%d" % kk)
            f = G.F + 8 * (kk % NF)
            for n in range(4):
                acc = vr(16 * n, 16)
                a("%s %s, %s, %s, %s" % (MF, acc, vr(G.B + 8 * (kk % 16) + 4 * (n >> 1), 4), vr(f + 4 * (n & 1), 4), "0" if kk % 16 == 0 else acc))
                if n == 0 and kk + NF - 1 < 32: hload(kk + NF - 1)
            if kk % 16 == 15:
                a("s_add_u32 s59, s48, 4096")
                a("s_nop 8")
                for n in range(8):
                    for r in range(4): a("v_cvt_pk_bf16_f32 v%d, v%d, v%d" % (4 * n + r, 8 * n + 2 * r, 8 * n + 2 * r + 1))
                    a.vmem("buffer_store_dwordx4 %s, v%d, s[32:35], %s offen offset:%d sc1" % (vr(4 * n, 4), G.L16, "s59" if n >= 4 else "s48", (n % 4) * 1024))
                if kk == 15:
                    a("s_add_u32 s48, s48, %d" % (4 * 8192))
                    a("s_cmp_eq_u32 s14, 3")
                    a("s_cbranch_scc1 H_FIN")
                    stamp(a, 6)
        a.label("H_FIN")
        a.drain()
        a("s_barrier")
        a("s_cmp_lg_u32 s14, 0")
        a("s_cbranch_scc1 H_DONE")
        a("s_lshl_b32 s58, s57, 8")
        a("s_add_u32 s58, s58, %s" % hex(SYNC_OFF + SH_REL * SL))
        arrive(a, "s58")
        a.label("H_DONE")
        a("s_setprio %d" % PRIO_G)
    MROW = E("MROW", 896)
    a.vm.clear(); a.lg.clear()
    poll(a, DBG, "s68", G.VZ, G.VT, sleep=8)
    if MROW < 1792 and not (ONLY2 or ONLYG):
        a("s_setprio %d" % E("PRIO_M", 0))
        a("s_lshl_b32 s58, s57, 2")
        a("s_add_u32 s58, s58, s14")
        a("s_lshl_b32 s58, s58, 10")
        a("s_add_u32 s58, s58, %d" % (MROW * 4096))
        a.label("M_W2")
        for i in range(4):
            a("s_waitcnt vmcnt(%d)" % (E("MDEPTH", 8) - 1))
            a("buffer_load_dwordx4 %s, v%d, s[24:27], s58 offen" % (vr(G.F + 8 + 4 * i, 4), G.L16))
            a("s_add_u32 s58, s58, %d" % (112 * 1024))
        a("s_cmp_lt_u32 s58, %d" % (1792 * 4096))
        a("s_cbranch_scc1 M_W2")
    a("s_setprio %d" % E("PRIO_7", 1))
    a("s_mov_b32 s69, %s" % hex(SYNC_OFF + ((SV_REL if TWO else SW_REL) + 7) * SL))
    poll(a, WS, "s69", G.VZ, G.VT, sleep=8)
    for i in range(7, 9): stamp(a, i)
    sw2()
    s2.tables("s64", "s66")
    a("s_mov_b32 s65, 1")
    a("s_branch G_JOIN")
    a.vm.ops = sv; a.lg.clear()
    a.label("G_TILE1")
    s1.tables("s64", "s66", part=1)
    g_laddr(a, False)
    if RESEARLY: res_loads()
    if E("BDRAIN", 1): a.drain(lg=False)
    else: a.wait(vm="ad%d" % s1.dorder[E("BWAIT", 1)])
    s1.pol = W1POL2
    stamp(a, 2)
    X16 = E("X16", 0) and not ONLYG
    if X16:
        while s1.nd < NB + NS - 8: s1.pump(AHEAD)
        flag_issue(a, DBG, "0", G.VZ, G.VT, "fr")
        a("v_lshlrev_b32 v%d, 8, v%d" % (G.T0, G.LN))
        a("s_mov_b32 s69, %s" % hex(SYNC_OFF + SX_REL * SL))
    while s1.nd < NB + NS - 2: s1.pump(AHEAD)
    def x16_load(tag):
        a("s_mov_b64 exec, 0xffff")
        a.vmem("buffer_load_dword v%d, v%d, s[32:35], s69 offen sc1" % (G.VT, G.T0), tag)
        a("s_mov_b64 exec, -1")
    if X16:
        flag_check(a, DBG, "0", G.VZ, G.VT, "fr", 2)
        x16_load("f0")
    else: flag_issue(a, DBG, "s68", G.VZ, G.VT, "f0")
    a.wait(vm="b1")
    for q in range(8):
        a("v_lshlrev_b32 v%d, 16, v%d" % (2 * q, G.F + q))
        a("v_and_b32 v%d, 0xffff0000, v%d" % (2 * q + 1, G.F + q))
    while s1.pump(AHEAD): pass
    stamp(a, 3)
    if X16:
        a.wait(vm="f0")
        sv0 = list(a.vm.ops)
        a("s_mov_b32 s60, 0")
        a.label("G_X16")
        a("v_cmp_ne_u32 vcc, 0, v%d" % G.VT)
        a("s_and_b32 s61, vcc_lo, 0xffff")
        a("s_cmp_eq_u32 s61, 0xffff")
        a("s_cbranch_scc1 G_X16D")
        a("s_sleep %d" % E("X16S", 2))
        x16_load("f0")
        a("s_add_u32 s60, s60, 1")
        a.drain(lg=False)
        a("s_cmp_lt_u32 s60, %s" % hex(SPIN_MAX))
        a("s_cbranch_scc1 G_X16")
        a.label("G_X16D")
        a.vm.ops = sv0
    else: flag_check(a, DBG, "s68", G.VZ, G.VT, "f0", 2)
    stamp(a, 4)
    if FLOOK:
        s1.ffree = [(-2, G.F + 8 * i) for i in range(NF)] + ([(-2, G.RES)] if not RESEARLY else []) + [(p, G.B + 8 * (p % NB)) for p in range(NK1 - NB, NK1)]
        for f in s1.fnext(-1, 20, 99): f()
    else:
        for t in range(NF - 1): s1.fload(t, 20)
    log = []
    at = {}; fr_ok = [0]
    HP_ = G.B
    for t in range(NK1):
        if t in (8, 16, 24) and not E("WST", 0): stamp(a, 4 + t // 8)
        fill = s1.loop_fill(t, 20)
        if t == 16:
            def fw():
                a("s_lshl_b32 s69, s56, 8")
                a("s_add_u32 s69, s69, %s" % hex(SYNC_OFF + (SV_REL if TWO else SW_REL) * SL))
                flag_issue(a, WS, "s69", G.VZ, G.VT, "fw")
            fill.append(fw)
        if t == 22: flag_check(a, WS, "s69", G.VZ, G.VT, "fw", 2)
        if t == NK1 + 1 - NB:
            assert s1.nr == NK1
            fill.append(lambda: (a.drain(vm=False), sw2()))
        if HELP and t == NK1 - 1 - E("HLAG", 5):
            def fh():
                a("s_lshl_b32 s69, s66, 8")
                a("s_add_u32 s69, s69, %s" % hex(SYNC_OFF + SH_REL * SL))
                flag_issue(a, WS, "s69", G.VZ, G.VT, "fh")
            fill.append(fh)
        if HELP and t == NK1 - 1:
            def ph():
                flag_check(a, WS, "s69", G.VZ, G.VT, "fh", 1)
                a("s_mul_i32 s60, s66, 7")
                a("s_add_u32 s60, s60, s64")
                a("s_lshl_b32 s60, s60, 2")
                a("s_add_u32 s60, s60, s14")
                a("s_lshl_b32 s60, s60, 11")
                a("s_add_u32 s60, s60, %s" % hex(PART_OFF))
                for i in range(2):
                    a.vmem("buffer_load_dwordx4 %s, v%d, s[32:35], s60 offen offset:%d sc1" % (vr(HP_ + 4 * i, 4), G.L16, i * 1024), "hp")
            fill += [lambda: None] * 3 + [ph]
        W2S = E("W2S", 0)
        if W2S and W2S <= t < W2S + 4:
            fill += s2.dma_parts(); log.append("d")
        if t >= NK1 - TAILM:
            assert not fill
            continue
        s1.step(t, True, fill)
    tail1 = []
    for t in range(NK1 - TAILM, NK1):
        a.wait(vm="af%d" % t, lg="ar%d" % t)
        tail1.append(lambda n, t=t: (vr(G.B + 8 * (t % NB) + 4 * (n >> 1), 4), vr(s1.freg(t) + 4 * (n & 1), 4)))
    stamp(a, 5 if E("WST", 0) else 8)
    def rd(n=1):
        for _ in range(n): s2.read(); log.append("r")
    def dm(n=1):
        for _ in range(n):
            first = s2.nd < 4
            s2.pol = os.environ.get("W2POL0", "") if first else W2POL
            s2.dma(); log.append("d")
            s2.pol = W2POL
            if first and s2.nd == 4 and E("TOUCH", 0):
                a("v_lshrrev_b32 v%d, 4, v%d" % (G.F, G.LN))
                a("v_lshlrev_b32 v%d, 18, v%d" % (G.F, G.F))
                a("v_and_b32 v%d, 15, v%d" % ((G.F + 1), G.LN))
                a("v_lshl_add_u32 v%d, v%d, 12, v%d" % (G.F, (G.F + 1), G.F))
                a("s_add_u32 s58, s%d, s14" % SJ[0])
                a("s_lshl_b32 s58, s58, 16")
                a("s_add_u32 s58, s58, s67")
                a.vmem("buffer_load_dword v%d, v%d, s[24:27], s58 offen" % ((G.F + 2), G.F), "touch")
    oa = {}; ob = {}
    def oa_parts(j):
        def p0():
            if j % 2 == 0 and j > 0: a("s_add_u32 s56, s56, 4096")
            a.vmem("buffer_load_dwordx4 %s, v%d, s[40:43], s56 offen offset:%d sc1" % (vr(oa[j], 4), G.FA, (j % 2) * 2048), "oa%d" % j)
        def p1():
            a.vmem("buffer_load_dwordx4 %s, v%d, s[40:43], s56 offen offset:%d sc1" % (vr(oa[j] + 4, 4), G.FB, (j % 2) * 2048), "oa%d" % j)
        return [p0, p1]
    def oa_base():
        a("s_lshl_b32 s56, s14, 14")
        a("s_add_u32 s56, s56, %d" % (112 * 2048))
    oa_base()
    early = []
    for j in range(NOA):
        oa[j] = G.B + 8 * (NB2 + j); early += oa_parts(j)
    g_reduce_write(a, mid=(lambda: (rd(WPUMP), dm(WPUMP))) if WPUMP else None, pre=lambda: (a.sprinkle(list(early), E("OAGAP", 5)), (rd(E("WRD", 0)), dm(WPRE))), tail=tail1)
    g_reduce_add(a, not NOPK)
    if HELP:
        a.wait(vm="hp")
        for q in range(8):
            a("v_lshlrev_b32 v%d, 16, v%d" % (16 + 2 * q, HP_ + q))
            a("v_and_b32 v%d, 0xffff0000, v%d" % (17 + 2 * q, HP_ + q))
        v2(a, "add", 0, 0, 16, 16, not NOPK)
    if E("WST", 0): stamp(a, 6)
    a("s_barrier")
    s2.free += [(s_, None) for s_ in range(4, NS)]
    log.append("f")
    if E("WST", 0): stamp(a, 7)
    c1 = -2.0 * 0.7978845608028654 * 1.4426950408889634
    c2 = c1 * 0.044715
    left = [WDMA1]
    def ride():
        if left[0] > 0: dm(); left[0] -= 1
    a("s_mov_b32 s60, %s" % f32(c2))
    a("v_mov_b32 v48, %s" % f32(c1))
    ride()
    v2(a, "mul", 16, 0, 0, 16, not NOPK)
    ride()
    for r in range(16): a("v_fma_f32 v%d, v%d, s60, v48" % (16 + r, 16 + r))
    ride()
    v2(a, "mul", 16, 16, 0, 16, not NOPK)
    for r in range(16): a("v_exp_f32 v%d, v%d" % (16 + r, 16 + r))
    ride()
    for r in range(16): a("v_add_f32 v%d, 1.0, v%d" % (16 + r, 16 + r))
    ride()
    for r in range(16): a("v_rcp_f32 v%d, v%d" % (16 + r, 16 + r))
    ride()
    a.sprinkle_flush()
    a("""
    s_lshl_b32 s60, s66, 2
    s_and_b32 s61, s14, 2
    s_add_u32 s60, s60, s61
    s_lshl_b32 s60, s60, 11
    """)
    for i in range(2):
        v2(a, "mul", 8 * i, 8 * i, 16 + 8 * i, 8, not NOPK)
        for r in range(4): a("v_cvt_pk_bf16_f32 v%d, v%d, v%d" % (32 + 4 * i + r, 8 * i + 2 * r, 8 * i + 2 * r + 1))
        a.vmem("buffer_store_dwordx4 %s, v%d, s[40:43], s60 offen offset:%d sc1" % (vr(32 + 4 * i, 4), G.FA, i * 2048), "ust")
    if E("WST", 0): stamp(a, 8)
    nb4 = s2.nd
    for p in range(E("WDMA2", 4)):
        if s2.can_dma(): dm()
    rd(min(nb4, NB2) - s2.nr)
    a.wait(vm="ust")
    state = (s2.nd, s2.nr, list(s2.free), dict(s2.slot), list(a.vm.ops), list(a.lg.ops))
    a("s_mov_b32 s65, s14")
    a("s_branch G_JOIN2")
    a.label("G_JOIN")
    a.vm.clear(); a.lg.clear()
    s2b = Stream(a, "b", 24, 4096, 28, True, "nt", list(range(4)), NB2)
    oa_base()
    for f in early: f()
    if RESEARLY: res_loads()
    s2b.pol = W2POL
    for act in log:
        if act == "r": s2b.read()
        elif act == "d": s2b.dma()
        else: s2b.free += [(s_, None) for s_ in range(4, NS)]
    assert (s2b.nd, s2b.nr, s2b.slot) == (state[0], state[1], state[3]) and [x[0] for x in s2b.free] == [x[0] for x in state[2]]
    a.drain()
    a.label("G_JOIN2")
    a.vm.ops = state[4]; a.lg.ops = state[5]
    stamp(a, 9)
    a("s_barrier")
    live = not (ONLY2 or ONLYG)
    def f4_load(tag):
        if not live: return
        a("s_mov_b64 exec, 0x0fffffff")
        a.vmem("buffer_load_dword v%d, v%d, s[32:35], s69 offen sc1" % (G.VT, G.T0), tag)
        a("s_mov_b64 exec, -1")
    def f4_check(tag, upto):
        if not live: return
        l = a.newlabel("F4"); d = a.newlabel("F4D")
        if upto is None: a("s_mov_b32 s63, 0x0fffffff")
        else:
            a("s_mov_b32 s63, 0")
            for j_ in range(upto):
                a("s_lshr_b32 s61, s%d, 2" % SJ[j_])
                a("s_lshl_b32 s61, 15, s61")
                a("s_or_b32 s63, s63, s61")
        a.wait(vm=tag)
        sv4 = list(a.vm.ops)
        a("s_mov_b32 s60, 0")
        a.label(l)
        a("v_cmp_ne_u32 vcc, 0, v%d" % G.VT)
        a("s_and_b32 s61, vcc_lo, s63")
        a("s_cmp_eq_u32 s61, s63")
        a("s_cbranch_scc1 %s" % d)
        a("s_sleep %d" % PSL)
        f4_load(tag)
        a("s_add_u32 s60, s60, 1")
        a.drain(lg=False)
        a("s_cmp_lt_u32 s60, %s" % hex(SPIN_MAX))
        a("s_cbranch_scc1 %s" % l)
        a.label(d)
        a.vm.ops = sv4
    if FINE4:
        assert ROT2 and LEAD == 0
        a("s_lshl_b32 s69, s64, 13")
        a("s_add_u32 s69, s69, %s" % hex(SYNC_OFF + F4 * SL))
        a("s_cmp_lg_u32 s65, 0")
        a("s_cbranch_scc1 G_NOARR")
        a("s_lshl_b32 s61, s66, 8")
        a("s_add_u32 s61, s61, s69")
        arrive(a, "s61")
        a.label("G_NOARR")
        a("v_lshlrev_b32 v%d, 8, v%d" % (G.T0, G.LN))
        while s2.can_dma() and len(s2.inflight()) < AHEAD2: s2.dma()
        if not RESEARLY: res_loads()
        while s2.nd < NB2 + NS - 1: s2.pump(AHEAD2)
        f4_load("f4")
    else:
        a("s_lshl_b32 s69, s64, 8")
        a("s_add_u32 s69, s69, %s" % hex(SYNC_OFF + S4_CNT * SL))
        a("s_mov_b32 s62, 0")
        a("s_cmp_lg_u32 s65, 0")
        a("s_cbranch_scc1 G_NOARR")
        arrive_issue(a, "s69")
        a.label("G_NOARR")
        while s2.can_dma() and len(s2.inflight()) < AHEAD2: s2.dma()
        if not RESEARLY: res_loads()
        arrive_finish(a, 27, ["s69 offset:%d" % ((S4_REL - S4_CNT) * SL)], "G_NOREL")
        a.label("G_NOREL")
        a("s_add_u32 s69, s69, %d" % ((S4_REL - S4_CNT) * SL))
        while s2.nd < NB2 + NS - 1: s2.pump(AHEAD2)
        flag_issue(a, WS, "s69", G.VZ, G.VT, "f4")
    while s2.pump(AHEAD2): pass
    a.wait(vm="res")
    a("v_lshlrev_b32 v16, 16, v%d" % G.VB2)
    for i in range(2):
        a("v_permlane32_swap_b32 v%d, v%d" % (G.RES + 4 * i, G.RES + 4 * i + 2))
        a("v_permlane32_swap_b32 v%d, v%d" % (G.RES + 4 * i + 1, G.RES + 4 * i + 3))
    a("s_nop 0")
    for q in range(8):
        a("v_lshlrev_b32 v%d, 16, v%d" % (2 * q, G.RES + q))
        a("v_and_b32 v%d, 0xffff0000, v%d" % (2 * q + 1, G.RES + q))
    for r in range(16): a("v_add_f32 v%d, v%d, v16" % (r, r))
    srd(a, 20, 12, str(2048 * 896))
    stamp(a, 10)
    if E("RING6", 1): s2.ring.append(G.RES)
    LK = len(s2.ring) - 1
    G4 = E("G4", 0)
    got = [(LK + 3) // 4]
    if FINE4:
        f4_check("f4", got[0] if got[0] <= G4 else None)
        if got[0] <= G4: f4_load("f4")
    else: flag_check(a, WS, "s69", G.VZ, G.VT, "f4", PSL)
    stamp(a, 11)
    for t in range(len(s2.ring) - 1): s2.fload(t, 40)
    a("""
    s_lshl_b32 s57, s66, 16
    s_lshl_b32 s36, s14, 13
    s_add_u32 s57, s57, s36
    s_add_u32 s57, s57, {OFO}
    s_lshl_b32 s36, s14, 14
    s_and_b32 s36, s36, 0x8000
    s_xor_b32 s37, s36, 0x8000
    s_add_u32 s67, s57, s37
    s_add_u32 s57, s57, s36
    s_lshl_b32 s68, s66, 8
    s_add_u32 s68, s68, {REL}
    """.format(OFO=hex(OF_OFF), REL=hex(SYNC_OFF + S2_REL * SL)))
    free = [(p, G.B + 8 * (p % NB2)) for p in range(28 - NB2, 28)] + [(t, s2.freg(t)) for t in range(28 - len(s2.ring), 28)]
    if not E("RING6", 1): free.append((-1, G.RES))
    free.sort()
    def ob_parts(j):
        def p0():
            if j == 4:
                a("s_add_u32 s57, s57, 4096")
                a("s_add_u32 s67, s67, 4096")
            a.vmem("buffer_load_dwordx4 %s, v%d, s[32:35], s57 offen offset:%d sc1" % (vr(ob[j], 4), G.L16, (j % 4) * 1024), "ob%d" % j)
        def p1():
            a.vmem("buffer_load_dwordx4 %s, v%d, s[32:35], s67 offen offset:%d sc1" % (vr(ob[j] + 4, 4), G.L16, (j % 4) * 1024), "ob%d" % j)
        return [p0, p1]
    def ostep(j, fill):
        a.wait(vm=["oa%d" % j, "ob%d" % j])
        for n in range(4):
            uw, uf = n >> 1, n & 1
            acc = vr(G.ACC + 16 * n, 16)
            a("%s %s, %s, %s, %s" % (MF, acc, vr(oa[j] + 4 * uf, 4), vr(ob[j] + 4 * uw, 4), acc))
            if fill: fill.pop(0)()
        for f in fill: f()
    TCHK = E("TCHK", 17)
    OLAG = E("OLAG", 5)
    want = []
    for j in range(8): want += ([("a", j)] if j >= NOA else []) + [("b", j)]
    issued_at = {}; jo = 0
    def take(t, limit):
        out = []
        while want and free and free[0][0] < t and len(out) < limit:
            kind, j = want[0]
            if kind == "b" and t < TCHK:
                nxt = [w_ for w_ in want if w_[0] == "a"]
                if not nxt: break
                kind, j = nxt[0]
            want.remove((kind, j))
            reg = free.pop(0)[1]
            if kind == "a": oa[j] = reg; out += oa_parts(j)
            else: ob[j] = reg; out += ob_parts(j); issued_at[j] = t
        return out
    for t in range(28):
        if ONLY2 and t in (4, 8, 12, 16): stamp(a, 2 + t // 4)
        if FINE4 and got[0] <= G4 and (t + LK) // 4 + 1 > got[0]:
            got[0] += 1
            assert t < TCHK - 5
            f4_check("f4", got[0] if got[0] <= G4 else None)
            if got[0] <= G4: f4_load("f4")
        fill = s2.loop_fill(t, 40)
        if t == TCHK - 5:
            fill.append(lambda: a.vmem("buffer_load_dword v%d, v%d, s[32:35], s68 offen sc1" % (G.VT, G.VZ), "s2"))
        if t == TCHK:
            a.wait(vm="s2")
            a("v_readfirstlane_b32 s62, v%d" % G.VT)
            a("s_cmp_lg_u32 s62, 0")
            a("s_cbranch_scc1 G_S2_OK")
            if not E("FAKEA", 0): poll(a, WS, "s68", G.VZ, G.VT, sleep=2, keep=True)
            a.label("G_S2_OK")
            stamp(a, 12)
        fill += take(t, 4)
        s2.step(t, False, fill)
        if jo in issued_at and issued_at[jo] + OLAG <= t:
            ostep(jo, take(t + 1, 4))
            free.append((t + 1, oa[jo])); free.append((t + 1, ob[jo])); free.sort()
            jo += 1
    assert s2.nr == 28
    if ONLY2: stamp(a, 7)
    for f in take(99, 99): f()
    assert not want
    while jo < 8 - TAILM: ostep(jo, []); jo += 1
    tail2 = []
    while jo < 8:
        a.wait(vm=["oa%d" % jo, "ob%d" % jo])
        tail2.append(lambda n, j=jo: (vr(oa[j] + 4 * (n & 1), 4), vr(ob[j] + 4 * (n >> 1), 4)))
        jo += 1
    if ONLY2: stamp(a, 8)
    g_reduce_write(a, tail=tail2)
    g_reduce_add(a)
    for r in range(8): a("v_cvt_pk_bf16_f32 v%d, v%d, v%d" % (32 + r, 2 * r, 2 * r + 1))
    a("s_nop 1")
    for i in range(2):
        a("v_permlane32_swap_b32 v%d, v%d" % (32 + 4 * i, 34 + 4 * i))
        a("v_permlane32_swap_b32 v%d, v%d" % (33 + 4 * i, 35 + 4 * i))
    for i in range(2): a("buffer_store_dwordx4 %s, v%d, s[20:23], 0 offen offset:%d %s" % (vr(32 + 4 * i, 4), G.VX, 32 * i, OUTPOL))
    stamp_flush(a, 13, 60, "G")

DOC = """; ---------------------------------------------------------------------------------------------------------
; ---------------------------------------------------------------------------------------------------------
"""
HEADER = open("cdna_kernels/%s.s.ref" % NAME).read().split("; Override launch geometry")[0]

def main(path):
    a = Asm()
    a.label(KNAME)
    a("s_cmp_ge_u32 s2, 512")
    a("s_cbranch_scc1 K_END")
    stamp(a, 0)
    a("""
    s_load_dwordx8 s[4:11], s[0:1], 0
    s_load_dwordx4 s[28:31], s[0:1], 80
    s_load_dwordx4 s[40:43], s[0:1], 40
    s_load_dwordx4 s[52:55], s[0:1], 56
    s_load_dwordx2 s[12:13], s[0:1], 72
    v_lshrrev_b32 v1, 6, v0
    s_and_b32 s56, s2, 7
    v_readfirstlane_b32 s14, v1
    s_bfe_u32 s57, s2, 0x50003
    s_cmp_lt_u32 s2, 256
    s_cbranch_scc1 ROLE_A
    s_cmp_ge_u32 s57, 28
    s_cbranch_scc1 K_P
    s_cmp_lg_u32 s56, 7
    s_cbranch_scc1 ROLE_G
    s_add_u32 s36, s57, 32
    s_lshl_b32 s37, s57, 2
    s_add_u32 s37, s37, s14
    s_cmp_lt_u32 s37, 83
    s_cbranch_scc1 ROLE_P
    s_cmp_lg_u32 s14, 3
    s_cbranch_scc1 ROLE_P
    s_sub_u32 s37, 27, s57
    s_lshl_b32 s38, s37, 14
    v_and_b32 v6, 63, v0
    v_lshlrev_b32 v6, 8, v6
    v_add_u32 v6, {SYA}, v6
    v_add_u32 v6, s38, v6
    v_mov_b32 v7, 0
    s_waitcnt lgkmcnt(0)
    global_store_dword v6, v7, s[30:31] sc1
    s_cmp_lg_u32 s37, 0
    s_cbranch_scc1 ROLE_P
    s_mov_b32 s62, 1
    s_waitcnt vmcnt(0)
    s_atomic_add s62, s[28:29], 0x0
    s_branch ROLE_P
    K_P:
    s_sub_u32 s36, s2, 480
    s_branch ROLE_P
    """.format(SYA=hex(SYNC_OFF + WSBASE)))
    n0 = len(a.lines)
    role_a(a)
    n1 = len(a.lines)
    role_g(a)
    if GTOP:
        n2 = a.lines.index("G_SETUP:")
        head = a.lines[n1:n2] + ["    s_branch G_SETUP"]
        if GTOP == 1: a.lines = a.lines[:n0] + head + a.lines[n0:n1] + a.lines[n2:]
        else:
            k = n0 + next(i for i, l in enumerate(a.lines[n0:n1]) if "global_load_dwordx4 v[12:15]" in l) + 1
            a.lines = a.lines[:k] + ["    s_branch A_CONT"] + head + ["A_CONT:"] + a.lines[k:n1] + a.lines[n2:]
    a.label("K_END")
    a("s_endpgm")
    a.vm.clear(); a.lg.clear()
    a.label("ROLE_P")
    if ONLY2 or ONLYG:
        a("s_cmp_lt_u32 s57, 28")
        a("s_cbranch_scc1 ROLE_G")
        a("s_endpgm")
    a("""
    s_lshl_b32 s36, s36, 2
    s_add_u32 s36, s36, s14
    v_and_b32 v1, 63, v0
    v_lshrrev_b32 v2, 3, v1
    v_and_b32 v3, 7, v1
    v_lshlrev_b32 v3, 4, v3
    s_mov_b32 s19, 0x20000
    s_lshl_b32 s49, s14, 12
    s_mov_b32 s66, 0
    s_setprio {PP}
    s_cmp_ge_u32 s36, 196
    s_cbranch_scc1 P_JPHI
    s_mul_i32 s37, s36, 4682
    s_lshr_b32 s37, s37, 16
    s_mul_i32 s38, s37, 14
    s_sub_u32 s38, s36, s38
    s_add_u32 s38, s38, 7
    P_JW:
    s_mov_b32 s67, 0
    s_mul_i32 s20, s37, 86016
    s_lshl_b32 s39, s38, 7
    s_add_u32 s20, s20, s39
    s_add_u32 s21, s20, 43008
    s_movk_i32 s50, 2688
    s_mov_b32 s18, {WSZ}
    s_mov_b32 s51, 8
    s_waitcnt lgkmcnt(0)
    s_mov_b32 s16, s6
    s_and_b32 s17, s7, 0xffff
    s_branch P_LD
    P_JPHI:
    s_mov_b32 s67, 2
    s_sub_u32 s38, s36, 196
    s_mul_i32 s20, s38, 1568
    s_add_u32 s21, s20, 896
    s_movk_i32 s50, 56
    s_mov_b32 s51, 4
    s_cmp_lt_u32 s38, 16
    s_cselect_b32 s18, 25088, 0
    s_waitcnt lgkmcnt(0)
    s_mov_b32 s16, s8
    s_and_b32 s17, s9, 0xffff
    s_branch P_LD
    P_PASS1:
    s_mul_i32 s37, s36, 9363
    s_lshr_b32 s37, s37, 16
    s_mul_i32 s38, s37, 7
    s_sub_u32 s38, s36, s38
    s_cmp_lt_u32 s36, 98
    s_cbranch_scc1 P_JW
    s_mov_b32 s67, 1
    s_sub_u32 s37, s36, 98
    s_and_b32 s38, s37, 15
    s_lshr_b32 s37, s37, 4
    s_mul_i32 s20, s38, 25088
    s_lshl_b32 s39, s37, 7
    s_add_u32 s20, s20, s39
    s_add_u32 s21, s20, 14336
    s_movk_i32 s50, 896
    s_mov_b32 s51, 4
    s_cmp_lt_u32 s37, 7
    s_cselect_b32 s18, {OSZ}, 0
    s_mov_b32 s16, s10
    s_and_b32 s17, s11, 0xffff
    P_LD:
    v_mov_b32 v4, {BIG}
    v_mul_lo_u32 v8, v2, s50
    s_lshl_b32 s39, s50, 3
    v_add_u32 v8, v8, v3
    v_cmp_gt_u32 vcc, s51, v2
    v_add_u32 v9, s39, v8
    s_mov_b32 m0, s49
    v_cndmask_b32 v10, v4, v9, vcc
    """.format(BIG=hex(BIG), WSZ=448 * 2688, OSZ=448 * 896, PP=E("PRIO_PK", 0)))
    for u in range(2):
        a.vmem("buffer_load_dwordx4 v8, s[16:19], s%d offen lds" % (20 + u), "u%d" % u)
        a("s_add_u32 m0, s49, %d" % (u * 2048 + 1024))
        a("s_nop 0")
        a.vmem("buffer_load_dwordx4 v%d, s[16:19], s%d offen lds" % (10 if u else 9, 20 + u), "u%d" % u)
        if u == 0:
            a("s_add_u32 m0, s49, 2048")
            a("s_nop 0")
    assert not WSBASE
    a("""
    s_cmp_lt_u32 s57, 28
    s_cbranch_scc1 P_NOCODE
    s_cmp_lg_u32 s66, {CP}
    s_cbranch_scc1 P_NOCODE
    s_getpc_b64 s[60:61]
    K_PC:
    s_sub_u32 s60, s60, K_PC-{K}
    s_subb_u32 s61, s61, 0
    s_and_b32 s58, s57, 3
    s_lshl_b32 s58, s58, 12
    v_lshl_add_u32 v5, v0, 4, s58
    global_load_dwordx4 v[64:67], v5, s[60:61]
    v_add_u32 v5, 0x4000, v5
    v_min_u32 v5, CODE_END-{K}-16, v5
    global_load_dwordx4 v[68:71], v5, s[60:61]
    P_NOCODE:
    """.format(K=KNAME, CP=E("CPASS", 1)))
    srd(a, WS, 30, hex(WS_USED))
    srd(a, DBG, 28, "256")
    a("""
    s_mov_b64 s[64:65], -1
    v_mov_b32 v5, 0
    v_bfe_u32 v13, v1, 2, 2
    v_lshlrev_b32 v13, 7, v13
    v_lshrrev_b32 v14, 4, v1
    v_lshl_add_u32 v13, v14, 5, v13
    v_and_b32 v14, 3, v1
    v_lshl_add_u32 v13, v14, 3, v13
    v_add_u32 v13, s49, v13
    s_cmp_lg_u32 s67, 0
    s_cbranch_scc1 P_D2
    s_mul_i32 s39, s38, 37
    s_lshr_b32 s39, s39, 8
    s_mul_i32 s48, s39, 7
    s_sub_u32 s48, s38, s48
    s_lshl_b32 s48, s48, 6
    v_add_u32 v6, s48, v1
    v_mul_u32_u24 v7, 2341, v6
    v_lshrrev_b32 v7, 16, v7
    v_mul_u32_u24 v11, 28, v7
    v_sub_u32 v11, v6, v11
    v_lshlrev_b32 v11, 4, v11
    v_mul_u32_u24 v7, {WPH}, v7
    v_add_u32 v11, v11, v7
    v_add_u32 v12, 448, v11
    s_cmp_eq_u32 s39, 0
    s_cselect_b32 s48, 1, 2
    s_mul_i32 s48, s48, 896
    s_mul_i32 s24, s39, 896
    s_sub_u32 s24, s24, 896
    s_cmp_eq_u32 s39, 0
    s_cselect_b32 s24, {WPQ}, s24
    s_lshl_b32 s37, s37, 1
    s_mul_i32 s37, s37, s48
    s_add_u32 s24, s24, s37
    s_add_u32 s24, s24, {WPO}
    s_add_u32 s25, s24, s48
    v_add_u32 v14, 512, v13
    v_add_u32 v15, 1024, v13
    s_branch P_ST
    P_D2:
    v_add_u32 v14, 1024, v13
    v_add_u32 v15, 512, v13
    v_lshrrev_b32 v6, 5, v1
    v_and_b32 v7, 31, v1
    v_lshlrev_b32 v11, 4, v7
    s_cmp_eq_u32 s67, 2
    s_cbranch_scc1 P_D3
    v_lshl_add_u32 v11, v6, 10, v11
    v_add_u32 v12, 512, v11
    s_mul_i32 s24, s37, {UPG}
    s_lshl_b32 s39, s38, 12
    s_add_u32 s24, s24, s39
    s_add_u32 s24, s24, {OB}
    s_cmp_lt_u32 s37, 7
    s_cselect_b32 s24, s24, 0x08000000
    s_add_u32 s25, s24, 2048
    s_branch P_ST
    P_D3:
    v_mul_u32_u24 v6, 0x7f0000, v6
    v_lshl_add_u32 v11, v6, 4, v11
    v_add_u32 v12, 512, v11
    s_mul_i32 s24, s38, {WPH}
    s_add_u32 s24, s24, {PHB}
    s_cmp_lt_u32 s38, 16
    s_cselect_b32 s24, s24, 0x08000000
    s_add_u32 s25, s24, 1024
    s_mov_b32 s64, 0x0fffffff
    P_ST:
    """.format(WPH=WP_H, WPQ=WP_Q, WPO=hex(WP_OFF), UPG=UP_G, OB=hex(UP_OFF + 112 * 2048), PHB=hex(WP_OFF + WP_PHI)))
    for u in range(2):
        b = 16 + 8 * u
        a.wait(vm="u%d" % u)
        a.ds("ds_read_b64_tr_b16 %s, v13 offset:%d" % (vr(b, 2), u * 2048), "t%d" % u)
        a.ds("ds_read_b64_tr_b16 %s, v14 offset:%d" % (vr(b + 2, 2), u * 2048), "t%d" % u)
        a.ds("ds_read_b64_tr_b16 %s, v15 offset:%d" % (vr(b + 4, 2), u * 2048), "t%d" % u)
        a.ds("ds_read_b64_tr_b16 %s, v13 offset:%d" % (vr(b + 6, 2), u * 2048 + 1536), "t%d" % u)
    a.drain(vm=False)
    for u in range(2):
        b = 16 + 8 * u
        for r in range(8): a("v_cndmask_b32 v%d, 0, v%d, s[64:65]" % (b + r, b + r))
        a.vmem("buffer_store_dwordx4 %s, v11, s[32:35], s%d offen sc1" % (vr(b, 4), 24 + u))
        a.vmem("buffer_store_dwordx4 %s, v12, s[32:35], s%d offen sc1" % (vr(b + 4, 4), 24 + u))
    a.vmem("buffer_load_dword v4, v5, s[44:47], 0 offen sc1")
    a.drain()
    a("s_barrier")
    a("s_cmp_lg_u32 s14, 3")
    a("s_cbranch_scc1 P_NEXT")
    a("v_readfirstlane_b32 s61, v4")
    a("s_cmp_lg_u32 s61, 0")
    a("s_cbranch_scc1 P_RDY")
    poll(a, DBG, "0", 5, 4)
    a.label("P_RDY")
    assert SV_REL - SV_CNT == SW_REL - SW_CNT
    a("s_mul_i32 s20, s66, %d" % ((SV_CNT - SW_CNT) * SL))
    a("s_add_u32 s20, s20, %s" % hex(SYNC_OFF + SW_CNT * SL))
    arrive_issue(a, "s20")
    a.drain(vm=False)
    a("s_cmp_lg_u32 s62, 59")
    a("s_cbranch_scc1 P_NEXT")
    a("s_mov_b32 s62, 1")
    for i in range(8): a("s_atomic_add s62, s[30:31], s20 offset:%d" % ((SW_REL - SW_CNT + i) * SL))
    a.label("P_NEXT")
    if STAMP == 1:
        a("s_cmp_lg_u32 s66, 0")
        a("s_cbranch_scc1 P_NS")
        stamp(a, 6)
        a.label("P_NS")
    a("s_add_u32 s66, s66, 1")
    a("s_cmp_eq_u32 s66, 1")
    a("s_cbranch_scc1 P_PASS1")
    a.label("P_NOARR")
    if WSBASE:
        a("s_sub_u32 s30, s30, %s" % hex(WSBASE))
        a("s_subb_u32 s31, s31, 0")
    a("s_cmp_lt_u32 s57, 28")
    a("s_cbranch_scc1 ROLE_G")
    stamp(a, 1)
    if ONLYA or not E("PON", 1): a("s_endpgm")
    a("""
    s_and_b32 s36, s57, 3
    s_lshl_b32 s37, s56, 2
    s_add_u32 s37, s37, s36
    s_lshl_b32 s37, s37, 7
    s_mul_i32 s58, s14, {W64}
    s_add_u32 s58, s58, s37
    s_add_u32 s58, s58, {R0}
    s_cmp_eq_u32 s56, 7
    s_cselect_b32 s58, 0x08000000, s58
    v_mul_u32_u24 v6, 3584, v2
    v_add_u32 v6, v6, v3
    """.format(W64=64 * 3584, R0=1792 * 3584))
    srd(a, 16, 40, str(2048 * 3584))
    for i in range(0 if HELP else 8):
        a("buffer_load_dwordx4 %s, v6, s[16:19], s58 offen nt" % vr(16 + 4 * i, 4))
        a("s_add_u32 s58, s58, %d" % (8 * 3584))
    a("""
    s_lshl_b32 s36, s36, 2
    s_add_u32 s36, s36, s14
    v_lshrrev_b32 v2, 5, v1
    v_lshlrev_b32 v2, 12, v2
    v_and_b32 v3, 31, v1
    v_lshl_add_u32 v2, v3, 4, v2
    s_lshl_b32 s58, s56, 9
    v_add_u32 v2, s58, v2
    v_lshlrev_b32 v1, 4, v1
    v_mov_b32 v3, 0
    s_mul_i32 s37, s56, 229376
    """)
    srd(a, 24, 52, str(1792 * 4096))
    srd(a, 16, 4, "229376", add="s37")
    PD = E("PDEPTH", 8)
    a("s_setprio %d" % E("PRIO_P", 0))
    def pf_loop(lbl, srdn, vaddr, step, limit, pol):
        a.label(lbl)
        for i in range(8):
            a("s_waitcnt vmcnt(%d)" % (PD - 1))
            a("buffer_load_dwordx4 %s, v%d, s[%d:%d], s58 offen %s" % (vr(8 + 4 * i, 4), vaddr, srdn, srdn + 3, pol))
            a("s_add_u32 s58, s58, %d" % step)
        a("s_cmp_lt_u32 s58, %s" % limit)
        a("s_cbranch_scc1 %s" % lbl)
    def blk8k(sreg):
        a("s_waitcnt vmcnt(4)")
        for i in range(4): a("buffer_load_dwordx4 %s, v1, s[32:35], %s offen offset:%d sc1" % (vr(8 + 4 * i, 4), sreg, i * 1024))
        a("s_add_u32 s63, %s, 4096" % sreg)
        a("s_waitcnt vmcnt(4)")
        for i in range(4): a("buffer_load_dwordx4 %s, v1, s[32:35], s63 offen offset:%d sc1" % (vr(24 + 4 * i, 4), i * 1024))
    def tail_groups(lbl, base, gstride, n, with7, flag):
        a("s_and_b32 s48, s57, 3")
        a.label(lbl)
        if flag is not None:
            a("s_lshl_b32 s58, s48, 8")
            a("s_add_u32 s58, s58, %s" % hex(flag))
            poll(a, WS, "s58", 3, 4, sleep=4)
        a("s_mul_i32 s49, s48, %d" % gstride)
        a("s_lshl_b32 s50, s14, 13")
        a("s_add_u32 s49, s49, s50")
        a("s_add_u32 s49, s49, %s" % hex(base))
        for q in range(n):
            if with7 and q == n - 1: a("s_add_u32 s51, s49, %d" % (7 * 32768))
            else:
                back = n - (1 if with7 else 0) - q
                a("s_add_u32 s51, s48, %d" % (7 - back))
                a("s_sub_u32 s50, s51, 7")
                a("s_cselect_b32 s51, s51, s50")
                a("s_lshl_b32 s51, s51, 15")
                a("s_add_u32 s51, s51, s49")
            blk8k("s51")
        a("s_add_u32 s48, s48, 4")
        a("s_cmp_lt_u32 s48, 7")
        a("s_cbranch_scc1 %s" % lbl)
    def wait_s0():
        a("s_movk_i32 s58, 0x80")
        poll(a, DBG, "s58", 3, 4, sleep=8)
    def pf_wo():
        a("s_lshl_b32 s58, s36, 12")
        a("s_add_u32 s58, s58, %s" % hex(UP_OFF + 112 * 2048))
        for g_ in range(7):
            a("s_waitcnt vmcnt(4)")
            for i in range(4): a("buffer_load_dwordx4 %s, v1, s[32:35], s58 offen offset:%d sc1" % (vr(8 + 16 * (g_ % 2) + 4 * i, 4), i * 1024))
            a("s_add_u32 s58, s58, %d" % UP_G)
    if not E("PEARLY", 0): wait_s0()
    stamp(a, 2)
    a("s_lshl_b32 s58, s36, 13")
    pf_loop("P_W2", 24, 2, 16 * 8192, str(E("PFA", 1024) * 4096), PFPOL)
    stamp(a, 3)
    a("s_mov_b32 s48, s58")
    if E("PWO", 2) == 1: pf_wo()
    a("s_lshl_b32 s58, s36, 10")
    if E("PX", 1): pf_loop("P_X", 16, 1, 16 * 1024, "229376", PFPOL)
    stamp(a, 4)
    a("s_mov_b32 s58, s48")
    if E("PTAIL", 1): pf_loop("P_W3", 24, 2, 16 * 8192, str(1792 * 4096), PFPOL)
    stamp(a, 5)
    if E("PEARLY", 0): wait_s0()
    if E("PWO", 2) == 2: pf_wo()
    if E("NUT", 0): tail_groups("P_UT", UP_OFF, UP_G, E("NUT", 0), False, SYNC_OFF + S4_REL * SL)
    if E("POF", 0):
        a("s_and_b32 s48, s57, 3")
        a("s_lshl_b32 s49, s56, 2")
        a("s_add_u32 s48, s48, s49")
        a("s_lshl_b32 s58, s48, 8")
        a("s_add_u32 s58, s58, %s" % hex(SYNC_OFF + S2_REL * SL))
        poll(a, WS, "s58", 3, 4, sleep=4)
        a("s_lshl_b32 s51, s48, 16")
        a("s_lshl_b32 s50, s14, 14")
        a("s_add_u32 s51, s51, s50")
        a("s_add_u32 s51, s51, %s" % hex(OF_OFF))
        blk8k("s51")
        a("s_add_u32 s51, s51, 8192")
        blk8k("s51")
    if STAMP == 1: stamp_flush(a, 7, 60)
    a("s_endpgm")
    a.label("CODE_END")
    if DIAG:
        out = HEADER + "; @launch kernel=%s grid=(512,1,1) block=(256,1,1) lds=81920\n; @launch kernel=diag_kernel grid=(1,1,1) block=(64,1,1) lds=0\n" % KNAME
        a.lines += [".globl diag_kernel", ".p2align 8", ".type diag_kernel,@function"]
        a("""
        diag_kernel:
        s_cmp_lg_u32 s2, 0
        s_cbranch_scc1 DG_END
        s_load_dwordx2 s[4:5], s[0:1], 80
        s_waitcnt lgkmcnt(0)
        s_sub_u32 s4, s4, 512
        s_subb_u32 s5, s5, 0
        s_load_dwordx2 s[6:7], s[4:5], 128
        s_memrealtime s[8:9]
        s_waitcnt lgkmcnt(0)
        s_not_b32 s6, s6
        s_sub_u32 s6, s7, s6
        s_min_u32 s6, s6, 10000
        s_mul_i32 s6, s6, %d
        DG_L:
        s_memrealtime s[10:11]
        s_waitcnt lgkmcnt(0)
        s_sub_u32 s10, s10, s8
        s_cmp_lt_u32 s10, s6
        s_cbranch_scc1 DG_L
        DG_END:
        s_endpgm
        """ % E("AMP", 10))
    else:
        out = HEADER + "; @launch grid=(512,1,1) block=(256,1,1) lds=81920\n"
    out += '.amdgcn_target "amdgcn-amd-amdhsa--gfx950"\n' + DOC + '.text\n.globl %s\n.p2align 8\n.type %s,@function\n' % (KNAME, KNAME)
    out += a.text()
    out += """.section .rodata,"a"
.p2align 6
.amdhsa_kernel {n}
  .amdhsa_next_free_vgpr 256
  .amdhsa_next_free_sgpr {s}
  .amdhsa_accum_offset 256
  .amdhsa_group_segment_fixed_size 0
  .amdhsa_kernarg_size 96
  .amdhsa_user_sgpr_count 2
  .amdhsa_user_sgpr_kernarg_segment_ptr 1
  .amdhsa_system_sgpr_workgroup_id_x 1
  .amdhsa_float_denorm_mode_32 3
.end_amdhsa_kernel
""".format(n=KNAME, s=100 if STAMP else 72)
    if DIAG:
        out += """.p2align 6
.amdhsa_kernel diag_kernel
  .amdhsa_next_free_vgpr 8
  .amdhsa_next_free_sgpr 32
  .amdhsa_accum_offset 8
  .amdhsa_group_segment_fixed_size 0
  .amdhsa_kernarg_size 96
  .amdhsa_user_sgpr_count 2
  .amdhsa_user_sgpr_kernarg_segment_ptr 1
  .amdhsa_system_sgpr_workgroup_id_x 1
.end_amdhsa_kernel
"""
    if E("NONT", 1):
        import re
        out = re.sub(r" nt$", "", out, flags=re.M).replace(" nt lds", " lds")
    open(path, "w").write(out)

if __name__ == "__main__":
    main(sys.argv[1])
```

```python
import sys, struct, os

NAME = "parallel_sum__linear_kernel_hedgehog__mixer_token_mlp__prompt"
KNAME = NAME + "_kernel"
E = lambda k, d: int(os.environ.get(k, str(d)))

XN_OFF   = 0x000000
HT_OFF   = 0x200000
HT_G     = 128 * 2048
WP_OFF   = 0x400000
WP_Q     = 28 * 1792
WP_PHI   = 28 * 2688
WP_H     = WP_PHI + 2048 + 512
UP_OFF   = 0x600000
UP_G     = 144 * 2048
KVF_OFF  = 0x800000
SYNC_OFF = 0x840000
OF_OFF   = 0x900000
KVP_OFF  = 0xB00000
PART_OFF = 0xD00000
WS_USED  = 0x1000000
STAMP_OFF = 0xF00000
BIG      = 0x7ff00000
SL = 256
SX_CNT, SX_REL = 0, 16
SW_CNT, SW_REL = 32, 48
S1_CNT, S1_REL = 64, 80
SV_CNT, SV_REL = 40, 56
S2_CNT, S2_REL = 128, 160
S4_CNT, S4_REL = 192, 200
SA_ROOT = 36
SA_REP = 208
SH_REL = 224
F4 = 256
NSYNC = 512
SPIN_MAX = 0x40000

STAMP = E("STAMP", 0); PRIO_A = E("PRIO_A", 2); PRIO_G = E("PRIO_G", 1); AHEAD = E("AHEAD", 4); W2START = E("W2START", 32)
NB, NF, NS = E("NB", 16), E("NF", 5), 10
LEAD = E("LEAD", 0)
XPRE = E("XPRE", 12)
PSL = E("PSL", 1)
WDMA1 = E("WDMA1", 3)
WPRE = E("WPRE", 4)
NOPK = E("NOPK", 0)
NOA = E("NOA", 0)
TWO = 1
GTOP = E("GTOP", 2)
TAILM = E("TAILM", 3)
FINE4 = E("FINE4", 1)
FLOOK = E("FLOOK", 7)
HELP = E("HELP", 0)
NK1 = 28 if HELP else 32
NB2 = NB - NOA
ROT2 = E("ROT2", 1)
INL0 = E("INL0", 18)
INLN = E("INLN", 0)
INLP = E("INLP", 1)
WPUMP = E("WPUMP", 0)
AHEAD2 = E("AHEAD2", 5)
PFW2 = E("PFW2", 0)
PRIO_Q = E("PRIO_Q", 0)
PRIO_K = E("PRIO_K", 2)
JOBLATE = E("JOBLATE", 1)
BURST = E("BURST", 4)
PFPOL = os.environ.get("PFPOL", "")
NP = E("NP", 0)
AHEAD0 = E("AHEAD0", 5)
ALOOK = E("ALOOK", 99)
W2POL = os.environ.get("W2POL", "")
W1POL2 = os.environ.get("W1POL2", "")
RESEARLY = E("RESEARLY", 0)
WSBASE = E("WSBASE", 0)
ONLY2 = E("ONLY2", 0)
ONLYG = E("ONLYG", 0)
ONLYA = E("ONLYA", 0)
GWAIT = E("GWAIT", 0)
PFWAIT = E("PFWAIT", 0)
OUTPOL = os.environ.get("OUTPOL", "")

def f32(x): return "0x%08x" % struct.unpack("<I", struct.pack("<f", x))[0]

class Q:
    def __init__(self, mx): self.ops = []; self.mx = mx
    def issue(self, tag): self.ops.append(tag)
    def need(self, tags):
        if not isinstance(tags, (list, tuple, set)): tags = [tags]
        idx = -1
        for i, t in enumerate(self.ops):
            if t in tags: idx = i
        if idx < 0: return None
        n = len(self.ops) - 1 - idx
        if n > self.mx: return self.mx
        self.ops = self.ops[idx + 1:]
        return n
    def clear(self): self.ops = []

class Asm:
    def __init__(self):
        self.lines = []; self.vm = Q(63); self.lg = Q(15); self.uid = 0; self.issued = []; self.spr = []; self.pending = False
    def sprinkle(self, fns, gap): self.spr = fns; self.gap = gap; self.cnt = 0
    def sprinkle_flush(self):
        fns, self.spr = self.spr, []
        for f in fns: f()
    def __call__(self, s):
        for l in s.strip().split("\n"):
            l = l.strip()
            if l.endswith(":"): self.lines.append(l)
            elif l: self.lines.append("    " + l)
        if self.spr and s.lstrip().startswith(("v_", "ds_")):
            self.cnt += 1
            if self.cnt >= self.gap:
                self.cnt = 0
                self.spr.pop(0)()
    def label(self, l): self.lines.append(l + ":")
    def vmem(self, s, tag=None): self(s); self.vm.issue(tag); self.issued.append(tag)
    def ds(self, s, tag=None): self(s); self.lg.issue(tag)
    def wait(self, vm=None, lg=None):
        p = []
        for q, t, nm in ((self.vm, vm, "vmcnt"), (self.lg, lg, "lgkmcnt")):
            if t is None: continue
            n = q.need(t)
            if n is None: continue
            if len(q.ops) > n: q.ops = q.ops[len(q.ops) - n:]
            p.append("%s(%d)" % (nm, n))
        if p: self("s_waitcnt " + " ".join(p))
    def drain(self, vm=True, lg=True):
        p = []
        if vm: p.append("vmcnt(0)"); self.vm.clear()
        if lg: p.append("lgkmcnt(0)"); self.lg.clear()
        self("s_waitcnt " + " ".join(p))
    def newlabel(self, p): self.uid += 1; return "%s_%d" % (p, self.uid)
    def text(self): return "\n".join(self.lines) + "\n"

def vr(a, n): return "v[%d:%d]" % (a, a + n - 1)

def srd(a, d, base, size, add=None):
    if add is None:
        a("s_mov_b32 s%d, s%d" % (d, base))
        a("s_and_b32 s%d, s%d, 0xffff" % (d + 1, base + 1))
    else:
        a("s_add_u32 s%d, s%d, %s" % (d, base, add))
        a("s_addc_u32 s%d, s%d, 0" % (d + 1, base + 1))
        a("s_and_b32 s%d, s%d, 0xffff" % (d + 1, d + 1))
    a("s_mov_b32 s%d, %s" % (d + 2, size))
    a("s_mov_b32 s%d, 0x20000" % (d + 3))

WS = 32
DBG = 44

def ws_base(a):
    if WSBASE:
        a("s_add_u32 s30, s30, %s" % hex(WSBASE))
        a("s_addc_u32 s31, s31, 0")

def stamp(a, i):
    if STAMP == 3 and i not in (0, 13): return
    if STAMP:
        a("%s s[%d:%d]" % ("s_memtime" if STAMP == 2 else "s_memrealtime", 70 + 2 * i, 71 + 2 * i))
        a.drain(vm=False)
DIAG = os.environ.get("DIAG", "")
def stamp_flush(a, n, tmp, role=""):
    if not STAMP: return
    a.drain()
    stamp(a, n)
    if DIAG:
        a("s_mov_b64 exec, 1")
        a("v_mov_b32 v%d, 0" % tmp)
        a("s_not_b32 s98, s70")
        a("v_mov_b32 v%d, s98" % (tmp + 1))
        a("buffer_atomic_umax v%d, v%d, s[44:47], 0 offen offset:128 sc1" % (tmp + 1, tmp))
        if DIAG[0] == role:
            a("v_mov_b32 v%d, s%d" % (tmp + 2, 70 + 2 * int(DIAG[1:])))
            a("buffer_atomic_umax v%d, v%d, s[44:47], 0 offen offset:132 sc1" % (tmp + 2, tmp))
        return
    a("s_mov_b64 exec, 1")
    a("s_lshl_b32 s98, s2, 8")
    a("s_lshl_b32 s99, s14, 6")
    a("s_add_u32 s98, s98, s99")
    a("s_add_u32 s98, s98, %s" % hex(STAMP_OFF))
    a("v_mov_b32 v%d, 0" % tmp)
    if STAMP == 3:
        if n == 13:
            a("v_mov_b32 v%d, s70" % (tmp + 1))
            a("v_mov_b32 v%d, s96" % (tmp + 2))
            a("buffer_store_dword v%d, v%d, s[32:35], s98 offen" % (tmp + 1, tmp))
            a("buffer_store_dword v%d, v%d, s[32:35], s98 offen offset:52" % (tmp + 2, tmp))
        return
    for i in range(n + 1):
        a("v_mov_b32 v%d, s%d" % (tmp + 1, 70 + 2 * i))
        a("buffer_store_dword v%d, v%d, s[32:35], s98 offen offset:%d" % (tmp + 1, tmp, 4 * i))
        a("s_waitcnt vmcnt(0)")

def poll(a, srdn, soff, vz, vt, sleep=1, target=1, keep=False):
    if ONLY2 or ONLYG: return
    sv = list(a.vm.ops)
    l = a.newlabel("POLL"); d = a.newlabel("POLLD")
    a("s_mov_b32 s60, 0")
    a("s_mov_b64 exec, 1")
    a.label(l)
    a("buffer_load_dword v%d, v%d, s[%d:%d], %s offen sc1" % (vt, vz, srdn, srdn + 3, soff))
    a("s_add_u32 s60, s60, 1")
    a.drain(lg=False)
    a("v_readfirstlane_b32 s61, v%d" % vt)
    a("s_cmp_ge_u32 s61, %d" % target)
    a("s_cbranch_scc1 %s" % d)
    if sleep: a("s_sleep %d" % sleep)
    a("s_cmp_lt_u32 s60, %s" % hex(SPIN_MAX))
    a("s_cbranch_scc1 %s" % l)
    a.label(d)
    a("s_mov_b64 exec, -1")
    if keep: a.vm.ops = sv

def arrive_issue(a, soff):
    a("s_mov_b32 s62, 1")
    a("s_atomic_add s62, s[30:31], %s glc" % soff)
def arrive_finish(a, last, srels, skip):
    a.drain(vm=False)
    a("s_cmp_lg_u32 s62, %d" % last)
    a("s_cbranch_scc1 %s" % skip)
    a("s_mov_b32 s62, 1")
    for r in srels: a("s_atomic_add s62, s[30:31], %s" % r)

def flag_issue(a, srdn, soff, vz, vt, tag):
    if ONLY2 or ONLYG: return
    a.vmem("buffer_load_dword v%d, v%d, s[%d:%d], %s offen sc1" % (vt, vz, srdn, srdn + 3, soff), tag)
def flag_check(a, srdn, soff, vz, vt, tag, sleep):
    if ONLY2 or ONLYG: return
    ok = a.newlabel("FLAG")
    a.wait(vm=tag)
    a("v_readfirstlane_b32 s61, v%d" % vt)
    a("s_cmp_lg_u32 s61, 0")
    a("s_cbranch_scc1 %s" % ok)
    poll(a, srdn, soff, vz, vt, sleep=sleep, keep=True)
    a.label(ok)

def arrive(a, soff):
    a("s_mov_b32 s62, 1")
    a("s_atomic_add s62, s[30:31], %s" % soff)

def round_bf16(a, d, s):
    a("v_cvt_pk_bf16_f32 v%d, v%d, v%d" % (d, s, s))
    a("v_lshlrev_b32 v%d, 16, v%d" % (d, d))

def half_reduce(a, regs, tmps):
    steps = ["quad_perm:[1,0,3,2] row_mask:0xf bank_mask:0xf", "quad_perm:[2,3,0,1] row_mask:0xf bank_mask:0xf",
             "row_half_mirror row_mask:0xf bank_mask:0xf", "row_mirror row_mask:0xf bank_mask:0xf"]
    for st in steps:
        a("s_nop %d" % (1 if len(regs) == 1 else 0))
        for r in regs: a("v_add_f32_dpp v%d, v%d, v%d %s" % (r, r, r, st))
    for r, t in zip(regs, tmps): a("v_mov_b32 v%d, v%d" % (t, r))
    a("s_nop 1")
    for r, t in zip(regs, tmps): a("v_permlane16_swap_b32 v%d, v%d" % (r, t))
    a("s_nop 0")
    for r, t in zip(regs, tmps): a("v_add_f32 v%d, v%d, v%d" % (r, r, t))

MF = "v_mfma_f32_32x32x16_bf16"

def role_a(a):
    LN, VA, VB, VC, VD, VZ, VT, VH = 250, 251, 252, 253, 254, 248, 249, 255
    a.label("ROLE_A")
    if ONLY2 or ONLYG: a("s_endpgm")
    JB = 16384
    a("""
    s_lshr_b32 s38, s56, 1
    s_lshl_b32 s38, s38, 2
    s_and_b32 s39, s57, 3
    s_add_u32 s38, s38, s39
    s_and_b32 s39, s56, 1
    s_lshl_b32 s39, s39, 3
    s_lshr_b32 s57, s57, 2
    s_add_u32 s39, s39, s57
    s_lshl_b32 s15, s38, 4
    s_add_u32 s15, s15, s39
    v_and_b32 v{VC}, 31, v0
    v_lshrrev_b32 v2, 5, v0
    s_mul_i32 s20, s15, 7168
    v_min_u32 v4, 27, v{VC}
    v_mul_u32_u24 v3, 896, v2
    v_lshl_add_u32 v3, v4, 5, v3
    v_add_u32 v4, s20, v3
    s_waitcnt lgkmcnt(0)
    global_load_dwordx4 v[8:11], v4, s[4:5] nt
    global_load_dwordx4 v[12:15], v4, s[4:5] offset:16 nt
    s_mov_b32 s58, 0x0fffffff
    s_mov_b32 s59, 0x0fffffff
    s_setprio {PRIO}
    s_mul_i32 s25, s39, {WPH}
    s_add_u32 s25, s25, {WPO}
    v_and_b32 v{LN}, 63, v0
    v_bfe_u32 v{VH}, v0, 5, 1
    v_mov_b32 v{VZ}, 0
    v_lshlrev_b32 v{VA}, 4, v{LN}
    v_mul_u32_u24 v{VB}, 448, v{VH}
    v_lshl_add_u32 v{VB}, v{VC}, 4, v{VB}
    """.format(VC=VC, SYA=hex(SYNC_OFF + WSBASE), PRIO=PRIO_A, WPH=WP_H, WPO=hex(WP_OFF), LN=LN, VH=VH, VZ=VZ, VA=VA, VB=VB))
    a.vm.issue("x"); a.vm.issue("x")
    ws_base(a)
    srd(a, WS, 30, hex(WS_USED))
    srd(a, DBG, 28, "256")
    P, X, T = 8, 16, 32
    def unpack(dst, src):
        for i in range(8):
            a("v_lshlrev_b32 v%d, 16, v%d" % (dst + 2 * i, src + i))
            a("v_and_b32 v%d, 0xffff0000, v%d" % (dst + 2 * i + 1, src + i))
    def pack(dst, src):
        for i in range(8): a("v_cvt_pk_bf16_f32 v%d, v%d, v%d" % (dst + i, src + 2 * i, src + 2 * i + 1))
    def pksum(dst, src):
        a("v_pk_add_f32 %s, %s, %s" % (vr(dst, 2), vr(src, 2), vr(src + 2, 2)))
        a("v_pk_add_f32 %s, %s, %s" % (vr(dst + 2, 2), vr(src + 4, 2), vr(src + 6, 2)))
        for i in (8, 12):
            a("v_pk_add_f32 %s, %s, %s" % (vr(dst, 2), vr(dst, 2), vr(src + i, 2)))
            a("v_pk_add_f32 %s, %s, %s" % (vr(dst + 2, 2), vr(dst + 2, 2), vr(src + i + 2, 2)))
        a("v_pk_add_f32 %s, %s, %s" % (vr(dst, 2), vr(dst, 2), vr(dst + 2, 2)))
        a("v_add_f32 v%d, v%d, v%d" % (dst, dst, dst + 1))
    def pksq(dst, src):
        a("v_pk_mul_f32 %s, %s, %s" % (vr(dst, 2), vr(src, 2), vr(src, 2)))
        a("v_pk_mul_f32 %s, %s, %s" % (vr(dst + 2, 2), vr(src + 2, 2), vr(src + 2, 2)))
        for i in (4, 8, 12):
            a("v_pk_fma_f32 %s, %s, %s, %s" % (vr(dst, 2), vr(src + i, 2), vr(src + i, 2), vr(dst, 2)))
            a("v_pk_fma_f32 %s, %s, %s, %s" % (vr(dst + 2, 2), vr(src + i + 2, 2), vr(src + i + 2, 2), vr(dst + 2, 2)))
        a("v_pk_add_f32 %s, %s, %s" % (vr(dst, 2), vr(dst, 2), vr(dst + 2, 2)))
        a("v_add_f32 v%d, v%d, v%d" % (dst, dst, dst + 1))
    def pksub(dst, src, m):
        for i in range(0, 16, 2):
            a("v_pk_add_f32 %s, %s, %s op_sel_hi:[1,0] neg_lo:[0,1] neg_hi:[0,1]" % (vr(dst + i, 2), vr(src + i, 2), vr(m, 2)))
    def pkmul(dst, src, m):
        for i in range(0, 16, 2): a("v_pk_mul_f32 %s, %s, %s op_sel_hi:[1,0]" % (vr(dst + i, 2), vr(src + i, 2), vr(m, 2)))
    def scale_from_var(r):
        round_bf16(a, r, r)
        a("v_add_f32 v%d, %s, v%d" % (r, f32(1e-5), r))
        round_bf16(a, r, r)
        a("v_sqrt_f32 v%d, v%d" % (r, r))
        a("s_nop 0")
        round_bf16(a, r, r)
        a("v_rcp_f32 v%d, v%d" % (r, r))
    inv = f32(1.0 / 448.0)
    S, S2, M, RS_, C2, D2 = 72, 76, 80, 82, 84, 86
    HB, HP = 7168, 912
    a("""
    v_lshl_add_u32 v5, v2, 4, v3
    v_bfe_u32 v88, v{LN}, 2, 2
    v_mul_u32_u24 v88, {HP}, v88
    v_lshrrev_b32 v89, 4, v{LN}
    v_lshl_add_u32 v88, v89, 5, v88
    v_and_b32 v89, 3, v{LN}
    v_lshl_add_u32 v88, v89, 3, v88
    s_lshl_b32 s20, s14, 7
    v_add_u32 v88, s20, v88
    v_lshlrev_b32 v92, 10, v{VH}
    v_lshl_add_u32 v92, v{VC}, 4, v92
    v_and_b32 v89, 7, v{LN}
    v_lshrrev_b32 v90, 3, v{LN}
    s_lshl_b32 s20, s14, 3
    v_add_u32 v90, s20, v90
    v_mul_u32_u24 v91, 896, v89
    v_lshl_add_u32 v91, v90, 4, v91
    v_lshlrev_b32 v89, 4, v89
    v_lshl_add_u32 v89, v90, 9, v89
    s_lshr_b32 s20, s15, 2
    s_mul_i32 s20, s20, 28672
    s_and_b32 s21, s15, 3
    s_lshl_b32 s21, s21, 7
    s_add_u32 s20, s20, s21
    s_lshl_b32 s21, s14, 18
    s_lshr_b32 s22, s15, 1
    s_lshl_b32 s22, s22, 11
    s_add_u32 s21, s21, s22
    s_and_b32 s22, s15, 1
    s_lshl_b32 s22, s22, 9
    s_add_u32 s21, s21, s22
    s_add_u32 s21, s21, {HTO}
    s_cmp_eq_u32 s14, 3
    s_cselect_b32 s23, 0x08000000, 0
    s_add_u32 s22, s21, {HG4}
    s_or_b32 s22, s22, s23
    s_add_u32 s24, s20, 16384
    s_or_b32 s24, s24, s23
    s_lshl_b32 s40, s39, 8
    s_add_u32 s40, s40, {SY}
    s_lshl_b32 s41, s38, 8
    s_add_u32 s41, s41, {SY}
    """.format(LN=LN, VH=VH, VC=VC, HP=HP, HG4=4 * HT_G, HTO=hex(HT_OFF), SY=hex(SYNC_OFF)))
    assert XN_OFF == 0 and HT_G == 1 << 18
    stamp(a, 1)
    a.wait(vm="x")
    stamp(a, 2)
    unpack(X, P)
    pksum(S, X)
    a("v_cndmask_b32 v%d, 0, v%d, s[58:59]" % (S, S))
    half_reduce(a, [S], [S + 1])
    a("v_mul_f32 v%d, %s, v%d" % (S, inv, S))
    round_bf16(a, M, S)
    pksub(X, X, M)
    pksq(S2, X)
    a("v_sub_f32 v%d, v%d, v%d" % (S, S, M))
    a("v_cndmask_b32 v%d, 0, v%d, s[58:59]" % (S2, S2))
    half_reduce(a, [S2], [S2 + 1])
    a("v_mul_f32 v%d, %s, v%d" % (S2, inv, S2))
    a("v_fma_f32 v%d, -v%d, v%d, v%d" % (S2, S, S, S2))
    a("v_max_f32 v%d, 0, v%d" % (S2, S2))
    a("v_mov_b32 v%d, v%d" % (RS_, S2))
    scale_from_var(RS_)
    a("s_nop 0")
    a("v_mul_f32 v%d, v%d, v%d" % (C2, S2, RS_))
    a("v_mul_f32 v%d, v%d, v%d" % (D2, S, RS_))
    a("v_mul_f32 v%d, v%d, v%d" % (C2, C2, RS_))
    round_bf16(a, D2, D2)
    pkmul(T, X, RS_)
    scale_from_var(C2)
    pack(P, T)
    a.ds("ds_write_b128 v3, v[8:11]")
    a.ds("ds_write_b128 v3, v[12:15] offset:16")
    a("v_mul_f32 v%d, v%d, v%d" % (D2, D2, C2))
    for i in range(0, 16, 2):
        a("v_pk_fma_f32 %s, %s, %s, %s op_sel_hi:[1,0,0] neg_lo:[0,0,1] neg_hi:[0,0,1]" % (vr(T + i, 2), vr(T + i, 2), vr(C2, 2), vr(D2, 2)))
    pack(X, T)
    a.ds("ds_write_b128 v5, v[16:19] offset:%d" % HB)
    a.ds("ds_write_b128 v5, v[20:23] offset:%d" % (HB + 16))
    stamp(a, 3)
    a.drain(vm=False)
    a("s_barrier")
    a.ds("ds_read_b64_tr_b16 v[28:29], v88 offset:%d" % HB, "h0")
    a.ds("ds_read_b64_tr_b16 v[30:31], v88 offset:%d" % (HB + 4 * HP), "h0")
    a.ds("ds_read_b128 v[36:39], v91", "x0")
    a.ds("ds_read_b64_tr_b16 v[32:33], v88 offset:%d" % (HB + 512), "h1")
    a.ds("ds_read_b64_tr_b16 v[34:35], v88 offset:%d" % (HB + 512 + 4 * HP), "h1")
    a.ds("ds_read_b128 v[40:43], v91 offset:512", "x1")
    a.wait(lg="h0"); a.vmem("buffer_store_dwordx4 v[28:31], v92, s[32:35], s21 offen sc1")
    FAKEX = E("FAKEX", 0)
    if not FAKEX: a.wait(lg="x0"); a.vmem("buffer_store_dwordx4 v[36:39], v89, s[32:35], s20 offen sc1")
    a.wait(lg="h1"); a.vmem("buffer_store_dwordx4 v[32:35], v92, s[32:35], s22 offen sc1")
    if not FAKEX: a.wait(lg="x1"); a.vmem("buffer_store_dwordx4 v[40:43], v89, s[32:35], s24 offen sc1")
    a.vmem("buffer_load_dword v%d, v%d, s[44:47], 0 offen sc1" % (VT, VZ), "ready")
    a("""
    s_lshl_b32 s36, s38, 2
    s_add_u32 s36, s36, s14
    s_mul_i32 s24, s36, 28672
    s_lshl_b32 s26, s14, 10
    s_add_u32 s25, s25, s26
    v_add_u32 v{VD}, 0x8000, v{VB}
    """.format(VB=VB, VD=VD))
    a.drain()
    stamp(a, 4)
    a("s_barrier")
    AQ, AK, AV = 0, 16, 32
    XF, WF, PH = 64, 176, 208
    WF1 = E("WFIRST", 6)
    cuts = [0, 6, 13, 20, 28]; rnds = [0, 3, 6, 9, 13]
    def wdma(r, tag):
        a("s_add_u32 m0, s26, %d" % (r * 4096))
        a("s_add_u32 s28, s25, %d" % (r * 4096))
        a.vmem("buffer_load_dwordx4 v%d, s[32:35], s28 offen sc1 lds" % VA, tag)
    rtag = lambda r: "wc%d" % max(c for c in range(4) if rnds[c] <= r)
    if not WF1:
        a("s_cmp_lg_u32 s14, 0")
        a("s_cbranch_scc1 A_GO")
    a("v_readfirstlane_b32 s61, v%d" % VT)
    a("s_cmp_lg_u32 s61, 0")
    a("s_cbranch_scc1 A_RDY")
    poll(a, DBG, "0", VZ, VT)
    a.label("A_RDY")
    a("s_mov_b32 s43, 1")
    a("s_cmp_lg_u32 s14, 0")
    a("s_cbranch_scc1 A_ARR")
    arrive_issue(a, "s41 offset:%d" % (SX_CNT * SL))
    a.drain(vm=False)
    a("s_cmp_eq_u32 s62, 15")
    a("s_cselect_b32 s43, 1, 0")
    a("s_cbranch_scc0 A_ARR")
    a("s_mov_b32 s62, 1")
    a("s_atomic_add s62, s[30:31], s41 offset:%d" % (SX_REL * SL))
    a("s_mov_b32 s20, %s" % hex(SYNC_OFF + SA_ROOT * SL))
    a("s_mov_b32 s63, 1")
    a("s_atomic_add s63, s[30:31], s20 glc")
    a.drain(vm=False)
    a("s_cmp_lg_u32 s63, 15")
    a("s_cbranch_scc1 A_ARR")
    a("s_atomic_add s62, s[28:29], 0x80")
    a.label("A_ARR")
    if WF1:
        a("s_lshl_b32 s20, s56, 8")
        a("s_add_u32 s20, s20, %s" % hex(SYNC_OFF + SW_REL * SL))
        if not E("NOW", 0): poll(a, WS, "s20", VZ, VT, sleep=PSL)
        stamp(a, 6)
        for r in range(WF1): wdma(r, rtag(r))
    a("s_cmp_lg_u32 s43, 0")
    a("s_cbranch_scc1 A_GO")
    a("s_add_u32 s21, s41, %d" % (SX_REL * SL))
    if not E("NOX", 0): poll(a, WS, "s21", VZ, VT, sleep=PSL, keep=True)
    a.label("A_GO")
    a("s_barrier")
    stamp(a, 5)
    if E("FAKEA", 0) == 1: a("s_endpgm")
    def xload(k):
        if FAKEX and k == 0:
            a("s_lshl_b32 s24, s36, 12")
            a("s_add_u32 s24, s24, %s" % hex(HT_OFF))
        if k % 4 == 0 and k > 0: a("s_add_u32 s24, s24, %d" % (HT_G if FAKEX else 4096))
        a.vmem("buffer_load_dwordx4 %s, v%d, s[32:35], s24 offen offset:%d sc1" % (vr(XF + 4 * k, 4), VA, (k % 4) * 1024), "x%d" % k)
    XF1 = 0 if WF1 else E("XFIRST", 0)
    if not WF1:
        a("s_lshl_b32 s20, s56, 8")
        a("s_add_u32 s20, s20, %s" % hex(SYNC_OFF + SW_REL * SL))
        for k in range(XF1):
            if k == max(XF1 - 6, 0): flag_issue(a, WS, "s20", VZ, VT, "fw")
            xload(k)
        if XF1 == 0: flag_issue(a, WS, "s20", VZ, VT, "fw")
        flag_check(a, WS, "s20", VZ, VT, "fw", PSL)
        stamp(a, 6)
    seq = []
    for c in range(4):
        seq += [(lambda r=r, c=c: wdma(r, "wc%d" % c)) for r in range(max(rnds[c], WF1), rnds[c + 1])]
        seq += [(lambda k=k: xload(k)) for k in range(max(cuts[c], XF1), cuts[c + 1])]
    if TWO:
        a("s_sub_u32 s27, s25, s26")
        a("s_add_u32 s27, s27, %d" % WP_PHI)
        a("s_add_u32 s20, s20, %d" % ((SV_REL - SW_REL) * SL))
        seq += [(lambda i=i: a.vmem("buffer_load_dwordx4 %s, v%d, s[32:35], s27 offen offset:%d sc1" % (vr(PH + 4 * i, 4), VA, i * 1024), "ph")) for i in range(2)]
        if not E("WQMID", 1): seq += [lambda: flag_issue(a, WS, "s20", VZ, VT, "fv")]
    else: seq += [(lambda r=r: wdma(r, "wq")) for r in (18, 13, 14, 15, 16, 17)]
    for f in seq[:XPRE]: f()
    pend = seq[XPRE:]
    def lread(dst, off, tag, base=None):
        if off < 65536: a.ds("ds_read_b128 %s, v%d offset:%d" % (vr(dst, 4), VB, off), tag)
        else: a.ds("ds_read_b128 %s, v%d offset:%d" % (vr(dst, 4), VD, off - 32768), tag)
    def wread(k):
        b = WF + 8 * (k % 3)
        lread(b, k * 1792, "w%d" % k); lread(b + 4, k * 1792 + 896, "w%d" % k)
    for c in range(4):
        k0, k1 = cuts[c], cuts[c + 1]
        assert k1 * 1792 + 64 <= rnds[c + 1] * 4096
        assert sum(1 for t_ in a.issued if t_ == "wc%d" % c) == rnds[c + 1] - rnds[c]
        a.wait(vm="wc%d" % c)
        a("s_barrier")
        wread(k0); wread(k0 + 1)
        for k in range(k0, k1):
            if k + 2 < k1: wread(k + 2)
            assert "x%d" % k in a.issued
            a.wait(vm="x%d" % k, lg="w%d" % k)
            b = WF + 8 * (k % 3); x = vr(XF + 4 * k, 4)
            a("%s %s, %s, %s, %s" % (MF, vr(AK, 16), vr(b, 4), x, "0" if k == 0 else vr(AK, 16)))
            if pend and len(a.vm.ops) < ALOOK: pend.pop(0)()
            a("%s %s, %s, %s, %s" % (MF, vr(AV, 16), x, vr(b + 4, 4), "0" if k == 0 else vr(AV, 16)))
            while pend and len(a.vm.ops) < min(ALOOK, 12): pend.pop(0)()
            if pend and len(a.vm.ops) < ALOOK: pend.pop(0)()
    for f in pend: f()
    pend = []
    assert not pend
    if TWO:
        def wq_req():
            flag_check(a, WS, "s20", VZ, VT, "fv", PSL)
            for r in range(12, 19): wdma(r, "wq")
        if E("WQMID", 1):
            a.wait(vm="ph")
            flag_issue(a, WS, "s20", VZ, VT, "fv")
        else: wq_req()
        a("s_barrier")
    else:
        a.drain(lg=False)
        a("s_barrier")
        a("v_add_u32 v2, 0x8000, v%d" % VA)
        a.ds("ds_read_b128 %s, v2 offset:%d" % (vr(PH, 4), WP_PHI - 32768), "ph")
        a.ds("ds_read_b128 %s, v2 offset:%d" % (vr(PH + 4, 4), WP_PHI + 1024 - 32768), "ph")
    stamp(a, 7)
    PKK, PKV = 48, 56
    PP = 216; EP, EM = 16, 32; OUT = 176; S0 = 192; TA = S0 + 12
    a("""
    s_mov_b32 s56, 0
    s_mov_b32 s57, -1
    s_mov_b32 s37, {L2E}
    v_mul_u32_u24 v{t}, 136, v{VC}
    v_lshl_add_u32 v{t}, v{VH}, 3, v{t}
    s_mul_i32 s28, s14, 4352
    v_add_u32 v{t}, s28, v{t}
    s_lshl_b32 s28, s14, 11
    v_add_u32 v{u}, s28, v{VA}
    v_cmp_eq_u32 vcc, 28, v{VC}
    v_mov_b32 v{S0}, 0x3f803f80
    """.format(L2E=f32(1.4426950408889634), t=TA, u=TA + 1, VC=VC, VH=VH, VA=VA, S0=S0))
    for r in range(8): a("v_cvt_pk_bf16_f32 v%d, v%d, v%d" % (PKK + r, AK + 2 * r, AK + 2 * r + 1))
    a("v_cndmask_b32 v%d, 0, v%d, vcc" % (S0, S0))
    a.wait(lg="ph")
    a("%s %s, %s, %s, 0" % (MF, vr(PP, 16), vr(PH, 4), vr(PKK, 4)))
    a("%s %s, %s, %s, %s" % (MF, vr(PP, 16), vr(PH + 4, 4), vr(PKK + 4, 4), vr(PP, 16)))
    for r in range(8): a("v_cvt_pk_bf16_f32 v%d, v%d, v%d" % (PKV + r, AV + 2 * r, AV + 2 * r + 1))
    for r in range(8): a("v_cndmask_b32 v%d, v%d, v%d, s[58:59]" % (PKV + r, S0, PKV + r))
    a.ds("ds_write_b128 v%d, %s offset:17408" % (TA + 1, vr(PKV, 4)))
    a.ds("ds_write_b128 v%d, %s offset:%d" % (TA + 1, vr(PKV + 4, 4), 17408 + 1024))

    def softmax2(P, sink=None, mid=None):
        mx, mn, t0, t1, t2, t3 = S0, S0 + 1, S0 + 2, S0 + 3, S0 + 4, S0 + 5
        for op, m, t in (("max", mx, t0), ("min", mn, t1)):
            a("v_%s3_f32 v%d, v%d, v%d, v%d" % (op, t, P + 12, P + 13, P + 14))
            a("v_%s3_f32 v%d, v%d, v%d, v%d" % (op, m, P, P + 1, P + 2))
            a("v_%s_f32 v%d, v%d, v%d" % (op, t, t, P + 15))
            for i in range(3, 11, 2): a("v_%s3_f32 v%d, v%d, v%d, v%d" % (op, m, m, P + i, P + i + 1))
            a("v_cndmask_b32 v%d, v%d, v%d, s[56:57]" % (t, t, P))
            a("v_%s3_f32 v%d, v%d, v%d, v%d" % (op, m, m, P + 11, t))
        a("v_mov_b32 v%d, v%d" % (t0, mx))
        a("v_mov_b32 v%d, v%d" % (t1, mn))
        a("v_mov_b32 v%d, 0x7f800000" % t2)
        a("v_mov_b32 v%d, 0xff800000" % t3)
        a("v_permlane32_swap_b32 v%d, v%d" % (mx, t0))
        a("v_permlane32_swap_b32 v%d, v%d" % (mn, t1))
        a("s_nop 0")
        a("v_max_f32 v%d, v%d, v%d" % (mx, mx, t0))
        a("v_min_f32 v%d, v%d, v%d" % (mn, mn, t1))
        a("v_mul_f32 v%d, s37, v%d" % (mx, mx))
        a("v_mul_f32 v%d, s37, v%d" % (mn, mn))
        a("v_cndmask_b32 v%d, v%d, v%d, s[56:57]" % (t2, mx, t2))
        a("v_cndmask_b32 v%d, v%d, v%d, s[56:57]" % (t3, mn, t3))
        if mid: mid()
        for r in range(16):
            a("v_fma_f32 v%d, v%d, s37, -v%d" % (EP + r, P + r, mx if r < 12 else t2))
            a("v_fma_f32 v%d, -v%d, s37, v%d" % (EM + r, P + r, mn if r < 12 else t3))
        for r in range(16):
            a("v_exp_f32 v%d, v%d" % (EP + r, EP + r))
            a("v_exp_f32 v%d, v%d" % (EM + r, EM + r))
            if r == 2:
                a("v_add_f32 v%d, v%d, v%d" % (mx, EP, EP + 1))
                a("v_add_f32 v%d, v%d, v%d" % (mn, EM, EM + 1))
            if r > 2:
                a("v_add_f32 v%d, v%d, v%d" % (mx, mx, EP + r - 1))
                a("v_add_f32 v%d, v%d, v%d" % (mn, mn, EM + r - 1))
        a("v_add_f32 v%d, v%d, v%d" % (mx, mx, EP + 15))
        a("v_add_f32 v%d, v%d, v%d" % (mn, mn, EM + 15))
        a("v_mov_b32 v%d, v%d" % (t0, mx))
        a("v_mov_b32 v%d, v%d" % (t1, mn))
        a("s_nop 1")
        a("v_permlane32_swap_b32 v%d, v%d" % (mx, t0))
        a("v_permlane32_swap_b32 v%d, v%d" % (mn, t1))
        a("s_nop 0")
        a("v_add_f32 v%d, v%d, v%d" % (mx, mx, t0))
        a("v_add_f32 v%d, v%d, v%d" % (mn, mn, t1))
        a("v_rcp_f32 v%d, v%d" % (mx, mx))
        a("v_rcp_f32 v%d, v%d" % (mn, mn))
        for e, (E_, m) in enumerate(((EP, mx), (EM, mn))):
            for q in range(4):
                for r in range(4): a("v_mul_f32 v%d, v%d, v%d" % (E_ + 4 * q + r, E_ + 4 * q + r, m))
                for r in range(2): a("v_cvt_pk_bf16_f32 v%d, v%d, v%d" % (OUT + 8 * e + 2 * q + r, E_ + 4 * q + 2 * r, E_ + 4 * q + 2 * r + 1))
                if sink: sink(e, q)

    softmax2(PP, lambda e, q: a.ds("ds_write_b64 v%d, %s offset:%d" % (TA, vr(OUT + 8 * e + 2 * q, 2), e * 64 + q * 16)), mid=wq_req if E("WQMID", 1) else None)
    a("""
    v_lshlrev_b32 v{t}, 2, v{VH}
    v_bfe_u32 v{u}, v{LN}, 2, 2
    v_add_u32 v{t}, v{t}, v{u}
    v_mul_u32_u24 v{t}, 136, v{t}
    v_bfe_u32 v{u}, v{LN}, 4, 1
    v_lshl_add_u32 v{t}, v{u}, 5, v{t}
    v_and_b32 v{u}, 3, v{LN}
    v_lshl_add_u32 v{t}, v{u}, 3, v{t}
    s_lshl_b32 s28, s14, 6
    v_add_u32 v{t}, s28, v{t}
    s_lshl_b32 s42, s39, 16
    s_add_u32 s42, s42, {KVP}
    s_lshl_b32 s28, s38, 10
    s_lshl_b32 s29, s14, 15
    s_add_u32 s28, s28, s29
    s_add_u32 s28, s28, s42
    s_add_u32 s29, s28, 16384
    """.format(t=TA + 2, u=TA + 3, LN=LN, VH=VH, KVP=hex(KVP_OFF)))
    a.drain()
    a("s_barrier")
    stamp(a, 8)
    a("s_cmp_ge_u32 s14, 2")
    a("s_cbranch_scc1 A_QPASS")
    KVA = 232
    for w in range(4):
        for i in range(2):
            n_ = 2 * w + i
            a.ds("ds_read_b64_tr_b16 %s, v%d offset:%d" % (vr(4 * n_, 2), TA + 2, w * 4352 + (16 * i) * 136), "kv%d" % n_)
            a.ds("ds_read_b64_tr_b16 %s, v%d offset:%d" % (vr(4 * n_ + 2, 2), TA + 2, w * 4352 + (16 * i + 8) * 136), "kv%d" % n_)
            a.ds("ds_read_b128 %s, v%d offset:%d" % (vr(32 + 4 * n_, 4), VA, 17408 + w * 2048 + i * 1024), "kv%d" % n_)
    for n_ in range(8):
        a.wait(lg="kv%d" % n_)
        a("%s %s, %s, %s, %s" % (MF, vr(KVA, 16), vr(4 * n_, 4), vr(32 + 4 * n_, 4), "0" if n_ == 0 else vr(KVA, 16)))
    a("s_nop 11")
    for i in range(2):
        for r in range(4): a("v_cvt_pk_bf16_f32 v%d, v%d, v%d" % (PKV + 4 * i + r, KVA + 8 * i + 2 * r, KVA + 8 * i + 2 * r + 1))
        a("buffer_store_dwordx4 %s, v%d, s[32:35], %s offen sc1" % (vr(PKV + 4 * i, 4), VA, "s29" if i else "s28"))
    a.label("A_QPASS")
    if E("FAKEA", 0) == 2: a("s_endpgm")
    a("s_setprio %d" % PRIO_Q)
    a("s_mov_b32 s62, 0")
    QB = 16
    def qread(k): lread(QB + 4 * (k % 8), WP_Q + k * 896, "q%d" % k)
    for k in range(4): qread(k)
    for k in range(28):
        if k + 4 < 28: qread(k + 4)
        a.wait(lg="q%d" % k)
        a("%s %s, %s, %s, %s" % (MF, vr(AQ, 16), vr(QB + 4 * (k % 8), 4), vr(XF + 4 * k, 4), "0" if k == 0 else vr(AQ, 16)))
        if k == E("S1K", 13):
            a("s_cmp_ge_u32 s14, 2")
            a("s_cbranch_scc1 A_NOARR")
            a.drain(lg=False)
            arrive_issue(a, "s40 offset:%d" % (S1_CNT * SL))
            a.label("A_NOARR")
    arrive_finish(a, 31, ["s40 offset:%d" % (S1_REL * SL)], "A_S1_NR")
    a.label("A_S1_NR")
    a("s_nop 9")
    for r in range(8): a("v_cvt_pk_bf16_f32 v%d, v%d, v%d" % (PKK + r, AQ + 2 * r, AQ + 2 * r + 1))
    a("s_nop 1")
    a("%s %s, %s, %s, 0" % (MF, vr(PP, 16), vr(PH, 4), vr(PKK, 4)))
    a("%s %s, %s, %s, %s" % (MF, vr(PP, 16), vr(PH + 4, 4), vr(PKK + 4, 4), vr(PP, 16)))
    a("s_nop 11")
    softmax2(PP)
    stamp(a, 9)
    SEL, KS, KVB, OD = 48, 0, 16, 32
    a("""
    s_setprio {PRIO}
    v_and_b32 v52, 3, v{VC}
    v_bfe_u32 v53, v{VC}, 3, 1
    v_lshl_add_u32 v52, v53, 2, v52
    v_and_b32 v53, 1, v52
    v_lshlrev_b32 v53, 4, v53
    v_mov_b32 v54, 0x3f80
    v_lshlrev_b32 v53, v53, v54
    v_lshrrev_b32 v52, 1, v52
    v_bfe_u32 v54, v{VC}, 2, 1
    v_xor_b32 v54, v54, v{VH}
    v_lshrrev_b32 v55, 4, v{VC}
    v_or_b32 v54, v54, v55
    v_lshl_add_u32 v52, v54, 2, v52
    s_lshl_b32 s28, s14, 14
    s_add_u32 s28, s28, s42
    s_add_u32 s41, s40, {REL}
    s_lshl_b32 s29, s14, 10
    v_add_u32 v55, s29, v{VA}
    """.format(PRIO=PRIO_K, VC=VC, VH=VH, VA=VA, REL=S1_REL * SL))
    for d in range(4):
        a("v_cmp_eq_u32 vcc, %d, v52" % d)
        a("s_nop 1")
        a("v_cndmask_b32 v%d, 0, v53, vcc" % (SEL + d))
    a("s_cmp_lg_u32 s14, 3")
    a("s_cbranch_scc1 A_S1_OK")
    if not E("NOS1", 0): poll(a, WS, "s41", VZ, VT, sleep=PSL)
    a.label("A_S1_OK")
    a("s_barrier")
    stamp(a, 10)
    for m in range(16):
        if E("FAKEG", 0) and m >= 4: continue
        if m % 4 == 0 and m: a("s_add_u32 s28, s28, 4096")
        a.vmem("buffer_load_dwordx4 %s, v%d, s[32:35], s28 offen offset:%d sc1" % (vr(64 + 4 * m, 4), VA, (m % 4) * 1024), "p%d" % m)
    a("""
    s_lshl_b32 s28, s36, 15
    s_lshl_b32 s29, s39, 11
    s_add_u32 s28, s28, s29
    s_add_u32 s28, s28, {OFO}
    s_lshr_b32 s40, s36, 1
    s_lshl_b32 s40, s40, 8
    s_add_u32 s40, s40, {SY}
    """.format(OFO=hex(OF_OFF), SY=hex(SYNC_OFF)))
    for m in range(16):
        a.wait(vm="p%d" % m)
        a("%s %s, %s, %s, %s" % (MF, vr(KS, 16), vr(SEL, 4), vr(64 + 4 * m, 4), "0" if m == 0 else vr(KS, 16)))
    a("s_nop 11")
    for r in range(4): a("v_cvt_pk_bf16_f32 v%d, v%d, v%d" % (KVB + r, KS + 2 * r, KS + 2 * r + 1))
    a.ds("ds_write_b128 v55, %s" % vr(KVB, 4))
    a.drain(vm=False)
    a("s_barrier")
    for n_ in range(4): a.ds("ds_read_b128 %s, v%d offset:%d" % (vr(KVB + 4 * n_, 4), VA, n_ * 1024), "kvl%d" % n_)
    for n_ in range(4):
        a.wait(lg="kvl%d" % n_)
        a("%s %s, %s, %s, %s" % (MF, vr(OD, 16), vr(KVB + 4 * n_, 4), vr(OUT + 4 * n_, 4), "0" if n_ == 0 else vr(OD, 16)))
    a("""
    s_nop 11
    v_mov_b32 v0, v{D12}
    v_mov_b32 v2, v{D12}
    s_nop 1
    v_permlane32_swap_b32 v0, v2
    s_nop 0
    v_add_f32 v2, {EPS}, v2
    v_rcp_f32 v2, v2
    s_nop 0
    """.format(D12=OD + 12, EPS=f32(1e-6)))
    for i in range(2):
        for r in range(8): a("v_mul_f32 v%d, v%d, v2" % (OD + 8 * i + r, OD + 8 * i + r))
        for r in range(4): a("v_cvt_pk_bf16_f32 v%d, v%d, v%d" % (KVB + 4 * i + r, OD + 8 * i + 2 * r, OD + 8 * i + 2 * r + 1))
        a.vmem("buffer_store_dwordx4 %s, v%d, s[32:35], s28 offen offset:%d sc1" % (vr(KVB + 4 * i, 4), VA, i * 1024))
    a.drain(lg=False)
    arrive_issue(a, "s40 offset:%d" % (S2_CNT * SL))
    arrive_finish(a, 31, ["s40 offset:%d" % (S2_REL * SL)], "A_FIN")
    a.label("A_FIN")
    stamp_flush(a, 11, 4, "A")
    a("s_endpgm")

class G:
    ACC = 0; B = 64; F = 64 + 8 * NB
    W0 = 232; W1 = 233; FA = 234; FB = 235; LA = 236; LB = 237
    LN = 238; L16 = 239; RES = 240
    VX = 248; VB2 = 249; VZ = 250; VT = 251; T0 = 252; T1 = 253; T2 = 254
assert G.F + 8 * NF <= 232
SLDS = 50
SJ = [6, 7, 8, 9, 10, 11, 48, 49]
SC = [51, 15, 59, 3]

def g_waddr(a, RS, scol):
    a("""
    v_lshrrev_b32 v{T0}, 3, v{L}
    v_mul_u32_u24 v{W0}, {RS}, v{T0}
    v_lshrrev_b32 v{T1}, 2, v{L}
    v_and_b32 v{T1}, 4, v{T1}
    v_and_b32 v{T2}, 7, v{L}
    v_xor_b32 v{T1}, v{T1}, v{T2}
    v_lshl_add_u32 v{W0}, v{T1}, 4, v{W0}
    v_add_u32 v{W0}, {scol}, v{W0}
    v_add_u32 v{W1}, {RS8}, v{W0}
    """.format(T0=G.T0, T1=G.T1, T2=G.T2, L=G.LN, W0=G.W0, W1=G.W1, RS=RS, RS8=8 * RS, scol=scol))
def g_laddr(a, perm2):
    a("""
    v_bfe_u32 v{T0}, v{L}, 4, 1
    v_lshrrev_b32 v{T1}, 5, v{L}
    v_lshlrev_b32 v{LA}, {HS}, v{T1}
    v_lshl_add_u32 v{LA}, v{T0}, 5, v{LA}
    v_bfe_u32 v{T1}, v{L}, 2, 2
    v_lshl_add_u32 v{LA}, v{T1}, 7, v{LA}
    v_lshrrev_b32 v{T1}, 1, v{T1}
    v_lshl_add_u32 v{LA}, v{T1}, 6, v{LA}
    v_and_b32 v{T1}, 3, v{L}
    v_lshl_add_u32 v{LA}, v{T1}, 3, v{LA}
    s_lshl_b32 s36, s14, 5
    s_and_b32 s36, s36, 64
    v_xor_b32 v{LA}, s36, v{LA}
    v_add_u32 v{LA}, s{SLDS}, v{LA}
    v_xor_b32 v{LB}, 64, v{LA}
    """.format(T0=G.T0, T1=G.T1, L=G.LN, LA=G.LA, LB=G.LB, HS=(9 if perm2 else 10), SLDS=SLDS))

class Stream:
    def __init__(self, a, name, srdw, RS, NK, perm2, pol, slots, nb):
        self.nb = nb
        self.fb = {}; self.nf = 0; self.ffree = None; self.ring = [G.F + 8 * i for i in range(NF)]
        self.a = a; self.n = name; self.srd = srdw; self.RS = RS; self.NK = NK; self.perm2 = perm2; self.pol = pol
        o = self.order(); first = [p for p in range(NK) if o[p][0] == 0]
        self.dorder = first + [p for p in range(NK) if p not in first]
        assert sorted(self.dorder[:self.nb]) == list(range(self.nb)) and self.dorder[self.nb:] == list(range(self.nb, NK))
        self.free = [(s, None) for s in slots]
        self.slot = {}; self.nd = 0; self.nr = 0
    def can_dma(self): return self.nd < self.NK and len(self.free) > 0
    def order(self):
        ng = self.NK // 4; o = [(j, 0) for j in range(min(LEAD, ng))]
        for j in range(ng):
            if j + LEAD < ng: o.append((j + LEAD, 0))
            o += [(j, 1), (j, 2), (j, 3)]
        if LEAD == 0: o = [(j, r) for j in range(ng) for r in range(4)]
        assert len(o) == self.NK
        return o
    def tstep(self, p, dst):
        j, rel = self.order()[p]
        if self.n == "b" and not ROT2: self.a("s_add_u32 %s, s%d, %d" % (dst, SC[rel], 16 * j))
        else: self.a("s_add_u32 %s, s%d, s%d" % (dst, SJ[j], SC[rel]))
    def dma_parts(self):
        a = self.a; p = self.dorder[self.nd]; self.nd += 1
        sl, tag = self.free.pop(0); self.slot[p] = sl
        def p0():
            if tag: a.wait(lg=tag)
            self.tstep(p, "s58")
            a("s_add_u32 m0, s%d, %d" % (SLDS, sl * 2048))
            a("s_mul_i32 s58, s58, %d" % (16 * self.RS))
            a.vmem("buffer_load_dwordx4 v%d, s[%d:%d], s58 offen %s lds" % (G.W0, self.srd, self.srd + 3, self.pol), "%sd%d" % (self.n, p))
            a("s_add_u32 m0, s%d, %d" % (SLDS, sl * 2048 + 1024))
        def p1():
            a("s_nop 0")
            a.vmem("buffer_load_dwordx4 v%d, s[%d:%d], s58 offen %s lds" % (G.W1, self.srd, self.srd + 3, self.pol), "%sd%d" % (self.n, p))
        return [p0, p1]
    def dma(self):
        for f in self.dma_parts(): f()
    def read_parts(self):
        a = self.a; p = self.dorder[self.nr]; self.nr += 1
        assert p in self.slot
        sl = self.slot[p]; b = G.B + 8 * (p % self.nb); io = 1024 if self.perm2 else 512
        self.free.append((sl, "%sr%d" % (self.n, p)))
        def part(u):
            def f():
                a.wait(vm="%sd%d" % (self.n, p))
                for i in range(2):
                    a.ds("ds_read_b64_tr_b16 %s, v%d offset:%d" % (vr(b + 4 * u + 2 * i, 2), G.LA + u, sl * 2048 + i * io), "%sr%d" % (self.n, p))
            return f
        return [part(0), part(1)]
    def read(self):
        for f in self.read_parts(): f()
    def inflight(self):
        seen = []
        for t in self.a.vm.ops:
            if t and t.startswith(self.n + "d") and t not in seen: seen.append(t)
        return seen
    def pump(self, ahead):
        did = False
        while self.can_dma() and len(self.inflight()) < ahead: self.dma(); did = True
        if self.nr < self.nb and self.nr < self.nd: self.read(); did = True
        elif self.can_dma():
            self.a.wait(vm=self.inflight()[0]); did = True
        return did
    def tables(self, srot, ssh, part=None):
        a = self.a; ng = self.NK // 4
        if part != 0:
            a("s_lshl_b32 s%d, %s, 4" % (SJ[0], srot))
            for j in range(1, 7):
                a("s_add_u32 s%d, s%d, 16" % (SJ[j], SJ[j - 1]))
                a("s_cmp_ge_u32 s%d, 112" % SJ[j])
                a("s_cselect_b32 s%d, 0, s%d" % (SJ[j], SJ[j]))
            a("s_movk_i32 s%d, 112" % SJ[7])
        if part != 1:
            a("s_lshl_b32 s61, %s, 2" % ssh)
            for r in range(4):
                a("s_add_u32 s%d, s61, %d" % (SC[r], 4 * r))
                a("s_and_b32 s%d, s%d, 12" % (SC[r], SC[r]))
                a("s_add_u32 s%d, s%d, s14" % (SC[r], SC[r]))
    def freg(self, t): return self.fb.get(t, self.ring[t % len(self.ring)])
    def fnext(self, t, srdf, maxn):
        out = []
        while self.nf < self.NK and len(out) < 2 * maxn and self.nf - t <= FLOOK:
            c = [x for x in self.ffree if x[0] < t]
            if not c: break
            self.ffree.remove(c[0]); self.fb[self.nf] = c[0][1]
            self.ffree.append((self.nf, c[0][1]))
            out += self.fload_parts(self.nf, srdf); self.nf += 1
        return out
    def fload_parts(self, t, srdf):
        a = self.a; f = self.freg(t)
        def p0():
            self.tstep(t, "s60")
            a("s_lshl_b32 s60, s60, 11")
            a.vmem("buffer_load_dwordx4 %s, v%d, s[%d:%d], s60 offen sc1" % (vr(f, 4), G.FA, srdf, srdf + 3), "%sf%d" % (self.n, t))
        def p1():
            a.vmem("buffer_load_dwordx4 %s, v%d, s[%d:%d], s60 offen sc1" % (vr(f + 4, 4), G.FB, srdf, srdf + 3), "%sf%d" % (self.n, t))
        return [p0, p1]
    def fload(self, t, srdf):
        for f in self.fload_parts(t, srdf): f()
    def step(self, t, weights_are_A, fill):
        a = self.a; b = G.B + 8 * (t % self.nb); f = self.freg(t)
        a.wait(vm="%sf%d" % (self.n, t), lg="%sr%d" % (self.n, t))
        gaps = [[], [], [], []]
        for i, p in enumerate(fill): gaps[min(3, i * 4 // max(4, len(fill)))].append(p)
        for n in range(4):
            uw, uf = n >> 1, n & 1
            acc = vr(G.ACC + 16 * n, 16)
            W, F = vr(b + 4 * uw, 4), vr(f + 4 * uf, 4)
            A_, B_ = (W, F) if weights_are_A else (F, W)
            a("%s %s, %s, %s, %s" % (MF, acc, A_, B_, "0" if (t == 0 and n > 0) else acc))
            for p in gaps[n]: p()
    def loop_fill(self, t, srdf):
        fill = []
        if self.ffree is not None: fill += self.fnext(t, srdf, 2)
        elif t + len(self.ring) - 1 < self.NK: fill += self.fload_parts(t + len(self.ring) - 1, srdf)
        dm = self.dma_parts() if self.can_dma() else []
        if t >= 1 and self.nr < self.NK and self.nr - self.nb <= t - 1: fill += self.read_parts()
        return fill + dm

def g_reduce_write(a, mid=None, pre=None, tail=None):
    a("v_add_u32 v%d, s%d, v%d" % (G.VT, SLDS, G.L16))
    def wr(t, q): a.ds("ds_write_b128 v%d, %s offset:%d" % (G.VT, vr(G.ACC + 16 * t + 4 * q, 4), 8192 + (t - 1) * 4096 + q * 1024), "rw")
    if tail:
        prev = None
        for n in (1, 2, 3, 0):
            acc = vr(G.ACC + 16 * n, 16); qs = [0, 1, 2, 3] if prev else []
            for i, pick in enumerate(tail):
                A_, B_ = pick(n)
                a("%s %s, %s, %s, %s" % (MF, acc, A_, B_, acc))
                if qs and i == 0: a("s_nop 10")
                for _ in range(1 if i == 0 else 2):
                    if qs: wr(prev, qs.pop(0))
            while qs: wr(prev, qs.pop(0))
            prev = n
    else:
        a("s_nop 10")
        for t in range(1, 4):
            for q in range(4): wr(t, q)
    for t in range(1, 4):
        a("s_xor_b32 s60, s14, %d" % t)
        a("s_mul_i32 s60, s60, %d" % (NS * 2048))
        a("v_add_u32 v%d, s60, v%d" % (G.T0 + t - 1, G.L16))
    if pre: pre()
    a.wait(lg="rw")
    a("s_barrier")
    if mid: mid()
    for t in range(1, 4):
        for q in range(4):
            a.ds("ds_read_b128 %s, v%d offset:%d" % (vr(G.ACC + 16 * t + 4 * q, 4), G.T0 + t - 1, 8192 + (t - 1) * 4096 + q * 1024), "rr%d" % t)
def v2(a, op, d, x, y, n, pk):
    if pk:
        for r in range(0, n, 2): a("v_pk_%s_f32 %s, %s, %s" % (op, vr(d + r, 2), vr(x + r, 2), vr(y + r, 2)))
    else:
        for r in range(n): a("v_%s_f32 v%d, v%d, v%d" % (op, d + r, x + r, y + r))
def g_reduce_add(a, pk=True):
    for t in range(1, 4):
        a.wait(lg="rr%d" % t)
        v2(a, "add", 0, 0, 16 * t, 16, pk)

def role_g(a):
    a.vm.clear(); a.lg.clear()
    a.label("ROLE_G")
    if ONLYA: a("s_endpgm")
    a("""
    v_and_b32 v{LN}, 63, v0
    s_mul_i32 s61, s57, 37
    s_lshr_b32 s61, s61, 8
    s_lshl_b32 s66, s56, 2
    s_add_u32 s66, s66, s61
    s_mul_i32 s61, s61, 7
    s_sub_u32 s64, s57, s61
    s_mul_i32 s{SLDS}, s14, {WB}
    s_lshl_b32 s67, s66, 7
    s_lshr_b32 s60, s14, 1
    s_lshl_b32 s60, s60, 6
    s_add_u32 s60, s60, s67
    v_lshrrev_b32 v{VT}, 5, v{LN}
    v_lshlrev_b32 v{VT}, 3, v{VT}
    """.format(LN=G.LN, SLDS=SLDS, WB=NS * 2048, VT=G.VT))
    s1 = Stream(a, "a", 16, 3584, NK1, False, os.environ.get("W1POL0", "nt"), list(range(NS)), NB)
    s2 = Stream(a, "b", 24, 4096, 28, True, W2POL, list(range(4)), NB2)
    def burst(st):
        for p in range(4):
            if len(st.inflight()) >= AHEAD0: a.wait(vm=st.inflight()[0])
            st.dma()
        if len(st.inflight()) >= AHEAD0: a.wait(vm=st.inflight()[0])
    g_waddr(a, 3584, "s67")
    s1.tables("s64", "s66", part=0)
    a("s_mov_b32 s18, %d" % (2048 * 3584))
    a("s_mov_b32 s19, 0x20000")
    a("s_waitcnt lgkmcnt(0)")
    a("s_mov_b32 s16, s40")
    a("s_and_b32 s17, s41, 0xffff")
    a("s_lshl_b32 s%d, s64, 4" % SJ[0])
    a("s_cmp_eq_u32 s56, 7")
    if ONLY2: a("s_branch G_SETUP")
    a("s_cbranch_scc1 G_SETUP")
    if GWAIT:
        a("global_load_dword v%d, v%d, s[42:43] nt" % (G.T0, G.VT))
        a("s_waitcnt vmcnt(0)")
    burst(s1)
    a.label("G_SETUP")
    stamp(a, 1)
    srd(a, 36, 42, str(1792 * 2))
    for q in range(4):
        a.vmem("buffer_load_dwordx2 %s, v%d, s[36:39], s60 offen offset:%d nt" % (vr(G.F + 2 * q, 2), G.VT, 16 * q), "b1")
    ws_base(a)
    srd(a, WS, 30, hex(WS_USED))
    a("""
    s_setprio {PRIO}
    v_lshlrev_b32 v{L16}, 4, v{LN}
    v_mov_b32 v{VZ}, 0
    s_lshr_b32 s60, s14, 1
    s_lshl_b32 s60, s60, 5
    s_lshl_b32 s61, s66, 6
    s_add_u32 s60, s60, s61
    v_and_b32 v{T0}, 31, v{LN}
    v_add_u32 v{T0}, s60, v{T0}
    v_mul_u32_u24 v{VX}, 896, v{T0}
    v_lshlrev_b32 v{T1}, 1, v{VT}
    s_lshl_b32 s60, s64, 7
    s_and_b32 s61, s14, 1
    s_lshl_b32 s61, s61, 6
    s_add_u32 s60, s60, s61
    v_add3_u32 v{VX}, v{VX}, v{T1}, s60
    v_lshlrev_b32 v{VB2}, 1, v{T0}
    s_and_b32 s60, s14, 1
    s_lshl_b32 s60, s60, 10
    v_add_u32 v{FA}, s60, v{L16}
    v_xor_b32 v{FB}, 0x400, v{FA}
    s_lshl_b32 s68, s64, 18
    s_add_u32 s68, s68, {HTO}
    s_mul_i32 s60, s64, {UG}
    s_add_u32 s60, s60, {UPO}
    """.format(PRIO=PRIO_G, L16=G.L16, LN=G.LN, VZ=G.VZ, T0=G.T0, T1=G.T1, VT=G.VT, VX=G.VX, VB2=G.VB2,
               FA=G.FA, FB=G.FB, HTO=hex(HT_OFF), UG=UP_G, UPO=hex(UP_OFF)))
    srd(a, 40, 30, str(UP_G), add="s60")
    srd(a, DBG, 28, "256")
    srd(a, 24, 52, str(1792 * 4096))
    srd(a, 20, 30, str(HT_G), add="s68")
    def sw2():
        g_waddr(a, 4096, "s67")
        g_laddr(a, True)
    def res_loads():
        for i in range(2):
            a.vmem("global_load_dwordx4 %s, v%d, s[4:5] offset:%d" % (vr(G.RES + 4 * i, 4), G.VX, 32 * i), "res")
    a.vmem("global_load_ushort v%d, v%d, s[54:55] nt" % (G.VB2, G.VB2), "b1")
    a("s_movk_i32 s68, 0x80")
    if not ONLY2:
        a("s_cmp_lt_u32 s56, 7")
        a("s_cbranch_scc1 G_TILE1")
    sv = list(a.vm.ops)
    if HELP and not ONLY2:
        a.vm.clear(); a.lg.clear()
        a("s_setprio %d" % E("PRIO_H", 3))
        a("s_lshl_b32 s36, s57, 7")
        g_waddr(a, 3584, "s36")
        a("s_lshl_b32 s58, s14, 2")
        a("s_add_u32 s58, s58, 112")
        a("s_mul_i32 s58, s58, %d" % (16 * 3584))
        a("s_lshl_b32 s59, s14, 13")
        for i in range(4):
            a("s_add_u32 m0, s59, %d" % (i * 2048))
            a("s_nop 0")
            a.vmem("buffer_load_dwordx4 v%d, s[16:19], s58 offen nt lds" % G.W0)
            a("s_add_u32 m0, s59, %d" % (i * 2048 + 1024))
            a("s_nop 0")
            a.vmem("buffer_load_dwordx4 v%d, s[16:19], s58 offen nt lds" % G.W1)
            a("s_add_u32 s58, s58, %d" % (16 * 3584))
        g_laddr(a, False)
        a("v_subrev_u32 v%d, s%d, v%d" % (G.LA, SLDS, G.LA))
        a("v_xor_b32 v%d, s36, v%d" % (G.LA, G.LA))
        a("v_xor_b32 v%d, 64, v%d" % (G.LB, G.LA))
        a.drain()
        a("s_barrier")
        for kk in range(16):
            for u in range(2):
                for i in range(2):
                    a.ds("ds_read_b64_tr_b16 %s, v%d offset:%d" % (vr(G.B + 8 * kk + 4 * u + 2 * i, 2), G.LA + u, kk * 2048 + i * 512))
        poll(a, DBG, "s68", G.VZ, G.VT, sleep=2)
        a.drain()
        stamp(a, 5)
        a("s_lshl_b32 s58, s14, 18")
        a("s_add_u32 s58, s58, %s" % hex(HT_OFF + 112 * 2048))
        a("s_mul_i32 s48, s57, 7")
        a("s_add_u32 s48, s48, s14")
        a("s_lshl_b32 s48, s48, 13")
        a("s_add_u32 s48, s48, %s" % hex(PART_OFF))
        a("s_cmp_eq_u32 s14, 3")
        a("s_cselect_b32 s49, 0x08000000, 0")
        def hload(kk):
            f = G.F + 8 * (kk % NF)
            if kk == 16:
                a("s_add_u32 s58, s58, %d" % (4 * HT_G - 7 * 4096))
                a("s_or_b32 s58, s58, s49")
            elif kk % 2 == 0 and kk: a("s_add_u32 s58, s58, 4096")
            for u in range(2):
                a.vmem("buffer_load_dwordx4 %s, v%d, s[32:35], s58 offen offset:%d sc1" % (vr(f + 4 * u, 4), G.L16, (kk % 2) * 2048 + u * 1024), "h%d" % kk)
        for kk in range(NF - 1): hload(kk)
        for kk in range(32):
            a.wait(vm="h%d" % kk)
            f = G.F + 8 * (kk % NF)
            for n in range(4):
                acc = vr(16 * n, 16)
                a("%s %s, %s, %s, %s" % (MF, acc, vr(G.B + 8 * (kk % 16) + 4 * (n >> 1), 4), vr(f + 4 * (n & 1), 4), "0" if kk % 16 == 0 else acc))
                if n == 0 and kk + NF - 1 < 32: hload(kk + NF - 1)
            if kk % 16 == 15:
                a("s_add_u32 s59, s48, 4096")
                a("s_nop 8")
                for n in range(8):
                    for r in range(4): a("v_cvt_pk_bf16_f32 v%d, v%d, v%d" % (4 * n + r, 8 * n + 2 * r, 8 * n + 2 * r + 1))
                    a.vmem("buffer_store_dwordx4 %s, v%d, s[32:35], %s offen offset:%d sc1" % (vr(4 * n, 4), G.L16, "s59" if n >= 4 else "s48", (n % 4) * 1024))
                if kk == 15:
                    a("s_add_u32 s48, s48, %d" % (4 * 8192))
                    a("s_cmp_eq_u32 s14, 3")
                    a("s_cbranch_scc1 H_FIN")
                    stamp(a, 6)
        a.label("H_FIN")
        a.drain()
        a("s_barrier")
        a("s_cmp_lg_u32 s14, 0")
        a("s_cbranch_scc1 H_DONE")
        a("s_lshl_b32 s58, s57, 8")
        a("s_add_u32 s58, s58, %s" % hex(SYNC_OFF + SH_REL * SL))
        arrive(a, "s58")
        a.label("H_DONE")
        a("s_setprio %d" % PRIO_G)
    MROW = E("MROW", 896)
    a.vm.clear(); a.lg.clear()
    poll(a, DBG, "s68", G.VZ, G.VT, sleep=8)
    if MROW < 1792 and not (ONLY2 or ONLYG):
        a("s_setprio %d" % E("PRIO_M", 0))
        a("s_lshl_b32 s58, s57, 2")
        a("s_add_u32 s58, s58, s14")
        a("s_lshl_b32 s58, s58, 10")
        a("s_add_u32 s58, s58, %d" % (MROW * 4096))
        a.label("M_W2")
        for i in range(4):
            a("s_waitcnt vmcnt(%d)" % (E("MDEPTH", 8) - 1))
            a("buffer_load_dwordx4 %s, v%d, s[24:27], s58 offen" % (vr(G.F + 8 + 4 * i, 4), G.L16))
            a("s_add_u32 s58, s58, %d" % (112 * 1024))
        a("s_cmp_lt_u32 s58, %d" % (1792 * 4096))
        a("s_cbranch_scc1 M_W2")
    a("s_setprio %d" % E("PRIO_7", 1))
    a("s_mov_b32 s69, %s" % hex(SYNC_OFF + ((SV_REL if TWO else SW_REL) + 7) * SL))
    poll(a, WS, "s69", G.VZ, G.VT, sleep=8)
    for i in range(7, 9): stamp(a, i)
    sw2()
    s2.tables("s64", "s66")
    a("s_mov_b32 s65, 1")
    a("s_branch G_JOIN")
    a.vm.ops = sv; a.lg.clear()
    a.label("G_TILE1")
    s1.tables("s64", "s66", part=1)
    g_laddr(a, False)
    if RESEARLY: res_loads()
    if E("BDRAIN", 1): a.drain(lg=False)
    else: a.wait(vm="ad%d" % s1.dorder[E("BWAIT", 1)])
    s1.pol = W1POL2
    stamp(a, 2)
    while s1.nd < NB + NS - 2: s1.pump(AHEAD)
    flag_issue(a, DBG, "s68", G.VZ, G.VT, "f0")
    a.wait(vm="b1")
    for q in range(8):
        a("v_lshlrev_b32 v%d, 16, v%d" % (2 * q, G.F + q))
        a("v_and_b32 v%d, 0xffff0000, v%d" % (2 * q + 1, G.F + q))
    while s1.pump(AHEAD): pass
    stamp(a, 3)
    if not E("NOS0", 0): flag_check(a, DBG, "s68", G.VZ, G.VT, "f0", 2)
    stamp(a, 4)
    if FLOOK:
        s1.ffree = [(-2, G.F + 8 * i) for i in range(NF)] + ([(-2, G.RES)] if not RESEARLY else []) + [(p, G.B + 8 * (p % NB)) for p in range(NK1 - NB, NK1)]
        for f in s1.fnext(-1, 20, 99): f()
    else:
        for t in range(NF - 1): s1.fload(t, 20)
    log = []
    at = {}; fr_ok = [0]
    HP_ = G.B
    for t in range(NK1):
        if t in (8, 16, 24) and not E("WST", 0): stamp(a, 4 + t // 8)
        fill = s1.loop_fill(t, 20)
        if t == 16:
            def fw():
                a("s_lshl_b32 s69, s56, 8")
                a("s_add_u32 s69, s69, %s" % hex(SYNC_OFF + (SV_REL if TWO else SW_REL) * SL))
                flag_issue(a, WS, "s69", G.VZ, G.VT, "fw")
            fill.append(fw)
        if t == 22: flag_check(a, WS, "s69", G.VZ, G.VT, "fw", 2)
        if t == NK1 + 1 - NB:
            assert s1.nr == NK1
            fill.append(lambda: (a.drain(vm=False), sw2()))
        if HELP and t == NK1 - 1 - E("HLAG", 5):
            def fh():
                a("s_lshl_b32 s69, s66, 8")
                a("s_add_u32 s69, s69, %s" % hex(SYNC_OFF + SH_REL * SL))
                flag_issue(a, WS, "s69", G.VZ, G.VT, "fh")
            fill.append(fh)
        if HELP and t == NK1 - 1:
            def ph():
                flag_check(a, WS, "s69", G.VZ, G.VT, "fh", 1)
                a("s_mul_i32 s60, s66, 7")
                a("s_add_u32 s60, s60, s64")
                a("s_lshl_b32 s60, s60, 2")
                a("s_add_u32 s60, s60, s14")
                a("s_lshl_b32 s60, s60, 11")
                a("s_add_u32 s60, s60, %s" % hex(PART_OFF))
                for i in range(2):
                    a.vmem("buffer_load_dwordx4 %s, v%d, s[32:35], s60 offen offset:%d sc1" % (vr(HP_ + 4 * i, 4), G.L16, i * 1024), "hp")
            fill += [lambda: None] * 3 + [ph]
        W2S = E("W2S", 0)
        if W2S and W2S <= t < W2S + 4:
            fill += s2.dma_parts(); log.append("d")
        if t >= NK1 - TAILM:
            assert not fill
            continue
        s1.step(t, True, fill)
    tail1 = []
    for t in range(NK1 - TAILM, NK1):
        a.wait(vm="af%d" % t, lg="ar%d" % t)
        tail1.append(lambda n, t=t: (vr(G.B + 8 * (t % NB) + 4 * (n >> 1), 4), vr(s1.freg(t) + 4 * (n & 1), 4)))
    stamp(a, 5 if E("WST", 0) else 8)
    def rd(n=1):
        for _ in range(n): s2.read(); log.append("r")
    def dm(n=1):
        for _ in range(n):
            first = s2.nd < 4
            s2.pol = os.environ.get("W2POL0", "") if first else W2POL
            s2.dma(); log.append("d")
            s2.pol = W2POL
            if first and s2.nd == 4 and E("TOUCH", 0):
                a("v_lshrrev_b32 v%d, 4, v%d" % (G.F, G.LN))
                a("v_lshlrev_b32 v%d, 18, v%d" % (G.F, G.F))
                a("v_and_b32 v%d, 15, v%d" % ((G.F + 1), G.LN))
                a("v_lshl_add_u32 v%d, v%d, 12, v%d" % (G.F, (G.F + 1), G.F))
                a("s_add_u32 s58, s%d, s14" % SJ[0])
                a("s_lshl_b32 s58, s58, 16")
                a("s_add_u32 s58, s58, s67")
                a.vmem("buffer_load_dword v%d, v%d, s[24:27], s58 offen" % ((G.F + 2), G.F), "touch")
    oa = {}; ob = {}
    def oa_parts(j):
        def p0():
            if j % 2 == 0 and j > 0: a("s_add_u32 s56, s56, 4096")
            a.vmem("buffer_load_dwordx4 %s, v%d, s[40:43], s56 offen offset:%d sc1" % (vr(oa[j], 4), G.FA, (j % 2) * 2048), "oa%d" % j)
        def p1():
            a.vmem("buffer_load_dwordx4 %s, v%d, s[40:43], s56 offen offset:%d sc1" % (vr(oa[j] + 4, 4), G.FB, (j % 2) * 2048), "oa%d" % j)
        return [p0, p1]
    def oa_base():
        a("s_lshl_b32 s56, s14, 14")
        a("s_add_u32 s56, s56, %d" % (112 * 2048))
    oa_base()
    early = []
    for j in range(NOA):
        oa[j] = G.B + 8 * (NB2 + j); early += oa_parts(j)
    g_reduce_write(a, mid=(lambda: (rd(WPUMP), dm(WPUMP))) if WPUMP else None, pre=lambda: (a.sprinkle(list(early), E("OAGAP", 5)), (rd(E("WRD", 0)), dm(WPRE))), tail=tail1)
    g_reduce_add(a, not NOPK)
    if HELP:
        a.wait(vm="hp")
        for q in range(8):
            a("v_lshlrev_b32 v%d, 16, v%d" % (16 + 2 * q, HP_ + q))
            a("v_and_b32 v%d, 0xffff0000, v%d" % (17 + 2 * q, HP_ + q))
        v2(a, "add", 0, 0, 16, 16, not NOPK)
    if E("WST", 0): stamp(a, 6)
    a("s_barrier")
    s2.free += [(s_, None) for s_ in range(4, NS)]
    log.append("f")
    if E("WST", 0): stamp(a, 7)
    c1 = -2.0 * 0.7978845608028654 * 1.4426950408889634
    c2 = c1 * 0.044715
    left = [WDMA1]
    def ride():
        if left[0] > 0: dm(); left[0] -= 1
    a("s_mov_b32 s60, %s" % f32(c2))
    a("v_mov_b32 v48, %s" % f32(c1))
    ride()
    v2(a, "mul", 16, 0, 0, 16, not NOPK)
    ride()
    for r in range(16): a("v_fma_f32 v%d, v%d, s60, v48" % (16 + r, 16 + r))
    ride()
    v2(a, "mul", 16, 16, 0, 16, not NOPK)
    for r in range(16): a("v_exp_f32 v%d, v%d" % (16 + r, 16 + r))
    ride()
    for r in range(16): a("v_add_f32 v%d, 1.0, v%d" % (16 + r, 16 + r))
    ride()
    for r in range(16): a("v_rcp_f32 v%d, v%d" % (16 + r, 16 + r))
    ride()
    a.sprinkle_flush()
    a("""
    s_lshl_b32 s60, s66, 2
    s_and_b32 s61, s14, 2
    s_add_u32 s60, s60, s61
    s_lshl_b32 s60, s60, 11
    """)
    for i in range(2):
        v2(a, "mul", 8 * i, 8 * i, 16 + 8 * i, 8, not NOPK)
        for r in range(4): a("v_cvt_pk_bf16_f32 v%d, v%d, v%d" % (32 + 4 * i + r, 8 * i + 2 * r, 8 * i + 2 * r + 1))
        a.vmem("buffer_store_dwordx4 %s, v%d, s[40:43], s60 offen offset:%d sc1" % (vr(32 + 4 * i, 4), G.FA, i * 2048), "ust")
    if E("WST", 0): stamp(a, 8)
    nb4 = s2.nd
    for p in range(E("WDMA2", 4)):
        if s2.can_dma(): dm()
    rd(min(nb4, NB2) - s2.nr)
    a.wait(vm="ust")
    state = (s2.nd, s2.nr, list(s2.free), dict(s2.slot), list(a.vm.ops), list(a.lg.ops))
    a("s_mov_b32 s65, s14")
    a("s_branch G_JOIN2")
    a.label("G_JOIN")
    a.vm.clear(); a.lg.clear()
    s2b = Stream(a, "b", 24, 4096, 28, True, "nt", list(range(4)), NB2)
    oa_base()
    for f in early: f()
    if RESEARLY: res_loads()
    s2b.pol = W2POL
    for act in log:
        if act == "r": s2b.read()
        elif act == "d": s2b.dma()
        else: s2b.free += [(s_, None) for s_ in range(4, NS)]
    assert (s2b.nd, s2b.nr, s2b.slot) == (state[0], state[1], state[3]) and [x[0] for x in s2b.free] == [x[0] for x in state[2]]
    a.drain()
    a.label("G_JOIN2")
    a.vm.ops = state[4]; a.lg.ops = state[5]
    stamp(a, 9)
    a("s_barrier")
    live = not (ONLY2 or ONLYG)
    def f4_load(tag):
        if not live: return
        a("s_mov_b64 exec, 0x0fffffff")
        a.vmem("buffer_load_dword v%d, v%d, s[32:35], s69 offen sc1" % (G.VT, G.T0), tag)
        a("s_mov_b64 exec, -1")
    def f4_check(tag, upto):
        if not live: return
        l = a.newlabel("F4"); d = a.newlabel("F4D")
        if upto is None: a("s_mov_b32 s63, 0x0fffffff")
        else:
            a("s_mov_b32 s63, 0")
            for j_ in range(upto):
                a("s_lshr_b32 s61, s%d, 2" % SJ[j_])
                a("s_lshl_b32 s61, 15, s61")
                a("s_or_b32 s63, s63, s61")
        a.wait(vm=tag)
        sv4 = list(a.vm.ops)
        a("s_mov_b32 s60, 0")
        a.label(l)
        a("v_cmp_ne_u32 vcc, 0, v%d" % G.VT)
        a("s_and_b32 s61, vcc_lo, s63")
        a("s_cmp_eq_u32 s61, s63")
        a("s_cbranch_scc1 %s" % d)
        a("s_sleep %d" % PSL)
        f4_load(tag)
        a("s_add_u32 s60, s60, 1")
        a.drain(lg=False)
        a("s_cmp_lt_u32 s60, %s" % hex(SPIN_MAX))
        a("s_cbranch_scc1 %s" % l)
        a.label(d)
        a.vm.ops = sv4
    if FINE4:
        assert ROT2 and LEAD == 0
        a("s_lshl_b32 s69, s64, 13")
        a("s_add_u32 s69, s69, %s" % hex(SYNC_OFF + F4 * SL))
        a("s_cmp_lg_u32 s65, 0")
        a("s_cbranch_scc1 G_NOARR")
        a("s_lshl_b32 s61, s66, 8")
        a("s_add_u32 s61, s61, s69")
        arrive(a, "s61")
        a.label("G_NOARR")
        a("v_lshlrev_b32 v%d, 8, v%d" % (G.T0, G.LN))
        while s2.can_dma() and len(s2.inflight()) < AHEAD2: s2.dma()
        if not RESEARLY: res_loads()
        while s2.nd < NB2 + NS - 1: s2.pump(AHEAD2)
        f4_load("f4")
    else:
        a("s_lshl_b32 s69, s64, 8")
        a("s_add_u32 s69, s69, %s" % hex(SYNC_OFF + S4_CNT * SL))
        a("s_mov_b32 s62, 0")
        a("s_cmp_lg_u32 s65, 0")
        a("s_cbranch_scc1 G_NOARR")
        arrive_issue(a, "s69")
        a.label("G_NOARR")
        while s2.can_dma() and len(s2.inflight()) < AHEAD2: s2.dma()
        if not RESEARLY: res_loads()
        arrive_finish(a, 27, ["s69 offset:%d" % ((S4_REL - S4_CNT) * SL)], "G_NOREL")
        a.label("G_NOREL")
        a("s_add_u32 s69, s69, %d" % ((S4_REL - S4_CNT) * SL))
        while s2.nd < NB2 + NS - 1: s2.pump(AHEAD2)
        flag_issue(a, WS, "s69", G.VZ, G.VT, "f4")
    while s2.pump(AHEAD2): pass
    a.wait(vm="res")
    a("v_lshlrev_b32 v16, 16, v%d" % G.VB2)
    for i in range(2):
        a("v_permlane32_swap_b32 v%d, v%d" % (G.RES + 4 * i, G.RES + 4 * i + 2))
        a("v_permlane32_swap_b32 v%d, v%d" % (G.RES + 4 * i + 1, G.RES + 4 * i + 3))
    a("s_nop 0")
    for q in range(8):
        a("v_lshlrev_b32 v%d, 16, v%d" % (2 * q, G.RES + q))
        a("v_and_b32 v%d, 0xffff0000, v%d" % (2 * q + 1, G.RES + q))
    for r in range(16): a("v_add_f32 v%d, v%d, v16" % (r, r))
    srd(a, 20, 12, str(2048 * 896))
    stamp(a, 10)
    if E("RING6", 1): s2.ring.append(G.RES)
    LK = len(s2.ring) - 1
    G4 = E("G4", 0)
    got = [(LK + 3) // 4]
    if FINE4:
        if not E("NOS4", 0): f4_check("f4", got[0] if got[0] <= G4 else None)
        if got[0] <= G4: f4_load("f4")
    else: flag_check(a, WS, "s69", G.VZ, G.VT, "f4", PSL)
    stamp(a, 11)
    for t in range(len(s2.ring) - 1): s2.fload(t, 40)
    a("""
    s_lshl_b32 s57, s66, 16
    s_lshl_b32 s36, s14, 13
    s_add_u32 s57, s57, s36
    s_add_u32 s57, s57, {OFO}
    s_lshl_b32 s36, s14, 14
    s_and_b32 s36, s36, 0x8000
    s_xor_b32 s37, s36, 0x8000
    s_add_u32 s67, s57, s37
    s_add_u32 s57, s57, s36
    s_lshl_b32 s68, s66, 8
    s_add_u32 s68, s68, {REL}
    """.format(OFO=hex(OF_OFF), REL=hex(SYNC_OFF + S2_REL * SL)))
    free = [(p, G.B + 8 * (p % NB2)) for p in range(28 - NB2, 28)] + [(t, s2.freg(t)) for t in range(28 - len(s2.ring), 28)]
    if not E("RING6", 1): free.append((-1, G.RES))
    free.sort()
    def ob_parts(j):
        def p0():
            if j == 4:
                a("s_add_u32 s57, s57, 4096")
                a("s_add_u32 s67, s67, 4096")
            a.vmem("buffer_load_dwordx4 %s, v%d, s[32:35], s57 offen offset:%d sc1" % (vr(ob[j], 4), G.L16, (j % 4) * 1024), "ob%d" % j)
        def p1():
            a.vmem("buffer_load_dwordx4 %s, v%d, s[32:35], s67 offen offset:%d sc1" % (vr(ob[j] + 4, 4), G.L16, (j % 4) * 1024), "ob%d" % j)
        return [p0, p1]
    def ostep(j, fill):
        a.wait(vm=["oa%d" % j, "ob%d" % j])
        for n in range(4):
            uw, uf = n >> 1, n & 1
            acc = vr(G.ACC + 16 * n, 16)
            a("%s %s, %s, %s, %s" % (MF, acc, vr(oa[j] + 4 * uf, 4), vr(ob[j] + 4 * uw, 4), acc))
            if fill: fill.pop(0)()
        for f in fill: f()
    TCHK = E("TCHK", 17)
    OLAG = E("OLAG", 5)
    want = []
    for j in range(8): want += ([("a", j)] if j >= NOA else []) + [("b", j)]
    issued_at = {}; jo = 0
    def take(t, limit):
        out = []
        while want and free and free[0][0] < t and len(out) < limit:
            kind, j = want[0]
            if kind == "b" and t < TCHK:
                nxt = [w_ for w_ in want if w_[0] == "a"]
                if not nxt: break
                kind, j = nxt[0]
            want.remove((kind, j))
            reg = free.pop(0)[1]
            if kind == "a": oa[j] = reg; out += oa_parts(j)
            else: ob[j] = reg; out += ob_parts(j); issued_at[j] = t
        return out
    for t in range(28):
        if ONLY2 and t in (4, 8, 12, 16): stamp(a, 2 + t // 4)
        if FINE4 and got[0] <= G4 and (t + LK) // 4 + 1 > got[0]:
            got[0] += 1
            assert t < TCHK - 5
            f4_check("f4", got[0] if got[0] <= G4 else None)
            if got[0] <= G4: f4_load("f4")
        fill = s2.loop_fill(t, 40)
        if t == TCHK - 5:
            fill.append(lambda: a.vmem("buffer_load_dword v%d, v%d, s[32:35], s68 offen sc1" % (G.VT, G.VZ), "s2"))
        if t == TCHK:
            a.wait(vm="s2")
            a("v_readfirstlane_b32 s62, v%d" % G.VT)
            a("s_cmp_lg_u32 s62, 0")
            a("s_cbranch_scc1 G_S2_OK")
            if not E("FAKEA", 0) and not E("NOS2", 0): poll(a, WS, "s68", G.VZ, G.VT, sleep=2, keep=True)
            a.label("G_S2_OK")
            stamp(a, 12)
        fill += take(t, 4)
        s2.step(t, False, fill)
        if jo in issued_at and issued_at[jo] + OLAG <= t:
            ostep(jo, take(t + 1, 4))
            free.append((t + 1, oa[jo])); free.append((t + 1, ob[jo])); free.sort()
            jo += 1
    assert s2.nr == 28
    if ONLY2: stamp(a, 7)
    for f in take(99, 99): f()
    assert not want
    while jo < 8 - TAILM: ostep(jo, []); jo += 1
    tail2 = []
    while jo < 8:
        a.wait(vm=["oa%d" % jo, "ob%d" % jo])
        tail2.append(lambda n, j=jo: (vr(oa[j] + 4 * (n & 1), 4), vr(ob[j] + 4 * (n >> 1), 4)))
        jo += 1
    if ONLY2: stamp(a, 8)
    g_reduce_write(a, tail=tail2)
    g_reduce_add(a)
    for r in range(8): a("v_cvt_pk_bf16_f32 v%d, v%d, v%d" % (32 + r, 2 * r, 2 * r + 1))
    a("s_nop 1")
    for i in range(2):
        a("v_permlane32_swap_b32 v%d, v%d" % (32 + 4 * i, 34 + 4 * i))
        a("v_permlane32_swap_b32 v%d, v%d" % (33 + 4 * i, 35 + 4 * i))
    for i in range(2): a("buffer_store_dwordx4 %s, v%d, s[20:23], 0 offen offset:%d %s" % (vr(32 + 4 * i, 4), G.VX, 32 * i, OUTPOL))
    stamp_flush(a, 13, 60, "G")

DOC = """; ---------------------------------------------------------------------------------------------------------
; ---------------------------------------------------------------------------------------------------------
"""
HEADER = open("cdna_kernels/%s.s.ref" % NAME).read().split("; Override launch geometry")[0]

def main(path):
    a = Asm()
    a.label(KNAME)
    a("s_cmp_ge_u32 s2, 512")
    a("s_cbranch_scc1 K_END")
    stamp(a, 0)
    a("""
    s_load_dwordx8 s[4:11], s[0:1], 0
    s_load_dwordx4 s[28:31], s[0:1], 80
    s_load_dwordx4 s[40:43], s[0:1], 40
    s_load_dwordx4 s[52:55], s[0:1], 56
    s_load_dwordx2 s[12:13], s[0:1], 72
    v_lshrrev_b32 v1, 6, v0
    s_and_b32 s56, s2, 7
    v_readfirstlane_b32 s14, v1
    s_bfe_u32 s57, s2, 0x50003
    s_cmp_lt_u32 s2, 256
    s_cbranch_scc1 ROLE_A
    s_cmp_ge_u32 s57, 28
    s_cbranch_scc1 K_P
    s_cmp_lg_u32 s56, 7
    s_cbranch_scc1 ROLE_G
    s_add_u32 s36, s57, 32
    s_lshl_b32 s37, s57, 2
    s_add_u32 s37, s37, s14
    s_cmp_lt_u32 s37, 83
    s_cbranch_scc1 ROLE_P
    s_cmp_lg_u32 s14, 3
    s_cbranch_scc1 ROLE_P
    s_sub_u32 s37, 27, s57
    s_lshl_b32 s38, s37, 14
    v_and_b32 v6, 63, v0
    v_lshlrev_b32 v6, 8, v6
    v_add_u32 v6, {SYA}, v6
    v_add_u32 v6, s38, v6
    v_mov_b32 v7, 0
    s_waitcnt lgkmcnt(0)
    global_store_dword v6, v7, s[30:31] sc1
    s_cmp_lg_u32 s37, 0
    s_cbranch_scc1 ROLE_P
    s_mov_b32 s62, 1
    s_waitcnt vmcnt(0)
    s_atomic_add s62, s[28:29], 0x0
    s_branch ROLE_P
    K_P:
    s_sub_u32 s36, s2, 480
    s_branch ROLE_P
    """.format(SYA=hex(SYNC_OFF + WSBASE)))
    n0 = len(a.lines)
    role_a(a)
    n1 = len(a.lines)
    role_g(a)
    if GTOP:
        n2 = a.lines.index("G_SETUP:")
        head = a.lines[n1:n2] + ["    s_branch G_SETUP"]
        if GTOP == 1: a.lines = a.lines[:n0] + head + a.lines[n0:n1] + a.lines[n2:]
        else:
            k = n0 + next(i for i, l in enumerate(a.lines[n0:n1]) if "global_load_dwordx4 v[12:15]" in l) + 1
            a.lines = a.lines[:k] + ["    s_branch A_CONT"] + head + ["A_CONT:"] + a.lines[k:n1] + a.lines[n2:]
    a.label("K_END")
    a("s_endpgm")
    a.vm.clear(); a.lg.clear()
    a.label("ROLE_P")
    if ONLY2 or ONLYG:
        a("s_cmp_lt_u32 s57, 28")
        a("s_cbranch_scc1 ROLE_G")
        a("s_endpgm")
    a("""
    s_lshl_b32 s36, s36, 2
    s_add_u32 s36, s36, s14
    v_and_b32 v1, 63, v0
    v_lshrrev_b32 v2, 3, v1
    v_and_b32 v3, 7, v1
    v_lshlrev_b32 v3, 4, v3
    s_mov_b32 s19, 0x20000
    s_lshl_b32 s49, s14, 12
    s_mov_b32 s66, 0
    s_cmp_ge_u32 s36, 196
    s_cbranch_scc1 P_JPHI
    s_mul_i32 s37, s36, 4682
    s_lshr_b32 s37, s37, 16
    s_mul_i32 s38, s37, 14
    s_sub_u32 s38, s36, s38
    s_add_u32 s38, s38, 7
    P_JW:
    s_mov_b32 s67, 0
    s_mul_i32 s20, s37, 86016
    s_lshl_b32 s39, s38, 7
    s_add_u32 s20, s20, s39
    s_add_u32 s21, s20, 43008
    s_movk_i32 s50, 2688
    s_mov_b32 s18, {WSZ}
    s_mov_b32 s51, 8
    s_waitcnt lgkmcnt(0)
    s_mov_b32 s16, s6
    s_and_b32 s17, s7, 0xffff
    s_branch P_LD
    P_JPHI:
    s_mov_b32 s67, 2
    s_sub_u32 s38, s36, 196
    s_mul_i32 s20, s38, 1568
    s_add_u32 s21, s20, 896
    s_movk_i32 s50, 56
    s_mov_b32 s51, 4
    s_cmp_lt_u32 s38, 16
    s_cselect_b32 s18, 25088, 0
    s_waitcnt lgkmcnt(0)
    s_mov_b32 s16, s8
    s_and_b32 s17, s9, 0xffff
    s_branch P_LD
    P_PASS1:
    s_mul_i32 s37, s36, 9363
    s_lshr_b32 s37, s37, 16
    s_mul_i32 s38, s37, 7
    s_sub_u32 s38, s36, s38
    s_cmp_lt_u32 s36, 98
    s_cbranch_scc1 P_JW
    s_mov_b32 s67, 1
    s_sub_u32 s37, s36, 98
    s_and_b32 s38, s37, 15
    s_lshr_b32 s37, s37, 4
    s_mul_i32 s20, s38, 25088
    s_lshl_b32 s39, s37, 7
    s_add_u32 s20, s20, s39
    s_add_u32 s21, s20, 14336
    s_movk_i32 s50, 896
    s_mov_b32 s51, 4
    s_cmp_lt_u32 s37, 7
    s_cselect_b32 s18, {OSZ}, 0
    s_mov_b32 s16, s10
    s_and_b32 s17, s11, 0xffff
    P_LD:
    v_mov_b32 v4, {BIG}
    v_mul_lo_u32 v8, v2, s50
    s_lshl_b32 s39, s50, 3
    v_add_u32 v8, v8, v3
    v_cmp_gt_u32 vcc, s51, v2
    v_add_u32 v9, s39, v8
    s_mov_b32 m0, s49
    v_cndmask_b32 v10, v4, v9, vcc
    """.format(BIG=hex(BIG), WSZ=448 * 2688, OSZ=448 * 896))
    for u in range(2):
        a.vmem("buffer_load_dwordx4 v8, s[16:19], s%d offen lds" % (20 + u), "u%d" % u)
        a("s_add_u32 m0, s49, %d" % (u * 2048 + 1024))
        a("s_nop 0")
        a.vmem("buffer_load_dwordx4 v%d, s[16:19], s%d offen lds" % (10 if u else 9, 20 + u), "u%d" % u)
        if u == 0:
            a("s_add_u32 m0, s49, 2048")
            a("s_nop 0")
    assert not WSBASE
    a("""
    s_cmp_lt_u32 s57, 28
    s_cbranch_scc1 P_NOCODE
    s_cmp_lg_u32 s66, {CP}
    s_cbranch_scc1 P_NOCODE
    s_getpc_b64 s[60:61]
    K_PC:
    s_sub_u32 s60, s60, K_PC-{K}
    s_subb_u32 s61, s61, 0
    s_and_b32 s58, s57, 3
    s_lshl_b32 s58, s58, 12
    v_lshl_add_u32 v5, v0, 4, s58
    global_load_dwordx4 v[64:67], v5, s[60:61]
    v_add_u32 v5, 0x4000, v5
    v_min_u32 v5, CODE_END-{K}-16, v5
    global_load_dwordx4 v[68:71], v5, s[60:61]
    P_NOCODE:
    """.format(K=KNAME, CP=E("CPASS", 1)))
    srd(a, WS, 30, hex(WS_USED))
    srd(a, DBG, 28, "256")
    a("""
    s_mov_b64 s[64:65], -1
    v_mov_b32 v5, 0
    v_bfe_u32 v13, v1, 2, 2
    v_lshlrev_b32 v13, 7, v13
    v_lshrrev_b32 v14, 4, v1
    v_lshl_add_u32 v13, v14, 5, v13
    v_and_b32 v14, 3, v1
    v_lshl_add_u32 v13, v14, 3, v13
    v_add_u32 v13, s49, v13
    s_cmp_lg_u32 s67, 0
    s_cbranch_scc1 P_D2
    s_mul_i32 s39, s38, 37
    s_lshr_b32 s39, s39, 8
    s_mul_i32 s48, s39, 7
    s_sub_u32 s48, s38, s48
    s_lshl_b32 s48, s48, 6
    v_add_u32 v6, s48, v1
    v_mul_u32_u24 v7, 2341, v6
    v_lshrrev_b32 v7, 16, v7
    v_mul_u32_u24 v11, 28, v7
    v_sub_u32 v11, v6, v11
    v_lshlrev_b32 v11, 4, v11
    v_mul_u32_u24 v7, {WPH}, v7
    v_add_u32 v11, v11, v7
    v_add_u32 v12, 448, v11
    s_cmp_eq_u32 s39, 0
    s_cselect_b32 s48, 1, 2
    s_mul_i32 s48, s48, 896
    s_mul_i32 s24, s39, 896
    s_sub_u32 s24, s24, 896
    s_cmp_eq_u32 s39, 0
    s_cselect_b32 s24, {WPQ}, s24
    s_lshl_b32 s37, s37, 1
    s_mul_i32 s37, s37, s48
    s_add_u32 s24, s24, s37
    s_add_u32 s24, s24, {WPO}
    s_add_u32 s25, s24, s48
    v_add_u32 v14, 512, v13
    v_add_u32 v15, 1024, v13
    s_branch P_ST
    P_D2:
    v_add_u32 v14, 1024, v13
    v_add_u32 v15, 512, v13
    v_lshrrev_b32 v6, 5, v1
    v_and_b32 v7, 31, v1
    v_lshlrev_b32 v11, 4, v7
    s_cmp_eq_u32 s67, 2
    s_cbranch_scc1 P_D3
    v_lshl_add_u32 v11, v6, 10, v11
    v_add_u32 v12, 512, v11
    s_mul_i32 s24, s37, {UPG}
    s_lshl_b32 s39, s38, 12
    s_add_u32 s24, s24, s39
    s_add_u32 s24, s24, {OB}
    s_cmp_lt_u32 s37, 7
    s_cselect_b32 s24, s24, 0x08000000
    s_add_u32 s25, s24, 2048
    s_branch P_ST
    P_D3:
    v_mul_u32_u24 v6, 0x7f0000, v6
    v_lshl_add_u32 v11, v6, 4, v11
    v_add_u32 v12, 512, v11
    s_mul_i32 s24, s38, {WPH}
    s_add_u32 s24, s24, {PHB}
    s_cmp_lt_u32 s38, 16
    s_cselect_b32 s24, s24, 0x08000000
    s_add_u32 s25, s24, 1024
    s_mov_b32 s64, 0x0fffffff
    P_ST:
    """.format(WPH=WP_H, WPQ=WP_Q, WPO=hex(WP_OFF), UPG=UP_G, OB=hex(UP_OFF + 112 * 2048), PHB=hex(WP_OFF + WP_PHI)))
    for u in range(2):
        b = 16 + 8 * u
        a.wait(vm="u%d" % u)
        a.ds("ds_read_b64_tr_b16 %s, v13 offset:%d" % (vr(b, 2), u * 2048), "t%d" % u)
        a.ds("ds_read_b64_tr_b16 %s, v14 offset:%d" % (vr(b + 2, 2), u * 2048), "t%d" % u)
        a.ds("ds_read_b64_tr_b16 %s, v15 offset:%d" % (vr(b + 4, 2), u * 2048), "t%d" % u)
        a.ds("ds_read_b64_tr_b16 %s, v13 offset:%d" % (vr(b + 6, 2), u * 2048 + 1536), "t%d" % u)
    a.drain(vm=False)
    for u in range(2):
        b = 16 + 8 * u
        for r in range(8): a("v_cndmask_b32 v%d, 0, v%d, s[64:65]" % (b + r, b + r))
        a.vmem("buffer_store_dwordx4 %s, v11, s[32:35], s%d offen sc1" % (vr(b, 4), 24 + u))
        a.vmem("buffer_store_dwordx4 %s, v12, s[32:35], s%d offen sc1" % (vr(b + 4, 4), 24 + u))
    a.vmem("buffer_load_dword v4, v5, s[44:47], 0 offen sc1")
    a.drain()
    a("s_barrier")
    a("s_cmp_lg_u32 s14, 3")
    a("s_cbranch_scc1 P_NEXT")
    a("v_readfirstlane_b32 s61, v4")
    a("s_cmp_lg_u32 s61, 0")
    a("s_cbranch_scc1 P_RDY")
    poll(a, DBG, "0", 5, 4)
    a.label("P_RDY")
    assert SV_REL - SV_CNT == SW_REL - SW_CNT
    a("s_mul_i32 s20, s66, %d" % ((SV_CNT - SW_CNT) * SL))
    a("s_add_u32 s20, s20, %s" % hex(SYNC_OFF + SW_CNT * SL))
    arrive_issue(a, "s20")
    a.drain(vm=False)
    a("s_cmp_lg_u32 s62, 59")
    a("s_cbranch_scc1 P_NEXT")
    a("s_mov_b32 s62, 1")
    for i in range(8): a("s_atomic_add s62, s[30:31], s20 offset:%d" % ((SW_REL - SW_CNT + i) * SL))
    a.label("P_NEXT")
    if STAMP == 1:
        a("s_cmp_lg_u32 s66, 0")
        a("s_cbranch_scc1 P_NS")
        stamp(a, 6)
        a.label("P_NS")
    a("s_add_u32 s66, s66, 1")
    a("s_cmp_eq_u32 s66, 1")
    a("s_cbranch_scc1 P_PASS1")
    a.label("P_NOARR")
    if WSBASE:
        a("s_sub_u32 s30, s30, %s" % hex(WSBASE))
        a("s_subb_u32 s31, s31, 0")
    a("s_cmp_lt_u32 s57, 28")
    a("s_cbranch_scc1 ROLE_G")
    stamp(a, 1)
    if ONLYA or not E("PON", 1): a("s_endpgm")
    a("""
    s_and_b32 s36, s57, 3
    s_lshl_b32 s37, s56, 2
    s_add_u32 s37, s37, s36
    s_lshl_b32 s37, s37, 7
    s_mul_i32 s58, s14, {W64}
    s_add_u32 s58, s58, s37
    s_add_u32 s58, s58, {R0}
    s_cmp_eq_u32 s56, 7
    s_cselect_b32 s58, 0x08000000, s58
    v_mul_u32_u24 v6, 3584, v2
    v_add_u32 v6, v6, v3
    """.format(W64=64 * 3584, R0=1792 * 3584))
    srd(a, 16, 40, str(2048 * 3584))
    for i in range(0 if HELP else 8):
        a("buffer_load_dwordx4 %s, v6, s[16:19], s58 offen nt" % vr(16 + 4 * i, 4))
        a("s_add_u32 s58, s58, %d" % (8 * 3584))
    a("""
    s_lshl_b32 s36, s36, 2
    s_add_u32 s36, s36, s14
    v_lshrrev_b32 v2, 5, v1
    v_lshlrev_b32 v2, 12, v2
    v_and_b32 v3, 31, v1
    v_lshl_add_u32 v2, v3, 4, v2
    s_lshl_b32 s58, s56, 9
    v_add_u32 v2, s58, v2
    v_lshlrev_b32 v1, 4, v1
    v_mov_b32 v3, 0
    s_mul_i32 s37, s56, 229376
    """)
    srd(a, 24, 52, str(1792 * 4096))
    srd(a, 16, 4, "229376", add="s37")
    PD = E("PDEPTH", 8)
    a("s_setprio %d" % E("PRIO_P", 0))
    def pf_loop(lbl, srdn, vaddr, step, limit, pol):
        a.label(lbl)
        for i in range(8):
            a("s_waitcnt vmcnt(%d)" % (PD - 1))
            a("buffer_load_dwordx4 %s, v%d, s[%d:%d], s58 offen %s" % (vr(8 + 4 * i, 4), vaddr, srdn, srdn + 3, pol))
            a("s_add_u32 s58, s58, %d" % step)
        a("s_cmp_lt_u32 s58, %s" % limit)
        a("s_cbranch_scc1 %s" % lbl)
    def blk8k(sreg):
        a("s_waitcnt vmcnt(4)")
        for i in range(4): a("buffer_load_dwordx4 %s, v1, s[32:35], %s offen offset:%d sc1" % (vr(8 + 4 * i, 4), sreg, i * 1024))
        a("s_add_u32 s63, %s, 4096" % sreg)
        a("s_waitcnt vmcnt(4)")
        for i in range(4): a("buffer_load_dwordx4 %s, v1, s[32:35], s63 offen offset:%d sc1" % (vr(24 + 4 * i, 4), i * 1024))
    def tail_groups(lbl, base, gstride, n, with7, flag):
        a("s_and_b32 s48, s57, 3")
        a.label(lbl)
        if flag is not None:
            a("s_lshl_b32 s58, s48, 8")
            a("s_add_u32 s58, s58, %s" % hex(flag))
            poll(a, WS, "s58", 3, 4, sleep=4)
        a("s_mul_i32 s49, s48, %d" % gstride)
        a("s_lshl_b32 s50, s14, 13")
        a("s_add_u32 s49, s49, s50")
        a("s_add_u32 s49, s49, %s" % hex(base))
        for q in range(n):
            if with7 and q == n - 1: a("s_add_u32 s51, s49, %d" % (7 * 32768))
            else:
                back = n - (1 if with7 else 0) - q
                a("s_add_u32 s51, s48, %d" % (7 - back))
                a("s_sub_u32 s50, s51, 7")
                a("s_cselect_b32 s51, s51, s50")
                a("s_lshl_b32 s51, s51, 15")
                a("s_add_u32 s51, s51, s49")
            blk8k("s51")
        a("s_add_u32 s48, s48, 4")
        a("s_cmp_lt_u32 s48, 7")
        a("s_cbranch_scc1 %s" % lbl)
    def wait_s0():
        a("s_movk_i32 s58, 0x80")
        poll(a, DBG, "s58", 3, 4, sleep=8)
    def pf_wo():
        a("s_lshl_b32 s58, s36, 12")
        a("s_add_u32 s58, s58, %s" % hex(UP_OFF + 112 * 2048))
        for g_ in range(7):
            a("s_waitcnt vmcnt(4)")
            for i in range(4): a("buffer_load_dwordx4 %s, v1, s[32:35], s58 offen offset:%d sc1" % (vr(8 + 16 * (g_ % 2) + 4 * i, 4), i * 1024))
            a("s_add_u32 s58, s58, %d" % UP_G)
    if not E("PEARLY", 0): wait_s0()
    stamp(a, 2)
    a("s_lshl_b32 s58, s36, 13")
    pf_loop("P_W2", 24, 2, 16 * 8192, str(E("PFA", 1024) * 4096), PFPOL)
    stamp(a, 3)
    a("s_mov_b32 s48, s58")
    if E("PWO", 2) == 1: pf_wo()
    a("s_lshl_b32 s58, s36, 10")
    if E("PX", 1): pf_loop("P_X", 16, 1, 16 * 1024, "229376", PFPOL)
    stamp(a, 4)
    a("s_mov_b32 s58, s48")
    if E("PTAIL", 1): pf_loop("P_W3", 24, 2, 16 * 8192, str(1792 * 4096), PFPOL)
    stamp(a, 5)
    if E("PEARLY", 0): wait_s0()
    if E("PWO", 2) == 2: pf_wo()
    if E("NUT", 0): tail_groups("P_UT", UP_OFF, UP_G, E("NUT", 0), False, SYNC_OFF + S4_REL * SL)
    if E("POF", 0):
        a("s_and_b32 s48, s57, 3")
        a("s_lshl_b32 s49, s56, 2")
        a("s_add_u32 s48, s48, s49")
        a("s_lshl_b32 s58, s48, 8")
        a("s_add_u32 s58, s58, %s" % hex(SYNC_OFF + S2_REL * SL))
        poll(a, WS, "s58", 3, 4, sleep=4)
        a("s_lshl_b32 s51, s48, 16")
        a("s_lshl_b32 s50, s14, 14")
        a("s_add_u32 s51, s51, s50")
        a("s_add_u32 s51, s51, %s" % hex(OF_OFF))
        blk8k("s51")
        a("s_add_u32 s51, s51, 8192")
        blk8k("s51")
    if STAMP == 1: stamp_flush(a, 7, 60)
    a("s_endpgm")
    a.label("CODE_END")
    if DIAG:
        out = HEADER + "; @launch kernel=%s grid=(512,1,1) block=(256,1,1) lds=81920\n; @launch kernel=diag_kernel grid=(1,1,1) block=(64,1,1) lds=0\n" % KNAME
        a.lines += [".globl diag_kernel", ".p2align 8", ".type diag_kernel,@function"]
        a("""
        diag_kernel:
        s_cmp_lg_u32 s2, 0
        s_cbranch_scc1 DG_END
        s_load_dwordx2 s[4:5], s[0:1], 80
        s_waitcnt lgkmcnt(0)
        s_sub_u32 s4, s4, 512
        s_subb_u32 s5, s5, 0
        s_load_dwordx2 s[6:7], s[4:5], 128
        s_memrealtime s[8:9]
        s_waitcnt lgkmcnt(0)
        s_not_b32 s6, s6
        s_sub_u32 s6, s7, s6
        s_min_u32 s6, s6, 10000
        s_mul_i32 s6, s6, %d
        DG_L:
        s_memrealtime s[10:11]
        s_waitcnt lgkmcnt(0)
        s_sub_u32 s10, s10, s8
        s_cmp_lt_u32 s10, s6
        s_cbranch_scc1 DG_L
        DG_END:
        s_endpgm
        """ % E("AMP", 10))
    else:
        out = HEADER + "; @launch grid=(512,1,1) block=(256,1,1) lds=81920\n"
    out += '.amdgcn_target "amdgcn-amd-amdhsa--gfx950"\n' + DOC + '.text\n.globl %s\n.p2align 8\n.type %s,@function\n' % (KNAME, KNAME)
    out += a.text()
    out += """.section .rodata,"a"
.p2align 6
.amdhsa_kernel {n}
  .amdhsa_next_free_vgpr 256
  .amdhsa_next_free_sgpr {s}
  .amdhsa_accum_offset 256
  .amdhsa_group_segment_fixed_size 0
  .amdhsa_kernarg_size 96
  .amdhsa_user_sgpr_count 2
  .amdhsa_user_sgpr_kernarg_segment_ptr 1
  .amdhsa_system_sgpr_workgroup_id_x 1
  .amdhsa_float_denorm_mode_32 3
.end_amdhsa_kernel
""".format(n=KNAME, s=100 if STAMP else 72)
    if DIAG:
        out += """.p2align 6
.amdhsa_kernel diag_kernel
  .amdhsa_next_free_vgpr 8
  .amdhsa_next_free_sgpr 32
  .amdhsa_accum_offset 8
  .amdhsa_group_segment_fixed_size 0
  .amdhsa_kernarg_size 96
  .amdhsa_user_sgpr_count 2
  .amdhsa_user_sgpr_kernarg_segment_ptr 1
  .amdhsa_system_sgpr_workgroup_id_x 1
.end_amdhsa_kernel
"""
    if E("NONT", 1):
        import re
        out = re.sub(r" nt$", "", out, flags=re.M).replace(" nt lds", " lds")
    open(path, "w").write(out)

if __name__ == "__main__":
    main(sys.argv[1])
```
